```python
import torch

def _softmax(x, axis=-1):
    return torch.softmax(x, dim=axis)
def _gelu(x):
    return torch.nn.functional.gelu(x, approximate="tanh")
def _silu(x):
    return torch.nn.functional.silu(x)
def _sigmoid(x):
    return torch.sigmoid(x)
def _layernorm(x, axis=-1, eps=1e-5):
    m = x.mean(dim=axis, keepdim=True)
    v = x.var(dim=axis, keepdim=True, unbiased=False)
    return (x - m) / torch.sqrt(v + eps)
def _scatter_add(tgt, idx, src, axis=0):
    return tgt.clone().index_add_(axis, idx, src)
def _segment_sum(src, seg, n):
    out = torch.zeros((n,) + src.shape[1:], dtype=src.dtype)
    return out.index_add_(0, seg, src)
def _pad(x, pw):
    flat = tuple(v for pair in reversed(pw) for v in pair)
    return torch.nn.functional.pad(x, flat)

kernel_name = 'sequential_preLN__compressed_kv_cla__swiglu_ffn__decode'

def setup_inputs():

    _w = (lambda a: (lambda t: t.to(torch.bfloat16) if t.is_floating_point() else t)(torch.as_tensor(a)))
    def _A_setup():
        B, H, Sq, Sk, D, M = 4, 32, 1, 4096, 128, 512
        Dc = 4 * D
        return {
            "x": _w((lambda *s: torch.randn(*s, dtype=torch.bfloat16) * 0.05)(B, Sq, M)),
            "c_kv": _w((lambda *s: torch.randn(*s, dtype=torch.bfloat16) * 0.4)(B, Sk, Dc)),
            "w_q": _w((lambda *s: torch.randn(*s, dtype=torch.bfloat16) * 3.2)(M, H, D) * (M ** -0.5)),
            "w_uk": _w((lambda *s: torch.randn(*s, dtype=torch.bfloat16) * 3.2)(Dc, H, D) * (Dc ** -0.5)),
            "w_uv": _w((lambda *s: torch.randn(*s, dtype=torch.bfloat16) * 0.4)(Dc, H, D) * (Dc ** -0.5)),
            "w_o": _w((lambda *s: torch.randn(*s, dtype=torch.bfloat16) * 0.4)(H, D, M) * ((H * D) ** -0.5)),
        }
    _A_in = _A_setup()

    def _B_setup():
        B, S, D, F = 4, 1, 512, 1376
        return {
            "x": _w((lambda *s: torch.randn(*s, dtype=torch.bfloat16) * 0.05)(B, S, D)),
            "w_gate": _w((lambda *s: torch.randn(*s, dtype=torch.bfloat16) * 0.05)(D, F)),
            "w_up": _w((lambda *s: torch.randn(*s, dtype=torch.bfloat16) * 0.05)(D, F)),
            "w_down": _w((lambda *s: torch.randn(*s, dtype=torch.bfloat16) * 0.05)(F, D)),
        }
    _B_in = _B_setup()

    return {
        "A_x": _A_in["x"],
        "A_c_kv": _A_in["c_kv"],
        "A_w_q": _A_in["w_q"],
        "A_w_uk": _A_in["w_uk"],
        "A_w_uv": _A_in["w_uv"],
        "A_w_o": _A_in["w_o"],
        "B_x": _B_in["x"],
        "B_w_gate": _B_in["w_gate"],
        "B_w_up": _B_in["w_up"],
        "B_w_down": _B_in["w_down"],
    }

def reference(A_x, A_c_kv, A_w_q, A_w_uk, A_w_uv, A_w_o, B_x, B_w_gate, B_w_up, B_w_down):
    def _A_ref(x, c_kv, w_q, w_uk, w_uv, w_o):
        B, Sq, M = x.shape[0], x.shape[1], x.shape[2]
        Sk = c_kv.shape[1]
        H, D = w_q.shape[1], w_q.shape[2]
        q = torch.einsum("bqm,mhd->bhqd", x, w_q)
        k = torch.einsum("bkc,chd->bhkd", c_kv, w_uk)
        v = torch.einsum("bkc,chd->bhkd", c_kv, w_uv)
        scores = torch.einsum("bhqd,bhkd->bhqk", q, k) * (D ** -0.5)
        off = Sk - Sq
        qi = torch.arange(Sq)[:, None]
        kj = torch.arange(Sk)[None, :]
        cmask = kj <= (qi + off)
        scores = torch.where(cmask[None, None], scores, -1e9)
        p = _softmax(scores, axis=-1)
        ctx = torch.einsum("bhqk,bhkd->bhqd", p, v)
        return torch.einsum("bhqd,hdm->bqm", ctx, w_o)

    def _B_ref(x, w_gate, w_up, w_down):
        g = _silu(x @ w_gate)
        u = x @ w_up
        return (g * u) @ w_down

    x = A_x
    h = x + _A_ref(_layernorm(x, axis=-1), A_c_kv, A_w_q, A_w_uk, A_w_uv, A_w_o)
    h2 = h + _B_ref(_layernorm(h, axis=-1), B_w_gate, B_w_up, B_w_down)
    return h2
```

```python
import re

KNAME = "sequential_preLN__compressed_kv_cla__swiglu_ffn__decode_kernel"
TRANS = ("v_exp_f32", "v_log_f32", "v_rcp_f32", "v_rsq_f32", "v_sqrt_f32", "v_sin_f32", "v_cos_f32", "v_rcp_iflag_f32")
_REG = re.compile(r"\b([vsa])(\d+)\b|\b([vsa])\[(\d+):(\d+)\]|\b(vcc|exec|m0|scc)\b")

def regs_of(op):
    out = []
    for m in _REG.finditer(op):
        if m.group(1):
            out.append((m.group(1), int(m.group(2))))
        elif m.group(3):
            out += [(m.group(3), i) for i in range(int(m.group(4)), int(m.group(5)) + 1)]
        else:
            out.append((m.group(6), 0))
    return out

def split_ops(s):
    ops, depth, cur = [], 0, ""
    for ch in s:
        if ch in "[(":
            depth += 1
        if ch in "])":
            depth -= 1
        if ch == "," and depth == 0:
            ops.append(cur.strip()); cur = ""
        else:
            cur += ch
    if cur.strip():
        ops.append(cur.strip())
    return ops

class Asm:
    def __init__(self):
        self.lines = []
        self.t = 0
        self.wr = {}
        self.mfma_d = {}
        self.srcc = {}
        self.stdata = {}
        self.nlabel = 0
        self.ninstr = 0

    def comment(self, s):
        self.lines.append("    ; " + s)
    def raw(self, s):
        self.lines.append(s)
    def newlabel(self, base="L"):
        self.nlabel += 1
        return "%s_%d" % (base, self.nlabel)
    def flush(self):
        need = 0
        for r, (t, c) in self.wr.items():
            if c == "mfma": need = max(need, 8 - (self.t - t))
            elif c in ("valu", "trans"):
                need = max(need, (5 if r[0] in ("s", "vcc", "exec") else 2) - (self.t - t))
            elif c == "salu" and r[0] == "m0": need = max(need, 1 - (self.t - t))
        for r, t in self.srcc.items(): need = max(need, 3 - (self.t - t))
        for r, t in self.stdata.items(): need = max(need, 2 - (self.t - t))
        self.nop(need)
    def label(self, name):
        self.flush()
        self.lines.append(name + ":")
    def nop(self, n):
        while n > 0:
            k = min(n, 16)
            self.lines.append("    s_nop %d" % (k - 1))
            self.t += k; n -= k; self.ninstr += 1

    def __call__(self, text):
        for l in text.strip("\n").split("\n"):
            l = l.strip()
            if not l: continue
            if l.startswith(";"):
                self.lines.append("    " + l); continue
            if l.endswith(":"):
                self.label(l[:-1]); continue
            self.ins(l)

    def ins(self, l):
        code = l.split(";")[0].strip()
        parts = code.split(None, 1)
        op = parts[0]
        rest = parts[1] if len(parts) > 1 else ""
        if op == "s_nop":
            self.lines.append("    " + l); self.t += int(rest, 0) + 1; self.ninstr += 1
            return
        ops = split_ops(rest)
        is_mfma = op.startswith("v_mfma")
        is_valu = op.startswith("v_") and not is_mfma
        is_ds = op.startswith("ds_")
        is_vmem = op.startswith(("buffer_", "global_", "flat_"))
        is_salu = op.startswith("s_")
        is_dpp = is_valu and ("_dpp" in op or re.search(r"\b(row_|quad_perm|wave_)", rest) is not None)
        is_perml = op.startswith("v_permlane")
        is_rdl = op.startswith(("v_readlane", "v_readfirstlane"))
        dst, src = [], []
        if is_mfma:
            dst = regs_of(ops[0]); A = regs_of(ops[1]); B = regs_of(ops[2]); C = regs_of(ops[3])
            src = A + B + C
        elif is_valu:
            nd = 1
            if op.startswith(("v_add_co", "v_sub_co", "v_addc_co", "v_subb_co", "v_div_scale", "v_mad_u64")): nd = 2
            for o in ops[:nd]: dst += regs_of(o)
            for o in ops[nd:]: src += regs_of(o)
            if op.startswith(("v_fmac", "v_dot2c", "v_pk_fmac")) or is_perml or op.startswith("v_writelane"):
                src += dst
            if is_perml: dst = dst + regs_of(ops[1])
            if is_dpp: src += []
            if op.startswith("v_cmpx"): dst.append(("exec", 0))
        elif is_ds:
            if op.startswith(("ds_read", "ds_bpermute", "ds_permute", "ds_swizzle")) or "_rtn" in op:
                dst = regs_of(ops[0])
                for o in ops[1:]: src += regs_of(o)
            else:
                for o in ops: src += regs_of(o)
        elif is_vmem:
            lds = re.search(r"\blds\b", rest) is not None or "_lds_" in op
            if "load" in op and not lds:
                dst = regs_of(ops[0])
                for o in ops[1:]: src += regs_of(o)
            else:
                for o in ops: src += regs_of(o)
            if lds: src.append(("m0", 0))
        elif is_salu:
            if op.startswith(("s_cmp", "s_cbranch", "s_branch", "s_waitcnt", "s_barrier", "s_endpgm", "s_sleep", "s_setprio", "s_bitcmp", "s_setpc")):
                for o in ops: src += regs_of(o)
            else:
                if ops: dst = regs_of(ops[0])
                for o in ops[1:]: src += regs_of(o)
                if "saveexec" in op: dst.append(("exec", 0))
        need = 0
        def dist(t): return self.t - t
        for r in src:
            w = self.wr.get(r)
            if not w: continue
            t, c = w
            if r[0] in ("v", "a"):
                if c == "mfma":
                    if is_mfma and r in C and r not in A and r not in B:
                        _, rng, opn = self.mfma_d[r]
                        same = (rng == (C[0], C[-1])) and opn == op
                        need = max(need, (0 if same else 6) - dist(t))
                    else:
                        need = max(need, 8 - dist(t))
                elif c in ("valu", "trans"):
                    if is_mfma: need = max(need, 2 - dist(t))
                    if is_dpp or is_perml: need = max(need, 2 - dist(t))
                    if is_rdl: need = max(need, 1 - dist(t))
                    if c == "trans" and is_valu and op.replace("_e32", "").replace("_e64", "") not in TRANS:
                        need = max(need, 1 - dist(t))
                    if c == "trans" and (is_ds or is_vmem): need = max(need, 1 - dist(t))
            elif r[0] in ("s", "vcc"):
                if c in ("valu", "trans"):
                    if is_vmem: need = max(need, 5 - dist(t))
                    elif is_rdl or op.startswith("v_writelane"): need = max(need, 4 - dist(t))
                    elif is_valu or is_mfma: need = max(need, 2 - dist(t))
                    elif is_salu: need = max(need, 1 - dist(t))
            elif r[0] == "m0":
                if c == "salu" and (is_vmem or is_ds): need = max(need, 1 - dist(t))
        for r in dst:
            w = self.wr.get(r)
            if w and r[0] in ("v", "a") and w[1] == "mfma":
                if is_mfma:
                    if r not in C: need = max(need, 8 - dist(w[0]))
                else:
                    need = max(need, 8 - dist(w[0]))
            if r in self.srcc and is_valu: need = max(need, 3 - dist(self.srcc[r]))
            if r in self.stdata: need = max(need, (2 if (is_valu or is_mfma) else 1) - dist(self.stdata[r]))
        w = self.wr.get(("exec", 0))
        if w and w[1] == "valu":
            if is_dpp: need = max(need, 5 - dist(w[0]))
            if is_mfma or is_perml or is_rdl: need = max(need, 4 - dist(w[0]))
        if op.startswith(("s_cbranch", "s_branch", "s_setpc")):
            self.flush(); need = 0
        self.nop(need)
        self.lines.append("    " + l)
        self.t += 1; self.ninstr += 1
        cls = "mfma" if is_mfma else ("trans" if op.replace("_e32", "").replace("_e64", "") in TRANS else ("valu" if is_valu else ("salu" if is_salu else "mem")))
        for r in dst:
            self.wr[r] = (self.t, cls)
            if is_mfma: self.mfma_d[r] = (self.t, (dst[0], dst[-1]), op)
        if is_mfma:
            for r in C: self.srcc[r] = self.t
        if is_vmem and "store" in op and ("x4" in op or "x3" in op):
            dop = ops[0] if op.startswith("buffer_") else ops[1]
            for r in regs_of(dop): self.stdata[r] = self.t

    def text(self):
        return "\n".join(self.lines) + "\n"

def wrap_single(body, grid, block, lds, vgpr=256, agpr=0, sgpr=102, header=""):
    acc = (vgpr + 3) // 4 * 4
    nfv = acc + agpr if agpr else vgpr
    return f"""{header}; @launch grid=({grid},1,1) block=({block},1,1) lds={lds}
.amdgcn_target "amdgcn-amd-amdhsa--gfx950"
.text
.globl {KNAME}
.p2align 8
.type {KNAME},@function
{KNAME}:
{body}
    s_endpgm
.section .rodata,"a"
.p2align 6
.amdhsa_kernel {KNAME}
  .amdhsa_next_free_vgpr {nfv}
  .amdhsa_next_free_sgpr {sgpr}
  .amdhsa_accum_offset {acc}
  .amdhsa_group_segment_fixed_size 0
  .amdhsa_kernarg_size 104
  .amdhsa_user_sgpr_count 2
  .amdhsa_user_sgpr_kernarg_segment_ptr 1
  .amdhsa_system_sgpr_workgroup_id_x 1
.end_amdhsa_kernel
"""
```

```python
import sys, math
from asmgen import *

PROF = "--prof" in sys.argv
OUT = [a for a in sys.argv[1:] if not a.startswith("--")]
OUT = OUT[0] if OUT else "sequential_preLN__compressed_kv_cla__swiglu_ffn__decode.s"
POLL_MAX = 1 << 15

EPOCH_OFF = 0x0
QA_OFF = 0x10000
ML_OFF = 0x50000
HG_OFF = 0x58000
PA_OFF = 0x80000
PF_OFF = 0x100000
O_OFF = 0x200000
TS_OFF = 0x1000000
WS_USED = 0x1100000

L_CKV = 0
L_QS = 131072
L_XN = 147456
L_Q16 = 151616
L_MX = 152640
L_PX = 153152
L_CL = 157248
L_LL = 159424
L_CX = 159488
L_RED = 160576
L_CS = 162624
LDS_BYTES = 163840
L_WUV = 0
L_WO = 32768
L_GU = 98304
L_WD = L_QS
L_FX = L_PX

sW, sX, sY, sH, sJ, sCQ, sMH, sHGB, sCH, sEP = 3, 4, 5, 6, 7, 8, 9, 10, 11, 12
sT = list(range(13, 24))
sO, sPA, sPF, sPHI, sRHO, sISF, sISR, sCNT = 24, 25, 26, 27, 28, 29, 30, 31
R_X, R_CKV, R_WQ, R_WUK, R_WUV, R_WO, R_WG, R_WU, R_WD, R_OUT, R_WS, R_PF = [32 + 4 * i for i in range(12)]
sSELLO, sSELHI = 80, 81
sEX = 82
sM4 = 84
sACC = 86
sC2 = 88
sTS = 90
def srd(r): return f"s[{r}:{r+3}]"

vTID, vL, vN, vG = 0, 1, 2, 3
vO, vPA, vPF, vF, vTSA = 4, 5, 6, 7, 8
vX0 = 9
vT = list(range(13, 32))
RW_UV, RW_O, RW_GU, RW_D = 32, 48, 80, 96
R1, R2, R3 = 104, 168, 232
def v(i, n=1): return f"v{i}" if n == 1 else f"v[{i}:{i+n-1}]"

def fsw(row):
    return 2 * ((row & 7) ^ (4 * (row >> 3))) + (row >> 3)

a = Asm()
ts_idx = [0]
def stamp(name):
    if not PROF: return
    i = ts_idx[0]; ts_idx[0] += 1
    a(f"""
    s_memrealtime s[{sTS}:{sTS+1}]
    s_waitcnt lgkmcnt(0)
    v_writelane_b32 v{vTSA}, s{sTS}, {i}
    """)
    print(f"stamp {i}: {name}", file=sys.stderr)

def poll_begin(name):
    a(f"s_mov_b32 s{sCNT}, 0")
    a.label(name)

def poll_end(name, bad_mask_sgpr_pair_or_vcc="vcc"):
    done = a.newlabel("Lpd")
    a(f"""
    s_cmp_eq_u64 {bad_mask_sgpr_pair_or_vcc}, 0
    s_cbranch_scc1 {done}
    s_add_u32 s{sCNT}, s{sCNT}, 1
    s_cmp_lt_u32 s{sCNT}, {POLL_MAX}
    s_cbranch_scc1 {name}
    """)
    a.label(done)

def poison_check(regs, tmp):
    regs = list(regs)
    n = len(regs)
    if n >= 3:
        a(f"v_max3_u32 v{tmp}, v{regs[0]}, v{regs[1]}, v{regs[2]}")
        i = 3
    else:
        a(f"v_max_u32 v{tmp}, v{regs[0]}, v{regs[1]}")
        i = 2
    while i + 1 < n:
        a(f"v_max3_u32 v{tmp}, v{tmp}, v{regs[i]}, v{regs[i+1]}")
        i += 2
    if i < n:
        a(f"v_max_u32 v{tmp}, v{tmp}, v{regs[i]}")
    a(f"v_cmp_eq_u32 vcc, -1, v{tmp}")

a(f"""
s_cmp_ge_u32 s2, 256
s_cbranch_scc1 L_end
s_load_dwordx2 s[{R_WQ}:{R_WQ+1}], s[0:1], 16
s_load_dwordx2 s[{R_X}:{R_X+1}], s[0:1], 0
s_load_dwordx2 s[{R_WS}:{R_WS+1}], s[0:1], 96
s_load_dwordx2 s[{R_WUK}:{R_WUK+1}], s[0:1], 24
s_load_dwordx2 s[{R_CKV}:{R_CKV+1}], s[0:1], 8
s_load_dwordx2 s[{R_WUV}:{R_WUV+1}], s[0:1], 32
s_load_dwordx2 s[{R_WO}:{R_WO+1}], s[0:1], 40
s_load_dwordx2 s[{R_WG}:{R_WG+1}], s[0:1], 56
s_load_dwordx2 s[{R_WU}:{R_WU+1}], s[0:1], 64
s_load_dwordx2 s[{R_WD}:{R_WD+1}], s[0:1], 72
s_load_dwordx2 s[{R_OUT}:{R_OUT+1}], s[0:1], 80
v_lshrrev_b32 v{vT[0]}, 6, v0
v_and_b32 v{vL}, 63, v0
v_and_b32 v{vN}, 15, v0
v_readfirstlane_b32 s{sW}, v{vT[0]}
v_bfe_u32 v{vG}, v0, 4, 2
""")
if PROF:
    a(f"v_mov_b32 v{vTSA}, 0")
for r, nb in [(R_WQ, 4 << 20), (R_X, 4096), (R_WS, WS_USED), (R_WUK, 4 << 20), (R_CKV, 16 << 20), (R_WUV, 4 << 20), (R_WO, 4 << 20),
              (R_WG, 512 * 1376 * 2), (R_WU, 512 * 1376 * 2), (R_WD, 512 * 1376 * 2), (R_OUT, 4096), (R_PF, 86 * 128)]:
    a(f"s_mov_b32 s{r+2}, {nb}")
    a(f"s_mov_b32 s{r+3}, 0x20000")
a(f"""
s_and_b32 s{sX}, s2, 7
s_lshr_b32 s{sY}, s2, 3
s_and_b32 s{sT[0]}, s{sY}, 1
s_xor_b32 s{sHGB}, s{sT[0]}, 1
s_lshl_b32 s{sH}, s{sT[0]}, 4
s_lshl_b32 s{sT[1]}, s{sX}, 1
s_add_u32 s{sH}, s{sH}, s{sT[1]}
s_bfe_u32 s{sT[1]}, s{sY}, 0x10001
s_add_u32 s{sH}, s{sH}, s{sT[1]}
s_lshr_b32 s{sJ}, s{sY}, 2
s_and_b32 s{sCQ}, s{sJ}, 3
s_lshr_b32 s{sMH}, s{sJ}, 2
s_lshl_b32 s{sCH}, s{sX}, 4
s_lshr_b32 s{sT[1]}, s{sY}, 1
s_add_u32 s{sCH}, s{sCH}, s{sT[1]}
s_mov_b32 s{sSELLO}, 0x05040100
s_mov_b32 s{sSELHI}, 0x07060302
s_mov_b32 s{sM4}, 0x000f000f
s_mov_b32 s{sM4+1}, 0x000f000f
""")
a(f"""
v_lshlrev_b32 v{vT[0]}, 16, v{vG}
v_lshl_add_u32 v{vT[0]}, v{vN}, 4, v{vT[0]}
s_lshl_b32 s{sT[0]}, s{sW}, 19
s_lshl_b32 s{sT[1]}, s{sH}, 8
s_add_u32 s{sT[0]}, s{sT[0]}, s{sT[1]}
v_lshlrev_b32 v{vT[1]}, 4, v{vL}
s_and_b32 s{sT[2]}, s{sW}, 3
s_lshl_b32 s{sT[2]}, s{sT[2]}, 10
s_waitcnt lgkmcnt(0)
""")
stamp("start")
vXR = R3 + 16
a(f"buffer_load_dwordx4 {v(vXR,4)}, v{vT[1]}, {srd(R_X)}, s{sT[2]} offen")
a(f"s_load_dword s{sEP}, s[{R_WS}:{R_WS+1}], {EPOCH_OFF}")
for i in range(16):
    u, e = i >> 3, i & 7
    off = (32 * u + e) * 8192
    if off:
        a(f"s_add_u32 s{sT[3]}, s{sT[0]}, {off}")
        so = sT[3]
    else:
        so = sT[0]
    a(f"buffer_load_dwordx4 {v(R1+4*i,4)}, v{vT[0]}, {srd(R_WQ)}, s{so} offen nt")
a(f"""
s_and_b32 s{sT[2]}, s{sW}, 3
s_lshl_b32 s{sT[2]}, s{sT[2]}, 4
s_lshl_b32 s{sT[3]}, s{sJ}, 6
s_add_u32 s{sT[2]}, s{sT[2]}, s{sT[3]}
s_lshl_b32 s{sT[2]}, s{sT[2]}, 13
s_add_u32 s{sT[2]}, s{sT[2]}, s{sT[1]}
v_lshlrev_b32 v{vT[2]}, 13, v{vN}
v_lshl_add_u32 v{vT[2]}, v{vG}, 6, v{vT[2]}
""")
for t in range(4):
    a(f"buffer_load_dwordx4 {v(R3+4*t,4)}, v{vT[2]}, {srd(R_WUK)}, s{sT[2]} offen offset:{16*t} nt")

a(f"""
v_and_b32 v{vT[3]}, 1, v{vG}
v_lshlrev_b32 v{vT[3]}, 5, v{vT[3]}
v_lshrrev_b32 v{vT[4]}, 1, v{vG}
v_lshl_add_u32 v{vT[3]}, v{vT[4]}, 4, v{vT[3]}
v_lshl_add_u32 v{vO}, v{vN}, 17, v{vT[3]}
s_lshl_b32 s{sO}, s{sHGB}, 21
s_lshr_b32 s{sT[3]}, s{sW}, 1
s_lshl_b32 s{sT[4]}, s{sT[3]}, 15
s_add_u32 s{sO}, s{sO}, s{sT[4]}
s_lshl_b32 s{sT[4]}, s{sCH}, 8
s_add_u32 s{sO}, s{sO}, s{sT[4]}
s_and_b32 s{sT[5]}, s{sW}, 1
s_lshl_b32 s{sT[4]}, s{sT[5]}, 7
s_add_u32 s{sO}, s{sO}, s{sT[4]}
s_add_u32 s{sO}, s{sO}, {O_OFF}
v_lshlrev_b32 v{vT[4]}, 4, v{vG}
v_lshl_add_u32 v{vPA}, v{vN}, 17, v{vT[4]}
s_lshl_b32 s{sPA}, s{sMH}, 2
s_add_u32 s{sPA}, s{sPA}, s{sT[3]}
s_lshl_b32 s{sPA}, s{sPA}, 14
s_lshl_b32 s{sT[4]}, s{sH}, 2
s_add_u32 s{sT[4]}, s{sT[4]}, s{sCQ}
s_lshl_b32 s{sT[4]}, s{sT[4]}, 7
s_add_u32 s{sPA}, s{sPA}, s{sT[4]}
s_lshl_b32 s{sT[4]}, s{sT[5]}, 6
s_add_u32 s{sPA}, s{sPA}, s{sT[4]}
s_add_u32 s{sPA}, s{sPA}, {PA_OFF}
s_mov_b32 s{sT[4]}, 98304
v_mul_lo_u32 v{vPF}, v{vN}, s{sT[4]}
v_add_u32 v{vPF}, v{vPF}, v{vT[4]}
s_mul_i32 s{sPHI}, s{sX}, 11
s_add_u32 s{sPHI}, s{sPHI}, s{sY}
s_cmp_lt_u32 s{sY}, 11
s_cselect_b32 s{sISF}, 1, 0
s_cmp_lt_u32 s{sPHI}, 86
s_cselect_b32 s{sISF}, s{sISF}, 0
s_mul_i32 s{sPF}, s{sW}, 12288
s_lshl_b32 s{sT[4]}, s{sPHI}, 7
s_add_u32 s{sPF}, s{sPF}, s{sT[4]}
s_add_u32 s{sPF}, s{sPF}, {PF_OFF}
s_cmp_ge_u32 s{sY}, 28
s_cselect_b32 s{sISR}, 1, 0
s_sub_u32 s{sRHO}, s2, 224
v_mov_b32 v{vT[8]}, -1
v_mov_b32 v{vT[9]}, -1
v_mov_b32 v{vT[10]}, -1
v_mov_b32 v{vT[7]}, -1
""")
PZ = vT[7]
assert PZ % 2 == 0
a(f"""
buffer_store_dwordx4 {v(PZ,4)}, v{vO}, {srd(R_WS)}, s{sO} offen sc1
buffer_store_dwordx4 {v(PZ,4)}, v{vO}, {srd(R_WS)}, s{sO} offen offset:64 sc1
s_mov_b64 exec, s[{sM4}:{sM4+1}]
buffer_store_dwordx4 {v(PZ,4)}, v{vPA}, {srd(R_WS)}, s{sPA} offen sc1
s_cmp_eq_u32 s{sISF}, 0
s_cbranch_scc1 L_noclrF
buffer_store_dwordx4 {v(PZ,4)}, v{vPF}, {srd(R_WS)}, s{sPF} offen sc1
buffer_store_dwordx4 {v(PZ,4)}, v{vPF}, {srd(R_WS)}, s{sPF} offen offset:64 sc1
L_noclrF:
s_mov_b64 exec, 0xff
s_lshl_b32 s{sT[4]}, s{sHGB}, 7
s_add_u32 s{sT[4]}, s{sT[4]}, s{sCH}
s_lshl_b32 s{sT[4]}, s{sT[4]}, 7
s_add_u32 s{sT[4]}, s{sT[4]}, {ML_OFF}
s_cmp_lg_u32 s{sW}, 7
s_cbranch_scc1 L_noclrML
buffer_store_dwordx4 {v(PZ,4)}, v{vT[1]}, {srd(R_WS)}, s{sT[4]} offen sc1
L_noclrML:
s_cmp_eq_u32 s{sISR}, 0
s_cbranch_scc1 L_noclrH
s_cmp_lg_u32 s{sW}, 0
s_cbranch_scc1 L_noclrH
s_lshl_b32 s{sT[4]}, s{sRHO}, 7
s_add_u32 s{sT[4]}, s{sT[4]}, {HG_OFF}
buffer_store_dwordx4 {v(PZ,4)}, v{vT[1]}, {srd(R_WS)}, s{sT[4]} offen sc1
L_noclrH:
s_mov_b64 exec, -1
""")
a(f"""
s_lshl_b32 s{sT[3]}, s{sW}, 14
s_lshl_b32 s{sT[4]}, s{sCH}, 17
s_add_u32 s{sT[4]}, s{sT[4]}, s{sT[3]}
""")
for i in range(16):
    if i % 4 == 0:
        a(f"s_add_u32 m0, s{sT[3]}, {i*1024}")
        a(f"s_add_u32 s{sT[5]}, s{sT[4]}, {i*1024}")
    tmp = vT[2 + (i & 1)]
    a(f"v_xor_b32 v{tmp}, {fsw(i)*16}, v{vT[1]}")
    a(f"buffer_load_dwordx4 v{tmp}, {srd(R_CKV)}, s{sT[5]} offen offset:{(i&3)*1024} nt lds")
stamp("loads issued")

a(f"""
v_lshrrev_b32 v{vT[2]}, 3, v{vN}
v_lshlrev_b32 v{vT[3]}, 2, v{vT[2]}
v_and_b32 v{vT[4]}, 7, v{vN}
v_xor_b32 v{vT[4]}, v{vT[4]}, v{vT[3]}
v_lshl_add_u32 v{vF}, v{vT[4]}, 1, v{vT[2]}
v_xor_b32 v{vT[2]}, v{vF}, v{vG}
v_lshlrev_b32 v{vT[2]}, 4, v{vT[2]}
v_lshl_add_u32 v{vX0}, v{vN}, 10, v{vT[2]}
v_xor_b32 v{vX0+1}, 64, v{vX0}
v_xor_b32 v{vX0+2}, 128, v{vX0}
v_xor_b32 v{vX0+3}, 192, v{vX0}
v_lshlrev_b32 v{vT[2]}, 2, v{vN}
v_add_u32 v{vT[2]}, {L_MX}, v{vT[2]}
v_mov_b32 v{vT[3]}, 0xff800000
ds_write_b32 v{vT[2]}, v{vT[3]}
""")

def wave_sum(x, tmp):
    for ctl in ["row_shr:1", "row_shr:2", "row_shr:4", "row_shr:8"]:
        a(f"v_add_f32_dpp v{x}, v{x}, v{x} {ctl} row_mask:0xf bank_mask:0xf bound_ctrl:0")
    a(f"v_add_f32_dpp v{x}, v{x}, v{x} row_bcast:15 row_mask:0xa bank_mask:0xf")
    a(f"v_add_f32_dpp v{x}, v{x}, v{x} row_bcast:31 row_mask:0xc bank_mask:0xf")

def rne_bf16(dst, src):
    a(f"v_cvt_pk_bf16_f32 v{dst}, v{src}, v{src}")
    a(f"v_and_b32 v{dst}, 0xffff0000, v{dst}")

XF = R2
a(f"s_waitcnt vmcnt(39)")
for i in range(4):
    a(f"v_lshlrev_b32 v{XF+2*i}, 16, v{vXR+i}")
    a(f"v_and_b32 v{XF+2*i+1}, 0xffff0000, v{vXR+i}")
t0, t1, t2, t3 = vT[2], vT[3], vT[4], vT[5]
a(f"v_add_f32 v{t0}, v{XF}, v{XF+1}")
for i in range(2, 8):
    a(f"v_add_f32 v{t0}, v{t0}, v{XF+i}")
wave_sum(t0, t1)
a(f"v_readlane_b32 s{sT[6]}, v{t0}, 63")
a(f"v_mov_b32 v{t0}, 0x3b000000")
a(f"v_mul_f32 v{t1}, s{sT[6]}, v{t0}")
a(f"v_sub_f32 v{t2}, v{XF}, v{t1}")
a(f"v_mul_f32 v{t3}, v{t2}, v{t2}")
for i in range(1, 8):
    a(f"v_sub_f32 v{t2}, v{XF+i}, v{t1}")
    a(f"v_fmac_f32 v{t3}, v{t2}, v{t2}")
wave_sum(t3, t2)
a(f"v_readlane_b32 s{sT[6]}, v{t3}, 63")
a(f"v_mul_f32 v{t3}, s{sT[6]}, v{t0}")
rne_bf16(t3, t3)
a(f"v_add_f32 v{t3}, 0x3727c5ac, v{t3}")
rne_bf16(t3, t3)
a(f"v_sqrt_f32 v{t3}, v{t3}")
rne_bf16(t3, t3)
a(f"v_rcp_f32 v{t3}, v{t3}")
rne_bf16(t1, t1)
for i in range(8):
    a(f"v_sub_f32 v{XF+i}, v{XF+i}, v{t1}")
for i in range(4):
    a(f"v_cvt_pk_bf16_f32 v{XF+8+i}, v{XF+2*i}, v{XF+2*i+1}")
for i in range(4):
    a(f"v_lshlrev_b32 v{XF+2*i}, 16, v{XF+8+i}")
    a(f"v_and_b32 v{XF+2*i+1}, 0xffff0000, v{XF+8+i}")
for i in range(8):
    a(f"v_mul_f32 v{XF+i}, v{XF+i}, v{t3}")
for i in range(4):
    a(f"v_cvt_pk_bf16_f32 v{XF+8+i}, v{XF+2*i}, v{XF+2*i+1}")
a(f"""
s_and_b32 s{sT[6]}, s{sW}, 3
s_mul_i32 s{sT[6]}, s{sT[6]}, 1040
s_add_u32 s{sT[6]}, s{sT[6]}, {L_XN}
v_add_u32 v{t0}, s{sT[6]}, v{vT[1]}
ds_write_b128 v{t0}, {v(XF+8,4)}
v_and_b32 v{t1}, 3, v{vN}
v_mul_u32_u24 v{t1}, 1040, v{t1}
v_lshl_add_u32 v{t1}, v{vG}, 4, v{t1}
s_lshl_b32 s{sT[6]}, s{sW}, 7
s_add_u32 s{sT[6]}, s{sT[6]}, {L_XN}
v_add_u32 v{t1}, s{sT[6]}, v{t1}
s_waitcnt lgkmcnt(0)
s_barrier
""")
BX = R3 + 16
a(f"ds_read_b128 {v(BX,4)}, v{t1}")
a(f"ds_read_b128 {v(BX+4,4)}, v{t1} offset:64")
a(f"s_add_u32 s{sEP}, s{sEP}, 1")
stamp("LN done")
FR, AC = R2, R2 + 32
for u in range(2):
    a(f"s_waitcnt vmcnt({(1-u)*8 + 4 + 3 + 16})")
    for jj in range(8):
        for p in range(4):
            sel = sSELHI if (jj & 1) else sSELLO
            a(f"v_perm_b32 v{FR+4*jj+p}, v{R1+4*(8*u+2*p+1)+(jj>>1)}, v{R1+4*(8*u+2*p)+(jj>>1)}, s{sel}")
        if jj == 0 and u == 0:
            a("s_waitcnt lgkmcnt(0)")
        if jj >= 1:
            j2 = jj - 1
            c = "0" if u == 0 else v(AC+4*j2, 4)
            a(f"v_mfma_f32_16x16x32_bf16 {v(AC+4*j2,4)}, {v(FR+4*j2,4)}, {v(BX+4*u,4)}, {c}")
    c = "0" if u == 0 else v(AC+28, 4)
    a(f"v_mfma_f32_16x16x32_bf16 {v(AC+28,4)}, {v(FR+28,4)}, {v(BX+4*u,4)}, {c}")
stamp("q partial")

def cross_wave_reduce_128(acc, dst_lds):
    a(f"""
    s_lshl_b32 s{sT[6]}, s{sW}, 11
    s_add_u32 s{sT[6]}, s{sT[6]}, {L_QS}
    v_lshlrev_b32 v{t0}, 6, v{vG}
    v_lshl_add_u32 v{t0}, v{vN}, 4, v{t0}
    v_add_u32 v{t0}, s{sT[6]}, v{t0}
    s_mov_b64 exec, s[{sM4}:{sM4+1}]
    """)
    for jj in range(8):
        a(f"ds_write_b128 v{t0}, {v(acc+4*jj,4)} offset:{256*jj}")
    a(f"""
    s_mov_b64 exec, -1
    v_lshlrev_b32 v{t1}, 2, v0
    v_add_u32 v{t1}, {L_QS}, v{t1}
    v_and_b32 v{t2}, 3, v{vL}
    v_lshlrev_b32 v{t2}, 8, v{t2}
    v_and_b32 v{t3}, 60, v{vL}
    v_lshl_add_u32 v{t2}, v{t3}, 2, v{t2}
    s_lshl_b32 s{sT[6]}, s{sW}, 1
    s_add_u32 s{sT[6]}, s{sT[6]}, {dst_lds}
    v_add_u32 v{t2}, s{sT[6]}, v{t2}
    """)

cross_wave_reduce_128(AC, L_Q16)
a("s_waitcnt vmcnt(16) lgkmcnt(0)")
a("s_barrier")
for k in range(4):
    a(f"ds_read2st64_b32 {v(FR+2*k,2)}, v{t1} offset0:{16*k} offset1:{16*k+8}")
a("s_waitcnt lgkmcnt(0)")
a(f"v_add_f32 v{FR}, v{FR}, v{FR+1}")
for k in range(2, 8):
    a(f"v_add_f32 v{FR}, v{FR}, v{FR+k}")
a(f"v_cvt_pk_bf16_f32 v{FR}, v{FR}, v{FR}")
a(f"ds_write_b16 v{t2}, v{FR}")
a(f"""
v_and_b32 v{t0}, 3, v{vN}
v_lshlrev_b32 v{t0}, 4, v{t0}
v_lshl_add_u32 v{t0}, v{vG}, 6, v{t0}
v_add_u32 v{t0}, {L_Q16}, v{t0}
s_waitcnt lgkmcnt(0)
s_barrier
s_cmp_ge_u32 s{sW}, 4
s_cbranch_scc1 L_noqabs
""")
for t in range(4):
    a(f"ds_read_b128 {v(FR+4*t,4)}, v{t0} offset:{256*t}")
a(f"""
v_lshlrev_b32 v{t1}, 16, v{vN}
v_lshl_add_u32 v{t1}, v{vG}, 4, v{t1}
s_lshl_b32 s{sT[6]}, s{sH}, 11
s_lshl_b32 s{sT[7]}, s{sJ}, 8
s_add_u32 s{sT[6]}, s{sT[6]}, s{sT[7]}
s_lshl_b32 s{sT[7]}, s{sW}, 6
s_add_u32 s{sT[6]}, s{sT[6]}, s{sT[7]}
s_add_u32 s{sT[6]}, s{sT[6]}, {QA_OFF}
v_mov_b32 v{AC+9}, s{sEP}
v_mov_b32 v{AC+11}, s{sEP}
""")
SCALE = math.log2(math.e) / math.sqrt(128.0)
import struct
def f32(x): return "0x%08x" % struct.unpack("<I", struct.pack("<f", x))[0]
a(f"s_mov_b32 s{sT[7]}, {f32(SCALE)}")
for t in range(4):
    a(f"s_waitcnt lgkmcnt({3-t})")
    c = "0" if t == 0 else v(AC, 4)
    a(f"v_mfma_f32_16x16x32_bf16 {v(AC,4)}, {v(R3+4*t,4)}, {v(FR+4*t,4)}, {c}")
for r in range(4):
    a(f"v_mul_f32 v{AC+r}, s{sT[7]}, v{AC+r}")
a(f"""
v_cvt_pk_bf16_f32 v{AC+8}, v{AC}, v{AC+1}
v_cvt_pk_bf16_f32 v{AC+10}, v{AC+2}, v{AC+3}
s_mov_b64 exec, s[{sM4}:{sM4+1}]
buffer_store_dwordx4 {v(AC+8,4)}, v{t1}, {srd(R_WS)}, s{sT[6]} offen sc1
s_mov_b64 exec, -1
L_noqabs:
""")
stamp("q_abs published")

GQ = R2
a(f"""
v_lshlrev_b32 v{t0}, 4, v0
s_lshr_b32 s{sT[6]}, s{sCH}, 5
s_lshl_b32 s{sT[6]}, s{sT[6]}, 1
s_add_u32 s{sT[6]}, s{sT[6]}, s{sHGB}
s_lshl_b32 s{sT[6]}, s{sT[6]}, 15
s_add_u32 s{sT[6]}, s{sT[6]}, {QA_OFF}
s_add_u32 s{sT[7]}, s{sT[6]}, 8192
s_add_u32 s{sT[8]}, s{sT[6]}, 16384
s_add_u32 s{sT[9]}, s{sT[6]}, 24576
v_and_b32 v{t1}, 127, v0
v_lshlrev_b32 v{t1}, 3, v{t1}
s_lshr_b32 s{sT[10]}, s{sW}, 1
s_lshl_b32 s{sT[5]}, s{sT[10]}, 5
v_xor_b32 v{t1}, s{sT[5]}, v{t1}
s_lshl_b32 s{sT[10]}, s{sT[10]}, 10
s_add_u32 s{sT[10]}, s{sT[10]}, {L_QS}
v_add_u32 v{t1}, s{sT[10]}, v{t1}
""")
poll_begin("L_pollq")
for i in range(4):
    a(f"buffer_load_dwordx4 {v(GQ+4*i,4)}, v{t0}, {srd(R_WS)}, s{sT[6+i]} offen sc1")
a("s_waitcnt vmcnt(0)")
a(f"v_cmp_ne_u32 vcc, s{sEP}, v{GQ+1}")
for i in range(1, 8):
    a(f"v_cmp_ne_u32 s[{sACC}:{sACC+1}], s{sEP}, v{GQ+2*i+1}")
    a(f"s_or_b64 vcc, vcc, s[{sACC}:{sACC+1}]")
poll_end("L_pollq")
stamp("q_abs gathered")
CI = [0, 8, 9, 1]
for i in range(4):
    if i:
        a(f"v_xor_b32 v{t2}, {(CI[i] << 4) | (i << 12)}, v{t1}")
    a(f"ds_write2_b32 v{t2 if i else t1}, v{GQ+4*i}, v{GQ+4*i+2} offset0:0 offset1:1")

a(f"""
v_lshlrev_b32 v{t0}, 13, v{vG}
v_lshl_add_u32 v{t0}, v{vN}, 4, v{t0}
s_lshl_b32 s{sT[0]}, s{sCQ}, 7
s_lshl_b32 s{sT[1]}, s{sW}, 4
s_add_u32 s{sT[0]}, s{sT[0]}, s{sT[1]}
s_lshl_b32 s{sT[0]}, s{sT[0]}, 13
s_lshl_b32 s{sT[2]}, s{sH}, 8
s_add_u32 s{sT[0]}, s{sT[0]}, s{sT[2]}
""")
for i in range(4):
    if i: a(f"s_add_u32 s{sT[0]}, s{sT[0]}, 32768")
    a(f"buffer_load_dwordx4 {v(RW_UV+4*i,4)}, v{t0}, {srd(R_WUV)}, s{sT[0]} offen nt")
a(f"""
v_lshrrev_b32 v{t0}, 5, v{vL}
v_lshlrev_b32 v{t0}, 10, v{t0}
v_and_b32 v{t2}, 31, v{vL}
v_lshl_add_u32 v{t0}, v{t2}, 4, v{t0}
s_lshl_b32 s{sT[0]}, s{sH}, 17
s_lshl_b32 s{sT[1]}, s{sW}, 14
s_add_u32 s{sT[0]}, s{sT[0]}, s{sT[1]}
s_lshl_b32 s{sT[1]}, s{sMH}, 9
s_add_u32 s{sT[0]}, s{sT[0]}, s{sT[1]}
""")
for i in range(8):
    if i and i % 2 == 0: a(f"s_add_u32 s{sT[0]}, s{sT[0]}, 4096")
    a(f"buffer_load_dwordx4 {v(RW_O+4*i,4)}, v{t0}, {srd(R_WO)}, s{sT[0]} offen offset:{(i&1)*2048} nt")
a(f"""
s_cmp_eq_u32 s{sISF}, 0
s_cbranch_scc1 L_noffnload
v_lshrrev_b32 v{t0}, 1, v{vL}
v_mul_u32_u24 v{t0}, 2752, v{t0}
v_and_b32 v{t2}, 1, v{vL}
v_lshl_add_u32 v{t0}, v{t2}, 4, v{t0}
s_mul_i32 s{sT[0]}, s{sW}, {64*2752}
s_lshl_b32 s{sT[1]}, s{sPHI}, 5
s_add_u32 s{sT[0]}, s{sT[0]}, s{sT[1]}
s_add_u32 s{sT[1]}, s{sT[0]}, {32*2752}
buffer_load_dwordx4 {v(RW_GU,4)}, v{t0}, {srd(R_WG)}, s{sT[0]} offen
buffer_load_dwordx4 {v(RW_GU+4,4)}, v{t0}, {srd(R_WG)}, s{sT[1]} offen
buffer_load_dwordx4 {v(RW_GU+8,4)}, v{t0}, {srd(R_WU)}, s{sT[0]} offen
buffer_load_dwordx4 {v(RW_GU+12,4)}, v{t0}, {srd(R_WU)}, s{sT[1]} offen
s_lshl_b32 s{sT[0]}, s{sPHI}, 14
s_lshl_b32 s{sT[1]}, s{sW}, 11
s_add_u32 s{sT[0]}, s{sT[0]}, s{sT[1]}
buffer_load_dwordx4 {v(RW_D,4)}, v{vT[1]}, {srd(R_WD)}, s{sT[0]} offen nt
buffer_load_dwordx4 {v(RW_D+4,4)}, v{vT[1]}, {srd(R_WD)}, s{sT[0]} offen offset:1024 nt
L_noffnload:
""")

QF, SA = R1, R2
a(f"s_lshl_b32 s{sT[0]}, s{sW}, 14")
for tt in range(4):
    a(f"v_add_u32 v{vT[6+tt]}, s{sT[0]}, v{vX0+tt}")
a("s_waitcnt lgkmcnt(0)")
for t in range(16):
    a(f"ds_read_b128 {v(SA+4*t,4)}, v{vT[6+(t&3)]} offset:{(t>>2)*256}")
for tt in range(4):
    a(f"v_add_u32 v{vT[10+tt]}, {L_QS}, v{vX0+tt}")
a("s_barrier")
for t in range(16):
    a(f"ds_read_b128 {v(QF+4*t,4)}, v{vT[10+(t&3)]} offset:{(t>>2)*256}")
SD = R3
for t in range(16):
    a(f"s_waitcnt lgkmcnt({min(15-t, 15)})")
    c = "0" if t == 0 else v(SD, 4)
    a(f"v_mfma_f32_16x16x32_bf16 {v(SD,4)}, {v(SA+4*t,4)}, {v(QF+4*t,4)}, {c}")
a(f"""
; rho = 4g + ((l>>2)&3) = (l>>2)&15 ; c' = l&3
v_bfe_u32 v{t0}, v{vL}, 2, 4
v_lshrrev_b32 v{t1}, 3, v{t0}
v_lshlrev_b32 v{t2}, 2, v{t1}
v_and_b32 v{t3}, 7, v{t0}
v_xor_b32 v{t3}, v{t3}, v{t2}
v_lshl_add_u32 v{t3}, v{t3}, 1, v{t1}
v_bfe_u32 v{t1}, v{vL}, 1, 1
v_xor_b32 v{t3}, v{t3}, v{t1}
s_and_b32 s{sT[0]}, s{sW}, 1
s_lshl_b32 s{sT[0]}, s{sT[0]}, 3
v_xor_b32 v{t3}, s{sT[0]}, v{t3}
v_lshlrev_b32 v{t3}, 4, v{t3}
v_and_b32 v{t1}, 1, v{vL}
v_lshl_add_u32 v{t3}, v{t1}, 3, v{t3}
v_lshl_add_u32 v{t3}, v{t0}, 10, v{t3}
s_lshr_b32 s{sT[0]}, s{sW}, 1
s_lshl_b32 s{sT[0]}, s{sT[0]}, 8
v_add_u32 v{vT[6]}, s{sT[0]}, v{t3}
v_xor_b32 v{vT[7]}, 32, v{vT[6]}
v_xor_b32 v{vT[8]}, 64, v{vT[6]}
v_xor_b32 v{vT[9]}, 96, v{vT[6]}
""")
for mt in range(4):
    a(f"v_add_u32 v{vT[10+mt]}, 0x10000, v{vT[6+mt]}")
a(f"""
v_lshlrev_b32 v{t0}, 2, v{vN}
v_add_u32 v{t0}, {L_MX}, v{t0}
v_max3_f32 v{t1}, v{SD}, v{SD+1}, v{SD+2}
v_max_f32 v{t1}, v{t1}, v{SD+3}
ds_max_f32 v{t0}, v{t1}
s_waitcnt lgkmcnt(0)
s_barrier
ds_read_b32 v{t1}, v{t0}
""")
stamp("S done")
PVA = R1
def pv_reads(us):
    for u in us:
        for mt in range(4):
            for vv in range(2):
                tile = 2 * u + vv
                ad = vT[6 + mt] if tile < 4 else vT[10 + mt]
                a(f"ds_read_b64_tr_b16 {v(PVA+16*mt+4*u+2*vv,2)}, v{ad} offset:{(tile&3)*16384}")
pv_reads([0])
a(f"""
s_lshr_b32 s{sT[0]}, s{sW}, 1
s_lshl_b32 s{sT[0]}, s{sT[0]}, 10
s_and_b32 s{sT[1]}, s{sW}, 1
s_lshl_b32 s{sT[1]}, s{sT[1]}, 3
s_add_u32 s{sT[0]}, s{sT[0]}, s{sT[1]}
s_add_u32 s{sT[0]}, s{sT[0]}, {L_PX}
v_add_u32 v{t2}, s{sT[0]}, v{vT[1]}
v_add_u32 v{t3}, {L_PX}, v{vT[1]}
s_waitcnt lgkmcnt(8)
""")
vM = R3 + 4
a(f"v_ceil_f32 v{vM}, v{t1}")
for r in range(4):
    a(f"v_sub_f32 v{SD+r}, v{SD+r}, v{vM}")
for r in range(4):
    a(f"v_exp_f32 v{SD+r}, v{SD+r}")
a(f"v_cvt_pk_bf16_f32 v{R3+6}, v{SD}, v{SD+1}")
a(f"v_cvt_pk_bf16_f32 v{R3+7}, v{SD+2}, v{SD+3}")
a(f"ds_write_b64 v{t2}, {v(R3+6,2)}")
a("s_waitcnt lgkmcnt(0)")
a("s_barrier")
PB = R2
for u in range(4):
    a(f"ds_read_b128 {v(PB+4*u,4)}, v{t3} offset:{1024*u}")
pv_reads([1, 2, 3])
OD = R2 + 16
for u in range(4):
    for mt in range(4):
        if u == 0:
            if mt == 0: a("s_waitcnt lgkmcnt(15)")
        else:
            left = 24 - ((u - 1) * 8 + 2 * mt + 2)
            if left < 15: a(f"s_waitcnt lgkmcnt({left})")
        c = "0" if u == 0 else v(OD+4*mt, 4)
        a(f"v_mfma_f32_16x16x32_bf16 {v(OD+4*mt,4)}, {v(PVA+16*mt+4*u,4)}, {v(PB+4*u,4)}, {c}")
a(f"""
s_cmp_lg_u32 s{sW}, 7
s_cbranch_scc1 L_noml
""")
ON = R2 + 40
for i in range(4):
    a(f"v_mov_b32 v{ON+i}, 0x3f803f80")
for u in range(4):
    c = "0" if u == 0 else v(ON+4, 4)
    a(f"v_mfma_f32_16x16x32_bf16 {v(ON+4,4)}, {v(ON,4)}, {v(PB+4*u,4)}, {c}")
a(f"""
s_lshl_b32 s{sT[4]}, s{sHGB}, 7
s_add_u32 s{sT[4]}, s{sT[4]}, s{sCH}
s_lshl_b32 s{sT[4]}, s{sT[4]}, 7
s_add_u32 s{sT[4]}, s{sT[4]}, {ML_OFF}
v_lshlrev_b32 v{t0}, 3, v{vN}
v_mov_b32 v{vM+1}, v{ON+4}
s_mov_b64 exec, 0xffff
buffer_store_dwordx2 {v(vM,2)}, v{t0}, {srd(R_WS)}, s{sT[4]} offen sc1
s_mov_b64 exec, -1
L_noml:
""")
OS = R2 + 32
for mt in range(4):
    a(f"v_cvt_pk_bf16_f32 v{OS+2*mt}, v{OD+4*mt}, v{OD+4*mt+1}")
    a(f"v_cvt_pk_bf16_f32 v{OS+2*mt+1}, v{OD+4*mt+2}, v{OD+4*mt+3}")
for p in range(2):
    a(f"v_permlane16_swap_b32 v{OS+4*p}, v{OS+4*p+2}")
    a(f"v_permlane16_swap_b32 v{OS+4*p+1}, v{OS+4*p+3}")
    a(f"buffer_store_dwordx4 {v(OS+4*p,4)}, v{vO}, {srd(R_WS)}, s{sO} offen offset:{64*p} sc1")
stamp("O published")

a("s_barrier")
a("s_waitcnt vmcnt(0)")
stamp("own ack")
a(f"""
v_lshlrev_b32 v{t0}, 5, v{vG}
v_lshlrev_b32 v{t1}, 4, v{vN}
v_xor_b32 v{t0}, v{t0}, v{t1}
v_lshl_add_u32 v{t0}, v{vG}, 8, v{t0}
s_lshl_b32 s{sT[0]}, s{sW}, 12
v_add_u32 v{t0}, s{sT[0]}, v{t0}
v_xor_b32 v{t1}, 128, v{t0}
""")
for i in range(4):
    a(f"ds_write_b128 v{t1 if i >= 2 else t0}, {v(RW_UV+4*i,4)} offset:{L_WUV + 1024*i}")
a(f"""
v_lshrrev_b32 v{t2}, 5, v{vL}
v_and_b32 v{t0}, 31, v{vL}
v_lshlrev_b32 v{t0}, 4, v{t0}
v_lshlrev_b32 v{t3}, 5, v{t2}
v_xor_b32 v{t0}, v{t0}, v{t3}
v_lshl_add_u32 v{t0}, v{t2}, 9, v{t0}
s_lshl_b32 s{sT[0]}, s{sW}, 13
s_add_u32 s{sT[0]}, s{sT[0]}, {L_WO}
v_add_u32 v{t0}, s{sT[0]}, v{t0}
""")
for i in range(8):
    xr = ((2 * (i & 1)) | (((i >> 2) & 1) << 2)) << 5
    if xr:
        a(f"v_xor_b32 v{t1}, {xr}, v{t0}")
    a(f"ds_write_b128 v{t1 if xr else t0}, {v(RW_O+4*i,4)} offset:{1024*i}")
a(f"""
s_cmp_eq_u32 s{sISF}, 0
s_cbranch_scc1 L_noffnstage
v_lshrrev_b32 v{t0}, 1, v{vL}
v_lshlrev_b32 v{t0}, 6, v{t0}
v_and_b32 v{t1}, 1, v{vL}
v_lshl_add_u32 v{t0}, v{t1}, 4, v{t0}
v_and_b32 v{t1}, 1, v{vG}
v_lshl_add_u32 v{t0}, v{t1}, 5, v{t0}
s_lshl_b32 s{sT[0]}, s{sW}, 12
s_add_u32 s{sT[0]}, s{sT[0]}, {L_GU}
v_add_u32 v{t0}, s{sT[0]}, v{t0}
v_xor_b32 v{t1}, 32, v{t0}
ds_write_b128 v{t0}, {v(RW_GU,4)}
ds_write_b128 v{t0}, {v(RW_GU+4,4)} offset:2048
ds_write_b128 v{t1}, {v(RW_GU+8,4)}
ds_write_b128 v{t1}, {v(RW_GU+12,4)} offset:2048
s_lshl_b32 s{sT[0]}, s{sW}, 1
s_and_b32 s{sT[0]}, s{sT[0]}, 7
s_lshl_b32 s{sT[0]}, s{sT[0]}, 5
v_xor_b32 v{t0}, s{sT[0]}, v{vT[1]}
s_lshl_b32 s{sT[0]}, s{sW}, 11
s_add_u32 s{sT[0]}, s{sT[0]}, {L_WD}
v_add_u32 v{t0}, s{sT[0]}, v{t0}
v_xor_b32 v{t1}, 32, v{t0}
ds_write_b128 v{t0}, {v(RW_D,4)}
ds_write_b128 v{t1}, {v(RW_D+4,4)} offset:1024
L_noffnstage:
s_waitcnt lgkmcnt(0)
s_barrier
""")
FUV, FO = R1, R1 + 16
FGU, FD = RW_UV, RW_UV + 32
a(f"""
v_bfe_u32 v{t0}, v{vL}, 2, 2
v_and_b32 v{t1}, 1, v{vG}
v_lshl_add_u32 v{t1}, v{t1}, 2, v{t0}
v_lshl_add_u32 v{t0}, v{vG}, 3, v{t0}
v_and_b32 v{t2}, 3, v{vL}
v_lshlrev_b32 v{t2}, 3, v{t2}
v_xor_b32 v{t3}, s{sW}, v{t1}
v_lshl_add_u32 v{t3}, v{t3}, 5, v{t2}
v_lshl_add_u32 v{t3}, v{t0}, 8, v{t3}
""")
for ks in range(4):
    for vv in range(2):
        a(f"ds_read_b64_tr_b16 {v(FUV+4*ks+2*vv,2)}, v{t3} offset:{L_WUV + (32*ks+4*vv)*256}")
a(f"""
s_lshl_b32 s{sT[0]}, s{sW}, 1
v_xor_b32 v{t3}, s{sT[0]}, v{t1}
v_lshl_add_u32 v{t3}, v{t3}, 5, v{t2}
v_lshl_add_u32 v{t3}, v{t0}, 9, v{t3}
v_add_u32 v{t3}, {L_WO}, v{t3}
v_xor_b32 v{vT[6]}, 32, v{t3}
""")
for mt in range(2):
    for ks in range(4):
        for vv in range(2):
            a(f"ds_read_b64_tr_b16 {v(FO+16*mt+4*ks+2*vv,2)}, v{vT[6] if mt else t3} offset:{(32*ks+4*vv)*512}")
a(f"""
s_cmp_eq_u32 s{sISF}, 0
s_cbranch_scc1 L_noffnfrag
v_and_b32 v{t3}, 1, v{vG}
v_lshl_add_u32 v{t3}, v{t3}, 5, v{t2}
v_lshl_add_u32 v{t3}, v{t0}, 6, v{t3}
s_and_b32 s{sT[0]}, s{sW}, 3
s_lshl_b32 s{sT[0]}, s{sT[0]}, 13
s_add_u32 s{sT[0]}, s{sT[0]}, {L_GU}
v_add_u32 v{t3}, s{sT[0]}, v{t3}
v_xor_b32 v{vT[6]}, 32, v{t3}
""")
for mat in range(2):
    for t in range(4):
        for vv in range(2):
            a(f"ds_read_b64_tr_b16 {v(FGU+16*mat+4*t+2*vv,2)}, v{vT[6] if mat else t3} offset:{(32*t+4*vv)*64}")
a(f"""
v_bfe_u32 v{t0}, v{vL}, 2, 4
v_and_b32 v{t1}, 7, v{t0}
s_lshl_b32 s{sT[0]}, s{sW}, 2
v_xor_b32 v{t3}, s{sT[0]}, v{t1}
v_lshl_add_u32 v{t3}, v{t3}, 5, v{t2}
v_lshl_add_u32 v{t3}, v{t0}, 10, v{t3}
v_add_u32 v{t3}, {L_WD}, v{t3}
""")
for mt in range(4):
    if mt:
        a(f"v_xor_b32 v{vT[6]}, {32*mt}, v{t3}")
    a(f"ds_read_b64_tr_b16 {v(FD+2*mt,2)}, v{vT[6] if mt else t3}")
CSA = R2
for i in range(4):
    a(f"v_mov_b32 v{CSA+i}, 0x3f803f80")
a("s_waitcnt lgkmcnt(0)")
for mat in range(2):
    for t in range(4):
        c = "0" if t == 0 else v(CSA+4+4*mat, 4)
        a(f"v_mfma_f32_16x16x32_bf16 {v(CSA+4+4*mat,4)}, {v(FGU+16*mat+4*t,4)}, {v(CSA,4)}, {c}")
a(f"""
s_and_b32 s{sT[0]}, s{sW}, 3
s_lshl_b32 s{sT[0]}, s{sT[0]}, 7
s_add_u32 s{sT[0]}, s{sT[0]}, {L_CS}
v_lshlrev_b32 v{t0}, 4, v{vG}
v_add_u32 v{t0}, s{sT[0]}, v{t0}
s_mov_b32 exec_lo, 0x00010001
s_mov_b32 exec_hi, 0x00010001
ds_write_b128 v{t0}, {v(CSA+4,4)}
ds_write_b128 v{t0}, {v(CSA+8,4)} offset:64
s_mov_b64 exec, -1
L_noffnfrag:
""")
stamp("weights staged")

HD = R2
HM = R2 + 16
MK = R2 + 20
AW = R2 + 24
CD = R2 + 32
a(f"""
v_lshlrev_b32 v{t0}, 8, v{vG}
v_lshl_add_u32 v{t0}, v{vN}, 4, v{t0}
s_lshl_b32 s{sT[0]}, s{sH}, 2
s_add_u32 s{sT[0]}, s{sT[0]}, s{sCQ}
s_lshl_b32 s{sT[0]}, s{sT[0]}, 15
s_and_b32 s{sT[1]}, s{sW}, 3
s_lshl_b32 s{sT[2]}, s{sT[1]}, 13
s_add_u32 s{sT[0]}, s{sT[0]}, s{sT[2]}
s_lshr_b32 s{sT[3]}, s{sW}, 2
s_lshl_b32 s{sT[2]}, s{sT[3]}, 12
s_add_u32 s{sT[0]}, s{sT[0]}, s{sT[2]}
s_add_u32 s{sT[0]}, s{sT[0]}, {O_OFF}
v_bfe_u32 v{t1}, v{vN}, 2, 1
v_xor_b32 v{t1}, s{sT[3]}, v{t1}
v_lshlrev_b32 v{t1}, 4, v{t1}
v_and_b32 v{t2}, 3, v{vN}
v_lshl_add_u32 v{t1}, v{t2}, 2, v{t1}
v_lshrrev_b32 v{t2}, 3, v{vN}
v_xor_b32 v{t2}, v{t2}, v{vG}
v_add_u32 v{t1}, v{t1}, v{t2}
v_lshlrev_b32 v{t1}, 7, v{t1}
v_xor_b32 v{t2}, 256, v{t1}
s_lshr_b32 s{sT[4]}, s{sH}, 4
s_lshl_b32 s{sT[4]}, s{sT[4]}, 2
s_add_u32 s{sT[4]}, s{sT[4]}, s{sT[1]}
s_lshl_b32 s{sT[4]}, s{sT[4]}, 12
s_and_b32 s{sT[5]}, s{sH}, 15
s_lshl_b32 s{sT[5]}, s{sT[5]}, 3
s_add_u32 s{sT[4]}, s{sT[4]}, s{sT[5]}
s_add_u32 s{sT[4]}, s{sT[4]}, {ML_OFF}
v_and_b32 v{t3}, 1, v{vN}
v_lshlrev_b32 v{t3}, 4, v{t3}
v_mov_b32 v{vT[6]}, 0xffff
v_lshlrev_b32 v{t3}, v{t3}, v{vT[6]}
v_lshrrev_b32 v{vT[6]}, 1, v{vN}
""")
for d in range(4):
    a(f"v_cmp_eq_u32 vcc, {d}, v{vT[6]}")
    a(f"v_cndmask_b32 v{MK+d}, 0, v{t3}, vcc")
a(f"""
s_mul_i32 s{sT[5]}, s{sW}, 272
s_add_u32 s{sT[5]}, s{sT[5]}, {L_CL}
v_lshlrev_b32 v{vT[6]}, 4, v{vN}
v_lshl_add_u32 v{vT[6]}, v{vG}, 3, v{vT[6]}
v_add_u32 v{vT[6]}, s{sT[5]}, v{vT[6]}
v_and_b32 v{vT[7]}, 7, v{vN}
v_mul_u32_u24 v{vT[7]}, 272, v{vT[7]}
v_lshl_add_u32 v{vT[7]}, v{vG}, 4, v{vT[7]}
v_add_u32 v{vT[7]}, {L_CL}, v{vT[7]}
v_and_b32 v{vT[8]}, 3, v{vN}
v_mul_u32_u24 v{vT[8]}, 272, v{vT[8]}
v_lshl_add_u32 v{vT[9]}, v{vG}, 4, v{vT[8]}
v_add_u32 v{vT[9]}, {L_CX}, v{vT[9]}
v_lshl_add_u32 v{vT[8]}, v{vG}, 3, v{vT[8]}
s_lshl_b32 s{sT[5]}, s{sW}, 5
s_add_u32 s{sT[5]}, s{sT[5]}, {L_CX}
v_add_u32 v{vT[8]}, s{sT[5]}, v{vT[8]}
v_and_b32 v{vT[10]}, 3, v{vN}
v_lshlrev_b32 v{vT[10]}, 2, v{vT[10]}
v_add_u32 v{vT[10]}, {L_LL}, v{vT[10]}
s_lshl_b32 s{sT[5]}, s{sT[1]}, 2
s_add_u32 s{sT[5]}, s{sT[5]}, {L_LL}
v_mov_b32 v{vT[11]}, s{sT[5]}
s_mov_b32 s{sT[6]}, 0x03020302
""")
poll_begin("L_pollo")
a(f"buffer_load_dwordx2 {v(HM,2)}, v{t1}, {srd(R_WS)}, s{sT[4]} offen sc1")
a(f"buffer_load_dwordx2 {v(HM+2,2)}, v{t2}, {srd(R_WS)}, s{sT[4]} offen sc1")
for t in range(4):
    a(f"buffer_load_dwordx4 {v(HD+4*t,4)}, v{t0}, {srd(R_WS)}, s{sT[0]} offen offset:{1024*t} sc1")
a("s_waitcnt vmcnt(0)")
poison_check(list(range(HD, HD + 20)), t3)
poll_end("L_pollo")
stamp("O gathered")
mM, wA, wB, wb = vT[12], vT[13], vT[14], vT[15]
a(f"v_max_f32 v{mM}, v{HM}, v{HM+2}")
for sft in (1, 2, 4, 8):
    a(f"v_max_f32_dpp v{mM}, v{mM}, v{mM} row_ror:{sft} row_mask:0xf bank_mask:0xf")
a(f"""
v_sub_f32 v{wA}, v{HM}, v{mM}
v_sub_f32 v{wB}, v{HM+2}, v{mM}
v_exp_f32 v{wA}, v{wA}
v_exp_f32 v{wB}, v{wB}
v_perm_b32 v{wb}, v{wA}, v{wA}, s{sT[6]}
""")
for t in range(4):
    aw = AW + 4 * (t & 1)
    for d in range(4):
        a(f"v_and_b32_dpp v{aw+d}, v{wb}, v{MK+d} row_newbcast:{t} row_mask:0xf bank_mask:0xf")
    c = "0" if t == 0 else v(CD, 4)
    a(f"v_mfma_f32_16x16x32_bf16 {v(CD,4)}, {v(aw,4)}, {v(HD+4*t,4)}, {c}")
a(f"v_mul_f32 v{wA}, v{wA}, v{HM+1}")
a(f"v_fmac_f32 v{wA}, v{wB}, v{HM+3}")
for sft in (1, 2, 4, 8):
    a(f"v_add_f32_dpp v{wA}, v{wA}, v{wA} row_ror:{sft} row_mask:0xf bank_mask:0xf")
a(f"v_cvt_pk_bf16_f32 v{CD+4}, v{CD}, v{CD+1}")
a(f"v_cvt_pk_bf16_f32 v{CD+5}, v{CD+2}, v{CD+3}")
a(f"v_rcp_f32 v{wA}, v{wA}")
a(f"""
s_mov_b32 exec_hi, 0
ds_write_b64 v{vT[6]}, {v(CD+4,2)}
s_mov_b64 exec, 1
ds_write_b32 v{vT[11]}, v{wA}
s_mov_b64 exec, -1
s_waitcnt lgkmcnt(0)
s_barrier
""")
CB = R2
for ks in range(4):
    a(f"ds_read_b128 {v(CB+4*ks,4)}, v{vT[7]} offset:{64*ks}")
a(f"ds_read_b32 v{vT[12]}, v{vT[10]}")
for ks in range(4):
    a(f"s_waitcnt lgkmcnt({4-ks})")
    c = "0" if ks == 0 else v(CD, 4)
    a(f"v_mfma_f32_16x16x32_bf16 {v(CD,4)}, {v(FUV+4*ks,4)}, {v(CB+4*ks,4)}, {c}")
for r in range(4):
    a(f"v_add_f32_dpp v{CD+r}, v{CD+r}, v{CD+r} row_ror:4 row_mask:0xf bank_mask:0xf")
a("s_waitcnt lgkmcnt(0)")
for r in range(4):
    a(f"v_mul_f32 v{CD+r}, v{CD+r}, v{vT[12]}")
a(f"v_cvt_pk_bf16_f32 v{CD+4}, v{CD}, v{CD+1}")
a(f"v_cvt_pk_bf16_f32 v{CD+5}, v{CD+2}, v{CD+3}")
a(f"""
s_mov_b64 exec, s[{sM4}:{sM4+1}]
ds_write_b64 v{vT[8]}, {v(CD+4,2)}
s_mov_b64 exec, -1
s_waitcnt lgkmcnt(0)
s_barrier
""")
for ks in range(4):
    a(f"ds_read_b128 {v(CB+4*ks,4)}, v{vT[9]} offset:{64*ks}")
AD = R2 + 32
for ks in range(4):
    a(f"s_waitcnt lgkmcnt({3-ks})")
    for mt in range(2):
        c = "0" if ks == 0 else v(AD+4*mt, 4)
        a(f"v_mfma_f32_16x16x32_bf16 {v(AD+4*mt,4)}, {v(FO+16*mt+4*ks,4)}, {v(CB+4*ks,4)}, {c}")
for k in range(4):
    a(f"v_cvt_pk_bf16_f32 v{AD+8+k}, v{AD+2*k}, v{AD+2*k+1}")
a(f"""
s_mov_b64 exec, s[{sM4}:{sM4+1}]
buffer_store_dwordx4 {v(AD+8,4)}, v{vPA}, {srd(R_WS)}, s{sPA} offen sc1
s_mov_b64 exec, -1
""")
stamp("attn partial published")

a(f"""
s_cmp_eq_u32 s{sISF}, 1
s_cbranch_scc1 L_ffn
s_cmp_eq_u32 s{sISR}, 0
s_cbranch_scc1 L_fin
""")
SEL = R2
RD = R2 + 4
RA = R2 + 12
RS = R2 + 16
vH = R2 + 24
for d in range(4):
    a(f"v_and_b32 v{SEL+d}, 0x3f803f80, v{MK+d}")
a(f"""
v_and_b32 v{t0}, 0x23, v{vL}
v_bfe_u32 v{t1}, v{vL}, 2, 1
v_lshl_add_u32 v{t0}, v{t1}, 4, v{t0}
v_bfe_u32 v{t1}, v{vL}, 3, 2
v_lshl_add_u32 v{t0}, v{t1}, 2, v{t0}
v_lshlrev_b32 v{vT[6]}, 1, v{t0}
s_lshl_b32 s{sT[0]}, s{sRHO}, 7
buffer_load_ushort v{vT[7]}, v{vT[6]}, {srd(R_X)}, s{sT[0]} offen
v_lshlrev_b32 v{t0}, 4, v0
s_lshl_b32 s{sT[1]}, s{sRHO}, 14
s_add_u32 s{sT[1]}, s{sT[1]}, {PA_OFF}
s_add_u32 s{sT[2]}, s{sT[1]}, 8192
s_lshl_b32 s{sT[3]}, s{sW}, 8
s_add_u32 s{sT[3]}, s{sT[3]}, {L_RED}
v_lshlrev_b32 v{t1}, 5, v{vN}
v_lshl_add_u32 v{t1}, v{vG}, 4, v{t1}
v_add_u32 v{t1}, s{sT[3]}, v{t1}
v_lshlrev_b32 v{t2}, 2, v{vL}
v_add_u32 v{t2}, {L_RED}, v{t2}
s_mul_i32 s{sT[3]}, s{sRHO}, 12288
s_add_u32 s{sT[3]}, s{sT[3]}, {PF_OFF}
s_add_u32 s{R_PF}, s{R_WS}, s{sT[3]}
s_addc_u32 s{R_PF+1}, s{R_WS+1}, 0
s_mov_b32 s{sT[4]}, 8192
s_waitcnt vmcnt(0)
""")
def reduce_inbox(name, rs, so0, so1):
    poll_begin(name)
    a(f"buffer_load_dwordx4 {v(RD,4)}, v{t0}, {srd(rs)}, {so0} offen sc1")
    a(f"buffer_load_dwordx4 {v(RD+4,4)}, v{t0}, {srd(rs)}, {so1} offen sc1")
    a("s_waitcnt vmcnt(0)")
    poison_check(list(range(RD, RD + 8)), t3)
    poll_end(name)
    a(f"v_mfma_f32_16x16x32_bf16 {v(RA,4)}, {v(SEL,4)}, {v(RD,4)}, 0")
    a(f"v_mfma_f32_16x16x32_bf16 {v(RA,4)}, {v(SEL,4)}, {v(RD+4,4)}, {v(RA,4)}")
    for r in range(4):
        a(f"v_add_f32_dpp v{RA+r}, v{RA+r}, v{RA+r} row_ror:8 row_mask:0xf bank_mask:0xf")
    a(f"""
    s_mov_b64 exec, 0x00ff00ff
    ds_write_b128 v{t1}, {v(RA,4)}
    s_mov_b64 exec, -1
    s_waitcnt lgkmcnt(0)
    s_barrier
    """)
def final_sum():
    for k in range(4):
        a(f"ds_read2st64_b32 {v(RS+2*k,2)}, v{t2} offset0:{2*k} offset1:{2*k+1}")
    a("s_waitcnt lgkmcnt(0)")
    a(f"v_add_f32 v{RS}, v{RS}, v{RS+1}")
    a(f"v_add_f32 v{RS+2}, v{RS+2}, v{RS+3}")
    a(f"v_add_f32 v{RS+4}, v{RS+4}, v{RS+5}")
    a(f"v_add_f32 v{RS+6}, v{RS+6}, v{RS+7}")
    a(f"v_add_f32 v{RS}, v{RS}, v{RS+2}")
    a(f"v_add_f32 v{RS+4}, v{RS+4}, v{RS+6}")
    a(f"v_add_f32 v{RS}, v{RS}, v{RS+4}")
def pack_store(val, rs, so, pol):
    P = RS + 4
    a(f"v_mov_b32_dpp v{RS+2}, v{val} quad_perm:[1,1,3,3] row_mask:0xf bank_mask:0xf")
    a(f"v_cvt_pk_bf16_f32 v{P}, v{val}, v{RS+2}")
    a(f"v_mov_b32_dpp v{P+1}, v{P} quad_perm:[2,2,2,2] row_mask:0xf bank_mask:0xf")
    a(f"v_mov_b32_dpp v{P+2}, v{P} row_shl:8 row_mask:0xf bank_mask:0xf")
    a(f"v_mov_b32_dpp v{P+3}, v{P+1} row_shl:8 row_mask:0xf bank_mask:0xf")
    a(f"""
    s_mov_b32 exec_lo, 0x00110011
    s_mov_b32 exec_hi, 0x00110011
    buffer_store_dwordx4 {v(P,4)}, v{vT[6]}, {srd(rs)}, {so} offen{pol}
    s_mov_b64 exec, -1
    """)
reduce_inbox("L_pollr1", R_WS, f"s{sT[1]}", f"s{sT[2]}")
stamp("R1 gathered")
a(f"""
s_cmp_lg_u32 s{sW}, 0
s_cbranch_scc1 L_r1skip
""")
final_sum()
rne_bf16(RS, RS)
a(f"v_lshlrev_b32 v{vT[7]}, 16, v{vT[7]}")
a(f"v_add_f32 v{vH}, v{RS}, v{vT[7]}")
a(f"s_add_u32 s{sT[5]}, s{sT[0]}, {HG_OFF}")
pack_store(vH, R_WS, f"s{sT[5]}", " sc1")
rne_bf16(vH, vH)
a("L_r1skip:")
stamp("h published")
a("s_barrier")
reduce_inbox("L_pollr2", R_PF, "0", f"s{sT[4]}")
stamp("R2 gathered")
a(f"""
s_cmp_lg_u32 s{sW}, 0
s_cbranch_scc1 L_fin
""")
final_sum()
rne_bf16(RS, RS)
a(f"v_add_f32 v{vH}, v{RS}, v{vH}")
pack_store(vH, R_OUT, f"s{sT[0]}", "")
a(f"""
s_cmp_lg_u32 s{sRHO}, 0
s_cbranch_scc1 L_fin
v_mov_b32 v{t0}, {EPOCH_OFF}
v_mov_b32 v{t1}, s{sEP}
s_mov_b64 exec, 1
buffer_store_dword v{t1}, v{t0}, {srd(R_WS)}, 0 offen
s_mov_b64 exec, -1
s_branch L_fin
""")

a("L_ffn:")
HB = R2
GD = R2 + 16
FXR = R2 + 32
for i in range(16):
    a(f"v_mov_b32 v{HB+i}, 0x3f803f80")
a(f"""
v_lshlrev_b32 v{t0}, 10, v{vN}
v_lshl_add_u32 v{t0}, v{vG}, 4, v{t0}
s_and_b32 s{sT[0]}, s{sW}, 3
s_lshl_b32 s{sT[1]}, s{sT[0]}, 8
s_add_u32 s{sT[1]}, s{sT[1]}, {HG_OFF}
s_mul_i32 s{sT[2]}, s{sT[0]}, 640
s_add_u32 s{sT[2]}, s{sT[2]}, {L_FX}
v_lshlrev_b32 v{t1}, 6, v{vG}
v_lshl_add_u32 v{t1}, v{vN}, 4, v{t1}
v_add_u32 v{t1}, s{sT[2]}, v{t1}
v_and_b32 v{t2}, 3, v{vN}
v_lshlrev_b32 v{vT[6]}, 4, v{t2}
v_lshl_add_u32 v{vT[6]}, v{vG}, 6, v{vT[6]}
v_lshrrev_b32 v{t3}, 2, v{vN}
v_lshl_add_u32 v{vT[6]}, v{t3}, 2, v{vT[6]}
v_add_u32 v{vT[6]}, {L_FX}, v{vT[6]}
v_mul_u32_u24 v{vT[7]}, 20, v{t2}
v_add_u32 v{vT[7]}, {L_FX + 512}, v{vT[7]}
v_lshlrev_b32 v{vT[8]}, 4, v{t2}
v_add_u32 v{vT[8]}, {L_FX + 576}, v{vT[8]}
v_lshlrev_b32 v{vT[9]}, 4, v{vG}
v_lshl_add_u32 v{vT[9]}, v{t3}, 2, v{vT[9]}
v_add_u32 v{vT[9]}, {L_CS}, v{vT[9]}
""")
for k in range(4):
    a(f"ds_read2_b32 {v(FXR+2*k,2)}, v{vT[9]} offset0:{32*k} offset1:{32*k+16}")
csg, csu = vT[10], vT[11]
a("s_waitcnt lgkmcnt(0)")
a(f"v_add_f32 v{csg}, v{FXR}, v{FXR+2}")
a(f"v_add_f32 v{csu}, v{FXR+1}, v{FXR+3}")
a(f"v_add_f32 v{csg}, v{csg}, v{FXR+4}")
a(f"v_add_f32 v{csu}, v{csu}, v{FXR+5}")
a(f"v_add_f32 v{csg}, v{csg}, v{FXR+6}")
a(f"v_add_f32 v{csu}, v{csu}, v{FXR+7}")
a(f"""
s_waitcnt vmcnt(0)
s_cmp_ge_u32 s{sW}, 4
s_cbranch_scc1 L_ffn1skip
s_mov_b64 exec, s[{sM4}:{sM4+1}]
""")
poll_begin("L_pollh")
for t in range(4):
    a(f"buffer_load_dwordx4 {v(HB+4*t,4)}, v{t0}, {srd(R_WS)}, s{sT[1]} offen offset:{64*t} sc1")
a("s_waitcnt vmcnt(0)")
poison_check(list(range(HB, HB + 16)), t3)
poll_end("L_pollh")
a("s_mov_b64 exec, -1")
for t in range(4):
    for k in range(3):
        A = v(FGU + 16 * k + 4 * t, 4) if k < 2 else v(HB + 4 * t, 4)
        c = "0" if t == 0 else v(GD+4*k, 4)
        a(f"v_mfma_f32_16x16x32_bf16 {v(GD+4*k,4)}, {A}, {v(HB+4*t,4)}, {c}")
a(f"""
s_mov_b64 exec, s[{sM4}:{sM4+1}]
ds_write_b128 v{t1}, {v(GD,4)}
ds_write_b128 v{t1}, {v(GD+4,4)} offset:256
s_mov_b64 exec, 0x000f000f
ds_write_b128 v{t1}, {v(GD+8,4)} offset:512
s_mov_b64 exec, -1
s_waitcnt lgkmcnt(0)
L_ffn1skip:
s_barrier
""")
stamp("FFN1 done")
for k in range(4):
    a(f"ds_read2_b32 {v(FXR+2*k,2)}, v{vT[6]} offset0:0 offset1:64")
    a(f"ds_read_b32 v{FXR+8+k}, v{vT[7]} offset:{640*k}")
    a(f"ds_read_b32 v{FXR+12+k}, v{vT[8]} offset:{640*k}")
    if k < 3:
        a(f"v_add_u32 v{vT[6]}, 640, v{vT[6]}")
a("s_waitcnt lgkmcnt(0)")
gg, uu, sq, sm = vT[12], vT[13], vT[14], vT[15]
a(f"""
v_add_f32 v{sm}, v{FXR+12}, v{FXR+13}
v_add_f32 v{sq}, v{FXR+8}, v{FXR+9}
v_add_f32 v{sm}, v{sm}, v{FXR+14}
v_add_f32 v{sq}, v{sq}, v{FXR+10}
v_add_f32 v{sm}, v{sm}, v{FXR+15}
v_add_f32 v{sq}, v{sq}, v{FXR+11}
v_mul_f32 v{sm}, 0x3b000000, v{sm}
v_mul_f32 v{sq}, 0x3b000000, v{sq}
v_fma_f32 v{sq}, -v{sm}, v{sm}, v{sq}
v_max_f32 v{sq}, 0, v{sq}
v_add_f32 v{sq}, 0x3727c5ac, v{sq}
v_rsq_f32 v{sq}, v{sq}
v_add_f32 v{gg}, v{FXR}, v{FXR+2}
v_add_f32 v{uu}, v{FXR+1}, v{FXR+3}
v_add_f32 v{gg}, v{gg}, v{FXR+4}
v_add_f32 v{uu}, v{uu}, v{FXR+5}
v_add_f32 v{gg}, v{gg}, v{FXR+6}
v_add_f32 v{uu}, v{uu}, v{FXR+7}
v_fma_f32 v{gg}, -v{sm}, v{csg}, v{gg}
v_fma_f32 v{uu}, -v{sm}, v{csu}, v{uu}
v_mul_f32 v{gg}, v{gg}, v{sq}
v_mul_f32 v{uu}, v{uu}, v{sq}
v_mul_f32 v{sm}, {f32(-math.log2(math.e))}, v{gg}
v_exp_f32 v{sm}, v{sm}
v_mul_f32 v{gg}, v{gg}, v{uu}
v_add_f32 v{sm}, 1.0, v{sm}
v_rcp_f32 v{sm}, v{sm}
v_mul_f32 v{gg}, v{gg}, v{sm}
""")
AB = FXR
a(f"""
v_mov_b32_dpp v{uu}, v{gg} row_shl:4 row_mask:0xf bank_mask:0xf
v_cvt_pk_bf16_f32 v{AB}, v{gg}, v{uu}
v_mov_b32_dpp v{AB+1}, v{AB} row_shl:8 row_mask:0xf bank_mask:0xf
""")
DD = R2
for mt in range(4):
    a(f"v_mfma_f32_16x16x16_bf16 {v(DD+4*mt,4)}, {v(FD+2*mt,2)}, {v(AB,2)}, 0")
for k in range(8):
    a(f"v_cvt_pk_bf16_f32 v{DD+16+k}, v{DD+2*k}, v{DD+2*k+1}")
a(f"""
s_mov_b64 exec, s[{sM4}:{sM4+1}]
buffer_store_dwordx4 {v(DD+16,4)}, v{vPF}, {srd(R_WS)}, s{sPF} offen sc1
buffer_store_dwordx4 {v(DD+20,4)}, v{vPF}, {srd(R_WS)}, s{sPF} offen offset:64 sc1
s_mov_b64 exec, -1
""")
stamp("FFN published")
a("L_fin:")
if PROF:
    stamp("end")
    a(f"""
    s_lshl_b32 s{sT[0]}, s2, 3
    s_add_u32 s{sT[0]}, s{sT[0]}, s{sW}
    s_lshl_b32 s{sT[0]}, s{sT[0]}, 7
    s_add_u32 s{sT[0]}, s{sT[0]}, {TS_OFF}
    v_lshlrev_b32 v{t0}, 2, v{vL}
    s_mov_b32 exec_hi, 0
    buffer_store_dword v{vTSA}, v{t0}, {srd(R_WS)}, s{sT[0]} offen
    """)
a("L_end:")

hdr = open("sequential_preLN__compressed_kv_cla__swiglu_ffn__decode.s.ref").read().split("; @launch")[0]
open(OUT, "w").write(wrap_single(a.text(), 256, 512, LDS_BYTES, vgpr=256, header=hdr))
print("instructions:", a.ninstr, file=sys.stderr)
```

```python
import sys, math, struct
from asmgen import *

def opt(name, default):
    for x in sys.argv[1:]:
        if x.startswith("--" + name + "="):
            return int(x.split("=")[1])
    return default
PROF = "--prof" in sys.argv
OUT = [a for a in sys.argv[1:] if not a.startswith("--")]
OUT = OUT[0] if OUT else "sequential_preLN__compressed_kv_cla__swiglu_ffn__decode.s"
POLL_MAX = 1 << 15
LSPIN_MAX = 1 << 20
DWIN_A = opt("dwina", 14)
DWIN_F = opt("dwinf", 20)
RWIN = opt("rwin", 12)
UKPF = opt("ukpf", 1)
CODEPF = opt("codepf", 1)
QSLEEP = opt("qsleep", 4)
OACK = opt("oack", 1)
AQ = opt("aq", 16)
PFWHEN = opt("pfwhen", 1)
MLSLEEP = opt("mlsleep", 2)
FFNDLY = opt("ffndly", 24)

EPOCH_OFF = 0x0
QA_OFF = 0x10000
HG_OFF = 0x58000
PA_OFF = 0x80000
PF_OFF = 0x100000
O_OFF = 0x200000
ML_OFF = 0x600000
TS_OFF = 0x1000000
WS_USED = 0x1100000

L_QS = 131072
L_XN = 147456
L_Q16 = 151616
L_MX = 152640
L_PX = 153152
L_CL = 157248
L_CX = 159488
L_RED = 160576
L_CS = 162624
L_FL = 163136
LDS_BYTES = 163840
L_WUV, L_WO = 0, 32768
L_G, L_U, L_WD = 98304, 114688, L_QS
L_FX = L_PX
(F_XN, F_CLR, F_QP, F_Q16, F_QS, F_P, F_GO, F_WQI) = [4 * i for i in range(8)]
F_TILE = 32
(F_RI, F_BD, F_ST, F_CL, F_CX) = [64 + 4 * i for i in range(5)]

sW, sX, sY, sH, sYP, sCQ, sMH, sHGB, sCH, sEP = 3, 4, 5, 6, 7, 8, 9, 10, 11, 12
sT = list(range(13, 24))
sO, sHA, sJQ, sPHI, sRHO, sISF, sISR, sCNT = 24, 25, 26, 27, 28, 29, 30, 31
R_X, R_CKV, R_WQ, R_WUK, R_WUV, R_WO, R_WG, R_WU, R_WD, R_OUT, R_WS, R_PF = [32 + 4 * i for i in range(12)]
sSELLO, sSELHI = 80, 81
sM8 = 82
sM4 = 84
sACC = 86
sC2 = 88
sTS = 90
sK = 92
def srd(r): return f"s[{r}:{r+3}]"
def f32(x): return "0x%08x" % struct.unpack("<I", struct.pack("<f", x))[0]

vL, vN, vG, vL16, vFL, vONE, vTSA = 1, 2, 3, 4, 5, 6, 7
vT = list(range(8, 32))
t0, t1, t2, t3 = vT[0], vT[1], vT[2], vT[3]
vSP = vT[23]
vDUM = vT[21]
def v(i, n=1): return f"v{i}" if n == 1 else f"v[{i}:{i+n-1}]"
def fsw(row): return 2 * ((row & 7) ^ (4 * (row >> 3))) + (row >> 3)

a = Asm()
stamps = {}
def stamp(name):
    if not PROF: return
    if name not in stamps:
        stamps[name] = len(stamps)
    i = stamps[name]
    a(f"""
    s_memrealtime s[{sTS}:{sTS+1}]
    s_waitcnt lgkmcnt(0)
    v_writelane_b32 v{vTSA}, s{sTS}, {i}
    """)
def cstamp(name):
    if not PROF: return
    name = "#" + name
    if name not in stamps:
        stamps[name] = len(stamps)
    a(f"s_add_u32 s{sTS}, s{sCNT}, 1")
    a(f"v_writelane_b32 v{vTSA}, s{sTS}, {stamps[name]}")
def poll_tail(name, sleep=0):
    done = a.newlabel("Lpd")
    a(f"""
    s_cmp_eq_u64 vcc, 0
    s_cbranch_scc1 {done}
    """)
    if sleep: a(f"s_sleep {sleep}")
    a(f"""
    s_add_u32 s{sCNT}, s{sCNT}, 1
    s_cmp_lt_u32 s{sCNT}, {POLL_MAX}
    s_cbranch_scc1 {name}
    """)
    a.label(done)
def poison_check(regs, tmp):
    regs = list(regs); n = len(regs)
    a(f"v_max3_u32 v{tmp}, v{regs[0]}, v{regs[1]}, v{regs[2]}")
    i = 3
    while i + 1 < n:
        a(f"v_max3_u32 v{tmp}, v{tmp}, v{regs[i]}, v{regs[i+1]}"); i += 2
    if i < n: a(f"v_max_u32 v{tmp}, v{tmp}, v{regs[i]}")
    a(f"v_cmp_eq_u32 vcc, -1, v{tmp}")
def lds_signal(off, base=None):
    a(f"""
    s_mov_b64 exec, 1
    ds_add_u32 v{vFL if base is None else base}, v{vONE} offset:{off}
    s_mov_b64 exec, -1
    """)
def lds_wait(off, target, spec=None, sleep=0, base=None):
    lp, dn = a.newlabel("Lw"), a.newlabel("Lwd")
    a(f"s_mov_b32 s{sCNT}, 0")
    a.label(lp)
    a(f"ds_read_b32 v{vSP}, v{vFL if base is None else base} offset:{off}")
    if spec: spec()
    a(f"""
    s_waitcnt lgkmcnt(0)
    v_readfirstlane_b32 s{sACC}, v{vSP}
    s_cmp_ge_u32 s{sACC}, {target}
    s_cbranch_scc1 {dn}
    """)
    if sleep: a(f"s_sleep {sleep}")
    a(f"""
    s_add_u32 s{sCNT}, s{sCNT}, 1
    s_cmp_lt_u32 s{sCNT}, {LSPIN_MAX}
    s_cbranch_scc1 {lp}
    """)
    a.label(dn)
def rne_bf16(dst, src):
    a(f"v_cvt_pk_bf16_f32 v{dst}, v{src}, v{src}")
    a(f"v_and_b32 v{dst}, 0xffff0000, v{dst}")
def mfma(d, A, B, first, k16=False):
    n = 2 if k16 else 4
    op = "v_mfma_f32_16x16x16_bf16" if k16 else "v_mfma_f32_16x16x32_bf16"
    a(f"{op} {v(d,4)}, {v(A,n)}, {v(B,n)}, {'0' if first else v(d,4)}")

XR, XF = 32, 40
def ln_row():
    def wave_sum(x):
        for ctl in ["row_shr:1", "row_shr:2", "row_shr:4", "row_shr:8"]:
            a(f"v_add_f32_dpp v{x}, v{x}, v{x} {ctl} row_mask:0xf bank_mask:0xf bound_ctrl:0")
        a(f"v_add_f32_dpp v{x}, v{x}, v{x} row_bcast:15 row_mask:0xa bank_mask:0xf")
        a(f"v_add_f32_dpp v{x}, v{x}, v{x} row_bcast:31 row_mask:0xc bank_mask:0xf")
    xr, xf = XR, XF
    for i in range(4):
        a(f"v_lshlrev_b32 v{xf+2*i}, 16, v{xr+i}")
        a(f"v_and_b32 v{xf+2*i+1}, 0xffff0000, v{xr+i}")
    a(f"v_add_f32 v{xf+12}, v{xf}, v{xf+1}")
    for i in range(2, 8): a(f"v_add_f32 v{xf+12}, v{xf+12}, v{xf+i}")
    wave_sum(xf + 12)
    a(f"v_mov_b32 v{xf+15}, 0x3b000000")
    a(f"v_readlane_b32 s{sT[6]}, v{xf+12}, 63")
    a(f"v_mul_f32 v{xf+13}, s{sT[6]}, v{xf+15}")
    for i in range(8):
        a(f"v_sub_f32 v{xf+14}, v{xf+i}, v{xf+13}")
        if i == 0: a(f"v_mul_f32 v{xf+12}, v{xf+14}, v{xf+14}")
        else: a(f"v_fmac_f32 v{xf+12}, v{xf+14}, v{xf+14}")
    rne_bf16(xf + 13, xf + 13)
    wave_sum(xf + 12)
    for i in range(8): a(f"v_sub_f32 v{xf+i}, v{xf+i}, v{xf+13}")
    a(f"v_readlane_b32 s{sT[6]}, v{xf+12}, 63")
    for i in range(4): a(f"v_cvt_pk_bf16_f32 v{xf+8+i}, v{xf+2*i}, v{xf+2*i+1}")
    a(f"v_mul_f32 v{xf+12}, s{sT[6]}, v{xf+15}")
    rne_bf16(xf + 12, xf + 12)
    a(f"v_add_f32 v{xf+12}, 0x3727c5ac, v{xf+12}")
    rne_bf16(xf + 12, xf + 12)
    a(f"v_sqrt_f32 v{xf+12}, v{xf+12}")
    for i in range(4):
        a(f"v_lshlrev_b32 v{xf+2*i}, 16, v{xf+8+i}")
        a(f"v_and_b32 v{xf+2*i+1}, 0xffff0000, v{xf+8+i}")
    rne_bf16(xf + 12, xf + 12)
    a(f"v_rcp_f32 v{xf+12}, v{xf+12}")
    a(f"s_mul_i32 s{sT[6]}, s{sK}, 1040")
    a(f"s_add_u32 s{sT[6]}, s{sT[6]}, {L_XN}")
    a(f"v_add_u32 v{xf+15}, s{sT[6]}, v{vL16}")
    for i in range(8): a(f"v_mul_f32 v{xf+i}, v{xf+i}, v{xf+12}")
    for i in range(4): a(f"v_cvt_pk_bf16_f32 v{xf+8+i}, v{xf+2*i}, v{xf+2*i+1}")
    a(f"ds_write_b128 v{xf+15}, {v(xf+8,4)}")

a(f"""
s_cmp_ge_u32 s2, 256
s_cbranch_scc1 L_end
s_load_dwordx2 s[{R_WQ}:{R_WQ+1}], s[0:1], 16
s_load_dwordx2 s[{R_CKV}:{R_CKV+1}], s[0:1], 8
s_load_dwordx2 s[{R_X}:{R_X+1}], s[0:1], 0
s_load_dwordx2 s[{R_WS}:{R_WS+1}], s[0:1], 96
s_load_dwordx2 s[{R_WUK}:{R_WUK+1}], s[0:1], 24
s_load_dwordx2 s[{R_WUV}:{R_WUV+1}], s[0:1], 32
s_load_dwordx2 s[{R_WO}:{R_WO+1}], s[0:1], 40
s_load_dwordx2 s[{R_WG}:{R_WG+1}], s[0:1], 56
s_load_dwordx2 s[{R_WU}:{R_WU+1}], s[0:1], 64
s_load_dwordx2 s[{R_WD}:{R_WD+1}], s[0:1], 72
s_load_dwordx2 s[{R_OUT}:{R_OUT+1}], s[0:1], 80
v_lshrrev_b32 v{t0}, 6, v0
v_and_b32 v{vL}, 63, v0
v_and_b32 v{vN}, 15, v0
v_readfirstlane_b32 s{sW}, v{t0}
v_bfe_u32 v{vG}, v0, 4, 2
v_lshlrev_b32 v{t0}, 2, v{vL}
v_add_u32 v{t0}, {L_FL}, v{t0}
v_mov_b32 v{t3}, 0
ds_write_b32 v{t0}, v{t3}
v_lshlrev_b32 v{t0}, 3, v{vN}
v_add_u32 v{t0}, {L_MX}, v{t0}
v_mov_b32 v{t2}, 0xff800000
ds_write2_b32 v{t0}, v{t2}, v{t3} offset0:0 offset1:1
v_mov_b32 v{vFL}, {L_FL}
v_mov_b32 v{vONE}, 1
v_lshlrev_b32 v{vL16}, 4, v{vL}
""")
if PROF: a(f"v_mov_b32 v{vTSA}, 0")
for r, nb in [(R_WQ, 4 << 20), (R_CKV, 16 << 20), (R_X, 4096), (R_WS, WS_USED), (R_WUK, 4 << 20), (R_WUV, 4 << 20), (R_WO, 4 << 20),
              (R_WG, 512 * 1376 * 2), (R_WU, 512 * 1376 * 2), (R_WD, 512 * 1376 * 2), (R_OUT, 4096), (R_PF, 86 * 128)]:
    a(f"s_mov_b32 s{r+2}, {nb}")
    a(f"s_mov_b32 s{r+3}, 0x20000")
a(f"""
s_and_b32 s{sX}, s2, 7
s_lshr_b32 s{sY}, s2, 3
s_lshr_b32 s{sYP}, s2, 4
s_and_b32 s{sT[0]}, s{sY}, 1
s_xor_b32 s{sHGB}, s{sT[0]}, 1
s_lshl_b32 s{sH}, s{sT[0]}, 4
s_lshl_b32 s{sT[1]}, s{sX}, 1
s_add_u32 s{sH}, s{sH}, s{sT[1]}
s_and_b32 s{sT[1]}, s{sYP}, 1
s_add_u32 s{sH}, s{sH}, s{sT[1]}
s_bfe_u32 s{sCQ}, s{sY}, 0x20002
s_lshr_b32 s{sMH}, s{sY}, 4
s_lshl_b32 s{sCH}, s{sX}, 4
s_add_u32 s{sCH}, s{sCH}, s{sYP}
s_and_b32 s{sHA}, s{sYP}, 3
s_lshl_b32 s{sT[1]}, s{sX}, 2
s_add_u32 s{sHA}, s{sHA}, s{sT[1]}
s_lshr_b32 s{sJQ}, s{sYP}, 2
s_mov_b32 s{sSELLO}, 0x05040100
s_mov_b32 s{sSELHI}, 0x07060302
s_mov_b32 s{sM4}, 0x000f000f
s_mov_b32 s{sM4+1}, 0x000f000f
s_mov_b32 s{sM8}, 0x00ff00ff
s_mov_b32 s{sM8+1}, 0x00ff00ff
s_mul_i32 s{sPHI}, s{sX}, 11
s_add_u32 s{sPHI}, s{sPHI}, s{sYP}
s_cmp_lt_u32 s{sYP}, 11
s_cselect_b32 s{sISF}, s{sT[0]}, 0
s_cmp_lt_u32 s{sPHI}, 86
s_cselect_b32 s{sISF}, s{sISF}, 0
s_cmp_ge_u32 s{sYP}, 12
s_cselect_b32 s{sISR}, s{sHGB}, 0
s_sub_u32 s{sRHO}, s{sYP}, 12
s_lshl_b32 s{sRHO}, s{sRHO}, 3
s_add_u32 s{sRHO}, s{sRHO}, s{sX}
s_and_b32 s{sK}, s{sW}, 3
s_waitcnt lgkmcnt(0)
""")
stamp("start")
a(f"""
s_load_dword s{sEP}, s[{R_WS}:{R_WS+1}], {EPOCH_OFF}
s_barrier
s_cmp_ge_u32 s{sW}, 6
s_cbranch_scc1 L_wave67
s_cmp_ge_u32 s{sW}, 4
s_cbranch_scc1 L_wave45
s_setprio 2
s_cmp_eq_u32 s{sHGB}, 0
s_cbranch_scc1 L_freeC
""")

WQ, FR, AC, BX, UK = 32, 160, 192, 224, 32
vWQ, vUK = vT[4], vT[5]
a(f"""
v_lshlrev_b32 v{vWQ}, 16, v{vG}
v_lshl_add_u32 v{vWQ}, v{vN}, 4, v{vWQ}
s_lshl_b32 s{sT[0]}, s{sW}, 20
s_lshl_b32 s{sT[1]}, s{sHA}, 8
s_add_u32 s{sT[0]}, s{sT[0]}, s{sT[1]}
""")
def wq_kstep(u):
    a(f"""
    s_add_u32 s{sT[2]}, s{sJQ}, {u}
    s_and_b32 s{sT[2]}, s{sT[2]}, 3
    s_lshl_b32 s{sT[2]}, s{sT[2]}, 18
    s_add_u32 s{sT[3]}, s{sT[2]}, s{sT[0]}
    """)
    for e in range(8):
        if e: a(f"s_add_u32 s{sT[3]}, s{sT[3]}, 8192")
        a(f"buffer_load_dwordx4 {v(WQ+4*(8*u+e),4)}, v{vWQ}, {srd(R_WQ)}, s{sT[3]} offen nt")
def q_kstep(u):
    for jj in range(8):
        for p in range(4):
            sel = sSELHI if (jj & 1) else sSELLO
            a(f"v_perm_b32 v{FR+4*jj+p}, v{WQ+4*(8*u+2*p+1)+(jj>>1)}, v{WQ+4*(8*u+2*p)+(jj>>1)}, s{sel}")
        if jj >= 1: mfma(AC+4*(jj-1), FR+4*(jj-1), BX+4*u, u == 0)
    mfma(AC+28, FR+28, BX+4*u, u == 0)
wq_kstep(0)
vQPw, vQPr, vQ16w, vQ16r, vQAp = vT[6], vT[7], vT[8], vT[9], vT[10]
a(f"""
s_lshl_b32 s{sT[4]}, s{sW}, 5
s_lshl_b32 s{sT[5]}, s{sJQ}, 7
s_add_u32 s{sT[4]}, s{sT[4]}, s{sT[5]}
s_lshl_b32 s{sT[4]}, s{sT[4]}, 13
s_add_u32 s{sT[4]}, s{sT[4]}, s{sT[1]}
s_add_u32 s{sT[5]}, s{sT[4]}, {16*8192}
v_lshlrev_b32 v{vUK}, 13, v{vN}
v_lshl_add_u32 v{vUK}, v{vG}, 4, v{vUK}
v_and_b32 v{t1}, 3, v{vN}
v_mul_u32_u24 v{t0}, 1040, v{t1}
v_lshl_add_u32 v{t0}, v{vG}, 4, v{t0}
s_lshl_b32 s{sT[6]}, s{sW}, 8
s_add_u32 s{sT[6]}, s{sT[6]}, {L_XN}
v_add_u32 v{t0}, s{sT[6]}, v{t0}
s_lshl_b32 s{sT[6]}, s{sW}, 11
s_add_u32 s{sT[6]}, s{sT[6]}, {L_QS}
v_lshlrev_b32 v{vQPw}, 6, v{vG}
v_lshl_add_u32 v{vQ16r}, v{t1}, 4, v{vQPw}
v_add_u32 v{vQPw}, s{sT[6]}, v{vQ16r}
v_add_u32 v{vQ16r}, {L_Q16}, v{vQ16r}
s_lshl_b32 s{sT[6]}, s{sW}, 9
s_add_u32 s{sT[6]}, s{sT[6]}, {L_QS}
v_lshlrev_b32 v{vQPr}, 2, v{vL}
v_add_u32 v{vQPr}, s{sT[6]}, v{vQPr}
v_lshlrev_b32 v{vQ16w}, 6, v{t1}
v_and_b32 v{t2}, 12, v{vL}
v_lshl_add_u32 v{vQ16w}, v{t2}, 2, v{vQ16w}
v_lshl_add_u32 v{vQ16w}, v{vG}, 8, v{vQ16w}
s_lshl_b32 s{sT[6]}, s{sW}, 2
s_add_u32 s{sT[6]}, s{sT[6]}, {L_Q16}
v_add_u32 v{vQ16w}, s{sT[6]}, v{vQ16w}
v_lshlrev_b32 v{vQAp}, 16, v{t1}
v_lshl_add_u32 v{vQAp}, v{vG}, 4, v{vQAp}
v_bfe_u32 v{t2}, v{vN}, 2, 1
v_lshl_add_u32 v{vQAp}, v{t2}, 6, v{vQAp}
v_cmp_eq_u32 s[{sC2}:{sC2+1}], 1, v{t2}
s_lshl_b32 s{sT[6]}, s{sHA}, 11
s_lshl_b32 s{sT[7]}, s{sJQ}, 9
s_add_u32 s{sT[6]}, s{sT[6]}, s{sT[7]}
s_lshl_b32 s{sT[7]}, s{sW}, 7
s_add_u32 s{sT[6]}, s{sT[6]}, s{sT[7]}
s_add_u32 s{sT[6]}, s{sT[6]}, {QA_OFF}
s_mov_b32 s{sT[7]}, {f32(math.log2(math.e) / math.sqrt(128.0))}
""")
for u in range(4):
    a(f"""
    s_add_u32 s{sT[2]}, s{sJQ}, {u}
    s_and_b32 s{sT[2]}, s{sT[2]}, 3
    s_lshl_b32 s{sT[2]}, s{sT[2]}, 6
    v_add_u32 v{vT[11+u]}, s{sT[2]}, v{t0}
    """)
wq_kstep(1)
wq_kstep(2)
def spec_xn():
    for u in range(4):
        a(f"ds_read_b128 {v(BX+4*u,4)}, v{vT[11+u]}")
wq_kstep(3)
stamp("wq issued")
lds_wait(F_XN, 4, spec_xn)
a(f"s_add_u32 s{sEP}, s{sEP}, 1")
a("s_waitcnt vmcnt(24)")
q_kstep(0)
for mt in range(2):
    for t in range(4):
        a(f"buffer_load_dwordx4 {v(UK+16*mt+4*t,4)}, v{vUK}, {srd(R_WUK)}, s{sT[4+mt]} offen offset:{64*t} nt")
lds_signal(F_WQI)
for u in range(1, 4):
    a(f"s_waitcnt vmcnt({(3-u)*8 + 8})")
    q_kstep(u)
stamp("q partial")
a(f"s_mov_b64 exec, s[{sM4}:{sM4+1}]")
for jj in range(8):
    a(f"ds_write_b128 v{vQPw}, {v(AC+4*jj,4)} offset:{256*jj}")
lds_signal(F_QP)
def spec_qp():
    for k in range(4):
        a(f"ds_read2st64_b32 {v(FR+2*k,2)}, v{vQPr} offset0:{8*k} offset1:{8*k+1}")
lds_wait(F_QP, 4, spec_qp)
stamp("qp done")
a(f"""
v_add_f32 v{FR}, v{FR}, v{FR+2}
v_add_f32 v{FR+1}, v{FR+1}, v{FR+3}
v_add_f32 v{FR+4}, v{FR+4}, v{FR+6}
v_add_f32 v{FR+5}, v{FR+5}, v{FR+7}
v_add_f32 v{FR}, v{FR}, v{FR+4}
v_add_f32 v{FR+1}, v{FR+1}, v{FR+5}
v_cvt_pk_bf16_f32 v{FR}, v{FR}, v{FR+1}
ds_write_b32 v{vQ16w}, v{FR}
""")
lds_signal(F_Q16)
a(f"v_mov_b32 v{AC+9}, s{sEP}")
a(f"v_mov_b32 v{AC+11}, s{sEP}")
def spec_q16():
    a(f"ds_read_b32 v{t3}, v{vFL} offset:{F_CLR}")
    for t in range(4):
        a(f"ds_read_b128 {v(FR+8+4*t,4)}, v{vQ16r} offset:{256*t}")
lds_wait(F_Q16, 4, spec_q16)
stamp("q16 done")
a("s_waitcnt vmcnt(0)")
stamp("uk landed")
for t in range(4):
    for mt in range(2):
        mfma(AC+4*mt, UK+16*mt+4*t, FR+8+4*t, t == 0)
a(f"""
v_readfirstlane_b32 s{sACC}, v{t3}
s_cmp_ge_u32 s{sACC}, 2
s_cbranch_scc1 L_clrok
""")
lds_wait(F_CLR, 2)
a("L_clrok:")
for r in range(4):
    a(f"v_cndmask_b32 v{AC+r}, v{AC+r}, v{AC+4+r}, s[{sC2}:{sC2+1}]")
for r in range(4):
    a(f"v_mul_f32 v{AC+r}, s{sT[7]}, v{AC+r}")
a(f"""
v_cvt_pk_bf16_f32 v{AC+8}, v{AC}, v{AC+1}
v_cvt_pk_bf16_f32 v{AC+10}, v{AC+2}, v{AC+3}
s_mov_b64 exec, s[{sM8}:{sM8+1}]
buffer_store_dwordx4 {v(AC+8,4)}, v{vQAp}, {srd(R_WS)}, s{sT[6]} offen sc1
s_mov_b64 exec, -1
""")
stamp("q_abs published")
a("s_branch L_phaseB")

a("L_freeC:")
if UKPF:
    a(f"""
    v_lshrrev_b32 v{t0}, 1, v{vL}
    v_lshlrev_b32 v{t0}, 13, v{t0}
    v_and_b32 v{t1}, 1, v{vL}
    v_lshl_add_u32 v{t0}, v{t1}, 7, v{t0}
    s_lshl_b32 s{sT[4]}, s{sW}, 5
    s_lshl_b32 s{sT[5]}, s{sJQ}, 7
    s_add_u32 s{sT[4]}, s{sT[4]}, s{sT[5]}
    s_lshl_b32 s{sT[4]}, s{sT[4]}, 13
    s_lshl_b32 s{sT[1]}, s{sHA}, 8
    s_add_u32 s{sT[4]}, s{sT[4]}, s{sT[1]}
    buffer_load_dword v{vDUM}, v{t0}, {srd(R_WUK)}, s{sT[4]} offen nt
    """)
lds_wait(F_CLR, 2, sleep=4)
a(f"s_add_u32 s{sEP}, s{sEP}, 1")

a("L_phaseB:")
GQ, QF, SA0, SA1, SD, vM = 64, 32, 96, 160, 224, 232
vX0 = vT[4]
vQa, vQb, vQw, vEP, vTF, vPV, vO = vT[8], vT[9], vT[10], vT[11], vT[12], vT[13], vT[14]
vSA = vT[15]
a(f"""
v_lshlrev_b32 v{vQa}, 4, v0
v_add_u32 v{vQb}, 16384, v{vQa}
s_lshr_b32 s{sT[6]}, s{sCH}, 5
s_lshl_b32 s{sT[6]}, s{sT[6]}, 1
s_add_u32 s{sT[6]}, s{sT[6]}, s{sHGB}
s_lshl_b32 s{sT[6]}, s{sT[6]}, 15
s_add_u32 s{sT[6]}, s{sT[6]}, {QA_OFF}
s_add_u32 s{sT[7]}, s{sT[6]}, 4096
s_add_u32 s{sT[8]}, s{sT[6]}, 8192
s_add_u32 s{sT[9]}, s{sT[6]}, 12288
""")
def qa_loads():
    for i in range(8):
        a(f"buffer_load_dwordx4 {v(GQ+4*i,4)}, v{vQb if i >= 4 else vQa}, {srd(R_WS)}, s{sT[6+(i&3)]} offen sc1")
a(f"""
v_and_b32 v{vQw}, 127, v0
v_lshlrev_b32 v{vQw}, 3, v{vQw}
s_lshr_b32 s{sT[10]}, s{sW}, 1
s_lshl_b32 s{sT[5]}, s{sT[10]}, 5
v_xor_b32 v{vQw}, s{sT[5]}, v{vQw}
s_lshl_b32 s{sT[10]}, s{sT[10]}, 10
s_add_u32 s{sT[10]}, s{sT[10]}, {L_QS}
v_add_u32 v{vQw}, s{sT[10]}, v{vQw}
v_mov_b32 v{vEP}, s{sEP}
v_lshrrev_b32 v{t0}, 3, v{vN}
v_lshlrev_b32 v{t1}, 2, v{t0}
v_and_b32 v{t2}, 7, v{vN}
v_xor_b32 v{t2}, v{t2}, v{t1}
v_lshl_add_u32 v{t2}, v{t2}, 1, v{t0}
v_xor_b32 v{t2}, v{t2}, v{vG}
v_lshlrev_b32 v{t2}, 4, v{t2}
v_lshl_add_u32 v{t2}, v{vN}, 10, v{t2}
s_lshl_b32 s{sT[0]}, s{sW}, 15
v_add_u32 v{vSA}, s{sT[0]}, v{t2}
v_add_u32 v{vX0}, {L_QS}, v{t2}
""")
for tt in range(1, 4):
    a(f"v_xor_b32 v{vSA+tt}, {64*tt}, v{vSA}")
    a(f"v_xor_b32 v{vX0+tt}, {64*tt}, v{vX0}")
a(f"""
s_lshl_b32 s{sT[1]}, s{sW}, 3
v_add_u32 v{vTF}, s{sT[1]}, v{vFL}
v_bfe_u32 v{t0}, v{vL}, 2, 4
v_lshrrev_b32 v{t1}, 3, v{t0}
v_lshlrev_b32 v{t2}, 2, v{t1}
v_and_b32 v{t3}, 7, v{t0}
v_xor_b32 v{t3}, v{t3}, v{t2}
v_lshl_add_u32 v{t3}, v{t3}, 1, v{t1}
v_bfe_u32 v{t1}, v{vL}, 1, 1
v_xor_b32 v{t3}, v{t3}, v{t1}
v_lshlrev_b32 v{t3}, 4, v{t3}
v_and_b32 v{t1}, 1, v{vL}
v_lshl_add_u32 v{t3}, v{t1}, 3, v{t3}
v_lshl_add_u32 v{t3}, v{t0}, 10, v{t3}
s_lshl_b32 s{sT[0]}, s{sW}, 8
v_add_u32 v{vPV}, s{sT[0]}, v{t3}
v_and_b32 v{t0}, 1, v{vG}
v_lshlrev_b32 v{t0}, 5, v{t0}
v_lshrrev_b32 v{t1}, 1, v{vG}
v_lshl_add_u32 v{t0}, v{t1}, 4, v{t0}
v_and_b32 v{t1}, 7, v{vN}
v_lshl_add_u32 v{vO}, v{t1}, 17, v{t0}
v_lshrrev_b32 v{t1}, 3, v{vN}
v_lshl_add_u32 v{vO}, v{t1}, 6, v{vO}
s_lshl_b32 s{sO}, s{sHGB}, 21
s_lshl_b32 s{sT[4]}, s{sCH}, 8
s_add_u32 s{sO}, s{sO}, s{sT[4]}
s_lshl_b32 s{sT[4]}, s{sW}, 15
s_add_u32 s{sO}, s{sO}, s{sT[4]}
s_add_u32 s{sO}, s{sO}, {O_OFF}
s_add_u32 s{sT[3]}, s{sO}, {8 << 17}
""")
PAD = list(range(240, 256))
for mt in range(8):
    a(f"v_xor_b32 v{PAD[mt]}, {32*mt}, v{vPV}")
    a(f"v_add_u32 v{PAD[8+mt]}, 0x10000, v{PAD[mt]}")
a("s_waitcnt vmcnt(0)")
a(f"""
s_cmp_eq_u32 s{sHGB}, 0
s_cbranch_scc1 L_noq0
""")
qa_loads()
a("L_noq0:")
lds_wait(F_TILE, 1, base=vTF, sleep=1)
for t in range(16):
    a(f"ds_read_b128 {v(SA0+4*t,4)}, v{vSA+(t&3)} offset:{(t>>2)*256}")
lds_wait(F_TILE + 4, 1, base=vTF, sleep=1)
for t in range(16):
    a(f"ds_read_b128 {v(SA1+4*t,4)}, v{vSA+(t&3)} offset:{16384+(t>>2)*256}")
stamp("tiles read")
a(f"""
s_cmp_eq_u32 s{sHGB}, 1
s_cbranch_scc1 L_qgo
""")
lds_wait(F_GO, 2, sleep=1)
a("L_qgo:")
a(f"""
s_mov_b32 s{sCNT}, 0
s_cmp_eq_u32 s{sHGB}, 1
s_cbranch_scc1 L_pollq_chk
""")
a("L_pollq:")
qa_loads()
a("L_pollq_chk:")
for i in range(8):
    a(f"s_waitcnt vmcnt({7-i})")
    if i == 0: a(f"v_xor_b32 v{t2}, v{GQ+1}, v{vEP}")
    else: a(f"v_bitop3_b32 v{t2}, v{t2}, v{GQ+4*i+1}, v{vEP} bitop3:0xf6")
    a(f"v_bitop3_b32 v{t2}, v{t2}, v{GQ+4*i+3}, v{vEP} bitop3:0xf6")
a(f"v_cmp_ne_u32 vcc, 0, v{t2}")
poll_tail("L_pollq", QSLEEP)
cstamp("qa retries")
stamp("q_abs gathered")
for i in range(8):
    if i: a(f"v_xor_b32 v{t2}, {(fsw(2*i) << 4) | (i << 11)}, v{vQw}")
    a(f"ds_write2_b32 v{t2 if i else vQw}, v{GQ+4*i}, v{GQ+4*i+2} offset0:0 offset1:1")
lds_signal(F_QS)
a(f"""
v_lshlrev_b32 v{t0}, 3, v{vN}
v_add_u32 v{t0}, {L_MX}, v{t0}
s_lshl_b32 s{sT[0]}, s{sW}, 10
s_add_u32 s{sT[0]}, s{sT[0]}, {L_PX}
v_add_u32 v{t2}, s{sT[0]}, v{vL16}
v_add_u32 v{t3}, {L_PX}, v{vL16}
""")
def spec_qf():
    for t in range(4):
        a(f"ds_read_b128 {v(QF+4*t,4)}, v{vX0+(t&3)} offset:{(t>>2)*256}")
lds_wait(F_QS, 4, spec_qf)
for t in range(4, 16):
    a(f"ds_read_b128 {v(QF+4*t,4)}, v{vX0+(t&3)} offset:{(t>>2)*256}")
for t in range(16):
    if t >= 4: a(f"s_waitcnt lgkmcnt({15-t})")
    mfma(SD, SA0+4*t, QF+4*t, t == 0)
    mfma(SD+4, SA1+4*t, QF+4*t, t == 0)
a(f"""
v_max3_f32 v{t1}, v{SD}, v{SD+1}, v{SD+2}
v_max_f32 v{t1}, v{t1}, v{SD+3}
v_max3_f32 v{t1}, v{t1}, v{SD+4}, v{SD+5}
v_max3_f32 v{t1}, v{t1}, v{SD+6}, v{SD+7}
ds_max_f32 v{t0}, v{t1}
ds_add_u32 v{t0}, v{vONE} offset:4
""")
PVA, PB, OD, OS, ON = 32, 160, 176, 208, 224
lp, dn = a.newlabel("Lm"), a.newlabel("Lmd")
a(f"s_mov_b32 s{sCNT}, 0")
a.label(lp)
a(f"""
ds_read_b64 {v(vM,2)}, v{t0}
s_waitcnt lgkmcnt(0)
v_cmp_ne_u32 vcc, 16, v{vM+1}
s_cmp_eq_u64 vcc, 0
s_cbranch_scc1 {dn}
s_add_u32 s{sCNT}, s{sCNT}, 1
s_cmp_lt_u32 s{sCNT}, {LSPIN_MAX}
s_cbranch_scc1 {lp}
""")
a.label(dn)
stamp("S done")
def pv_read(u, mt):
    for vv in range(2):
        tile = 2 * u + vv
        ad = PAD[mt] if tile < 4 else PAD[8 + mt]
        a(f"ds_read_b64_tr_b16 {v(PVA+16*mt+4*u+2*vv,2)}, v{ad} offset:{(tile&3)*16384}")
a(f"v_ceil_f32 v{vM}, v{vM}")
for mt in range(4): pv_read(0, mt)
for r in range(8): a(f"v_sub_f32 v{SD+r}, v{SD+r}, v{vM}")
for r in range(8): a(f"v_exp_f32 v{SD+r}, v{SD+r}")
for k in range(4): a(f"v_cvt_pk_bf16_f32 v{PB+k}, v{SD+2*k}, v{SD+2*k+1}")
a(f"ds_write_b128 v{t2}, {v(PB,4)}")
lds_signal(F_P)
for mt in range(4, 8): pv_read(0, mt)
for mt in range(8): pv_read(1, mt)
def spec_p():
    for u in range(4):
        a(f"ds_read_b128 {v(PB+4*u,4)}, v{t3} offset:{1024*u}")
lds_wait(F_P, 4, spec_p)
stamp("P done")
for u in range(4):
    for mt in range(8):
        if u < 2:
            pv_read(u + 2, mt)
        else:
            left = 32 - 2 * ((u - 2) * 8 + mt + 1)
            if left <= 15: a(f"s_waitcnt lgkmcnt({left})")
            elif (u, mt) == (2, 0): a("s_waitcnt lgkmcnt(15)")
        mfma(OD+4*mt, PVA+16*mt+4*u, PB+4*u, u == 0)
lds_signal(F_BD)
stamp("PV done")
for i in range(4): a(f"v_mov_b32 v{ON+i}, 0x3f803f80")
for u in range(4): mfma(ON+4, ON, PB+4*u, u == 0)
CK = vM + 2
for pp in range(2):
    for p in (2 * pp, 2 * pp + 1):
        for k in range(2):
            mt = 2 * p + k
            a(f"v_cvt_pk_bf16_f32 v{OS+2*mt}, v{OD+4*mt}, v{OD+4*mt+1}")
            a(f"v_cvt_pk_bf16_f32 v{OS+2*mt+1}, v{OD+4*mt+2}, v{OD+4*mt+3}")
        a(f"v_permlane16_swap_b32 v{OS+4*p}, v{OS+4*p+2}")
        a(f"v_permlane16_swap_b32 v{OS+4*p+1}, v{OS+4*p+3}")
    X, Y, T = OS + 8 * pp, OS + 8 * pp + 4, OD + 16 * pp
    for k in range(0, 8, 2):
        if pp == 0 and k == 0: a(f"v_add_u32 v{CK}, v{X}, v{X+1}")
        else: a(f"v_add3_u32 v{CK}, v{CK}, v{X+k}, v{X+k+1}")
    for d in range(4):
        a(f"v_mov_b32 v{T+d}, v{X+d}")
    for d in range(4):
        a(f"v_mov_b32_dpp v{T+d}, v{Y+d} row_ror:8 row_mask:0xf bank_mask:0xc")
    a(f"buffer_store_dwordx4 {v(T,4)}, v{vO}, {srd(R_WS)}, s{sO} offen offset:{128*pp} sc1")
    for d in range(4):
        a(f"v_mov_b32_dpp v{Y+d}, v{X+d} row_ror:8 row_mask:0xf bank_mask:0x3")
    a(f"buffer_store_dwordx4 {v(Y,4)}, v{vO}, {srd(R_WS)}, s{sT[3]} offen offset:{128*pp} sc1")
a(f"""
s_lshl_b32 s{sT[4]}, s{sHGB}, 7
s_add_u32 s{sT[4]}, s{sT[4]}, s{sCH}
s_lshl_b32 s{sT[4]}, s{sT[4]}, 2
s_add_u32 s{sT[4]}, s{sT[4]}, s{sW}
s_lshl_b32 s{sT[4]}, s{sT[4]}, 8
s_add_u32 s{sT[4]}, s{sT[4]}, {ML_OFF}
v_mov_b32 v{t0}, v{CK}
v_mov_b32 v{vM+1}, v{ON+4}
v_permlane32_swap_b32 v{CK}, v{t0}
v_add_u32 v{CK}, v{CK}, v{t0}
v_mov_b32 v{t0}, v{CK}
v_xor_b32 v{t1}, s{sEP}, v{vM}
v_permlane16_swap_b32 v{CK}, v{t0}
v_add3_u32 v{CK}, v{CK}, v{t0}, s{sEP}
v_xor_b32 v{vM+3}, v{t1}, v{vM+1}
s_mov_b64 exec, 0xffff
buffer_store_dwordx4 {v(vM,4)}, v{vL16}, {srd(R_WS)}, s{sT[4]} offen sc1
s_mov_b64 exec, -1
""")
stamp("O published")

HD, HM, MK, AW, CD = 32, 64, 72, 76, 84
mM, wA, wB, wb, ckS, ckE, vCLw, vHd2 = vT[4], vT[5], vT[6], vT[7], vT[8], vT[9], vT[10], vT[11]
a(f"""
v_lshlrev_b32 v{t0}, 8, v{vG}
v_lshl_add_u32 v{t0}, v{vN}, 4, v{t0}
v_add_u32 v{vHd2}, 4096, v{t0}
s_lshl_b32 s{sT[0]}, s{sH}, 2
s_add_u32 s{sT[0]}, s{sT[0]}, s{sCQ}
s_lshl_b32 s{sT[0]}, s{sT[0]}, 15
s_lshl_b32 s{sT[2]}, s{sW}, 13
s_add_u32 s{sT[0]}, s{sT[0]}, s{sT[2]}
s_add_u32 s{sT[0]}, s{sT[0]}, {O_OFF}
v_and_b32 v{t1}, 7, v{vN}
v_lshrrev_b32 v{t2}, 3, v{vN}
v_xor_b32 v{t2}, v{t2}, v{vG}
v_lshl_add_u32 v{t1}, v{t1}, 2, v{t2}
v_lshlrev_b32 v{t1}, 10, v{t1}
v_xor_b32 v{t2}, 2048, v{t1}
s_lshr_b32 s{sT[4]}, s{sH}, 4
s_lshl_b32 s{sT[4]}, s{sT[4]}, 2
s_add_u32 s{sT[4]}, s{sT[4]}, s{sW}
s_lshl_b32 s{sT[4]}, s{sT[4]}, 15
s_and_b32 s{sT[5]}, s{sH}, 15
s_lshl_b32 s{sT[5]}, s{sT[5]}, 4
s_add_u32 s{sT[4]}, s{sT[4]}, s{sT[5]}
s_lshl_b32 s{sT[5]}, s{sCQ}, 8
s_add_u32 s{sT[4]}, s{sT[4]}, s{sT[5]}
s_add_u32 s{sT[4]}, s{sT[4]}, {ML_OFF}
v_and_b32 v{t3}, 1, v{vN}
v_lshlrev_b32 v{t3}, 4, v{t3}
v_mov_b32 v{mM}, 0xffff
v_lshlrev_b32 v{t3}, v{t3}, v{mM}
v_lshrrev_b32 v{mM}, 1, v{vN}
""")
for d in range(4):
    a(f"v_cmp_eq_u32 vcc, {d}, v{mM}")
    a(f"v_cndmask_b32 v{MK+d}, 0, v{t3}, vcc")
a(f"""
s_mul_i32 s{sT[5]}, s{sW}, 272
s_add_u32 s{sT[5]}, s{sT[5]}, {L_CL}
v_lshlrev_b32 v{vCLw}, 4, v{vN}
v_lshl_add_u32 v{vCLw}, v{vG}, 3, v{vCLw}
v_add_u32 v{vCLw}, s{sT[5]}, v{vCLw}
s_mov_b32 s{sT[6]}, 0x03020302
""")
if OACK: a("s_waitcnt vmcnt(0)")
stamp("O acked")
a(f"s_mov_b32 s{sCNT}, 0")
a("L_pollm:")
a(f"""
buffer_load_dwordx4 {v(HM,4)}, v{t1}, {srd(R_WS)}, s{sT[4]} offen sc1
buffer_load_dwordx4 {v(HM+4,4)}, v{t2}, {srd(R_WS)}, s{sT[4]} offen sc1
s_waitcnt vmcnt(0)
v_bitop3_b32 v{ckE}, v{HM}, v{HM+1}, v{HM+3} bitop3:0x96
v_bitop3_b32 v{t3}, v{HM+4}, v{HM+5}, v{HM+7} bitop3:0x96
v_cmp_ne_u32 vcc, s{sEP}, v{ckE}
v_cmp_ne_u32 s[{sACC}:{sACC+1}], s{sEP}, v{t3}
s_or_b64 vcc, s[{sACC}:{sACC+1}], vcc
""")
poll_tail("L_pollm", MLSLEEP)
cstamp("ml retries")
stamp("ML ok")
for t in range(8):
    a(f"buffer_load_dwordx4 {v(HD+4*t,4)}, v{vHd2 if t >= 4 else t0}, {srd(R_WS)}, s{sT[0]} offen offset:{1024*(t&3)} sc1")
a(f"""
v_max_f32 v{mM}, v{HM}, v{HM+4}
v_max_f32_dpp v{mM}, v{mM}, v{mM} row_ror:1 row_mask:0xf bank_mask:0xf
v_max_f32_dpp v{mM}, v{mM}, v{mM} row_ror:2 row_mask:0xf bank_mask:0xf
v_sub_u32 v{ckS}, s{sEP}, v{HM+2}
v_max_f32_dpp v{mM}, v{mM}, v{mM} row_ror:4 row_mask:0xf bank_mask:0xf
v_cndmask_b32 v{ckS}, 0, v{ckS}, s[{sM8}:{sM8+1}]
v_max_f32_dpp v{mM}, v{mM}, v{mM} row_ror:8 row_mask:0xf bank_mask:0xf
v_sub_f32 v{wA}, v{HM}, v{mM}
v_sub_f32 v{wB}, v{HM+4}, v{mM}
v_exp_f32 v{wA}, v{wA}
v_exp_f32 v{wB}, v{wB}
v_perm_b32 v{wb}, v{wA}, v{wA}, s{sT[6]}
v_mul_f32 v{wA}, v{wA}, v{HM+1}
v_fmac_f32 v{wA}, v{wB}, v{HM+5}
""")
sfts = [1, 2, 4, 8]
for t in range(8):
    aw = AW + 4 * (t & 1)
    for d in range(4):
        a(f"v_and_b32_dpp v{aw+d}, v{wb}, v{MK+d} row_newbcast:{t} row_mask:0xf bank_mask:0xf")
    if t < 4:
        a(f"v_add_f32_dpp v{wA}, v{wA}, v{wA} row_ror:{sfts[t]} row_mask:0xf bank_mask:0xf")
    if t == 4:
        a(f"v_rcp_f32 v{wA}, v{wA}")
    a(f"s_waitcnt vmcnt({7-t})")
    a(f"v_add3_u32 v{ckS}, v{ckS}, v{HD+4*t}, v{HD+4*t+1}")
    mfma(CD, aw, HD+4*t, t == 0)
    a(f"v_add3_u32 v{ckS}, v{ckS}, v{HD+4*t+2}, v{HD+4*t+3}")
for sft in sfts:
    a(f"v_add_u32_dpp v{ckS}, v{ckS}, v{ckS} row_ror:{sft} row_mask:0xf bank_mask:0xf")
a(f"v_cmp_ne_u32 vcc, 0, v{ckS}")
for r in range(4): a(f"v_mul_f32 v{CD+r}, v{CD+r}, v{wA}")
a(f"v_cvt_pk_bf16_f32 v{CD+4}, v{CD}, v{CD+1}")
a(f"v_cvt_pk_bf16_f32 v{CD+5}, v{CD+2}, v{CD+3}")
poll_tail("L_pollm")
cstamp("o retries")
a(f"""
s_mov_b32 exec_hi, 0
ds_write_b64 v{vCLw}, {v(CD+4,2)}
s_mov_b64 exec, 1
ds_add_u32 v{vFL}, v{vONE} offset:{F_CL}
s_mov_b64 exec, -1
s_setprio 0
""")
stamp("combined")
a(f"""
s_cmp_eq_u32 s{sISF}, 1
s_cbranch_scc1 L_ffn
s_cmp_eq_u32 s{sISR}, 0
s_cbranch_scc1 L_fin
""")

SEL, RD, RA, RS, vH = 96, 100, 116, 120, 128
vMo, vXv = vT[4], vT[5]
for d in range(4): a(f"v_and_b32 v{SEL+d}, 0x3f803f80, v{MK+d}")
a(f"""
v_and_b32 v{t0}, 0x23, v{vL}
v_bfe_u32 v{t1}, v{vL}, 2, 1
v_lshl_add_u32 v{t0}, v{t1}, 4, v{t0}
v_bfe_u32 v{t1}, v{vL}, 3, 2
v_lshl_add_u32 v{t0}, v{t1}, 2, v{t0}
v_lshlrev_b32 v{vMo}, 1, v{t0}
s_lshl_b32 s{sT[0]}, s{sRHO}, 7
buffer_load_ushort v{vXv}, v{vMo}, {srd(R_X)}, s{sT[0]} offen
v_lshlrev_b32 v{t0}, 4, v0
s_lshl_b32 s{sT[1]}, s{sRHO}, 14
s_add_u32 s{sT[1]}, s{sT[1]}, {PA_OFF}
s_add_u32 s{sT[2]}, s{sT[1]}, 4096
s_add_u32 s{sT[3]}, s{sT[1]}, 8192
s_add_u32 s{sT[4]}, s{sT[1]}, 12288
s_lshl_b32 s{sT[5]}, s{sW}, 8
s_add_u32 s{sT[5]}, s{sT[5]}, {L_RED}
v_lshlrev_b32 v{t1}, 5, v{vN}
v_lshl_add_u32 v{t1}, v{vG}, 4, v{t1}
v_add_u32 v{t1}, s{sT[5]}, v{t1}
v_lshlrev_b32 v{t2}, 2, v{vL}
v_add_u32 v{t2}, {L_RED}, v{t2}
s_mul_i32 s{sT[5]}, s{sRHO}, 12288
s_add_u32 s{sT[5]}, s{sT[5]}, {PF_OFF}
s_add_u32 s{R_PF}, s{R_WS}, s{sT[5]}
s_addc_u32 s{R_PF+1}, s{R_WS+1}, 0
s_mov_b32 s{sT[6]}, 4096
s_mov_b32 s{sT[7]}, 8192
s_waitcnt vmcnt(0)
s_barrier
""")
def reduce_inbox(name, rs, sos):
    a(f"s_mov_b32 s{sCNT}, 0")
    a.label(name)
    for i, so in enumerate(sos):
        a(f"buffer_load_dwordx4 {v(RD+4*i,4)}, v{t0}, {srd(rs)}, {so} offen sc1")
    n = len(sos)
    for i in range(n):
        a(f"s_waitcnt vmcnt({n-1-i})")
        if i == 0: a(f"v_max3_u32 v{t3}, v{RD}, v{RD+1}, v{RD+2}")
        else: a(f"v_max3_u32 v{t3}, v{t3}, v{RD+4*i}, v{RD+4*i+1}")
        mfma(RA, SEL, RD+4*i, i == 0)
        if i == 0: a(f"v_max_u32 v{t3}, v{t3}, v{RD+3}")
        else: a(f"v_max3_u32 v{t3}, v{t3}, v{RD+4*i+2}, v{RD+4*i+3}")
    a(f"v_cmp_eq_u32 vcc, -1, v{t3}")
    poll_tail(name)
    for r in range(4):
        a(f"v_add_f32_dpp v{RA+r}, v{RA+r}, v{RA+r} row_ror:8 row_mask:0xf bank_mask:0xf")
    a(f"""
    s_mov_b64 exec, 0x00ff00ff
    ds_write_b128 v{t1}, {v(RA,4)}
    s_mov_b64 exec, -1
    s_waitcnt lgkmcnt(0)
    s_barrier
    """)
def final_sum():
    for k in range(2):
        a(f"ds_read2st64_b32 {v(RS+2*k,2)}, v{t2} offset0:{2*k} offset1:{2*k+1}")
    a("s_waitcnt lgkmcnt(0)")
    a(f"v_add_f32 v{RS}, v{RS}, v{RS+1}")
    a(f"v_add_f32 v{RS+2}, v{RS+2}, v{RS+3}")
    a(f"v_add_f32 v{RS}, v{RS}, v{RS+2}")
def pack_store(val, rs, so, pol):
    P = RS + 4
    a(f"v_mov_b32_dpp v{RS+2}, v{val} quad_perm:[1,1,3,3] row_mask:0xf bank_mask:0xf")
    a(f"v_cvt_pk_bf16_f32 v{P}, v{val}, v{RS+2}")
    a(f"v_mov_b32_dpp v{P+1}, v{P} quad_perm:[2,2,2,2] row_mask:0xf bank_mask:0xf")
    a(f"v_mov_b32_dpp v{P+2}, v{P} row_shl:8 row_mask:0xf bank_mask:0xf")
    a(f"v_mov_b32_dpp v{P+3}, v{P+1} row_shl:8 row_mask:0xf bank_mask:0xf")
    a(f"""
    s_mov_b32 exec_lo, 0x00110011
    s_mov_b32 exec_hi, 0x00110011
    buffer_store_dwordx4 {v(P,4)}, v{vMo}, {srd(rs)}, {so} offen{pol}
    s_mov_b64 exec, -1
    """)
reduce_inbox("L_pollr1", R_WS, [f"s{sT[1+i]}" for i in range(4)])
stamp("R1 gathered")
a(f"""
s_cmp_lg_u32 s{sW}, 0
s_cbranch_scc1 L_r1skip
""")
final_sum()
rne_bf16(RS, RS)
a(f"v_lshlrev_b32 v{vXv}, 16, v{vXv}")
a(f"v_add_f32 v{vH}, v{RS}, v{vXv}")
a(f"s_add_u32 s{sT[5]}, s{sT[0]}, {HG_OFF}")
pack_store(vH, R_WS, f"s{sT[5]}", " sc1")
rne_bf16(vH, vH)
a("L_r1skip:")
stamp("h published")
a("s_barrier")
a(f"s_sleep {opt('r2sleep', 32)}")
reduce_inbox("L_pollr2", R_PF, ["0", f"s{sT[6]}", f"s{sT[7]}"])
stamp("R2 gathered")
a(f"""
s_cmp_lg_u32 s{sW}, 0
s_cbranch_scc1 L_fin
""")
final_sum()
rne_bf16(RS, RS)
a(f"v_add_f32 v{vH}, v{RS}, v{vH}")
pack_store(vH, R_OUT, f"s{sT[0]}", "")
a(f"""
s_cmp_lg_u32 s{sRHO}, 0
s_cbranch_scc1 L_fin
v_mov_b32 v{t0}, {EPOCH_OFF}
v_mov_b32 v{t1}, s{sEP}
s_mov_b64 exec, 1
buffer_store_dword v{t1}, v{t0}, {srd(R_WS)}, 0 offen sc1
s_mov_b64 exec, -1
s_branch L_fin
""")

a("L_ffn:")
FGU, FD, HB, GD, FXR, DD, DP, CSA = 96, 128, 144, 160, 172, 188, 220, 188
lds_wait(F_BD, 4)
if PFWHEN == 1:
    a("s_barrier")
a(f"""
v_lshrrev_b32 v{t0}, 1, v{vL}
v_and_b32 v{t1}, 0x13, v{t0}
v_bfe_u32 v{t2}, v{t0}, 2, 1
v_lshl_add_u32 v{t1}, v{t2}, 3, v{t1}
v_bfe_u32 v{t2}, v{t0}, 3, 1
v_lshl_add_u32 v{t1}, v{t2}, 2, v{t1}
v_mul_u32_u24 v{t1}, 2752, v{t1}
v_and_b32 v{t2}, 1, v{vL}
v_lshl_add_u32 v{t1}, v{t2}, 4, v{t1}
s_mul_i32 s{sT[0]}, s{sW}, {128*2752}
s_lshl_b32 s{sT[1]}, s{sPHI}, 5
s_add_u32 s{sT[0]}, s{sT[0]}, s{sT[1]}
s_lshl_b32 s{sT[2]}, s{sW}, 12
""")
for i in range(4):
    a(f"s_add_u32 m0, s{sT[2]}, {L_G + 1024*i}")
    if i: a(f"s_add_u32 s{sT[0]}, s{sT[0]}, {32*2752}")
    a(f"buffer_load_dwordx4 v{t1}, {srd(R_WG)}, s{sT[0]} offen lds")
    a(f"s_add_u32 m0, s{sT[2]}, {L_U + 1024*i}")
    a(f"buffer_load_dwordx4 v{t1}, {srd(R_WU)}, s{sT[0]} offen lds")
a(f"""
s_and_b32 s{sT[0]}, s{sW}, 1
s_lshl_b32 s{sT[0]}, s{sT[0]}, 7
v_xor_b32 v{t0}, s{sT[0]}, v{vL16}
s_lshl_b32 s{sT[0]}, s{sPHI}, 14
s_add_u32 s{sT[0]}, s{sT[0]}, s{sT[2]}
s_add_u32 m0, s{sT[2]}, {L_WD}
""")
for i in range(4):
    if i: a(f"v_xor_b32 v{t2}, {32*i}, v{t0}")
    a(f"buffer_load_dwordx4 v{t2 if i else t0}, {srd(R_WD)}, s{sT[0]} offen offset:{1024*i} lds")
vFXw, vFXr, vSq, vSm, vCs, csg, csu, vPF, vHl = vT[4], vT[5], vT[6], vT[7], vT[8], vT[9], vT[10], vT[11], vT[12]
a(f"""
v_bfe_u32 v{t0}, v{vL}, 2, 3
v_lshrrev_b32 v{t1}, 1, v{vG}
v_lshl_add_u32 v{t0}, v{t1}, 4, v{t0}
v_and_b32 v{t2}, 3, v{vL}
v_lshlrev_b32 v{t2}, 3, v{t2}
v_lshl_add_u32 v{t3}, v{t0}, 5, v{t2}
s_add_u32 s{sT[0]}, s{sT[2]}, {L_G}
v_add_u32 v{t3}, s{sT[0]}, v{t3}
v_bfe_u32 v{t0}, v{vL}, 2, 4
v_and_b32 v{t1}, 7, v{t0}
v_lshl_add_u32 v{t1}, v{t1}, 5, v{t2}
v_lshl_add_u32 v{t1}, v{t0}, 10, v{t1}
s_lshl_b32 s{sT[0]}, s{sW}, 8
s_add_u32 s{sT[0]}, s{sT[0]}, {L_WD}
v_add_u32 v{t1}, s{sT[0]}, v{t1}
v_lshlrev_b32 v{vHl}, 10, v{vN}
v_lshl_add_u32 v{vHl}, v{vG}, 4, v{vHl}
s_lshl_b32 s{sT[1]}, s{sW}, 8
s_add_u32 s{sT[1]}, s{sT[1]}, {HG_OFF}
s_mul_i32 s{sT[2]}, s{sW}, 640
s_add_u32 s{sT[2]}, s{sT[2]}, {L_FX}
v_lshlrev_b32 v{vFXw}, 6, v{vG}
v_lshl_add_u32 v{vFXw}, v{vN}, 4, v{vFXw}
v_add_u32 v{vFXw}, s{sT[2]}, v{vFXw}
v_and_b32 v{t2}, 3, v{vN}
v_lshlrev_b32 v{vFXr}, 4, v{t2}
v_lshl_add_u32 v{vFXr}, v{vG}, 6, v{vFXr}
v_lshrrev_b32 v{t0}, 2, v{vN}
v_lshl_add_u32 v{vFXr}, v{t0}, 2, v{vFXr}
v_add_u32 v{vFXr}, {L_FX}, v{vFXr}
v_mul_u32_u24 v{vSq}, 20, v{t2}
v_add_u32 v{vSq}, {L_FX + 512}, v{vSq}
v_lshlrev_b32 v{vSm}, 4, v{t2}
v_add_u32 v{vSm}, {L_FX + 576}, v{vSm}
v_lshlrev_b32 v{vCs}, 4, v{vG}
v_lshl_add_u32 v{vCs}, v{t0}, 2, v{vCs}
v_add_u32 v{vCs}, {L_CS}, v{vCs}
s_mov_b32 s{sT[4]}, 98304
v_mul_lo_u32 v{vPF}, v{vN}, s{sT[4]}
v_lshl_add_u32 v{vPF}, v{vG}, 4, v{vPF}
s_mul_i32 s{sT[4]}, s{sW}, 24576
s_lshl_b32 s{sT[5]}, s{sPHI}, 7
s_add_u32 s{sT[4]}, s{sT[4]}, s{sT[5]}
s_add_u32 s{sT[4]}, s{sT[4]}, {PF_OFF}
s_add_u32 s{sT[5]}, s{sT[4]}, 12288
""")
for i in range(16): a(f"v_mov_b32 v{HB+i}, 0x3f803f80")
a("s_waitcnt vmcnt(4)")
for mat in range(2):
    for t in range(4):
        for vv in range(2):
            a(f"ds_read_b64_tr_b16 {v(FGU+16*mat+4*t+2*vv,2)}, v{t3} offset:{16384*mat + (32*t+8*vv)*32}")
a("s_waitcnt lgkmcnt(0)")
for mat in range(2):
    for t in range(4):
        mfma(CSA+4*mat, FGU+16*mat+4*t, HB, t == 0)
a(f"""
s_lshl_b32 s{sT[0]}, s{sW}, 7
s_add_u32 s{sT[0]}, s{sT[0]}, {L_CS}
v_lshlrev_b32 v{t0}, 4, v{vG}
v_add_u32 v{t0}, s{sT[0]}, v{t0}
s_mov_b32 exec_lo, 0x00010001
s_mov_b32 exec_hi, 0x00010001
ds_write_b128 v{t0}, {v(CSA,4)}
ds_write_b128 v{t0}, {v(CSA+4,4)} offset:64
s_mov_b64 exec, -1
s_waitcnt vmcnt(0) lgkmcnt(0)
s_barrier
""")
for mt in range(8):
    if mt: a(f"v_xor_b32 v{t2}, {32*mt}, v{t1}")
    a(f"ds_read_b64_tr_b16 {v(FD+2*mt,2)}, v{t2 if mt else t1}")
for k in range(4):
    a(f"ds_read2_b32 {v(FXR+2*k,2)}, v{vCs} offset0:{32*k} offset1:{32*k+16}")
a(f"""
s_waitcnt lgkmcnt(0)
v_add_f32 v{csg}, v{FXR}, v{FXR+2}
v_add_f32 v{csu}, v{FXR+1}, v{FXR+3}
v_add_f32 v{csg}, v{csg}, v{FXR+4}
v_add_f32 v{csu}, v{csu}, v{FXR+5}
v_add_f32 v{csg}, v{csg}, v{FXR+6}
v_add_f32 v{csu}, v{csu}, v{FXR+7}
""")
stamp("FFN prepped")
a(f"s_mov_b64 exec, s[{sM4}:{sM4+1}]")
a(f"s_mov_b32 s{sCNT}, 0")
a("L_pollh:")
for t in range(4):
    a(f"buffer_load_dwordx4 {v(HB+4*t,4)}, v{vHl}, {srd(R_WS)}, s{sT[1]} offen offset:{64*t} sc1")
a("s_waitcnt vmcnt(0)")
poison_check(list(range(HB, HB + 16)), t3)
poll_tail("L_pollh", opt("hsleep", 1))
a("s_mov_b64 exec, -1")
stamp("h gathered")
for t in range(4):
    for k in range(3):
        mfma(GD+4*k, FGU+16*k+4*t if k < 2 else HB+4*t, HB+4*t, t == 0)
a(f"""
s_mov_b64 exec, s[{sM4}:{sM4+1}]
ds_write_b128 v{vFXw}, {v(GD,4)}
ds_write_b128 v{vFXw}, {v(GD+4,4)} offset:256
s_mov_b64 exec, 0x000f000f
ds_write_b128 v{vFXw}, {v(GD+8,4)} offset:512
s_mov_b64 exec, -1
s_waitcnt lgkmcnt(0)
s_barrier
""")
for k in range(4):
    a(f"ds_read_b32 v{FXR+8+k}, v{vSq} offset:{640*k}")
    a(f"ds_read_b32 v{FXR+12+k}, v{vSm} offset:{640*k}")
for k in range(4):
    a(f"ds_read_b32 v{FXR+2*k}, v{vFXr} offset:{640*k}")
    a(f"ds_read_b32 v{FXR+2*k+1}, v{vFXr} offset:{640*k+256}")
gg, uu, sq, sm = vT[13], vT[14], vT[15], vT[16]
a(f"""
s_waitcnt lgkmcnt(8)
v_add_f32 v{sm}, v{FXR+12}, v{FXR+13}
v_add_f32 v{sq}, v{FXR+8}, v{FXR+9}
v_add_f32 v{sm}, v{sm}, v{FXR+14}
v_add_f32 v{sq}, v{sq}, v{FXR+10}
v_add_f32 v{sm}, v{sm}, v{FXR+15}
v_add_f32 v{sq}, v{sq}, v{FXR+11}
v_mul_f32 v{sm}, 0x3b000000, v{sm}
v_mul_f32 v{sq}, 0x3b000000, v{sq}
v_fma_f32 v{sq}, -v{sm}, v{sm}, v{sq}
v_max_f32 v{sq}, 0, v{sq}
v_add_f32 v{sq}, 0x3727c5ac, v{sq}
v_rsq_f32 v{sq}, v{sq}
s_waitcnt lgkmcnt(0)
v_add_f32 v{gg}, v{FXR}, v{FXR+2}
v_add_f32 v{uu}, v{FXR+1}, v{FXR+3}
v_add_f32 v{gg}, v{gg}, v{FXR+4}
v_add_f32 v{uu}, v{uu}, v{FXR+5}
v_add_f32 v{gg}, v{gg}, v{FXR+6}
v_add_f32 v{uu}, v{uu}, v{FXR+7}
v_fma_f32 v{gg}, -v{sm}, v{csg}, v{gg}
v_fma_f32 v{uu}, -v{sm}, v{csu}, v{uu}
v_mul_f32 v{gg}, v{gg}, v{sq}
v_mul_f32 v{uu}, v{uu}, v{sq}
v_mul_f32 v{sm}, {f32(-math.log2(math.e))}, v{gg}
v_exp_f32 v{sm}, v{sm}
v_mul_f32 v{gg}, v{gg}, v{uu}
v_add_f32 v{sm}, 1.0, v{sm}
v_rcp_f32 v{sm}, v{sm}
v_mul_f32 v{gg}, v{gg}, v{sm}
v_mov_b32_dpp v{uu}, v{gg} row_shl:4 row_mask:0xf bank_mask:0xf
v_cvt_pk_bf16_f32 v{FXR}, v{gg}, v{uu}
v_mov_b32_dpp v{FXR+1}, v{FXR} row_shl:8 row_mask:0xf bank_mask:0xf
""")
for mt in range(8): mfma(DD+4*mt, FD+2*mt, FXR, True, k16=True)
a(f"s_mov_b64 exec, s[{sM4}:{sM4+1}]")
for p in range(4):
    for k in range(4):
        a(f"v_cvt_pk_bf16_f32 v{DP+4*p+k}, v{DD+8*p+2*k}, v{DD+8*p+2*k+1}")
    a(f"buffer_store_dwordx4 {v(DP+4*p,4)}, v{vPF}, {srd(R_WS)}, s{sT[4+(p>>1)]} offen offset:{64*(p&1)} sc1")
a("s_mov_b64 exec, -1")
stamp("FFN published")
a("s_branch L_fin")

a("L_wave45:")
PZ = vT[4]
a(f"""
s_lshl_b32 s{sT[3]}, s{sK}, 16
s_lshl_b32 s{sT[4]}, s{sCH}, 17
s_add_u32 s{sT[4]}, s{sT[4]}, s{sT[3]}
s_lshl_b32 s{sT[1]}, s{sK}, 4
v_add_u32 v{vT[11]}, s{sT[1]}, v{vFL}
""")
def dma_all(win, tag, nclr_after):
    signalled = 0
    first = (64 - AQ) if tag == "A" else 0
    torder = [((first // 16) + k) % 4 for k in range(4)]
    for idx in range(64):
        i = (first + idx) % 64
        if i % 4 == 0:
            a(f"s_add_u32 m0, s{sT[3]}, {i*1024}")
            a(f"s_add_u32 s{sT[5]}, s{sT[4]}, {i*1024}")
        tmp = vT[i & 1]
        a(f"v_xor_b32 v{tmp}, {fsw(i & 15)*16}, v{vL16}")
        if idx >= win:
            a(f"s_waitcnt vmcnt({win-1})")
            done = idx - win + 1
            if idx == win and nclr_after: lds_signal(F_CLR)
            if done >= 16 * (signalled + 1):
                lds_signal(F_TILE + 4 * torder[signalled], base=vT[11]); signalled += 1
        a(f"buffer_load_dwordx4 v{tmp}, {srd(R_CKV)}, s{sT[5]} offen offset:{(i&3)*1024} nt lds")
    lds_signal(F_GO)
    stamp("dma issued")
    while signalled < 4:
        a(f"s_waitcnt vmcnt({64 - 16*(signalled+1)})")
        lds_signal(F_TILE + 4 * torder[signalled], base=vT[11]); signalled += 1
    stamp("ckv landed")
a(f"""
s_cmp_eq_u32 s{sHGB}, 0
s_cbranch_scc1 L_w45free
s_setprio 3
s_lshl_b32 s{sT[1]}, s{sK}, 10
buffer_load_dwordx4 {v(XR,4)}, v{vL16}, {srd(R_X)}, s{sT[1]} offen
s_waitcnt vmcnt(0)
""")
ln_row()
lds_signal(F_XN)
a("s_setprio 0")
lds_wait(F_WQI, 4, sleep=2)
dma_all(DWIN_A, "A", False)
a("s_branch L_w45pf")
a("L_w45free:")
dma_all(DWIN_F, "F", False)
a("L_w45pf:")
a(f"""
v_lshrrev_b32 v{t0}, 2, v{vL}
v_mul_u32_u24 v{t0}, 2752, v{t0}
v_and_b32 v{t1}, 3, v{vL}
v_lshlrev_b32 v{t1}, 7, v{t1}
v_min_u32 v{t1}, 348, v{t1}
v_add_u32 v{t0}, v{t0}, v{t1}
s_mul_i32 s{sT[1]}, s{sY}, {16*2752}
s_mul_i32 s{sT[2]}, s{sX}, 352
s_add_u32 s{sT[1]}, s{sT[1]}, s{sT[2]}
v_min_u32 v{t1}, 21, v{vL}
v_lshlrev_b32 v{t1}, 7, v{t1}
s_mul_i32 s{sT[2]}, s{sX}, {176*1024}
s_lshl_b32 s{sT[3]}, s{sY}, 1
s_add_u32 s{sT[3]}, s{sT[3]}, s{sK}
s_mul_i32 s{sT[3]}, s{sT[3]}, {22*128}
s_add_u32 s{sT[2]}, s{sT[2]}, s{sT[3]}
""")
def ffn_pf(tag, s1, s2):
    a(f"""
    buffer_load_dword v{vDUM+1}, v{t1}, {srd(R_WD)}, s{s2} offen
    s_cmp_eq_u32 s{sW}, 5
    s_cbranch_scc1 L_w5up{tag}
    buffer_load_dword v{vDUM}, v{t0}, {srd(R_WG)}, s{s1} offen
    s_branch L_pfd{tag}
    L_w5up{tag}:
    buffer_load_dword v{vDUM}, v{t0}, {srd(R_WU)}, s{s1} offen
    L_pfd{tag}:
    """)
if PFWHEN == 0:
    lds_wait(F_RI, 2, sleep=4)
    ffn_pf("a", sT[1], sT[2])
else:
    a(f"s_mov_b32 s{sT[9]}, s{sT[1]}")
    a(f"s_mov_b32 s{sT[10]}, s{sT[2]}")
a("s_branch L_phaseC")

a("L_wave67:")
RAW = 32
a(f"s_and_b32 s{sT[0]}, s{sW}, 1")
if CODEPF:
    a(f"""
    s_getpc_b64 s[{sC2}:{sC2+1}]
    L_pcref:
    s_sub_u32 s{sC2}, s{sC2}, L_pcref-{KNAME}
    s_subb_u32 s{sC2+1}, s{sC2+1}, 0
    v_lshlrev_b32 v{t0}, 7, v{vL}
    s_lshl_b32 s{sT[2]}, s{sT[0]}, 13
    v_add_u32 v{t0}, s{sT[2]}, v{t0}
    v_add_u32 v{t1}, 16384, v{t0}
    v_min_u32 v{t0}, L_end-{KNAME}, v{t0}
    v_min_u32 v{t1}, L_end-{KNAME}, v{t1}
    """)
a(f"""
s_cmp_eq_u32 s{sHGB}, 0
s_cbranch_scc1 L_noLN
s_setprio 3
s_lshl_b32 s{sT[1]}, s{sK}, 10
buffer_load_dwordx4 {v(XR,4)}, v{vL16}, {srd(R_X)}, s{sT[1]} offen
s_waitcnt vmcnt(0)
""")
ln_row()
lds_signal(F_XN)
stamp("LN done")
a("s_branch L_w67rest")
a("L_noLN:")
if CODEPF:
    a(f"""
    global_load_dword v{vDUM}, v{t0}, s[{sC2}:{sC2+1}]
    global_load_dword v{vDUM+1}, v{t1}, s[{sC2}:{sC2+1}]
    """)
a("L_w67rest:")
def clears():
    a(f"""
    v_and_b32 v{vT[8]}, 7, v{vL}
    v_lshlrev_b32 v{vT[8]}, 4, v{vT[8]}
    v_bfe_u32 v{vT[9]}, v{vL}, 3, 1
    v_lshl_add_u32 v{vT[10]}, v{vT[9]}, 14, v{vT[8]}
    v_lshl_add_u32 v{vT[10]}, v{vG}, 17, v{vT[10]}
    s_lshl_b32 s{sT[1]}, s{sMH}, 1
    s_add_u32 s{sT[1]}, s{sT[1]}, s{sT[0]}
    s_lshl_b32 s{sT[1]}, s{sT[1]}, 15
    s_lshl_b32 s{sT[2]}, s{sH}, 2
    s_add_u32 s{sT[2]}, s{sT[2]}, s{sCQ}
    s_lshl_b32 s{sT[2]}, s{sT[2]}, 7
    s_add_u32 s{sT[1]}, s{sT[1]}, s{sT[2]}
    s_add_u32 s{sT[1]}, s{sT[1]}, {PA_OFF}
    buffer_store_dwordx4 {v(PZ,4)}, v{vT[10]}, {srd(R_WS)}, s{sT[1]} offen sc1
    """)
a(f"""
v_mov_b32 v{PZ}, -1
v_mov_b32 v{PZ+1}, -1
v_mov_b32 v{PZ+2}, -1
v_mov_b32 v{PZ+3}, -1
""")
clears()
a(f"""
s_cmp_eq_u32 s{sISR}, 0
s_cbranch_scc1 L_noclrH
s_cmp_lg_u32 s{sW}, 7
s_cbranch_scc1 L_noclrH
s_lshl_b32 s{sT[1]}, s{sRHO}, 7
s_add_u32 s{sT[1]}, s{sT[1]}, {HG_OFF}
s_mov_b64 exec, 0xff
buffer_store_dwordx4 {v(PZ,4)}, v{vL16}, {srd(R_WS)}, s{sT[1]} offen sc1
s_mov_b64 exec, -1
L_noclrH:
s_cmp_eq_u32 s{sISF}, 0
s_cbranch_scc1 L_noclrF
v_mul_u32_u24 v{vT[10]}, 12288, v{vT[9]}
v_add_u32 v{vT[10]}, v{vT[10]}, v{vT[8]}
s_mov_b32 s{sT[1]}, 98304
v_mul_lo_u32 v{vT[9]}, v{vG}, s{sT[1]}
v_add_u32 v{vT[10]}, v{vT[10]}, v{vT[9]}
s_mul_i32 s{sT[1]}, s{sT[0]}, 49152
s_lshl_b32 s{sT[2]}, s{sPHI}, 7
s_add_u32 s{sT[1]}, s{sT[1]}, s{sT[2]}
s_add_u32 s{sT[1]}, s{sT[1]}, {PF_OFF}
s_add_u32 s{sT[2]}, s{sT[1]}, 24576
buffer_store_dwordx4 {v(PZ,4)}, v{vT[10]}, {srd(R_WS)}, s{sT[1]} offen sc1
buffer_store_dwordx4 {v(PZ,4)}, v{vT[10]}, {srd(R_WS)}, s{sT[2]} offen sc1
L_noclrF:
s_waitcnt vmcnt(0)
""")
lds_signal(F_CLR)
a("s_setprio 0")
a(f"""
v_lshlrev_b32 v{vT[4]}, 13, v{vG}
v_lshl_add_u32 v{vT[4]}, v{vN}, 4, v{vT[4]}
s_lshl_b32 s{sT[1]}, s{sCQ}, 7
s_lshl_b32 s{sT[2]}, s{sT[0]}, 6
s_add_u32 s{sT[1]}, s{sT[1]}, s{sT[2]}
s_lshl_b32 s{sT[1]}, s{sT[1]}, 13
s_lshl_b32 s{sT[2]}, s{sH}, 8
s_add_u32 s{sT[1]}, s{sT[1]}, s{sT[2]}
v_lshrrev_b32 v{vT[5]}, 5, v{vL}
v_lshlrev_b32 v{vT[5]}, 10, v{vT[5]}
v_and_b32 v{vT[6]}, 31, v{vL}
v_lshl_add_u32 v{vT[5]}, v{vT[6]}, 4, v{vT[5]}
s_lshl_b32 s{sT[2]}, s{sH}, 17
s_lshl_b32 s{sT[3]}, s{sT[0]}, 16
s_add_u32 s{sT[2]}, s{sT[2]}, s{sT[3]}
s_lshl_b32 s{sT[3]}, s{sMH}, 9
s_add_u32 s{sT[2]}, s{sT[2]}, s{sT[3]}
s_waitcnt vmcnt(0)
""")
lds_wait(F_GO, 2, sleep=2)
for i in range(16):
    if i: a(f"s_add_u32 s{sT[1]}, s{sT[1]}, 32768")
    if i >= RWIN: a(f"s_waitcnt vmcnt({RWIN-1})")
    a(f"buffer_load_dwordx4 {v(RAW+4*i,4)}, v{vT[4]}, {srd(R_WUV)}, s{sT[1]} offen nt")
for i in range(32):
    if i and i % 2 == 0: a(f"s_add_u32 s{sT[2]}, s{sT[2]}, 4096")
    if i + 16 >= RWIN: a(f"s_waitcnt vmcnt({RWIN-1})")
    a(f"buffer_load_dwordx4 {v(RAW+64+4*i,4)}, v{vT[5]}, {srd(R_WO)}, s{sT[2]} offen offset:{(i&1)*2048} nt")
lds_signal(F_RI)
stamp("rest issued")
a(f"""
v_lshlrev_b32 v{t0}, 5, v{vG}
v_lshlrev_b32 v{t1}, 4, v{vN}
v_xor_b32 v{t0}, v{t0}, v{t1}
v_lshl_add_u32 v{t0}, v{vG}, 8, v{t0}
s_lshl_b32 s{sT[1]}, s{sT[0]}, 14
v_add_u32 v{t0}, s{sT[1]}, v{t0}
v_xor_b32 v{t1}, 128, v{t0}
v_lshrrev_b32 v{t2}, 5, v{vL}
v_and_b32 v{vT[4]}, 31, v{vL}
v_lshlrev_b32 v{vT[4]}, 4, v{vT[4]}
v_lshlrev_b32 v{t3}, 5, v{t2}
v_xor_b32 v{vT[4]}, v{vT[4]}, v{t3}
v_lshl_add_u32 v{vT[4]}, v{t2}, 9, v{vT[4]}
s_lshl_b32 s{sT[1]}, s{sT[0]}, 15
s_add_u32 s{sT[1]}, s{sT[1]}, {L_WO}
v_add_u32 v{vT[4]}, s{sT[1]}, v{vT[4]}
v_xor_b32 v{vT[5]}, 64, v{vT[4]}
v_xor_b32 v{vT[6]}, 128, v{vT[4]}
v_xor_b32 v{vT[7]}, 192, v{vT[4]}
""")
lds_wait(F_BD, 4, sleep=1)
for i in range(16):
    if 47 - i < RWIN: a(f"s_waitcnt vmcnt({47-i})")
    a(f"ds_write_b128 v{t1 if (i>>1)&1 else t0}, {v(RAW+4*i,4)} offset:{L_WUV + 1024*i}")
for i in range(32):
    if 31 - i < RWIN: a(f"s_waitcnt vmcnt({31-i})")
    sel = (i & 1) | (((i >> 2) & 1) << 1)
    a(f"ds_write_b128 v{vT[4+sel]}, {v(RAW+64+4*i,4)} offset:{1024*i}")
lds_signal(F_ST)
stamp("images written")

a("L_phaseC:")
FUV, FO, CB, XD, AD, AP = 32, 64, 128, 144, 160, 176
vUVa, vOa, vCLr, vCXw, vCXr, vPA = vT[4], vT[5], vT[6], vT[7], vT[8], vT[9]
a(f"""
v_bfe_u32 v{vT[12]}, v{vL}, 2, 2
v_and_b32 v{vT[13]}, 1, v{vG}
v_lshl_add_u32 v{vT[13]}, v{vT[13]}, 2, v{vT[12]}
v_lshl_add_u32 v{vT[12]}, v{vG}, 3, v{vT[12]}
v_and_b32 v{vT[14]}, 3, v{vL}
v_lshlrev_b32 v{vT[14]}, 3, v{vT[14]}
s_lshl_b32 s{sT[0]}, s{sK}, 1
v_xor_b32 v{vUVa}, s{sT[0]}, v{vT[13]}
v_lshl_add_u32 v{vUVa}, v{vUVa}, 5, v{vT[14]}
v_lshl_add_u32 v{vUVa}, v{vT[12]}, 8, v{vUVa}
s_lshl_b32 s{sT[0]}, s{sK}, 2
v_xor_b32 v{vOa}, s{sT[0]}, v{vT[13]}
v_lshl_add_u32 v{vOa}, v{vOa}, 5, v{vT[14]}
v_lshl_add_u32 v{vOa}, v{vT[12]}, 9, v{vOa}
v_add_u32 v{vOa}, {L_WO}, v{vOa}
v_and_b32 v{vT[12]}, 3, v{vN}
v_mul_u32_u24 v{vT[12]}, 272, v{vT[12]}
v_lshl_add_u32 v{vCXr}, v{vG}, 4, v{vT[12]}
v_add_u32 v{vCLr}, {L_CL}, v{vCXr}
v_add_u32 v{vCXr}, {L_CX}, v{vCXr}
v_lshl_add_u32 v{vCXw}, v{vG}, 3, v{vT[12]}
s_lshl_b32 s{sT[0]}, s{sK}, 6
s_add_u32 s{sT[0]}, s{sT[0]}, {L_CX}
v_add_u32 v{vCXw}, s{sT[0]}, v{vCXw}
v_lshlrev_b32 v{vPA}, 4, v{vG}
v_lshl_add_u32 v{vPA}, v{vN}, 17, v{vPA}
s_lshl_b32 s{sT[1]}, s{sMH}, 2
s_add_u32 s{sT[1]}, s{sT[1]}, s{sK}
s_lshl_b32 s{sT[1]}, s{sT[1]}, 14
s_lshl_b32 s{sT[2]}, s{sH}, 2
s_add_u32 s{sT[2]}, s{sT[2]}, s{sCQ}
s_lshl_b32 s{sT[2]}, s{sT[2]}, 7
s_add_u32 s{sT[1]}, s{sT[1]}, s{sT[2]}
s_add_u32 s{sT[1]}, s{sT[1]}, {PA_OFF}
""")
lds_wait(F_ST, 2, sleep=1)
for mt in range(2):
    if mt: a(f"v_xor_b32 v{vT[12]}, 32, v{vUVa}")
    for ks in range(4):
        for vv in range(2):
            a(f"ds_read_b64_tr_b16 {v(FUV+16*mt+4*ks+2*vv,2)}, v{vT[12] if mt else vUVa} offset:{L_WUV + (32*ks+4*vv)*256}")
for mt in range(4):
    if mt: a(f"v_xor_b32 v{vT[12]}, {32*mt}, v{vOa}")
    for ks in range(4):
        for vv in range(2):
            a(f"ds_read_b64_tr_b16 {v(FO+16*mt+4*ks+2*vv,2)}, v{vT[12] if mt else vOa} offset:{(32*ks+4*vv)*512}")
stamp("weights staged")
a("s_setprio 2")
def spec_cl():
    for ks in range(4): a(f"ds_read_b128 {v(CB+4*ks,4)}, v{vCLr} offset:{64*ks}")
lds_wait(F_CL, 4, spec_cl)
if PFWHEN == 1:
    a(f"""
    s_cmp_ge_u32 s{sW}, 6
    s_cbranch_scc1 L_nopf2
    """)
    ffn_pf("b", sT[9], sT[10])
    a("L_nopf2:")
for ks in range(4):
    for mt in range(2): mfma(XD+4*mt, FUV+16*mt+4*ks, CB+4*ks, ks == 0)
for k in range(4): a(f"v_cvt_pk_bf16_f32 v{XD+8+k}, v{XD+2*k}, v{XD+2*k+1}")
a(f"""
s_mov_b64 exec, s[{sM4}:{sM4+1}]
ds_write_b64 v{vCXw}, {v(XD+8,2)}
ds_write_b64 v{vCXw}, {v(XD+10,2)} offset:32
""")
lds_signal(F_CX)
def spec_cx():
    for ks in range(4): a(f"ds_read_b128 {v(CB+4*ks,4)}, v{vCXr} offset:{64*ks}")
lds_wait(F_CX, 4, spec_cx)
for p in range(2):
    for ks in range(4):
        for k in range(2):
            mt = 2 * p + k
            mfma(AD+4*mt, FO+16*mt+4*ks, CB+4*ks, ks == 0)
a(f"s_mov_b64 exec, s[{sM4}:{sM4+1}]")
for p in range(2):
    for k in range(4): a(f"v_cvt_pk_bf16_f32 v{AP+4*p+k}, v{AD+8*p+2*k}, v{AD+8*p+2*k+1}")
    a(f"buffer_store_dwordx4 {v(AP+4*p,4)}, v{vPA}, {srd(R_WS)}, s{sT[1]} offen offset:{64*p} sc1")
a("s_mov_b64 exec, -1")
stamp("attn partial published")
a("s_waitcnt vmcnt(0)")

a("L_fin:")
if PROF:
    stamp("end")
    a(f"""
    s_lshl_b32 s{sT[0]}, s2, 3
    s_add_u32 s{sT[0]}, s{sT[0]}, s{sW}
    s_lshl_b32 s{sT[0]}, s{sT[0]}, 8
    s_add_u32 s{sT[0]}, s{sT[0]}, {TS_OFF}
    v_lshlrev_b32 v{t0}, 2, v{vL}
    buffer_store_dword v{vTSA}, v{t0}, {srd(R_WS)}, s{sT[0]} offen
    """)
a("L_end:")

hdr = open("sequential_preLN__compressed_kv_cla__swiglu_ffn__decode.s.ref").read().split("; @launch")[0]
open(OUT, "w").write(wrap_single(a.text(), 256, 512, LDS_BYTES, vgpr=256, header=hdr))
print("instructions:", a.ninstr, file=sys.stderr)
```

```python
import sys, math, struct
from asmgen import *

def opt(name, default):
    for x in sys.argv[1:]:
        if x.startswith("--" + name + "="):
            return int(x.split("=")[1])
    return default
PROF = "--prof" in sys.argv
DBGT = "--dbgtime" in sys.argv
OUT = [a for a in sys.argv[1:] if not a.startswith("--")]
OUT = OUT[0] if OUT else "sequential_preLN__compressed_kv_cla__swiglu_ffn__decode.s"
POLL_MAX = 1 << 15
LSPIN_MAX = 1 << 20
DWIN_A = opt("dwina", 14)
DWIN_F = opt("dwinf", 20)
RWIN = opt("rwin", 12)
UKPF = opt("ukpf", 1)
CODEPF = opt("codepf", 1)
QSLEEP = opt("qsleep", 4)
OACK = opt("oack", 1)
AQ = opt("aq", 16)
PFWHEN = opt("pfwhen", 1)
MLSLEEP = opt("mlsleep", 2)
FFNDLY = opt("ffndly", 24)

EPOCH_OFF = 0x0
QA_OFF = 0x10000
HG_OFF = 0x58000
PA_OFF = 0x80000
PF_OFF = 0x100000
O_OFF = 0x200000
ML_OFF = 0x600000
TS_OFF = 0x1000000
WS_USED = 0x1100000

L_QS = 131072
L_XN = 147456
L_Q16 = 151616
L_MX = 152640
L_PX = 153152
L_CL = 157248
L_CX = 159488
L_RED = 160576
L_CS = 162624
L_FL = 163136
LDS_BYTES = 163840
L_WUV, L_WO = 0, 32768
L_G, L_U, L_WD = 98304, 114688, L_QS
L_FX = L_PX
(F_XN, F_CLR, F_QP, F_Q16, F_QS, F_P, F_GO, F_WQI) = [4 * i for i in range(8)]
F_TILE = 32
(F_RI, F_BD, F_ST, F_CL, F_CX) = [64 + 4 * i for i in range(5)]

sW, sX, sY, sH, sYP, sCQ, sMH, sHGB, sCH, sEP = 3, 4, 5, 6, 7, 8, 9, 10, 11, 12
sT = list(range(13, 24))
sO, sHA, sJQ, sPHI, sRHO, sISF, sISR, sCNT = 24, 25, 26, 27, 28, 29, 30, 31
R_X, R_CKV, R_WQ, R_WUK, R_WUV, R_WO, R_WG, R_WU, R_WD, R_OUT, R_WS, R_PF = [32 + 4 * i for i in range(12)]
sSELLO, sSELHI = 80, 81
sM8 = 82
sM4 = 84
sACC = 86
sC2 = 88
sTS = 90
sK = 92
def srd(r): return f"s[{r}:{r+3}]"
def f32(x): return "0x%08x" % struct.unpack("<I", struct.pack("<f", x))[0]

vL, vN, vG, vL16, vFL, vONE, vTSA = 1, 2, 3, 4, 5, 6, 7
vT = list(range(8, 32))
t0, t1, t2, t3 = vT[0], vT[1], vT[2], vT[3]
vSP = vT[23]
vDUM = vT[21]
def v(i, n=1): return f"v{i}" if n == 1 else f"v[{i}:{i+n-1}]"
def fsw(row): return 2 * ((row & 7) ^ (4 * (row >> 3))) + (row >> 3)

a = Asm()
stamps = {}
def stamp(name):
    if not PROF: return
    if name not in stamps:
        stamps[name] = len(stamps)
    i = stamps[name]
    a(f"""
    s_memrealtime s[{sTS}:{sTS+1}]
    s_waitcnt lgkmcnt(0)
    v_writelane_b32 v{vTSA}, s{sTS}, {i}
    """)
def cstamp(name):
    if not PROF: return
    name = "#" + name
    if name not in stamps:
        stamps[name] = len(stamps)
    a(f"s_add_u32 s{sTS}, s{sCNT}, 1")
    a(f"v_writelane_b32 v{vTSA}, s{sTS}, {stamps[name]}")
def poll_tail(name, sleep=0):
    done = a.newlabel("Lpd")
    a(f"""
    s_cmp_eq_u64 vcc, 0
    s_cbranch_scc1 {done}
    """)
    if sleep: a(f"s_sleep {sleep}")
    a(f"""
    s_add_u32 s{sCNT}, s{sCNT}, 1
    s_cmp_lt_u32 s{sCNT}, {POLL_MAX}
    s_cbranch_scc1 {name}
    """)
    a.label(done)
def poison_check(regs, tmp):
    regs = list(regs); n = len(regs)
    a(f"v_max3_u32 v{tmp}, v{regs[0]}, v{regs[1]}, v{regs[2]}")
    i = 3
    while i + 1 < n:
        a(f"v_max3_u32 v{tmp}, v{tmp}, v{regs[i]}, v{regs[i+1]}"); i += 2
    if i < n: a(f"v_max_u32 v{tmp}, v{tmp}, v{regs[i]}")
    a(f"v_cmp_eq_u32 vcc, -1, v{tmp}")
def lds_signal(off, base=None):
    a(f"""
    s_mov_b64 exec, 1
    ds_add_u32 v{vFL if base is None else base}, v{vONE} offset:{off}
    s_mov_b64 exec, -1
    """)
def lds_wait(off, target, spec=None, sleep=0, base=None):
    lp, dn = a.newlabel("Lw"), a.newlabel("Lwd")
    a(f"s_mov_b32 s{sCNT}, 0")
    a.label(lp)
    a(f"ds_read_b32 v{vSP}, v{vFL if base is None else base} offset:{off}")
    if spec: spec()
    a(f"""
    s_waitcnt lgkmcnt(0)
    v_readfirstlane_b32 s{sACC}, v{vSP}
    s_cmp_ge_u32 s{sACC}, {target}
    s_cbranch_scc1 {dn}
    """)
    if sleep: a(f"s_sleep {sleep}")
    a(f"""
    s_add_u32 s{sCNT}, s{sCNT}, 1
    s_cmp_lt_u32 s{sCNT}, {LSPIN_MAX}
    s_cbranch_scc1 {lp}
    """)
    a.label(dn)
def rne_bf16(dst, src):
    a(f"v_cvt_pk_bf16_f32 v{dst}, v{src}, v{src}")
    a(f"v_and_b32 v{dst}, 0xffff0000, v{dst}")
def mfma(d, A, B, first, k16=False):
    n = 2 if k16 else 4
    op = "v_mfma_f32_16x16x16_bf16" if k16 else "v_mfma_f32_16x16x32_bf16"
    a(f"{op} {v(d,4)}, {v(A,n)}, {v(B,n)}, {'0' if first else v(d,4)}")

XR, XF = 32, 40
def ln_row():
    def wave_sum(x):
        for ctl in ["row_shr:1", "row_shr:2", "row_shr:4", "row_shr:8"]:
            a(f"v_add_f32_dpp v{x}, v{x}, v{x} {ctl} row_mask:0xf bank_mask:0xf bound_ctrl:0")
        a(f"v_add_f32_dpp v{x}, v{x}, v{x} row_bcast:15 row_mask:0xa bank_mask:0xf")
        a(f"v_add_f32_dpp v{x}, v{x}, v{x} row_bcast:31 row_mask:0xc bank_mask:0xf")
    xr, xf = XR, XF
    for i in range(4):
        a(f"v_lshlrev_b32 v{xf+2*i}, 16, v{xr+i}")
        a(f"v_and_b32 v{xf+2*i+1}, 0xffff0000, v{xr+i}")
    a(f"v_add_f32 v{xf+12}, v{xf}, v{xf+1}")
    for i in range(2, 8): a(f"v_add_f32 v{xf+12}, v{xf+12}, v{xf+i}")
    wave_sum(xf + 12)
    a(f"v_mov_b32 v{xf+15}, 0x3b000000")
    a(f"v_readlane_b32 s{sT[6]}, v{xf+12}, 63")
    a(f"v_mul_f32 v{xf+13}, s{sT[6]}, v{xf+15}")
    for i in range(8):
        a(f"v_sub_f32 v{xf+14}, v{xf+i}, v{xf+13}")
        if i == 0: a(f"v_mul_f32 v{xf+12}, v{xf+14}, v{xf+14}")
        else: a(f"v_fmac_f32 v{xf+12}, v{xf+14}, v{xf+14}")
    rne_bf16(xf + 13, xf + 13)
    wave_sum(xf + 12)
    for i in range(8): a(f"v_sub_f32 v{xf+i}, v{xf+i}, v{xf+13}")
    a(f"v_readlane_b32 s{sT[6]}, v{xf+12}, 63")
    for i in range(4): a(f"v_cvt_pk_bf16_f32 v{xf+8+i}, v{xf+2*i}, v{xf+2*i+1}")
    a(f"v_mul_f32 v{xf+12}, s{sT[6]}, v{xf+15}")
    rne_bf16(xf + 12, xf + 12)
    a(f"v_add_f32 v{xf+12}, 0x3727c5ac, v{xf+12}")
    rne_bf16(xf + 12, xf + 12)
    a(f"v_sqrt_f32 v{xf+12}, v{xf+12}")
    for i in range(4):
        a(f"v_lshlrev_b32 v{xf+2*i}, 16, v{xf+8+i}")
        a(f"v_and_b32 v{xf+2*i+1}, 0xffff0000, v{xf+8+i}")
    rne_bf16(xf + 12, xf + 12)
    a(f"v_rcp_f32 v{xf+12}, v{xf+12}")
    a(f"s_mul_i32 s{sT[6]}, s{sK}, 1040")
    a(f"s_add_u32 s{sT[6]}, s{sT[6]}, {L_XN}")
    a(f"v_add_u32 v{xf+15}, s{sT[6]}, v{vL16}")
    for i in range(8): a(f"v_mul_f32 v{xf+i}, v{xf+i}, v{xf+12}")
    for i in range(4): a(f"v_cvt_pk_bf16_f32 v{xf+8+i}, v{xf+2*i}, v{xf+2*i+1}")
    a(f"ds_write_b128 v{xf+15}, {v(xf+8,4)}")

a(f"""
s_cmp_ge_u32 s2, 256
s_cbranch_scc1 L_end
{"s_memrealtime s[94:95]" if DBGT else ""}
{"s_memtime s[96:97]" if DBGT else ""}
{"s_load_dwordx2 s[98:99], s[0:1], 88" if DBGT else ""}
s_load_dwordx2 s[{R_WQ}:{R_WQ+1}], s[0:1], 16
s_load_dwordx2 s[{R_CKV}:{R_CKV+1}], s[0:1], 8
s_load_dwordx2 s[{R_X}:{R_X+1}], s[0:1], 0
s_load_dwordx2 s[{R_WS}:{R_WS+1}], s[0:1], 96
s_load_dwordx2 s[{R_WUK}:{R_WUK+1}], s[0:1], 24
s_load_dwordx2 s[{R_WUV}:{R_WUV+1}], s[0:1], 32
s_load_dwordx2 s[{R_WO}:{R_WO+1}], s[0:1], 40
s_load_dwordx2 s[{R_WG}:{R_WG+1}], s[0:1], 56
s_load_dwordx2 s[{R_WU}:{R_WU+1}], s[0:1], 64
s_load_dwordx2 s[{R_WD}:{R_WD+1}], s[0:1], 72
s_load_dwordx2 s[{R_OUT}:{R_OUT+1}], s[0:1], 80
v_lshrrev_b32 v{t0}, 6, v0
v_and_b32 v{vL}, 63, v0
v_and_b32 v{vN}, 15, v0
v_readfirstlane_b32 s{sW}, v{t0}
v_bfe_u32 v{vG}, v0, 4, 2
v_lshlrev_b32 v{t0}, 2, v{vL}
v_add_u32 v{t0}, {L_FL}, v{t0}
v_mov_b32 v{t3}, 0
ds_write_b32 v{t0}, v{t3}
v_lshlrev_b32 v{t0}, 3, v{vN}
v_add_u32 v{t0}, {L_MX}, v{t0}
v_mov_b32 v{t2}, 0xff800000
ds_write2_b32 v{t0}, v{t2}, v{t3} offset0:0 offset1:1
v_mov_b32 v{vFL}, {L_FL}
v_mov_b32 v{vONE}, 1
v_lshlrev_b32 v{vL16}, 4, v{vL}
""")
if PROF: a(f"v_mov_b32 v{vTSA}, 0")
for r, nb in [(R_WQ, 4 << 20), (R_CKV, 16 << 20), (R_X, 4096), (R_WS, WS_USED), (R_WUK, 4 << 20), (R_WUV, 4 << 20), (R_WO, 4 << 20),
              (R_WG, 512 * 1376 * 2), (R_WU, 512 * 1376 * 2), (R_WD, 512 * 1376 * 2), (R_OUT, 4096), (R_PF, 86 * 128)]:
    a(f"s_mov_b32 s{r+2}, {nb}")
    a(f"s_mov_b32 s{r+3}, 0x20000")
a(f"""
s_and_b32 s{sX}, s2, 7
s_lshr_b32 s{sY}, s2, 3
s_lshr_b32 s{sYP}, s2, 4
s_and_b32 s{sT[0]}, s{sY}, 1
s_xor_b32 s{sHGB}, s{sT[0]}, 1
s_lshl_b32 s{sH}, s{sT[0]}, 4
s_lshl_b32 s{sT[1]}, s{sX}, 1
s_add_u32 s{sH}, s{sH}, s{sT[1]}
s_and_b32 s{sT[1]}, s{sYP}, 1
s_add_u32 s{sH}, s{sH}, s{sT[1]}
s_bfe_u32 s{sCQ}, s{sY}, 0x20002
s_lshr_b32 s{sMH}, s{sY}, 4
s_lshl_b32 s{sCH}, s{sX}, 4
s_add_u32 s{sCH}, s{sCH}, s{sYP}
s_and_b32 s{sHA}, s{sYP}, 3
s_lshl_b32 s{sT[1]}, s{sX}, 2
s_add_u32 s{sHA}, s{sHA}, s{sT[1]}
s_lshr_b32 s{sJQ}, s{sYP}, 2
s_mov_b32 s{sSELLO}, 0x05040100
s_mov_b32 s{sSELHI}, 0x07060302
s_mov_b32 s{sM4}, 0x000f000f
s_mov_b32 s{sM4+1}, 0x000f000f
s_mov_b32 s{sM8}, 0x00ff00ff
s_mov_b32 s{sM8+1}, 0x00ff00ff
s_mul_i32 s{sPHI}, s{sX}, 11
s_add_u32 s{sPHI}, s{sPHI}, s{sYP}
s_cmp_lt_u32 s{sYP}, 11
s_cselect_b32 s{sISF}, s{sT[0]}, 0
s_cmp_lt_u32 s{sPHI}, 86
s_cselect_b32 s{sISF}, s{sISF}, 0
s_cmp_ge_u32 s{sYP}, 12
s_cselect_b32 s{sISR}, s{sHGB}, 0
s_sub_u32 s{sRHO}, s{sYP}, 12
s_lshl_b32 s{sRHO}, s{sRHO}, 3
s_add_u32 s{sRHO}, s{sRHO}, s{sX}
s_and_b32 s{sK}, s{sW}, 3
s_waitcnt lgkmcnt(0)
""")
stamp("start")
a(f"""
s_load_dword s{sEP}, s[{R_WS}:{R_WS+1}], {EPOCH_OFF}
s_barrier
s_cmp_ge_u32 s{sW}, 6
s_cbranch_scc1 L_wave67
s_cmp_ge_u32 s{sW}, 4
s_cbranch_scc1 L_wave45
s_setprio 2
s_cmp_eq_u32 s{sHGB}, 0
s_cbranch_scc1 L_freeC
""")

WQ, FR, AC, BX, UK = 32, 160, 192, 224, 32
vWQ, vUK = vT[4], vT[5]
a(f"""
v_lshlrev_b32 v{vWQ}, 16, v{vG}
v_lshl_add_u32 v{vWQ}, v{vN}, 4, v{vWQ}
s_lshl_b32 s{sT[0]}, s{sW}, 20
s_lshl_b32 s{sT[1]}, s{sHA}, 8
s_add_u32 s{sT[0]}, s{sT[0]}, s{sT[1]}
""")
def wq_kstep(u):
    a(f"""
    s_add_u32 s{sT[2]}, s{sJQ}, {u}
    s_and_b32 s{sT[2]}, s{sT[2]}, 3
    s_lshl_b32 s{sT[2]}, s{sT[2]}, 18
    s_add_u32 s{sT[3]}, s{sT[2]}, s{sT[0]}
    """)
    for e in range(8):
        if e: a(f"s_add_u32 s{sT[3]}, s{sT[3]}, 8192")
        a(f"buffer_load_dwordx4 {v(WQ+4*(8*u+e),4)}, v{vWQ}, {srd(R_WQ)}, s{sT[3]} offen nt")
def q_kstep(u):
    for jj in range(8):
        for p in range(4):
            sel = sSELHI if (jj & 1) else sSELLO
            a(f"v_perm_b32 v{FR+4*jj+p}, v{WQ+4*(8*u+2*p+1)+(jj>>1)}, v{WQ+4*(8*u+2*p)+(jj>>1)}, s{sel}")
        if jj >= 1: mfma(AC+4*(jj-1), FR+4*(jj-1), BX+4*u, u == 0)
    mfma(AC+28, FR+28, BX+4*u, u == 0)
wq_kstep(0)
vQPw, vQPr, vQ16w, vQ16r, vQAp = vT[6], vT[7], vT[8], vT[9], vT[10]
a(f"""
s_lshl_b32 s{sT[4]}, s{sW}, 5
s_lshl_b32 s{sT[5]}, s{sJQ}, 7
s_add_u32 s{sT[4]}, s{sT[4]}, s{sT[5]}
s_lshl_b32 s{sT[4]}, s{sT[4]}, 13
s_add_u32 s{sT[4]}, s{sT[4]}, s{sT[1]}
s_add_u32 s{sT[5]}, s{sT[4]}, {16*8192}
v_lshlrev_b32 v{vUK}, 13, v{vN}
v_lshl_add_u32 v{vUK}, v{vG}, 4, v{vUK}
v_and_b32 v{t1}, 3, v{vN}
v_mul_u32_u24 v{t0}, 1040, v{t1}
v_lshl_add_u32 v{t0}, v{vG}, 4, v{t0}
s_lshl_b32 s{sT[6]}, s{sW}, 8
s_add_u32 s{sT[6]}, s{sT[6]}, {L_XN}
v_add_u32 v{t0}, s{sT[6]}, v{t0}
s_lshl_b32 s{sT[6]}, s{sW}, 11
s_add_u32 s{sT[6]}, s{sT[6]}, {L_QS}
v_lshlrev_b32 v{vQPw}, 6, v{vG}
v_lshl_add_u32 v{vQ16r}, v{t1}, 4, v{vQPw}
v_add_u32 v{vQPw}, s{sT[6]}, v{vQ16r}
v_add_u32 v{vQ16r}, {L_Q16}, v{vQ16r}
s_lshl_b32 s{sT[6]}, s{sW}, 9
s_add_u32 s{sT[6]}, s{sT[6]}, {L_QS}
v_lshlrev_b32 v{vQPr}, 2, v{vL}
v_add_u32 v{vQPr}, s{sT[6]}, v{vQPr}
v_lshlrev_b32 v{vQ16w}, 6, v{t1}
v_and_b32 v{t2}, 12, v{vL}
v_lshl_add_u32 v{vQ16w}, v{t2}, 2, v{vQ16w}
v_lshl_add_u32 v{vQ16w}, v{vG}, 8, v{vQ16w}
s_lshl_b32 s{sT[6]}, s{sW}, 2
s_add_u32 s{sT[6]}, s{sT[6]}, {L_Q16}
v_add_u32 v{vQ16w}, s{sT[6]}, v{vQ16w}
v_lshlrev_b32 v{vQAp}, 16, v{t1}
v_lshl_add_u32 v{vQAp}, v{vG}, 4, v{vQAp}
v_bfe_u32 v{t2}, v{vN}, 2, 1
v_lshl_add_u32 v{vQAp}, v{t2}, 6, v{vQAp}
v_cmp_eq_u32 s[{sC2}:{sC2+1}], 1, v{t2}
s_lshl_b32 s{sT[6]}, s{sHA}, 11
s_lshl_b32 s{sT[7]}, s{sJQ}, 9
s_add_u32 s{sT[6]}, s{sT[6]}, s{sT[7]}
s_lshl_b32 s{sT[7]}, s{sW}, 7
s_add_u32 s{sT[6]}, s{sT[6]}, s{sT[7]}
s_add_u32 s{sT[6]}, s{sT[6]}, {QA_OFF}
s_mov_b32 s{sT[7]}, {f32(math.log2(math.e) / math.sqrt(128.0))}
""")
for u in range(4):
    a(f"""
    s_add_u32 s{sT[2]}, s{sJQ}, {u}
    s_and_b32 s{sT[2]}, s{sT[2]}, 3
    s_lshl_b32 s{sT[2]}, s{sT[2]}, 6
    v_add_u32 v{vT[11+u]}, s{sT[2]}, v{t0}
    """)
wq_kstep(1)
wq_kstep(2)
def spec_xn():
    for u in range(4):
        a(f"ds_read_b128 {v(BX+4*u,4)}, v{vT[11+u]}")
wq_kstep(3)
stamp("wq issued")
lds_wait(F_XN, 4, spec_xn)
a(f"s_add_u32 s{sEP}, s{sEP}, 1")
a("s_waitcnt vmcnt(24)")
q_kstep(0)
for mt in range(2):
    for t in range(4):
        a(f"buffer_load_dwordx4 {v(UK+16*mt+4*t,4)}, v{vUK}, {srd(R_WUK)}, s{sT[4+mt]} offen offset:{64*t} nt")
lds_signal(F_WQI)
for u in range(1, 4):
    a(f"s_waitcnt vmcnt({(3-u)*8 + 8})")
    q_kstep(u)
stamp("q partial")
a(f"s_mov_b64 exec, s[{sM4}:{sM4+1}]")
for jj in range(8):
    a(f"ds_write_b128 v{vQPw}, {v(AC+4*jj,4)} offset:{256*jj}")
lds_signal(F_QP)
def spec_qp():
    for k in range(4):
        a(f"ds_read2st64_b32 {v(FR+2*k,2)}, v{vQPr} offset0:{8*k} offset1:{8*k+1}")
lds_wait(F_QP, 4, spec_qp)
stamp("qp done")
a(f"""
v_add_f32 v{FR}, v{FR}, v{FR+2}
v_add_f32 v{FR+1}, v{FR+1}, v{FR+3}
v_add_f32 v{FR+4}, v{FR+4}, v{FR+6}
v_add_f32 v{FR+5}, v{FR+5}, v{FR+7}
v_add_f32 v{FR}, v{FR}, v{FR+4}
v_add_f32 v{FR+1}, v{FR+1}, v{FR+5}
v_cvt_pk_bf16_f32 v{FR}, v{FR}, v{FR+1}
ds_write_b32 v{vQ16w}, v{FR}
""")
lds_signal(F_Q16)
a(f"v_mov_b32 v{AC+9}, s{sEP}")
a(f"v_mov_b32 v{AC+11}, s{sEP}")
def spec_q16():
    a(f"ds_read_b32 v{t3}, v{vFL} offset:{F_CLR}")
    for t in range(4):
        a(f"ds_read_b128 {v(FR+8+4*t,4)}, v{vQ16r} offset:{256*t}")
lds_wait(F_Q16, 4, spec_q16)
stamp("q16 done")
a("s_waitcnt vmcnt(0)")
stamp("uk landed")
for t in range(4):
    for mt in range(2):
        mfma(AC+4*mt, UK+16*mt+4*t, FR+8+4*t, t == 0)
a(f"""
v_readfirstlane_b32 s{sACC}, v{t3}
s_cmp_ge_u32 s{sACC}, 2
s_cbranch_scc1 L_clrok
""")
lds_wait(F_CLR, 2)
a("L_clrok:")
for r in range(4):
    a(f"v_cndmask_b32 v{AC+r}, v{AC+r}, v{AC+4+r}, s[{sC2}:{sC2+1}]")
for r in range(4):
    a(f"v_mul_f32 v{AC+r}, s{sT[7]}, v{AC+r}")
a(f"""
v_cvt_pk_bf16_f32 v{AC+8}, v{AC}, v{AC+1}
v_cvt_pk_bf16_f32 v{AC+10}, v{AC+2}, v{AC+3}
s_mov_b64 exec, s[{sM8}:{sM8+1}]
buffer_store_dwordx4 {v(AC+8,4)}, v{vQAp}, {srd(R_WS)}, s{sT[6]} offen sc1
s_mov_b64 exec, -1
""")
stamp("q_abs published")
a("s_branch L_phaseB")

a("L_freeC:")
if UKPF:
    a(f"""
    v_lshrrev_b32 v{t0}, 1, v{vL}
    v_lshlrev_b32 v{t0}, 13, v{t0}
    v_and_b32 v{t1}, 1, v{vL}
    v_lshl_add_u32 v{t0}, v{t1}, 7, v{t0}
    s_lshl_b32 s{sT[4]}, s{sW}, 5
    s_lshl_b32 s{sT[5]}, s{sJQ}, 7
    s_add_u32 s{sT[4]}, s{sT[4]}, s{sT[5]}
    s_lshl_b32 s{sT[4]}, s{sT[4]}, 13
    s_lshl_b32 s{sT[1]}, s{sHA}, 8
    s_add_u32 s{sT[4]}, s{sT[4]}, s{sT[1]}
    buffer_load_dword v{vDUM}, v{t0}, {srd(R_WUK)}, s{sT[4]} offen nt
    """)
lds_wait(F_CLR, 2, sleep=4)
a(f"s_add_u32 s{sEP}, s{sEP}, 1")

a("L_phaseB:")
GQ, QF, SA0, SA1, SD, vM = 64, 32, 96, 160, 224, 232
vX0 = vT[4]
vQa, vQb, vQw, vEP, vTF, vPV, vO = vT[8], vT[9], vT[10], vT[11], vT[12], vT[13], vT[14]
vSA = vT[15]
a(f"""
v_lshlrev_b32 v{vQa}, 4, v0
v_add_u32 v{vQb}, 16384, v{vQa}
s_lshr_b32 s{sT[6]}, s{sCH}, 5
s_lshl_b32 s{sT[6]}, s{sT[6]}, 1
s_add_u32 s{sT[6]}, s{sT[6]}, s{sHGB}
s_lshl_b32 s{sT[6]}, s{sT[6]}, 15
s_add_u32 s{sT[6]}, s{sT[6]}, {QA_OFF}
s_add_u32 s{sT[7]}, s{sT[6]}, 4096
s_add_u32 s{sT[8]}, s{sT[6]}, 8192
s_add_u32 s{sT[9]}, s{sT[6]}, 12288
""")
def qa_loads():
    for i in range(8):
        a(f"buffer_load_dwordx4 {v(GQ+4*i,4)}, v{vQb if i >= 4 else vQa}, {srd(R_WS)}, s{sT[6+(i&3)]} offen sc1")
a(f"""
v_and_b32 v{vQw}, 127, v0
v_lshlrev_b32 v{vQw}, 3, v{vQw}
s_lshr_b32 s{sT[10]}, s{sW}, 1
s_lshl_b32 s{sT[5]}, s{sT[10]}, 5
v_xor_b32 v{vQw}, s{sT[5]}, v{vQw}
s_lshl_b32 s{sT[10]}, s{sT[10]}, 10
s_add_u32 s{sT[10]}, s{sT[10]}, {L_QS}
v_add_u32 v{vQw}, s{sT[10]}, v{vQw}
v_mov_b32 v{vEP}, s{sEP}
v_lshrrev_b32 v{t0}, 3, v{vN}
v_lshlrev_b32 v{t1}, 2, v{t0}
v_and_b32 v{t2}, 7, v{vN}
v_xor_b32 v{t2}, v{t2}, v{t1}
v_lshl_add_u32 v{t2}, v{t2}, 1, v{t0}
v_xor_b32 v{t2}, v{t2}, v{vG}
v_lshlrev_b32 v{t2}, 4, v{t2}
v_lshl_add_u32 v{t2}, v{vN}, 10, v{t2}
s_lshl_b32 s{sT[0]}, s{sW}, 15
v_add_u32 v{vSA}, s{sT[0]}, v{t2}
v_add_u32 v{vX0}, {L_QS}, v{t2}
""")
for tt in range(1, 4):
    a(f"v_xor_b32 v{vSA+tt}, {64*tt}, v{vSA}")
    a(f"v_xor_b32 v{vX0+tt}, {64*tt}, v{vX0}")
a(f"""
s_lshl_b32 s{sT[1]}, s{sW}, 3
v_add_u32 v{vTF}, s{sT[1]}, v{vFL}
v_bfe_u32 v{t0}, v{vL}, 2, 4
v_lshrrev_b32 v{t1}, 3, v{t0}
v_lshlrev_b32 v{t2}, 2, v{t1}
v_and_b32 v{t3}, 7, v{t0}
v_xor_b32 v{t3}, v{t3}, v{t2}
v_lshl_add_u32 v{t3}, v{t3}, 1, v{t1}
v_bfe_u32 v{t1}, v{vL}, 1, 1
v_xor_b32 v{t3}, v{t3}, v{t1}
v_lshlrev_b32 v{t3}, 4, v{t3}
v_and_b32 v{t1}, 1, v{vL}
v_lshl_add_u32 v{t3}, v{t1}, 3, v{t3}
v_lshl_add_u32 v{t3}, v{t0}, 10, v{t3}
s_lshl_b32 s{sT[0]}, s{sW}, 8
v_add_u32 v{vPV}, s{sT[0]}, v{t3}
v_and_b32 v{t0}, 1, v{vG}
v_lshlrev_b32 v{t0}, 5, v{t0}
v_lshrrev_b32 v{t1}, 1, v{vG}
v_lshl_add_u32 v{t0}, v{t1}, 4, v{t0}
v_and_b32 v{t1}, 7, v{vN}
v_lshl_add_u32 v{vO}, v{t1}, 17, v{t0}
v_lshrrev_b32 v{t1}, 3, v{vN}
v_lshl_add_u32 v{vO}, v{t1}, 6, v{vO}
s_lshl_b32 s{sO}, s{sHGB}, 21
s_lshl_b32 s{sT[4]}, s{sCH}, 8
s_add_u32 s{sO}, s{sO}, s{sT[4]}
s_lshl_b32 s{sT[4]}, s{sW}, 15
s_add_u32 s{sO}, s{sO}, s{sT[4]}
s_add_u32 s{sO}, s{sO}, {O_OFF}
s_add_u32 s{sT[3]}, s{sO}, {8 << 17}
""")
PAD = list(range(240, 256))
for mt in range(8):
    a(f"v_xor_b32 v{PAD[mt]}, {32*mt}, v{vPV}")
    a(f"v_add_u32 v{PAD[8+mt]}, 0x10000, v{PAD[mt]}")
a("s_waitcnt vmcnt(0)")
a(f"""
s_cmp_eq_u32 s{sHGB}, 0
s_cbranch_scc1 L_noq0
""")
qa_loads()
a("L_noq0:")
lds_wait(F_TILE, 1, base=vTF, sleep=1)
for t in range(16):
    a(f"ds_read_b128 {v(SA0+4*t,4)}, v{vSA+(t&3)} offset:{(t>>2)*256}")
lds_wait(F_TILE + 4, 1, base=vTF, sleep=1)
for t in range(16):
    a(f"ds_read_b128 {v(SA1+4*t,4)}, v{vSA+(t&3)} offset:{16384+(t>>2)*256}")
stamp("tiles read")
a(f"""
s_cmp_eq_u32 s{sHGB}, 1
s_cbranch_scc1 L_qgo
""")
lds_wait(F_GO, 2, sleep=1)
a("L_qgo:")
a(f"""
s_mov_b32 s{sCNT}, 0
s_cmp_eq_u32 s{sHGB}, 1
s_cbranch_scc1 L_pollq_chk
""")
a("L_pollq:")
qa_loads()
a("L_pollq_chk:")
for i in range(8):
    a(f"s_waitcnt vmcnt({7-i})")
    if i == 0: a(f"v_xor_b32 v{t2}, v{GQ+1}, v{vEP}")
    else: a(f"v_bitop3_b32 v{t2}, v{t2}, v{GQ+4*i+1}, v{vEP} bitop3:0xf6")
    a(f"v_bitop3_b32 v{t2}, v{t2}, v{GQ+4*i+3}, v{vEP} bitop3:0xf6")
a(f"v_cmp_ne_u32 vcc, 0, v{t2}")
poll_tail("L_pollq", QSLEEP)
cstamp("qa retries")
stamp("q_abs gathered")
for i in range(8):
    if i: a(f"v_xor_b32 v{t2}, {(fsw(2*i) << 4) | (i << 11)}, v{vQw}")
    a(f"ds_write2_b32 v{t2 if i else vQw}, v{GQ+4*i}, v{GQ+4*i+2} offset0:0 offset1:1")
lds_signal(F_QS)
a(f"""
v_lshlrev_b32 v{t0}, 3, v{vN}
v_add_u32 v{t0}, {L_MX}, v{t0}
s_lshl_b32 s{sT[0]}, s{sW}, 10
s_add_u32 s{sT[0]}, s{sT[0]}, {L_PX}
v_add_u32 v{t2}, s{sT[0]}, v{vL16}
v_add_u32 v{t3}, {L_PX}, v{vL16}
""")
def spec_qf():
    for t in range(4):
        a(f"ds_read_b128 {v(QF+4*t,4)}, v{vX0+(t&3)} offset:{(t>>2)*256}")
lds_wait(F_QS, 4, spec_qf)
for t in range(4, 16):
    a(f"ds_read_b128 {v(QF+4*t,4)}, v{vX0+(t&3)} offset:{(t>>2)*256}")
for t in range(16):
    if t >= 4: a(f"s_waitcnt lgkmcnt({15-t})")
    mfma(SD, SA0+4*t, QF+4*t, t == 0)
    mfma(SD+4, SA1+4*t, QF+4*t, t == 0)
a(f"""
v_max3_f32 v{t1}, v{SD}, v{SD+1}, v{SD+2}
v_max_f32 v{t1}, v{t1}, v{SD+3}
v_max3_f32 v{t1}, v{t1}, v{SD+4}, v{SD+5}
v_max3_f32 v{t1}, v{t1}, v{SD+6}, v{SD+7}
ds_max_f32 v{t0}, v{t1}
ds_add_u32 v{t0}, v{vONE} offset:4
""")
PVA, PB, OD, OS, ON = 32, 160, 176, 208, 224
lp, dn = a.newlabel("Lm"), a.newlabel("Lmd")
a(f"s_mov_b32 s{sCNT}, 0")
a.label(lp)
a(f"""
ds_read_b64 {v(vM,2)}, v{t0}
s_waitcnt lgkmcnt(0)
v_cmp_ne_u32 vcc, 16, v{vM+1}
s_cmp_eq_u64 vcc, 0
s_cbranch_scc1 {dn}
s_add_u32 s{sCNT}, s{sCNT}, 1
s_cmp_lt_u32 s{sCNT}, {LSPIN_MAX}
s_cbranch_scc1 {lp}
""")
a.label(dn)
stamp("S done")
def pv_read(u, mt):
    for vv in range(2):
        tile = 2 * u + vv
        ad = PAD[mt] if tile < 4 else PAD[8 + mt]
        a(f"ds_read_b64_tr_b16 {v(PVA+16*mt+4*u+2*vv,2)}, v{ad} offset:{(tile&3)*16384}")
a(f"v_ceil_f32 v{vM}, v{vM}")
for mt in range(4): pv_read(0, mt)
for r in range(8): a(f"v_sub_f32 v{SD+r}, v{SD+r}, v{vM}")
for r in range(8): a(f"v_exp_f32 v{SD+r}, v{SD+r}")
for k in range(4): a(f"v_cvt_pk_bf16_f32 v{PB+k}, v{SD+2*k}, v{SD+2*k+1}")
a(f"ds_write_b128 v{t2}, {v(PB,4)}")
lds_signal(F_P)
for mt in range(4, 8): pv_read(0, mt)
for mt in range(8): pv_read(1, mt)
def spec_p():
    for u in range(4):
        a(f"ds_read_b128 {v(PB+4*u,4)}, v{t3} offset:{1024*u}")
lds_wait(F_P, 4, spec_p)
stamp("P done")
for u in range(4):
    for mt in range(8):
        if u < 2:
            pv_read(u + 2, mt)
        else:
            left = 32 - 2 * ((u - 2) * 8 + mt + 1)
            if left <= 15: a(f"s_waitcnt lgkmcnt({left})")
            elif (u, mt) == (2, 0): a("s_waitcnt lgkmcnt(15)")
        mfma(OD+4*mt, PVA+16*mt+4*u, PB+4*u, u == 0)
lds_signal(F_BD)
stamp("PV done")
for i in range(4): a(f"v_mov_b32 v{ON+i}, 0x3f803f80")
for u in range(4): mfma(ON+4, ON, PB+4*u, u == 0)
CK = vM + 2
for pp in range(2):
    for p in (2 * pp, 2 * pp + 1):
        for k in range(2):
            mt = 2 * p + k
            a(f"v_cvt_pk_bf16_f32 v{OS+2*mt}, v{OD+4*mt}, v{OD+4*mt+1}")
            a(f"v_cvt_pk_bf16_f32 v{OS+2*mt+1}, v{OD+4*mt+2}, v{OD+4*mt+3}")
        a(f"v_permlane16_swap_b32 v{OS+4*p}, v{OS+4*p+2}")
        a(f"v_permlane16_swap_b32 v{OS+4*p+1}, v{OS+4*p+3}")
    X, Y, T = OS + 8 * pp, OS + 8 * pp + 4, OD + 16 * pp
    for k in range(0, 8, 2):
        if pp == 0 and k == 0: a(f"v_add_u32 v{CK}, v{X}, v{X+1}")
        else: a(f"v_add3_u32 v{CK}, v{CK}, v{X+k}, v{X+k+1}")
    for d in range(4):
        a(f"v_mov_b32 v{T+d}, v{X+d}")
    for d in range(4):
        a(f"v_mov_b32_dpp v{T+d}, v{Y+d} row_ror:8 row_mask:0xf bank_mask:0xc")
    a(f"buffer_store_dwordx4 {v(T,4)}, v{vO}, {srd(R_WS)}, s{sO} offen offset:{128*pp} sc1")
    for d in range(4):
        a(f"v_mov_b32_dpp v{Y+d}, v{X+d} row_ror:8 row_mask:0xf bank_mask:0x3")
    a(f"buffer_store_dwordx4 {v(Y,4)}, v{vO}, {srd(R_WS)}, s{sT[3]} offen offset:{128*pp} sc1")
a(f"""
s_lshl_b32 s{sT[4]}, s{sHGB}, 7
s_add_u32 s{sT[4]}, s{sT[4]}, s{sCH}
s_lshl_b32 s{sT[4]}, s{sT[4]}, 2
s_add_u32 s{sT[4]}, s{sT[4]}, s{sW}
s_lshl_b32 s{sT[4]}, s{sT[4]}, 8
s_add_u32 s{sT[4]}, s{sT[4]}, {ML_OFF}
v_mov_b32 v{t0}, v{CK}
v_mov_b32 v{vM+1}, v{ON+4}
v_permlane32_swap_b32 v{CK}, v{t0}
v_add_u32 v{CK}, v{CK}, v{t0}
v_mov_b32 v{t0}, v{CK}
v_xor_b32 v{t1}, s{sEP}, v{vM}
v_permlane16_swap_b32 v{CK}, v{t0}
v_add3_u32 v{CK}, v{CK}, v{t0}, s{sEP}
v_xor_b32 v{vM+3}, v{t1}, v{vM+1}
s_mov_b64 exec, 0xffff
buffer_store_dwordx4 {v(vM,4)}, v{vL16}, {srd(R_WS)}, s{sT[4]} offen sc1
s_mov_b64 exec, -1
""")
stamp("O published")

HD, HM, MK, AW, CD = 32, 64, 72, 76, 84
mM, wA, wB, wb, ckS, ckE, vCLw, vHd2 = vT[4], vT[5], vT[6], vT[7], vT[8], vT[9], vT[10], vT[11]
a(f"""
v_lshlrev_b32 v{t0}, 8, v{vG}
v_lshl_add_u32 v{t0}, v{vN}, 4, v{t0}
v_add_u32 v{vHd2}, 4096, v{t0}
s_lshl_b32 s{sT[0]}, s{sH}, 2
s_add_u32 s{sT[0]}, s{sT[0]}, s{sCQ}
s_lshl_b32 s{sT[0]}, s{sT[0]}, 15
s_lshl_b32 s{sT[2]}, s{sW}, 13
s_add_u32 s{sT[0]}, s{sT[0]}, s{sT[2]}
s_add_u32 s{sT[0]}, s{sT[0]}, {O_OFF}
v_and_b32 v{t1}, 7, v{vN}
v_lshrrev_b32 v{t2}, 3, v{vN}
v_xor_b32 v{t2}, v{t2}, v{vG}
v_lshl_add_u32 v{t1}, v{t1}, 2, v{t2}
v_lshlrev_b32 v{t1}, 10, v{t1}
v_xor_b32 v{t2}, 2048, v{t1}
s_lshr_b32 s{sT[4]}, s{sH}, 4
s_lshl_b32 s{sT[4]}, s{sT[4]}, 2
s_add_u32 s{sT[4]}, s{sT[4]}, s{sW}
s_lshl_b32 s{sT[4]}, s{sT[4]}, 15
s_and_b32 s{sT[5]}, s{sH}, 15
s_lshl_b32 s{sT[5]}, s{sT[5]}, 4
s_add_u32 s{sT[4]}, s{sT[4]}, s{sT[5]}
s_lshl_b32 s{sT[5]}, s{sCQ}, 8
s_add_u32 s{sT[4]}, s{sT[4]}, s{sT[5]}
s_add_u32 s{sT[4]}, s{sT[4]}, {ML_OFF}
v_and_b32 v{t3}, 1, v{vN}
v_lshlrev_b32 v{t3}, 4, v{t3}
v_mov_b32 v{mM}, 0xffff
v_lshlrev_b32 v{t3}, v{t3}, v{mM}
v_lshrrev_b32 v{mM}, 1, v{vN}
""")
for d in range(4):
    a(f"v_cmp_eq_u32 vcc, {d}, v{mM}")
    a(f"v_cndmask_b32 v{MK+d}, 0, v{t3}, vcc")
a(f"""
s_mul_i32 s{sT[5]}, s{sW}, 272
s_add_u32 s{sT[5]}, s{sT[5]}, {L_CL}
v_lshlrev_b32 v{vCLw}, 4, v{vN}
v_lshl_add_u32 v{vCLw}, v{vG}, 3, v{vCLw}
v_add_u32 v{vCLw}, s{sT[5]}, v{vCLw}
s_mov_b32 s{sT[6]}, 0x03020302
""")
if OACK: a("s_waitcnt vmcnt(0)")
stamp("O acked")
a(f"s_mov_b32 s{sCNT}, 0")
a("L_pollm:")
a(f"""
buffer_load_dwordx4 {v(HM,4)}, v{t1}, {srd(R_WS)}, s{sT[4]} offen sc1
buffer_load_dwordx4 {v(HM+4,4)}, v{t2}, {srd(R_WS)}, s{sT[4]} offen sc1
s_waitcnt vmcnt(0)
v_bitop3_b32 v{ckE}, v{HM}, v{HM+1}, v{HM+3} bitop3:0x96
v_bitop3_b32 v{t3}, v{HM+4}, v{HM+5}, v{HM+7} bitop3:0x96
v_cmp_ne_u32 vcc, s{sEP}, v{ckE}
v_cmp_ne_u32 s[{sACC}:{sACC+1}], s{sEP}, v{t3}
s_or_b64 vcc, s[{sACC}:{sACC+1}], vcc
""")
poll_tail("L_pollm", MLSLEEP)
cstamp("ml retries")
stamp("ML ok")
for t in range(8):
    a(f"buffer_load_dwordx4 {v(HD+4*t,4)}, v{vHd2 if t >= 4 else t0}, {srd(R_WS)}, s{sT[0]} offen offset:{1024*(t&3)} sc1")
a(f"""
v_max_f32 v{mM}, v{HM}, v{HM+4}
v_max_f32_dpp v{mM}, v{mM}, v{mM} row_ror:1 row_mask:0xf bank_mask:0xf
v_max_f32_dpp v{mM}, v{mM}, v{mM} row_ror:2 row_mask:0xf bank_mask:0xf
v_sub_u32 v{ckS}, s{sEP}, v{HM+2}
v_max_f32_dpp v{mM}, v{mM}, v{mM} row_ror:4 row_mask:0xf bank_mask:0xf
v_cndmask_b32 v{ckS}, 0, v{ckS}, s[{sM8}:{sM8+1}]
v_max_f32_dpp v{mM}, v{mM}, v{mM} row_ror:8 row_mask:0xf bank_mask:0xf
v_sub_f32 v{wA}, v{HM}, v{mM}
v_sub_f32 v{wB}, v{HM+4}, v{mM}
v_exp_f32 v{wA}, v{wA}
v_exp_f32 v{wB}, v{wB}
v_perm_b32 v{wb}, v{wA}, v{wA}, s{sT[6]}
v_mul_f32 v{wA}, v{wA}, v{HM+1}
v_fmac_f32 v{wA}, v{wB}, v{HM+5}
""")
sfts = [1, 2, 4, 8]
for t in range(8):
    aw = AW + 4 * (t & 1)
    for d in range(4):
        a(f"v_and_b32_dpp v{aw+d}, v{wb}, v{MK+d} row_newbcast:{t} row_mask:0xf bank_mask:0xf")
    if t < 4:
        a(f"v_add_f32_dpp v{wA}, v{wA}, v{wA} row_ror:{sfts[t]} row_mask:0xf bank_mask:0xf")
    if t == 4:
        a(f"v_rcp_f32 v{wA}, v{wA}")
    a(f"s_waitcnt vmcnt({7-t})")
    a(f"v_add3_u32 v{ckS}, v{ckS}, v{HD+4*t}, v{HD+4*t+1}")
    mfma(CD, aw, HD+4*t, t == 0)
    a(f"v_add3_u32 v{ckS}, v{ckS}, v{HD+4*t+2}, v{HD+4*t+3}")
for sft in sfts:
    a(f"v_add_u32_dpp v{ckS}, v{ckS}, v{ckS} row_ror:{sft} row_mask:0xf bank_mask:0xf")
a(f"v_cmp_ne_u32 vcc, 0, v{ckS}")
for r in range(4): a(f"v_mul_f32 v{CD+r}, v{CD+r}, v{wA}")
a(f"v_cvt_pk_bf16_f32 v{CD+4}, v{CD}, v{CD+1}")
a(f"v_cvt_pk_bf16_f32 v{CD+5}, v{CD+2}, v{CD+3}")
poll_tail("L_pollm")
cstamp("o retries")
a(f"""
s_mov_b32 exec_hi, 0
ds_write_b64 v{vCLw}, {v(CD+4,2)}
s_mov_b64 exec, 1
ds_add_u32 v{vFL}, v{vONE} offset:{F_CL}
s_mov_b64 exec, -1
s_setprio 0
""")
stamp("combined")
a(f"""
s_cmp_eq_u32 s{sISF}, 1
s_cbranch_scc1 L_ffn
s_cmp_eq_u32 s{sISR}, 0
s_cbranch_scc1 L_fin
""")

SEL, RD, RA, RS, vH = 96, 100, 116, 120, 128
vMo, vXv = vT[4], vT[5]
for d in range(4): a(f"v_and_b32 v{SEL+d}, 0x3f803f80, v{MK+d}")
a(f"""
v_and_b32 v{t0}, 0x23, v{vL}
v_bfe_u32 v{t1}, v{vL}, 2, 1
v_lshl_add_u32 v{t0}, v{t1}, 4, v{t0}
v_bfe_u32 v{t1}, v{vL}, 3, 2
v_lshl_add_u32 v{t0}, v{t1}, 2, v{t0}
v_lshlrev_b32 v{vMo}, 1, v{t0}
s_lshl_b32 s{sT[0]}, s{sRHO}, 7
buffer_load_ushort v{vXv}, v{vMo}, {srd(R_X)}, s{sT[0]} offen
v_lshlrev_b32 v{t0}, 4, v0
s_lshl_b32 s{sT[1]}, s{sRHO}, 14
s_add_u32 s{sT[1]}, s{sT[1]}, {PA_OFF}
s_add_u32 s{sT[2]}, s{sT[1]}, 4096
s_add_u32 s{sT[3]}, s{sT[1]}, 8192
s_add_u32 s{sT[4]}, s{sT[1]}, 12288
s_lshl_b32 s{sT[5]}, s{sW}, 8
s_add_u32 s{sT[5]}, s{sT[5]}, {L_RED}
v_lshlrev_b32 v{t1}, 5, v{vN}
v_lshl_add_u32 v{t1}, v{vG}, 4, v{t1}
v_add_u32 v{t1}, s{sT[5]}, v{t1}
v_lshlrev_b32 v{t2}, 2, v{vL}
v_add_u32 v{t2}, {L_RED}, v{t2}
s_mul_i32 s{sT[5]}, s{sRHO}, 12288
s_add_u32 s{sT[5]}, s{sT[5]}, {PF_OFF}
s_add_u32 s{R_PF}, s{R_WS}, s{sT[5]}
s_addc_u32 s{R_PF+1}, s{R_WS+1}, 0
s_mov_b32 s{sT[6]}, 4096
s_mov_b32 s{sT[7]}, 8192
s_waitcnt vmcnt(0)
s_barrier
""")
def reduce_inbox(name, rs, sos):
    a(f"s_mov_b32 s{sCNT}, 0")
    a.label(name)
    for i, so in enumerate(sos):
        a(f"buffer_load_dwordx4 {v(RD+4*i,4)}, v{t0}, {srd(rs)}, {so} offen sc1")
    n = len(sos)
    for i in range(n):
        a(f"s_waitcnt vmcnt({n-1-i})")
        if i == 0: a(f"v_max3_u32 v{t3}, v{RD}, v{RD+1}, v{RD+2}")
        else: a(f"v_max3_u32 v{t3}, v{t3}, v{RD+4*i}, v{RD+4*i+1}")
        mfma(RA, SEL, RD+4*i, i == 0)
        if i == 0: a(f"v_max_u32 v{t3}, v{t3}, v{RD+3}")
        else: a(f"v_max3_u32 v{t3}, v{t3}, v{RD+4*i+2}, v{RD+4*i+3}")
    a(f"v_cmp_eq_u32 vcc, -1, v{t3}")
    poll_tail(name)
    for r in range(4):
        a(f"v_add_f32_dpp v{RA+r}, v{RA+r}, v{RA+r} row_ror:8 row_mask:0xf bank_mask:0xf")
    a(f"""
    s_mov_b64 exec, 0x00ff00ff
    ds_write_b128 v{t1}, {v(RA,4)}
    s_mov_b64 exec, -1
    s_waitcnt lgkmcnt(0)
    s_barrier
    """)
def final_sum():
    for k in range(2):
        a(f"ds_read2st64_b32 {v(RS+2*k,2)}, v{t2} offset0:{2*k} offset1:{2*k+1}")
    a("s_waitcnt lgkmcnt(0)")
    a(f"v_add_f32 v{RS}, v{RS}, v{RS+1}")
    a(f"v_add_f32 v{RS+2}, v{RS+2}, v{RS+3}")
    a(f"v_add_f32 v{RS}, v{RS}, v{RS+2}")
def pack_store(val, rs, so, pol):
    P = RS + 4
    a(f"v_mov_b32_dpp v{RS+2}, v{val} quad_perm:[1,1,3,3] row_mask:0xf bank_mask:0xf")
    a(f"v_cvt_pk_bf16_f32 v{P}, v{val}, v{RS+2}")
    a(f"v_mov_b32_dpp v{P+1}, v{P} quad_perm:[2,2,2,2] row_mask:0xf bank_mask:0xf")
    a(f"v_mov_b32_dpp v{P+2}, v{P} row_shl:8 row_mask:0xf bank_mask:0xf")
    a(f"v_mov_b32_dpp v{P+3}, v{P+1} row_shl:8 row_mask:0xf bank_mask:0xf")
    a(f"""
    s_mov_b32 exec_lo, 0x00110011
    s_mov_b32 exec_hi, 0x00110011
    buffer_store_dwordx4 {v(P,4)}, v{vMo}, {srd(rs)}, {so} offen{pol}
    s_mov_b64 exec, -1
    """)
reduce_inbox("L_pollr1", R_WS, [f"s{sT[1+i]}" for i in range(4)])
stamp("R1 gathered")
a(f"""
s_cmp_lg_u32 s{sW}, 0
s_cbranch_scc1 L_r1skip
""")
final_sum()
rne_bf16(RS, RS)
a(f"v_lshlrev_b32 v{vXv}, 16, v{vXv}")
a(f"v_add_f32 v{vH}, v{RS}, v{vXv}")
a(f"s_add_u32 s{sT[5]}, s{sT[0]}, {HG_OFF}")
pack_store(vH, R_WS, f"s{sT[5]}", " sc1")
rne_bf16(vH, vH)
a("L_r1skip:")
stamp("h published")
a("s_barrier")
a(f"s_sleep {opt('r2sleep', 32)}")
reduce_inbox("L_pollr2", R_PF, ["0", f"s{sT[6]}", f"s{sT[7]}"])
stamp("R2 gathered")
a(f"""
s_cmp_lg_u32 s{sW}, 0
s_cbranch_scc1 L_fin
""")
final_sum()
rne_bf16(RS, RS)
a(f"v_add_f32 v{vH}, v{RS}, v{vH}")
pack_store(vH, R_OUT, f"s{sT[0]}", "")
a(f"""
s_cmp_lg_u32 s{sRHO}, 0
s_cbranch_scc1 L_fin
v_mov_b32 v{t0}, {EPOCH_OFF}
v_mov_b32 v{t1}, s{sEP}
s_mov_b64 exec, 1
buffer_store_dword v{t1}, v{t0}, {srd(R_WS)}, 0 offen sc1
""")
if DBGT:
    a(f"""
    s_memrealtime s[{sTS}:{sTS+1}]
    s_memtime s[{sC2}:{sC2+1}]
    s_waitcnt lgkmcnt(0)
    s_sub_u32 s{sTS}, s{sTS}, s94
    s_sub_u32 s{sC2}, s{sC2}, s96
    v_mov_b32 v{t2}, s{sTS}
    v_mov_b32 v{t3}, s{sC2}
    v_mov_b32 v{t0}, 0
    global_store_dwordx2 v{t0}, {v(t2,2)}, s[98:99]
    """)
a("""
s_mov_b64 exec, -1
s_branch L_fin
""")

a("L_ffn:")
FGU, FD, HB, GD, FXR, DD, DP, CSA = 96, 128, 144, 160, 172, 188, 220, 188
lds_wait(F_BD, 4)
if PFWHEN == 1:
    a("s_barrier")
a(f"""
v_lshrrev_b32 v{t0}, 1, v{vL}
v_and_b32 v{t1}, 0x13, v{t0}
v_bfe_u32 v{t2}, v{t0}, 2, 1
v_lshl_add_u32 v{t1}, v{t2}, 3, v{t1}
v_bfe_u32 v{t2}, v{t0}, 3, 1
v_lshl_add_u32 v{t1}, v{t2}, 2, v{t1}
v_mul_u32_u24 v{t1}, 2752, v{t1}
v_and_b32 v{t2}, 1, v{vL}
v_lshl_add_u32 v{t1}, v{t2}, 4, v{t1}
s_mul_i32 s{sT[0]}, s{sW}, {128*2752}
s_lshl_b32 s{sT[1]}, s{sPHI}, 5
s_add_u32 s{sT[0]}, s{sT[0]}, s{sT[1]}
s_lshl_b32 s{sT[2]}, s{sW}, 12
""")
for i in range(4):
    a(f"s_add_u32 m0, s{sT[2]}, {L_G + 1024*i}")
    if i: a(f"s_add_u32 s{sT[0]}, s{sT[0]}, {32*2752}")
    a(f"buffer_load_dwordx4 v{t1}, {srd(R_WG)}, s{sT[0]} offen lds")
    a(f"s_add_u32 m0, s{sT[2]}, {L_U + 1024*i}")
    a(f"buffer_load_dwordx4 v{t1}, {srd(R_WU)}, s{sT[0]} offen lds")
a(f"""
s_and_b32 s{sT[0]}, s{sW}, 1
s_lshl_b32 s{sT[0]}, s{sT[0]}, 7
v_xor_b32 v{t0}, s{sT[0]}, v{vL16}
s_lshl_b32 s{sT[0]}, s{sPHI}, 14
s_add_u32 s{sT[0]}, s{sT[0]}, s{sT[2]}
s_add_u32 m0, s{sT[2]}, {L_WD}
""")
for i in range(4):
    if i: a(f"v_xor_b32 v{t2}, {32*i}, v{t0}")
    a(f"buffer_load_dwordx4 v{t2 if i else t0}, {srd(R_WD)}, s{sT[0]} offen offset:{1024*i} lds")
vFXw, vFXr, vSq, vSm, vCs, csg, csu, vPF, vHl = vT[4], vT[5], vT[6], vT[7], vT[8], vT[9], vT[10], vT[11], vT[12]
a(f"""
v_bfe_u32 v{t0}, v{vL}, 2, 3
v_lshrrev_b32 v{t1}, 1, v{vG}
v_lshl_add_u32 v{t0}, v{t1}, 4, v{t0}
v_and_b32 v{t2}, 3, v{vL}
v_lshlrev_b32 v{t2}, 3, v{t2}
v_lshl_add_u32 v{t3}, v{t0}, 5, v{t2}
s_add_u32 s{sT[0]}, s{sT[2]}, {L_G}
v_add_u32 v{t3}, s{sT[0]}, v{t3}
v_bfe_u32 v{t0}, v{vL}, 2, 4
v_and_b32 v{t1}, 7, v{t0}
v_lshl_add_u32 v{t1}, v{t1}, 5, v{t2}
v_lshl_add_u32 v{t1}, v{t0}, 10, v{t1}
s_lshl_b32 s{sT[0]}, s{sW}, 8
s_add_u32 s{sT[0]}, s{sT[0]}, {L_WD}
v_add_u32 v{t1}, s{sT[0]}, v{t1}
v_lshlrev_b32 v{vHl}, 10, v{vN}
v_lshl_add_u32 v{vHl}, v{vG}, 4, v{vHl}
s_lshl_b32 s{sT[1]}, s{sW}, 8
s_add_u32 s{sT[1]}, s{sT[1]}, {HG_OFF}
s_mul_i32 s{sT[2]}, s{sW}, 640
s_add_u32 s{sT[2]}, s{sT[2]}, {L_FX}
v_lshlrev_b32 v{vFXw}, 6, v{vG}
v_lshl_add_u32 v{vFXw}, v{vN}, 4, v{vFXw}
v_add_u32 v{vFXw}, s{sT[2]}, v{vFXw}
v_and_b32 v{t2}, 3, v{vN}
v_lshlrev_b32 v{vFXr}, 4, v{t2}
v_lshl_add_u32 v{vFXr}, v{vG}, 6, v{vFXr}
v_lshrrev_b32 v{t0}, 2, v{vN}
v_lshl_add_u32 v{vFXr}, v{t0}, 2, v{vFXr}
v_add_u32 v{vFXr}, {L_FX}, v{vFXr}
v_mul_u32_u24 v{vSq}, 20, v{t2}
v_add_u32 v{vSq}, {L_FX + 512}, v{vSq}
v_lshlrev_b32 v{vSm}, 4, v{t2}
v_add_u32 v{vSm}, {L_FX + 576}, v{vSm}
v_lshlrev_b32 v{vCs}, 4, v{vG}
v_lshl_add_u32 v{vCs}, v{t0}, 2, v{vCs}
v_add_u32 v{vCs}, {L_CS}, v{vCs}
s_mov_b32 s{sT[4]}, 98304
v_mul_lo_u32 v{vPF}, v{vN}, s{sT[4]}
v_lshl_add_u32 v{vPF}, v{vG}, 4, v{vPF}
s_mul_i32 s{sT[4]}, s{sW}, 24576
s_lshl_b32 s{sT[5]}, s{sPHI}, 7
s_add_u32 s{sT[4]}, s{sT[4]}, s{sT[5]}
s_add_u32 s{sT[4]}, s{sT[4]}, {PF_OFF}
s_add_u32 s{sT[5]}, s{sT[4]}, 12288
""")
for i in range(16): a(f"v_mov_b32 v{HB+i}, 0x3f803f80")
a("s_waitcnt vmcnt(4)")
for mat in range(2):
    for t in range(4):
        for vv in range(2):
            a(f"ds_read_b64_tr_b16 {v(FGU+16*mat+4*t+2*vv,2)}, v{t3} offset:{16384*mat + (32*t+8*vv)*32}")
a("s_waitcnt lgkmcnt(0)")
for mat in range(2):
    for t in range(4):
        mfma(CSA+4*mat, FGU+16*mat+4*t, HB, t == 0)
a(f"""
s_lshl_b32 s{sT[0]}, s{sW}, 7
s_add_u32 s{sT[0]}, s{sT[0]}, {L_CS}
v_lshlrev_b32 v{t0}, 4, v{vG}
v_add_u32 v{t0}, s{sT[0]}, v{t0}
s_mov_b32 exec_lo, 0x00010001
s_mov_b32 exec_hi, 0x00010001
ds_write_b128 v{t0}, {v(CSA,4)}
ds_write_b128 v{t0}, {v(CSA+4,4)} offset:64
s_mov_b64 exec, -1
s_waitcnt vmcnt(0) lgkmcnt(0)
s_barrier
""")
for mt in range(8):
    if mt: a(f"v_xor_b32 v{t2}, {32*mt}, v{t1}")
    a(f"ds_read_b64_tr_b16 {v(FD+2*mt,2)}, v{t2 if mt else t1}")
for k in range(4):
    a(f"ds_read2_b32 {v(FXR+2*k,2)}, v{vCs} offset0:{32*k} offset1:{32*k+16}")
a(f"""
s_waitcnt lgkmcnt(0)
v_add_f32 v{csg}, v{FXR}, v{FXR+2}
v_add_f32 v{csu}, v{FXR+1}, v{FXR+3}
v_add_f32 v{csg}, v{csg}, v{FXR+4}
v_add_f32 v{csu}, v{csu}, v{FXR+5}
v_add_f32 v{csg}, v{csg}, v{FXR+6}
v_add_f32 v{csu}, v{csu}, v{FXR+7}
""")
stamp("FFN prepped")
a(f"s_mov_b64 exec, s[{sM4}:{sM4+1}]")
a(f"s_mov_b32 s{sCNT}, 0")
a("L_pollh:")
for t in range(4):
    a(f"buffer_load_dwordx4 {v(HB+4*t,4)}, v{vHl}, {srd(R_WS)}, s{sT[1]} offen offset:{64*t} sc1")
a("s_waitcnt vmcnt(0)")
poison_check(list(range(HB, HB + 16)), t3)
poll_tail("L_pollh", opt("hsleep", 1))
a("s_mov_b64 exec, -1")
stamp("h gathered")
for t in range(4):
    for k in range(3):
        mfma(GD+4*k, FGU+16*k+4*t if k < 2 else HB+4*t, HB+4*t, t == 0)
a(f"""
s_mov_b64 exec, s[{sM4}:{sM4+1}]
ds_write_b128 v{vFXw}, {v(GD,4)}
ds_write_b128 v{vFXw}, {v(GD+4,4)} offset:256
s_mov_b64 exec, 0x000f000f
ds_write_b128 v{vFXw}, {v(GD+8,4)} offset:512
s_mov_b64 exec, -1
s_waitcnt lgkmcnt(0)
s_barrier
""")
for k in range(4):
    a(f"ds_read_b32 v{FXR+8+k}, v{vSq} offset:{640*k}")
    a(f"ds_read_b32 v{FXR+12+k}, v{vSm} offset:{640*k}")
for k in range(4):
    a(f"ds_read_b32 v{FXR+2*k}, v{vFXr} offset:{640*k}")
    a(f"ds_read_b32 v{FXR+2*k+1}, v{vFXr} offset:{640*k+256}")
gg, uu, sq, sm = vT[13], vT[14], vT[15], vT[16]
a(f"""
s_waitcnt lgkmcnt(8)
v_add_f32 v{sm}, v{FXR+12}, v{FXR+13}
v_add_f32 v{sq}, v{FXR+8}, v{FXR+9}
v_add_f32 v{sm}, v{sm}, v{FXR+14}
v_add_f32 v{sq}, v{sq}, v{FXR+10}
v_add_f32 v{sm}, v{sm}, v{FXR+15}
v_add_f32 v{sq}, v{sq}, v{FXR+11}
v_mul_f32 v{sm}, 0x3b000000, v{sm}
v_mul_f32 v{sq}, 0x3b000000, v{sq}
v_fma_f32 v{sq}, -v{sm}, v{sm}, v{sq}
v_max_f32 v{sq}, 0, v{sq}
v_add_f32 v{sq}, 0x3727c5ac, v{sq}
v_rsq_f32 v{sq}, v{sq}
s_waitcnt lgkmcnt(0)
v_add_f32 v{gg}, v{FXR}, v{FXR+2}
v_add_f32 v{uu}, v{FXR+1}, v{FXR+3}
v_add_f32 v{gg}, v{gg}, v{FXR+4}
v_add_f32 v{uu}, v{uu}, v{FXR+5}
v_add_f32 v{gg}, v{gg}, v{FXR+6}
v_add_f32 v{uu}, v{uu}, v{FXR+7}
v_fma_f32 v{gg}, -v{sm}, v{csg}, v{gg}
v_fma_f32 v{uu}, -v{sm}, v{csu}, v{uu}
v_mul_f32 v{gg}, v{gg}, v{sq}
v_mul_f32 v{uu}, v{uu}, v{sq}
v_mul_f32 v{sm}, {f32(-math.log2(math.e))}, v{gg}
v_exp_f32 v{sm}, v{sm}
v_mul_f32 v{gg}, v{gg}, v{uu}
v_add_f32 v{sm}, 1.0, v{sm}
v_rcp_f32 v{sm}, v{sm}
v_mul_f32 v{gg}, v{gg}, v{sm}
v_mov_b32_dpp v{uu}, v{gg} row_shl:4 row_mask:0xf bank_mask:0xf
v_cvt_pk_bf16_f32 v{FXR}, v{gg}, v{uu}
v_mov_b32_dpp v{FXR+1}, v{FXR} row_shl:8 row_mask:0xf bank_mask:0xf
""")
for mt in range(8): mfma(DD+4*mt, FD+2*mt, FXR, True, k16=True)
a(f"s_mov_b64 exec, s[{sM4}:{sM4+1}]")
for p in range(4):
    for k in range(4):
        a(f"v_cvt_pk_bf16_f32 v{DP+4*p+k}, v{DD+8*p+2*k}, v{DD+8*p+2*k+1}")
    a(f"buffer_store_dwordx4 {v(DP+4*p,4)}, v{vPF}, {srd(R_WS)}, s{sT[4+(p>>1)]} offen offset:{64*(p&1)} sc1")
a("s_mov_b64 exec, -1")
stamp("FFN published")
a("s_branch L_fin")

a("L_wave45:")
PZ = vT[4]
a(f"""
s_lshl_b32 s{sT[3]}, s{sK}, 16
s_lshl_b32 s{sT[4]}, s{sCH}, 17
s_add_u32 s{sT[4]}, s{sT[4]}, s{sT[3]}
s_lshl_b32 s{sT[1]}, s{sK}, 4
v_add_u32 v{vT[11]}, s{sT[1]}, v{vFL}
""")
def dma_all(win, tag, nclr_after):
    signalled = 0
    first = (64 - AQ) if tag == "A" else 0
    torder = [((first // 16) + k) % 4 for k in range(4)]
    for idx in range(64):
        i = (first + idx) % 64
        if i % 4 == 0:
            a(f"s_add_u32 m0, s{sT[3]}, {i*1024}")
            a(f"s_add_u32 s{sT[5]}, s{sT[4]}, {i*1024}")
        tmp = vT[i & 1]
        a(f"v_xor_b32 v{tmp}, {fsw(i & 15)*16}, v{vL16}")
        if idx >= win:
            a(f"s_waitcnt vmcnt({win-1})")
            done = idx - win + 1
            if idx == win and nclr_after: lds_signal(F_CLR)
            if done >= 16 * (signalled + 1):
                lds_signal(F_TILE + 4 * torder[signalled], base=vT[11]); signalled += 1
        a(f"buffer_load_dwordx4 v{tmp}, {srd(R_CKV)}, s{sT[5]} offen offset:{(i&3)*1024} nt lds")
    lds_signal(F_GO)
    stamp("dma issued")
    while signalled < 4:
        a(f"s_waitcnt vmcnt({64 - 16*(signalled+1)})")
        lds_signal(F_TILE + 4 * torder[signalled], base=vT[11]); signalled += 1
    stamp("ckv landed")
a(f"""
s_cmp_eq_u32 s{sHGB}, 0
s_cbranch_scc1 L_w45free
s_setprio 3
s_lshl_b32 s{sT[1]}, s{sK}, 10
buffer_load_dwordx4 {v(XR,4)}, v{vL16}, {srd(R_X)}, s{sT[1]} offen
s_waitcnt vmcnt(0)
""")
ln_row()
lds_signal(F_XN)
a("s_setprio 0")
lds_wait(F_WQI, 4, sleep=2)
dma_all(DWIN_A, "A", False)
a("s_branch L_w45pf")
a("L_w45free:")
dma_all(DWIN_F, "F", False)
a("L_w45pf:")
a(f"""
v_lshrrev_b32 v{t0}, 2, v{vL}
v_mul_u32_u24 v{t0}, 2752, v{t0}
v_and_b32 v{t1}, 3, v{vL}
v_lshlrev_b32 v{t1}, 7, v{t1}
v_min_u32 v{t1}, 348, v{t1}
v_add_u32 v{t0}, v{t0}, v{t1}
s_mul_i32 s{sT[1]}, s{sY}, {16*2752}
s_mul_i32 s{sT[2]}, s{sX}, 352
s_add_u32 s{sT[1]}, s{sT[1]}, s{sT[2]}
v_min_u32 v{t1}, 21, v{vL}
v_lshlrev_b32 v{t1}, 7, v{t1}
s_mul_i32 s{sT[2]}, s{sX}, {176*1024}
s_lshl_b32 s{sT[3]}, s{sY}, 1
s_add_u32 s{sT[3]}, s{sT[3]}, s{sK}
s_mul_i32 s{sT[3]}, s{sT[3]}, {22*128}
s_add_u32 s{sT[2]}, s{sT[2]}, s{sT[3]}
""")
def ffn_pf(tag, s1, s2):
    a(f"""
    buffer_load_dword v{vDUM+1}, v{t1}, {srd(R_WD)}, s{s2} offen
    s_cmp_eq_u32 s{sW}, 5
    s_cbranch_scc1 L_w5up{tag}
    buffer_load_dword v{vDUM}, v{t0}, {srd(R_WG)}, s{s1} offen
    s_branch L_pfd{tag}
    L_w5up{tag}:
    buffer_load_dword v{vDUM}, v{t0}, {srd(R_WU)}, s{s1} offen
    L_pfd{tag}:
    """)
if PFWHEN == 0:
    lds_wait(F_RI, 2, sleep=4)
    ffn_pf("a", sT[1], sT[2])
else:
    a(f"s_mov_b32 s{sT[9]}, s{sT[1]}")
    a(f"s_mov_b32 s{sT[10]}, s{sT[2]}")
a("s_branch L_phaseC")

a("L_wave67:")
RAW = 32
a(f"s_and_b32 s{sT[0]}, s{sW}, 1")
if CODEPF:
    a(f"""
    s_getpc_b64 s[{sC2}:{sC2+1}]
    L_pcref:
    s_sub_u32 s{sC2}, s{sC2}, L_pcref-{KNAME}
    s_subb_u32 s{sC2+1}, s{sC2+1}, 0
    v_lshlrev_b32 v{t0}, 7, v{vL}
    s_lshl_b32 s{sT[2]}, s{sT[0]}, 13
    v_add_u32 v{t0}, s{sT[2]}, v{t0}
    v_add_u32 v{t1}, 16384, v{t0}
    v_min_u32 v{t0}, L_end-{KNAME}, v{t0}
    v_min_u32 v{t1}, L_end-{KNAME}, v{t1}
    """)
a(f"""
s_cmp_eq_u32 s{sHGB}, 0
s_cbranch_scc1 L_noLN
s_setprio 3
s_lshl_b32 s{sT[1]}, s{sK}, 10
buffer_load_dwordx4 {v(XR,4)}, v{vL16}, {srd(R_X)}, s{sT[1]} offen
s_waitcnt vmcnt(0)
""")
ln_row()
lds_signal(F_XN)
stamp("LN done")
a("s_branch L_w67rest")
a("L_noLN:")
if CODEPF:
    a(f"""
    global_load_dword v{vDUM}, v{t0}, s[{sC2}:{sC2+1}]
    global_load_dword v{vDUM+1}, v{t1}, s[{sC2}:{sC2+1}]
    """)
a("L_w67rest:")
def clears():
    a(f"""
    v_and_b32 v{vT[8]}, 7, v{vL}
    v_lshlrev_b32 v{vT[8]}, 4, v{vT[8]}
    v_bfe_u32 v{vT[9]}, v{vL}, 3, 1
    v_lshl_add_u32 v{vT[10]}, v{vT[9]}, 14, v{vT[8]}
    v_lshl_add_u32 v{vT[10]}, v{vG}, 17, v{vT[10]}
    s_lshl_b32 s{sT[1]}, s{sMH}, 1
    s_add_u32 s{sT[1]}, s{sT[1]}, s{sT[0]}
    s_lshl_b32 s{sT[1]}, s{sT[1]}, 15
    s_lshl_b32 s{sT[2]}, s{sH}, 2
    s_add_u32 s{sT[2]}, s{sT[2]}, s{sCQ}
    s_lshl_b32 s{sT[2]}, s{sT[2]}, 7
    s_add_u32 s{sT[1]}, s{sT[1]}, s{sT[2]}
    s_add_u32 s{sT[1]}, s{sT[1]}, {PA_OFF}
    buffer_store_dwordx4 {v(PZ,4)}, v{vT[10]}, {srd(R_WS)}, s{sT[1]} offen sc1
    """)
a(f"""
v_mov_b32 v{PZ}, -1
v_mov_b32 v{PZ+1}, -1
v_mov_b32 v{PZ+2}, -1
v_mov_b32 v{PZ+3}, -1
""")
clears()
a(f"""
s_cmp_eq_u32 s{sISR}, 0
s_cbranch_scc1 L_noclrH
s_cmp_lg_u32 s{sW}, 7
s_cbranch_scc1 L_noclrH
s_lshl_b32 s{sT[1]}, s{sRHO}, 7
s_add_u32 s{sT[1]}, s{sT[1]}, {HG_OFF}
s_mov_b64 exec, 0xff
buffer_store_dwordx4 {v(PZ,4)}, v{vL16}, {srd(R_WS)}, s{sT[1]} offen sc1
s_mov_b64 exec, -1
L_noclrH:
s_cmp_eq_u32 s{sISF}, 0
s_cbranch_scc1 L_noclrF
v_mul_u32_u24 v{vT[10]}, 12288, v{vT[9]}
v_add_u32 v{vT[10]}, v{vT[10]}, v{vT[8]}
s_mov_b32 s{sT[1]}, 98304
v_mul_lo_u32 v{vT[9]}, v{vG}, s{sT[1]}
v_add_u32 v{vT[10]}, v{vT[10]}, v{vT[9]}
s_mul_i32 s{sT[1]}, s{sT[0]}, 49152
s_lshl_b32 s{sT[2]}, s{sPHI}, 7
s_add_u32 s{sT[1]}, s{sT[1]}, s{sT[2]}
s_add_u32 s{sT[1]}, s{sT[1]}, {PF_OFF}
s_add_u32 s{sT[2]}, s{sT[1]}, 24576
buffer_store_dwordx4 {v(PZ,4)}, v{vT[10]}, {srd(R_WS)}, s{sT[1]} offen sc1
buffer_store_dwordx4 {v(PZ,4)}, v{vT[10]}, {srd(R_WS)}, s{sT[2]} offen sc1
L_noclrF:
s_waitcnt vmcnt(0)
""")
lds_signal(F_CLR)
a("s_setprio 0")
a(f"""
v_lshlrev_b32 v{vT[4]}, 13, v{vG}
v_lshl_add_u32 v{vT[4]}, v{vN}, 4, v{vT[4]}
s_lshl_b32 s{sT[1]}, s{sCQ}, 7
s_lshl_b32 s{sT[2]}, s{sT[0]}, 6
s_add_u32 s{sT[1]}, s{sT[1]}, s{sT[2]}
s_lshl_b32 s{sT[1]}, s{sT[1]}, 13
s_lshl_b32 s{sT[2]}, s{sH}, 8
s_add_u32 s{sT[1]}, s{sT[1]}, s{sT[2]}
v_lshrrev_b32 v{vT[5]}, 5, v{vL}
v_lshlrev_b32 v{vT[5]}, 10, v{vT[5]}
v_and_b32 v{vT[6]}, 31, v{vL}
v_lshl_add_u32 v{vT[5]}, v{vT[6]}, 4, v{vT[5]}
s_lshl_b32 s{sT[2]}, s{sH}, 17
s_lshl_b32 s{sT[3]}, s{sT[0]}, 16
s_add_u32 s{sT[2]}, s{sT[2]}, s{sT[3]}
s_lshl_b32 s{sT[3]}, s{sMH}, 9
s_add_u32 s{sT[2]}, s{sT[2]}, s{sT[3]}
s_waitcnt vmcnt(0)
""")
lds_wait(F_GO, 2, sleep=2)
for i in range(16):
    if i: a(f"s_add_u32 s{sT[1]}, s{sT[1]}, 32768")
    if i >= RWIN: a(f"s_waitcnt vmcnt({RWIN-1})")
    a(f"buffer_load_dwordx4 {v(RAW+4*i,4)}, v{vT[4]}, {srd(R_WUV)}, s{sT[1]} offen nt")
for i in range(32):
    if i and i % 2 == 0: a(f"s_add_u32 s{sT[2]}, s{sT[2]}, 4096")
    if i + 16 >= RWIN: a(f"s_waitcnt vmcnt({RWIN-1})")
    a(f"buffer_load_dwordx4 {v(RAW+64+4*i,4)}, v{vT[5]}, {srd(R_WO)}, s{sT[2]} offen offset:{(i&1)*2048} nt")
lds_signal(F_RI)
stamp("rest issued")
a(f"""
v_lshlrev_b32 v{t0}, 5, v{vG}
v_lshlrev_b32 v{t1}, 4, v{vN}
v_xor_b32 v{t0}, v{t0}, v{t1}
v_lshl_add_u32 v{t0}, v{vG}, 8, v{t0}
s_lshl_b32 s{sT[1]}, s{sT[0]}, 14
v_add_u32 v{t0}, s{sT[1]}, v{t0}
v_xor_b32 v{t1}, 128, v{t0}
v_lshrrev_b32 v{t2}, 5, v{vL}
v_and_b32 v{vT[4]}, 31, v{vL}
v_lshlrev_b32 v{vT[4]}, 4, v{vT[4]}
v_lshlrev_b32 v{t3}, 5, v{t2}
v_xor_b32 v{vT[4]}, v{vT[4]}, v{t3}
v_lshl_add_u32 v{vT[4]}, v{t2}, 9, v{vT[4]}
s_lshl_b32 s{sT[1]}, s{sT[0]}, 15
s_add_u32 s{sT[1]}, s{sT[1]}, {L_WO}
v_add_u32 v{vT[4]}, s{sT[1]}, v{vT[4]}
v_xor_b32 v{vT[5]}, 64, v{vT[4]}
v_xor_b32 v{vT[6]}, 128, v{vT[4]}
v_xor_b32 v{vT[7]}, 192, v{vT[4]}
""")
lds_wait(F_BD, 4, sleep=1)
for i in range(16):
    if 47 - i < RWIN: a(f"s_waitcnt vmcnt({47-i})")
    a(f"ds_write_b128 v{t1 if (i>>1)&1 else t0}, {v(RAW+4*i,4)} offset:{L_WUV + 1024*i}")
for i in range(32):
    if 31 - i < RWIN: a(f"s_waitcnt vmcnt({31-i})")
    sel = (i & 1) | (((i >> 2) & 1) << 1)
    a(f"ds_write_b128 v{vT[4+sel]}, {v(RAW+64+4*i,4)} offset:{1024*i}")
lds_signal(F_ST)
stamp("images written")

a("L_phaseC:")
FUV, FO, CB, XD, AD, AP = 32, 64, 128, 144, 160, 176
vUVa, vOa, vCLr, vCXw, vCXr, vPA = vT[4], vT[5], vT[6], vT[7], vT[8], vT[9]
a(f"""
v_bfe_u32 v{vT[12]}, v{vL}, 2, 2
v_and_b32 v{vT[13]}, 1, v{vG}
v_lshl_add_u32 v{vT[13]}, v{vT[13]}, 2, v{vT[12]}
v_lshl_add_u32 v{vT[12]}, v{vG}, 3, v{vT[12]}
v_and_b32 v{vT[14]}, 3, v{vL}
v_lshlrev_b32 v{vT[14]}, 3, v{vT[14]}
s_lshl_b32 s{sT[0]}, s{sK}, 1
v_xor_b32 v{vUVa}, s{sT[0]}, v{vT[13]}
v_lshl_add_u32 v{vUVa}, v{vUVa}, 5, v{vT[14]}
v_lshl_add_u32 v{vUVa}, v{vT[12]}, 8, v{vUVa}
s_lshl_b32 s{sT[0]}, s{sK}, 2
v_xor_b32 v{vOa}, s{sT[0]}, v{vT[13]}
v_lshl_add_u32 v{vOa}, v{vOa}, 5, v{vT[14]}
v_lshl_add_u32 v{vOa}, v{vT[12]}, 9, v{vOa}
v_add_u32 v{vOa}, {L_WO}, v{vOa}
v_and_b32 v{vT[12]}, 3, v{vN}
v_mul_u32_u24 v{vT[12]}, 272, v{vT[12]}
v_lshl_add_u32 v{vCXr}, v{vG}, 4, v{vT[12]}
v_add_u32 v{vCLr}, {L_CL}, v{vCXr}
v_add_u32 v{vCXr}, {L_CX}, v{vCXr}
v_lshl_add_u32 v{vCXw}, v{vG}, 3, v{vT[12]}
s_lshl_b32 s{sT[0]}, s{sK}, 6
s_add_u32 s{sT[0]}, s{sT[0]}, {L_CX}
v_add_u32 v{vCXw}, s{sT[0]}, v{vCXw}
v_lshlrev_b32 v{vPA}, 4, v{vG}
v_lshl_add_u32 v{vPA}, v{vN}, 17, v{vPA}
s_lshl_b32 s{sT[1]}, s{sMH}, 2
s_add_u32 s{sT[1]}, s{sT[1]}, s{sK}
s_lshl_b32 s{sT[1]}, s{sT[1]}, 14
s_lshl_b32 s{sT[2]}, s{sH}, 2
s_add_u32 s{sT[2]}, s{sT[2]}, s{sCQ}
s_lshl_b32 s{sT[2]}, s{sT[2]}, 7
s_add_u32 s{sT[1]}, s{sT[1]}, s{sT[2]}
s_add_u32 s{sT[1]}, s{sT[1]}, {PA_OFF}
""")
lds_wait(F_ST, 2, sleep=1)
for mt in range(2):
    if mt: a(f"v_xor_b32 v{vT[12]}, 32, v{vUVa}")
    for ks in range(4):
        for vv in range(2):
            a(f"ds_read_b64_tr_b16 {v(FUV+16*mt+4*ks+2*vv,2)}, v{vT[12] if mt else vUVa} offset:{L_WUV + (32*ks+4*vv)*256}")
for mt in range(4):
    if mt: a(f"v_xor_b32 v{vT[12]}, {32*mt}, v{vOa}")
    for ks in range(4):
        for vv in range(2):
            a(f"ds_read_b64_tr_b16 {v(FO+16*mt+4*ks+2*vv,2)}, v{vT[12] if mt else vOa} offset:{(32*ks+4*vv)*512}")
stamp("weights staged")
a("s_setprio 2")
def spec_cl():
    for ks in range(4): a(f"ds_read_b128 {v(CB+4*ks,4)}, v{vCLr} offset:{64*ks}")
lds_wait(F_CL, 4, spec_cl)
if PFWHEN == 1:
    a(f"""
    s_cmp_ge_u32 s{sW}, 6
    s_cbranch_scc1 L_nopf2
    """)
    ffn_pf("b", sT[9], sT[10])
    a("L_nopf2:")
for ks in range(4):
    for mt in range(2): mfma(XD+4*mt, FUV+16*mt+4*ks, CB+4*ks, ks == 0)
for k in range(4): a(f"v_cvt_pk_bf16_f32 v{XD+8+k}, v{XD+2*k}, v{XD+2*k+1}")
a(f"""
s_mov_b64 exec, s[{sM4}:{sM4+1}]
ds_write_b64 v{vCXw}, {v(XD+8,2)}
ds_write_b64 v{vCXw}, {v(XD+10,2)} offset:32
""")
lds_signal(F_CX)
def spec_cx():
    for ks in range(4): a(f"ds_read_b128 {v(CB+4*ks,4)}, v{vCXr} offset:{64*ks}")
lds_wait(F_CX, 4, spec_cx)
for p in range(2):
    for ks in range(4):
        for k in range(2):
            mt = 2 * p + k
            mfma(AD+4*mt, FO+16*mt+4*ks, CB+4*ks, ks == 0)
a(f"s_mov_b64 exec, s[{sM4}:{sM4+1}]")
for p in range(2):
    for k in range(4): a(f"v_cvt_pk_bf16_f32 v{AP+4*p+k}, v{AD+8*p+2*k}, v{AD+8*p+2*k+1}")
    a(f"buffer_store_dwordx4 {v(AP+4*p,4)}, v{vPA}, {srd(R_WS)}, s{sT[1]} offen offset:{64*p} sc1")
a("s_mov_b64 exec, -1")
stamp("attn partial published")
a("s_waitcnt vmcnt(0)")

a("L_fin:")
if PROF:
    stamp("end")
    a(f"""
    s_lshl_b32 s{sT[0]}, s2, 3
    s_add_u32 s{sT[0]}, s{sT[0]}, s{sW}
    s_lshl_b32 s{sT[0]}, s{sT[0]}, 8
    s_add_u32 s{sT[0]}, s{sT[0]}, {TS_OFF}
    v_lshlrev_b32 v{t0}, 2, v{vL}
    buffer_store_dword v{vTSA}, v{t0}, {srd(R_WS)}, s{sT[0]} offen
    """)
a("L_end:")

hdr = open("sequential_preLN__compressed_kv_cla__swiglu_ffn__decode.s.ref").read().split("; @launch")[0]
open(OUT, "w").write(wrap_single(a.text(), 256, 512, LDS_BYTES, vgpr=256, header=hdr))
print("instructions:", a.ninstr, file=sys.stderr)
```

```python
import sys, math, struct
from asmgen import *

def opt(name, default):
    for x in sys.argv[1:]:
        if x.startswith("--" + name + "="):
            return int(x.split("=")[1])
    return default
PROF = "--prof" in sys.argv
DBGT = "--dbgtime" in sys.argv
OUT = [a for a in sys.argv[1:] if not a.startswith("--")]
OUT = OUT[0] if OUT else "sequential_preLN__compressed_kv_cla__swiglu_ffn__decode.s"
POLL_MAX = 1 << 15
LSPIN_MAX = 1 << 20
DWIN_A = opt("dwina", 14)
DWIN_F = opt("dwinf", 20)
RWIN = opt("rwin", 12)
UKPF = opt("ukpf", 1)
CODEPF = opt("codepf", 1)
QSLEEP = opt("qsleep", 4)
OACK = opt("oack", 1)
AQ = opt("aq", 16)
PFWHEN = opt("pfwhen", 1)
MLSLEEP = opt("mlsleep", 2)
FFNDLY = opt("ffndly", 24)

EPOCH_OFF = 0x0
QA_OFF = 0x10000
HG_OFF = 0x58000
PA_OFF = 0x80000
PF_OFF = 0x100000
O_OFF = 0x200000
ML_OFF = 0x600000
TS_OFF = 0x1000000
WS_USED = 0x1100000

L_QS = 131072
L_XN = 147456
L_Q16 = 151616
L_MX = 152640
L_PX = 153152
L_CL = 157248
L_CX = 159488
L_RED = 160576
L_CS = 162624
L_FL = 163136
LDS_BYTES = 163840
L_WUV, L_WO = 0, 32768
L_G, L_U, L_WD = 98304, 114688, L_QS
L_FX = L_PX
(F_XN, F_CLR, F_QP, F_Q16, F_QS, F_P, F_GO, F_WQI) = [4 * i for i in range(8)]
F_TILE = 32
(F_RI, F_BD, F_ST, F_CL, F_CX) = [64 + 4 * i for i in range(5)]

sW, sX, sY, sH, sYP, sCQ, sMH, sHGB, sCH, sEP = 3, 4, 5, 6, 7, 8, 9, 10, 11, 12
sT = list(range(13, 24))
sO, sHA, sJQ, sPHI, sRHO, sISF, sISR, sCNT = 24, 25, 26, 27, 28, 29, 30, 31
R_X, R_CKV, R_WQ, R_WUK, R_WUV, R_WO, R_WG, R_WU, R_WD, R_OUT, R_WS, R_PF = [32 + 4 * i for i in range(12)]
sSELLO, sSELHI = 80, 81
sM8 = 82
sM4 = 84
sACC = 86
sC2 = 88
sTS = 90
sK = 92
def srd(r): return f"s[{r}:{r+3}]"
def f32(x): return "0x%08x" % struct.unpack("<I", struct.pack("<f", x))[0]

vL, vN, vG, vL16, vFL, vONE, vTSA = 1, 2, 3, 4, 5, 6, 7
vT = list(range(8, 32))
t0, t1, t2, t3 = vT[0], vT[1], vT[2], vT[3]
vSP = vT[23]
vDUM = vT[21]
def v(i, n=1): return f"v{i}" if n == 1 else f"v[{i}:{i+n-1}]"
def fsw(row): return 2 * ((row & 7) ^ (4 * (row >> 3))) + (row >> 3)

a = Asm()
stamps = {}
PROBE = [x.split("=", 1)[1].replace("_", " ") for x in sys.argv if x.startswith("--probe=")]
def stamp(name):
    if PROBE and PROBE[0] == name.replace("_", " "):
        a("s_memrealtime s[94:95]")
        a("s_waitcnt lgkmcnt(0)")
    if not PROF: return
    if name not in stamps:
        stamps[name] = len(stamps)
    i = stamps[name]
    a(f"""
    s_memrealtime s[{sTS}:{sTS+1}]
    s_waitcnt lgkmcnt(0)
    v_writelane_b32 v{vTSA}, s{sTS}, {i}
    """)
def cstamp(name):
    if not PROF: return
    name = "#" + name
    if name not in stamps:
        stamps[name] = len(stamps)
    a(f"s_add_u32 s{sTS}, s{sCNT}, 1")
    a(f"v_writelane_b32 v{vTSA}, s{sTS}, {stamps[name]}")
def poll_tail(name, sleep=0):
    done = a.newlabel("Lpd")
    a(f"""
    s_cmp_eq_u64 vcc, 0
    s_cbranch_scc1 {done}
    """)
    if sleep: a(f"s_sleep {sleep}")
    a(f"""
    s_add_u32 s{sCNT}, s{sCNT}, 1
    s_cmp_lt_u32 s{sCNT}, {POLL_MAX}
    s_cbranch_scc1 {name}
    """)
    a.label(done)
def poison_check(regs, tmp):
    regs = list(regs); n = len(regs)
    a(f"v_max3_u32 v{tmp}, v{regs[0]}, v{regs[1]}, v{regs[2]}")
    i = 3
    while i + 1 < n:
        a(f"v_max3_u32 v{tmp}, v{tmp}, v{regs[i]}, v{regs[i+1]}"); i += 2
    if i < n: a(f"v_max_u32 v{tmp}, v{tmp}, v{regs[i]}")
    a(f"v_cmp_eq_u32 vcc, -1, v{tmp}")
def lds_signal(off, base=None):
    a(f"""
    s_mov_b64 exec, 1
    ds_add_u32 v{vFL if base is None else base}, v{vONE} offset:{off}
    s_mov_b64 exec, -1
    """)
def lds_wait(off, target, spec=None, sleep=0, base=None):
    lp, dn = a.newlabel("Lw"), a.newlabel("Lwd")
    a(f"s_mov_b32 s{sCNT}, 0")
    a.label(lp)
    a(f"ds_read_b32 v{vSP}, v{vFL if base is None else base} offset:{off}")
    if spec: spec()
    a(f"""
    s_waitcnt lgkmcnt(0)
    v_readfirstlane_b32 s{sACC}, v{vSP}
    s_cmp_ge_u32 s{sACC}, {target}
    s_cbranch_scc1 {dn}
    """)
    if sleep: a(f"s_sleep {sleep}")
    a(f"""
    s_add_u32 s{sCNT}, s{sCNT}, 1
    s_cmp_lt_u32 s{sCNT}, {LSPIN_MAX}
    s_cbranch_scc1 {lp}
    """)
    a.label(dn)
def rne_bf16(dst, src):
    a(f"v_cvt_pk_bf16_f32 v{dst}, v{src}, v{src}")
    a(f"v_and_b32 v{dst}, 0xffff0000, v{dst}")
def mfma(d, A, B, first, k16=False):
    n = 2 if k16 else 4
    op = "v_mfma_f32_16x16x16_bf16" if k16 else "v_mfma_f32_16x16x32_bf16"
    a(f"{op} {v(d,4)}, {v(A,n)}, {v(B,n)}, {'0' if first else v(d,4)}")

XR, XF = 32, 40
def ln_row():
    def wave_sum(x):
        for ctl in ["row_shr:1", "row_shr:2", "row_shr:4", "row_shr:8"]:
            a(f"v_add_f32_dpp v{x}, v{x}, v{x} {ctl} row_mask:0xf bank_mask:0xf bound_ctrl:0")
        a(f"v_add_f32_dpp v{x}, v{x}, v{x} row_bcast:15 row_mask:0xa bank_mask:0xf")
        a(f"v_add_f32_dpp v{x}, v{x}, v{x} row_bcast:31 row_mask:0xc bank_mask:0xf")
    xr, xf = XR, XF
    for i in range(4):
        a(f"v_lshlrev_b32 v{xf+2*i}, 16, v{xr+i}")
        a(f"v_and_b32 v{xf+2*i+1}, 0xffff0000, v{xr+i}")
    a(f"v_add_f32 v{xf+12}, v{xf}, v{xf+1}")
    for i in range(2, 8): a(f"v_add_f32 v{xf+12}, v{xf+12}, v{xf+i}")
    wave_sum(xf + 12)
    a(f"v_mov_b32 v{xf+15}, 0x3b000000")
    a(f"v_readlane_b32 s{sT[6]}, v{xf+12}, 63")
    a(f"v_mul_f32 v{xf+13}, s{sT[6]}, v{xf+15}")
    for i in range(8):
        a(f"v_sub_f32 v{xf+14}, v{xf+i}, v{xf+13}")
        if i == 0: a(f"v_mul_f32 v{xf+12}, v{xf+14}, v{xf+14}")
        else: a(f"v_fmac_f32 v{xf+12}, v{xf+14}, v{xf+14}")
    rne_bf16(xf + 13, xf + 13)
    wave_sum(xf + 12)
    for i in range(8): a(f"v_sub_f32 v{xf+i}, v{xf+i}, v{xf+13}")
    a(f"v_readlane_b32 s{sT[6]}, v{xf+12}, 63")
    for i in range(4): a(f"v_cvt_pk_bf16_f32 v{xf+8+i}, v{xf+2*i}, v{xf+2*i+1}")
    a(f"v_mul_f32 v{xf+12}, s{sT[6]}, v{xf+15}")
    rne_bf16(xf + 12, xf + 12)
    a(f"v_add_f32 v{xf+12}, 0x3727c5ac, v{xf+12}")
    rne_bf16(xf + 12, xf + 12)
    a(f"v_sqrt_f32 v{xf+12}, v{xf+12}")
    for i in range(4):
        a(f"v_lshlrev_b32 v{xf+2*i}, 16, v{xf+8+i}")
        a(f"v_and_b32 v{xf+2*i+1}, 0xffff0000, v{xf+8+i}")
    rne_bf16(xf + 12, xf + 12)
    a(f"v_rcp_f32 v{xf+12}, v{xf+12}")
    a(f"s_mul_i32 s{sT[6]}, s{sK}, 1040")
    a(f"s_add_u32 s{sT[6]}, s{sT[6]}, {L_XN}")
    a(f"v_add_u32 v{xf+15}, s{sT[6]}, v{vL16}")
    for i in range(8): a(f"v_mul_f32 v{xf+i}, v{xf+i}, v{xf+12}")
    for i in range(4): a(f"v_cvt_pk_bf16_f32 v{xf+8+i}, v{xf+2*i}, v{xf+2*i+1}")
    a(f"ds_write_b128 v{xf+15}, {v(xf+8,4)}")

a(f"""
s_cmp_ge_u32 s2, 256
s_cbranch_scc1 L_end
{"s_memrealtime s[94:95]" if DBGT else ""}
{"s_memtime s[96:97]" if DBGT else ""}
{"s_load_dwordx2 s[98:99], s[0:1], 88" if DBGT else ""}
s_load_dwordx2 s[{R_WQ}:{R_WQ+1}], s[0:1], 16
s_load_dwordx2 s[{R_CKV}:{R_CKV+1}], s[0:1], 8
s_load_dwordx2 s[{R_X}:{R_X+1}], s[0:1], 0
s_load_dwordx2 s[{R_WS}:{R_WS+1}], s[0:1], 96
s_load_dwordx2 s[{R_WUK}:{R_WUK+1}], s[0:1], 24
s_load_dwordx2 s[{R_WUV}:{R_WUV+1}], s[0:1], 32
s_load_dwordx2 s[{R_WO}:{R_WO+1}], s[0:1], 40
s_load_dwordx2 s[{R_WG}:{R_WG+1}], s[0:1], 56
s_load_dwordx2 s[{R_WU}:{R_WU+1}], s[0:1], 64
s_load_dwordx2 s[{R_WD}:{R_WD+1}], s[0:1], 72
s_load_dwordx2 s[{R_OUT}:{R_OUT+1}], s[0:1], 80
v_lshrrev_b32 v{t0}, 6, v0
v_and_b32 v{vL}, 63, v0
v_and_b32 v{vN}, 15, v0
v_readfirstlane_b32 s{sW}, v{t0}
v_bfe_u32 v{vG}, v0, 4, 2
v_lshlrev_b32 v{t0}, 2, v{vL}
v_add_u32 v{t0}, {L_FL}, v{t0}
v_mov_b32 v{t3}, 0
ds_write_b32 v{t0}, v{t3}
v_lshlrev_b32 v{t0}, 3, v{vN}
v_add_u32 v{t0}, {L_MX}, v{t0}
v_mov_b32 v{t2}, 0xff800000
ds_write2_b32 v{t0}, v{t2}, v{t3} offset0:0 offset1:1
v_mov_b32 v{vFL}, {L_FL}
v_mov_b32 v{vONE}, 1
v_lshlrev_b32 v{vL16}, 4, v{vL}
""")
if PROF: a(f"v_mov_b32 v{vTSA}, 0")
for r, nb in [(R_WQ, 4 << 20), (R_CKV, 16 << 20), (R_X, 4096), (R_WS, WS_USED), (R_WUK, 4 << 20), (R_WUV, 4 << 20), (R_WO, 4 << 20),
              (R_WG, 512 * 1376 * 2), (R_WU, 512 * 1376 * 2), (R_WD, 512 * 1376 * 2), (R_OUT, 4096), (R_PF, 86 * 128)]:
    a(f"s_mov_b32 s{r+2}, {nb}")
    a(f"s_mov_b32 s{r+3}, 0x20000")
a(f"""
s_and_b32 s{sX}, s2, 7
s_lshr_b32 s{sY}, s2, 3
s_lshr_b32 s{sYP}, s2, 4
s_and_b32 s{sT[0]}, s{sY}, 1
s_xor_b32 s{sHGB}, s{sT[0]}, 1
s_lshl_b32 s{sH}, s{sT[0]}, 4
s_lshl_b32 s{sT[1]}, s{sX}, 1
s_add_u32 s{sH}, s{sH}, s{sT[1]}
s_and_b32 s{sT[1]}, s{sYP}, 1
s_add_u32 s{sH}, s{sH}, s{sT[1]}
s_bfe_u32 s{sCQ}, s{sY}, 0x20002
s_lshr_b32 s{sMH}, s{sY}, 4
s_lshl_b32 s{sCH}, s{sX}, 4
s_add_u32 s{sCH}, s{sCH}, s{sYP}
s_and_b32 s{sHA}, s{sYP}, 3
s_lshl_b32 s{sT[1]}, s{sX}, 2
s_add_u32 s{sHA}, s{sHA}, s{sT[1]}
s_lshr_b32 s{sJQ}, s{sYP}, 2
s_mov_b32 s{sSELLO}, 0x05040100
s_mov_b32 s{sSELHI}, 0x07060302
s_mov_b32 s{sM4}, 0x000f000f
s_mov_b32 s{sM4+1}, 0x000f000f
s_mov_b32 s{sM8}, 0x00ff00ff
s_mov_b32 s{sM8+1}, 0x00ff00ff
s_mul_i32 s{sPHI}, s{sX}, 11
s_add_u32 s{sPHI}, s{sPHI}, s{sYP}
s_cmp_lt_u32 s{sYP}, 11
s_cselect_b32 s{sISF}, s{sT[0]}, 0
s_cmp_lt_u32 s{sPHI}, 86
s_cselect_b32 s{sISF}, s{sISF}, 0
s_cmp_ge_u32 s{sYP}, 12
s_cselect_b32 s{sISR}, s{sHGB}, 0
s_sub_u32 s{sRHO}, s{sYP}, 12
s_lshl_b32 s{sRHO}, s{sRHO}, 3
s_add_u32 s{sRHO}, s{sRHO}, s{sX}
s_and_b32 s{sK}, s{sW}, 3
s_waitcnt lgkmcnt(0)
""")
stamp("start")
a(f"""
s_load_dword s{sEP}, s[{R_WS}:{R_WS+1}], {EPOCH_OFF}
s_barrier
s_cmp_ge_u32 s{sW}, 6
s_cbranch_scc1 L_wave67
s_cmp_ge_u32 s{sW}, 4
s_cbranch_scc1 L_wave45
s_setprio 2
s_cmp_eq_u32 s{sHGB}, 0
s_cbranch_scc1 L_freeC
""")

WQ, FR, AC, BX, UK = 32, 160, 192, 224, 32
vWQ, vUK = vT[4], vT[5]
a(f"""
v_lshlrev_b32 v{vWQ}, 16, v{vG}
v_lshl_add_u32 v{vWQ}, v{vN}, 4, v{vWQ}
s_lshl_b32 s{sT[0]}, s{sW}, 20
s_lshl_b32 s{sT[1]}, s{sHA}, 8
s_add_u32 s{sT[0]}, s{sT[0]}, s{sT[1]}
""")
def wq_kstep(u):
    a(f"""
    s_add_u32 s{sT[2]}, s{sJQ}, {u}
    s_and_b32 s{sT[2]}, s{sT[2]}, 3
    s_lshl_b32 s{sT[2]}, s{sT[2]}, 18
    s_add_u32 s{sT[3]}, s{sT[2]}, s{sT[0]}
    """)
    for e in range(8):
        if e: a(f"s_add_u32 s{sT[3]}, s{sT[3]}, 8192")
        a(f"buffer_load_dwordx4 {v(WQ+4*(8*u+e),4)}, v{vWQ}, {srd(R_WQ)}, s{sT[3]} offen nt")
def q_kstep(u):
    for jj in range(8):
        for p in range(4):
            sel = sSELHI if (jj & 1) else sSELLO
            a(f"v_perm_b32 v{FR+4*jj+p}, v{WQ+4*(8*u+2*p+1)+(jj>>1)}, v{WQ+4*(8*u+2*p)+(jj>>1)}, s{sel}")
        if jj >= 1: mfma(AC+4*(jj-1), FR+4*(jj-1), BX+4*u, u == 0)
    mfma(AC+28, FR+28, BX+4*u, u == 0)
wq_kstep(0)
vQPw, vQPr, vQ16w, vQ16r, vQAp = vT[6], vT[7], vT[8], vT[9], vT[10]
a(f"""
s_lshl_b32 s{sT[4]}, s{sW}, 5
s_lshl_b32 s{sT[5]}, s{sJQ}, 7
s_add_u32 s{sT[4]}, s{sT[4]}, s{sT[5]}
s_lshl_b32 s{sT[4]}, s{sT[4]}, 13
s_add_u32 s{sT[4]}, s{sT[4]}, s{sT[1]}
s_add_u32 s{sT[5]}, s{sT[4]}, {16*8192}
v_lshlrev_b32 v{vUK}, 13, v{vN}
v_lshl_add_u32 v{vUK}, v{vG}, 4, v{vUK}
v_and_b32 v{t1}, 3, v{vN}
v_mul_u32_u24 v{t0}, 1040, v{t1}
v_lshl_add_u32 v{t0}, v{vG}, 4, v{t0}
s_lshl_b32 s{sT[6]}, s{sW}, 8
s_add_u32 s{sT[6]}, s{sT[6]}, {L_XN}
v_add_u32 v{t0}, s{sT[6]}, v{t0}
s_lshl_b32 s{sT[6]}, s{sW}, 11
s_add_u32 s{sT[6]}, s{sT[6]}, {L_QS}
v_lshlrev_b32 v{vQPw}, 6, v{vG}
v_lshl_add_u32 v{vQ16r}, v{t1}, 4, v{vQPw}
v_add_u32 v{vQPw}, s{sT[6]}, v{vQ16r}
v_add_u32 v{vQ16r}, {L_Q16}, v{vQ16r}
s_lshl_b32 s{sT[6]}, s{sW}, 9
s_add_u32 s{sT[6]}, s{sT[6]}, {L_QS}
v_lshlrev_b32 v{vQPr}, 2, v{vL}
v_add_u32 v{vQPr}, s{sT[6]}, v{vQPr}
v_lshlrev_b32 v{vQ16w}, 6, v{t1}
v_and_b32 v{t2}, 12, v{vL}
v_lshl_add_u32 v{vQ16w}, v{t2}, 2, v{vQ16w}
v_lshl_add_u32 v{vQ16w}, v{vG}, 8, v{vQ16w}
s_lshl_b32 s{sT[6]}, s{sW}, 2
s_add_u32 s{sT[6]}, s{sT[6]}, {L_Q16}
v_add_u32 v{vQ16w}, s{sT[6]}, v{vQ16w}
v_lshlrev_b32 v{vQAp}, 16, v{t1}
v_lshl_add_u32 v{vQAp}, v{vG}, 4, v{vQAp}
v_bfe_u32 v{t2}, v{vN}, 2, 1
v_lshl_add_u32 v{vQAp}, v{t2}, 6, v{vQAp}
v_cmp_eq_u32 s[{sC2}:{sC2+1}], 1, v{t2}
s_lshl_b32 s{sT[6]}, s{sHA}, 11
s_lshl_b32 s{sT[7]}, s{sJQ}, 9
s_add_u32 s{sT[6]}, s{sT[6]}, s{sT[7]}
s_lshl_b32 s{sT[7]}, s{sW}, 7
s_add_u32 s{sT[6]}, s{sT[6]}, s{sT[7]}
s_add_u32 s{sT[6]}, s{sT[6]}, {QA_OFF}
s_mov_b32 s{sT[7]}, {f32(math.log2(math.e) / math.sqrt(128.0))}
""")
for u in range(4):
    a(f"""
    s_add_u32 s{sT[2]}, s{sJQ}, {u}
    s_and_b32 s{sT[2]}, s{sT[2]}, 3
    s_lshl_b32 s{sT[2]}, s{sT[2]}, 6
    v_add_u32 v{vT[11+u]}, s{sT[2]}, v{t0}
    """)
wq_kstep(1)
wq_kstep(2)
def spec_xn():
    for u in range(4):
        a(f"ds_read_b128 {v(BX+4*u,4)}, v{vT[11+u]}")
wq_kstep(3)
stamp("wq issued")
lds_wait(F_XN, 4, spec_xn)
a(f"s_add_u32 s{sEP}, s{sEP}, 1")
a("s_waitcnt vmcnt(24)")
q_kstep(0)
for mt in range(2):
    for t in range(4):
        a(f"buffer_load_dwordx4 {v(UK+16*mt+4*t,4)}, v{vUK}, {srd(R_WUK)}, s{sT[4+mt]} offen offset:{64*t} nt")
lds_signal(F_WQI)
for u in range(1, 4):
    a(f"s_waitcnt vmcnt({(3-u)*8 + 8})")
    q_kstep(u)
stamp("q partial")
a(f"s_mov_b64 exec, s[{sM4}:{sM4+1}]")
for jj in range(8):
    a(f"ds_write_b128 v{vQPw}, {v(AC+4*jj,4)} offset:{256*jj}")
lds_signal(F_QP)
def spec_qp():
    for k in range(4):
        a(f"ds_read2st64_b32 {v(FR+2*k,2)}, v{vQPr} offset0:{8*k} offset1:{8*k+1}")
lds_wait(F_QP, 4, spec_qp)
stamp("qp done")
a(f"""
v_add_f32 v{FR}, v{FR}, v{FR+2}
v_add_f32 v{FR+1}, v{FR+1}, v{FR+3}
v_add_f32 v{FR+4}, v{FR+4}, v{FR+6}
v_add_f32 v{FR+5}, v{FR+5}, v{FR+7}
v_add_f32 v{FR}, v{FR}, v{FR+4}
v_add_f32 v{FR+1}, v{FR+1}, v{FR+5}
v_cvt_pk_bf16_f32 v{FR}, v{FR}, v{FR+1}
ds_write_b32 v{vQ16w}, v{FR}
""")
lds_signal(F_Q16)
a(f"v_mov_b32 v{AC+9}, s{sEP}")
a(f"v_mov_b32 v{AC+11}, s{sEP}")
def spec_q16():
    a(f"ds_read_b32 v{t3}, v{vFL} offset:{F_CLR}")
    for t in range(4):
        a(f"ds_read_b128 {v(FR+8+4*t,4)}, v{vQ16r} offset:{256*t}")
lds_wait(F_Q16, 4, spec_q16)
stamp("q16 done")
a("s_waitcnt vmcnt(0)")
stamp("uk landed")
for t in range(4):
    for mt in range(2):
        mfma(AC+4*mt, UK+16*mt+4*t, FR+8+4*t, t == 0)
a(f"""
v_readfirstlane_b32 s{sACC}, v{t3}
s_cmp_ge_u32 s{sACC}, 2
s_cbranch_scc1 L_clrok
""")
lds_wait(F_CLR, 2)
a("L_clrok:")
for r in range(4):
    a(f"v_cndmask_b32 v{AC+r}, v{AC+r}, v{AC+4+r}, s[{sC2}:{sC2+1}]")
for r in range(4):
    a(f"v_mul_f32 v{AC+r}, s{sT[7]}, v{AC+r}")
a(f"""
v_cvt_pk_bf16_f32 v{AC+8}, v{AC}, v{AC+1}
v_cvt_pk_bf16_f32 v{AC+10}, v{AC+2}, v{AC+3}
s_mov_b64 exec, s[{sM8}:{sM8+1}]
buffer_store_dwordx4 {v(AC+8,4)}, v{vQAp}, {srd(R_WS)}, s{sT[6]} offen sc1
s_mov_b64 exec, -1
""")
stamp("q_abs published")
a("s_branch L_phaseB")

a("L_freeC:")
if UKPF:
    a(f"""
    v_lshrrev_b32 v{t0}, 1, v{vL}
    v_lshlrev_b32 v{t0}, 13, v{t0}
    v_and_b32 v{t1}, 1, v{vL}
    v_lshl_add_u32 v{t0}, v{t1}, 7, v{t0}
    s_lshl_b32 s{sT[4]}, s{sW}, 5
    s_lshl_b32 s{sT[5]}, s{sJQ}, 7
    s_add_u32 s{sT[4]}, s{sT[4]}, s{sT[5]}
    s_lshl_b32 s{sT[4]}, s{sT[4]}, 13
    s_lshl_b32 s{sT[1]}, s{sHA}, 8
    s_add_u32 s{sT[4]}, s{sT[4]}, s{sT[1]}
    buffer_load_dword v{vDUM}, v{t0}, {srd(R_WUK)}, s{sT[4]} offen nt
    """)
lds_wait(F_CLR, 2, sleep=4)
a(f"s_add_u32 s{sEP}, s{sEP}, 1")

a("L_phaseB:")
GQ, QF, SA0, SA1, SD, vM = 64, 32, 96, 160, 224, 232
vX0 = vT[4]
vQa, vQb, vQw, vEP, vTF, vPV, vO = vT[8], vT[9], vT[10], vT[11], vT[12], vT[13], vT[14]
vSA = vT[15]
a(f"""
v_lshlrev_b32 v{vQa}, 4, v0
v_add_u32 v{vQb}, 16384, v{vQa}
s_lshr_b32 s{sT[6]}, s{sCH}, 5
s_lshl_b32 s{sT[6]}, s{sT[6]}, 1
s_add_u32 s{sT[6]}, s{sT[6]}, s{sHGB}
s_lshl_b32 s{sT[6]}, s{sT[6]}, 15
s_add_u32 s{sT[6]}, s{sT[6]}, {QA_OFF}
s_add_u32 s{sT[7]}, s{sT[6]}, 4096
s_add_u32 s{sT[8]}, s{sT[6]}, 8192
s_add_u32 s{sT[9]}, s{sT[6]}, 12288
""")
def qa_loads():
    for i in range(8):
        a(f"buffer_load_dwordx4 {v(GQ+4*i,4)}, v{vQb if i >= 4 else vQa}, {srd(R_WS)}, s{sT[6+(i&3)]} offen sc1")
a(f"""
v_and_b32 v{vQw}, 127, v0
v_lshlrev_b32 v{vQw}, 3, v{vQw}
s_lshr_b32 s{sT[10]}, s{sW}, 1
s_lshl_b32 s{sT[5]}, s{sT[10]}, 5
v_xor_b32 v{vQw}, s{sT[5]}, v{vQw}
s_lshl_b32 s{sT[10]}, s{sT[10]}, 10
s_add_u32 s{sT[10]}, s{sT[10]}, {L_QS}
v_add_u32 v{vQw}, s{sT[10]}, v{vQw}
v_mov_b32 v{vEP}, s{sEP}
v_lshrrev_b32 v{t0}, 3, v{vN}
v_lshlrev_b32 v{t1}, 2, v{t0}
v_and_b32 v{t2}, 7, v{vN}
v_xor_b32 v{t2}, v{t2}, v{t1}
v_lshl_add_u32 v{t2}, v{t2}, 1, v{t0}
v_xor_b32 v{t2}, v{t2}, v{vG}
v_lshlrev_b32 v{t2}, 4, v{t2}
v_lshl_add_u32 v{t2}, v{vN}, 10, v{t2}
s_lshl_b32 s{sT[0]}, s{sW}, 15
v_add_u32 v{vSA}, s{sT[0]}, v{t2}
v_add_u32 v{vX0}, {L_QS}, v{t2}
""")
for tt in range(1, 4):
    a(f"v_xor_b32 v{vSA+tt}, {64*tt}, v{vSA}")
    a(f"v_xor_b32 v{vX0+tt}, {64*tt}, v{vX0}")
a(f"""
s_lshl_b32 s{sT[1]}, s{sW}, 3
v_add_u32 v{vTF}, s{sT[1]}, v{vFL}
v_bfe_u32 v{t0}, v{vL}, 2, 4
v_lshrrev_b32 v{t1}, 3, v{t0}
v_lshlrev_b32 v{t2}, 2, v{t1}
v_and_b32 v{t3}, 7, v{t0}
v_xor_b32 v{t3}, v{t3}, v{t2}
v_lshl_add_u32 v{t3}, v{t3}, 1, v{t1}
v_bfe_u32 v{t1}, v{vL}, 1, 1
v_xor_b32 v{t3}, v{t3}, v{t1}
v_lshlrev_b32 v{t3}, 4, v{t3}
v_and_b32 v{t1}, 1, v{vL}
v_lshl_add_u32 v{t3}, v{t1}, 3, v{t3}
v_lshl_add_u32 v{t3}, v{t0}, 10, v{t3}
s_lshl_b32 s{sT[0]}, s{sW}, 8
v_add_u32 v{vPV}, s{sT[0]}, v{t3}
v_and_b32 v{t0}, 1, v{vG}
v_lshlrev_b32 v{t0}, 5, v{t0}
v_lshrrev_b32 v{t1}, 1, v{vG}
v_lshl_add_u32 v{t0}, v{t1}, 4, v{t0}
v_and_b32 v{t1}, 7, v{vN}
v_lshl_add_u32 v{vO}, v{t1}, 17, v{t0}
v_lshrrev_b32 v{t1}, 3, v{vN}
v_lshl_add_u32 v{vO}, v{t1}, 6, v{vO}
s_lshl_b32 s{sO}, s{sHGB}, 21
s_lshl_b32 s{sT[4]}, s{sCH}, 8
s_add_u32 s{sO}, s{sO}, s{sT[4]}
s_lshl_b32 s{sT[4]}, s{sW}, 15
s_add_u32 s{sO}, s{sO}, s{sT[4]}
s_add_u32 s{sO}, s{sO}, {O_OFF}
s_add_u32 s{sT[3]}, s{sO}, {8 << 17}
""")
PAD = list(range(240, 256))
for mt in range(8):
    a(f"v_xor_b32 v{PAD[mt]}, {32*mt}, v{vPV}")
    a(f"v_add_u32 v{PAD[8+mt]}, 0x10000, v{PAD[mt]}")
a("s_waitcnt vmcnt(0)")
a(f"""
s_cmp_eq_u32 s{sHGB}, 0
s_cbranch_scc1 L_noq0
""")
qa_loads()
a("L_noq0:")
lds_wait(F_TILE, 1, base=vTF, sleep=1)
for t in range(16):
    a(f"ds_read_b128 {v(SA0+4*t,4)}, v{vSA+(t&3)} offset:{(t>>2)*256}")
lds_wait(F_TILE + 4, 1, base=vTF, sleep=1)
for t in range(16):
    a(f"ds_read_b128 {v(SA1+4*t,4)}, v{vSA+(t&3)} offset:{16384+(t>>2)*256}")
stamp("tiles read")
a(f"""
s_cmp_eq_u32 s{sHGB}, 1
s_cbranch_scc1 L_qgo
""")
lds_wait(F_GO, 2, sleep=1)
a("L_qgo:")
a(f"""
s_mov_b32 s{sCNT}, 0
s_cmp_eq_u32 s{sHGB}, 1
s_cbranch_scc1 L_pollq_chk
""")
a("L_pollq:")
qa_loads()
a("L_pollq_chk:")
for i in range(8):
    a(f"s_waitcnt vmcnt({7-i})")
    if i == 0: a(f"v_xor_b32 v{t2}, v{GQ+1}, v{vEP}")
    else: a(f"v_bitop3_b32 v{t2}, v{t2}, v{GQ+4*i+1}, v{vEP} bitop3:0xf6")
    a(f"v_bitop3_b32 v{t2}, v{t2}, v{GQ+4*i+3}, v{vEP} bitop3:0xf6")
a(f"v_cmp_ne_u32 vcc, 0, v{t2}")
poll_tail("L_pollq", QSLEEP)
cstamp("qa retries")
stamp("q_abs gathered")
for i in range(8):
    if i: a(f"v_xor_b32 v{t2}, {(fsw(2*i) << 4) | (i << 11)}, v{vQw}")
    a(f"ds_write2_b32 v{t2 if i else vQw}, v{GQ+4*i}, v{GQ+4*i+2} offset0:0 offset1:1")
lds_signal(F_QS)
a(f"""
v_lshlrev_b32 v{t0}, 3, v{vN}
v_add_u32 v{t0}, {L_MX}, v{t0}
s_lshl_b32 s{sT[0]}, s{sW}, 10
s_add_u32 s{sT[0]}, s{sT[0]}, {L_PX}
v_add_u32 v{t2}, s{sT[0]}, v{vL16}
v_add_u32 v{t3}, {L_PX}, v{vL16}
""")
def spec_qf():
    for t in range(4):
        a(f"ds_read_b128 {v(QF+4*t,4)}, v{vX0+(t&3)} offset:{(t>>2)*256}")
lds_wait(F_QS, 4, spec_qf)
for t in range(4, 16):
    a(f"ds_read_b128 {v(QF+4*t,4)}, v{vX0+(t&3)} offset:{(t>>2)*256}")
for t in range(16):
    if t >= 4: a(f"s_waitcnt lgkmcnt({15-t})")
    mfma(SD, SA0+4*t, QF+4*t, t == 0)
    mfma(SD+4, SA1+4*t, QF+4*t, t == 0)
a(f"""
v_max3_f32 v{t1}, v{SD}, v{SD+1}, v{SD+2}
v_max_f32 v{t1}, v{t1}, v{SD+3}
v_max3_f32 v{t1}, v{t1}, v{SD+4}, v{SD+5}
v_max3_f32 v{t1}, v{t1}, v{SD+6}, v{SD+7}
ds_max_f32 v{t0}, v{t1}
ds_add_u32 v{t0}, v{vONE} offset:4
""")
PVA, PB, OD, OS, ON = 32, 160, 176, 208, 224
lp, dn = a.newlabel("Lm"), a.newlabel("Lmd")
a(f"s_mov_b32 s{sCNT}, 0")
a.label(lp)
a(f"""
ds_read_b64 {v(vM,2)}, v{t0}
s_waitcnt lgkmcnt(0)
v_cmp_ne_u32 vcc, 16, v{vM+1}
s_cmp_eq_u64 vcc, 0
s_cbranch_scc1 {dn}
s_add_u32 s{sCNT}, s{sCNT}, 1
s_cmp_lt_u32 s{sCNT}, {LSPIN_MAX}
s_cbranch_scc1 {lp}
""")
a.label(dn)
stamp("S done")
def pv_read(u, mt):
    for vv in range(2):
        tile = 2 * u + vv
        ad = PAD[mt] if tile < 4 else PAD[8 + mt]
        a(f"ds_read_b64_tr_b16 {v(PVA+16*mt+4*u+2*vv,2)}, v{ad} offset:{(tile&3)*16384}")
a(f"v_ceil_f32 v{vM}, v{vM}")
for mt in range(4): pv_read(0, mt)
for r in range(8): a(f"v_sub_f32 v{SD+r}, v{SD+r}, v{vM}")
for r in range(8): a(f"v_exp_f32 v{SD+r}, v{SD+r}")
for k in range(4): a(f"v_cvt_pk_bf16_f32 v{PB+k}, v{SD+2*k}, v{SD+2*k+1}")
a(f"ds_write_b128 v{t2}, {v(PB,4)}")
lds_signal(F_P)
for mt in range(4, 8): pv_read(0, mt)
for mt in range(8): pv_read(1, mt)
def spec_p():
    for u in range(4):
        a(f"ds_read_b128 {v(PB+4*u,4)}, v{t3} offset:{1024*u}")
lds_wait(F_P, 4, spec_p)
stamp("P done")
for u in range(4):
    for mt in range(8):
        if u < 2:
            pv_read(u + 2, mt)
        else:
            left = 32 - 2 * ((u - 2) * 8 + mt + 1)
            if left <= 15: a(f"s_waitcnt lgkmcnt({left})")
            elif (u, mt) == (2, 0): a("s_waitcnt lgkmcnt(15)")
        mfma(OD+4*mt, PVA+16*mt+4*u, PB+4*u, u == 0)
lds_signal(F_BD)
stamp("PV done")
for i in range(4): a(f"v_mov_b32 v{ON+i}, 0x3f803f80")
for u in range(4): mfma(ON+4, ON, PB+4*u, u == 0)
CK = vM + 2
for pp in range(2):
    for p in (2 * pp, 2 * pp + 1):
        for k in range(2):
            mt = 2 * p + k
            a(f"v_cvt_pk_bf16_f32 v{OS+2*mt}, v{OD+4*mt}, v{OD+4*mt+1}")
            a(f"v_cvt_pk_bf16_f32 v{OS+2*mt+1}, v{OD+4*mt+2}, v{OD+4*mt+3}")
        a(f"v_permlane16_swap_b32 v{OS+4*p}, v{OS+4*p+2}")
        a(f"v_permlane16_swap_b32 v{OS+4*p+1}, v{OS+4*p+3}")
    X, Y, T = OS + 8 * pp, OS + 8 * pp + 4, OD + 16 * pp
    for k in range(0, 8, 2):
        if pp == 0 and k == 0: a(f"v_add_u32 v{CK}, v{X}, v{X+1}")
        else: a(f"v_add3_u32 v{CK}, v{CK}, v{X+k}, v{X+k+1}")
    for d in range(4):
        a(f"v_mov_b32 v{T+d}, v{X+d}")
    for d in range(4):
        a(f"v_mov_b32_dpp v{T+d}, v{Y+d} row_ror:8 row_mask:0xf bank_mask:0xc")
    a(f"buffer_store_dwordx4 {v(T,4)}, v{vO}, {srd(R_WS)}, s{sO} offen offset:{128*pp} sc1")
    for d in range(4):
        a(f"v_mov_b32_dpp v{Y+d}, v{X+d} row_ror:8 row_mask:0xf bank_mask:0x3")
    a(f"buffer_store_dwordx4 {v(Y,4)}, v{vO}, {srd(R_WS)}, s{sT[3]} offen offset:{128*pp} sc1")
a(f"""
s_lshl_b32 s{sT[4]}, s{sHGB}, 7
s_add_u32 s{sT[4]}, s{sT[4]}, s{sCH}
s_lshl_b32 s{sT[4]}, s{sT[4]}, 2
s_add_u32 s{sT[4]}, s{sT[4]}, s{sW}
s_lshl_b32 s{sT[4]}, s{sT[4]}, 8
s_add_u32 s{sT[4]}, s{sT[4]}, {ML_OFF}
v_mov_b32 v{t0}, v{CK}
v_mov_b32 v{vM+1}, v{ON+4}
v_permlane32_swap_b32 v{CK}, v{t0}
v_add_u32 v{CK}, v{CK}, v{t0}
v_mov_b32 v{t0}, v{CK}
v_xor_b32 v{t1}, s{sEP}, v{vM}
v_permlane16_swap_b32 v{CK}, v{t0}
v_add3_u32 v{CK}, v{CK}, v{t0}, s{sEP}
v_xor_b32 v{vM+3}, v{t1}, v{vM+1}
s_mov_b64 exec, 0xffff
buffer_store_dwordx4 {v(vM,4)}, v{vL16}, {srd(R_WS)}, s{sT[4]} offen sc1
s_mov_b64 exec, -1
""")
stamp("O published")

HD, HM, MK, AW, CD = 32, 64, 72, 76, 84
mM, wA, wB, wb, ckS, ckE, vCLw, vHd2 = vT[4], vT[5], vT[6], vT[7], vT[8], vT[9], vT[10], vT[11]
a(f"""
v_lshlrev_b32 v{t0}, 8, v{vG}
v_lshl_add_u32 v{t0}, v{vN}, 4, v{t0}
v_add_u32 v{vHd2}, 4096, v{t0}
s_lshl_b32 s{sT[0]}, s{sH}, 2
s_add_u32 s{sT[0]}, s{sT[0]}, s{sCQ}
s_lshl_b32 s{sT[0]}, s{sT[0]}, 15
s_lshl_b32 s{sT[2]}, s{sW}, 13
s_add_u32 s{sT[0]}, s{sT[0]}, s{sT[2]}
s_add_u32 s{sT[0]}, s{sT[0]}, {O_OFF}
v_and_b32 v{t1}, 7, v{vN}
v_lshrrev_b32 v{t2}, 3, v{vN}
v_xor_b32 v{t2}, v{t2}, v{vG}
v_lshl_add_u32 v{t1}, v{t1}, 2, v{t2}
v_lshlrev_b32 v{t1}, 10, v{t1}
v_xor_b32 v{t2}, 2048, v{t1}
s_lshr_b32 s{sT[4]}, s{sH}, 4
s_lshl_b32 s{sT[4]}, s{sT[4]}, 2
s_add_u32 s{sT[4]}, s{sT[4]}, s{sW}
s_lshl_b32 s{sT[4]}, s{sT[4]}, 15
s_and_b32 s{sT[5]}, s{sH}, 15
s_lshl_b32 s{sT[5]}, s{sT[5]}, 4
s_add_u32 s{sT[4]}, s{sT[4]}, s{sT[5]}
s_lshl_b32 s{sT[5]}, s{sCQ}, 8
s_add_u32 s{sT[4]}, s{sT[4]}, s{sT[5]}
s_add_u32 s{sT[4]}, s{sT[4]}, {ML_OFF}
v_and_b32 v{t3}, 1, v{vN}
v_lshlrev_b32 v{t3}, 4, v{t3}
v_mov_b32 v{mM}, 0xffff
v_lshlrev_b32 v{t3}, v{t3}, v{mM}
v_lshrrev_b32 v{mM}, 1, v{vN}
""")
for d in range(4):
    a(f"v_cmp_eq_u32 vcc, {d}, v{mM}")
    a(f"v_cndmask_b32 v{MK+d}, 0, v{t3}, vcc")
a(f"""
s_mul_i32 s{sT[5]}, s{sW}, 272
s_add_u32 s{sT[5]}, s{sT[5]}, {L_CL}
v_lshlrev_b32 v{vCLw}, 4, v{vN}
v_lshl_add_u32 v{vCLw}, v{vG}, 3, v{vCLw}
v_add_u32 v{vCLw}, s{sT[5]}, v{vCLw}
s_mov_b32 s{sT[6]}, 0x03020302
""")
if OACK: a("s_waitcnt vmcnt(0)")
stamp("O acked")
a(f"s_mov_b32 s{sCNT}, 0")
a("L_pollm:")
a(f"""
buffer_load_dwordx4 {v(HM,4)}, v{t1}, {srd(R_WS)}, s{sT[4]} offen sc1
buffer_load_dwordx4 {v(HM+4,4)}, v{t2}, {srd(R_WS)}, s{sT[4]} offen sc1
s_waitcnt vmcnt(0)
v_bitop3_b32 v{ckE}, v{HM}, v{HM+1}, v{HM+3} bitop3:0x96
v_bitop3_b32 v{t3}, v{HM+4}, v{HM+5}, v{HM+7} bitop3:0x96
v_cmp_ne_u32 vcc, s{sEP}, v{ckE}
v_cmp_ne_u32 s[{sACC}:{sACC+1}], s{sEP}, v{t3}
s_or_b64 vcc, s[{sACC}:{sACC+1}], vcc
""")
poll_tail("L_pollm", MLSLEEP)
cstamp("ml retries")
stamp("ML ok")
for t in range(8):
    a(f"buffer_load_dwordx4 {v(HD+4*t,4)}, v{vHd2 if t >= 4 else t0}, {srd(R_WS)}, s{sT[0]} offen offset:{1024*(t&3)} sc1")
a(f"""
v_max_f32 v{mM}, v{HM}, v{HM+4}
v_max_f32_dpp v{mM}, v{mM}, v{mM} row_ror:1 row_mask:0xf bank_mask:0xf
v_max_f32_dpp v{mM}, v{mM}, v{mM} row_ror:2 row_mask:0xf bank_mask:0xf
v_sub_u32 v{ckS}, s{sEP}, v{HM+2}
v_max_f32_dpp v{mM}, v{mM}, v{mM} row_ror:4 row_mask:0xf bank_mask:0xf
v_cndmask_b32 v{ckS}, 0, v{ckS}, s[{sM8}:{sM8+1}]
v_max_f32_dpp v{mM}, v{mM}, v{mM} row_ror:8 row_mask:0xf bank_mask:0xf
v_sub_f32 v{wA}, v{HM}, v{mM}
v_sub_f32 v{wB}, v{HM+4}, v{mM}
v_exp_f32 v{wA}, v{wA}
v_exp_f32 v{wB}, v{wB}
v_perm_b32 v{wb}, v{wA}, v{wA}, s{sT[6]}
v_mul_f32 v{wA}, v{wA}, v{HM+1}
v_fmac_f32 v{wA}, v{wB}, v{HM+5}
""")
sfts = [1, 2, 4, 8]
for t in range(8):
    aw = AW + 4 * (t & 1)
    for d in range(4):
        a(f"v_and_b32_dpp v{aw+d}, v{wb}, v{MK+d} row_newbcast:{t} row_mask:0xf bank_mask:0xf")
    if t < 4:
        a(f"v_add_f32_dpp v{wA}, v{wA}, v{wA} row_ror:{sfts[t]} row_mask:0xf bank_mask:0xf")
    if t == 4:
        a(f"v_rcp_f32 v{wA}, v{wA}")
    a(f"s_waitcnt vmcnt({7-t})")
    a(f"v_add3_u32 v{ckS}, v{ckS}, v{HD+4*t}, v{HD+4*t+1}")
    mfma(CD, aw, HD+4*t, t == 0)
    a(f"v_add3_u32 v{ckS}, v{ckS}, v{HD+4*t+2}, v{HD+4*t+3}")
for sft in sfts:
    a(f"v_add_u32_dpp v{ckS}, v{ckS}, v{ckS} row_ror:{sft} row_mask:0xf bank_mask:0xf")
a(f"v_cmp_ne_u32 vcc, 0, v{ckS}")
for r in range(4): a(f"v_mul_f32 v{CD+r}, v{CD+r}, v{wA}")
a(f"v_cvt_pk_bf16_f32 v{CD+4}, v{CD}, v{CD+1}")
a(f"v_cvt_pk_bf16_f32 v{CD+5}, v{CD+2}, v{CD+3}")
poll_tail("L_pollm")
cstamp("o retries")
a(f"""
s_mov_b32 exec_hi, 0
ds_write_b64 v{vCLw}, {v(CD+4,2)}
s_mov_b64 exec, 1
ds_add_u32 v{vFL}, v{vONE} offset:{F_CL}
s_mov_b64 exec, -1
s_setprio 0
""")
stamp("combined")
a(f"""
s_cmp_eq_u32 s{sISF}, 1
s_cbranch_scc1 L_ffn
s_cmp_eq_u32 s{sISR}, 0
s_cbranch_scc1 L_fin
""")

SEL, RD, RA, RS, vH = 96, 100, 116, 120, 128
vMo, vXv = vT[4], vT[5]
for d in range(4): a(f"v_and_b32 v{SEL+d}, 0x3f803f80, v{MK+d}")
a(f"""
v_and_b32 v{t0}, 0x23, v{vL}
v_bfe_u32 v{t1}, v{vL}, 2, 1
v_lshl_add_u32 v{t0}, v{t1}, 4, v{t0}
v_bfe_u32 v{t1}, v{vL}, 3, 2
v_lshl_add_u32 v{t0}, v{t1}, 2, v{t0}
v_lshlrev_b32 v{vMo}, 1, v{t0}
s_lshl_b32 s{sT[0]}, s{sRHO}, 7
buffer_load_ushort v{vXv}, v{vMo}, {srd(R_X)}, s{sT[0]} offen
v_lshlrev_b32 v{t0}, 4, v0
s_lshl_b32 s{sT[1]}, s{sRHO}, 14
s_add_u32 s{sT[1]}, s{sT[1]}, {PA_OFF}
s_add_u32 s{sT[2]}, s{sT[1]}, 4096
s_add_u32 s{sT[3]}, s{sT[1]}, 8192
s_add_u32 s{sT[4]}, s{sT[1]}, 12288
s_lshl_b32 s{sT[5]}, s{sW}, 8
s_add_u32 s{sT[5]}, s{sT[5]}, {L_RED}
v_lshlrev_b32 v{t1}, 5, v{vN}
v_lshl_add_u32 v{t1}, v{vG}, 4, v{t1}
v_add_u32 v{t1}, s{sT[5]}, v{t1}
v_lshlrev_b32 v{t2}, 2, v{vL}
v_add_u32 v{t2}, {L_RED}, v{t2}
s_mul_i32 s{sT[5]}, s{sRHO}, 12288
s_add_u32 s{sT[5]}, s{sT[5]}, {PF_OFF}
s_add_u32 s{R_PF}, s{R_WS}, s{sT[5]}
s_addc_u32 s{R_PF+1}, s{R_WS+1}, 0
s_mov_b32 s{sT[6]}, 4096
s_mov_b32 s{sT[7]}, 8192
s_waitcnt vmcnt(0)
s_barrier
""")
def reduce_inbox(name, rs, sos):
    a(f"s_mov_b32 s{sCNT}, 0")
    a.label(name)
    for i, so in enumerate(sos):
        a(f"buffer_load_dwordx4 {v(RD+4*i,4)}, v{t0}, {srd(rs)}, {so} offen sc1")
    n = len(sos)
    for i in range(n):
        a(f"s_waitcnt vmcnt({n-1-i})")
        if i == 0: a(f"v_max3_u32 v{t3}, v{RD}, v{RD+1}, v{RD+2}")
        else: a(f"v_max3_u32 v{t3}, v{t3}, v{RD+4*i}, v{RD+4*i+1}")
        mfma(RA, SEL, RD+4*i, i == 0)
        if i == 0: a(f"v_max_u32 v{t3}, v{t3}, v{RD+3}")
        else: a(f"v_max3_u32 v{t3}, v{t3}, v{RD+4*i+2}, v{RD+4*i+3}")
    a(f"v_cmp_eq_u32 vcc, -1, v{t3}")
    poll_tail(name)
    for r in range(4):
        a(f"v_add_f32_dpp v{RA+r}, v{RA+r}, v{RA+r} row_ror:8 row_mask:0xf bank_mask:0xf")
    a(f"""
    s_mov_b64 exec, 0x00ff00ff
    ds_write_b128 v{t1}, {v(RA,4)}
    s_mov_b64 exec, -1
    s_waitcnt lgkmcnt(0)
    s_barrier
    """)
def final_sum():
    for k in range(2):
        a(f"ds_read2st64_b32 {v(RS+2*k,2)}, v{t2} offset0:{2*k} offset1:{2*k+1}")
    a("s_waitcnt lgkmcnt(0)")
    a(f"v_add_f32 v{RS}, v{RS}, v{RS+1}")
    a(f"v_add_f32 v{RS+2}, v{RS+2}, v{RS+3}")
    a(f"v_add_f32 v{RS}, v{RS}, v{RS+2}")
def pack_store(val, rs, so, pol):
    P = RS + 4
    a(f"v_mov_b32_dpp v{RS+2}, v{val} quad_perm:[1,1,3,3] row_mask:0xf bank_mask:0xf")
    a(f"v_cvt_pk_bf16_f32 v{P}, v{val}, v{RS+2}")
    a(f"v_mov_b32_dpp v{P+1}, v{P} quad_perm:[2,2,2,2] row_mask:0xf bank_mask:0xf")
    a(f"v_mov_b32_dpp v{P+2}, v{P} row_shl:8 row_mask:0xf bank_mask:0xf")
    a(f"v_mov_b32_dpp v{P+3}, v{P+1} row_shl:8 row_mask:0xf bank_mask:0xf")
    a(f"""
    s_mov_b32 exec_lo, 0x00110011
    s_mov_b32 exec_hi, 0x00110011
    buffer_store_dwordx4 {v(P,4)}, v{vMo}, {srd(rs)}, {so} offen{pol}
    s_mov_b64 exec, -1
    """)
reduce_inbox("L_pollr1", R_WS, [f"s{sT[1+i]}" for i in range(4)])
stamp("R1 gathered")
a(f"""
s_cmp_lg_u32 s{sW}, 0
s_cbranch_scc1 L_r1skip
""")
final_sum()
rne_bf16(RS, RS)
a(f"v_lshlrev_b32 v{vXv}, 16, v{vXv}")
a(f"v_add_f32 v{vH}, v{RS}, v{vXv}")
a(f"s_add_u32 s{sT[5]}, s{sT[0]}, {HG_OFF}")
pack_store(vH, R_WS, f"s{sT[5]}", " sc1")
rne_bf16(vH, vH)
a("L_r1skip:")
stamp("h published")
a("s_barrier")
a(f"s_sleep {opt('r2sleep', 32)}")
reduce_inbox("L_pollr2", R_PF, ["0", f"s{sT[6]}", f"s{sT[7]}"])
stamp("R2 gathered")
a(f"""
s_cmp_lg_u32 s{sW}, 0
s_cbranch_scc1 L_fin
""")
final_sum()
rne_bf16(RS, RS)
a(f"v_add_f32 v{vH}, v{RS}, v{vH}")
pack_store(vH, R_OUT, f"s{sT[0]}", "")
a(f"""
s_cmp_lg_u32 s{sRHO}, 0
s_cbranch_scc1 L_fin
v_mov_b32 v{t0}, {EPOCH_OFF}
v_mov_b32 v{t1}, s{sEP}
s_mov_b64 exec, 1
buffer_store_dword v{t1}, v{t0}, {srd(R_WS)}, 0 offen sc1
""")
if DBGT and opt("padto", 0):
    a(f"""
    L_padspin:
    s_memrealtime s[{sTS}:{sTS+1}]
    s_waitcnt lgkmcnt(0)
    s_sub_u32 s{sTS}, s{sTS}, s94
    s_cmp_lt_u32 s{sTS}, {opt("padto", 0)}
    s_cbranch_scc1 L_padspin
    """)
if DBGT:
    a(f"""
    s_memrealtime s[{sTS}:{sTS+1}]
    s_memtime s[{sC2}:{sC2+1}]
    s_waitcnt lgkmcnt(0)
    s_sub_u32 s{sTS}, s{sTS}, s94
    s_sub_u32 s{sC2}, s{sC2}, s96
    v_mov_b32 v{t2}, s{sTS}
    v_mov_b32 v{t3}, s{sC2}
    v_mov_b32 v{t0}, 0
    global_store_dwordx2 v{t0}, {v(t2,2)}, s[98:99]
    """)
a("""
s_mov_b64 exec, -1
s_branch L_fin
""")

a("L_ffn:")
FGU, FD, HB, GD, FXR, DD, DP, CSA = 96, 128, 144, 160, 172, 188, 220, 188
lds_wait(F_BD, 4)
if PFWHEN == 1:
    a("s_barrier")
a(f"""
v_lshrrev_b32 v{t0}, 1, v{vL}
v_and_b32 v{t1}, 0x13, v{t0}
v_bfe_u32 v{t2}, v{t0}, 2, 1
v_lshl_add_u32 v{t1}, v{t2}, 3, v{t1}
v_bfe_u32 v{t2}, v{t0}, 3, 1
v_lshl_add_u32 v{t1}, v{t2}, 2, v{t1}
v_mul_u32_u24 v{t1}, 2752, v{t1}
v_and_b32 v{t2}, 1, v{vL}
v_lshl_add_u32 v{t1}, v{t2}, 4, v{t1}
s_mul_i32 s{sT[0]}, s{sW}, {128*2752}
s_lshl_b32 s{sT[1]}, s{sPHI}, 5
s_add_u32 s{sT[0]}, s{sT[0]}, s{sT[1]}
s_lshl_b32 s{sT[2]}, s{sW}, 12
""")
for i in range(4):
    a(f"s_add_u32 m0, s{sT[2]}, {L_G + 1024*i}")
    if i: a(f"s_add_u32 s{sT[0]}, s{sT[0]}, {32*2752}")
    a(f"buffer_load_dwordx4 v{t1}, {srd(R_WG)}, s{sT[0]} offen lds")
    a(f"s_add_u32 m0, s{sT[2]}, {L_U + 1024*i}")
    a(f"buffer_load_dwordx4 v{t1}, {srd(R_WU)}, s{sT[0]} offen lds")
a(f"""
s_and_b32 s{sT[0]}, s{sW}, 1
s_lshl_b32 s{sT[0]}, s{sT[0]}, 7
v_xor_b32 v{t0}, s{sT[0]}, v{vL16}
s_lshl_b32 s{sT[0]}, s{sPHI}, 14
s_add_u32 s{sT[0]}, s{sT[0]}, s{sT[2]}
s_add_u32 m0, s{sT[2]}, {L_WD}
""")
for i in range(4):
    if i: a(f"v_xor_b32 v{t2}, {32*i}, v{t0}")
    a(f"buffer_load_dwordx4 v{t2 if i else t0}, {srd(R_WD)}, s{sT[0]} offen offset:{1024*i} lds")
vFXw, vFXr, vSq, vSm, vCs, csg, csu, vPF, vHl = vT[4], vT[5], vT[6], vT[7], vT[8], vT[9], vT[10], vT[11], vT[12]
a(f"""
v_bfe_u32 v{t0}, v{vL}, 2, 3
v_lshrrev_b32 v{t1}, 1, v{vG}
v_lshl_add_u32 v{t0}, v{t1}, 4, v{t0}
v_and_b32 v{t2}, 3, v{vL}
v_lshlrev_b32 v{t2}, 3, v{t2}
v_lshl_add_u32 v{t3}, v{t0}, 5, v{t2}
s_add_u32 s{sT[0]}, s{sT[2]}, {L_G}
v_add_u32 v{t3}, s{sT[0]}, v{t3}
v_bfe_u32 v{t0}, v{vL}, 2, 4
v_and_b32 v{t1}, 7, v{t0}
v_lshl_add_u32 v{t1}, v{t1}, 5, v{t2}
v_lshl_add_u32 v{t1}, v{t0}, 10, v{t1}
s_lshl_b32 s{sT[0]}, s{sW}, 8
s_add_u32 s{sT[0]}, s{sT[0]}, {L_WD}
v_add_u32 v{t1}, s{sT[0]}, v{t1}
v_lshlrev_b32 v{vHl}, 10, v{vN}
v_lshl_add_u32 v{vHl}, v{vG}, 4, v{vHl}
s_lshl_b32 s{sT[1]}, s{sW}, 8
s_add_u32 s{sT[1]}, s{sT[1]}, {HG_OFF}
s_mul_i32 s{sT[2]}, s{sW}, 640
s_add_u32 s{sT[2]}, s{sT[2]}, {L_FX}
v_lshlrev_b32 v{vFXw}, 6, v{vG}
v_lshl_add_u32 v{vFXw}, v{vN}, 4, v{vFXw}
v_add_u32 v{vFXw}, s{sT[2]}, v{vFXw}
v_and_b32 v{t2}, 3, v{vN}
v_lshlrev_b32 v{vFXr}, 4, v{t2}
v_lshl_add_u32 v{vFXr}, v{vG}, 6, v{vFXr}
v_lshrrev_b32 v{t0}, 2, v{vN}
v_lshl_add_u32 v{vFXr}, v{t0}, 2, v{vFXr}
v_add_u32 v{vFXr}, {L_FX}, v{vFXr}
v_mul_u32_u24 v{vSq}, 20, v{t2}
v_add_u32 v{vSq}, {L_FX + 512}, v{vSq}
v_lshlrev_b32 v{vSm}, 4, v{t2}
v_add_u32 v{vSm}, {L_FX + 576}, v{vSm}
v_lshlrev_b32 v{vCs}, 4, v{vG}
v_lshl_add_u32 v{vCs}, v{t0}, 2, v{vCs}
v_add_u32 v{vCs}, {L_CS}, v{vCs}
s_mov_b32 s{sT[4]}, 98304
v_mul_lo_u32 v{vPF}, v{vN}, s{sT[4]}
v_lshl_add_u32 v{vPF}, v{vG}, 4, v{vPF}
s_mul_i32 s{sT[4]}, s{sW}, 24576
s_lshl_b32 s{sT[5]}, s{sPHI}, 7
s_add_u32 s{sT[4]}, s{sT[4]}, s{sT[5]}
s_add_u32 s{sT[4]}, s{sT[4]}, {PF_OFF}
s_add_u32 s{sT[5]}, s{sT[4]}, 12288
""")
for i in range(16): a(f"v_mov_b32 v{HB+i}, 0x3f803f80")
a("s_waitcnt vmcnt(4)")
for mat in range(2):
    for t in range(4):
        for vv in range(2):
            a(f"ds_read_b64_tr_b16 {v(FGU+16*mat+4*t+2*vv,2)}, v{t3} offset:{16384*mat + (32*t+8*vv)*32}")
a("s_waitcnt lgkmcnt(0)")
for mat in range(2):
    for t in range(4):
        mfma(CSA+4*mat, FGU+16*mat+4*t, HB, t == 0)
a(f"""
s_lshl_b32 s{sT[0]}, s{sW}, 7
s_add_u32 s{sT[0]}, s{sT[0]}, {L_CS}
v_lshlrev_b32 v{t0}, 4, v{vG}
v_add_u32 v{t0}, s{sT[0]}, v{t0}
s_mov_b32 exec_lo, 0x00010001
s_mov_b32 exec_hi, 0x00010001
ds_write_b128 v{t0}, {v(CSA,4)}
ds_write_b128 v{t0}, {v(CSA+4,4)} offset:64
s_mov_b64 exec, -1
s_waitcnt vmcnt(0) lgkmcnt(0)
s_barrier
""")
for mt in range(8):
    if mt: a(f"v_xor_b32 v{t2}, {32*mt}, v{t1}")
    a(f"ds_read_b64_tr_b16 {v(FD+2*mt,2)}, v{t2 if mt else t1}")
for k in range(4):
    a(f"ds_read2_b32 {v(FXR+2*k,2)}, v{vCs} offset0:{32*k} offset1:{32*k+16}")
a(f"""
s_waitcnt lgkmcnt(0)
v_add_f32 v{csg}, v{FXR}, v{FXR+2}
v_add_f32 v{csu}, v{FXR+1}, v{FXR+3}
v_add_f32 v{csg}, v{csg}, v{FXR+4}
v_add_f32 v{csu}, v{csu}, v{FXR+5}
v_add_f32 v{csg}, v{csg}, v{FXR+6}
v_add_f32 v{csu}, v{csu}, v{FXR+7}
""")
stamp("FFN prepped")
a(f"s_mov_b64 exec, s[{sM4}:{sM4+1}]")
a(f"s_mov_b32 s{sCNT}, 0")
a("L_pollh:")
for t in range(4):
    a(f"buffer_load_dwordx4 {v(HB+4*t,4)}, v{vHl}, {srd(R_WS)}, s{sT[1]} offen offset:{64*t} sc1")
a("s_waitcnt vmcnt(0)")
poison_check(list(range(HB, HB + 16)), t3)
poll_tail("L_pollh", opt("hsleep", 1))
a("s_mov_b64 exec, -1")
stamp("h gathered")
for t in range(4):
    for k in range(3):
        mfma(GD+4*k, FGU+16*k+4*t if k < 2 else HB+4*t, HB+4*t, t == 0)
a(f"""
s_mov_b64 exec, s[{sM4}:{sM4+1}]
ds_write_b128 v{vFXw}, {v(GD,4)}
ds_write_b128 v{vFXw}, {v(GD+4,4)} offset:256
s_mov_b64 exec, 0x000f000f
ds_write_b128 v{vFXw}, {v(GD+8,4)} offset:512
s_mov_b64 exec, -1
s_waitcnt lgkmcnt(0)
s_barrier
""")
for k in range(4):
    a(f"ds_read_b32 v{FXR+8+k}, v{vSq} offset:{640*k}")
    a(f"ds_read_b32 v{FXR+12+k}, v{vSm} offset:{640*k}")
for k in range(4):
    a(f"ds_read_b32 v{FXR+2*k}, v{vFXr} offset:{640*k}")
    a(f"ds_read_b32 v{FXR+2*k+1}, v{vFXr} offset:{640*k+256}")
gg, uu, sq, sm = vT[13], vT[14], vT[15], vT[16]
a(f"""
s_waitcnt lgkmcnt(8)
v_add_f32 v{sm}, v{FXR+12}, v{FXR+13}
v_add_f32 v{sq}, v{FXR+8}, v{FXR+9}
v_add_f32 v{sm}, v{sm}, v{FXR+14}
v_add_f32 v{sq}, v{sq}, v{FXR+10}
v_add_f32 v{sm}, v{sm}, v{FXR+15}
v_add_f32 v{sq}, v{sq}, v{FXR+11}
v_mul_f32 v{sm}, 0x3b000000, v{sm}
v_mul_f32 v{sq}, 0x3b000000, v{sq}
v_fma_f32 v{sq}, -v{sm}, v{sm}, v{sq}
v_max_f32 v{sq}, 0, v{sq}
v_add_f32 v{sq}, 0x3727c5ac, v{sq}
v_rsq_f32 v{sq}, v{sq}
s_waitcnt lgkmcnt(0)
v_add_f32 v{gg}, v{FXR}, v{FXR+2}
v_add_f32 v{uu}, v{FXR+1}, v{FXR+3}
v_add_f32 v{gg}, v{gg}, v{FXR+4}
v_add_f32 v{uu}, v{uu}, v{FXR+5}
v_add_f32 v{gg}, v{gg}, v{FXR+6}
v_add_f32 v{uu}, v{uu}, v{FXR+7}
v_fma_f32 v{gg}, -v{sm}, v{csg}, v{gg}
v_fma_f32 v{uu}, -v{sm}, v{csu}, v{uu}
v_mul_f32 v{gg}, v{gg}, v{sq}
v_mul_f32 v{uu}, v{uu}, v{sq}
v_mul_f32 v{sm}, {f32(-math.log2(math.e))}, v{gg}
v_exp_f32 v{sm}, v{sm}
v_mul_f32 v{gg}, v{gg}, v{uu}
v_add_f32 v{sm}, 1.0, v{sm}
v_rcp_f32 v{sm}, v{sm}
v_mul_f32 v{gg}, v{gg}, v{sm}
v_mov_b32_dpp v{uu}, v{gg} row_shl:4 row_mask:0xf bank_mask:0xf
v_cvt_pk_bf16_f32 v{FXR}, v{gg}, v{uu}
v_mov_b32_dpp v{FXR+1}, v{FXR} row_shl:8 row_mask:0xf bank_mask:0xf
""")
for mt in range(8): mfma(DD+4*mt, FD+2*mt, FXR, True, k16=True)
a(f"s_mov_b64 exec, s[{sM4}:{sM4+1}]")
for p in range(4):
    for k in range(4):
        a(f"v_cvt_pk_bf16_f32 v{DP+4*p+k}, v{DD+8*p+2*k}, v{DD+8*p+2*k+1}")
    a(f"buffer_store_dwordx4 {v(DP+4*p,4)}, v{vPF}, {srd(R_WS)}, s{sT[4+(p>>1)]} offen offset:{64*(p&1)} sc1")
a("s_mov_b64 exec, -1")
stamp("FFN published")
a("s_branch L_fin")

a("L_wave45:")
PZ = vT[4]
a(f"""
s_lshl_b32 s{sT[3]}, s{sK}, 16
s_lshl_b32 s{sT[4]}, s{sCH}, 17
s_add_u32 s{sT[4]}, s{sT[4]}, s{sT[3]}
s_lshl_b32 s{sT[1]}, s{sK}, 4
v_add_u32 v{vT[11]}, s{sT[1]}, v{vFL}
""")
def dma_all(win, tag, nclr_after):
    signalled = 0
    first = (64 - AQ) if tag == "A" else 0
    torder = [((first // 16) + k) % 4 for k in range(4)]
    for idx in range(64):
        i = (first + idx) % 64
        if i % 4 == 0:
            a(f"s_add_u32 m0, s{sT[3]}, {i*1024}")
            a(f"s_add_u32 s{sT[5]}, s{sT[4]}, {i*1024}")
        tmp = vT[i & 1]
        a(f"v_xor_b32 v{tmp}, {fsw(i & 15)*16}, v{vL16}")
        if idx >= win:
            a(f"s_waitcnt vmcnt({win-1})")
            done = idx - win + 1
            if idx == win and nclr_after: lds_signal(F_CLR)
            if done >= 16 * (signalled + 1):
                lds_signal(F_TILE + 4 * torder[signalled], base=vT[11]); signalled += 1
        a(f"buffer_load_dwordx4 v{tmp}, {srd(R_CKV)}, s{sT[5]} offen offset:{(i&3)*1024} nt lds")
    lds_signal(F_GO)
    stamp("dma issued")
    while signalled < 4:
        a(f"s_waitcnt vmcnt({64 - 16*(signalled+1)})")
        lds_signal(F_TILE + 4 * torder[signalled], base=vT[11]); signalled += 1
    stamp("ckv landed")
a(f"""
s_cmp_eq_u32 s{sHGB}, 0
s_cbranch_scc1 L_w45free
s_setprio 3
s_lshl_b32 s{sT[1]}, s{sK}, 10
buffer_load_dwordx4 {v(XR,4)}, v{vL16}, {srd(R_X)}, s{sT[1]} offen
s_waitcnt vmcnt(0)
""")
ln_row()
lds_signal(F_XN)
a("s_setprio 0")
lds_wait(F_WQI, 4, sleep=2)
dma_all(DWIN_A, "A", False)
a("s_branch L_w45pf")
a("L_w45free:")
dma_all(DWIN_F, "F", False)
a("L_w45pf:")
a(f"""
v_lshrrev_b32 v{t0}, 2, v{vL}
v_mul_u32_u24 v{t0}, 2752, v{t0}
v_and_b32 v{t1}, 3, v{vL}
v_lshlrev_b32 v{t1}, 7, v{t1}
v_min_u32 v{t1}, 348, v{t1}
v_add_u32 v{t0}, v{t0}, v{t1}
s_mul_i32 s{sT[1]}, s{sY}, {16*2752}
s_mul_i32 s{sT[2]}, s{sX}, 352
s_add_u32 s{sT[1]}, s{sT[1]}, s{sT[2]}
v_min_u32 v{t1}, 21, v{vL}
v_lshlrev_b32 v{t1}, 7, v{t1}
s_mul_i32 s{sT[2]}, s{sX}, {176*1024}
s_lshl_b32 s{sT[3]}, s{sY}, 1
s_add_u32 s{sT[3]}, s{sT[3]}, s{sK}
s_mul_i32 s{sT[3]}, s{sT[3]}, {22*128}
s_add_u32 s{sT[2]}, s{sT[2]}, s{sT[3]}
""")
def ffn_pf(tag, s1, s2):
    a(f"""
    buffer_load_dword v{vDUM+1}, v{t1}, {srd(R_WD)}, s{s2} offen
    s_cmp_eq_u32 s{sW}, 5
    s_cbranch_scc1 L_w5up{tag}
    buffer_load_dword v{vDUM}, v{t0}, {srd(R_WG)}, s{s1} offen
    s_branch L_pfd{tag}
    L_w5up{tag}:
    buffer_load_dword v{vDUM}, v{t0}, {srd(R_WU)}, s{s1} offen
    L_pfd{tag}:
    """)
if PFWHEN == 0:
    lds_wait(F_RI, 2, sleep=4)
    ffn_pf("a", sT[1], sT[2])
else:
    a(f"s_mov_b32 s{sT[9]}, s{sT[1]}")
    a(f"s_mov_b32 s{sT[10]}, s{sT[2]}")
a("s_branch L_phaseC")

a("L_wave67:")
RAW = 32
a(f"s_and_b32 s{sT[0]}, s{sW}, 1")
if CODEPF:
    a(f"""
    s_getpc_b64 s[{sC2}:{sC2+1}]
    L_pcref:
    s_sub_u32 s{sC2}, s{sC2}, L_pcref-{KNAME}
    s_subb_u32 s{sC2+1}, s{sC2+1}, 0
    v_lshlrev_b32 v{t0}, 7, v{vL}
    s_lshl_b32 s{sT[2]}, s{sT[0]}, 13
    v_add_u32 v{t0}, s{sT[2]}, v{t0}
    v_add_u32 v{t1}, 16384, v{t0}
    v_min_u32 v{t0}, L_end-{KNAME}, v{t0}
    v_min_u32 v{t1}, L_end-{KNAME}, v{t1}
    """)
a(f"""
s_cmp_eq_u32 s{sHGB}, 0
s_cbranch_scc1 L_noLN
s_setprio 3
s_lshl_b32 s{sT[1]}, s{sK}, 10
buffer_load_dwordx4 {v(XR,4)}, v{vL16}, {srd(R_X)}, s{sT[1]} offen
s_waitcnt vmcnt(0)
""")
ln_row()
lds_signal(F_XN)
stamp("LN done")
a("s_branch L_w67rest")
a("L_noLN:")
if CODEPF:
    a(f"""
    global_load_dword v{vDUM}, v{t0}, s[{sC2}:{sC2+1}]
    global_load_dword v{vDUM+1}, v{t1}, s[{sC2}:{sC2+1}]
    """)
a("L_w67rest:")
def clears():
    a(f"""
    v_and_b32 v{vT[8]}, 7, v{vL}
    v_lshlrev_b32 v{vT[8]}, 4, v{vT[8]}
    v_bfe_u32 v{vT[9]}, v{vL}, 3, 1
    v_lshl_add_u32 v{vT[10]}, v{vT[9]}, 14, v{vT[8]}
    v_lshl_add_u32 v{vT[10]}, v{vG}, 17, v{vT[10]}
    s_lshl_b32 s{sT[1]}, s{sMH}, 1
    s_add_u32 s{sT[1]}, s{sT[1]}, s{sT[0]}
    s_lshl_b32 s{sT[1]}, s{sT[1]}, 15
    s_lshl_b32 s{sT[2]}, s{sH}, 2
    s_add_u32 s{sT[2]}, s{sT[2]}, s{sCQ}
    s_lshl_b32 s{sT[2]}, s{sT[2]}, 7
    s_add_u32 s{sT[1]}, s{sT[1]}, s{sT[2]}
    s_add_u32 s{sT[1]}, s{sT[1]}, {PA_OFF}
    buffer_store_dwordx4 {v(PZ,4)}, v{vT[10]}, {srd(R_WS)}, s{sT[1]} offen sc1
    """)
a(f"""
v_mov_b32 v{PZ}, -1
v_mov_b32 v{PZ+1}, -1
v_mov_b32 v{PZ+2}, -1
v_mov_b32 v{PZ+3}, -1
""")
clears()
a(f"""
s_cmp_eq_u32 s{sISR}, 0
s_cbranch_scc1 L_noclrH
s_cmp_lg_u32 s{sW}, 7
s_cbranch_scc1 L_noclrH
s_lshl_b32 s{sT[1]}, s{sRHO}, 7
s_add_u32 s{sT[1]}, s{sT[1]}, {HG_OFF}
s_mov_b64 exec, 0xff
buffer_store_dwordx4 {v(PZ,4)}, v{vL16}, {srd(R_WS)}, s{sT[1]} offen sc1
s_mov_b64 exec, -1
L_noclrH:
s_cmp_eq_u32 s{sISF}, 0
s_cbranch_scc1 L_noclrF
v_mul_u32_u24 v{vT[10]}, 12288, v{vT[9]}
v_add_u32 v{vT[10]}, v{vT[10]}, v{vT[8]}
s_mov_b32 s{sT[1]}, 98304
v_mul_lo_u32 v{vT[9]}, v{vG}, s{sT[1]}
v_add_u32 v{vT[10]}, v{vT[10]}, v{vT[9]}
s_mul_i32 s{sT[1]}, s{sT[0]}, 49152
s_lshl_b32 s{sT[2]}, s{sPHI}, 7
s_add_u32 s{sT[1]}, s{sT[1]}, s{sT[2]}
s_add_u32 s{sT[1]}, s{sT[1]}, {PF_OFF}
s_add_u32 s{sT[2]}, s{sT[1]}, 24576
buffer_store_dwordx4 {v(PZ,4)}, v{vT[10]}, {srd(R_WS)}, s{sT[1]} offen sc1
buffer_store_dwordx4 {v(PZ,4)}, v{vT[10]}, {srd(R_WS)}, s{sT[2]} offen sc1
L_noclrF:
s_waitcnt vmcnt(0)
""")
lds_signal(F_CLR)
a("s_setprio 0")
a(f"""
v_lshlrev_b32 v{vT[4]}, 13, v{vG}
v_lshl_add_u32 v{vT[4]}, v{vN}, 4, v{vT[4]}
s_lshl_b32 s{sT[1]}, s{sCQ}, 7
s_lshl_b32 s{sT[2]}, s{sT[0]}, 6
s_add_u32 s{sT[1]}, s{sT[1]}, s{sT[2]}
s_lshl_b32 s{sT[1]}, s{sT[1]}, 13
s_lshl_b32 s{sT[2]}, s{sH}, 8
s_add_u32 s{sT[1]}, s{sT[1]}, s{sT[2]}
v_lshrrev_b32 v{vT[5]}, 5, v{vL}
v_lshlrev_b32 v{vT[5]}, 10, v{vT[5]}
v_and_b32 v{vT[6]}, 31, v{vL}
v_lshl_add_u32 v{vT[5]}, v{vT[6]}, 4, v{vT[5]}
s_lshl_b32 s{sT[2]}, s{sH}, 17
s_lshl_b32 s{sT[3]}, s{sT[0]}, 16
s_add_u32 s{sT[2]}, s{sT[2]}, s{sT[3]}
s_lshl_b32 s{sT[3]}, s{sMH}, 9
s_add_u32 s{sT[2]}, s{sT[2]}, s{sT[3]}
s_waitcnt vmcnt(0)
""")
lds_wait(F_GO, 2, sleep=2)
for i in range(16):
    if i: a(f"s_add_u32 s{sT[1]}, s{sT[1]}, 32768")
    if i >= RWIN: a(f"s_waitcnt vmcnt({RWIN-1})")
    a(f"buffer_load_dwordx4 {v(RAW+4*i,4)}, v{vT[4]}, {srd(R_WUV)}, s{sT[1]} offen nt")
for i in range(32):
    if i and i % 2 == 0: a(f"s_add_u32 s{sT[2]}, s{sT[2]}, 4096")
    if i + 16 >= RWIN: a(f"s_waitcnt vmcnt({RWIN-1})")
    a(f"buffer_load_dwordx4 {v(RAW+64+4*i,4)}, v{vT[5]}, {srd(R_WO)}, s{sT[2]} offen offset:{(i&1)*2048} nt")
lds_signal(F_RI)
stamp("rest issued")
a(f"""
v_lshlrev_b32 v{t0}, 5, v{vG}
v_lshlrev_b32 v{t1}, 4, v{vN}
v_xor_b32 v{t0}, v{t0}, v{t1}
v_lshl_add_u32 v{t0}, v{vG}, 8, v{t0}
s_lshl_b32 s{sT[1]}, s{sT[0]}, 14
v_add_u32 v{t0}, s{sT[1]}, v{t0}
v_xor_b32 v{t1}, 128, v{t0}
v_lshrrev_b32 v{t2}, 5, v{vL}
v_and_b32 v{vT[4]}, 31, v{vL}
v_lshlrev_b32 v{vT[4]}, 4, v{vT[4]}
v_lshlrev_b32 v{t3}, 5, v{t2}
v_xor_b32 v{vT[4]}, v{vT[4]}, v{t3}
v_lshl_add_u32 v{vT[4]}, v{t2}, 9, v{vT[4]}
s_lshl_b32 s{sT[1]}, s{sT[0]}, 15
s_add_u32 s{sT[1]}, s{sT[1]}, {L_WO}
v_add_u32 v{vT[4]}, s{sT[1]}, v{vT[4]}
v_xor_b32 v{vT[5]}, 64, v{vT[4]}
v_xor_b32 v{vT[6]}, 128, v{vT[4]}
v_xor_b32 v{vT[7]}, 192, v{vT[4]}
""")
lds_wait(F_BD, 4, sleep=1)
for i in range(16):
    if 47 - i < RWIN: a(f"s_waitcnt vmcnt({47-i})")
    a(f"ds_write_b128 v{t1 if (i>>1)&1 else t0}, {v(RAW+4*i,4)} offset:{L_WUV + 1024*i}")
for i in range(32):
    if 31 - i < RWIN: a(f"s_waitcnt vmcnt({31-i})")
    sel = (i & 1) | (((i >> 2) & 1) << 1)
    a(f"ds_write_b128 v{vT[4+sel]}, {v(RAW+64+4*i,4)} offset:{1024*i}")
lds_signal(F_ST)
stamp("images written")

a("L_phaseC:")
FUV, FO, CB, XD, AD, AP = 32, 64, 128, 144, 160, 176
vUVa, vOa, vCLr, vCXw, vCXr, vPA = vT[4], vT[5], vT[6], vT[7], vT[8], vT[9]
a(f"""
v_bfe_u32 v{vT[12]}, v{vL}, 2, 2
v_and_b32 v{vT[13]}, 1, v{vG}
v_lshl_add_u32 v{vT[13]}, v{vT[13]}, 2, v{vT[12]}
v_lshl_add_u32 v{vT[12]}, v{vG}, 3, v{vT[12]}
v_and_b32 v{vT[14]}, 3, v{vL}
v_lshlrev_b32 v{vT[14]}, 3, v{vT[14]}
s_lshl_b32 s{sT[0]}, s{sK}, 1
v_xor_b32 v{vUVa}, s{sT[0]}, v{vT[13]}
v_lshl_add_u32 v{vUVa}, v{vUVa}, 5, v{vT[14]}
v_lshl_add_u32 v{vUVa}, v{vT[12]}, 8, v{vUVa}
s_lshl_b32 s{sT[0]}, s{sK}, 2
v_xor_b32 v{vOa}, s{sT[0]}, v{vT[13]}
v_lshl_add_u32 v{vOa}, v{vOa}, 5, v{vT[14]}
v_lshl_add_u32 v{vOa}, v{vT[12]}, 9, v{vOa}
v_add_u32 v{vOa}, {L_WO}, v{vOa}
v_and_b32 v{vT[12]}, 3, v{vN}
v_mul_u32_u24 v{vT[12]}, 272, v{vT[12]}
v_lshl_add_u32 v{vCXr}, v{vG}, 4, v{vT[12]}
v_add_u32 v{vCLr}, {L_CL}, v{vCXr}
v_add_u32 v{vCXr}, {L_CX}, v{vCXr}
v_lshl_add_u32 v{vCXw}, v{vG}, 3, v{vT[12]}
s_lshl_b32 s{sT[0]}, s{sK}, 6
s_add_u32 s{sT[0]}, s{sT[0]}, {L_CX}
v_add_u32 v{vCXw}, s{sT[0]}, v{vCXw}
v_lshlrev_b32 v{vPA}, 4, v{vG}
v_lshl_add_u32 v{vPA}, v{vN}, 17, v{vPA}
s_lshl_b32 s{sT[1]}, s{sMH}, 2
s_add_u32 s{sT[1]}, s{sT[1]}, s{sK}
s_lshl_b32 s{sT[1]}, s{sT[1]}, 14
s_lshl_b32 s{sT[2]}, s{sH}, 2
s_add_u32 s{sT[2]}, s{sT[2]}, s{sCQ}
s_lshl_b32 s{sT[2]}, s{sT[2]}, 7
s_add_u32 s{sT[1]}, s{sT[1]}, s{sT[2]}
s_add_u32 s{sT[1]}, s{sT[1]}, {PA_OFF}
""")
lds_wait(F_ST, 2, sleep=1)
for mt in range(2):
    if mt: a(f"v_xor_b32 v{vT[12]}, 32, v{vUVa}")
    for ks in range(4):
        for vv in range(2):
            a(f"ds_read_b64_tr_b16 {v(FUV+16*mt+4*ks+2*vv,2)}, v{vT[12] if mt else vUVa} offset:{L_WUV + (32*ks+4*vv)*256}")
for mt in range(4):
    if mt: a(f"v_xor_b32 v{vT[12]}, {32*mt}, v{vOa}")
    for ks in range(4):
        for vv in range(2):
            a(f"ds_read_b64_tr_b16 {v(FO+16*mt+4*ks+2*vv,2)}, v{vT[12] if mt else vOa} offset:{(32*ks+4*vv)*512}")
stamp("weights staged")
a("s_setprio 2")
def spec_cl():
    for ks in range(4): a(f"ds_read_b128 {v(CB+4*ks,4)}, v{vCLr} offset:{64*ks}")
lds_wait(F_CL, 4, spec_cl)
if PFWHEN == 1:
    a(f"""
    s_cmp_ge_u32 s{sW}, 6
    s_cbranch_scc1 L_nopf2
    """)
    ffn_pf("b", sT[9], sT[10])
    a("L_nopf2:")
for ks in range(4):
    for mt in range(2): mfma(XD+4*mt, FUV+16*mt+4*ks, CB+4*ks, ks == 0)
for k in range(4): a(f"v_cvt_pk_bf16_f32 v{XD+8+k}, v{XD+2*k}, v{XD+2*k+1}")
a(f"""
s_mov_b64 exec, s[{sM4}:{sM4+1}]
ds_write_b64 v{vCXw}, {v(XD+8,2)}
ds_write_b64 v{vCXw}, {v(XD+10,2)} offset:32
""")
lds_signal(F_CX)
def spec_cx():
    for ks in range(4): a(f"ds_read_b128 {v(CB+4*ks,4)}, v{vCXr} offset:{64*ks}")
lds_wait(F_CX, 4, spec_cx)
for p in range(2):
    for ks in range(4):
        for k in range(2):
            mt = 2 * p + k
            mfma(AD+4*mt, FO+16*mt+4*ks, CB+4*ks, ks == 0)
a(f"s_mov_b64 exec, s[{sM4}:{sM4+1}]")
for p in range(2):
    for k in range(4): a(f"v_cvt_pk_bf16_f32 v{AP+4*p+k}, v{AD+8*p+2*k}, v{AD+8*p+2*k+1}")
    a(f"buffer_store_dwordx4 {v(AP+4*p,4)}, v{vPA}, {srd(R_WS)}, s{sT[1]} offen offset:{64*p} sc1")
a("s_mov_b64 exec, -1")
stamp("attn partial published")
a("s_waitcnt vmcnt(0)")

a("L_fin:")
if PROF:
    stamp("end")
    a(f"""
    s_lshl_b32 s{sT[0]}, s2, 3
    s_add_u32 s{sT[0]}, s{sT[0]}, s{sW}
    s_lshl_b32 s{sT[0]}, s{sT[0]}, 8
    s_add_u32 s{sT[0]}, s{sT[0]}, {TS_OFF}
    v_lshlrev_b32 v{t0}, 2, v{vL}
    buffer_store_dword v{vTSA}, v{t0}, {srd(R_WS)}, s{sT[0]} offen
    """)
a("L_end:")

hdr = open("sequential_preLN__compressed_kv_cla__swiglu_ffn__decode.s.ref").read().split("; @launch")[0]
open(OUT, "w").write(wrap_single(a.text(), 256, 512, LDS_BYTES, vgpr=256, header=hdr))
print("instructions:", a.ninstr, file=sys.stderr)
```

```python
import sys, math, struct
from asmgen import *

def opt(name, default):
    for x in sys.argv[1:]:
        if x.startswith("--" + name + "="):
            return int(x.split("=")[1])
    return default
PROF = "--prof" in sys.argv
DBGT = "--dbgtime" in sys.argv
OUT = [a for a in sys.argv[1:] if not a.startswith("--")]
OUT = OUT[0] if OUT else "sequential_preLN__compressed_kv_cla__swiglu_ffn__decode.s"
POLL_MAX = 1 << 15
LSPIN_MAX = 1 << 20
DWIN_A = opt("dwina", 14)
DWIN_F = opt("dwinf", 20)
RWIN = opt("rwin", 12)
UKPF = opt("ukpf", 1)
CODEPF = opt("codepf", 1)
QSLEEP = opt("qsleep", 4)
OACK = opt("oack", 1)
AQ = opt("aq", 16)
PFWHEN = opt("pfwhen", 1)
MLSLEEP = opt("mlsleep", 2)
FFNDLY = opt("ffndly", 24)

EPOCH_OFF = 0x0
QA_OFF = 0x10000
HG_OFF = 0x58000
PA_OFF = 0x80000
PF_OFF = 0x100000
O_OFF = 0x200000
ML_OFF = 0x600000
TS_OFF = 0x1000000
WS_USED = 0x1100000

L_QS = 131072
L_XN = 147456
L_Q16 = 151616
L_MX = 152640
L_PX = 153152
L_CL = 157248
L_CX = 159488
L_RED = 160576
L_CS = 162624
L_FL = 163136
LDS_BYTES = 163840
L_WUV, L_WO = 0, 32768
L_G, L_U, L_WD = 98304, 114688, L_QS
L_FX = L_PX
(F_XN, F_CLR, F_QP, F_Q16, F_QS, F_P, F_GO, F_WQI) = [4 * i for i in range(8)]
F_TILE = 32
(F_RI, F_BD, F_ST, F_CL, F_CX) = [64 + 4 * i for i in range(5)]

sW, sX, sY, sH, sYP, sCQ, sMH, sHGB, sCH, sEP = 3, 4, 5, 6, 7, 8, 9, 10, 11, 12
sT = list(range(13, 24))
sO, sHA, sJQ, sPHI, sRHO, sISF, sISR, sCNT = 24, 25, 26, 27, 28, 29, 30, 31
R_X, R_CKV, R_WQ, R_WUK, R_WUV, R_WO, R_WG, R_WU, R_WD, R_OUT, R_WS, R_PF = [32 + 4 * i for i in range(12)]
sSELLO, sSELHI = 80, 81
sM8 = 82
sM4 = 84
sACC = 86
sC2 = 88
sTS = 90
sK = 92
def srd(r): return f"s[{r}:{r+3}]"
def f32(x): return "0x%08x" % struct.unpack("<I", struct.pack("<f", x))[0]

vL, vN, vG, vL16, vFL, vONE, vTSA = 1, 2, 3, 4, 5, 6, 7
vT = list(range(8, 32))
t0, t1, t2, t3 = vT[0], vT[1], vT[2], vT[3]
vSP = vT[23]
vDUM = vT[21]
def v(i, n=1): return f"v{i}" if n == 1 else f"v[{i}:{i+n-1}]"
def fsw(row): return 2 * ((row & 7) ^ (4 * (row >> 3))) + (row >> 3)

a = Asm()
stamps = {}
PROBE = [x.split("=", 1)[1].replace("_", " ") for x in sys.argv if x.startswith("--probe=")]
def stamp(name):
    if PROBE and PROBE[0] == name.replace("_", " "):
        a(f"""
        s_memrealtime s[94:95]
        s_waitcnt lgkmcnt(0)
        v_mov_b32 v{vT[19]}, 16
        v_mov_b32 v{vT[20]}, s94
        s_mov_b64 s[100:101], exec
        s_mov_b64 exec, 1
        global_atomic_umax v{vT[19]}, v{vT[20]}, s[98:99] sc1
        s_mov_b64 exec, s[100:101]
        """)
    if not PROF: return
    if name not in stamps:
        stamps[name] = len(stamps)
    i = stamps[name]
    a(f"""
    s_memrealtime s[{sTS}:{sTS+1}]
    s_waitcnt lgkmcnt(0)
    v_writelane_b32 v{vTSA}, s{sTS}, {i}
    """)
def cstamp(name):
    if not PROF: return
    name = "#" + name
    if name not in stamps:
        stamps[name] = len(stamps)
    a(f"s_add_u32 s{sTS}, s{sCNT}, 1")
    a(f"v_writelane_b32 v{vTSA}, s{sTS}, {stamps[name]}")
def poll_tail(name, sleep=0):
    done = a.newlabel("Lpd")
    a(f"""
    s_cmp_eq_u64 vcc, 0
    s_cbranch_scc1 {done}
    """)
    if sleep: a(f"s_sleep {sleep}")
    a(f"""
    s_add_u32 s{sCNT}, s{sCNT}, 1
    s_cmp_lt_u32 s{sCNT}, {POLL_MAX}
    s_cbranch_scc1 {name}
    """)
    a.label(done)
def poison_check(regs, tmp):
    regs = list(regs); n = len(regs)
    a(f"v_max3_u32 v{tmp}, v{regs[0]}, v{regs[1]}, v{regs[2]}")
    i = 3
    while i + 1 < n:
        a(f"v_max3_u32 v{tmp}, v{tmp}, v{regs[i]}, v{regs[i+1]}"); i += 2
    if i < n: a(f"v_max_u32 v{tmp}, v{tmp}, v{regs[i]}")
    a(f"v_cmp_eq_u32 vcc, -1, v{tmp}")
def lds_signal(off, base=None):
    a(f"""
    s_mov_b64 exec, 1
    ds_add_u32 v{vFL if base is None else base}, v{vONE} offset:{off}
    s_mov_b64 exec, -1
    """)
def lds_wait(off, target, spec=None, sleep=0, base=None):
    lp, dn = a.newlabel("Lw"), a.newlabel("Lwd")
    a(f"s_mov_b32 s{sCNT}, 0")
    a.label(lp)
    a(f"ds_read_b32 v{vSP}, v{vFL if base is None else base} offset:{off}")
    if spec: spec()
    a(f"""
    s_waitcnt lgkmcnt(0)
    v_readfirstlane_b32 s{sACC}, v{vSP}
    s_cmp_ge_u32 s{sACC}, {target}
    s_cbranch_scc1 {dn}
    """)
    if sleep: a(f"s_sleep {sleep}")
    a(f"""
    s_add_u32 s{sCNT}, s{sCNT}, 1
    s_cmp_lt_u32 s{sCNT}, {LSPIN_MAX}
    s_cbranch_scc1 {lp}
    """)
    a.label(dn)
def rne_bf16(dst, src):
    a(f"v_cvt_pk_bf16_f32 v{dst}, v{src}, v{src}")
    a(f"v_and_b32 v{dst}, 0xffff0000, v{dst}")
def mfma(d, A, B, first, k16=False):
    n = 2 if k16 else 4
    op = "v_mfma_f32_16x16x16_bf16" if k16 else "v_mfma_f32_16x16x32_bf16"
    a(f"{op} {v(d,4)}, {v(A,n)}, {v(B,n)}, {'0' if first else v(d,4)}")

XR, XF = 32, 40
def ln_row():
    def wave_sum(x):
        for ctl in ["row_shr:1", "row_shr:2", "row_shr:4", "row_shr:8"]:
            a(f"v_add_f32_dpp v{x}, v{x}, v{x} {ctl} row_mask:0xf bank_mask:0xf bound_ctrl:0")
        a(f"v_add_f32_dpp v{x}, v{x}, v{x} row_bcast:15 row_mask:0xa bank_mask:0xf")
        a(f"v_add_f32_dpp v{x}, v{x}, v{x} row_bcast:31 row_mask:0xc bank_mask:0xf")
    xr, xf = XR, XF
    for i in range(4):
        a(f"v_lshlrev_b32 v{xf+2*i}, 16, v{xr+i}")
        a(f"v_and_b32 v{xf+2*i+1}, 0xffff0000, v{xr+i}")
    a(f"v_add_f32 v{xf+12}, v{xf}, v{xf+1}")
    for i in range(2, 8): a(f"v_add_f32 v{xf+12}, v{xf+12}, v{xf+i}")
    wave_sum(xf + 12)
    a(f"v_mov_b32 v{xf+15}, 0x3b000000")
    a(f"v_readlane_b32 s{sT[6]}, v{xf+12}, 63")
    a(f"v_mul_f32 v{xf+13}, s{sT[6]}, v{xf+15}")
    for i in range(8):
        a(f"v_sub_f32 v{xf+14}, v{xf+i}, v{xf+13}")
        if i == 0: a(f"v_mul_f32 v{xf+12}, v{xf+14}, v{xf+14}")
        else: a(f"v_fmac_f32 v{xf+12}, v{xf+14}, v{xf+14}")
    rne_bf16(xf + 13, xf + 13)
    wave_sum(xf + 12)
    for i in range(8): a(f"v_sub_f32 v{xf+i}, v{xf+i}, v{xf+13}")
    a(f"v_readlane_b32 s{sT[6]}, v{xf+12}, 63")
    for i in range(4): a(f"v_cvt_pk_bf16_f32 v{xf+8+i}, v{xf+2*i}, v{xf+2*i+1}")
    a(f"v_mul_f32 v{xf+12}, s{sT[6]}, v{xf+15}")
    rne_bf16(xf + 12, xf + 12)
    a(f"v_add_f32 v{xf+12}, 0x3727c5ac, v{xf+12}")
    rne_bf16(xf + 12, xf + 12)
    a(f"v_sqrt_f32 v{xf+12}, v{xf+12}")
    for i in range(4):
        a(f"v_lshlrev_b32 v{xf+2*i}, 16, v{xf+8+i}")
        a(f"v_and_b32 v{xf+2*i+1}, 0xffff0000, v{xf+8+i}")
    rne_bf16(xf + 12, xf + 12)
    a(f"v_rcp_f32 v{xf+12}, v{xf+12}")
    a(f"s_mul_i32 s{sT[6]}, s{sK}, 1040")
    a(f"s_add_u32 s{sT[6]}, s{sT[6]}, {L_XN}")
    a(f"v_add_u32 v{xf+15}, s{sT[6]}, v{vL16}")
    for i in range(8): a(f"v_mul_f32 v{xf+i}, v{xf+i}, v{xf+12}")
    for i in range(4): a(f"v_cvt_pk_bf16_f32 v{xf+8+i}, v{xf+2*i}, v{xf+2*i+1}")
    a(f"ds_write_b128 v{xf+15}, {v(xf+8,4)}")

a(f"""
s_cmp_ge_u32 s2, 256
s_cbranch_scc1 L_end
{"s_memrealtime s[94:95]" if DBGT else ""}
{"s_memtime s[96:97]" if DBGT else ""}
{"s_load_dwordx2 s[98:99], s[0:1], 88" if DBGT else ""}
s_load_dwordx2 s[{R_WQ}:{R_WQ+1}], s[0:1], 16
s_load_dwordx2 s[{R_CKV}:{R_CKV+1}], s[0:1], 8
s_load_dwordx2 s[{R_X}:{R_X+1}], s[0:1], 0
s_load_dwordx2 s[{R_WS}:{R_WS+1}], s[0:1], 96
s_load_dwordx2 s[{R_WUK}:{R_WUK+1}], s[0:1], 24
s_load_dwordx2 s[{R_WUV}:{R_WUV+1}], s[0:1], 32
s_load_dwordx2 s[{R_WO}:{R_WO+1}], s[0:1], 40
s_load_dwordx2 s[{R_WG}:{R_WG+1}], s[0:1], 56
s_load_dwordx2 s[{R_WU}:{R_WU+1}], s[0:1], 64
s_load_dwordx2 s[{R_WD}:{R_WD+1}], s[0:1], 72
s_load_dwordx2 s[{R_OUT}:{R_OUT+1}], s[0:1], 80
v_lshrrev_b32 v{t0}, 6, v0
v_and_b32 v{vL}, 63, v0
v_and_b32 v{vN}, 15, v0
v_readfirstlane_b32 s{sW}, v{t0}
v_bfe_u32 v{vG}, v0, 4, 2
v_lshlrev_b32 v{t0}, 2, v{vL}
v_add_u32 v{t0}, {L_FL}, v{t0}
v_mov_b32 v{t3}, 0
ds_write_b32 v{t0}, v{t3}
v_lshlrev_b32 v{t0}, 3, v{vN}
v_add_u32 v{t0}, {L_MX}, v{t0}
v_mov_b32 v{t2}, 0xff800000
ds_write2_b32 v{t0}, v{t2}, v{t3} offset0:0 offset1:1
v_mov_b32 v{vFL}, {L_FL}
v_mov_b32 v{vONE}, 1
v_lshlrev_b32 v{vL16}, 4, v{vL}
""")
if PROF: a(f"v_mov_b32 v{vTSA}, 0")
for r, nb in [(R_WQ, 4 << 20), (R_CKV, 16 << 20), (R_X, 4096), (R_WS, WS_USED), (R_WUK, 4 << 20), (R_WUV, 4 << 20), (R_WO, 4 << 20),
              (R_WG, 512 * 1376 * 2), (R_WU, 512 * 1376 * 2), (R_WD, 512 * 1376 * 2), (R_OUT, 4096), (R_PF, 86 * 128)]:
    a(f"s_mov_b32 s{r+2}, {nb}")
    a(f"s_mov_b32 s{r+3}, 0x20000")
a(f"""
s_and_b32 s{sX}, s2, 7
s_lshr_b32 s{sY}, s2, 3
s_lshr_b32 s{sYP}, s2, 4
s_and_b32 s{sT[0]}, s{sY}, 1
s_xor_b32 s{sHGB}, s{sT[0]}, 1
s_lshl_b32 s{sH}, s{sT[0]}, 4
s_lshl_b32 s{sT[1]}, s{sX}, 1
s_add_u32 s{sH}, s{sH}, s{sT[1]}
s_and_b32 s{sT[1]}, s{sYP}, 1
s_add_u32 s{sH}, s{sH}, s{sT[1]}
s_bfe_u32 s{sCQ}, s{sY}, 0x20002
s_lshr_b32 s{sMH}, s{sY}, 4
s_lshl_b32 s{sCH}, s{sX}, 4
s_add_u32 s{sCH}, s{sCH}, s{sYP}
s_and_b32 s{sHA}, s{sYP}, 3
s_lshl_b32 s{sT[1]}, s{sX}, 2
s_add_u32 s{sHA}, s{sHA}, s{sT[1]}
s_lshr_b32 s{sJQ}, s{sYP}, 2
s_mov_b32 s{sSELLO}, 0x05040100
s_mov_b32 s{sSELHI}, 0x07060302
s_mov_b32 s{sM4}, 0x000f000f
s_mov_b32 s{sM4+1}, 0x000f000f
s_mov_b32 s{sM8}, 0x00ff00ff
s_mov_b32 s{sM8+1}, 0x00ff00ff
s_mul_i32 s{sPHI}, s{sX}, 11
s_add_u32 s{sPHI}, s{sPHI}, s{sYP}
s_cmp_lt_u32 s{sYP}, 11
s_cselect_b32 s{sISF}, s{sT[0]}, 0
s_cmp_lt_u32 s{sPHI}, 86
s_cselect_b32 s{sISF}, s{sISF}, 0
s_cmp_ge_u32 s{sYP}, 12
s_cselect_b32 s{sISR}, s{sHGB}, 0
s_sub_u32 s{sRHO}, s{sYP}, 12
s_lshl_b32 s{sRHO}, s{sRHO}, 3
s_add_u32 s{sRHO}, s{sRHO}, s{sX}
s_and_b32 s{sK}, s{sW}, 3
s_waitcnt lgkmcnt(0)
""")
stamp("start")
a(f"""
s_load_dword s{sEP}, s[{R_WS}:{R_WS+1}], {EPOCH_OFF}
s_barrier
s_cmp_ge_u32 s{sW}, 6
s_cbranch_scc1 L_wave67
s_cmp_ge_u32 s{sW}, 4
s_cbranch_scc1 L_wave45
s_setprio 2
s_cmp_eq_u32 s{sHGB}, 0
s_cbranch_scc1 L_freeC
""")

WQ, FR, AC, BX, UK = 32, 160, 192, 224, 32
vWQ, vUK = vT[4], vT[5]
a(f"""
v_lshlrev_b32 v{vWQ}, 16, v{vG}
v_lshl_add_u32 v{vWQ}, v{vN}, 4, v{vWQ}
s_lshl_b32 s{sT[0]}, s{sW}, 20
s_lshl_b32 s{sT[1]}, s{sHA}, 8
s_add_u32 s{sT[0]}, s{sT[0]}, s{sT[1]}
""")
def wq_kstep(u):
    a(f"""
    s_add_u32 s{sT[2]}, s{sJQ}, {u}
    s_and_b32 s{sT[2]}, s{sT[2]}, 3
    s_lshl_b32 s{sT[2]}, s{sT[2]}, 18
    s_add_u32 s{sT[3]}, s{sT[2]}, s{sT[0]}
    """)
    for e in range(8):
        if e: a(f"s_add_u32 s{sT[3]}, s{sT[3]}, 8192")
        a(f"buffer_load_dwordx4 {v(WQ+4*(8*u+e),4)}, v{vWQ}, {srd(R_WQ)}, s{sT[3]} offen nt")
def q_kstep(u):
    for jj in range(8):
        for p in range(4):
            sel = sSELHI if (jj & 1) else sSELLO
            a(f"v_perm_b32 v{FR+4*jj+p}, v{WQ+4*(8*u+2*p+1)+(jj>>1)}, v{WQ+4*(8*u+2*p)+(jj>>1)}, s{sel}")
        if jj >= 1: mfma(AC+4*(jj-1), FR+4*(jj-1), BX+4*u, u == 0)
    mfma(AC+28, FR+28, BX+4*u, u == 0)
wq_kstep(0)
vQPw, vQPr, vQ16w, vQ16r, vQAp = vT[6], vT[7], vT[8], vT[9], vT[10]
a(f"""
s_lshl_b32 s{sT[4]}, s{sW}, 5
s_lshl_b32 s{sT[5]}, s{sJQ}, 7
s_add_u32 s{sT[4]}, s{sT[4]}, s{sT[5]}
s_lshl_b32 s{sT[4]}, s{sT[4]}, 13
s_add_u32 s{sT[4]}, s{sT[4]}, s{sT[1]}
s_add_u32 s{sT[5]}, s{sT[4]}, {16*8192}
v_lshlrev_b32 v{vUK}, 13, v{vN}
v_lshl_add_u32 v{vUK}, v{vG}, 4, v{vUK}
v_and_b32 v{t1}, 3, v{vN}
v_mul_u32_u24 v{t0}, 1040, v{t1}
v_lshl_add_u32 v{t0}, v{vG}, 4, v{t0}
s_lshl_b32 s{sT[6]}, s{sW}, 8
s_add_u32 s{sT[6]}, s{sT[6]}, {L_XN}
v_add_u32 v{t0}, s{sT[6]}, v{t0}
s_lshl_b32 s{sT[6]}, s{sW}, 11
s_add_u32 s{sT[6]}, s{sT[6]}, {L_QS}
v_lshlrev_b32 v{vQPw}, 6, v{vG}
v_lshl_add_u32 v{vQ16r}, v{t1}, 4, v{vQPw}
v_add_u32 v{vQPw}, s{sT[6]}, v{vQ16r}
v_add_u32 v{vQ16r}, {L_Q16}, v{vQ16r}
s_lshl_b32 s{sT[6]}, s{sW}, 9
s_add_u32 s{sT[6]}, s{sT[6]}, {L_QS}
v_lshlrev_b32 v{vQPr}, 2, v{vL}
v_add_u32 v{vQPr}, s{sT[6]}, v{vQPr}
v_lshlrev_b32 v{vQ16w}, 6, v{t1}
v_and_b32 v{t2}, 12, v{vL}
v_lshl_add_u32 v{vQ16w}, v{t2}, 2, v{vQ16w}
v_lshl_add_u32 v{vQ16w}, v{vG}, 8, v{vQ16w}
s_lshl_b32 s{sT[6]}, s{sW}, 2
s_add_u32 s{sT[6]}, s{sT[6]}, {L_Q16}
v_add_u32 v{vQ16w}, s{sT[6]}, v{vQ16w}
v_lshlrev_b32 v{vQAp}, 16, v{t1}
v_lshl_add_u32 v{vQAp}, v{vG}, 4, v{vQAp}
v_bfe_u32 v{t2}, v{vN}, 2, 1
v_lshl_add_u32 v{vQAp}, v{t2}, 6, v{vQAp}
v_cmp_eq_u32 s[{sC2}:{sC2+1}], 1, v{t2}
s_lshl_b32 s{sT[6]}, s{sHA}, 11
s_lshl_b32 s{sT[7]}, s{sJQ}, 9
s_add_u32 s{sT[6]}, s{sT[6]}, s{sT[7]}
s_lshl_b32 s{sT[7]}, s{sW}, 7
s_add_u32 s{sT[6]}, s{sT[6]}, s{sT[7]}
s_add_u32 s{sT[6]}, s{sT[6]}, {QA_OFF}
s_mov_b32 s{sT[7]}, {f32(math.log2(math.e) / math.sqrt(128.0))}
""")
for u in range(4):
    a(f"""
    s_add_u32 s{sT[2]}, s{sJQ}, {u}
    s_and_b32 s{sT[2]}, s{sT[2]}, 3
    s_lshl_b32 s{sT[2]}, s{sT[2]}, 6
    v_add_u32 v{vT[11+u]}, s{sT[2]}, v{t0}
    """)
wq_kstep(1)
wq_kstep(2)
def spec_xn():
    for u in range(4):
        a(f"ds_read_b128 {v(BX+4*u,4)}, v{vT[11+u]}")
wq_kstep(3)
stamp("wq issued")
lds_wait(F_XN, 4, spec_xn)
a(f"s_add_u32 s{sEP}, s{sEP}, 1")
a("s_waitcnt vmcnt(24)")
q_kstep(0)
for mt in range(2):
    for t in range(4):
        a(f"buffer_load_dwordx4 {v(UK+16*mt+4*t,4)}, v{vUK}, {srd(R_WUK)}, s{sT[4+mt]} offen offset:{64*t} nt")
lds_signal(F_WQI)
for u in range(1, 4):
    a(f"s_waitcnt vmcnt({(3-u)*8 + 8})")
    q_kstep(u)
stamp("q partial")
a(f"s_mov_b64 exec, s[{sM4}:{sM4+1}]")
for jj in range(8):
    a(f"ds_write_b128 v{vQPw}, {v(AC+4*jj,4)} offset:{256*jj}")
lds_signal(F_QP)
def spec_qp():
    for k in range(4):
        a(f"ds_read2st64_b32 {v(FR+2*k,2)}, v{vQPr} offset0:{8*k} offset1:{8*k+1}")
lds_wait(F_QP, 4, spec_qp)
stamp("qp done")
a(f"""
v_add_f32 v{FR}, v{FR}, v{FR+2}
v_add_f32 v{FR+1}, v{FR+1}, v{FR+3}
v_add_f32 v{FR+4}, v{FR+4}, v{FR+6}
v_add_f32 v{FR+5}, v{FR+5}, v{FR+7}
v_add_f32 v{FR}, v{FR}, v{FR+4}
v_add_f32 v{FR+1}, v{FR+1}, v{FR+5}
v_cvt_pk_bf16_f32 v{FR}, v{FR}, v{FR+1}
ds_write_b32 v{vQ16w}, v{FR}
""")
lds_signal(F_Q16)
a(f"v_mov_b32 v{AC+9}, s{sEP}")
a(f"v_mov_b32 v{AC+11}, s{sEP}")
def spec_q16():
    a(f"ds_read_b32 v{t3}, v{vFL} offset:{F_CLR}")
    for t in range(4):
        a(f"ds_read_b128 {v(FR+8+4*t,4)}, v{vQ16r} offset:{256*t}")
lds_wait(F_Q16, 4, spec_q16)
stamp("q16 done")
a("s_waitcnt vmcnt(0)")
stamp("uk landed")
for t in range(4):
    for mt in range(2):
        mfma(AC+4*mt, UK+16*mt+4*t, FR+8+4*t, t == 0)
a(f"""
v_readfirstlane_b32 s{sACC}, v{t3}
s_cmp_ge_u32 s{sACC}, 2
s_cbranch_scc1 L_clrok
""")
lds_wait(F_CLR, 2)
a("L_clrok:")
for r in range(4):
    a(f"v_cndmask_b32 v{AC+r}, v{AC+r}, v{AC+4+r}, s[{sC2}:{sC2+1}]")
for r in range(4):
    a(f"v_mul_f32 v{AC+r}, s{sT[7]}, v{AC+r}")
a(f"""
v_cvt_pk_bf16_f32 v{AC+8}, v{AC}, v{AC+1}
v_cvt_pk_bf16_f32 v{AC+10}, v{AC+2}, v{AC+3}
s_mov_b64 exec, s[{sM8}:{sM8+1}]
buffer_store_dwordx4 {v(AC+8,4)}, v{vQAp}, {srd(R_WS)}, s{sT[6]} offen sc1
s_mov_b64 exec, -1
""")
stamp("q_abs published")
a("s_branch L_phaseB")

a("L_freeC:")
if UKPF:
    a(f"""
    v_lshrrev_b32 v{t0}, 1, v{vL}
    v_lshlrev_b32 v{t0}, 13, v{t0}
    v_and_b32 v{t1}, 1, v{vL}
    v_lshl_add_u32 v{t0}, v{t1}, 7, v{t0}
    s_lshl_b32 s{sT[4]}, s{sW}, 5
    s_lshl_b32 s{sT[5]}, s{sJQ}, 7
    s_add_u32 s{sT[4]}, s{sT[4]}, s{sT[5]}
    s_lshl_b32 s{sT[4]}, s{sT[4]}, 13
    s_lshl_b32 s{sT[1]}, s{sHA}, 8
    s_add_u32 s{sT[4]}, s{sT[4]}, s{sT[1]}
    buffer_load_dword v{vDUM}, v{t0}, {srd(R_WUK)}, s{sT[4]} offen nt
    """)
lds_wait(F_CLR, 2, sleep=4)
a(f"s_add_u32 s{sEP}, s{sEP}, 1")

a("L_phaseB:")
GQ, QF, SA0, SA1, SD, vM = 64, 32, 96, 160, 224, 232
vX0 = vT[4]
vQa, vQb, vQw, vEP, vTF, vPV, vO = vT[8], vT[9], vT[10], vT[11], vT[12], vT[13], vT[14]
vSA = vT[15]
a(f"""
v_lshlrev_b32 v{vQa}, 4, v0
v_add_u32 v{vQb}, 16384, v{vQa}
s_lshr_b32 s{sT[6]}, s{sCH}, 5
s_lshl_b32 s{sT[6]}, s{sT[6]}, 1
s_add_u32 s{sT[6]}, s{sT[6]}, s{sHGB}
s_lshl_b32 s{sT[6]}, s{sT[6]}, 15
s_add_u32 s{sT[6]}, s{sT[6]}, {QA_OFF}
s_add_u32 s{sT[7]}, s{sT[6]}, 4096
s_add_u32 s{sT[8]}, s{sT[6]}, 8192
s_add_u32 s{sT[9]}, s{sT[6]}, 12288
""")
def qa_loads():
    for i in range(8):
        a(f"buffer_load_dwordx4 {v(GQ+4*i,4)}, v{vQb if i >= 4 else vQa}, {srd(R_WS)}, s{sT[6+(i&3)]} offen sc1")
a(f"""
v_and_b32 v{vQw}, 127, v0
v_lshlrev_b32 v{vQw}, 3, v{vQw}
s_lshr_b32 s{sT[10]}, s{sW}, 1
s_lshl_b32 s{sT[5]}, s{sT[10]}, 5
v_xor_b32 v{vQw}, s{sT[5]}, v{vQw}
s_lshl_b32 s{sT[10]}, s{sT[10]}, 10
s_add_u32 s{sT[10]}, s{sT[10]}, {L_QS}
v_add_u32 v{vQw}, s{sT[10]}, v{vQw}
v_mov_b32 v{vEP}, s{sEP}
v_lshrrev_b32 v{t0}, 3, v{vN}
v_lshlrev_b32 v{t1}, 2, v{t0}
v_and_b32 v{t2}, 7, v{vN}
v_xor_b32 v{t2}, v{t2}, v{t1}
v_lshl_add_u32 v{t2}, v{t2}, 1, v{t0}
v_xor_b32 v{t2}, v{t2}, v{vG}
v_lshlrev_b32 v{t2}, 4, v{t2}
v_lshl_add_u32 v{t2}, v{vN}, 10, v{t2}
s_lshl_b32 s{sT[0]}, s{sW}, 15
v_add_u32 v{vSA}, s{sT[0]}, v{t2}
v_add_u32 v{vX0}, {L_QS}, v{t2}
""")
for tt in range(1, 4):
    a(f"v_xor_b32 v{vSA+tt}, {64*tt}, v{vSA}")
    a(f"v_xor_b32 v{vX0+tt}, {64*tt}, v{vX0}")
a(f"""
s_lshl_b32 s{sT[1]}, s{sW}, 3
v_add_u32 v{vTF}, s{sT[1]}, v{vFL}
v_bfe_u32 v{t0}, v{vL}, 2, 4
v_lshrrev_b32 v{t1}, 3, v{t0}
v_lshlrev_b32 v{t2}, 2, v{t1}
v_and_b32 v{t3}, 7, v{t0}
v_xor_b32 v{t3}, v{t3}, v{t2}
v_lshl_add_u32 v{t3}, v{t3}, 1, v{t1}
v_bfe_u32 v{t1}, v{vL}, 1, 1
v_xor_b32 v{t3}, v{t3}, v{t1}
v_lshlrev_b32 v{t3}, 4, v{t3}
v_and_b32 v{t1}, 1, v{vL}
v_lshl_add_u32 v{t3}, v{t1}, 3, v{t3}
v_lshl_add_u32 v{t3}, v{t0}, 10, v{t3}
s_lshl_b32 s{sT[0]}, s{sW}, 8
v_add_u32 v{vPV}, s{sT[0]}, v{t3}
v_and_b32 v{t0}, 1, v{vG}
v_lshlrev_b32 v{t0}, 5, v{t0}
v_lshrrev_b32 v{t1}, 1, v{vG}
v_lshl_add_u32 v{t0}, v{t1}, 4, v{t0}
v_and_b32 v{t1}, 7, v{vN}
v_lshl_add_u32 v{vO}, v{t1}, 17, v{t0}
v_lshrrev_b32 v{t1}, 3, v{vN}
v_lshl_add_u32 v{vO}, v{t1}, 6, v{vO}
s_lshl_b32 s{sO}, s{sHGB}, 21
s_lshl_b32 s{sT[4]}, s{sCH}, 8
s_add_u32 s{sO}, s{sO}, s{sT[4]}
s_lshl_b32 s{sT[4]}, s{sW}, 15
s_add_u32 s{sO}, s{sO}, s{sT[4]}
s_add_u32 s{sO}, s{sO}, {O_OFF}
s_add_u32 s{sT[3]}, s{sO}, {8 << 17}
""")
PAD = list(range(240, 256))
for mt in range(8):
    a(f"v_xor_b32 v{PAD[mt]}, {32*mt}, v{vPV}")
    a(f"v_add_u32 v{PAD[8+mt]}, 0x10000, v{PAD[mt]}")
a("s_waitcnt vmcnt(0)")
a(f"""
s_cmp_eq_u32 s{sHGB}, 0
s_cbranch_scc1 L_noq0
""")
qa_loads()
a("L_noq0:")
lds_wait(F_TILE, 1, base=vTF, sleep=1)
for t in range(16):
    a(f"ds_read_b128 {v(SA0+4*t,4)}, v{vSA+(t&3)} offset:{(t>>2)*256}")
lds_wait(F_TILE + 4, 1, base=vTF, sleep=1)
for t in range(16):
    a(f"ds_read_b128 {v(SA1+4*t,4)}, v{vSA+(t&3)} offset:{16384+(t>>2)*256}")
stamp("tiles read")
a(f"""
s_cmp_eq_u32 s{sHGB}, 1
s_cbranch_scc1 L_qgo
""")
lds_wait(F_GO, 2, sleep=1)
a("L_qgo:")
a(f"""
s_mov_b32 s{sCNT}, 0
s_cmp_eq_u32 s{sHGB}, 1
s_cbranch_scc1 L_pollq_chk
""")
a("L_pollq:")
qa_loads()
a("L_pollq_chk:")
for i in range(8):
    a(f"s_waitcnt vmcnt({7-i})")
    if i == 0: a(f"v_xor_b32 v{t2}, v{GQ+1}, v{vEP}")
    else: a(f"v_bitop3_b32 v{t2}, v{t2}, v{GQ+4*i+1}, v{vEP} bitop3:0xf6")
    a(f"v_bitop3_b32 v{t2}, v{t2}, v{GQ+4*i+3}, v{vEP} bitop3:0xf6")
a(f"v_cmp_ne_u32 vcc, 0, v{t2}")
poll_tail("L_pollq", QSLEEP)
cstamp("qa retries")
stamp("q_abs gathered")
for i in range(8):
    if i: a(f"v_xor_b32 v{t2}, {(fsw(2*i) << 4) | (i << 11)}, v{vQw}")
    a(f"ds_write2_b32 v{t2 if i else vQw}, v{GQ+4*i}, v{GQ+4*i+2} offset0:0 offset1:1")
lds_signal(F_QS)
a(f"""
v_lshlrev_b32 v{t0}, 3, v{vN}
v_add_u32 v{t0}, {L_MX}, v{t0}
s_lshl_b32 s{sT[0]}, s{sW}, 10
s_add_u32 s{sT[0]}, s{sT[0]}, {L_PX}
v_add_u32 v{t2}, s{sT[0]}, v{vL16}
v_add_u32 v{t3}, {L_PX}, v{vL16}
""")
def spec_qf():
    for t in range(4):
        a(f"ds_read_b128 {v(QF+4*t,4)}, v{vX0+(t&3)} offset:{(t>>2)*256}")
lds_wait(F_QS, 4, spec_qf)
for t in range(4, 16):
    a(f"ds_read_b128 {v(QF+4*t,4)}, v{vX0+(t&3)} offset:{(t>>2)*256}")
for t in range(16):
    if t >= 4: a(f"s_waitcnt lgkmcnt({15-t})")
    mfma(SD, SA0+4*t, QF+4*t, t == 0)
    mfma(SD+4, SA1+4*t, QF+4*t, t == 0)
a(f"""
v_max3_f32 v{t1}, v{SD}, v{SD+1}, v{SD+2}
v_max_f32 v{t1}, v{t1}, v{SD+3}
v_max3_f32 v{t1}, v{t1}, v{SD+4}, v{SD+5}
v_max3_f32 v{t1}, v{t1}, v{SD+6}, v{SD+7}
ds_max_f32 v{t0}, v{t1}
ds_add_u32 v{t0}, v{vONE} offset:4
""")
PVA, PB, OD, OS, ON = 32, 160, 176, 208, 224
lp, dn = a.newlabel("Lm"), a.newlabel("Lmd")
a(f"s_mov_b32 s{sCNT}, 0")
a.label(lp)
a(f"""
ds_read_b64 {v(vM,2)}, v{t0}
s_waitcnt lgkmcnt(0)
v_cmp_ne_u32 vcc, 16, v{vM+1}
s_cmp_eq_u64 vcc, 0
s_cbranch_scc1 {dn}
s_add_u32 s{sCNT}, s{sCNT}, 1
s_cmp_lt_u32 s{sCNT}, {LSPIN_MAX}
s_cbranch_scc1 {lp}
""")
a.label(dn)
stamp("S done")
def pv_read(u, mt):
    for vv in range(2):
        tile = 2 * u + vv
        ad = PAD[mt] if tile < 4 else PAD[8 + mt]
        a(f"ds_read_b64_tr_b16 {v(PVA+16*mt+4*u+2*vv,2)}, v{ad} offset:{(tile&3)*16384}")
a(f"v_ceil_f32 v{vM}, v{vM}")
for mt in range(4): pv_read(0, mt)
for r in range(8): a(f"v_sub_f32 v{SD+r}, v{SD+r}, v{vM}")
for r in range(8): a(f"v_exp_f32 v{SD+r}, v{SD+r}")
for k in range(4): a(f"v_cvt_pk_bf16_f32 v{PB+k}, v{SD+2*k}, v{SD+2*k+1}")
a(f"ds_write_b128 v{t2}, {v(PB,4)}")
lds_signal(F_P)
for mt in range(4, 8): pv_read(0, mt)
for mt in range(8): pv_read(1, mt)
def spec_p():
    for u in range(4):
        a(f"ds_read_b128 {v(PB+4*u,4)}, v{t3} offset:{1024*u}")
lds_wait(F_P, 4, spec_p)
stamp("P done")
for u in range(4):
    for mt in range(8):
        if u < 2:
            pv_read(u + 2, mt)
        else:
            left = 32 - 2 * ((u - 2) * 8 + mt + 1)
            if left <= 15: a(f"s_waitcnt lgkmcnt({left})")
            elif (u, mt) == (2, 0): a("s_waitcnt lgkmcnt(15)")
        mfma(OD+4*mt, PVA+16*mt+4*u, PB+4*u, u == 0)
lds_signal(F_BD)
stamp("PV done")
for i in range(4): a(f"v_mov_b32 v{ON+i}, 0x3f803f80")
for u in range(4): mfma(ON+4, ON, PB+4*u, u == 0)
CK = vM + 2
for pp in range(2):
    for p in (2 * pp, 2 * pp + 1):
        for k in range(2):
            mt = 2 * p + k
            a(f"v_cvt_pk_bf16_f32 v{OS+2*mt}, v{OD+4*mt}, v{OD+4*mt+1}")
            a(f"v_cvt_pk_bf16_f32 v{OS+2*mt+1}, v{OD+4*mt+2}, v{OD+4*mt+3}")
        a(f"v_permlane16_swap_b32 v{OS+4*p}, v{OS+4*p+2}")
        a(f"v_permlane16_swap_b32 v{OS+4*p+1}, v{OS+4*p+3}")
    X, Y, T = OS + 8 * pp, OS + 8 * pp + 4, OD + 16 * pp
    for k in range(0, 8, 2):
        if pp == 0 and k == 0: a(f"v_add_u32 v{CK}, v{X}, v{X+1}")
        else: a(f"v_add3_u32 v{CK}, v{CK}, v{X+k}, v{X+k+1}")
    for d in range(4):
        a(f"v_mov_b32 v{T+d}, v{X+d}")
    for d in range(4):
        a(f"v_mov_b32_dpp v{T+d}, v{Y+d} row_ror:8 row_mask:0xf bank_mask:0xc")
    a(f"buffer_store_dwordx4 {v(T,4)}, v{vO}, {srd(R_WS)}, s{sO} offen offset:{128*pp} sc1")
    for d in range(4):
        a(f"v_mov_b32_dpp v{Y+d}, v{X+d} row_ror:8 row_mask:0xf bank_mask:0x3")
    a(f"buffer_store_dwordx4 {v(Y,4)}, v{vO}, {srd(R_WS)}, s{sT[3]} offen offset:{128*pp} sc1")
a(f"""
s_lshl_b32 s{sT[4]}, s{sHGB}, 7
s_add_u32 s{sT[4]}, s{sT[4]}, s{sCH}
s_lshl_b32 s{sT[4]}, s{sT[4]}, 2
s_add_u32 s{sT[4]}, s{sT[4]}, s{sW}
s_lshl_b32 s{sT[4]}, s{sT[4]}, 8
s_add_u32 s{sT[4]}, s{sT[4]}, {ML_OFF}
v_mov_b32 v{t0}, v{CK}
v_mov_b32 v{vM+1}, v{ON+4}
v_permlane32_swap_b32 v{CK}, v{t0}
v_add_u32 v{CK}, v{CK}, v{t0}
v_mov_b32 v{t0}, v{CK}
v_xor_b32 v{t1}, s{sEP}, v{vM}
v_permlane16_swap_b32 v{CK}, v{t0}
v_add3_u32 v{CK}, v{CK}, v{t0}, s{sEP}
v_xor_b32 v{vM+3}, v{t1}, v{vM+1}
s_mov_b64 exec, 0xffff
buffer_store_dwordx4 {v(vM,4)}, v{vL16}, {srd(R_WS)}, s{sT[4]} offen sc1
s_mov_b64 exec, -1
""")
stamp("O published")

HD, HM, MK, AW, CD = 32, 64, 72, 76, 84
mM, wA, wB, wb, ckS, ckE, vCLw, vHd2 = vT[4], vT[5], vT[6], vT[7], vT[8], vT[9], vT[10], vT[11]
a(f"""
v_lshlrev_b32 v{t0}, 8, v{vG}
v_lshl_add_u32 v{t0}, v{vN}, 4, v{t0}
v_add_u32 v{vHd2}, 4096, v{t0}
s_lshl_b32 s{sT[0]}, s{sH}, 2
s_add_u32 s{sT[0]}, s{sT[0]}, s{sCQ}
s_lshl_b32 s{sT[0]}, s{sT[0]}, 15
s_lshl_b32 s{sT[2]}, s{sW}, 13
s_add_u32 s{sT[0]}, s{sT[0]}, s{sT[2]}
s_add_u32 s{sT[0]}, s{sT[0]}, {O_OFF}
v_and_b32 v{t1}, 7, v{vN}
v_lshrrev_b32 v{t2}, 3, v{vN}
v_xor_b32 v{t2}, v{t2}, v{vG}
v_lshl_add_u32 v{t1}, v{t1}, 2, v{t2}
v_lshlrev_b32 v{t1}, 10, v{t1}
v_xor_b32 v{t2}, 2048, v{t1}
s_lshr_b32 s{sT[4]}, s{sH}, 4
s_lshl_b32 s{sT[4]}, s{sT[4]}, 2
s_add_u32 s{sT[4]}, s{sT[4]}, s{sW}
s_lshl_b32 s{sT[4]}, s{sT[4]}, 15
s_and_b32 s{sT[5]}, s{sH}, 15
s_lshl_b32 s{sT[5]}, s{sT[5]}, 4
s_add_u32 s{sT[4]}, s{sT[4]}, s{sT[5]}
s_lshl_b32 s{sT[5]}, s{sCQ}, 8
s_add_u32 s{sT[4]}, s{sT[4]}, s{sT[5]}
s_add_u32 s{sT[4]}, s{sT[4]}, {ML_OFF}
v_and_b32 v{t3}, 1, v{vN}
v_lshlrev_b32 v{t3}, 4, v{t3}
v_mov_b32 v{mM}, 0xffff
v_lshlrev_b32 v{t3}, v{t3}, v{mM}
v_lshrrev_b32 v{mM}, 1, v{vN}
""")
for d in range(4):
    a(f"v_cmp_eq_u32 vcc, {d}, v{mM}")
    a(f"v_cndmask_b32 v{MK+d}, 0, v{t3}, vcc")
a(f"""
s_mul_i32 s{sT[5]}, s{sW}, 272
s_add_u32 s{sT[5]}, s{sT[5]}, {L_CL}
v_lshlrev_b32 v{vCLw}, 4, v{vN}
v_lshl_add_u32 v{vCLw}, v{vG}, 3, v{vCLw}
v_add_u32 v{vCLw}, s{sT[5]}, v{vCLw}
s_mov_b32 s{sT[6]}, 0x03020302
""")
if OACK: a("s_waitcnt vmcnt(0)")
stamp("O acked")
a(f"s_mov_b32 s{sCNT}, 0")
a("L_pollm:")
a(f"""
buffer_load_dwordx4 {v(HM,4)}, v{t1}, {srd(R_WS)}, s{sT[4]} offen sc1
buffer_load_dwordx4 {v(HM+4,4)}, v{t2}, {srd(R_WS)}, s{sT[4]} offen sc1
s_waitcnt vmcnt(0)
v_bitop3_b32 v{ckE}, v{HM}, v{HM+1}, v{HM+3} bitop3:0x96
v_bitop3_b32 v{t3}, v{HM+4}, v{HM+5}, v{HM+7} bitop3:0x96
v_cmp_ne_u32 vcc, s{sEP}, v{ckE}
v_cmp_ne_u32 s[{sACC}:{sACC+1}], s{sEP}, v{t3}
s_or_b64 vcc, s[{sACC}:{sACC+1}], vcc
""")
poll_tail("L_pollm", MLSLEEP)
cstamp("ml retries")
stamp("ML ok")
for t in range(8):
    a(f"buffer_load_dwordx4 {v(HD+4*t,4)}, v{vHd2 if t >= 4 else t0}, {srd(R_WS)}, s{sT[0]} offen offset:{1024*(t&3)} sc1")
a(f"""
v_max_f32 v{mM}, v{HM}, v{HM+4}
v_max_f32_dpp v{mM}, v{mM}, v{mM} row_ror:1 row_mask:0xf bank_mask:0xf
v_max_f32_dpp v{mM}, v{mM}, v{mM} row_ror:2 row_mask:0xf bank_mask:0xf
v_sub_u32 v{ckS}, s{sEP}, v{HM+2}
v_max_f32_dpp v{mM}, v{mM}, v{mM} row_ror:4 row_mask:0xf bank_mask:0xf
v_cndmask_b32 v{ckS}, 0, v{ckS}, s[{sM8}:{sM8+1}]
v_max_f32_dpp v{mM}, v{mM}, v{mM} row_ror:8 row_mask:0xf bank_mask:0xf
v_sub_f32 v{wA}, v{HM}, v{mM}
v_sub_f32 v{wB}, v{HM+4}, v{mM}
v_exp_f32 v{wA}, v{wA}
v_exp_f32 v{wB}, v{wB}
v_perm_b32 v{wb}, v{wA}, v{wA}, s{sT[6]}
v_mul_f32 v{wA}, v{wA}, v{HM+1}
v_fmac_f32 v{wA}, v{wB}, v{HM+5}
""")
sfts = [1, 2, 4, 8]
for t in range(8):
    aw = AW + 4 * (t & 1)
    for d in range(4):
        a(f"v_and_b32_dpp v{aw+d}, v{wb}, v{MK+d} row_newbcast:{t} row_mask:0xf bank_mask:0xf")
    if t < 4:
        a(f"v_add_f32_dpp v{wA}, v{wA}, v{wA} row_ror:{sfts[t]} row_mask:0xf bank_mask:0xf")
    if t == 4:
        a(f"v_rcp_f32 v{wA}, v{wA}")
    a(f"s_waitcnt vmcnt({7-t})")
    a(f"v_add3_u32 v{ckS}, v{ckS}, v{HD+4*t}, v{HD+4*t+1}")
    mfma(CD, aw, HD+4*t, t == 0)
    a(f"v_add3_u32 v{ckS}, v{ckS}, v{HD+4*t+2}, v{HD+4*t+3}")
for sft in sfts:
    a(f"v_add_u32_dpp v{ckS}, v{ckS}, v{ckS} row_ror:{sft} row_mask:0xf bank_mask:0xf")
a(f"v_cmp_ne_u32 vcc, 0, v{ckS}")
for r in range(4): a(f"v_mul_f32 v{CD+r}, v{CD+r}, v{wA}")
a(f"v_cvt_pk_bf16_f32 v{CD+4}, v{CD}, v{CD+1}")
a(f"v_cvt_pk_bf16_f32 v{CD+5}, v{CD+2}, v{CD+3}")
poll_tail("L_pollm")
cstamp("o retries")
a(f"""
s_mov_b32 exec_hi, 0
ds_write_b64 v{vCLw}, {v(CD+4,2)}
s_mov_b64 exec, 1
ds_add_u32 v{vFL}, v{vONE} offset:{F_CL}
s_mov_b64 exec, -1
s_setprio 0
""")
stamp("combined")
a(f"""
s_cmp_eq_u32 s{sISF}, 1
s_cbranch_scc1 L_ffn
s_cmp_eq_u32 s{sISR}, 0
s_cbranch_scc1 L_fin
""")

SEL, RD, RA, RS, vH = 96, 100, 116, 120, 128
vMo, vXv = vT[4], vT[5]
for d in range(4): a(f"v_and_b32 v{SEL+d}, 0x3f803f80, v{MK+d}")
a(f"""
v_and_b32 v{t0}, 0x23, v{vL}
v_bfe_u32 v{t1}, v{vL}, 2, 1
v_lshl_add_u32 v{t0}, v{t1}, 4, v{t0}
v_bfe_u32 v{t1}, v{vL}, 3, 2
v_lshl_add_u32 v{t0}, v{t1}, 2, v{t0}
v_lshlrev_b32 v{vMo}, 1, v{t0}
s_lshl_b32 s{sT[0]}, s{sRHO}, 7
buffer_load_ushort v{vXv}, v{vMo}, {srd(R_X)}, s{sT[0]} offen
v_lshlrev_b32 v{t0}, 4, v0
s_lshl_b32 s{sT[1]}, s{sRHO}, 14
s_add_u32 s{sT[1]}, s{sT[1]}, {PA_OFF}
s_add_u32 s{sT[2]}, s{sT[1]}, 4096
s_add_u32 s{sT[3]}, s{sT[1]}, 8192
s_add_u32 s{sT[4]}, s{sT[1]}, 12288
s_lshl_b32 s{sT[5]}, s{sW}, 8
s_add_u32 s{sT[5]}, s{sT[5]}, {L_RED}
v_lshlrev_b32 v{t1}, 5, v{vN}
v_lshl_add_u32 v{t1}, v{vG}, 4, v{t1}
v_add_u32 v{t1}, s{sT[5]}, v{t1}
v_lshlrev_b32 v{t2}, 2, v{vL}
v_add_u32 v{t2}, {L_RED}, v{t2}
s_mul_i32 s{sT[5]}, s{sRHO}, 12288
s_add_u32 s{sT[5]}, s{sT[5]}, {PF_OFF}
s_add_u32 s{R_PF}, s{R_WS}, s{sT[5]}
s_addc_u32 s{R_PF+1}, s{R_WS+1}, 0
s_mov_b32 s{sT[6]}, 4096
s_mov_b32 s{sT[7]}, 8192
s_waitcnt vmcnt(0)
s_barrier
""")
def reduce_inbox(name, rs, sos):
    a(f"s_mov_b32 s{sCNT}, 0")
    a.label(name)
    for i, so in enumerate(sos):
        a(f"buffer_load_dwordx4 {v(RD+4*i,4)}, v{t0}, {srd(rs)}, {so} offen sc1")
    n = len(sos)
    for i in range(n):
        a(f"s_waitcnt vmcnt({n-1-i})")
        if i == 0: a(f"v_max3_u32 v{t3}, v{RD}, v{RD+1}, v{RD+2}")
        else: a(f"v_max3_u32 v{t3}, v{t3}, v{RD+4*i}, v{RD+4*i+1}")
        mfma(RA, SEL, RD+4*i, i == 0)
        if i == 0: a(f"v_max_u32 v{t3}, v{t3}, v{RD+3}")
        else: a(f"v_max3_u32 v{t3}, v{t3}, v{RD+4*i+2}, v{RD+4*i+3}")
    a(f"v_cmp_eq_u32 vcc, -1, v{t3}")
    poll_tail(name)
    for r in range(4):
        a(f"v_add_f32_dpp v{RA+r}, v{RA+r}, v{RA+r} row_ror:8 row_mask:0xf bank_mask:0xf")
    a(f"""
    s_mov_b64 exec, 0x00ff00ff
    ds_write_b128 v{t1}, {v(RA,4)}
    s_mov_b64 exec, -1
    s_waitcnt lgkmcnt(0)
    s_barrier
    """)
def final_sum():
    for k in range(2):
        a(f"ds_read2st64_b32 {v(RS+2*k,2)}, v{t2} offset0:{2*k} offset1:{2*k+1}")
    a("s_waitcnt lgkmcnt(0)")
    a(f"v_add_f32 v{RS}, v{RS}, v{RS+1}")
    a(f"v_add_f32 v{RS+2}, v{RS+2}, v{RS+3}")
    a(f"v_add_f32 v{RS}, v{RS}, v{RS+2}")
def pack_store(val, rs, so, pol):
    P = RS + 4
    a(f"v_mov_b32_dpp v{RS+2}, v{val} quad_perm:[1,1,3,3] row_mask:0xf bank_mask:0xf")
    a(f"v_cvt_pk_bf16_f32 v{P}, v{val}, v{RS+2}")
    a(f"v_mov_b32_dpp v{P+1}, v{P} quad_perm:[2,2,2,2] row_mask:0xf bank_mask:0xf")
    a(f"v_mov_b32_dpp v{P+2}, v{P} row_shl:8 row_mask:0xf bank_mask:0xf")
    a(f"v_mov_b32_dpp v{P+3}, v{P+1} row_shl:8 row_mask:0xf bank_mask:0xf")
    a(f"""
    s_mov_b32 exec_lo, 0x00110011
    s_mov_b32 exec_hi, 0x00110011
    buffer_store_dwordx4 {v(P,4)}, v{vMo}, {srd(rs)}, {so} offen{pol}
    s_mov_b64 exec, -1
    """)
reduce_inbox("L_pollr1", R_WS, [f"s{sT[1+i]}" for i in range(4)])
stamp("R1 gathered")
a(f"""
s_cmp_lg_u32 s{sW}, 0
s_cbranch_scc1 L_r1skip
""")
final_sum()
rne_bf16(RS, RS)
a(f"v_lshlrev_b32 v{vXv}, 16, v{vXv}")
a(f"v_add_f32 v{vH}, v{RS}, v{vXv}")
a(f"s_add_u32 s{sT[5]}, s{sT[0]}, {HG_OFF}")
pack_store(vH, R_WS, f"s{sT[5]}", " sc1")
rne_bf16(vH, vH)
a("L_r1skip:")
stamp("h published")
a("s_barrier")
a(f"s_sleep {opt('r2sleep', 32)}")
reduce_inbox("L_pollr2", R_PF, ["0", f"s{sT[6]}", f"s{sT[7]}"])
stamp("R2 gathered")
a(f"""
s_cmp_lg_u32 s{sW}, 0
s_cbranch_scc1 L_fin
""")
final_sum()
rne_bf16(RS, RS)
a(f"v_add_f32 v{vH}, v{RS}, v{vH}")
pack_store(vH, R_OUT, f"s{sT[0]}", "")
a(f"""
s_cmp_lg_u32 s{sRHO}, 0
s_cbranch_scc1 L_fin
v_mov_b32 v{t0}, {EPOCH_OFF}
v_mov_b32 v{t1}, s{sEP}
s_mov_b64 exec, 1
buffer_store_dword v{t1}, v{t0}, {srd(R_WS)}, 0 offen sc1
""")
if DBGT and PROBE:
    a(f"""
    v_mov_b32 v{vT[19]}, 16
    global_load_dword v{vT[20]}, v{vT[19]}, s[98:99] sc1
    s_waitcnt vmcnt(0)
    v_readfirstlane_b32 s94, v{vT[20]}
    """)
if DBGT and opt("padto", 0):
    a(f"""
    L_padspin:
    s_memrealtime s[{sTS}:{sTS+1}]
    s_waitcnt lgkmcnt(0)
    s_sub_u32 s{sTS}, s{sTS}, s94
    s_cmp_lt_u32 s{sTS}, {opt("padto", 0)}
    s_cbranch_scc1 L_padspin
    """)
if DBGT:
    a(f"""
    s_memrealtime s[{sTS}:{sTS+1}]
    s_memtime s[{sC2}:{sC2+1}]
    s_waitcnt lgkmcnt(0)
    s_sub_u32 s{sTS}, s{sTS}, s94
    s_sub_u32 s{sC2}, s{sC2}, s96
    v_mov_b32 v{t2}, s{sTS}
    v_mov_b32 v{t3}, s{sC2}
    v_mov_b32 v{t0}, 0
    global_store_dwordx2 v{t0}, {v(t2,2)}, s[98:99]
    """)
a("""
s_mov_b64 exec, -1
s_branch L_fin
""")

a("L_ffn:")
FGU, FD, HB, GD, FXR, DD, DP, CSA = 96, 128, 144, 160, 172, 188, 220, 188
lds_wait(F_BD, 4)
if PFWHEN == 1:
    a("s_barrier")
a(f"""
v_lshrrev_b32 v{t0}, 1, v{vL}
v_and_b32 v{t1}, 0x13, v{t0}
v_bfe_u32 v{t2}, v{t0}, 2, 1
v_lshl_add_u32 v{t1}, v{t2}, 3, v{t1}
v_bfe_u32 v{t2}, v{t0}, 3, 1
v_lshl_add_u32 v{t1}, v{t2}, 2, v{t1}
v_mul_u32_u24 v{t1}, 2752, v{t1}
v_and_b32 v{t2}, 1, v{vL}
v_lshl_add_u32 v{t1}, v{t2}, 4, v{t1}
s_mul_i32 s{sT[0]}, s{sW}, {128*2752}
s_lshl_b32 s{sT[1]}, s{sPHI}, 5
s_add_u32 s{sT[0]}, s{sT[0]}, s{sT[1]}
s_lshl_b32 s{sT[2]}, s{sW}, 12
""")
for i in range(4):
    a(f"s_add_u32 m0, s{sT[2]}, {L_G + 1024*i}")
    if i: a(f"s_add_u32 s{sT[0]}, s{sT[0]}, {32*2752}")
    a(f"buffer_load_dwordx4 v{t1}, {srd(R_WG)}, s{sT[0]} offen lds")
    a(f"s_add_u32 m0, s{sT[2]}, {L_U + 1024*i}")
    a(f"buffer_load_dwordx4 v{t1}, {srd(R_WU)}, s{sT[0]} offen lds")
a(f"""
s_and_b32 s{sT[0]}, s{sW}, 1
s_lshl_b32 s{sT[0]}, s{sT[0]}, 7
v_xor_b32 v{t0}, s{sT[0]}, v{vL16}
s_lshl_b32 s{sT[0]}, s{sPHI}, 14
s_add_u32 s{sT[0]}, s{sT[0]}, s{sT[2]}
s_add_u32 m0, s{sT[2]}, {L_WD}
""")
for i in range(4):
    if i: a(f"v_xor_b32 v{t2}, {32*i}, v{t0}")
    a(f"buffer_load_dwordx4 v{t2 if i else t0}, {srd(R_WD)}, s{sT[0]} offen offset:{1024*i} lds")
vFXw, vFXr, vSq, vSm, vCs, csg, csu, vPF, vHl = vT[4], vT[5], vT[6], vT[7], vT[8], vT[9], vT[10], vT[11], vT[12]
a(f"""
v_bfe_u32 v{t0}, v{vL}, 2, 3
v_lshrrev_b32 v{t1}, 1, v{vG}
v_lshl_add_u32 v{t0}, v{t1}, 4, v{t0}
v_and_b32 v{t2}, 3, v{vL}
v_lshlrev_b32 v{t2}, 3, v{t2}
v_lshl_add_u32 v{t3}, v{t0}, 5, v{t2}
s_add_u32 s{sT[0]}, s{sT[2]}, {L_G}
v_add_u32 v{t3}, s{sT[0]}, v{t3}
v_bfe_u32 v{t0}, v{vL}, 2, 4
v_and_b32 v{t1}, 7, v{t0}
v_lshl_add_u32 v{t1}, v{t1}, 5, v{t2}
v_lshl_add_u32 v{t1}, v{t0}, 10, v{t1}
s_lshl_b32 s{sT[0]}, s{sW}, 8
s_add_u32 s{sT[0]}, s{sT[0]}, {L_WD}
v_add_u32 v{t1}, s{sT[0]}, v{t1}
v_lshlrev_b32 v{vHl}, 10, v{vN}
v_lshl_add_u32 v{vHl}, v{vG}, 4, v{vHl}
s_lshl_b32 s{sT[1]}, s{sW}, 8
s_add_u32 s{sT[1]}, s{sT[1]}, {HG_OFF}
s_mul_i32 s{sT[2]}, s{sW}, 640
s_add_u32 s{sT[2]}, s{sT[2]}, {L_FX}
v_lshlrev_b32 v{vFXw}, 6, v{vG}
v_lshl_add_u32 v{vFXw}, v{vN}, 4, v{vFXw}
v_add_u32 v{vFXw}, s{sT[2]}, v{vFXw}
v_and_b32 v{t2}, 3, v{vN}
v_lshlrev_b32 v{vFXr}, 4, v{t2}
v_lshl_add_u32 v{vFXr}, v{vG}, 6, v{vFXr}
v_lshrrev_b32 v{t0}, 2, v{vN}
v_lshl_add_u32 v{vFXr}, v{t0}, 2, v{vFXr}
v_add_u32 v{vFXr}, {L_FX}, v{vFXr}
v_mul_u32_u24 v{vSq}, 20, v{t2}
v_add_u32 v{vSq}, {L_FX + 512}, v{vSq}
v_lshlrev_b32 v{vSm}, 4, v{t2}
v_add_u32 v{vSm}, {L_FX + 576}, v{vSm}
v_lshlrev_b32 v{vCs}, 4, v{vG}
v_lshl_add_u32 v{vCs}, v{t0}, 2, v{vCs}
v_add_u32 v{vCs}, {L_CS}, v{vCs}
s_mov_b32 s{sT[4]}, 98304
v_mul_lo_u32 v{vPF}, v{vN}, s{sT[4]}
v_lshl_add_u32 v{vPF}, v{vG}, 4, v{vPF}
s_mul_i32 s{sT[4]}, s{sW}, 24576
s_lshl_b32 s{sT[5]}, s{sPHI}, 7
s_add_u32 s{sT[4]}, s{sT[4]}, s{sT[5]}
s_add_u32 s{sT[4]}, s{sT[4]}, {PF_OFF}
s_add_u32 s{sT[5]}, s{sT[4]}, 12288
""")
for i in range(16): a(f"v_mov_b32 v{HB+i}, 0x3f803f80")
a("s_waitcnt vmcnt(4)")
for mat in range(2):
    for t in range(4):
        for vv in range(2):
            a(f"ds_read_b64_tr_b16 {v(FGU+16*mat+4*t+2*vv,2)}, v{t3} offset:{16384*mat + (32*t+8*vv)*32}")
a("s_waitcnt lgkmcnt(0)")
for mat in range(2):
    for t in range(4):
        mfma(CSA+4*mat, FGU+16*mat+4*t, HB, t == 0)
a(f"""
s_lshl_b32 s{sT[0]}, s{sW}, 7
s_add_u32 s{sT[0]}, s{sT[0]}, {L_CS}
v_lshlrev_b32 v{t0}, 4, v{vG}
v_add_u32 v{t0}, s{sT[0]}, v{t0}
s_mov_b32 exec_lo, 0x00010001
s_mov_b32 exec_hi, 0x00010001
ds_write_b128 v{t0}, {v(CSA,4)}
ds_write_b128 v{t0}, {v(CSA+4,4)} offset:64
s_mov_b64 exec, -1
s_waitcnt vmcnt(0) lgkmcnt(0)
s_barrier
""")
for mt in range(8):
    if mt: a(f"v_xor_b32 v{t2}, {32*mt}, v{t1}")
    a(f"ds_read_b64_tr_b16 {v(FD+2*mt,2)}, v{t2 if mt else t1}")
for k in range(4):
    a(f"ds_read2_b32 {v(FXR+2*k,2)}, v{vCs} offset0:{32*k} offset1:{32*k+16}")
a(f"""
s_waitcnt lgkmcnt(0)
v_add_f32 v{csg}, v{FXR}, v{FXR+2}
v_add_f32 v{csu}, v{FXR+1}, v{FXR+3}
v_add_f32 v{csg}, v{csg}, v{FXR+4}
v_add_f32 v{csu}, v{csu}, v{FXR+5}
v_add_f32 v{csg}, v{csg}, v{FXR+6}
v_add_f32 v{csu}, v{csu}, v{FXR+7}
""")
stamp("FFN prepped")
a(f"s_mov_b64 exec, s[{sM4}:{sM4+1}]")
a(f"s_mov_b32 s{sCNT}, 0")
a("L_pollh:")
for t in range(4):
    a(f"buffer_load_dwordx4 {v(HB+4*t,4)}, v{vHl}, {srd(R_WS)}, s{sT[1]} offen offset:{64*t} sc1")
a("s_waitcnt vmcnt(0)")
poison_check(list(range(HB, HB + 16)), t3)
poll_tail("L_pollh", opt("hsleep", 1))
a("s_mov_b64 exec, -1")
stamp("h gathered")
for t in range(4):
    for k in range(3):
        mfma(GD+4*k, FGU+16*k+4*t if k < 2 else HB+4*t, HB+4*t, t == 0)
a(f"""
s_mov_b64 exec, s[{sM4}:{sM4+1}]
ds_write_b128 v{vFXw}, {v(GD,4)}
ds_write_b128 v{vFXw}, {v(GD+4,4)} offset:256
s_mov_b64 exec, 0x000f000f
ds_write_b128 v{vFXw}, {v(GD+8,4)} offset:512
s_mov_b64 exec, -1
s_waitcnt lgkmcnt(0)
s_barrier
""")
for k in range(4):
    a(f"ds_read_b32 v{FXR+8+k}, v{vSq} offset:{640*k}")
    a(f"ds_read_b32 v{FXR+12+k}, v{vSm} offset:{640*k}")
for k in range(4):
    a(f"ds_read_b32 v{FXR+2*k}, v{vFXr} offset:{640*k}")
    a(f"ds_read_b32 v{FXR+2*k+1}, v{vFXr} offset:{640*k+256}")
gg, uu, sq, sm = vT[13], vT[14], vT[15], vT[16]
a(f"""
s_waitcnt lgkmcnt(8)
v_add_f32 v{sm}, v{FXR+12}, v{FXR+13}
v_add_f32 v{sq}, v{FXR+8}, v{FXR+9}
v_add_f32 v{sm}, v{sm}, v{FXR+14}
v_add_f32 v{sq}, v{sq}, v{FXR+10}
v_add_f32 v{sm}, v{sm}, v{FXR+15}
v_add_f32 v{sq}, v{sq}, v{FXR+11}
v_mul_f32 v{sm}, 0x3b000000, v{sm}
v_mul_f32 v{sq}, 0x3b000000, v{sq}
v_fma_f32 v{sq}, -v{sm}, v{sm}, v{sq}
v_max_f32 v{sq}, 0, v{sq}
v_add_f32 v{sq}, 0x3727c5ac, v{sq}
v_rsq_f32 v{sq}, v{sq}
s_waitcnt lgkmcnt(0)
v_add_f32 v{gg}, v{FXR}, v{FXR+2}
v_add_f32 v{uu}, v{FXR+1}, v{FXR+3}
v_add_f32 v{gg}, v{gg}, v{FXR+4}
v_add_f32 v{uu}, v{uu}, v{FXR+5}
v_add_f32 v{gg}, v{gg}, v{FXR+6}
v_add_f32 v{uu}, v{uu}, v{FXR+7}
v_fma_f32 v{gg}, -v{sm}, v{csg}, v{gg}
v_fma_f32 v{uu}, -v{sm}, v{csu}, v{uu}
v_mul_f32 v{gg}, v{gg}, v{sq}
v_mul_f32 v{uu}, v{uu}, v{sq}
v_mul_f32 v{sm}, {f32(-math.log2(math.e))}, v{gg}
v_exp_f32 v{sm}, v{sm}
v_mul_f32 v{gg}, v{gg}, v{uu}
v_add_f32 v{sm}, 1.0, v{sm}
v_rcp_f32 v{sm}, v{sm}
v_mul_f32 v{gg}, v{gg}, v{sm}
v_mov_b32_dpp v{uu}, v{gg} row_shl:4 row_mask:0xf bank_mask:0xf
v_cvt_pk_bf16_f32 v{FXR}, v{gg}, v{uu}
v_mov_b32_dpp v{FXR+1}, v{FXR} row_shl:8 row_mask:0xf bank_mask:0xf
""")
for mt in range(8): mfma(DD+4*mt, FD+2*mt, FXR, True, k16=True)
a(f"s_mov_b64 exec, s[{sM4}:{sM4+1}]")
for p in range(4):
    for k in range(4):
        a(f"v_cvt_pk_bf16_f32 v{DP+4*p+k}, v{DD+8*p+2*k}, v{DD+8*p+2*k+1}")
    a(f"buffer_store_dwordx4 {v(DP+4*p,4)}, v{vPF}, {srd(R_WS)}, s{sT[4+(p>>1)]} offen offset:{64*(p&1)} sc1")
a("s_mov_b64 exec, -1")
stamp("FFN published")
a("s_branch L_fin")

a("L_wave45:")
PZ = vT[4]
a(f"""
s_lshl_b32 s{sT[3]}, s{sK}, 16
s_lshl_b32 s{sT[4]}, s{sCH}, 17
s_add_u32 s{sT[4]}, s{sT[4]}, s{sT[3]}
s_lshl_b32 s{sT[1]}, s{sK}, 4
v_add_u32 v{vT[11]}, s{sT[1]}, v{vFL}
""")
def dma_all(win, tag, nclr_after):
    signalled = 0
    first = (64 - AQ) if tag == "A" else 0
    torder = [((first // 16) + k) % 4 for k in range(4)]
    for idx in range(64):
        i = (first + idx) % 64
        if i % 4 == 0:
            a(f"s_add_u32 m0, s{sT[3]}, {i*1024}")
            a(f"s_add_u32 s{sT[5]}, s{sT[4]}, {i*1024}")
        tmp = vT[i & 1]
        a(f"v_xor_b32 v{tmp}, {fsw(i & 15)*16}, v{vL16}")
        if idx >= win:
            a(f"s_waitcnt vmcnt({win-1})")
            done = idx - win + 1
            if idx == win and nclr_after: lds_signal(F_CLR)
            if done >= 16 * (signalled + 1):
                lds_signal(F_TILE + 4 * torder[signalled], base=vT[11]); signalled += 1
        a(f"buffer_load_dwordx4 v{tmp}, {srd(R_CKV)}, s{sT[5]} offen offset:{(i&3)*1024} nt lds")
    lds_signal(F_GO)
    stamp("dma issued")
    while signalled < 4:
        a(f"s_waitcnt vmcnt({64 - 16*(signalled+1)})")
        lds_signal(F_TILE + 4 * torder[signalled], base=vT[11]); signalled += 1
    stamp("ckv landed")
a(f"""
s_cmp_eq_u32 s{sHGB}, 0
s_cbranch_scc1 L_w45free
s_setprio 3
s_lshl_b32 s{sT[1]}, s{sK}, 10
buffer_load_dwordx4 {v(XR,4)}, v{vL16}, {srd(R_X)}, s{sT[1]} offen
s_waitcnt vmcnt(0)
""")
ln_row()
lds_signal(F_XN)
a("s_setprio 0")
lds_wait(F_WQI, 4, sleep=2)
dma_all(DWIN_A, "A", False)
a("s_branch L_w45pf")
a("L_w45free:")
dma_all(DWIN_F, "F", False)
a("L_w45pf:")
a(f"""
v_lshrrev_b32 v{t0}, 2, v{vL}
v_mul_u32_u24 v{t0}, 2752, v{t0}
v_and_b32 v{t1}, 3, v{vL}
v_lshlrev_b32 v{t1}, 7, v{t1}
v_min_u32 v{t1}, 348, v{t1}
v_add_u32 v{t0}, v{t0}, v{t1}
s_mul_i32 s{sT[1]}, s{sY}, {16*2752}
s_mul_i32 s{sT[2]}, s{sX}, 352
s_add_u32 s{sT[1]}, s{sT[1]}, s{sT[2]}
v_min_u32 v{t1}, 21, v{vL}
v_lshlrev_b32 v{t1}, 7, v{t1}
s_mul_i32 s{sT[2]}, s{sX}, {176*1024}
s_lshl_b32 s{sT[3]}, s{sY}, 1
s_add_u32 s{sT[3]}, s{sT[3]}, s{sK}
s_mul_i32 s{sT[3]}, s{sT[3]}, {22*128}
s_add_u32 s{sT[2]}, s{sT[2]}, s{sT[3]}
""")
def ffn_pf(tag, s1, s2):
    a(f"""
    buffer_load_dword v{vDUM+1}, v{t1}, {srd(R_WD)}, s{s2} offen
    s_cmp_eq_u32 s{sW}, 5
    s_cbranch_scc1 L_w5up{tag}
    buffer_load_dword v{vDUM}, v{t0}, {srd(R_WG)}, s{s1} offen
    s_branch L_pfd{tag}
    L_w5up{tag}:
    buffer_load_dword v{vDUM}, v{t0}, {srd(R_WU)}, s{s1} offen
    L_pfd{tag}:
    """)
if PFWHEN == 0:
    lds_wait(F_RI, 2, sleep=4)
    ffn_pf("a", sT[1], sT[2])
else:
    a(f"s_mov_b32 s{sT[9]}, s{sT[1]}")
    a(f"s_mov_b32 s{sT[10]}, s{sT[2]}")
a("s_branch L_phaseC")

a("L_wave67:")
RAW = 32
a(f"s_and_b32 s{sT[0]}, s{sW}, 1")
if CODEPF:
    a(f"""
    s_getpc_b64 s[{sC2}:{sC2+1}]
    L_pcref:
    s_sub_u32 s{sC2}, s{sC2}, L_pcref-{KNAME}
    s_subb_u32 s{sC2+1}, s{sC2+1}, 0
    v_lshlrev_b32 v{t0}, 7, v{vL}
    s_lshl_b32 s{sT[2]}, s{sT[0]}, 13
    v_add_u32 v{t0}, s{sT[2]}, v{t0}
    v_add_u32 v{t1}, 16384, v{t0}
    v_min_u32 v{t0}, L_end-{KNAME}, v{t0}
    v_min_u32 v{t1}, L_end-{KNAME}, v{t1}
    """)
a(f"""
s_cmp_eq_u32 s{sHGB}, 0
s_cbranch_scc1 L_noLN
s_setprio 3
s_lshl_b32 s{sT[1]}, s{sK}, 10
buffer_load_dwordx4 {v(XR,4)}, v{vL16}, {srd(R_X)}, s{sT[1]} offen
s_waitcnt vmcnt(0)
""")
ln_row()
lds_signal(F_XN)
stamp("LN done")
a("s_branch L_w67rest")
a("L_noLN:")
if CODEPF:
    a(f"""
    global_load_dword v{vDUM}, v{t0}, s[{sC2}:{sC2+1}]
    global_load_dword v{vDUM+1}, v{t1}, s[{sC2}:{sC2+1}]
    """)
a("L_w67rest:")
def clears():
    a(f"""
    v_and_b32 v{vT[8]}, 7, v{vL}
    v_lshlrev_b32 v{vT[8]}, 4, v{vT[8]}
    v_bfe_u32 v{vT[9]}, v{vL}, 3, 1
    v_lshl_add_u32 v{vT[10]}, v{vT[9]}, 14, v{vT[8]}
    v_lshl_add_u32 v{vT[10]}, v{vG}, 17, v{vT[10]}
    s_lshl_b32 s{sT[1]}, s{sMH}, 1
    s_add_u32 s{sT[1]}, s{sT[1]}, s{sT[0]}
    s_lshl_b32 s{sT[1]}, s{sT[1]}, 15
    s_lshl_b32 s{sT[2]}, s{sH}, 2
    s_add_u32 s{sT[2]}, s{sT[2]}, s{sCQ}
    s_lshl_b32 s{sT[2]}, s{sT[2]}, 7
    s_add_u32 s{sT[1]}, s{sT[1]}, s{sT[2]}
    s_add_u32 s{sT[1]}, s{sT[1]}, {PA_OFF}
    buffer_store_dwordx4 {v(PZ,4)}, v{vT[10]}, {srd(R_WS)}, s{sT[1]} offen sc1
    """)
a(f"""
v_mov_b32 v{PZ}, -1
v_mov_b32 v{PZ+1}, -1
v_mov_b32 v{PZ+2}, -1
v_mov_b32 v{PZ+3}, -1
""")
clears()
a(f"""
s_cmp_eq_u32 s{sISR}, 0
s_cbranch_scc1 L_noclrH
s_cmp_lg_u32 s{sW}, 7
s_cbranch_scc1 L_noclrH
s_lshl_b32 s{sT[1]}, s{sRHO}, 7
s_add_u32 s{sT[1]}, s{sT[1]}, {HG_OFF}
s_mov_b64 exec, 0xff
buffer_store_dwordx4 {v(PZ,4)}, v{vL16}, {srd(R_WS)}, s{sT[1]} offen sc1
s_mov_b64 exec, -1
L_noclrH:
s_cmp_eq_u32 s{sISF}, 0
s_cbranch_scc1 L_noclrF
v_mul_u32_u24 v{vT[10]}, 12288, v{vT[9]}
v_add_u32 v{vT[10]}, v{vT[10]}, v{vT[8]}
s_mov_b32 s{sT[1]}, 98304
v_mul_lo_u32 v{vT[9]}, v{vG}, s{sT[1]}
v_add_u32 v{vT[10]}, v{vT[10]}, v{vT[9]}
s_mul_i32 s{sT[1]}, s{sT[0]}, 49152
s_lshl_b32 s{sT[2]}, s{sPHI}, 7
s_add_u32 s{sT[1]}, s{sT[1]}, s{sT[2]}
s_add_u32 s{sT[1]}, s{sT[1]}, {PF_OFF}
s_add_u32 s{sT[2]}, s{sT[1]}, 24576
buffer_store_dwordx4 {v(PZ,4)}, v{vT[10]}, {srd(R_WS)}, s{sT[1]} offen sc1
buffer_store_dwordx4 {v(PZ,4)}, v{vT[10]}, {srd(R_WS)}, s{sT[2]} offen sc1
L_noclrF:
s_waitcnt vmcnt(0)
""")
lds_signal(F_CLR)
a("s_setprio 0")
a(f"""
v_lshlrev_b32 v{vT[4]}, 13, v{vG}
v_lshl_add_u32 v{vT[4]}, v{vN}, 4, v{vT[4]}
s_lshl_b32 s{sT[1]}, s{sCQ}, 7
s_lshl_b32 s{sT[2]}, s{sT[0]}, 6
s_add_u32 s{sT[1]}, s{sT[1]}, s{sT[2]}
s_lshl_b32 s{sT[1]}, s{sT[1]}, 13
s_lshl_b32 s{sT[2]}, s{sH}, 8
s_add_u32 s{sT[1]}, s{sT[1]}, s{sT[2]}
v_lshrrev_b32 v{vT[5]}, 5, v{vL}
v_lshlrev_b32 v{vT[5]}, 10, v{vT[5]}
v_and_b32 v{vT[6]}, 31, v{vL}
v_lshl_add_u32 v{vT[5]}, v{vT[6]}, 4, v{vT[5]}
s_lshl_b32 s{sT[2]}, s{sH}, 17
s_lshl_b32 s{sT[3]}, s{sT[0]}, 16
s_add_u32 s{sT[2]}, s{sT[2]}, s{sT[3]}
s_lshl_b32 s{sT[3]}, s{sMH}, 9
s_add_u32 s{sT[2]}, s{sT[2]}, s{sT[3]}
s_waitcnt vmcnt(0)
""")
lds_wait(F_GO, 2, sleep=2)
for i in range(16):
    if i: a(f"s_add_u32 s{sT[1]}, s{sT[1]}, 32768")
    if i >= RWIN: a(f"s_waitcnt vmcnt({RWIN-1})")
    a(f"buffer_load_dwordx4 {v(RAW+4*i,4)}, v{vT[4]}, {srd(R_WUV)}, s{sT[1]} offen nt")
for i in range(32):
    if i and i % 2 == 0: a(f"s_add_u32 s{sT[2]}, s{sT[2]}, 4096")
    if i + 16 >= RWIN: a(f"s_waitcnt vmcnt({RWIN-1})")
    a(f"buffer_load_dwordx4 {v(RAW+64+4*i,4)}, v{vT[5]}, {srd(R_WO)}, s{sT[2]} offen offset:{(i&1)*2048} nt")
lds_signal(F_RI)
stamp("rest issued")
a(f"""
v_lshlrev_b32 v{t0}, 5, v{vG}
v_lshlrev_b32 v{t1}, 4, v{vN}
v_xor_b32 v{t0}, v{t0}, v{t1}
v_lshl_add_u32 v{t0}, v{vG}, 8, v{t0}
s_lshl_b32 s{sT[1]}, s{sT[0]}, 14
v_add_u32 v{t0}, s{sT[1]}, v{t0}
v_xor_b32 v{t1}, 128, v{t0}
v_lshrrev_b32 v{t2}, 5, v{vL}
v_and_b32 v{vT[4]}, 31, v{vL}
v_lshlrev_b32 v{vT[4]}, 4, v{vT[4]}
v_lshlrev_b32 v{t3}, 5, v{t2}
v_xor_b32 v{vT[4]}, v{vT[4]}, v{t3}
v_lshl_add_u32 v{vT[4]}, v{t2}, 9, v{vT[4]}
s_lshl_b32 s{sT[1]}, s{sT[0]}, 15
s_add_u32 s{sT[1]}, s{sT[1]}, {L_WO}
v_add_u32 v{vT[4]}, s{sT[1]}, v{vT[4]}
v_xor_b32 v{vT[5]}, 64, v{vT[4]}
v_xor_b32 v{vT[6]}, 128, v{vT[4]}
v_xor_b32 v{vT[7]}, 192, v{vT[4]}
""")
lds_wait(F_BD, 4, sleep=1)
for i in range(16):
    if 47 - i < RWIN: a(f"s_waitcnt vmcnt({47-i})")
    a(f"ds_write_b128 v{t1 if (i>>1)&1 else t0}, {v(RAW+4*i,4)} offset:{L_WUV + 1024*i}")
for i in range(32):
    if 31 - i < RWIN: a(f"s_waitcnt vmcnt({31-i})")
    sel = (i & 1) | (((i >> 2) & 1) << 1)
    a(f"ds_write_b128 v{vT[4+sel]}, {v(RAW+64+4*i,4)} offset:{1024*i}")
lds_signal(F_ST)
stamp("images written")

a("L_phaseC:")
FUV, FO, CB, XD, AD, AP = 32, 64, 128, 144, 160, 176
vUVa, vOa, vCLr, vCXw, vCXr, vPA = vT[4], vT[5], vT[6], vT[7], vT[8], vT[9]
a(f"""
v_bfe_u32 v{vT[12]}, v{vL}, 2, 2
v_and_b32 v{vT[13]}, 1, v{vG}
v_lshl_add_u32 v{vT[13]}, v{vT[13]}, 2, v{vT[12]}
v_lshl_add_u32 v{vT[12]}, v{vG}, 3, v{vT[12]}
v_and_b32 v{vT[14]}, 3, v{vL}
v_lshlrev_b32 v{vT[14]}, 3, v{vT[14]}
s_lshl_b32 s{sT[0]}, s{sK}, 1
v_xor_b32 v{vUVa}, s{sT[0]}, v{vT[13]}
v_lshl_add_u32 v{vUVa}, v{vUVa}, 5, v{vT[14]}
v_lshl_add_u32 v{vUVa}, v{vT[12]}, 8, v{vUVa}
s_lshl_b32 s{sT[0]}, s{sK}, 2
v_xor_b32 v{vOa}, s{sT[0]}, v{vT[13]}
v_lshl_add_u32 v{vOa}, v{vOa}, 5, v{vT[14]}
v_lshl_add_u32 v{vOa}, v{vT[12]}, 9, v{vOa}
v_add_u32 v{vOa}, {L_WO}, v{vOa}
v_and_b32 v{vT[12]}, 3, v{vN}
v_mul_u32_u24 v{vT[12]}, 272, v{vT[12]}
v_lshl_add_u32 v{vCXr}, v{vG}, 4, v{vT[12]}
v_add_u32 v{vCLr}, {L_CL}, v{vCXr}
v_add_u32 v{vCXr}, {L_CX}, v{vCXr}
v_lshl_add_u32 v{vCXw}, v{vG}, 3, v{vT[12]}
s_lshl_b32 s{sT[0]}, s{sK}, 6
s_add_u32 s{sT[0]}, s{sT[0]}, {L_CX}
v_add_u32 v{vCXw}, s{sT[0]}, v{vCXw}
v_lshlrev_b32 v{vPA}, 4, v{vG}
v_lshl_add_u32 v{vPA}, v{vN}, 17, v{vPA}
s_lshl_b32 s{sT[1]}, s{sMH}, 2
s_add_u32 s{sT[1]}, s{sT[1]}, s{sK}
s_lshl_b32 s{sT[1]}, s{sT[1]}, 14
s_lshl_b32 s{sT[2]}, s{sH}, 2
s_add_u32 s{sT[2]}, s{sT[2]}, s{sCQ}
s_lshl_b32 s{sT[2]}, s{sT[2]}, 7
s_add_u32 s{sT[1]}, s{sT[1]}, s{sT[2]}
s_add_u32 s{sT[1]}, s{sT[1]}, {PA_OFF}
""")
lds_wait(F_ST, 2, sleep=1)
for mt in range(2):
    if mt: a(f"v_xor_b32 v{vT[12]}, 32, v{vUVa}")
    for ks in range(4):
        for vv in range(2):
            a(f"ds_read_b64_tr_b16 {v(FUV+16*mt+4*ks+2*vv,2)}, v{vT[12] if mt else vUVa} offset:{L_WUV + (32*ks+4*vv)*256}")
for mt in range(4):
    if mt: a(f"v_xor_b32 v{vT[12]}, {32*mt}, v{vOa}")
    for ks in range(4):
        for vv in range(2):
            a(f"ds_read_b64_tr_b16 {v(FO+16*mt+4*ks+2*vv,2)}, v{vT[12] if mt else vOa} offset:{(32*ks+4*vv)*512}")
stamp("weights staged")
a("s_setprio 2")
def spec_cl():
    for ks in range(4): a(f"ds_read_b128 {v(CB+4*ks,4)}, v{vCLr} offset:{64*ks}")
lds_wait(F_CL, 4, spec_cl)
if PFWHEN == 1:
    a(f"""
    s_cmp_ge_u32 s{sW}, 6
    s_cbranch_scc1 L_nopf2
    """)
    ffn_pf("b", sT[9], sT[10])
    a("L_nopf2:")
for ks in range(4):
    for mt in range(2): mfma(XD+4*mt, FUV+16*mt+4*ks, CB+4*ks, ks == 0)
for k in range(4): a(f"v_cvt_pk_bf16_f32 v{XD+8+k}, v{XD+2*k}, v{XD+2*k+1}")
a(f"""
s_mov_b64 exec, s[{sM4}:{sM4+1}]
ds_write_b64 v{vCXw}, {v(XD+8,2)}
ds_write_b64 v{vCXw}, {v(XD+10,2)} offset:32
""")
lds_signal(F_CX)
def spec_cx():
    for ks in range(4): a(f"ds_read_b128 {v(CB+4*ks,4)}, v{vCXr} offset:{64*ks}")
lds_wait(F_CX, 4, spec_cx)
for p in range(2):
    for ks in range(4):
        for k in range(2):
            mt = 2 * p + k
            mfma(AD+4*mt, FO+16*mt+4*ks, CB+4*ks, ks == 0)
a(f"s_mov_b64 exec, s[{sM4}:{sM4+1}]")
for p in range(2):
    for k in range(4): a(f"v_cvt_pk_bf16_f32 v{AP+4*p+k}, v{AD+8*p+2*k}, v{AD+8*p+2*k+1}")
    a(f"buffer_store_dwordx4 {v(AP+4*p,4)}, v{vPA}, {srd(R_WS)}, s{sT[1]} offen offset:{64*p} sc1")
a("s_mov_b64 exec, -1")
stamp("attn partial published")
a("s_waitcnt vmcnt(0)")

a("L_fin:")
if PROF:
    stamp("end")
    a(f"""
    s_lshl_b32 s{sT[0]}, s2, 3
    s_add_u32 s{sT[0]}, s{sT[0]}, s{sW}
    s_lshl_b32 s{sT[0]}, s{sT[0]}, 8
    s_add_u32 s{sT[0]}, s{sT[0]}, {TS_OFF}
    v_lshlrev_b32 v{t0}, 2, v{vL}
    buffer_store_dword v{vTSA}, v{t0}, {srd(R_WS)}, s{sT[0]} offen
    """)
a("L_end:")

hdr = open("sequential_preLN__compressed_kv_cla__swiglu_ffn__decode.s.ref").read().split("; @launch")[0]
open(OUT, "w").write(wrap_single(a.text(), 256, 512, LDS_BYTES, vgpr=256, header=hdr))
print("instructions:", a.ninstr, file=sys.stderr)
```

```python
import sys, math, struct
from asmgen import *

def opt(name, default):
    for x in sys.argv[1:]:
        if x.startswith("--" + name + "="):
            return int(x.split("=")[1])
    return default
PROF = "--prof" in sys.argv
DBGT = "--dbgtime" in sys.argv
OUT = [a for a in sys.argv[1:] if not a.startswith("--")]
OUT = OUT[0] if OUT else "sequential_preLN__compressed_kv_cla__swiglu_ffn__decode.s"
POLL_MAX = 1 << 15
LSPIN_MAX = 1 << 20
DWIN_A = opt("dwina", 14)
DWIN_F = opt("dwinf", 20)
RWIN = opt("rwin", 12)
UKPF = opt("ukpf", 1)
CODEPF = opt("codepf", 1)
QSLEEP = opt("qsleep", 4)
OACK = opt("oack", 1)
AQ = opt("aq", 16)
PFWHEN = opt("pfwhen", 1)
MLSLEEP = opt("mlsleep", 2)
FFNDLY = opt("ffndly", 24)

EPOCH_OFF = 0x0
QA_OFF = 0x10000
HG_OFF = 0x58000
PA_OFF = 0x80000
PF_OFF = 0x100000
O_OFF = 0x200000
ML_OFF = 0x600000
TS_OFF = 0x1000000
WS_USED = 0x1100000

L_QS = 131072
L_XN = 147456
L_Q16 = 151616
L_MX = 152640
L_PX = 153152
L_CL = 157248
L_CX = 159488
L_RED = 160576
L_CS = 162624
L_FL = 163136
LDS_BYTES = 163840
L_WUV, L_WO = 0, 32768
L_G, L_U, L_WD = 98304, 114688, L_QS
L_FX = L_PX
(F_XN, F_CLR, F_QP, F_Q16, F_QS, F_P, F_GO, F_WQI) = [4 * i for i in range(8)]
F_TILE = 32
(F_RI, F_BD, F_ST, F_CL, F_CX) = [64 + 4 * i for i in range(5)]

sW, sX, sY, sH, sYP, sCQ, sMH, sHGB, sCH, sEP = 3, 4, 5, 6, 7, 8, 9, 10, 11, 12
sT = list(range(13, 24))
sO, sHA, sJQ, sPHI, sRHO, sISF, sISR, sCNT = 24, 25, 26, 27, 28, 29, 30, 31
R_X, R_CKV, R_WQ, R_WUK, R_WUV, R_WO, R_WG, R_WU, R_WD, R_OUT, R_WS, R_PF = [32 + 4 * i for i in range(12)]
sSELLO, sSELHI = 80, 81
sM8 = 82
sM4 = 84
sACC = 86
sC2 = 88
sTS = 90
sK = 92
def srd(r): return f"s[{r}:{r+3}]"
def f32(x): return "0x%08x" % struct.unpack("<I", struct.pack("<f", x))[0]

vL, vN, vG, vL16, vFL, vONE, vTSA = 1, 2, 3, 4, 5, 6, 7
vT = list(range(8, 32))
t0, t1, t2, t3 = vT[0], vT[1], vT[2], vT[3]
vSP = vT[23]
vDUM = vT[21]
def v(i, n=1): return f"v{i}" if n == 1 else f"v[{i}:{i+n-1}]"
def fsw(row): return 2 * ((row & 7) ^ (4 * (row >> 3))) + (row >> 3)

a = Asm()
stamps = {}
PROBE = [x.split("=", 1)[1].replace("_", " ") for x in sys.argv if x.startswith("--probe=")]
def stamp(name):
    if PROBE and PROBE[0] == name.replace("_", " "):
        a(f"""
        s_memrealtime s[94:95]
        s_waitcnt lgkmcnt(0)
        v_mov_b32 v{vT[19]}, 16
        v_mov_b32 v{vT[20]}, s94
        s_mov_b64 s[100:101], exec
        s_mov_b64 exec, 1
        global_atomic_umax v{vT[19]}, v{vT[20]}, s[98:99] sc1
        s_mov_b64 exec, s[100:101]
        """)
    if not PROF: return
    if name not in stamps:
        stamps[name] = len(stamps)
    i = stamps[name]
    a(f"""
    s_memrealtime s[{sTS}:{sTS+1}]
    s_waitcnt lgkmcnt(0)
    v_writelane_b32 v{vTSA}, s{sTS}, {i}
    """)
def cstamp(name):
    if not PROF: return
    name = "#" + name
    if name not in stamps:
        stamps[name] = len(stamps)
    a(f"s_add_u32 s{sTS}, s{sCNT}, 1")
    a(f"v_writelane_b32 v{vTSA}, s{sTS}, {stamps[name]}")
def poll_tail(name, sleep=0):
    done = a.newlabel("Lpd")
    a(f"""
    s_cmp_eq_u64 vcc, 0
    s_cbranch_scc1 {done}
    """)
    if sleep: a(f"s_sleep {sleep}")
    a(f"""
    s_add_u32 s{sCNT}, s{sCNT}, 1
    s_cmp_lt_u32 s{sCNT}, {POLL_MAX}
    s_cbranch_scc1 {name}
    """)
    a.label(done)
def poison_check(regs, tmp):
    regs = list(regs); n = len(regs)
    a(f"v_max3_u32 v{tmp}, v{regs[0]}, v{regs[1]}, v{regs[2]}")
    i = 3
    while i + 1 < n:
        a(f"v_max3_u32 v{tmp}, v{tmp}, v{regs[i]}, v{regs[i+1]}"); i += 2
    if i < n: a(f"v_max_u32 v{tmp}, v{tmp}, v{regs[i]}")
    a(f"v_cmp_eq_u32 vcc, -1, v{tmp}")
def lds_signal(off, base=None):
    a(f"""
    s_mov_b64 exec, 1
    ds_add_u32 v{vFL if base is None else base}, v{vONE} offset:{off}
    s_mov_b64 exec, -1
    """)
def lds_wait(off, target, spec=None, sleep=0, base=None):
    lp, dn = a.newlabel("Lw"), a.newlabel("Lwd")
    a(f"s_mov_b32 s{sCNT}, 0")
    a.label(lp)
    a(f"ds_read_b32 v{vSP}, v{vFL if base is None else base} offset:{off}")
    if spec: spec()
    a(f"""
    s_waitcnt lgkmcnt(0)
    v_readfirstlane_b32 s{sACC}, v{vSP}
    s_cmp_ge_u32 s{sACC}, {target}
    s_cbranch_scc1 {dn}
    """)
    if sleep: a(f"s_sleep {sleep}")
    a(f"""
    s_add_u32 s{sCNT}, s{sCNT}, 1
    s_cmp_lt_u32 s{sCNT}, {LSPIN_MAX}
    s_cbranch_scc1 {lp}
    """)
    a.label(dn)
def rne_bf16(dst, src):
    a(f"v_cvt_pk_bf16_f32 v{dst}, v{src}, v{src}")
    a(f"v_and_b32 v{dst}, 0xffff0000, v{dst}")
def mfma(d, A, B, first, k16=False):
    n = 2 if k16 else 4
    op = "v_mfma_f32_16x16x16_bf16" if k16 else "v_mfma_f32_16x16x32_bf16"
    a(f"{op} {v(d,4)}, {v(A,n)}, {v(B,n)}, {'0' if first else v(d,4)}")

XR, XF = 32, 40
def ln_row():
    def wave_sum(x):
        for ctl in ["row_shr:1", "row_shr:2", "row_shr:4", "row_shr:8"]:
            a(f"v_add_f32_dpp v{x}, v{x}, v{x} {ctl} row_mask:0xf bank_mask:0xf bound_ctrl:0")
        a(f"v_add_f32_dpp v{x}, v{x}, v{x} row_bcast:15 row_mask:0xa bank_mask:0xf")
        a(f"v_add_f32_dpp v{x}, v{x}, v{x} row_bcast:31 row_mask:0xc bank_mask:0xf")
    xr, xf = XR, XF
    for i in range(4):
        a(f"v_lshlrev_b32 v{xf+2*i}, 16, v{xr+i}")
        a(f"v_and_b32 v{xf+2*i+1}, 0xffff0000, v{xr+i}")
    a(f"v_add_f32 v{xf+12}, v{xf}, v{xf+1}")
    for i in range(2, 8): a(f"v_add_f32 v{xf+12}, v{xf+12}, v{xf+i}")
    wave_sum(xf + 12)
    a(f"v_mov_b32 v{xf+15}, 0x3b000000")
    a(f"v_readlane_b32 s{sT[6]}, v{xf+12}, 63")
    a(f"v_mul_f32 v{xf+13}, s{sT[6]}, v{xf+15}")
    for i in range(8):
        a(f"v_sub_f32 v{xf+14}, v{xf+i}, v{xf+13}")
        if i == 0: a(f"v_mul_f32 v{xf+12}, v{xf+14}, v{xf+14}")
        else: a(f"v_fmac_f32 v{xf+12}, v{xf+14}, v{xf+14}")
    rne_bf16(xf + 13, xf + 13)
    wave_sum(xf + 12)
    for i in range(8): a(f"v_sub_f32 v{xf+i}, v{xf+i}, v{xf+13}")
    a(f"v_readlane_b32 s{sT[6]}, v{xf+12}, 63")
    for i in range(4): a(f"v_cvt_pk_bf16_f32 v{xf+8+i}, v{xf+2*i}, v{xf+2*i+1}")
    a(f"v_mul_f32 v{xf+12}, s{sT[6]}, v{xf+15}")
    rne_bf16(xf + 12, xf + 12)
    a(f"v_add_f32 v{xf+12}, 0x3727c5ac, v{xf+12}")
    rne_bf16(xf + 12, xf + 12)
    a(f"v_sqrt_f32 v{xf+12}, v{xf+12}")
    for i in range(4):
        a(f"v_lshlrev_b32 v{xf+2*i}, 16, v{xf+8+i}")
        a(f"v_and_b32 v{xf+2*i+1}, 0xffff0000, v{xf+8+i}")
    rne_bf16(xf + 12, xf + 12)
    a(f"v_rcp_f32 v{xf+12}, v{xf+12}")
    a(f"s_mul_i32 s{sT[6]}, s{sK}, 1040")
    a(f"s_add_u32 s{sT[6]}, s{sT[6]}, {L_XN}")
    a(f"v_add_u32 v{xf+15}, s{sT[6]}, v{vL16}")
    for i in range(8): a(f"v_mul_f32 v{xf+i}, v{xf+i}, v{xf+12}")
    for i in range(4): a(f"v_cvt_pk_bf16_f32 v{xf+8+i}, v{xf+2*i}, v{xf+2*i+1}")
    a(f"ds_write_b128 v{xf+15}, {v(xf+8,4)}")

EARLYPF = f"""s_getpc_b64 s[{sC2}:{sC2+1}]
v_lshlrev_b32 v{t1}, 6, v0
v_min_u32 v{t1}, L_end-{KNAME}-256, v{t1}
global_load_dword v{vDUM}, v{t1}, s[{sC2}:{sC2+1}]""" if opt("earlypf", 1) else ""
if opt("earlypf", 1): CODEPF = 0
a(f"""
s_cmp_ge_u32 s2, 256
s_cbranch_scc1 L_end
{"s_memrealtime s[94:95]" if DBGT else ""}
{"s_memtime s[96:97]" if DBGT else ""}
{"s_load_dwordx2 s[98:99], s[0:1], 88" if DBGT else ""}
s_load_dwordx2 s[{R_WQ}:{R_WQ+1}], s[0:1], 16
s_load_dwordx2 s[{R_CKV}:{R_CKV+1}], s[0:1], 8
s_load_dwordx2 s[{R_X}:{R_X+1}], s[0:1], 0
s_load_dwordx2 s[{R_WS}:{R_WS+1}], s[0:1], 96
s_load_dwordx2 s[{R_WUK}:{R_WUK+1}], s[0:1], 24
s_load_dwordx2 s[{R_WUV}:{R_WUV+1}], s[0:1], 32
s_load_dwordx2 s[{R_WO}:{R_WO+1}], s[0:1], 40
s_load_dwordx2 s[{R_WG}:{R_WG+1}], s[0:1], 56
s_load_dwordx2 s[{R_WU}:{R_WU+1}], s[0:1], 64
s_load_dwordx2 s[{R_WD}:{R_WD+1}], s[0:1], 72
s_load_dwordx2 s[{R_OUT}:{R_OUT+1}], s[0:1], 80
{EARLYPF}
v_lshrrev_b32 v{t0}, 6, v0
v_and_b32 v{vL}, 63, v0
v_and_b32 v{vN}, 15, v0
v_readfirstlane_b32 s{sW}, v{t0}
v_bfe_u32 v{vG}, v0, 4, 2
v_lshlrev_b32 v{t0}, 2, v{vL}
v_add_u32 v{t0}, {L_FL}, v{t0}
v_mov_b32 v{t3}, 0
ds_write_b32 v{t0}, v{t3}
v_lshlrev_b32 v{t0}, 3, v{vN}
v_add_u32 v{t0}, {L_MX}, v{t0}
v_mov_b32 v{t2}, 0xff800000
ds_write2_b32 v{t0}, v{t2}, v{t3} offset0:0 offset1:1
v_mov_b32 v{vFL}, {L_FL}
v_mov_b32 v{vONE}, 1
v_lshlrev_b32 v{vL16}, 4, v{vL}
""")
if PROF: a(f"v_mov_b32 v{vTSA}, 0")
for r, nb in [(R_WQ, 4 << 20), (R_CKV, 16 << 20), (R_X, 4096), (R_WS, WS_USED), (R_WUK, 4 << 20), (R_WUV, 4 << 20), (R_WO, 4 << 20),
              (R_WG, 512 * 1376 * 2), (R_WU, 512 * 1376 * 2), (R_WD, 512 * 1376 * 2), (R_OUT, 4096), (R_PF, 86 * 128)]:
    a(f"s_mov_b32 s{r+2}, {nb}")
    a(f"s_mov_b32 s{r+3}, 0x20000")
a(f"""
s_and_b32 s{sX}, s2, 7
s_lshr_b32 s{sY}, s2, 3
s_lshr_b32 s{sYP}, s2, 4
s_and_b32 s{sT[0]}, s{sY}, 1
s_xor_b32 s{sHGB}, s{sT[0]}, 1
s_lshl_b32 s{sH}, s{sT[0]}, 4
s_lshl_b32 s{sT[1]}, s{sX}, 1
s_add_u32 s{sH}, s{sH}, s{sT[1]}
s_and_b32 s{sT[1]}, s{sYP}, 1
s_add_u32 s{sH}, s{sH}, s{sT[1]}
s_bfe_u32 s{sCQ}, s{sY}, 0x20002
s_lshr_b32 s{sMH}, s{sY}, 4
s_lshl_b32 s{sCH}, s{sX}, 4
s_add_u32 s{sCH}, s{sCH}, s{sYP}
s_and_b32 s{sHA}, s{sYP}, 3
s_lshl_b32 s{sT[1]}, s{sX}, 2
s_add_u32 s{sHA}, s{sHA}, s{sT[1]}
s_lshr_b32 s{sJQ}, s{sYP}, 2
s_mov_b32 s{sSELLO}, 0x05040100
s_mov_b32 s{sSELHI}, 0x07060302
s_mov_b32 s{sM4}, 0x000f000f
s_mov_b32 s{sM4+1}, 0x000f000f
s_mov_b32 s{sM8}, 0x00ff00ff
s_mov_b32 s{sM8+1}, 0x00ff00ff
s_mul_i32 s{sPHI}, s{sX}, 11
s_add_u32 s{sPHI}, s{sPHI}, s{sYP}
s_cmp_lt_u32 s{sYP}, 11
s_cselect_b32 s{sISF}, s{sT[0]}, 0
s_cmp_lt_u32 s{sPHI}, 86
s_cselect_b32 s{sISF}, s{sISF}, 0
s_cmp_ge_u32 s{sYP}, 12
s_cselect_b32 s{sISR}, s{sHGB}, 0
s_sub_u32 s{sRHO}, s{sYP}, 12
s_lshl_b32 s{sRHO}, s{sRHO}, 3
s_add_u32 s{sRHO}, s{sRHO}, s{sX}
s_and_b32 s{sK}, s{sW}, 3
s_waitcnt lgkmcnt(0)
""")
stamp("start")
a(f"""
s_load_dword s{sEP}, s[{R_WS}:{R_WS+1}], {EPOCH_OFF}
s_barrier
s_cmp_ge_u32 s{sW}, 6
s_cbranch_scc1 L_wave67
s_cmp_ge_u32 s{sW}, 4
s_cbranch_scc1 L_wave45
s_setprio 2
s_cmp_eq_u32 s{sHGB}, 0
s_cbranch_scc1 L_freeC
""")

WQ, FR, AC, BX, UK = 32, 160, 192, 224, 32
vWQ, vUK = vT[4], vT[5]
a(f"""
v_lshlrev_b32 v{vWQ}, 16, v{vG}
v_lshl_add_u32 v{vWQ}, v{vN}, 4, v{vWQ}
s_lshl_b32 s{sT[0]}, s{sW}, 20
s_lshl_b32 s{sT[1]}, s{sHA}, 8
s_add_u32 s{sT[0]}, s{sT[0]}, s{sT[1]}
""")
def wq_kstep(u):
    a(f"""
    s_add_u32 s{sT[2]}, s{sJQ}, {u}
    s_and_b32 s{sT[2]}, s{sT[2]}, 3
    s_lshl_b32 s{sT[2]}, s{sT[2]}, 18
    s_add_u32 s{sT[3]}, s{sT[2]}, s{sT[0]}
    """)
    for e in range(8):
        if e: a(f"s_add_u32 s{sT[3]}, s{sT[3]}, 8192")
        a(f"buffer_load_dwordx4 {v(WQ+4*(8*u+e),4)}, v{vWQ}, {srd(R_WQ)}, s{sT[3]} offen nt")
def q_kstep(u):
    for jj in range(8):
        for p in range(4):
            sel = sSELHI if (jj & 1) else sSELLO
            a(f"v_perm_b32 v{FR+4*jj+p}, v{WQ+4*(8*u+2*p+1)+(jj>>1)}, v{WQ+4*(8*u+2*p)+(jj>>1)}, s{sel}")
        if jj >= 1: mfma(AC+4*(jj-1), FR+4*(jj-1), BX+4*u, u == 0)
    mfma(AC+28, FR+28, BX+4*u, u == 0)
wq_kstep(0)
vQPw, vQPr, vQ16w, vQ16r, vQAp = vT[6], vT[7], vT[8], vT[9], vT[10]
a(f"""
s_lshl_b32 s{sT[4]}, s{sW}, 5
s_lshl_b32 s{sT[5]}, s{sJQ}, 7
s_add_u32 s{sT[4]}, s{sT[4]}, s{sT[5]}
s_lshl_b32 s{sT[4]}, s{sT[4]}, 13
s_add_u32 s{sT[4]}, s{sT[4]}, s{sT[1]}
s_add_u32 s{sT[5]}, s{sT[4]}, {16*8192}
v_lshlrev_b32 v{vUK}, 13, v{vN}
v_lshl_add_u32 v{vUK}, v{vG}, 4, v{vUK}
v_and_b32 v{t1}, 3, v{vN}
v_mul_u32_u24 v{t0}, 1040, v{t1}
v_lshl_add_u32 v{t0}, v{vG}, 4, v{t0}
s_lshl_b32 s{sT[6]}, s{sW}, 8
s_add_u32 s{sT[6]}, s{sT[6]}, {L_XN}
v_add_u32 v{t0}, s{sT[6]}, v{t0}
s_lshl_b32 s{sT[6]}, s{sW}, 11
s_add_u32 s{sT[6]}, s{sT[6]}, {L_QS}
v_lshlrev_b32 v{vQPw}, 6, v{vG}
v_lshl_add_u32 v{vQ16r}, v{t1}, 4, v{vQPw}
v_add_u32 v{vQPw}, s{sT[6]}, v{vQ16r}
v_add_u32 v{vQ16r}, {L_Q16}, v{vQ16r}
s_lshl_b32 s{sT[6]}, s{sW}, 9
s_add_u32 s{sT[6]}, s{sT[6]}, {L_QS}
v_lshlrev_b32 v{vQPr}, 2, v{vL}
v_add_u32 v{vQPr}, s{sT[6]}, v{vQPr}
v_lshlrev_b32 v{vQ16w}, 6, v{t1}
v_and_b32 v{t2}, 12, v{vL}
v_lshl_add_u32 v{vQ16w}, v{t2}, 2, v{vQ16w}
v_lshl_add_u32 v{vQ16w}, v{vG}, 8, v{vQ16w}
s_lshl_b32 s{sT[6]}, s{sW}, 2
s_add_u32 s{sT[6]}, s{sT[6]}, {L_Q16}
v_add_u32 v{vQ16w}, s{sT[6]}, v{vQ16w}
v_lshlrev_b32 v{vQAp}, 16, v{t1}
v_lshl_add_u32 v{vQAp}, v{vG}, 4, v{vQAp}
v_bfe_u32 v{t2}, v{vN}, 2, 1
v_lshl_add_u32 v{vQAp}, v{t2}, 6, v{vQAp}
v_cmp_eq_u32 s[{sC2}:{sC2+1}], 1, v{t2}
s_lshl_b32 s{sT[6]}, s{sHA}, 11
s_lshl_b32 s{sT[7]}, s{sJQ}, 9
s_add_u32 s{sT[6]}, s{sT[6]}, s{sT[7]}
s_lshl_b32 s{sT[7]}, s{sW}, 7
s_add_u32 s{sT[6]}, s{sT[6]}, s{sT[7]}
s_add_u32 s{sT[6]}, s{sT[6]}, {QA_OFF}
s_mov_b32 s{sT[7]}, {f32(math.log2(math.e) / math.sqrt(128.0))}
""")
for u in range(4):
    a(f"""
    s_add_u32 s{sT[2]}, s{sJQ}, {u}
    s_and_b32 s{sT[2]}, s{sT[2]}, 3
    s_lshl_b32 s{sT[2]}, s{sT[2]}, 6
    v_add_u32 v{vT[11+u]}, s{sT[2]}, v{t0}
    """)
wq_kstep(1)
wq_kstep(2)
def spec_xn():
    for u in range(4):
        a(f"ds_read_b128 {v(BX+4*u,4)}, v{vT[11+u]}")
wq_kstep(3)
stamp("wq issued")
lds_wait(F_XN, 4, spec_xn)
a(f"s_add_u32 s{sEP}, s{sEP}, 1")
a("s_waitcnt vmcnt(24)")
q_kstep(0)
for mt in range(2):
    for t in range(4):
        a(f"buffer_load_dwordx4 {v(UK+16*mt+4*t,4)}, v{vUK}, {srd(R_WUK)}, s{sT[4+mt]} offen offset:{64*t} nt")
lds_signal(F_WQI)
for u in range(1, 4):
    a(f"s_waitcnt vmcnt({(3-u)*8 + 8})")
    q_kstep(u)
stamp("q partial")
a(f"s_mov_b64 exec, s[{sM4}:{sM4+1}]")
for jj in range(8):
    a(f"ds_write_b128 v{vQPw}, {v(AC+4*jj,4)} offset:{256*jj}")
lds_signal(F_QP)
def spec_qp():
    for k in range(4):
        a(f"ds_read2st64_b32 {v(FR+2*k,2)}, v{vQPr} offset0:{8*k} offset1:{8*k+1}")
lds_wait(F_QP, 4, spec_qp)
stamp("qp done")
a(f"""
v_add_f32 v{FR}, v{FR}, v{FR+2}
v_add_f32 v{FR+1}, v{FR+1}, v{FR+3}
v_add_f32 v{FR+4}, v{FR+4}, v{FR+6}
v_add_f32 v{FR+5}, v{FR+5}, v{FR+7}
v_add_f32 v{FR}, v{FR}, v{FR+4}
v_add_f32 v{FR+1}, v{FR+1}, v{FR+5}
v_cvt_pk_bf16_f32 v{FR}, v{FR}, v{FR+1}
ds_write_b32 v{vQ16w}, v{FR}
""")
lds_signal(F_Q16)
a(f"v_mov_b32 v{AC+9}, s{sEP}")
a(f"v_mov_b32 v{AC+11}, s{sEP}")
def spec_q16():
    a(f"ds_read_b32 v{t3}, v{vFL} offset:{F_CLR}")
    for t in range(4):
        a(f"ds_read_b128 {v(FR+8+4*t,4)}, v{vQ16r} offset:{256*t}")
lds_wait(F_Q16, 4, spec_q16)
stamp("q16 done")
a("s_waitcnt vmcnt(0)")
stamp("uk landed")
for t in range(4):
    for mt in range(2):
        mfma(AC+4*mt, UK+16*mt+4*t, FR+8+4*t, t == 0)
a(f"""
v_readfirstlane_b32 s{sACC}, v{t3}
s_cmp_ge_u32 s{sACC}, 2
s_cbranch_scc1 L_clrok
""")
lds_wait(F_CLR, 2)
a("L_clrok:")
for r in range(4):
    a(f"v_cndmask_b32 v{AC+r}, v{AC+r}, v{AC+4+r}, s[{sC2}:{sC2+1}]")
for r in range(4):
    a(f"v_mul_f32 v{AC+r}, s{sT[7]}, v{AC+r}")
a(f"""
v_cvt_pk_bf16_f32 v{AC+8}, v{AC}, v{AC+1}
v_cvt_pk_bf16_f32 v{AC+10}, v{AC+2}, v{AC+3}
s_mov_b64 exec, s[{sM8}:{sM8+1}]
buffer_store_dwordx4 {v(AC+8,4)}, v{vQAp}, {srd(R_WS)}, s{sT[6]} offen sc1
s_mov_b64 exec, -1
""")
stamp("q_abs published")
a("s_branch L_phaseB")

a("L_freeC:")
if UKPF:
    a(f"""
    v_lshrrev_b32 v{t0}, 1, v{vL}
    v_lshlrev_b32 v{t0}, 13, v{t0}
    v_and_b32 v{t1}, 1, v{vL}
    v_lshl_add_u32 v{t0}, v{t1}, 7, v{t0}
    s_lshl_b32 s{sT[4]}, s{sW}, 5
    s_lshl_b32 s{sT[5]}, s{sJQ}, 7
    s_add_u32 s{sT[4]}, s{sT[4]}, s{sT[5]}
    s_lshl_b32 s{sT[4]}, s{sT[4]}, 13
    s_lshl_b32 s{sT[1]}, s{sHA}, 8
    s_add_u32 s{sT[4]}, s{sT[4]}, s{sT[1]}
    buffer_load_dword v{vDUM}, v{t0}, {srd(R_WUK)}, s{sT[4]} offen nt
    """)
lds_wait(F_CLR, 2, sleep=4)
a(f"s_add_u32 s{sEP}, s{sEP}, 1")

a("L_phaseB:")
GQ, QF, SA0, SA1, SD, vM = 64, 32, 96, 160, 224, 232
vX0 = vT[4]
vQa, vQb, vQw, vEP, vTF, vPV, vO = vT[8], vT[9], vT[10], vT[11], vT[12], vT[13], vT[14]
vSA = vT[15]
a(f"""
v_lshlrev_b32 v{vQa}, 4, v0
v_add_u32 v{vQb}, 16384, v{vQa}
s_lshr_b32 s{sT[6]}, s{sCH}, 5
s_lshl_b32 s{sT[6]}, s{sT[6]}, 1
s_add_u32 s{sT[6]}, s{sT[6]}, s{sHGB}
s_lshl_b32 s{sT[6]}, s{sT[6]}, 15
s_add_u32 s{sT[6]}, s{sT[6]}, {QA_OFF}
s_add_u32 s{sT[7]}, s{sT[6]}, 4096
s_add_u32 s{sT[8]}, s{sT[6]}, 8192
s_add_u32 s{sT[9]}, s{sT[6]}, 12288
""")
def qa_loads():
    for i in range(8):
        a(f"buffer_load_dwordx4 {v(GQ+4*i,4)}, v{vQb if i >= 4 else vQa}, {srd(R_WS)}, s{sT[6+(i&3)]} offen sc1")
a(f"""
v_and_b32 v{vQw}, 127, v0
v_lshlrev_b32 v{vQw}, 3, v{vQw}
s_lshr_b32 s{sT[10]}, s{sW}, 1
s_lshl_b32 s{sT[5]}, s{sT[10]}, 5
v_xor_b32 v{vQw}, s{sT[5]}, v{vQw}
s_lshl_b32 s{sT[10]}, s{sT[10]}, 10
s_add_u32 s{sT[10]}, s{sT[10]}, {L_QS}
v_add_u32 v{vQw}, s{sT[10]}, v{vQw}
v_mov_b32 v{vEP}, s{sEP}
v_lshrrev_b32 v{t0}, 3, v{vN}
v_lshlrev_b32 v{t1}, 2, v{t0}
v_and_b32 v{t2}, 7, v{vN}
v_xor_b32 v{t2}, v{t2}, v{t1}
v_lshl_add_u32 v{t2}, v{t2}, 1, v{t0}
v_xor_b32 v{t2}, v{t2}, v{vG}
v_lshlrev_b32 v{t2}, 4, v{t2}
v_lshl_add_u32 v{t2}, v{vN}, 10, v{t2}
s_lshl_b32 s{sT[0]}, s{sW}, 15
v_add_u32 v{vSA}, s{sT[0]}, v{t2}
v_add_u32 v{vX0}, {L_QS}, v{t2}
""")
for tt in range(1, 4):
    a(f"v_xor_b32 v{vSA+tt}, {64*tt}, v{vSA}")
    a(f"v_xor_b32 v{vX0+tt}, {64*tt}, v{vX0}")
a(f"""
s_lshl_b32 s{sT[1]}, s{sW}, 3
v_add_u32 v{vTF}, s{sT[1]}, v{vFL}
v_bfe_u32 v{t0}, v{vL}, 2, 4
v_lshrrev_b32 v{t1}, 3, v{t0}
v_lshlrev_b32 v{t2}, 2, v{t1}
v_and_b32 v{t3}, 7, v{t0}
v_xor_b32 v{t3}, v{t3}, v{t2}
v_lshl_add_u32 v{t3}, v{t3}, 1, v{t1}
v_bfe_u32 v{t1}, v{vL}, 1, 1
v_xor_b32 v{t3}, v{t3}, v{t1}
v_lshlrev_b32 v{t3}, 4, v{t3}
v_and_b32 v{t1}, 1, v{vL}
v_lshl_add_u32 v{t3}, v{t1}, 3, v{t3}
v_lshl_add_u32 v{t3}, v{t0}, 10, v{t3}
s_lshl_b32 s{sT[0]}, s{sW}, 8
v_add_u32 v{vPV}, s{sT[0]}, v{t3}
v_and_b32 v{t0}, 1, v{vG}
v_lshlrev_b32 v{t0}, 5, v{t0}
v_lshrrev_b32 v{t1}, 1, v{vG}
v_lshl_add_u32 v{t0}, v{t1}, 4, v{t0}
v_and_b32 v{t1}, 7, v{vN}
v_lshl_add_u32 v{vO}, v{t1}, 17, v{t0}
v_lshrrev_b32 v{t1}, 3, v{vN}
v_lshl_add_u32 v{vO}, v{t1}, 6, v{vO}
s_lshl_b32 s{sO}, s{sHGB}, 21
s_lshl_b32 s{sT[4]}, s{sCH}, 8
s_add_u32 s{sO}, s{sO}, s{sT[4]}
s_lshl_b32 s{sT[4]}, s{sW}, 15
s_add_u32 s{sO}, s{sO}, s{sT[4]}
s_add_u32 s{sO}, s{sO}, {O_OFF}
s_add_u32 s{sT[3]}, s{sO}, {8 << 17}
""")
PAD = list(range(240, 256))
for mt in range(8):
    a(f"v_xor_b32 v{PAD[mt]}, {32*mt}, v{vPV}")
    a(f"v_add_u32 v{PAD[8+mt]}, 0x10000, v{PAD[mt]}")
a("s_waitcnt vmcnt(0)")
a(f"""
s_cmp_eq_u32 s{sHGB}, 0
s_cbranch_scc1 L_noq0
""")
qa_loads()
a("L_noq0:")
lds_wait(F_TILE, 1, base=vTF, sleep=1)
for t in range(16):
    a(f"ds_read_b128 {v(SA0+4*t,4)}, v{vSA+(t&3)} offset:{(t>>2)*256}")
lds_wait(F_TILE + 4, 1, base=vTF, sleep=1)
for t in range(16):
    a(f"ds_read_b128 {v(SA1+4*t,4)}, v{vSA+(t&3)} offset:{16384+(t>>2)*256}")
stamp("tiles read")
a(f"""
s_cmp_eq_u32 s{sHGB}, 1
s_cbranch_scc1 L_qgo
""")
lds_wait(F_GO, 2, sleep=1)
a("L_qgo:")
a(f"""
s_mov_b32 s{sCNT}, 0
s_cmp_eq_u32 s{sHGB}, 1
s_cbranch_scc1 L_pollq_chk
""")
a("L_pollq:")
qa_loads()
a("L_pollq_chk:")
for i in range(8):
    a(f"s_waitcnt vmcnt({7-i})")
    if i == 0: a(f"v_xor_b32 v{t2}, v{GQ+1}, v{vEP}")
    else: a(f"v_bitop3_b32 v{t2}, v{t2}, v{GQ+4*i+1}, v{vEP} bitop3:0xf6")
    a(f"v_bitop3_b32 v{t2}, v{t2}, v{GQ+4*i+3}, v{vEP} bitop3:0xf6")
a(f"v_cmp_ne_u32 vcc, 0, v{t2}")
poll_tail("L_pollq", QSLEEP)
cstamp("qa retries")
stamp("q_abs gathered")
for i in range(8):
    if i: a(f"v_xor_b32 v{t2}, {(fsw(2*i) << 4) | (i << 11)}, v{vQw}")
    a(f"ds_write2_b32 v{t2 if i else vQw}, v{GQ+4*i}, v{GQ+4*i+2} offset0:0 offset1:1")
lds_signal(F_QS)
a(f"""
v_lshlrev_b32 v{t0}, 3, v{vN}
v_add_u32 v{t0}, {L_MX}, v{t0}
s_lshl_b32 s{sT[0]}, s{sW}, 10
s_add_u32 s{sT[0]}, s{sT[0]}, {L_PX}
v_add_u32 v{t2}, s{sT[0]}, v{vL16}
v_add_u32 v{t3}, {L_PX}, v{vL16}
""")
def spec_qf():
    for t in range(4):
        a(f"ds_read_b128 {v(QF+4*t,4)}, v{vX0+(t&3)} offset:{(t>>2)*256}")
lds_wait(F_QS, 4, spec_qf)
for t in range(4, 16):
    a(f"ds_read_b128 {v(QF+4*t,4)}, v{vX0+(t&3)} offset:{(t>>2)*256}")
for t in range(16):
    if t >= 4: a(f"s_waitcnt lgkmcnt({15-t})")
    mfma(SD, SA0+4*t, QF+4*t, t == 0)
    mfma(SD+4, SA1+4*t, QF+4*t, t == 0)
a(f"""
v_max3_f32 v{t1}, v{SD}, v{SD+1}, v{SD+2}
v_max_f32 v{t1}, v{t1}, v{SD+3}
v_max3_f32 v{t1}, v{t1}, v{SD+4}, v{SD+5}
v_max3_f32 v{t1}, v{t1}, v{SD+6}, v{SD+7}
ds_max_f32 v{t0}, v{t1}
ds_add_u32 v{t0}, v{vONE} offset:4
""")
PVA, PB, OD, OS, ON = 32, 160, 176, 208, 224
lp, dn = a.newlabel("Lm"), a.newlabel("Lmd")
a(f"s_mov_b32 s{sCNT}, 0")
a.label(lp)
a(f"""
ds_read_b64 {v(vM,2)}, v{t0}
s_waitcnt lgkmcnt(0)
v_cmp_ne_u32 vcc, 16, v{vM+1}
s_cmp_eq_u64 vcc, 0
s_cbranch_scc1 {dn}
s_add_u32 s{sCNT}, s{sCNT}, 1
s_cmp_lt_u32 s{sCNT}, {LSPIN_MAX}
s_cbranch_scc1 {lp}
""")
a.label(dn)
stamp("S done")
def pv_read(u, mt):
    for vv in range(2):
        tile = 2 * u + vv
        ad = PAD[mt] if tile < 4 else PAD[8 + mt]
        a(f"ds_read_b64_tr_b16 {v(PVA+16*mt+4*u+2*vv,2)}, v{ad} offset:{(tile&3)*16384}")
a(f"v_ceil_f32 v{vM}, v{vM}")
for mt in range(4): pv_read(0, mt)
for r in range(8): a(f"v_sub_f32 v{SD+r}, v{SD+r}, v{vM}")
for r in range(8): a(f"v_exp_f32 v{SD+r}, v{SD+r}")
for k in range(4): a(f"v_cvt_pk_bf16_f32 v{PB+k}, v{SD+2*k}, v{SD+2*k+1}")
a(f"ds_write_b128 v{t2}, {v(PB,4)}")
lds_signal(F_P)
for mt in range(4, 8): pv_read(0, mt)
for mt in range(8): pv_read(1, mt)
def spec_p():
    for u in range(4):
        a(f"ds_read_b128 {v(PB+4*u,4)}, v{t3} offset:{1024*u}")
lds_wait(F_P, 4, spec_p)
stamp("P done")
for u in range(4):
    for mt in range(8):
        if u < 2:
            pv_read(u + 2, mt)
        else:
            left = 32 - 2 * ((u - 2) * 8 + mt + 1)
            if left <= 15: a(f"s_waitcnt lgkmcnt({left})")
            elif (u, mt) == (2, 0): a("s_waitcnt lgkmcnt(15)")
        mfma(OD+4*mt, PVA+16*mt+4*u, PB+4*u, u == 0)
lds_signal(F_BD)
stamp("PV done")
for i in range(4): a(f"v_mov_b32 v{ON+i}, 0x3f803f80")
for u in range(4): mfma(ON+4, ON, PB+4*u, u == 0)
CK = vM + 2
for pp in range(2):
    for p in (2 * pp, 2 * pp + 1):
        for k in range(2):
            mt = 2 * p + k
            a(f"v_cvt_pk_bf16_f32 v{OS+2*mt}, v{OD+4*mt}, v{OD+4*mt+1}")
            a(f"v_cvt_pk_bf16_f32 v{OS+2*mt+1}, v{OD+4*mt+2}, v{OD+4*mt+3}")
        a(f"v_permlane16_swap_b32 v{OS+4*p}, v{OS+4*p+2}")
        a(f"v_permlane16_swap_b32 v{OS+4*p+1}, v{OS+4*p+3}")
    X, Y, T = OS + 8 * pp, OS + 8 * pp + 4, OD + 16 * pp
    for k in range(0, 8, 2):
        if pp == 0 and k == 0: a(f"v_add_u32 v{CK}, v{X}, v{X+1}")
        else: a(f"v_add3_u32 v{CK}, v{CK}, v{X+k}, v{X+k+1}")
    for d in range(4):
        a(f"v_mov_b32 v{T+d}, v{X+d}")
    for d in range(4):
        a(f"v_mov_b32_dpp v{T+d}, v{Y+d} row_ror:8 row_mask:0xf bank_mask:0xc")
    a(f"buffer_store_dwordx4 {v(T,4)}, v{vO}, {srd(R_WS)}, s{sO} offen offset:{128*pp} sc1")
    for d in range(4):
        a(f"v_mov_b32_dpp v{Y+d}, v{X+d} row_ror:8 row_mask:0xf bank_mask:0x3")
    a(f"buffer_store_dwordx4 {v(Y,4)}, v{vO}, {srd(R_WS)}, s{sT[3]} offen offset:{128*pp} sc1")
a(f"""
s_lshl_b32 s{sT[4]}, s{sHGB}, 7
s_add_u32 s{sT[4]}, s{sT[4]}, s{sCH}
s_lshl_b32 s{sT[4]}, s{sT[4]}, 2
s_add_u32 s{sT[4]}, s{sT[4]}, s{sW}
s_lshl_b32 s{sT[4]}, s{sT[4]}, 8
s_add_u32 s{sT[4]}, s{sT[4]}, {ML_OFF}
v_mov_b32 v{t0}, v{CK}
v_mov_b32 v{vM+1}, v{ON+4}
v_permlane32_swap_b32 v{CK}, v{t0}
v_add_u32 v{CK}, v{CK}, v{t0}
v_mov_b32 v{t0}, v{CK}
v_xor_b32 v{t1}, s{sEP}, v{vM}
v_permlane16_swap_b32 v{CK}, v{t0}
v_add3_u32 v{CK}, v{CK}, v{t0}, s{sEP}
v_xor_b32 v{vM+3}, v{t1}, v{vM+1}
s_mov_b64 exec, 0xffff
buffer_store_dwordx4 {v(vM,4)}, v{vL16}, {srd(R_WS)}, s{sT[4]} offen sc1
s_mov_b64 exec, -1
""")
stamp("O published")

HD, HM, MK, AW, CD = 32, 64, 72, 76, 84
mM, wA, wB, wb, ckS, ckE, vCLw, vHd2 = vT[4], vT[5], vT[6], vT[7], vT[8], vT[9], vT[10], vT[11]
a(f"""
v_lshlrev_b32 v{t0}, 8, v{vG}
v_lshl_add_u32 v{t0}, v{vN}, 4, v{t0}
v_add_u32 v{vHd2}, 4096, v{t0}
s_lshl_b32 s{sT[0]}, s{sH}, 2
s_add_u32 s{sT[0]}, s{sT[0]}, s{sCQ}
s_lshl_b32 s{sT[0]}, s{sT[0]}, 15
s_lshl_b32 s{sT[2]}, s{sW}, 13
s_add_u32 s{sT[0]}, s{sT[0]}, s{sT[2]}
s_add_u32 s{sT[0]}, s{sT[0]}, {O_OFF}
v_and_b32 v{t1}, 7, v{vN}
v_lshrrev_b32 v{t2}, 3, v{vN}
v_xor_b32 v{t2}, v{t2}, v{vG}
v_lshl_add_u32 v{t1}, v{t1}, 2, v{t2}
v_lshlrev_b32 v{t1}, 10, v{t1}
v_xor_b32 v{t2}, 2048, v{t1}
s_lshr_b32 s{sT[4]}, s{sH}, 4
s_lshl_b32 s{sT[4]}, s{sT[4]}, 2
s_add_u32 s{sT[4]}, s{sT[4]}, s{sW}
s_lshl_b32 s{sT[4]}, s{sT[4]}, 15
s_and_b32 s{sT[5]}, s{sH}, 15
s_lshl_b32 s{sT[5]}, s{sT[5]}, 4
s_add_u32 s{sT[4]}, s{sT[4]}, s{sT[5]}
s_lshl_b32 s{sT[5]}, s{sCQ}, 8
s_add_u32 s{sT[4]}, s{sT[4]}, s{sT[5]}
s_add_u32 s{sT[4]}, s{sT[4]}, {ML_OFF}
v_and_b32 v{t3}, 1, v{vN}
v_lshlrev_b32 v{t3}, 4, v{t3}
v_mov_b32 v{mM}, 0xffff
v_lshlrev_b32 v{t3}, v{t3}, v{mM}
v_lshrrev_b32 v{mM}, 1, v{vN}
""")
for d in range(4):
    a(f"v_cmp_eq_u32 vcc, {d}, v{mM}")
    a(f"v_cndmask_b32 v{MK+d}, 0, v{t3}, vcc")
a(f"""
s_mul_i32 s{sT[5]}, s{sW}, 272
s_add_u32 s{sT[5]}, s{sT[5]}, {L_CL}
v_lshlrev_b32 v{vCLw}, 4, v{vN}
v_lshl_add_u32 v{vCLw}, v{vG}, 3, v{vCLw}
v_add_u32 v{vCLw}, s{sT[5]}, v{vCLw}
s_mov_b32 s{sT[6]}, 0x03020302
""")
if OACK: a("s_waitcnt vmcnt(0)")
stamp("O acked")
a(f"s_mov_b32 s{sCNT}, 0")
a("L_pollm:")
a(f"""
buffer_load_dwordx4 {v(HM,4)}, v{t1}, {srd(R_WS)}, s{sT[4]} offen sc1
buffer_load_dwordx4 {v(HM+4,4)}, v{t2}, {srd(R_WS)}, s{sT[4]} offen sc1
s_waitcnt vmcnt(0)
v_bitop3_b32 v{ckE}, v{HM}, v{HM+1}, v{HM+3} bitop3:0x96
v_bitop3_b32 v{t3}, v{HM+4}, v{HM+5}, v{HM+7} bitop3:0x96
v_cmp_ne_u32 vcc, s{sEP}, v{ckE}
v_cmp_ne_u32 s[{sACC}:{sACC+1}], s{sEP}, v{t3}
s_or_b64 vcc, s[{sACC}:{sACC+1}], vcc
""")
poll_tail("L_pollm", MLSLEEP)
cstamp("ml retries")
stamp("ML ok")
for t in range(8):
    a(f"buffer_load_dwordx4 {v(HD+4*t,4)}, v{vHd2 if t >= 4 else t0}, {srd(R_WS)}, s{sT[0]} offen offset:{1024*(t&3)} sc1")
a(f"""
v_max_f32 v{mM}, v{HM}, v{HM+4}
v_max_f32_dpp v{mM}, v{mM}, v{mM} row_ror:1 row_mask:0xf bank_mask:0xf
v_max_f32_dpp v{mM}, v{mM}, v{mM} row_ror:2 row_mask:0xf bank_mask:0xf
v_sub_u32 v{ckS}, s{sEP}, v{HM+2}
v_max_f32_dpp v{mM}, v{mM}, v{mM} row_ror:4 row_mask:0xf bank_mask:0xf
v_cndmask_b32 v{ckS}, 0, v{ckS}, s[{sM8}:{sM8+1}]
v_max_f32_dpp v{mM}, v{mM}, v{mM} row_ror:8 row_mask:0xf bank_mask:0xf
v_sub_f32 v{wA}, v{HM}, v{mM}
v_sub_f32 v{wB}, v{HM+4}, v{mM}
v_exp_f32 v{wA}, v{wA}
v_exp_f32 v{wB}, v{wB}
v_perm_b32 v{wb}, v{wA}, v{wA}, s{sT[6]}
v_mul_f32 v{wA}, v{wA}, v{HM+1}
v_fmac_f32 v{wA}, v{wB}, v{HM+5}
""")
sfts = [1, 2, 4, 8]
for t in range(8):
    aw = AW + 4 * (t & 1)
    for d in range(4):
        a(f"v_and_b32_dpp v{aw+d}, v{wb}, v{MK+d} row_newbcast:{t} row_mask:0xf bank_mask:0xf")
    if t < 4:
        a(f"v_add_f32_dpp v{wA}, v{wA}, v{wA} row_ror:{sfts[t]} row_mask:0xf bank_mask:0xf")
    if t == 4:
        a(f"v_rcp_f32 v{wA}, v{wA}")
    a(f"s_waitcnt vmcnt({7-t})")
    a(f"v_add3_u32 v{ckS}, v{ckS}, v{HD+4*t}, v{HD+4*t+1}")
    mfma(CD, aw, HD+4*t, t == 0)
    a(f"v_add3_u32 v{ckS}, v{ckS}, v{HD+4*t+2}, v{HD+4*t+3}")
for sft in sfts:
    a(f"v_add_u32_dpp v{ckS}, v{ckS}, v{ckS} row_ror:{sft} row_mask:0xf bank_mask:0xf")
a(f"v_cmp_ne_u32 vcc, 0, v{ckS}")
for r in range(4): a(f"v_mul_f32 v{CD+r}, v{CD+r}, v{wA}")
a(f"v_cvt_pk_bf16_f32 v{CD+4}, v{CD}, v{CD+1}")
a(f"v_cvt_pk_bf16_f32 v{CD+5}, v{CD+2}, v{CD+3}")
poll_tail("L_pollm")
cstamp("o retries")
a(f"""
s_mov_b32 exec_hi, 0
ds_write_b64 v{vCLw}, {v(CD+4,2)}
s_mov_b64 exec, 1
ds_add_u32 v{vFL}, v{vONE} offset:{F_CL}
s_mov_b64 exec, -1
s_setprio 0
""")
stamp("combined")
a(f"""
s_cmp_eq_u32 s{sISF}, 1
s_cbranch_scc1 L_ffn
s_cmp_eq_u32 s{sISR}, 0
s_cbranch_scc1 L_fin
""")

SEL, RD, RA, RS, vH = 96, 100, 116, 120, 128
vMo, vXv = vT[4], vT[5]
for d in range(4): a(f"v_and_b32 v{SEL+d}, 0x3f803f80, v{MK+d}")
a(f"""
v_and_b32 v{t0}, 0x23, v{vL}
v_bfe_u32 v{t1}, v{vL}, 2, 1
v_lshl_add_u32 v{t0}, v{t1}, 4, v{t0}
v_bfe_u32 v{t1}, v{vL}, 3, 2
v_lshl_add_u32 v{t0}, v{t1}, 2, v{t0}
v_lshlrev_b32 v{vMo}, 1, v{t0}
s_lshl_b32 s{sT[0]}, s{sRHO}, 7
buffer_load_ushort v{vXv}, v{vMo}, {srd(R_X)}, s{sT[0]} offen
v_lshlrev_b32 v{t0}, 4, v0
s_lshl_b32 s{sT[1]}, s{sRHO}, 14
s_add_u32 s{sT[1]}, s{sT[1]}, {PA_OFF}
s_add_u32 s{sT[2]}, s{sT[1]}, 4096
s_add_u32 s{sT[3]}, s{sT[1]}, 8192
s_add_u32 s{sT[4]}, s{sT[1]}, 12288
s_lshl_b32 s{sT[5]}, s{sW}, 8
s_add_u32 s{sT[5]}, s{sT[5]}, {L_RED}
v_lshlrev_b32 v{t1}, 5, v{vN}
v_lshl_add_u32 v{t1}, v{vG}, 4, v{t1}
v_add_u32 v{t1}, s{sT[5]}, v{t1}
v_lshlrev_b32 v{t2}, 2, v{vL}
v_add_u32 v{t2}, {L_RED}, v{t2}
s_mul_i32 s{sT[5]}, s{sRHO}, 12288
s_add_u32 s{sT[5]}, s{sT[5]}, {PF_OFF}
s_add_u32 s{R_PF}, s{R_WS}, s{sT[5]}
s_addc_u32 s{R_PF+1}, s{R_WS+1}, 0
s_mov_b32 s{sT[6]}, 4096
s_mov_b32 s{sT[7]}, 8192
s_waitcnt vmcnt(0)
s_barrier
""")
def reduce_inbox(name, rs, sos):
    a(f"s_mov_b32 s{sCNT}, 0")
    a.label(name)
    for i, so in enumerate(sos):
        a(f"buffer_load_dwordx4 {v(RD+4*i,4)}, v{t0}, {srd(rs)}, {so} offen sc1")
    n = len(sos)
    for i in range(n):
        a(f"s_waitcnt vmcnt({n-1-i})")
        if i == 0: a(f"v_max3_u32 v{t3}, v{RD}, v{RD+1}, v{RD+2}")
        else: a(f"v_max3_u32 v{t3}, v{t3}, v{RD+4*i}, v{RD+4*i+1}")
        mfma(RA, SEL, RD+4*i, i == 0)
        if i == 0: a(f"v_max_u32 v{t3}, v{t3}, v{RD+3}")
        else: a(f"v_max3_u32 v{t3}, v{t3}, v{RD+4*i+2}, v{RD+4*i+3}")
    a(f"v_cmp_eq_u32 vcc, -1, v{t3}")
    poll_tail(name)
    for r in range(4):
        a(f"v_add_f32_dpp v{RA+r}, v{RA+r}, v{RA+r} row_ror:8 row_mask:0xf bank_mask:0xf")
    a(f"""
    s_mov_b64 exec, 0x00ff00ff
    ds_write_b128 v{t1}, {v(RA,4)}
    s_mov_b64 exec, -1
    s_waitcnt lgkmcnt(0)
    s_barrier
    """)
def final_sum():
    for k in range(2):
        a(f"ds_read2st64_b32 {v(RS+2*k,2)}, v{t2} offset0:{2*k} offset1:{2*k+1}")
    a("s_waitcnt lgkmcnt(0)")
    a(f"v_add_f32 v{RS}, v{RS}, v{RS+1}")
    a(f"v_add_f32 v{RS+2}, v{RS+2}, v{RS+3}")
    a(f"v_add_f32 v{RS}, v{RS}, v{RS+2}")
def pack_store(val, rs, so, pol):
    P = RS + 4
    a(f"v_mov_b32_dpp v{RS+2}, v{val} quad_perm:[1,1,3,3] row_mask:0xf bank_mask:0xf")
    a(f"v_cvt_pk_bf16_f32 v{P}, v{val}, v{RS+2}")
    a(f"v_mov_b32_dpp v{P+1}, v{P} quad_perm:[2,2,2,2] row_mask:0xf bank_mask:0xf")
    a(f"v_mov_b32_dpp v{P+2}, v{P} row_shl:8 row_mask:0xf bank_mask:0xf")
    a(f"v_mov_b32_dpp v{P+3}, v{P+1} row_shl:8 row_mask:0xf bank_mask:0xf")
    a(f"""
    s_mov_b32 exec_lo, 0x00110011
    s_mov_b32 exec_hi, 0x00110011
    buffer_store_dwordx4 {v(P,4)}, v{vMo}, {srd(rs)}, {so} offen{pol}
    s_mov_b64 exec, -1
    """)
reduce_inbox("L_pollr1", R_WS, [f"s{sT[1+i]}" for i in range(4)])
stamp("R1 gathered")
a(f"""
s_cmp_lg_u32 s{sW}, 0
s_cbranch_scc1 L_r1skip
""")
final_sum()
rne_bf16(RS, RS)
a(f"v_lshlrev_b32 v{vXv}, 16, v{vXv}")
a(f"v_add_f32 v{vH}, v{RS}, v{vXv}")
a(f"s_add_u32 s{sT[5]}, s{sT[0]}, {HG_OFF}")
pack_store(vH, R_WS, f"s{sT[5]}", " sc1")
rne_bf16(vH, vH)
a("L_r1skip:")
stamp("h published")
a("s_barrier")
a(f"s_sleep {opt('r2sleep', 32)}")
reduce_inbox("L_pollr2", R_PF, ["0", f"s{sT[6]}", f"s{sT[7]}"])
stamp("R2 gathered")
a(f"""
s_cmp_lg_u32 s{sW}, 0
s_cbranch_scc1 L_fin
""")
final_sum()
rne_bf16(RS, RS)
a(f"v_add_f32 v{vH}, v{RS}, v{vH}")
pack_store(vH, R_OUT, f"s{sT[0]}", "")
a(f"""
s_cmp_lg_u32 s{sRHO}, 0
s_cbranch_scc1 L_fin
v_mov_b32 v{t0}, {EPOCH_OFF}
v_mov_b32 v{t1}, s{sEP}
s_mov_b64 exec, 1
buffer_store_dword v{t1}, v{t0}, {srd(R_WS)}, 0 offen sc1
""")
if DBGT and PROBE:
    a(f"""
    v_mov_b32 v{vT[19]}, 16
    global_load_dword v{vT[20]}, v{vT[19]}, s[98:99] sc1
    s_waitcnt vmcnt(0)
    v_readfirstlane_b32 s94, v{vT[20]}
    """)
if DBGT and opt("padto", 0):
    a(f"""
    L_padspin:
    s_memrealtime s[{sTS}:{sTS+1}]
    s_waitcnt lgkmcnt(0)
    s_sub_u32 s{sTS}, s{sTS}, s94
    s_cmp_lt_u32 s{sTS}, {opt("padto", 0)}
    s_cbranch_scc1 L_padspin
    """)
if DBGT:
    a(f"""
    s_memrealtime s[{sTS}:{sTS+1}]
    s_memtime s[{sC2}:{sC2+1}]
    s_waitcnt lgkmcnt(0)
    s_sub_u32 s{sTS}, s{sTS}, s94
    s_sub_u32 s{sC2}, s{sC2}, s96
    v_mov_b32 v{t2}, s{sTS}
    v_mov_b32 v{t3}, s{sC2}
    v_mov_b32 v{t0}, 0
    global_store_dwordx2 v{t0}, {v(t2,2)}, s[98:99]
    """)
a("""
s_mov_b64 exec, -1
s_branch L_fin
""")

a("L_ffn:")
FGU, FD, HB, GD, FXR, DD, DP, CSA = 96, 128, 144, 160, 172, 188, 220, 188
lds_wait(F_BD, 4)
if PFWHEN == 1:
    a("s_barrier")
a(f"""
v_lshrrev_b32 v{t0}, 1, v{vL}
v_and_b32 v{t1}, 0x13, v{t0}
v_bfe_u32 v{t2}, v{t0}, 2, 1
v_lshl_add_u32 v{t1}, v{t2}, 3, v{t1}
v_bfe_u32 v{t2}, v{t0}, 3, 1
v_lshl_add_u32 v{t1}, v{t2}, 2, v{t1}
v_mul_u32_u24 v{t1}, 2752, v{t1}
v_and_b32 v{t2}, 1, v{vL}
v_lshl_add_u32 v{t1}, v{t2}, 4, v{t1}
s_mul_i32 s{sT[0]}, s{sW}, {128*2752}
s_lshl_b32 s{sT[1]}, s{sPHI}, 5
s_add_u32 s{sT[0]}, s{sT[0]}, s{sT[1]}
s_lshl_b32 s{sT[2]}, s{sW}, 12
""")
for i in range(4):
    a(f"s_add_u32 m0, s{sT[2]}, {L_G + 1024*i}")
    if i: a(f"s_add_u32 s{sT[0]}, s{sT[0]}, {32*2752}")
    a(f"buffer_load_dwordx4 v{t1}, {srd(R_WG)}, s{sT[0]} offen lds")
    a(f"s_add_u32 m0, s{sT[2]}, {L_U + 1024*i}")
    a(f"buffer_load_dwordx4 v{t1}, {srd(R_WU)}, s{sT[0]} offen lds")
a(f"""
s_and_b32 s{sT[0]}, s{sW}, 1
s_lshl_b32 s{sT[0]}, s{sT[0]}, 7
v_xor_b32 v{t0}, s{sT[0]}, v{vL16}
s_lshl_b32 s{sT[0]}, s{sPHI}, 14
s_add_u32 s{sT[0]}, s{sT[0]}, s{sT[2]}
s_add_u32 m0, s{sT[2]}, {L_WD}
""")
for i in range(4):
    if i: a(f"v_xor_b32 v{t2}, {32*i}, v{t0}")
    a(f"buffer_load_dwordx4 v{t2 if i else t0}, {srd(R_WD)}, s{sT[0]} offen offset:{1024*i} lds")
vFXw, vFXr, vSq, vSm, vCs, csg, csu, vPF, vHl = vT[4], vT[5], vT[6], vT[7], vT[8], vT[9], vT[10], vT[11], vT[12]
a(f"""
v_bfe_u32 v{t0}, v{vL}, 2, 3
v_lshrrev_b32 v{t1}, 1, v{vG}
v_lshl_add_u32 v{t0}, v{t1}, 4, v{t0}
v_and_b32 v{t2}, 3, v{vL}
v_lshlrev_b32 v{t2}, 3, v{t2}
v_lshl_add_u32 v{t3}, v{t0}, 5, v{t2}
s_add_u32 s{sT[0]}, s{sT[2]}, {L_G}
v_add_u32 v{t3}, s{sT[0]}, v{t3}
v_bfe_u32 v{t0}, v{vL}, 2, 4
v_and_b32 v{t1}, 7, v{t0}
v_lshl_add_u32 v{t1}, v{t1}, 5, v{t2}
v_lshl_add_u32 v{t1}, v{t0}, 10, v{t1}
s_lshl_b32 s{sT[0]}, s{sW}, 8
s_add_u32 s{sT[0]}, s{sT[0]}, {L_WD}
v_add_u32 v{t1}, s{sT[0]}, v{t1}
v_lshlrev_b32 v{vHl}, 10, v{vN}
v_lshl_add_u32 v{vHl}, v{vG}, 4, v{vHl}
s_lshl_b32 s{sT[1]}, s{sW}, 8
s_add_u32 s{sT[1]}, s{sT[1]}, {HG_OFF}
s_mul_i32 s{sT[2]}, s{sW}, 640
s_add_u32 s{sT[2]}, s{sT[2]}, {L_FX}
v_lshlrev_b32 v{vFXw}, 6, v{vG}
v_lshl_add_u32 v{vFXw}, v{vN}, 4, v{vFXw}
v_add_u32 v{vFXw}, s{sT[2]}, v{vFXw}
v_and_b32 v{t2}, 3, v{vN}
v_lshlrev_b32 v{vFXr}, 4, v{t2}
v_lshl_add_u32 v{vFXr}, v{vG}, 6, v{vFXr}
v_lshrrev_b32 v{t0}, 2, v{vN}
v_lshl_add_u32 v{vFXr}, v{t0}, 2, v{vFXr}
v_add_u32 v{vFXr}, {L_FX}, v{vFXr}
v_mul_u32_u24 v{vSq}, 20, v{t2}
v_add_u32 v{vSq}, {L_FX + 512}, v{vSq}
v_lshlrev_b32 v{vSm}, 4, v{t2}
v_add_u32 v{vSm}, {L_FX + 576}, v{vSm}
v_lshlrev_b32 v{vCs}, 4, v{vG}
v_lshl_add_u32 v{vCs}, v{t0}, 2, v{vCs}
v_add_u32 v{vCs}, {L_CS}, v{vCs}
s_mov_b32 s{sT[4]}, 98304
v_mul_lo_u32 v{vPF}, v{vN}, s{sT[4]}
v_lshl_add_u32 v{vPF}, v{vG}, 4, v{vPF}
s_mul_i32 s{sT[4]}, s{sW}, 24576
s_lshl_b32 s{sT[5]}, s{sPHI}, 7
s_add_u32 s{sT[4]}, s{sT[4]}, s{sT[5]}
s_add_u32 s{sT[4]}, s{sT[4]}, {PF_OFF}
s_add_u32 s{sT[5]}, s{sT[4]}, 12288
""")
for i in range(16): a(f"v_mov_b32 v{HB+i}, 0x3f803f80")
a("s_waitcnt vmcnt(4)")
for mat in range(2):
    for t in range(4):
        for vv in range(2):
            a(f"ds_read_b64_tr_b16 {v(FGU+16*mat+4*t+2*vv,2)}, v{t3} offset:{16384*mat + (32*t+8*vv)*32}")
a("s_waitcnt lgkmcnt(0)")
for mat in range(2):
    for t in range(4):
        mfma(CSA+4*mat, FGU+16*mat+4*t, HB, t == 0)
a(f"""
s_lshl_b32 s{sT[0]}, s{sW}, 7
s_add_u32 s{sT[0]}, s{sT[0]}, {L_CS}
v_lshlrev_b32 v{t0}, 4, v{vG}
v_add_u32 v{t0}, s{sT[0]}, v{t0}
s_mov_b32 exec_lo, 0x00010001
s_mov_b32 exec_hi, 0x00010001
ds_write_b128 v{t0}, {v(CSA,4)}
ds_write_b128 v{t0}, {v(CSA+4,4)} offset:64
s_mov_b64 exec, -1
s_waitcnt vmcnt(0) lgkmcnt(0)
s_barrier
""")
for mt in range(8):
    if mt: a(f"v_xor_b32 v{t2}, {32*mt}, v{t1}")
    a(f"ds_read_b64_tr_b16 {v(FD+2*mt,2)}, v{t2 if mt else t1}")
for k in range(4):
    a(f"ds_read2_b32 {v(FXR+2*k,2)}, v{vCs} offset0:{32*k} offset1:{32*k+16}")
a(f"""
s_waitcnt lgkmcnt(0)
v_add_f32 v{csg}, v{FXR}, v{FXR+2}
v_add_f32 v{csu}, v{FXR+1}, v{FXR+3}
v_add_f32 v{csg}, v{csg}, v{FXR+4}
v_add_f32 v{csu}, v{csu}, v{FXR+5}
v_add_f32 v{csg}, v{csg}, v{FXR+6}
v_add_f32 v{csu}, v{csu}, v{FXR+7}
""")
stamp("FFN prepped")
a(f"s_mov_b64 exec, s[{sM4}:{sM4+1}]")
a(f"s_mov_b32 s{sCNT}, 0")
a("L_pollh:")
for t in range(4):
    a(f"buffer_load_dwordx4 {v(HB+4*t,4)}, v{vHl}, {srd(R_WS)}, s{sT[1]} offen offset:{64*t} sc1")
a("s_waitcnt vmcnt(0)")
poison_check(list(range(HB, HB + 16)), t3)
poll_tail("L_pollh", opt("hsleep", 1))
a("s_mov_b64 exec, -1")
stamp("h gathered")
for t in range(4):
    for k in range(3):
        mfma(GD+4*k, FGU+16*k+4*t if k < 2 else HB+4*t, HB+4*t, t == 0)
a(f"""
s_mov_b64 exec, s[{sM4}:{sM4+1}]
ds_write_b128 v{vFXw}, {v(GD,4)}
ds_write_b128 v{vFXw}, {v(GD+4,4)} offset:256
s_mov_b64 exec, 0x000f000f
ds_write_b128 v{vFXw}, {v(GD+8,4)} offset:512
s_mov_b64 exec, -1
s_waitcnt lgkmcnt(0)
s_barrier
""")
for k in range(4):
    a(f"ds_read_b32 v{FXR+8+k}, v{vSq} offset:{640*k}")
    a(f"ds_read_b32 v{FXR+12+k}, v{vSm} offset:{640*k}")
for k in range(4):
    a(f"ds_read_b32 v{FXR+2*k}, v{vFXr} offset:{640*k}")
    a(f"ds_read_b32 v{FXR+2*k+1}, v{vFXr} offset:{640*k+256}")
gg, uu, sq, sm = vT[13], vT[14], vT[15], vT[16]
a(f"""
s_waitcnt lgkmcnt(8)
v_add_f32 v{sm}, v{FXR+12}, v{FXR+13}
v_add_f32 v{sq}, v{FXR+8}, v{FXR+9}
v_add_f32 v{sm}, v{sm}, v{FXR+14}
v_add_f32 v{sq}, v{sq}, v{FXR+10}
v_add_f32 v{sm}, v{sm}, v{FXR+15}
v_add_f32 v{sq}, v{sq}, v{FXR+11}
v_mul_f32 v{sm}, 0x3b000000, v{sm}
v_mul_f32 v{sq}, 0x3b000000, v{sq}
v_fma_f32 v{sq}, -v{sm}, v{sm}, v{sq}
v_max_f32 v{sq}, 0, v{sq}
v_add_f32 v{sq}, 0x3727c5ac, v{sq}
v_rsq_f32 v{sq}, v{sq}
s_waitcnt lgkmcnt(0)
v_add_f32 v{gg}, v{FXR}, v{FXR+2}
v_add_f32 v{uu}, v{FXR+1}, v{FXR+3}
v_add_f32 v{gg}, v{gg}, v{FXR+4}
v_add_f32 v{uu}, v{uu}, v{FXR+5}
v_add_f32 v{gg}, v{gg}, v{FXR+6}
v_add_f32 v{uu}, v{uu}, v{FXR+7}
v_fma_f32 v{gg}, -v{sm}, v{csg}, v{gg}
v_fma_f32 v{uu}, -v{sm}, v{csu}, v{uu}
v_mul_f32 v{gg}, v{gg}, v{sq}
v_mul_f32 v{uu}, v{uu}, v{sq}
v_mul_f32 v{sm}, {f32(-math.log2(math.e))}, v{gg}
v_exp_f32 v{sm}, v{sm}
v_mul_f32 v{gg}, v{gg}, v{uu}
v_add_f32 v{sm}, 1.0, v{sm}
v_rcp_f32 v{sm}, v{sm}
v_mul_f32 v{gg}, v{gg}, v{sm}
v_mov_b32_dpp v{uu}, v{gg} row_shl:4 row_mask:0xf bank_mask:0xf
v_cvt_pk_bf16_f32 v{FXR}, v{gg}, v{uu}
v_mov_b32_dpp v{FXR+1}, v{FXR} row_shl:8 row_mask:0xf bank_mask:0xf
""")
for mt in range(8): mfma(DD+4*mt, FD+2*mt, FXR, True, k16=True)
a(f"s_mov_b64 exec, s[{sM4}:{sM4+1}]")
for p in range(4):
    for k in range(4):
        a(f"v_cvt_pk_bf16_f32 v{DP+4*p+k}, v{DD+8*p+2*k}, v{DD+8*p+2*k+1}")
    a(f"buffer_store_dwordx4 {v(DP+4*p,4)}, v{vPF}, {srd(R_WS)}, s{sT[4+(p>>1)]} offen offset:{64*(p&1)} sc1")
a("s_mov_b64 exec, -1")
stamp("FFN published")
a("s_branch L_fin")

a("L_wave45:")
PZ = vT[4]
a(f"""
s_lshl_b32 s{sT[3]}, s{sK}, 16
s_lshl_b32 s{sT[4]}, s{sCH}, 17
s_add_u32 s{sT[4]}, s{sT[4]}, s{sT[3]}
s_lshl_b32 s{sT[1]}, s{sK}, 4
v_add_u32 v{vT[11]}, s{sT[1]}, v{vFL}
""")
def dma_all(win, tag, nclr_after):
    signalled = 0
    first = (64 - AQ) if tag == "A" else 0
    torder = [((first // 16) + k) % 4 for k in range(4)]
    for idx in range(64):
        i = (first + idx) % 64
        if i % 4 == 0:
            a(f"s_add_u32 m0, s{sT[3]}, {i*1024}")
            a(f"s_add_u32 s{sT[5]}, s{sT[4]}, {i*1024}")
        tmp = vT[i & 1]
        a(f"v_xor_b32 v{tmp}, {fsw(i & 15)*16}, v{vL16}")
        if idx >= win:
            a(f"s_waitcnt vmcnt({win-1})")
            done = idx - win + 1
            if idx == win and nclr_after: lds_signal(F_CLR)
            if done >= 16 * (signalled + 1):
                lds_signal(F_TILE + 4 * torder[signalled], base=vT[11]); signalled += 1
        a(f"buffer_load_dwordx4 v{tmp}, {srd(R_CKV)}, s{sT[5]} offen offset:{(i&3)*1024} nt lds")
    lds_signal(F_GO)
    stamp("dma issued")
    while signalled < 4:
        a(f"s_waitcnt vmcnt({64 - 16*(signalled+1)})")
        lds_signal(F_TILE + 4 * torder[signalled], base=vT[11]); signalled += 1
    stamp("ckv landed")
a(f"""
s_cmp_eq_u32 s{sHGB}, 0
s_cbranch_scc1 L_w45free
s_setprio 3
s_lshl_b32 s{sT[1]}, s{sK}, 10
buffer_load_dwordx4 {v(XR,4)}, v{vL16}, {srd(R_X)}, s{sT[1]} offen
s_waitcnt vmcnt(0)
""")
ln_row()
lds_signal(F_XN)
a("s_setprio 0")
lds_wait(F_WQI, 4, sleep=2)
dma_all(DWIN_A, "A", False)
a("s_branch L_w45pf")
a("L_w45free:")
dma_all(DWIN_F, "F", False)
a("L_w45pf:")
a(f"""
v_lshrrev_b32 v{t0}, 2, v{vL}
v_mul_u32_u24 v{t0}, 2752, v{t0}
v_and_b32 v{t1}, 3, v{vL}
v_lshlrev_b32 v{t1}, 7, v{t1}
v_min_u32 v{t1}, 348, v{t1}
v_add_u32 v{t0}, v{t0}, v{t1}
s_mul_i32 s{sT[1]}, s{sY}, {16*2752}
s_mul_i32 s{sT[2]}, s{sX}, 352
s_add_u32 s{sT[1]}, s{sT[1]}, s{sT[2]}
v_min_u32 v{t1}, 21, v{vL}
v_lshlrev_b32 v{t1}, 7, v{t1}
s_mul_i32 s{sT[2]}, s{sX}, {176*1024}
s_lshl_b32 s{sT[3]}, s{sY}, 1
s_add_u32 s{sT[3]}, s{sT[3]}, s{sK}
s_mul_i32 s{sT[3]}, s{sT[3]}, {22*128}
s_add_u32 s{sT[2]}, s{sT[2]}, s{sT[3]}
""")
def ffn_pf(tag, s1, s2):
    a(f"""
    buffer_load_dword v{vDUM+1}, v{t1}, {srd(R_WD)}, s{s2} offen
    s_cmp_eq_u32 s{sW}, 5
    s_cbranch_scc1 L_w5up{tag}
    buffer_load_dword v{vDUM}, v{t0}, {srd(R_WG)}, s{s1} offen
    s_branch L_pfd{tag}
    L_w5up{tag}:
    buffer_load_dword v{vDUM}, v{t0}, {srd(R_WU)}, s{s1} offen
    L_pfd{tag}:
    """)
if PFWHEN == 0:
    lds_wait(F_RI, 2, sleep=4)
    ffn_pf("a", sT[1], sT[2])
else:
    a(f"s_mov_b32 s{sT[9]}, s{sT[1]}")
    a(f"s_mov_b32 s{sT[10]}, s{sT[2]}")
a("s_branch L_phaseC")

a("L_wave67:")
RAW = 32
a(f"s_and_b32 s{sT[0]}, s{sW}, 1")
if CODEPF:
    a(f"""
    s_getpc_b64 s[{sC2}:{sC2+1}]
    L_pcref:
    s_sub_u32 s{sC2}, s{sC2}, L_pcref-{KNAME}
    s_subb_u32 s{sC2+1}, s{sC2+1}, 0
    v_lshlrev_b32 v{t0}, 7, v{vL}
    s_lshl_b32 s{sT[2]}, s{sT[0]}, 13
    v_add_u32 v{t0}, s{sT[2]}, v{t0}
    v_add_u32 v{t1}, 16384, v{t0}
    v_min_u32 v{t0}, L_end-{KNAME}, v{t0}
    v_min_u32 v{t1}, L_end-{KNAME}, v{t1}
    """)
a(f"""
s_cmp_eq_u32 s{sHGB}, 0
s_cbranch_scc1 L_noLN
s_setprio 3
s_lshl_b32 s{sT[1]}, s{sK}, 10
buffer_load_dwordx4 {v(XR,4)}, v{vL16}, {srd(R_X)}, s{sT[1]} offen
s_waitcnt vmcnt(0)
""")
ln_row()
lds_signal(F_XN)
stamp("LN done")
a("s_branch L_w67rest")
a("L_noLN:")
if CODEPF:
    a(f"""
    global_load_dword v{vDUM}, v{t0}, s[{sC2}:{sC2+1}]
    global_load_dword v{vDUM+1}, v{t1}, s[{sC2}:{sC2+1}]
    """)
a("L_w67rest:")
def clears():
    a(f"""
    v_and_b32 v{vT[8]}, 7, v{vL}
    v_lshlrev_b32 v{vT[8]}, 4, v{vT[8]}
    v_bfe_u32 v{vT[9]}, v{vL}, 3, 1
    v_lshl_add_u32 v{vT[10]}, v{vT[9]}, 14, v{vT[8]}
    v_lshl_add_u32 v{vT[10]}, v{vG}, 17, v{vT[10]}
    s_lshl_b32 s{sT[1]}, s{sMH}, 1
    s_add_u32 s{sT[1]}, s{sT[1]}, s{sT[0]}
    s_lshl_b32 s{sT[1]}, s{sT[1]}, 15
    s_lshl_b32 s{sT[2]}, s{sH}, 2
    s_add_u32 s{sT[2]}, s{sT[2]}, s{sCQ}
    s_lshl_b32 s{sT[2]}, s{sT[2]}, 7
    s_add_u32 s{sT[1]}, s{sT[1]}, s{sT[2]}
    s_add_u32 s{sT[1]}, s{sT[1]}, {PA_OFF}
    buffer_store_dwordx4 {v(PZ,4)}, v{vT[10]}, {srd(R_WS)}, s{sT[1]} offen sc1
    """)
a(f"""
v_mov_b32 v{PZ}, -1
v_mov_b32 v{PZ+1}, -1
v_mov_b32 v{PZ+2}, -1
v_mov_b32 v{PZ+3}, -1
""")
clears()
a(f"""
s_cmp_eq_u32 s{sISR}, 0
s_cbranch_scc1 L_noclrH
s_cmp_lg_u32 s{sW}, 7
s_cbranch_scc1 L_noclrH
s_lshl_b32 s{sT[1]}, s{sRHO}, 7
s_add_u32 s{sT[1]}, s{sT[1]}, {HG_OFF}
s_mov_b64 exec, 0xff
buffer_store_dwordx4 {v(PZ,4)}, v{vL16}, {srd(R_WS)}, s{sT[1]} offen sc1
s_mov_b64 exec, -1
L_noclrH:
s_cmp_eq_u32 s{sISF}, 0
s_cbranch_scc1 L_noclrF
v_mul_u32_u24 v{vT[10]}, 12288, v{vT[9]}
v_add_u32 v{vT[10]}, v{vT[10]}, v{vT[8]}
s_mov_b32 s{sT[1]}, 98304
v_mul_lo_u32 v{vT[9]}, v{vG}, s{sT[1]}
v_add_u32 v{vT[10]}, v{vT[10]}, v{vT[9]}
s_mul_i32 s{sT[1]}, s{sT[0]}, 49152
s_lshl_b32 s{sT[2]}, s{sPHI}, 7
s_add_u32 s{sT[1]}, s{sT[1]}, s{sT[2]}
s_add_u32 s{sT[1]}, s{sT[1]}, {PF_OFF}
s_add_u32 s{sT[2]}, s{sT[1]}, 24576
buffer_store_dwordx4 {v(PZ,4)}, v{vT[10]}, {srd(R_WS)}, s{sT[1]} offen sc1
buffer_store_dwordx4 {v(PZ,4)}, v{vT[10]}, {srd(R_WS)}, s{sT[2]} offen sc1
L_noclrF:
s_waitcnt vmcnt(0)
""")
lds_signal(F_CLR)
a("s_setprio 0")
a(f"""
v_lshlrev_b32 v{vT[4]}, 13, v{vG}
v_lshl_add_u32 v{vT[4]}, v{vN}, 4, v{vT[4]}
s_lshl_b32 s{sT[1]}, s{sCQ}, 7
s_lshl_b32 s{sT[2]}, s{sT[0]}, 6
s_add_u32 s{sT[1]}, s{sT[1]}, s{sT[2]}
s_lshl_b32 s{sT[1]}, s{sT[1]}, 13
s_lshl_b32 s{sT[2]}, s{sH}, 8
s_add_u32 s{sT[1]}, s{sT[1]}, s{sT[2]}
v_lshrrev_b32 v{vT[5]}, 5, v{vL}
v_lshlrev_b32 v{vT[5]}, 10, v{vT[5]}
v_and_b32 v{vT[6]}, 31, v{vL}
v_lshl_add_u32 v{vT[5]}, v{vT[6]}, 4, v{vT[5]}
s_lshl_b32 s{sT[2]}, s{sH}, 17
s_lshl_b32 s{sT[3]}, s{sT[0]}, 16
s_add_u32 s{sT[2]}, s{sT[2]}, s{sT[3]}
s_lshl_b32 s{sT[3]}, s{sMH}, 9
s_add_u32 s{sT[2]}, s{sT[2]}, s{sT[3]}
s_waitcnt vmcnt(0)
""")
lds_wait(F_GO, 2, sleep=2)
for i in range(16):
    if i: a(f"s_add_u32 s{sT[1]}, s{sT[1]}, 32768")
    if i >= RWIN: a(f"s_waitcnt vmcnt({RWIN-1})")
    a(f"buffer_load_dwordx4 {v(RAW+4*i,4)}, v{vT[4]}, {srd(R_WUV)}, s{sT[1]} offen nt")
for i in range(32):
    if i and i % 2 == 0: a(f"s_add_u32 s{sT[2]}, s{sT[2]}, 4096")
    if i + 16 >= RWIN: a(f"s_waitcnt vmcnt({RWIN-1})")
    a(f"buffer_load_dwordx4 {v(RAW+64+4*i,4)}, v{vT[5]}, {srd(R_WO)}, s{sT[2]} offen offset:{(i&1)*2048} nt")
lds_signal(F_RI)
stamp("rest issued")
a(f"""
v_lshlrev_b32 v{t0}, 5, v{vG}
v_lshlrev_b32 v{t1}, 4, v{vN}
v_xor_b32 v{t0}, v{t0}, v{t1}
v_lshl_add_u32 v{t0}, v{vG}, 8, v{t0}
s_lshl_b32 s{sT[1]}, s{sT[0]}, 14
v_add_u32 v{t0}, s{sT[1]}, v{t0}
v_xor_b32 v{t1}, 128, v{t0}
v_lshrrev_b32 v{t2}, 5, v{vL}
v_and_b32 v{vT[4]}, 31, v{vL}
v_lshlrev_b32 v{vT[4]}, 4, v{vT[4]}
v_lshlrev_b32 v{t3}, 5, v{t2}
v_xor_b32 v{vT[4]}, v{vT[4]}, v{t3}
v_lshl_add_u32 v{vT[4]}, v{t2}, 9, v{vT[4]}
s_lshl_b32 s{sT[1]}, s{sT[0]}, 15
s_add_u32 s{sT[1]}, s{sT[1]}, {L_WO}
v_add_u32 v{vT[4]}, s{sT[1]}, v{vT[4]}
v_xor_b32 v{vT[5]}, 64, v{vT[4]}
v_xor_b32 v{vT[6]}, 128, v{vT[4]}
v_xor_b32 v{vT[7]}, 192, v{vT[4]}
""")
lds_wait(F_BD, 4, sleep=1)
for i in range(16):
    if 47 - i < RWIN: a(f"s_waitcnt vmcnt({47-i})")
    a(f"ds_write_b128 v{t1 if (i>>1)&1 else t0}, {v(RAW+4*i,4)} offset:{L_WUV + 1024*i}")
for i in range(32):
    if 31 - i < RWIN: a(f"s_waitcnt vmcnt({31-i})")
    sel = (i & 1) | (((i >> 2) & 1) << 1)
    a(f"ds_write_b128 v{vT[4+sel]}, {v(RAW+64+4*i,4)} offset:{1024*i}")
lds_signal(F_ST)
stamp("images written")

a("L_phaseC:")
FUV, FO, CB, XD, AD, AP = 32, 64, 128, 144, 160, 176
vUVa, vOa, vCLr, vCXw, vCXr, vPA = vT[4], vT[5], vT[6], vT[7], vT[8], vT[9]
a(f"""
v_bfe_u32 v{vT[12]}, v{vL}, 2, 2
v_and_b32 v{vT[13]}, 1, v{vG}
v_lshl_add_u32 v{vT[13]}, v{vT[13]}, 2, v{vT[12]}
v_lshl_add_u32 v{vT[12]}, v{vG}, 3, v{vT[12]}
v_and_b32 v{vT[14]}, 3, v{vL}
v_lshlrev_b32 v{vT[14]}, 3, v{vT[14]}
s_lshl_b32 s{sT[0]}, s{sK}, 1
v_xor_b32 v{vUVa}, s{sT[0]}, v{vT[13]}
v_lshl_add_u32 v{vUVa}, v{vUVa}, 5, v{vT[14]}
v_lshl_add_u32 v{vUVa}, v{vT[12]}, 8, v{vUVa}
s_lshl_b32 s{sT[0]}, s{sK}, 2
v_xor_b32 v{vOa}, s{sT[0]}, v{vT[13]}
v_lshl_add_u32 v{vOa}, v{vOa}, 5, v{vT[14]}
v_lshl_add_u32 v{vOa}, v{vT[12]}, 9, v{vOa}
v_add_u32 v{vOa}, {L_WO}, v{vOa}
v_and_b32 v{vT[12]}, 3, v{vN}
v_mul_u32_u24 v{vT[12]}, 272, v{vT[12]}
v_lshl_add_u32 v{vCXr}, v{vG}, 4, v{vT[12]}
v_add_u32 v{vCLr}, {L_CL}, v{vCXr}
v_add_u32 v{vCXr}, {L_CX}, v{vCXr}
v_lshl_add_u32 v{vCXw}, v{vG}, 3, v{vT[12]}
s_lshl_b32 s{sT[0]}, s{sK}, 6
s_add_u32 s{sT[0]}, s{sT[0]}, {L_CX}
v_add_u32 v{vCXw}, s{sT[0]}, v{vCXw}
v_lshlrev_b32 v{vPA}, 4, v{vG}
v_lshl_add_u32 v{vPA}, v{vN}, 17, v{vPA}
s_lshl_b32 s{sT[1]}, s{sMH}, 2
s_add_u32 s{sT[1]}, s{sT[1]}, s{sK}
s_lshl_b32 s{sT[1]}, s{sT[1]}, 14
s_lshl_b32 s{sT[2]}, s{sH}, 2
s_add_u32 s{sT[2]}, s{sT[2]}, s{sCQ}
s_lshl_b32 s{sT[2]}, s{sT[2]}, 7
s_add_u32 s{sT[1]}, s{sT[1]}, s{sT[2]}
s_add_u32 s{sT[1]}, s{sT[1]}, {PA_OFF}
""")
lds_wait(F_ST, 2, sleep=1)
for mt in range(2):
    if mt: a(f"v_xor_b32 v{vT[12]}, 32, v{vUVa}")
    for ks in range(4):
        for vv in range(2):
            a(f"ds_read_b64_tr_b16 {v(FUV+16*mt+4*ks+2*vv,2)}, v{vT[12] if mt else vUVa} offset:{L_WUV + (32*ks+4*vv)*256}")
for mt in range(4):
    if mt: a(f"v_xor_b32 v{vT[12]}, {32*mt}, v{vOa}")
    for ks in range(4):
        for vv in range(2):
            a(f"ds_read_b64_tr_b16 {v(FO+16*mt+4*ks+2*vv,2)}, v{vT[12] if mt else vOa} offset:{(32*ks+4*vv)*512}")
stamp("weights staged")
a("s_setprio 2")
def spec_cl():
    for ks in range(4): a(f"ds_read_b128 {v(CB+4*ks,4)}, v{vCLr} offset:{64*ks}")
lds_wait(F_CL, 4, spec_cl)
if PFWHEN == 1:
    a(f"""
    s_cmp_ge_u32 s{sW}, 6
    s_cbranch_scc1 L_nopf2
    """)
    ffn_pf("b", sT[9], sT[10])
    a("L_nopf2:")
for ks in range(4):
    for mt in range(2): mfma(XD+4*mt, FUV+16*mt+4*ks, CB+4*ks, ks == 0)
for k in range(4): a(f"v_cvt_pk_bf16_f32 v{XD+8+k}, v{XD+2*k}, v{XD+2*k+1}")
a(f"""
s_mov_b64 exec, s[{sM4}:{sM4+1}]
ds_write_b64 v{vCXw}, {v(XD+8,2)}
ds_write_b64 v{vCXw}, {v(XD+10,2)} offset:32
""")
lds_signal(F_CX)
def spec_cx():
    for ks in range(4): a(f"ds_read_b128 {v(CB+4*ks,4)}, v{vCXr} offset:{64*ks}")
lds_wait(F_CX, 4, spec_cx)
for p in range(2):
    for ks in range(4):
        for k in range(2):
            mt = 2 * p + k
            mfma(AD+4*mt, FO+16*mt+4*ks, CB+4*ks, ks == 0)
a(f"s_mov_b64 exec, s[{sM4}:{sM4+1}]")
for p in range(2):
    for k in range(4): a(f"v_cvt_pk_bf16_f32 v{AP+4*p+k}, v{AD+8*p+2*k}, v{AD+8*p+2*k+1}")
    a(f"buffer_store_dwordx4 {v(AP+4*p,4)}, v{vPA}, {srd(R_WS)}, s{sT[1]} offen offset:{64*p} sc1")
a("s_mov_b64 exec, -1")
stamp("attn partial published")
a("s_waitcnt vmcnt(0)")

a("L_fin:")
if PROF:
    stamp("end")
    a(f"""
    s_lshl_b32 s{sT[0]}, s2, 3
    s_add_u32 s{sT[0]}, s{sT[0]}, s{sW}
    s_lshl_b32 s{sT[0]}, s{sT[0]}, 8
    s_add_u32 s{sT[0]}, s{sT[0]}, {TS_OFF}
    v_lshlrev_b32 v{t0}, 2, v{vL}
    buffer_store_dword v{vTSA}, v{t0}, {srd(R_WS)}, s{sT[0]} offen
    """)
a("L_end:")

hdr = open("sequential_preLN__compressed_kv_cla__swiglu_ffn__decode.s.ref").read().split("; @launch")[0]
open(OUT, "w").write(wrap_single(a.text(), 256, 512, LDS_BYTES, vgpr=256, header=hdr))
print("instructions:", a.ninstr, file=sys.stderr)
```

```python
import sys, math, struct
from asmgen import *

def opt(name, default):
    for x in sys.argv[1:]:
        if x.startswith("--" + name + "="):
            return int(x.split("=")[1])
    return default
PROF = "--prof" in sys.argv
DBGT = "--dbgtime" in sys.argv
OUT = [a for a in sys.argv[1:] if not a.startswith("--")]
OUT = OUT[0] if OUT else "sequential_preLN__compressed_kv_cla__swiglu_ffn__decode.s"
POLL_MAX = 1 << 15
LSPIN_MAX = 1 << 20
DWIN_A = opt("dwina", 14)
DWIN_F = opt("dwinf", 20)
RWIN = opt("rwin", 12)
UKPF = opt("ukpf", 1)
CODEPF = opt("codepf", 1)
QSLEEP = opt("qsleep", 4)
OACK = opt("oack", 1)
POLS = [" nt", "", " sc0", " sc1", " sc0 nt"]
P_WQ = POLS[opt("pwq", 0)]; P_CK = POLS[opt("pck", 0)]; P_R = POLS[opt("pr", 0)]
AQ = opt("aq", 16)
PFWHEN = opt("pfwhen", 1)
MLSLEEP = opt("mlsleep", 2)
FFNDLY = opt("ffndly", 24)

EPOCH_OFF = 0x0
QA_OFF = 0x10000
HG_OFF = 0x58000
PA_OFF = 0x80000
PF_OFF = 0x100000
O_OFF = 0x200000
ML_OFF = 0x600000
TS_OFF = 0x1000000
WS_USED = 0x1100000

L_QS = 131072
L_XN = 147456
L_Q16 = 151616
L_MX = 152640
L_PX = 153152
L_CL = 157248
L_CX = 159488
L_RED = 160576
L_CS = 162624
L_FL = 163136
LDS_BYTES = 163840
L_WUV, L_WO = 0, 32768
L_G, L_U, L_WD = 98304, 114688, L_QS
L_FX = L_PX
(F_XN, F_CLR, F_QP, F_Q16, F_QS, F_P, F_GO, F_WQI) = [4 * i for i in range(8)]
F_TILE = 32
(F_RI, F_BD, F_ST, F_CL, F_CX) = [64 + 4 * i for i in range(5)]

sW, sX, sY, sH, sYP, sCQ, sMH, sHGB, sCH, sEP = 3, 4, 5, 6, 7, 8, 9, 10, 11, 12
sT = list(range(13, 24))
sO, sHA, sJQ, sPHI, sRHO, sISF, sISR, sCNT = 24, 25, 26, 27, 28, 29, 30, 31
R_X, R_CKV, R_WQ, R_WUK, R_WUV, R_WO, R_WG, R_WU, R_WD, R_OUT, R_WS, R_PF = [32 + 4 * i for i in range(12)]
sSELLO, sSELHI = 80, 81
sM8 = 82
sM4 = 84
sACC = 86
sC2 = 88
sTS = 90
sK = 92
def srd(r): return f"s[{r}:{r+3}]"
def f32(x): return "0x%08x" % struct.unpack("<I", struct.pack("<f", x))[0]

vL, vN, vG, vL16, vFL, vONE, vTSA = 1, 2, 3, 4, 5, 6, 7
vT = list(range(8, 32))
t0, t1, t2, t3 = vT[0], vT[1], vT[2], vT[3]
vSP = vT[23]
vDUM = vT[21]
def v(i, n=1): return f"v{i}" if n == 1 else f"v[{i}:{i+n-1}]"
def fsw(row): return 2 * ((row & 7) ^ (4 * (row >> 3))) + (row >> 3)

a = Asm()
stamps = {}
PROBE = [x.split("=", 1)[1].replace("_", " ") for x in sys.argv if x.startswith("--probe=")]
def stamp(name):
    if PROBE and PROBE[0] == name.replace("_", " "):
        a(f"""
        s_memrealtime s[94:95]
        s_waitcnt lgkmcnt(0)
        v_mov_b32 v{vT[19]}, 16
        v_mov_b32 v{vT[20]}, s94
        s_mov_b64 s[100:101], exec
        s_mov_b64 exec, 1
        global_atomic_umax v{vT[19]}, v{vT[20]}, s[98:99] sc1
        s_mov_b64 exec, s[100:101]
        """)
    if not PROF: return
    if name not in stamps:
        stamps[name] = len(stamps)
    i = stamps[name]
    a(f"""
    s_memrealtime s[{sTS}:{sTS+1}]
    s_waitcnt lgkmcnt(0)
    v_writelane_b32 v{vTSA}, s{sTS}, {i}
    """)
def cstamp(name):
    if not PROF: return
    name = "#" + name
    if name not in stamps:
        stamps[name] = len(stamps)
    a(f"s_add_u32 s{sTS}, s{sCNT}, 1")
    a(f"v_writelane_b32 v{vTSA}, s{sTS}, {stamps[name]}")
def poll_tail(name, sleep=0):
    done = a.newlabel("Lpd")
    a(f"""
    s_cmp_eq_u64 vcc, 0
    s_cbranch_scc1 {done}
    """)
    if sleep: a(f"s_sleep {sleep}")
    a(f"""
    s_add_u32 s{sCNT}, s{sCNT}, 1
    s_cmp_lt_u32 s{sCNT}, {POLL_MAX}
    s_cbranch_scc1 {name}
    """)
    a.label(done)
def poison_check(regs, tmp):
    regs = list(regs); n = len(regs)
    a(f"v_max3_u32 v{tmp}, v{regs[0]}, v{regs[1]}, v{regs[2]}")
    i = 3
    while i + 1 < n:
        a(f"v_max3_u32 v{tmp}, v{tmp}, v{regs[i]}, v{regs[i+1]}"); i += 2
    if i < n: a(f"v_max_u32 v{tmp}, v{tmp}, v{regs[i]}")
    a(f"v_cmp_eq_u32 vcc, -1, v{tmp}")
def lds_signal(off, base=None):
    a(f"""
    s_mov_b64 exec, 1
    ds_add_u32 v{vFL if base is None else base}, v{vONE} offset:{off}
    s_mov_b64 exec, -1
    """)
def lds_wait(off, target, spec=None, sleep=0, base=None):
    lp, dn = a.newlabel("Lw"), a.newlabel("Lwd")
    a(f"s_mov_b32 s{sCNT}, 0")
    a.label(lp)
    a(f"ds_read_b32 v{vSP}, v{vFL if base is None else base} offset:{off}")
    if spec: spec()
    a(f"""
    s_waitcnt lgkmcnt(0)
    v_readfirstlane_b32 s{sACC}, v{vSP}
    s_cmp_ge_u32 s{sACC}, {target}
    s_cbranch_scc1 {dn}
    """)
    if sleep: a(f"s_sleep {sleep}")
    a(f"""
    s_add_u32 s{sCNT}, s{sCNT}, 1
    s_cmp_lt_u32 s{sCNT}, {LSPIN_MAX}
    s_cbranch_scc1 {lp}
    """)
    a.label(dn)
def rne_bf16(dst, src):
    a(f"v_cvt_pk_bf16_f32 v{dst}, v{src}, v{src}")
    a(f"v_and_b32 v{dst}, 0xffff0000, v{dst}")
def mfma(d, A, B, first, k16=False):
    n = 2 if k16 else 4
    op = "v_mfma_f32_16x16x16_bf16" if k16 else "v_mfma_f32_16x16x32_bf16"
    a(f"{op} {v(d,4)}, {v(A,n)}, {v(B,n)}, {'0' if first else v(d,4)}")

XR, XF = 32, 40
def ln_row():
    def wave_sum(x):
        for ctl in ["row_shr:1", "row_shr:2", "row_shr:4", "row_shr:8"]:
            a(f"v_add_f32_dpp v{x}, v{x}, v{x} {ctl} row_mask:0xf bank_mask:0xf bound_ctrl:0")
        a(f"v_add_f32_dpp v{x}, v{x}, v{x} row_bcast:15 row_mask:0xa bank_mask:0xf")
        a(f"v_add_f32_dpp v{x}, v{x}, v{x} row_bcast:31 row_mask:0xc bank_mask:0xf")
    xr, xf = XR, XF
    for i in range(4):
        a(f"v_lshlrev_b32 v{xf+2*i}, 16, v{xr+i}")
        a(f"v_and_b32 v{xf+2*i+1}, 0xffff0000, v{xr+i}")
    a(f"v_add_f32 v{xf+12}, v{xf}, v{xf+1}")
    for i in range(2, 8): a(f"v_add_f32 v{xf+12}, v{xf+12}, v{xf+i}")
    wave_sum(xf + 12)
    a(f"v_mov_b32 v{xf+15}, 0x3b000000")
    a(f"v_readlane_b32 s{sT[6]}, v{xf+12}, 63")
    a(f"v_mul_f32 v{xf+13}, s{sT[6]}, v{xf+15}")
    for i in range(8):
        a(f"v_sub_f32 v{xf+14}, v{xf+i}, v{xf+13}")
        if i == 0: a(f"v_mul_f32 v{xf+12}, v{xf+14}, v{xf+14}")
        else: a(f"v_fmac_f32 v{xf+12}, v{xf+14}, v{xf+14}")
    rne_bf16(xf + 13, xf + 13)
    wave_sum(xf + 12)
    for i in range(8): a(f"v_sub_f32 v{xf+i}, v{xf+i}, v{xf+13}")
    a(f"v_readlane_b32 s{sT[6]}, v{xf+12}, 63")
    for i in range(4): a(f"v_cvt_pk_bf16_f32 v{xf+8+i}, v{xf+2*i}, v{xf+2*i+1}")
    a(f"v_mul_f32 v{xf+12}, s{sT[6]}, v{xf+15}")
    rne_bf16(xf + 12, xf + 12)
    a(f"v_add_f32 v{xf+12}, 0x3727c5ac, v{xf+12}")
    rne_bf16(xf + 12, xf + 12)
    a(f"v_sqrt_f32 v{xf+12}, v{xf+12}")
    for i in range(4):
        a(f"v_lshlrev_b32 v{xf+2*i}, 16, v{xf+8+i}")
        a(f"v_and_b32 v{xf+2*i+1}, 0xffff0000, v{xf+8+i}")
    rne_bf16(xf + 12, xf + 12)
    a(f"v_rcp_f32 v{xf+12}, v{xf+12}")
    a(f"s_mul_i32 s{sT[6]}, s{sK}, 1040")
    a(f"s_add_u32 s{sT[6]}, s{sT[6]}, {L_XN}")
    a(f"v_add_u32 v{xf+15}, s{sT[6]}, v{vL16}")
    for i in range(8): a(f"v_mul_f32 v{xf+i}, v{xf+i}, v{xf+12}")
    for i in range(4): a(f"v_cvt_pk_bf16_f32 v{xf+8+i}, v{xf+2*i}, v{xf+2*i+1}")
    a(f"ds_write_b128 v{xf+15}, {v(xf+8,4)}")

EARLYPF = f"""s_getpc_b64 s[{sC2}:{sC2+1}]
v_lshlrev_b32 v{t1}, 6, v0
v_min_u32 v{t1}, L_end-{KNAME}-256, v{t1}
global_load_dword v{vDUM}, v{t1}, s[{sC2}:{sC2+1}]""" if opt("earlypf", 1) else ""
if opt("earlypf", 1): CODEPF = 0
a(f"""
s_cmp_ge_u32 s2, 256
s_cbranch_scc1 L_end
{"s_memrealtime s[94:95]" if DBGT else ""}
{"s_memtime s[96:97]" if DBGT else ""}
{"s_load_dwordx2 s[98:99], s[0:1], 88" if DBGT else ""}
s_load_dwordx2 s[{R_WQ}:{R_WQ+1}], s[0:1], 16
s_load_dwordx2 s[{R_CKV}:{R_CKV+1}], s[0:1], 8
s_load_dwordx2 s[{R_X}:{R_X+1}], s[0:1], 0
s_load_dwordx2 s[{R_WS}:{R_WS+1}], s[0:1], 96
s_load_dwordx2 s[{R_WUK}:{R_WUK+1}], s[0:1], 24
s_load_dwordx2 s[{R_WUV}:{R_WUV+1}], s[0:1], 32
s_load_dwordx2 s[{R_WO}:{R_WO+1}], s[0:1], 40
s_load_dwordx2 s[{R_WG}:{R_WG+1}], s[0:1], 56
s_load_dwordx2 s[{R_WU}:{R_WU+1}], s[0:1], 64
s_load_dwordx2 s[{R_WD}:{R_WD+1}], s[0:1], 72
s_load_dwordx2 s[{R_OUT}:{R_OUT+1}], s[0:1], 80
{EARLYPF}
v_lshrrev_b32 v{t0}, 6, v0
v_and_b32 v{vL}, 63, v0
v_and_b32 v{vN}, 15, v0
v_readfirstlane_b32 s{sW}, v{t0}
v_bfe_u32 v{vG}, v0, 4, 2
v_lshlrev_b32 v{t0}, 2, v{vL}
v_add_u32 v{t0}, {L_FL}, v{t0}
v_mov_b32 v{t3}, 0
ds_write_b32 v{t0}, v{t3}
v_lshlrev_b32 v{t0}, 3, v{vN}
v_add_u32 v{t0}, {L_MX}, v{t0}
v_mov_b32 v{t2}, 0xff800000
ds_write2_b32 v{t0}, v{t2}, v{t3} offset0:0 offset1:1
v_mov_b32 v{vFL}, {L_FL}
v_mov_b32 v{vONE}, 1
v_lshlrev_b32 v{vL16}, 4, v{vL}
""")
if PROF: a(f"v_mov_b32 v{vTSA}, 0")
for r, nb in [(R_WQ, 4 << 20), (R_CKV, 16 << 20), (R_X, 4096), (R_WS, WS_USED), (R_WUK, 4 << 20), (R_WUV, 4 << 20), (R_WO, 4 << 20),
              (R_WG, 512 * 1376 * 2), (R_WU, 512 * 1376 * 2), (R_WD, 512 * 1376 * 2), (R_OUT, 4096), (R_PF, 86 * 128)]:
    a(f"s_mov_b32 s{r+2}, {nb}")
    a(f"s_mov_b32 s{r+3}, 0x20000")
a(f"""
s_and_b32 s{sX}, s2, 7
s_lshr_b32 s{sY}, s2, 3
s_lshr_b32 s{sYP}, s2, 4
s_and_b32 s{sT[0]}, s{sY}, 1
s_xor_b32 s{sHGB}, s{sT[0]}, 1
s_lshl_b32 s{sH}, s{sT[0]}, 4
s_lshl_b32 s{sT[1]}, s{sX}, 1
s_add_u32 s{sH}, s{sH}, s{sT[1]}
s_and_b32 s{sT[1]}, s{sYP}, 1
s_add_u32 s{sH}, s{sH}, s{sT[1]}
s_bfe_u32 s{sCQ}, s{sY}, 0x20002
s_lshr_b32 s{sMH}, s{sY}, 4
s_lshl_b32 s{sCH}, s{sX}, 4
s_add_u32 s{sCH}, s{sCH}, s{sYP}
s_and_b32 s{sHA}, s{sYP}, 3
s_lshl_b32 s{sT[1]}, s{sX}, 2
s_add_u32 s{sHA}, s{sHA}, s{sT[1]}
s_lshr_b32 s{sJQ}, s{sYP}, 2
s_mov_b32 s{sSELLO}, 0x05040100
s_mov_b32 s{sSELHI}, 0x07060302
s_mov_b32 s{sM4}, 0x000f000f
s_mov_b32 s{sM4+1}, 0x000f000f
s_mov_b32 s{sM8}, 0x00ff00ff
s_mov_b32 s{sM8+1}, 0x00ff00ff
s_mul_i32 s{sPHI}, s{sX}, 11
s_add_u32 s{sPHI}, s{sPHI}, s{sYP}
s_cmp_lt_u32 s{sYP}, 11
s_cselect_b32 s{sISF}, s{sT[0]}, 0
s_cmp_lt_u32 s{sPHI}, 86
s_cselect_b32 s{sISF}, s{sISF}, 0
s_cmp_ge_u32 s{sYP}, 12
s_cselect_b32 s{sISR}, s{sHGB}, 0
s_sub_u32 s{sRHO}, s{sYP}, 12
s_lshl_b32 s{sRHO}, s{sRHO}, 3
s_add_u32 s{sRHO}, s{sRHO}, s{sX}
s_and_b32 s{sK}, s{sW}, 3
s_waitcnt lgkmcnt(0)
""")
stamp("start")
if opt("xcctest", 0):
    a(f"""
    s_cmp_lg_u32 s{sX}, 0
    s_cbranch_scc1 L_noxcc
    s_cmp_lg_u32 s{sW}, 7
    s_cbranch_scc1 L_noxcc
    s_getreg_b32 s{sT[1]}, hwreg(HW_REG_XCC_ID)
    s_and_b32 s{sT[1]}, s{sT[1]}, 15
    s_lshl_b32 s{sT[1]}, 1, s{sT[1]}
    v_mov_b32 v{vT[19]}, 20
    v_mov_b32 v{vT[20]}, s{sT[1]}
    s_mov_b64 exec, 1
    global_atomic_or v{vT[19]}, v{vT[20]}, s[98:99] sc1
    s_mov_b64 exec, -1
    s_waitcnt vmcnt(0)
    L_noxcc:
    """)
a(f"""
s_load_dword s{sEP}, s[{R_WS}:{R_WS+1}], {EPOCH_OFF}
s_barrier
s_cmp_ge_u32 s{sW}, 6
s_cbranch_scc1 L_wave67
s_cmp_ge_u32 s{sW}, 4
s_cbranch_scc1 L_wave45
s_setprio 2
s_cmp_eq_u32 s{sHGB}, 0
s_cbranch_scc1 L_freeC
""")

WQ, FR, AC, BX, UK = 32, 160, 192, 224, 32
vWQ, vUK = vT[4], vT[5]
a(f"""
v_lshlrev_b32 v{vWQ}, 16, v{vG}
v_lshl_add_u32 v{vWQ}, v{vN}, 4, v{vWQ}
s_lshl_b32 s{sT[0]}, s{sW}, 20
s_lshl_b32 s{sT[1]}, s{sHA}, 8
s_add_u32 s{sT[0]}, s{sT[0]}, s{sT[1]}
""")
def wq_kstep(u):
    a(f"""
    s_add_u32 s{sT[2]}, s{sJQ}, {u}
    s_and_b32 s{sT[2]}, s{sT[2]}, 3
    s_lshl_b32 s{sT[2]}, s{sT[2]}, 18
    s_add_u32 s{sT[3]}, s{sT[2]}, s{sT[0]}
    """)
    for e in range(8):
        if e: a(f"s_add_u32 s{sT[3]}, s{sT[3]}, 8192")
        a(f"buffer_load_dwordx4 {v(WQ+4*(8*u+e),4)}, v{vWQ}, {srd(R_WQ)}, s{sT[3]} offen{P_WQ}")
def q_kstep(u):
    for jj in range(8):
        for p in range(4):
            sel = sSELHI if (jj & 1) else sSELLO
            a(f"v_perm_b32 v{FR+4*jj+p}, v{WQ+4*(8*u+2*p+1)+(jj>>1)}, v{WQ+4*(8*u+2*p)+(jj>>1)}, s{sel}")
        if jj >= 1: mfma(AC+4*(jj-1), FR+4*(jj-1), BX+4*u, u == 0)
    mfma(AC+28, FR+28, BX+4*u, u == 0)
wq_kstep(0)
vQPw, vQPr, vQ16w, vQ16r, vQAp = vT[6], vT[7], vT[8], vT[9], vT[10]
a(f"""
s_lshl_b32 s{sT[4]}, s{sW}, 5
s_lshl_b32 s{sT[5]}, s{sJQ}, 7
s_add_u32 s{sT[4]}, s{sT[4]}, s{sT[5]}
s_lshl_b32 s{sT[4]}, s{sT[4]}, 13
s_add_u32 s{sT[4]}, s{sT[4]}, s{sT[1]}
s_add_u32 s{sT[5]}, s{sT[4]}, {16*8192}
v_lshlrev_b32 v{vUK}, 13, v{vN}
v_lshl_add_u32 v{vUK}, v{vG}, 4, v{vUK}
v_and_b32 v{t1}, 3, v{vN}
v_mul_u32_u24 v{t0}, 1040, v{t1}
v_lshl_add_u32 v{t0}, v{vG}, 4, v{t0}
s_lshl_b32 s{sT[6]}, s{sW}, 8
s_add_u32 s{sT[6]}, s{sT[6]}, {L_XN}
v_add_u32 v{t0}, s{sT[6]}, v{t0}
s_lshl_b32 s{sT[6]}, s{sW}, 11
s_add_u32 s{sT[6]}, s{sT[6]}, {L_QS}
v_lshlrev_b32 v{vQPw}, 6, v{vG}
v_lshl_add_u32 v{vQ16r}, v{t1}, 4, v{vQPw}
v_add_u32 v{vQPw}, s{sT[6]}, v{vQ16r}
v_add_u32 v{vQ16r}, {L_Q16}, v{vQ16r}
s_lshl_b32 s{sT[6]}, s{sW}, 9
s_add_u32 s{sT[6]}, s{sT[6]}, {L_QS}
v_lshlrev_b32 v{vQPr}, 2, v{vL}
v_add_u32 v{vQPr}, s{sT[6]}, v{vQPr}
v_lshlrev_b32 v{vQ16w}, 6, v{t1}
v_and_b32 v{t2}, 12, v{vL}
v_lshl_add_u32 v{vQ16w}, v{t2}, 2, v{vQ16w}
v_lshl_add_u32 v{vQ16w}, v{vG}, 8, v{vQ16w}
s_lshl_b32 s{sT[6]}, s{sW}, 2
s_add_u32 s{sT[6]}, s{sT[6]}, {L_Q16}
v_add_u32 v{vQ16w}, s{sT[6]}, v{vQ16w}
v_lshlrev_b32 v{vQAp}, 16, v{t1}
v_lshl_add_u32 v{vQAp}, v{vG}, 4, v{vQAp}
v_bfe_u32 v{t2}, v{vN}, 2, 1
v_lshl_add_u32 v{vQAp}, v{t2}, 6, v{vQAp}
v_cmp_eq_u32 s[{sC2}:{sC2+1}], 1, v{t2}
s_lshl_b32 s{sT[6]}, s{sHA}, 11
s_lshl_b32 s{sT[7]}, s{sJQ}, 9
s_add_u32 s{sT[6]}, s{sT[6]}, s{sT[7]}
s_lshl_b32 s{sT[7]}, s{sW}, 7
s_add_u32 s{sT[6]}, s{sT[6]}, s{sT[7]}
s_add_u32 s{sT[6]}, s{sT[6]}, {QA_OFF}
s_mov_b32 s{sT[7]}, {f32(math.log2(math.e) / math.sqrt(128.0))}
""")
for u in range(4):
    a(f"""
    s_add_u32 s{sT[2]}, s{sJQ}, {u}
    s_and_b32 s{sT[2]}, s{sT[2]}, 3
    s_lshl_b32 s{sT[2]}, s{sT[2]}, 6
    v_add_u32 v{vT[11+u]}, s{sT[2]}, v{t0}
    """)
wq_kstep(1)
wq_kstep(2)
def spec_xn():
    for u in range(4):
        a(f"ds_read_b128 {v(BX+4*u,4)}, v{vT[11+u]}")
wq_kstep(3)
stamp("wq issued")
lds_wait(F_XN, 4, spec_xn)
a(f"s_add_u32 s{sEP}, s{sEP}, 1")
a("s_waitcnt vmcnt(24)")
q_kstep(0)
for mt in range(2):
    for t in range(4):
        a(f"buffer_load_dwordx4 {v(UK+16*mt+4*t,4)}, v{vUK}, {srd(R_WUK)}, s{sT[4+mt]} offen offset:{64*t}{P_WQ}")
lds_signal(F_WQI)
for u in range(1, 4):
    a(f"s_waitcnt vmcnt({(3-u)*8 + 8})")
    q_kstep(u)
stamp("q partial")
a(f"s_mov_b64 exec, s[{sM4}:{sM4+1}]")
for jj in range(8):
    a(f"ds_write_b128 v{vQPw}, {v(AC+4*jj,4)} offset:{256*jj}")
lds_signal(F_QP)
def spec_qp():
    for k in range(4):
        a(f"ds_read2st64_b32 {v(FR+2*k,2)}, v{vQPr} offset0:{8*k} offset1:{8*k+1}")
lds_wait(F_QP, 4, spec_qp)
stamp("qp done")
a(f"""
v_add_f32 v{FR}, v{FR}, v{FR+2}
v_add_f32 v{FR+1}, v{FR+1}, v{FR+3}
v_add_f32 v{FR+4}, v{FR+4}, v{FR+6}
v_add_f32 v{FR+5}, v{FR+5}, v{FR+7}
v_add_f32 v{FR}, v{FR}, v{FR+4}
v_add_f32 v{FR+1}, v{FR+1}, v{FR+5}
v_cvt_pk_bf16_f32 v{FR}, v{FR}, v{FR+1}
ds_write_b32 v{vQ16w}, v{FR}
""")
lds_signal(F_Q16)
a(f"v_mov_b32 v{AC+9}, s{sEP}")
a(f"v_mov_b32 v{AC+11}, s{sEP}")
def spec_q16():
    a(f"ds_read_b32 v{t3}, v{vFL} offset:{F_CLR}")
    for t in range(4):
        a(f"ds_read_b128 {v(FR+8+4*t,4)}, v{vQ16r} offset:{256*t}")
lds_wait(F_Q16, 4, spec_q16)
stamp("q16 done")
a("s_waitcnt vmcnt(0)")
stamp("uk landed")
for t in range(4):
    for mt in range(2):
        mfma(AC+4*mt, UK+16*mt+4*t, FR+8+4*t, t == 0)
a(f"""
v_readfirstlane_b32 s{sACC}, v{t3}
s_cmp_ge_u32 s{sACC}, 2
s_cbranch_scc1 L_clrok
""")
lds_wait(F_CLR, 2)
a("L_clrok:")
for r in range(4):
    a(f"v_cndmask_b32 v{AC+r}, v{AC+r}, v{AC+4+r}, s[{sC2}:{sC2+1}]")
for r in range(4):
    a(f"v_mul_f32 v{AC+r}, s{sT[7]}, v{AC+r}")
a(f"""
v_cvt_pk_bf16_f32 v{AC+8}, v{AC}, v{AC+1}
v_cvt_pk_bf16_f32 v{AC+10}, v{AC+2}, v{AC+3}
s_mov_b64 exec, s[{sM8}:{sM8+1}]
buffer_store_dwordx4 {v(AC+8,4)}, v{vQAp}, {srd(R_WS)}, s{sT[6]} offen sc1
s_mov_b64 exec, -1
""")
stamp("q_abs published")
a("s_branch L_phaseB")

a("L_freeC:")
if UKPF:
    a(f"""
    v_lshrrev_b32 v{t0}, 1, v{vL}
    v_lshlrev_b32 v{t0}, 13, v{t0}
    v_and_b32 v{t1}, 1, v{vL}
    v_lshl_add_u32 v{t0}, v{t1}, 7, v{t0}
    s_lshl_b32 s{sT[4]}, s{sW}, 5
    s_lshl_b32 s{sT[5]}, s{sJQ}, 7
    s_add_u32 s{sT[4]}, s{sT[4]}, s{sT[5]}
    s_lshl_b32 s{sT[4]}, s{sT[4]}, 13
    s_lshl_b32 s{sT[1]}, s{sHA}, 8
    s_add_u32 s{sT[4]}, s{sT[4]}, s{sT[1]}
    buffer_load_dword v{vDUM}, v{t0}, {srd(R_WUK)}, s{sT[4]} offen{P_WQ}
    """)
lds_wait(F_CLR, 2, sleep=4)
a(f"s_add_u32 s{sEP}, s{sEP}, 1")

a("L_phaseB:")
GQ, QF, SA0, SA1, SD, vM = 64, 32, 96, 160, 224, 232
vX0 = vT[4]
vQa, vQb, vQw, vEP, vTF, vPV, vO = vT[8], vT[9], vT[10], vT[11], vT[12], vT[13], vT[14]
vSA = vT[15]
a(f"""
v_lshlrev_b32 v{vQa}, 4, v0
v_add_u32 v{vQb}, 16384, v{vQa}
s_lshr_b32 s{sT[6]}, s{sCH}, 5
s_lshl_b32 s{sT[6]}, s{sT[6]}, 1
s_add_u32 s{sT[6]}, s{sT[6]}, s{sHGB}
s_lshl_b32 s{sT[6]}, s{sT[6]}, 15
s_add_u32 s{sT[6]}, s{sT[6]}, {QA_OFF}
s_add_u32 s{sT[7]}, s{sT[6]}, 4096
s_add_u32 s{sT[8]}, s{sT[6]}, 8192
s_add_u32 s{sT[9]}, s{sT[6]}, 12288
""")
def qa_loads():
    for i in range(8):
        a(f"buffer_load_dwordx4 {v(GQ+4*i,4)}, v{vQb if i >= 4 else vQa}, {srd(R_WS)}, s{sT[6+(i&3)]} offen sc1")
a(f"""
v_and_b32 v{vQw}, 127, v0
v_lshlrev_b32 v{vQw}, 3, v{vQw}
s_lshr_b32 s{sT[10]}, s{sW}, 1
s_lshl_b32 s{sT[5]}, s{sT[10]}, 5
v_xor_b32 v{vQw}, s{sT[5]}, v{vQw}
s_lshl_b32 s{sT[10]}, s{sT[10]}, 10
s_add_u32 s{sT[10]}, s{sT[10]}, {L_QS}
v_add_u32 v{vQw}, s{sT[10]}, v{vQw}
v_mov_b32 v{vEP}, s{sEP}
v_lshrrev_b32 v{t0}, 3, v{vN}
v_lshlrev_b32 v{t1}, 2, v{t0}
v_and_b32 v{t2}, 7, v{vN}
v_xor_b32 v{t2}, v{t2}, v{t1}
v_lshl_add_u32 v{t2}, v{t2}, 1, v{t0}
v_xor_b32 v{t2}, v{t2}, v{vG}
v_lshlrev_b32 v{t2}, 4, v{t2}
v_lshl_add_u32 v{t2}, v{vN}, 10, v{t2}
s_lshl_b32 s{sT[0]}, s{sW}, 15
v_add_u32 v{vSA}, s{sT[0]}, v{t2}
v_add_u32 v{vX0}, {L_QS}, v{t2}
""")
for tt in range(1, 4):
    a(f"v_xor_b32 v{vSA+tt}, {64*tt}, v{vSA}")
    a(f"v_xor_b32 v{vX0+tt}, {64*tt}, v{vX0}")
a(f"""
s_lshl_b32 s{sT[1]}, s{sW}, 3
v_add_u32 v{vTF}, s{sT[1]}, v{vFL}
v_bfe_u32 v{t0}, v{vL}, 2, 4
v_lshrrev_b32 v{t1}, 3, v{t0}
v_lshlrev_b32 v{t2}, 2, v{t1}
v_and_b32 v{t3}, 7, v{t0}
v_xor_b32 v{t3}, v{t3}, v{t2}
v_lshl_add_u32 v{t3}, v{t3}, 1, v{t1}
v_bfe_u32 v{t1}, v{vL}, 1, 1
v_xor_b32 v{t3}, v{t3}, v{t1}
v_lshlrev_b32 v{t3}, 4, v{t3}
v_and_b32 v{t1}, 1, v{vL}
v_lshl_add_u32 v{t3}, v{t1}, 3, v{t3}
v_lshl_add_u32 v{t3}, v{t0}, 10, v{t3}
s_lshl_b32 s{sT[0]}, s{sW}, 8
v_add_u32 v{vPV}, s{sT[0]}, v{t3}
v_and_b32 v{t0}, 1, v{vG}
v_lshlrev_b32 v{t0}, 5, v{t0}
v_lshrrev_b32 v{t1}, 1, v{vG}
v_lshl_add_u32 v{t0}, v{t1}, 4, v{t0}
v_and_b32 v{t1}, 7, v{vN}
v_lshl_add_u32 v{vO}, v{t1}, 17, v{t0}
v_lshrrev_b32 v{t1}, 3, v{vN}
v_lshl_add_u32 v{vO}, v{t1}, 6, v{vO}
s_lshl_b32 s{sO}, s{sHGB}, 21
s_lshl_b32 s{sT[4]}, s{sCH}, 8
s_add_u32 s{sO}, s{sO}, s{sT[4]}
s_lshl_b32 s{sT[4]}, s{sW}, 15
s_add_u32 s{sO}, s{sO}, s{sT[4]}
s_add_u32 s{sO}, s{sO}, {O_OFF}
s_add_u32 s{sT[3]}, s{sO}, {8 << 17}
""")
PAD = list(range(240, 256))
for mt in range(8):
    a(f"v_xor_b32 v{PAD[mt]}, {32*mt}, v{vPV}")
    a(f"v_add_u32 v{PAD[8+mt]}, 0x10000, v{PAD[mt]}")
a("s_waitcnt vmcnt(0)")
a(f"""
s_cmp_eq_u32 s{sHGB}, 0
s_cbranch_scc1 L_noq0
""")
qa_loads()
a("L_noq0:")
lds_wait(F_TILE, 1, base=vTF, sleep=1)
for t in range(16):
    a(f"ds_read_b128 {v(SA0+4*t,4)}, v{vSA+(t&3)} offset:{(t>>2)*256}")
lds_wait(F_TILE + 4, 1, base=vTF, sleep=1)
for t in range(16):
    a(f"ds_read_b128 {v(SA1+4*t,4)}, v{vSA+(t&3)} offset:{16384+(t>>2)*256}")
stamp("tiles read")
a(f"""
s_cmp_eq_u32 s{sHGB}, 1
s_cbranch_scc1 L_qgo
""")
lds_wait(F_GO, 2, sleep=1)
a("L_qgo:")
a(f"""
s_mov_b32 s{sCNT}, 0
s_cmp_eq_u32 s{sHGB}, 1
s_cbranch_scc1 L_pollq_chk
""")
a("L_pollq:")
qa_loads()
a("L_pollq_chk:")
for i in range(8):
    a(f"s_waitcnt vmcnt({7-i})")
    if i == 0: a(f"v_xor_b32 v{t2}, v{GQ+1}, v{vEP}")
    else: a(f"v_bitop3_b32 v{t2}, v{t2}, v{GQ+4*i+1}, v{vEP} bitop3:0xf6")
    a(f"v_bitop3_b32 v{t2}, v{t2}, v{GQ+4*i+3}, v{vEP} bitop3:0xf6")
a(f"v_cmp_ne_u32 vcc, 0, v{t2}")
poll_tail("L_pollq", QSLEEP)
cstamp("qa retries")
stamp("q_abs gathered")
for i in range(8):
    if i: a(f"v_xor_b32 v{t2}, {(fsw(2*i) << 4) | (i << 11)}, v{vQw}")
    a(f"ds_write2_b32 v{t2 if i else vQw}, v{GQ+4*i}, v{GQ+4*i+2} offset0:0 offset1:1")
lds_signal(F_QS)
a(f"""
v_lshlrev_b32 v{t0}, 3, v{vN}
v_add_u32 v{t0}, {L_MX}, v{t0}
s_lshl_b32 s{sT[0]}, s{sW}, 10
s_add_u32 s{sT[0]}, s{sT[0]}, {L_PX}
v_add_u32 v{t2}, s{sT[0]}, v{vL16}
v_add_u32 v{t3}, {L_PX}, v{vL16}
""")
def spec_qf():
    for t in range(4):
        a(f"ds_read_b128 {v(QF+4*t,4)}, v{vX0+(t&3)} offset:{(t>>2)*256}")
lds_wait(F_QS, 4, spec_qf)
for t in range(4, 16):
    a(f"ds_read_b128 {v(QF+4*t,4)}, v{vX0+(t&3)} offset:{(t>>2)*256}")
for t in range(16):
    if t >= 4: a(f"s_waitcnt lgkmcnt({15-t})")
    mfma(SD, SA0+4*t, QF+4*t, t == 0)
    mfma(SD+4, SA1+4*t, QF+4*t, t == 0)
a(f"""
v_max3_f32 v{t1}, v{SD}, v{SD+1}, v{SD+2}
v_max_f32 v{t1}, v{t1}, v{SD+3}
v_max3_f32 v{t1}, v{t1}, v{SD+4}, v{SD+5}
v_max3_f32 v{t1}, v{t1}, v{SD+6}, v{SD+7}
ds_max_f32 v{t0}, v{t1}
ds_add_u32 v{t0}, v{vONE} offset:4
""")
PVA, PB, OD, OS, ON = 32, 160, 176, 208, 224
lp, dn = a.newlabel("Lm"), a.newlabel("Lmd")
a(f"s_mov_b32 s{sCNT}, 0")
a.label(lp)
a(f"""
ds_read_b64 {v(vM,2)}, v{t0}
s_waitcnt lgkmcnt(0)
v_cmp_ne_u32 vcc, 16, v{vM+1}
s_cmp_eq_u64 vcc, 0
s_cbranch_scc1 {dn}
s_add_u32 s{sCNT}, s{sCNT}, 1
s_cmp_lt_u32 s{sCNT}, {LSPIN_MAX}
s_cbranch_scc1 {lp}
""")
a.label(dn)
stamp("S done")
def pv_read(u, mt):
    for vv in range(2):
        tile = 2 * u + vv
        ad = PAD[mt] if tile < 4 else PAD[8 + mt]
        a(f"ds_read_b64_tr_b16 {v(PVA+16*mt+4*u+2*vv,2)}, v{ad} offset:{(tile&3)*16384}")
a(f"v_ceil_f32 v{vM}, v{vM}")
for mt in range(4): pv_read(0, mt)
for r in range(8): a(f"v_sub_f32 v{SD+r}, v{SD+r}, v{vM}")
for r in range(8): a(f"v_exp_f32 v{SD+r}, v{SD+r}")
for k in range(4): a(f"v_cvt_pk_bf16_f32 v{PB+k}, v{SD+2*k}, v{SD+2*k+1}")
a(f"ds_write_b128 v{t2}, {v(PB,4)}")
lds_signal(F_P)
for mt in range(4, 8): pv_read(0, mt)
for mt in range(8): pv_read(1, mt)
def spec_p():
    for u in range(4):
        a(f"ds_read_b128 {v(PB+4*u,4)}, v{t3} offset:{1024*u}")
lds_wait(F_P, 4, spec_p)
stamp("P done")
for u in range(4):
    for mt in range(8):
        if u < 2:
            pv_read(u + 2, mt)
        else:
            left = 32 - 2 * ((u - 2) * 8 + mt + 1)
            if left <= 15: a(f"s_waitcnt lgkmcnt({left})")
            elif (u, mt) == (2, 0): a("s_waitcnt lgkmcnt(15)")
        mfma(OD+4*mt, PVA+16*mt+4*u, PB+4*u, u == 0)
lds_signal(F_BD)
stamp("PV done")
for i in range(4): a(f"v_mov_b32 v{ON+i}, 0x3f803f80")
for u in range(4): mfma(ON+4, ON, PB+4*u, u == 0)
CK = vM + 2
for pp in range(2):
    for p in (2 * pp, 2 * pp + 1):
        for k in range(2):
            mt = 2 * p + k
            a(f"v_cvt_pk_bf16_f32 v{OS+2*mt}, v{OD+4*mt}, v{OD+4*mt+1}")
            a(f"v_cvt_pk_bf16_f32 v{OS+2*mt+1}, v{OD+4*mt+2}, v{OD+4*mt+3}")
        a(f"v_permlane16_swap_b32 v{OS+4*p}, v{OS+4*p+2}")
        a(f"v_permlane16_swap_b32 v{OS+4*p+1}, v{OS+4*p+3}")
    X, Y, T = OS + 8 * pp, OS + 8 * pp + 4, OD + 16 * pp
    for k in range(0, 8, 2):
        if pp == 0 and k == 0: a(f"v_add_u32 v{CK}, v{X}, v{X+1}")
        else: a(f"v_add3_u32 v{CK}, v{CK}, v{X+k}, v{X+k+1}")
    for d in range(4):
        a(f"v_mov_b32 v{T+d}, v{X+d}")
    for d in range(4):
        a(f"v_mov_b32_dpp v{T+d}, v{Y+d} row_ror:8 row_mask:0xf bank_mask:0xc")
    a(f"buffer_store_dwordx4 {v(T,4)}, v{vO}, {srd(R_WS)}, s{sO} offen offset:{128*pp} sc1")
    for d in range(4):
        a(f"v_mov_b32_dpp v{Y+d}, v{X+d} row_ror:8 row_mask:0xf bank_mask:0x3")
    a(f"buffer_store_dwordx4 {v(Y,4)}, v{vO}, {srd(R_WS)}, s{sT[3]} offen offset:{128*pp} sc1")
a(f"""
s_lshl_b32 s{sT[4]}, s{sHGB}, 7
s_add_u32 s{sT[4]}, s{sT[4]}, s{sCH}
s_lshl_b32 s{sT[4]}, s{sT[4]}, 2
s_add_u32 s{sT[4]}, s{sT[4]}, s{sW}
s_lshl_b32 s{sT[4]}, s{sT[4]}, 8
s_add_u32 s{sT[4]}, s{sT[4]}, {ML_OFF}
v_mov_b32 v{t0}, v{CK}
v_mov_b32 v{vM+1}, v{ON+4}
v_permlane32_swap_b32 v{CK}, v{t0}
v_add_u32 v{CK}, v{CK}, v{t0}
v_mov_b32 v{t0}, v{CK}
v_xor_b32 v{t1}, s{sEP}, v{vM}
v_permlane16_swap_b32 v{CK}, v{t0}
v_add3_u32 v{CK}, v{CK}, v{t0}, s{sEP}
v_xor_b32 v{vM+3}, v{t1}, v{vM+1}
s_mov_b64 exec, 0xffff
buffer_store_dwordx4 {v(vM,4)}, v{vL16}, {srd(R_WS)}, s{sT[4]} offen sc1
s_mov_b64 exec, -1
""")
stamp("O published")

HD, HM, MK, AW, CD = 32, 64, 72, 76, 84
mM, wA, wB, wb, ckS, ckE, vCLw, vHd2 = vT[4], vT[5], vT[6], vT[7], vT[8], vT[9], vT[10], vT[11]
a(f"""
v_lshlrev_b32 v{t0}, 8, v{vG}
v_lshl_add_u32 v{t0}, v{vN}, 4, v{t0}
v_add_u32 v{vHd2}, 4096, v{t0}
s_lshl_b32 s{sT[0]}, s{sH}, 2
s_add_u32 s{sT[0]}, s{sT[0]}, s{sCQ}
s_lshl_b32 s{sT[0]}, s{sT[0]}, 15
s_lshl_b32 s{sT[2]}, s{sW}, 13
s_add_u32 s{sT[0]}, s{sT[0]}, s{sT[2]}
s_add_u32 s{sT[0]}, s{sT[0]}, {O_OFF}
v_and_b32 v{t1}, 7, v{vN}
v_lshrrev_b32 v{t2}, 3, v{vN}
v_xor_b32 v{t2}, v{t2}, v{vG}
v_lshl_add_u32 v{t1}, v{t1}, 2, v{t2}
v_lshlrev_b32 v{t1}, 10, v{t1}
v_xor_b32 v{t2}, 2048, v{t1}
s_lshr_b32 s{sT[4]}, s{sH}, 4
s_lshl_b32 s{sT[4]}, s{sT[4]}, 2
s_add_u32 s{sT[4]}, s{sT[4]}, s{sW}
s_lshl_b32 s{sT[4]}, s{sT[4]}, 15
s_and_b32 s{sT[5]}, s{sH}, 15
s_lshl_b32 s{sT[5]}, s{sT[5]}, 4
s_add_u32 s{sT[4]}, s{sT[4]}, s{sT[5]}
s_lshl_b32 s{sT[5]}, s{sCQ}, 8
s_add_u32 s{sT[4]}, s{sT[4]}, s{sT[5]}
s_add_u32 s{sT[4]}, s{sT[4]}, {ML_OFF}
v_and_b32 v{t3}, 1, v{vN}
v_lshlrev_b32 v{t3}, 4, v{t3}
v_mov_b32 v{mM}, 0xffff
v_lshlrev_b32 v{t3}, v{t3}, v{mM}
v_lshrrev_b32 v{mM}, 1, v{vN}
""")
for d in range(4):
    a(f"v_cmp_eq_u32 vcc, {d}, v{mM}")
    a(f"v_cndmask_b32 v{MK+d}, 0, v{t3}, vcc")
a(f"""
s_mul_i32 s{sT[5]}, s{sW}, 272
s_add_u32 s{sT[5]}, s{sT[5]}, {L_CL}
v_lshlrev_b32 v{vCLw}, 4, v{vN}
v_lshl_add_u32 v{vCLw}, v{vG}, 3, v{vCLw}
v_add_u32 v{vCLw}, s{sT[5]}, v{vCLw}
s_mov_b32 s{sT[6]}, 0x03020302
""")
if OACK: a("s_waitcnt vmcnt(0)")
stamp("O acked")
a(f"s_mov_b32 s{sCNT}, 0")
a("L_pollm:")
a(f"""
buffer_load_dwordx4 {v(HM,4)}, v{t1}, {srd(R_WS)}, s{sT[4]} offen sc1
buffer_load_dwordx4 {v(HM+4,4)}, v{t2}, {srd(R_WS)}, s{sT[4]} offen sc1
s_waitcnt vmcnt(0)
v_bitop3_b32 v{ckE}, v{HM}, v{HM+1}, v{HM+3} bitop3:0x96
v_bitop3_b32 v{t3}, v{HM+4}, v{HM+5}, v{HM+7} bitop3:0x96
v_cmp_ne_u32 vcc, s{sEP}, v{ckE}
v_cmp_ne_u32 s[{sACC}:{sACC+1}], s{sEP}, v{t3}
s_or_b64 vcc, s[{sACC}:{sACC+1}], vcc
""")
poll_tail("L_pollm", MLSLEEP)
cstamp("ml retries")
stamp("ML ok")
for t in range(8):
    a(f"buffer_load_dwordx4 {v(HD+4*t,4)}, v{vHd2 if t >= 4 else t0}, {srd(R_WS)}, s{sT[0]} offen offset:{1024*(t&3)} sc1")
a(f"""
v_max_f32 v{mM}, v{HM}, v{HM+4}
v_max_f32_dpp v{mM}, v{mM}, v{mM} row_ror:1 row_mask:0xf bank_mask:0xf
v_max_f32_dpp v{mM}, v{mM}, v{mM} row_ror:2 row_mask:0xf bank_mask:0xf
v_sub_u32 v{ckS}, s{sEP}, v{HM+2}
v_max_f32_dpp v{mM}, v{mM}, v{mM} row_ror:4 row_mask:0xf bank_mask:0xf
v_cndmask_b32 v{ckS}, 0, v{ckS}, s[{sM8}:{sM8+1}]
v_max_f32_dpp v{mM}, v{mM}, v{mM} row_ror:8 row_mask:0xf bank_mask:0xf
v_sub_f32 v{wA}, v{HM}, v{mM}
v_sub_f32 v{wB}, v{HM+4}, v{mM}
v_exp_f32 v{wA}, v{wA}
v_exp_f32 v{wB}, v{wB}
v_perm_b32 v{wb}, v{wA}, v{wA}, s{sT[6]}
v_mul_f32 v{wA}, v{wA}, v{HM+1}
v_fmac_f32 v{wA}, v{wB}, v{HM+5}
""")
sfts = [1, 2, 4, 8]
for t in range(8):
    aw = AW + 4 * (t & 1)
    for d in range(4):
        a(f"v_and_b32_dpp v{aw+d}, v{wb}, v{MK+d} row_newbcast:{t} row_mask:0xf bank_mask:0xf")
    if t < 4:
        a(f"v_add_f32_dpp v{wA}, v{wA}, v{wA} row_ror:{sfts[t]} row_mask:0xf bank_mask:0xf")
    if t == 4:
        a(f"v_rcp_f32 v{wA}, v{wA}")
    a(f"s_waitcnt vmcnt({7-t})")
    a(f"v_add3_u32 v{ckS}, v{ckS}, v{HD+4*t}, v{HD+4*t+1}")
    mfma(CD, aw, HD+4*t, t == 0)
    a(f"v_add3_u32 v{ckS}, v{ckS}, v{HD+4*t+2}, v{HD+4*t+3}")
for sft in sfts:
    a(f"v_add_u32_dpp v{ckS}, v{ckS}, v{ckS} row_ror:{sft} row_mask:0xf bank_mask:0xf")
a(f"v_cmp_ne_u32 vcc, 0, v{ckS}")
for r in range(4): a(f"v_mul_f32 v{CD+r}, v{CD+r}, v{wA}")
a(f"v_cvt_pk_bf16_f32 v{CD+4}, v{CD}, v{CD+1}")
a(f"v_cvt_pk_bf16_f32 v{CD+5}, v{CD+2}, v{CD+3}")
poll_tail("L_pollm")
cstamp("o retries")
a(f"""
s_mov_b32 exec_hi, 0
ds_write_b64 v{vCLw}, {v(CD+4,2)}
s_mov_b64 exec, 1
ds_add_u32 v{vFL}, v{vONE} offset:{F_CL}
s_mov_b64 exec, -1
s_setprio 0
""")
stamp("combined")
a(f"""
s_cmp_eq_u32 s{sISF}, 1
s_cbranch_scc1 L_ffn
s_cmp_eq_u32 s{sISR}, 0
s_cbranch_scc1 L_fin
""")

SEL, RD, RA, RS, vH = 96, 100, 116, 120, 128
vMo, vXv = vT[4], vT[5]
for d in range(4): a(f"v_and_b32 v{SEL+d}, 0x3f803f80, v{MK+d}")
a(f"""
v_and_b32 v{t0}, 0x23, v{vL}
v_bfe_u32 v{t1}, v{vL}, 2, 1
v_lshl_add_u32 v{t0}, v{t1}, 4, v{t0}
v_bfe_u32 v{t1}, v{vL}, 3, 2
v_lshl_add_u32 v{t0}, v{t1}, 2, v{t0}
v_lshlrev_b32 v{vMo}, 1, v{t0}
s_lshl_b32 s{sT[0]}, s{sRHO}, 7
buffer_load_ushort v{vXv}, v{vMo}, {srd(R_X)}, s{sT[0]} offen
v_lshlrev_b32 v{t0}, 4, v0
s_lshl_b32 s{sT[1]}, s{sRHO}, 14
s_add_u32 s{sT[1]}, s{sT[1]}, {PA_OFF}
s_add_u32 s{sT[2]}, s{sT[1]}, 4096
s_add_u32 s{sT[3]}, s{sT[1]}, 8192
s_add_u32 s{sT[4]}, s{sT[1]}, 12288
s_lshl_b32 s{sT[5]}, s{sW}, 8
s_add_u32 s{sT[5]}, s{sT[5]}, {L_RED}
v_lshlrev_b32 v{t1}, 5, v{vN}
v_lshl_add_u32 v{t1}, v{vG}, 4, v{t1}
v_add_u32 v{t1}, s{sT[5]}, v{t1}
v_lshlrev_b32 v{t2}, 2, v{vL}
v_add_u32 v{t2}, {L_RED}, v{t2}
s_mul_i32 s{sT[5]}, s{sRHO}, 12288
s_add_u32 s{sT[5]}, s{sT[5]}, {PF_OFF}
s_add_u32 s{R_PF}, s{R_WS}, s{sT[5]}
s_addc_u32 s{R_PF+1}, s{R_WS+1}, 0
s_mov_b32 s{sT[6]}, 4096
s_mov_b32 s{sT[7]}, 8192
s_waitcnt vmcnt(0)
s_barrier
""")
def reduce_inbox(name, rs, sos):
    a(f"s_mov_b32 s{sCNT}, 0")
    a.label(name)
    for i, so in enumerate(sos):
        a(f"buffer_load_dwordx4 {v(RD+4*i,4)}, v{t0}, {srd(rs)}, {so} offen sc1")
    n = len(sos)
    for i in range(n):
        a(f"s_waitcnt vmcnt({n-1-i})")
        if i == 0: a(f"v_max3_u32 v{t3}, v{RD}, v{RD+1}, v{RD+2}")
        else: a(f"v_max3_u32 v{t3}, v{t3}, v{RD+4*i}, v{RD+4*i+1}")
        mfma(RA, SEL, RD+4*i, i == 0)
        if i == 0: a(f"v_max_u32 v{t3}, v{t3}, v{RD+3}")
        else: a(f"v_max3_u32 v{t3}, v{t3}, v{RD+4*i+2}, v{RD+4*i+3}")
    a(f"v_cmp_eq_u32 vcc, -1, v{t3}")
    poll_tail(name)
    for r in range(4):
        a(f"v_add_f32_dpp v{RA+r}, v{RA+r}, v{RA+r} row_ror:8 row_mask:0xf bank_mask:0xf")
    a(f"""
    s_mov_b64 exec, 0x00ff00ff
    ds_write_b128 v{t1}, {v(RA,4)}
    s_mov_b64 exec, -1
    s_waitcnt lgkmcnt(0)
    s_barrier
    """)
def final_sum():
    for k in range(2):
        a(f"ds_read2st64_b32 {v(RS+2*k,2)}, v{t2} offset0:{2*k} offset1:{2*k+1}")
    a("s_waitcnt lgkmcnt(0)")
    a(f"v_add_f32 v{RS}, v{RS}, v{RS+1}")
    a(f"v_add_f32 v{RS+2}, v{RS+2}, v{RS+3}")
    a(f"v_add_f32 v{RS}, v{RS}, v{RS+2}")
def pack_store(val, rs, so, pol):
    P = RS + 4
    a(f"v_mov_b32_dpp v{RS+2}, v{val} quad_perm:[1,1,3,3] row_mask:0xf bank_mask:0xf")
    a(f"v_cvt_pk_bf16_f32 v{P}, v{val}, v{RS+2}")
    a(f"v_mov_b32_dpp v{P+1}, v{P} quad_perm:[2,2,2,2] row_mask:0xf bank_mask:0xf")
    a(f"v_mov_b32_dpp v{P+2}, v{P} row_shl:8 row_mask:0xf bank_mask:0xf")
    a(f"v_mov_b32_dpp v{P+3}, v{P+1} row_shl:8 row_mask:0xf bank_mask:0xf")
    a(f"""
    s_mov_b32 exec_lo, 0x00110011
    s_mov_b32 exec_hi, 0x00110011
    buffer_store_dwordx4 {v(P,4)}, v{vMo}, {srd(rs)}, {so} offen{pol}
    s_mov_b64 exec, -1
    """)
reduce_inbox("L_pollr1", R_WS, [f"s{sT[1+i]}" for i in range(4)])
stamp("R1 gathered")
a(f"""
s_cmp_lg_u32 s{sW}, 0
s_cbranch_scc1 L_r1skip
""")
final_sum()
rne_bf16(RS, RS)
a(f"v_lshlrev_b32 v{vXv}, 16, v{vXv}")
a(f"v_add_f32 v{vH}, v{RS}, v{vXv}")
a(f"s_add_u32 s{sT[5]}, s{sT[0]}, {HG_OFF}")
pack_store(vH, R_WS, f"s{sT[5]}", " sc1")
rne_bf16(vH, vH)
a("L_r1skip:")
stamp("h published")
a("s_barrier")
a(f"s_sleep {opt('r2sleep', 32)}")
reduce_inbox("L_pollr2", R_PF, ["0", f"s{sT[6]}", f"s{sT[7]}"])
stamp("R2 gathered")
a(f"""
s_cmp_lg_u32 s{sW}, 0
s_cbranch_scc1 L_fin
""")
final_sum()
rne_bf16(RS, RS)
a(f"v_add_f32 v{vH}, v{RS}, v{vH}")
pack_store(vH, R_OUT, f"s{sT[0]}", "")
a(f"""
s_cmp_lg_u32 s{sRHO}, 0
s_cbranch_scc1 L_fin
v_mov_b32 v{t0}, {EPOCH_OFF}
v_mov_b32 v{t1}, s{sEP}
s_mov_b64 exec, 1
buffer_store_dword v{t1}, v{t0}, {srd(R_WS)}, 0 offen sc1
""")
if DBGT and PROBE:
    a(f"""
    v_mov_b32 v{vT[19]}, 16
    global_load_dword v{vT[20]}, v{vT[19]}, s[98:99] sc1
    s_waitcnt vmcnt(0)
    v_readfirstlane_b32 s94, v{vT[20]}
    """)
a(f"s_mov_b32 s93, {opt('padto', 0)}")
if opt("xcctest", 0):
    a(f"""
    v_mov_b32 v{vT[19]}, 20
    global_load_dword v{vT[20]}, v{vT[19]}, s[98:99] sc1
    s_waitcnt vmcnt(0)
    v_readfirstlane_b32 s{sT[1]}, v{vT[20]}
    s_bcnt1_i32_b32 s{sT[1]}, s{sT[1]}
    s_mul_i32 s{sT[1]}, s{sT[1]}, 1000
    s_add_u32 s93, s93, s{sT[1]}
    """)
if DBGT and opt("padto", 0):
    a(f"""
    L_padspin:
    s_memrealtime s[{sTS}:{sTS+1}]
    s_waitcnt lgkmcnt(0)
    s_sub_u32 s{sTS}, s{sTS}, s94
    s_cmp_lt_u32 s{sTS}, s93
    s_cbranch_scc1 L_padspin
    """)
if DBGT:
    a(f"""
    s_memrealtime s[{sTS}:{sTS+1}]
    s_memtime s[{sC2}:{sC2+1}]
    s_waitcnt lgkmcnt(0)
    s_sub_u32 s{sTS}, s{sTS}, s94
    s_sub_u32 s{sC2}, s{sC2}, s96
    v_mov_b32 v{t2}, s{sTS}
    v_mov_b32 v{t3}, s{sC2}
    v_mov_b32 v{t0}, 0
    global_store_dwordx2 v{t0}, {v(t2,2)}, s[98:99]
    """)
a("""
s_mov_b64 exec, -1
s_branch L_fin
""")

a("L_ffn:")
FGU, FD, HB, GD, FXR, DD, DP, CSA = 96, 128, 144, 160, 172, 188, 220, 188
lds_wait(F_BD, 4)
if PFWHEN == 1:
    a("s_barrier")
a(f"""
v_lshrrev_b32 v{t0}, 1, v{vL}
v_and_b32 v{t1}, 0x13, v{t0}
v_bfe_u32 v{t2}, v{t0}, 2, 1
v_lshl_add_u32 v{t1}, v{t2}, 3, v{t1}
v_bfe_u32 v{t2}, v{t0}, 3, 1
v_lshl_add_u32 v{t1}, v{t2}, 2, v{t1}
v_mul_u32_u24 v{t1}, 2752, v{t1}
v_and_b32 v{t2}, 1, v{vL}
v_lshl_add_u32 v{t1}, v{t2}, 4, v{t1}
s_mul_i32 s{sT[0]}, s{sW}, {128*2752}
s_lshl_b32 s{sT[1]}, s{sPHI}, 5
s_add_u32 s{sT[0]}, s{sT[0]}, s{sT[1]}
s_lshl_b32 s{sT[2]}, s{sW}, 12
""")
for i in range(4):
    a(f"s_add_u32 m0, s{sT[2]}, {L_G + 1024*i}")
    if i: a(f"s_add_u32 s{sT[0]}, s{sT[0]}, {32*2752}")
    a(f"buffer_load_dwordx4 v{t1}, {srd(R_WG)}, s{sT[0]} offen lds")
    a(f"s_add_u32 m0, s{sT[2]}, {L_U + 1024*i}")
    a(f"buffer_load_dwordx4 v{t1}, {srd(R_WU)}, s{sT[0]} offen lds")
a(f"""
s_and_b32 s{sT[0]}, s{sW}, 1
s_lshl_b32 s{sT[0]}, s{sT[0]}, 7
v_xor_b32 v{t0}, s{sT[0]}, v{vL16}
s_lshl_b32 s{sT[0]}, s{sPHI}, 14
s_add_u32 s{sT[0]}, s{sT[0]}, s{sT[2]}
s_add_u32 m0, s{sT[2]}, {L_WD}
""")
for i in range(4):
    if i: a(f"v_xor_b32 v{t2}, {32*i}, v{t0}")
    a(f"buffer_load_dwordx4 v{t2 if i else t0}, {srd(R_WD)}, s{sT[0]} offen offset:{1024*i} lds")
vFXw, vFXr, vSq, vSm, vCs, csg, csu, vPF, vHl = vT[4], vT[5], vT[6], vT[7], vT[8], vT[9], vT[10], vT[11], vT[12]
a(f"""
v_bfe_u32 v{t0}, v{vL}, 2, 3
v_lshrrev_b32 v{t1}, 1, v{vG}
v_lshl_add_u32 v{t0}, v{t1}, 4, v{t0}
v_and_b32 v{t2}, 3, v{vL}
v_lshlrev_b32 v{t2}, 3, v{t2}
v_lshl_add_u32 v{t3}, v{t0}, 5, v{t2}
s_add_u32 s{sT[0]}, s{sT[2]}, {L_G}
v_add_u32 v{t3}, s{sT[0]}, v{t3}
v_bfe_u32 v{t0}, v{vL}, 2, 4
v_and_b32 v{t1}, 7, v{t0}
v_lshl_add_u32 v{t1}, v{t1}, 5, v{t2}
v_lshl_add_u32 v{t1}, v{t0}, 10, v{t1}
s_lshl_b32 s{sT[0]}, s{sW}, 8
s_add_u32 s{sT[0]}, s{sT[0]}, {L_WD}
v_add_u32 v{t1}, s{sT[0]}, v{t1}
v_lshlrev_b32 v{vHl}, 10, v{vN}
v_lshl_add_u32 v{vHl}, v{vG}, 4, v{vHl}
s_lshl_b32 s{sT[1]}, s{sW}, 8
s_add_u32 s{sT[1]}, s{sT[1]}, {HG_OFF}
s_mul_i32 s{sT[2]}, s{sW}, 640
s_add_u32 s{sT[2]}, s{sT[2]}, {L_FX}
v_lshlrev_b32 v{vFXw}, 6, v{vG}
v_lshl_add_u32 v{vFXw}, v{vN}, 4, v{vFXw}
v_add_u32 v{vFXw}, s{sT[2]}, v{vFXw}
v_and_b32 v{t2}, 3, v{vN}
v_lshlrev_b32 v{vFXr}, 4, v{t2}
v_lshl_add_u32 v{vFXr}, v{vG}, 6, v{vFXr}
v_lshrrev_b32 v{t0}, 2, v{vN}
v_lshl_add_u32 v{vFXr}, v{t0}, 2, v{vFXr}
v_add_u32 v{vFXr}, {L_FX}, v{vFXr}
v_mul_u32_u24 v{vSq}, 20, v{t2}
v_add_u32 v{vSq}, {L_FX + 512}, v{vSq}
v_lshlrev_b32 v{vSm}, 4, v{t2}
v_add_u32 v{vSm}, {L_FX + 576}, v{vSm}
v_lshlrev_b32 v{vCs}, 4, v{vG}
v_lshl_add_u32 v{vCs}, v{t0}, 2, v{vCs}
v_add_u32 v{vCs}, {L_CS}, v{vCs}
s_mov_b32 s{sT[4]}, 98304
v_mul_lo_u32 v{vPF}, v{vN}, s{sT[4]}
v_lshl_add_u32 v{vPF}, v{vG}, 4, v{vPF}
s_mul_i32 s{sT[4]}, s{sW}, 24576
s_lshl_b32 s{sT[5]}, s{sPHI}, 7
s_add_u32 s{sT[4]}, s{sT[4]}, s{sT[5]}
s_add_u32 s{sT[4]}, s{sT[4]}, {PF_OFF}
s_add_u32 s{sT[5]}, s{sT[4]}, 12288
""")
for i in range(16): a(f"v_mov_b32 v{HB+i}, 0x3f803f80")
a("s_waitcnt vmcnt(4)")
for mat in range(2):
    for t in range(4):
        for vv in range(2):
            a(f"ds_read_b64_tr_b16 {v(FGU+16*mat+4*t+2*vv,2)}, v{t3} offset:{16384*mat + (32*t+8*vv)*32}")
a("s_waitcnt lgkmcnt(0)")
for mat in range(2):
    for t in range(4):
        mfma(CSA+4*mat, FGU+16*mat+4*t, HB, t == 0)
a(f"""
s_lshl_b32 s{sT[0]}, s{sW}, 7
s_add_u32 s{sT[0]}, s{sT[0]}, {L_CS}
v_lshlrev_b32 v{t0}, 4, v{vG}
v_add_u32 v{t0}, s{sT[0]}, v{t0}
s_mov_b32 exec_lo, 0x00010001
s_mov_b32 exec_hi, 0x00010001
ds_write_b128 v{t0}, {v(CSA,4)}
ds_write_b128 v{t0}, {v(CSA+4,4)} offset:64
s_mov_b64 exec, -1
s_waitcnt vmcnt(0) lgkmcnt(0)
s_barrier
""")
for mt in range(8):
    if mt: a(f"v_xor_b32 v{t2}, {32*mt}, v{t1}")
    a(f"ds_read_b64_tr_b16 {v(FD+2*mt,2)}, v{t2 if mt else t1}")
for k in range(4):
    a(f"ds_read2_b32 {v(FXR+2*k,2)}, v{vCs} offset0:{32*k} offset1:{32*k+16}")
a(f"""
s_waitcnt lgkmcnt(0)
v_add_f32 v{csg}, v{FXR}, v{FXR+2}
v_add_f32 v{csu}, v{FXR+1}, v{FXR+3}
v_add_f32 v{csg}, v{csg}, v{FXR+4}
v_add_f32 v{csu}, v{csu}, v{FXR+5}
v_add_f32 v{csg}, v{csg}, v{FXR+6}
v_add_f32 v{csu}, v{csu}, v{FXR+7}
""")
stamp("FFN prepped")
a(f"s_mov_b64 exec, s[{sM4}:{sM4+1}]")
a(f"s_mov_b32 s{sCNT}, 0")
a("L_pollh:")
for t in range(4):
    a(f"buffer_load_dwordx4 {v(HB+4*t,4)}, v{vHl}, {srd(R_WS)}, s{sT[1]} offen offset:{64*t} sc1")
a("s_waitcnt vmcnt(0)")
poison_check(list(range(HB, HB + 16)), t3)
poll_tail("L_pollh", opt("hsleep", 1))
a("s_mov_b64 exec, -1")
stamp("h gathered")
for t in range(4):
    for k in range(3):
        mfma(GD+4*k, FGU+16*k+4*t if k < 2 else HB+4*t, HB+4*t, t == 0)
a(f"""
s_mov_b64 exec, s[{sM4}:{sM4+1}]
ds_write_b128 v{vFXw}, {v(GD,4)}
ds_write_b128 v{vFXw}, {v(GD+4,4)} offset:256
s_mov_b64 exec, 0x000f000f
ds_write_b128 v{vFXw}, {v(GD+8,4)} offset:512
s_mov_b64 exec, -1
s_waitcnt lgkmcnt(0)
s_barrier
""")
for k in range(4):
    a(f"ds_read_b32 v{FXR+8+k}, v{vSq} offset:{640*k}")
    a(f"ds_read_b32 v{FXR+12+k}, v{vSm} offset:{640*k}")
for k in range(4):
    a(f"ds_read_b32 v{FXR+2*k}, v{vFXr} offset:{640*k}")
    a(f"ds_read_b32 v{FXR+2*k+1}, v{vFXr} offset:{640*k+256}")
gg, uu, sq, sm = vT[13], vT[14], vT[15], vT[16]
a(f"""
s_waitcnt lgkmcnt(8)
v_add_f32 v{sm}, v{FXR+12}, v{FXR+13}
v_add_f32 v{sq}, v{FXR+8}, v{FXR+9}
v_add_f32 v{sm}, v{sm}, v{FXR+14}
v_add_f32 v{sq}, v{sq}, v{FXR+10}
v_add_f32 v{sm}, v{sm}, v{FXR+15}
v_add_f32 v{sq}, v{sq}, v{FXR+11}
v_mul_f32 v{sm}, 0x3b000000, v{sm}
v_mul_f32 v{sq}, 0x3b000000, v{sq}
v_fma_f32 v{sq}, -v{sm}, v{sm}, v{sq}
v_max_f32 v{sq}, 0, v{sq}
v_add_f32 v{sq}, 0x3727c5ac, v{sq}
v_rsq_f32 v{sq}, v{sq}
s_waitcnt lgkmcnt(0)
v_add_f32 v{gg}, v{FXR}, v{FXR+2}
v_add_f32 v{uu}, v{FXR+1}, v{FXR+3}
v_add_f32 v{gg}, v{gg}, v{FXR+4}
v_add_f32 v{uu}, v{uu}, v{FXR+5}
v_add_f32 v{gg}, v{gg}, v{FXR+6}
v_add_f32 v{uu}, v{uu}, v{FXR+7}
v_fma_f32 v{gg}, -v{sm}, v{csg}, v{gg}
v_fma_f32 v{uu}, -v{sm}, v{csu}, v{uu}
v_mul_f32 v{gg}, v{gg}, v{sq}
v_mul_f32 v{uu}, v{uu}, v{sq}
v_mul_f32 v{sm}, {f32(-math.log2(math.e))}, v{gg}
v_exp_f32 v{sm}, v{sm}
v_mul_f32 v{gg}, v{gg}, v{uu}
v_add_f32 v{sm}, 1.0, v{sm}
v_rcp_f32 v{sm}, v{sm}
v_mul_f32 v{gg}, v{gg}, v{sm}
v_mov_b32_dpp v{uu}, v{gg} row_shl:4 row_mask:0xf bank_mask:0xf
v_cvt_pk_bf16_f32 v{FXR}, v{gg}, v{uu}
v_mov_b32_dpp v{FXR+1}, v{FXR} row_shl:8 row_mask:0xf bank_mask:0xf
""")
for mt in range(8): mfma(DD+4*mt, FD+2*mt, FXR, True, k16=True)
a(f"s_mov_b64 exec, s[{sM4}:{sM4+1}]")
for p in range(4):
    for k in range(4):
        a(f"v_cvt_pk_bf16_f32 v{DP+4*p+k}, v{DD+8*p+2*k}, v{DD+8*p+2*k+1}")
    a(f"buffer_store_dwordx4 {v(DP+4*p,4)}, v{vPF}, {srd(R_WS)}, s{sT[4+(p>>1)]} offen offset:{64*(p&1)} sc1")
a("s_mov_b64 exec, -1")
stamp("FFN published")
a("s_branch L_fin")

a("L_wave45:")
PZ = vT[4]
a(f"""
s_lshl_b32 s{sT[3]}, s{sK}, 16
s_lshl_b32 s{sT[4]}, s{sCH}, 17
s_add_u32 s{sT[4]}, s{sT[4]}, s{sT[3]}
s_lshl_b32 s{sT[1]}, s{sK}, 4
v_add_u32 v{vT[11]}, s{sT[1]}, v{vFL}
""")
def dma_all(win, tag, nclr_after):
    signalled = 0
    first = (64 - AQ) if tag == "A" else 0
    torder = [((first // 16) + k) % 4 for k in range(4)]
    for idx in range(64):
        i = (first + idx) % 64
        if i % 4 == 0:
            a(f"s_add_u32 m0, s{sT[3]}, {i*1024}")
            a(f"s_add_u32 s{sT[5]}, s{sT[4]}, {i*1024}")
        tmp = vT[i & 1]
        a(f"v_xor_b32 v{tmp}, {fsw(i & 15)*16}, v{vL16}")
        if idx >= win:
            a(f"s_waitcnt vmcnt({win-1})")
            done = idx - win + 1
            if idx == win and nclr_after: lds_signal(F_CLR)
            if done >= 16 * (signalled + 1):
                lds_signal(F_TILE + 4 * torder[signalled], base=vT[11]); signalled += 1
        a(f"buffer_load_dwordx4 v{tmp}, {srd(R_CKV)}, s{sT[5]} offen offset:{(i&3)*1024}{P_CK} lds")
    lds_signal(F_GO)
    stamp("dma issued")
    while signalled < 4:
        a(f"s_waitcnt vmcnt({64 - 16*(signalled+1)})")
        lds_signal(F_TILE + 4 * torder[signalled], base=vT[11]); signalled += 1
    stamp("ckv landed")
a(f"""
s_cmp_eq_u32 s{sHGB}, 0
s_cbranch_scc1 L_w45free
s_setprio 3
s_lshl_b32 s{sT[1]}, s{sK}, 10
buffer_load_dwordx4 {v(XR,4)}, v{vL16}, {srd(R_X)}, s{sT[1]} offen
s_waitcnt vmcnt(0)
""")
ln_row()
lds_signal(F_XN)
a("s_setprio 0")
lds_wait(F_WQI, 4, sleep=2)
dma_all(DWIN_A, "A", False)
a("s_branch L_w45pf")
a("L_w45free:")
dma_all(DWIN_F, "F", False)
a("L_w45pf:")
a(f"""
v_lshrrev_b32 v{t0}, 2, v{vL}
v_mul_u32_u24 v{t0}, 2752, v{t0}
v_and_b32 v{t1}, 3, v{vL}
v_lshlrev_b32 v{t1}, 7, v{t1}
v_min_u32 v{t1}, 348, v{t1}
v_add_u32 v{t0}, v{t0}, v{t1}
s_mul_i32 s{sT[1]}, s{sY}, {16*2752}
s_mul_i32 s{sT[2]}, s{sX}, 352
s_add_u32 s{sT[1]}, s{sT[1]}, s{sT[2]}
v_min_u32 v{t1}, 21, v{vL}
v_lshlrev_b32 v{t1}, 7, v{t1}
s_mul_i32 s{sT[2]}, s{sX}, {176*1024}
s_lshl_b32 s{sT[3]}, s{sY}, 1
s_add_u32 s{sT[3]}, s{sT[3]}, s{sK}
s_mul_i32 s{sT[3]}, s{sT[3]}, {22*128}
s_add_u32 s{sT[2]}, s{sT[2]}, s{sT[3]}
""")
def ffn_pf(tag, s1, s2):
    a(f"""
    buffer_load_dword v{vDUM+1}, v{t1}, {srd(R_WD)}, s{s2} offen
    s_cmp_eq_u32 s{sW}, 5
    s_cbranch_scc1 L_w5up{tag}
    buffer_load_dword v{vDUM}, v{t0}, {srd(R_WG)}, s{s1} offen
    s_branch L_pfd{tag}
    L_w5up{tag}:
    buffer_load_dword v{vDUM}, v{t0}, {srd(R_WU)}, s{s1} offen
    L_pfd{tag}:
    """)
if PFWHEN == 0:
    lds_wait(F_RI, 2, sleep=4)
    ffn_pf("a", sT[1], sT[2])
else:
    a(f"s_mov_b32 s{sT[9]}, s{sT[1]}")
    a(f"s_mov_b32 s{sT[10]}, s{sT[2]}")
a("s_branch L_phaseC")

a("L_wave67:")
RAW = 32
a(f"s_and_b32 s{sT[0]}, s{sW}, 1")
if CODEPF:
    a(f"""
    s_getpc_b64 s[{sC2}:{sC2+1}]
    L_pcref:
    s_sub_u32 s{sC2}, s{sC2}, L_pcref-{KNAME}
    s_subb_u32 s{sC2+1}, s{sC2+1}, 0
    v_lshlrev_b32 v{t0}, 7, v{vL}
    s_lshl_b32 s{sT[2]}, s{sT[0]}, 13
    v_add_u32 v{t0}, s{sT[2]}, v{t0}
    v_add_u32 v{t1}, 16384, v{t0}
    v_min_u32 v{t0}, L_end-{KNAME}, v{t0}
    v_min_u32 v{t1}, L_end-{KNAME}, v{t1}
    """)
a(f"""
s_cmp_eq_u32 s{sHGB}, 0
s_cbranch_scc1 L_noLN
s_setprio 3
s_lshl_b32 s{sT[1]}, s{sK}, 10
buffer_load_dwordx4 {v(XR,4)}, v{vL16}, {srd(R_X)}, s{sT[1]} offen
s_waitcnt vmcnt(0)
""")
ln_row()
lds_signal(F_XN)
stamp("LN done")
a("s_branch L_w67rest")
a("L_noLN:")
if CODEPF:
    a(f"""
    global_load_dword v{vDUM}, v{t0}, s[{sC2}:{sC2+1}]
    global_load_dword v{vDUM+1}, v{t1}, s[{sC2}:{sC2+1}]
    """)
a("L_w67rest:")
def clears():
    a(f"""
    v_and_b32 v{vT[8]}, 7, v{vL}
    v_lshlrev_b32 v{vT[8]}, 4, v{vT[8]}
    v_bfe_u32 v{vT[9]}, v{vL}, 3, 1
    v_lshl_add_u32 v{vT[10]}, v{vT[9]}, 14, v{vT[8]}
    v_lshl_add_u32 v{vT[10]}, v{vG}, 17, v{vT[10]}
    s_lshl_b32 s{sT[1]}, s{sMH}, 1
    s_add_u32 s{sT[1]}, s{sT[1]}, s{sT[0]}
    s_lshl_b32 s{sT[1]}, s{sT[1]}, 15
    s_lshl_b32 s{sT[2]}, s{sH}, 2
    s_add_u32 s{sT[2]}, s{sT[2]}, s{sCQ}
    s_lshl_b32 s{sT[2]}, s{sT[2]}, 7
    s_add_u32 s{sT[1]}, s{sT[1]}, s{sT[2]}
    s_add_u32 s{sT[1]}, s{sT[1]}, {PA_OFF}
    buffer_store_dwordx4 {v(PZ,4)}, v{vT[10]}, {srd(R_WS)}, s{sT[1]} offen sc1
    """)
a(f"""
v_mov_b32 v{PZ}, -1
v_mov_b32 v{PZ+1}, -1
v_mov_b32 v{PZ+2}, -1
v_mov_b32 v{PZ+3}, -1
""")
clears()
a(f"""
s_cmp_eq_u32 s{sISR}, 0
s_cbranch_scc1 L_noclrH
s_cmp_lg_u32 s{sW}, 7
s_cbranch_scc1 L_noclrH
s_lshl_b32 s{sT[1]}, s{sRHO}, 7
s_add_u32 s{sT[1]}, s{sT[1]}, {HG_OFF}
s_mov_b64 exec, 0xff
buffer_store_dwordx4 {v(PZ,4)}, v{vL16}, {srd(R_WS)}, s{sT[1]} offen sc1
s_mov_b64 exec, -1
L_noclrH:
s_cmp_eq_u32 s{sISF}, 0
s_cbranch_scc1 L_noclrF
v_mul_u32_u24 v{vT[10]}, 12288, v{vT[9]}
v_add_u32 v{vT[10]}, v{vT[10]}, v{vT[8]}
s_mov_b32 s{sT[1]}, 98304
v_mul_lo_u32 v{vT[9]}, v{vG}, s{sT[1]}
v_add_u32 v{vT[10]}, v{vT[10]}, v{vT[9]}
s_mul_i32 s{sT[1]}, s{sT[0]}, 49152
s_lshl_b32 s{sT[2]}, s{sPHI}, 7
s_add_u32 s{sT[1]}, s{sT[1]}, s{sT[2]}
s_add_u32 s{sT[1]}, s{sT[1]}, {PF_OFF}
s_add_u32 s{sT[2]}, s{sT[1]}, 24576
buffer_store_dwordx4 {v(PZ,4)}, v{vT[10]}, {srd(R_WS)}, s{sT[1]} offen sc1
buffer_store_dwordx4 {v(PZ,4)}, v{vT[10]}, {srd(R_WS)}, s{sT[2]} offen sc1
L_noclrF:
s_waitcnt vmcnt(0)
""")
lds_signal(F_CLR)
a("s_setprio 0")
a(f"""
v_lshlrev_b32 v{vT[4]}, 13, v{vG}
v_lshl_add_u32 v{vT[4]}, v{vN}, 4, v{vT[4]}
s_lshl_b32 s{sT[1]}, s{sCQ}, 7
s_lshl_b32 s{sT[2]}, s{sT[0]}, 6
s_add_u32 s{sT[1]}, s{sT[1]}, s{sT[2]}
s_lshl_b32 s{sT[1]}, s{sT[1]}, 13
s_lshl_b32 s{sT[2]}, s{sH}, 8
s_add_u32 s{sT[1]}, s{sT[1]}, s{sT[2]}
v_lshrrev_b32 v{vT[5]}, 5, v{vL}
v_lshlrev_b32 v{vT[5]}, 10, v{vT[5]}
v_and_b32 v{vT[6]}, 31, v{vL}
v_lshl_add_u32 v{vT[5]}, v{vT[6]}, 4, v{vT[5]}
s_lshl_b32 s{sT[2]}, s{sH}, 17
s_lshl_b32 s{sT[3]}, s{sT[0]}, 16
s_add_u32 s{sT[2]}, s{sT[2]}, s{sT[3]}
s_lshl_b32 s{sT[3]}, s{sMH}, 9
s_add_u32 s{sT[2]}, s{sT[2]}, s{sT[3]}
s_waitcnt vmcnt(0)
""")
lds_wait(F_GO, 2, sleep=2)
for i in range(16):
    if i: a(f"s_add_u32 s{sT[1]}, s{sT[1]}, 32768")
    if i >= RWIN: a(f"s_waitcnt vmcnt({RWIN-1})")
    a(f"buffer_load_dwordx4 {v(RAW+4*i,4)}, v{vT[4]}, {srd(R_WUV)}, s{sT[1]} offen{P_R}")
for i in range(32):
    if i and i % 2 == 0: a(f"s_add_u32 s{sT[2]}, s{sT[2]}, 4096")
    if i + 16 >= RWIN: a(f"s_waitcnt vmcnt({RWIN-1})")
    a(f"buffer_load_dwordx4 {v(RAW+64+4*i,4)}, v{vT[5]}, {srd(R_WO)}, s{sT[2]} offen offset:{(i&1)*2048}{P_R}")
lds_signal(F_RI)
stamp("rest issued")
a(f"""
v_lshlrev_b32 v{t0}, 5, v{vG}
v_lshlrev_b32 v{t1}, 4, v{vN}
v_xor_b32 v{t0}, v{t0}, v{t1}
v_lshl_add_u32 v{t0}, v{vG}, 8, v{t0}
s_lshl_b32 s{sT[1]}, s{sT[0]}, 14
v_add_u32 v{t0}, s{sT[1]}, v{t0}
v_xor_b32 v{t1}, 128, v{t0}
v_lshrrev_b32 v{t2}, 5, v{vL}
v_and_b32 v{vT[4]}, 31, v{vL}
v_lshlrev_b32 v{vT[4]}, 4, v{vT[4]}
v_lshlrev_b32 v{t3}, 5, v{t2}
v_xor_b32 v{vT[4]}, v{vT[4]}, v{t3}
v_lshl_add_u32 v{vT[4]}, v{t2}, 9, v{vT[4]}
s_lshl_b32 s{sT[1]}, s{sT[0]}, 15
s_add_u32 s{sT[1]}, s{sT[1]}, {L_WO}
v_add_u32 v{vT[4]}, s{sT[1]}, v{vT[4]}
v_xor_b32 v{vT[5]}, 64, v{vT[4]}
v_xor_b32 v{vT[6]}, 128, v{vT[4]}
v_xor_b32 v{vT[7]}, 192, v{vT[4]}
""")
lds_wait(F_BD, 4, sleep=1)
for i in range(16):
    if 47 - i < RWIN: a(f"s_waitcnt vmcnt({47-i})")
    a(f"ds_write_b128 v{t1 if (i>>1)&1 else t0}, {v(RAW+4*i,4)} offset:{L_WUV + 1024*i}")
for i in range(32):
    if 31 - i < RWIN: a(f"s_waitcnt vmcnt({31-i})")
    sel = (i & 1) | (((i >> 2) & 1) << 1)
    a(f"ds_write_b128 v{vT[4+sel]}, {v(RAW+64+4*i,4)} offset:{1024*i}")
lds_signal(F_ST)
stamp("images written")

a("L_phaseC:")
FUV, FO, CB, XD, AD, AP = 32, 64, 128, 144, 160, 176
vUVa, vOa, vCLr, vCXw, vCXr, vPA = vT[4], vT[5], vT[6], vT[7], vT[8], vT[9]
a(f"""
v_bfe_u32 v{vT[12]}, v{vL}, 2, 2
v_and_b32 v{vT[13]}, 1, v{vG}
v_lshl_add_u32 v{vT[13]}, v{vT[13]}, 2, v{vT[12]}
v_lshl_add_u32 v{vT[12]}, v{vG}, 3, v{vT[12]}
v_and_b32 v{vT[14]}, 3, v{vL}
v_lshlrev_b32 v{vT[14]}, 3, v{vT[14]}
s_lshl_b32 s{sT[0]}, s{sK}, 1
v_xor_b32 v{vUVa}, s{sT[0]}, v{vT[13]}
v_lshl_add_u32 v{vUVa}, v{vUVa}, 5, v{vT[14]}
v_lshl_add_u32 v{vUVa}, v{vT[12]}, 8, v{vUVa}
s_lshl_b32 s{sT[0]}, s{sK}, 2
v_xor_b32 v{vOa}, s{sT[0]}, v{vT[13]}
v_lshl_add_u32 v{vOa}, v{vOa}, 5, v{vT[14]}
v_lshl_add_u32 v{vOa}, v{vT[12]}, 9, v{vOa}
v_add_u32 v{vOa}, {L_WO}, v{vOa}
v_and_b32 v{vT[12]}, 3, v{vN}
v_mul_u32_u24 v{vT[12]}, 272, v{vT[12]}
v_lshl_add_u32 v{vCXr}, v{vG}, 4, v{vT[12]}
v_add_u32 v{vCLr}, {L_CL}, v{vCXr}
v_add_u32 v{vCXr}, {L_CX}, v{vCXr}
v_lshl_add_u32 v{vCXw}, v{vG}, 3, v{vT[12]}
s_lshl_b32 s{sT[0]}, s{sK}, 6
s_add_u32 s{sT[0]}, s{sT[0]}, {L_CX}
v_add_u32 v{vCXw}, s{sT[0]}, v{vCXw}
v_lshlrev_b32 v{vPA}, 4, v{vG}
v_lshl_add_u32 v{vPA}, v{vN}, 17, v{vPA}
s_lshl_b32 s{sT[1]}, s{sMH}, 2
s_add_u32 s{sT[1]}, s{sT[1]}, s{sK}
s_lshl_b32 s{sT[1]}, s{sT[1]}, 14
s_lshl_b32 s{sT[2]}, s{sH}, 2
s_add_u32 s{sT[2]}, s{sT[2]}, s{sCQ}
s_lshl_b32 s{sT[2]}, s{sT[2]}, 7
s_add_u32 s{sT[1]}, s{sT[1]}, s{sT[2]}
s_add_u32 s{sT[1]}, s{sT[1]}, {PA_OFF}
""")
lds_wait(F_ST, 2, sleep=1)
for mt in range(2):
    if mt: a(f"v_xor_b32 v{vT[12]}, 32, v{vUVa}")
    for ks in range(4):
        for vv in range(2):
            a(f"ds_read_b64_tr_b16 {v(FUV+16*mt+4*ks+2*vv,2)}, v{vT[12] if mt else vUVa} offset:{L_WUV + (32*ks+4*vv)*256}")
for mt in range(4):
    if mt: a(f"v_xor_b32 v{vT[12]}, {32*mt}, v{vOa}")
    for ks in range(4):
        for vv in range(2):
            a(f"ds_read_b64_tr_b16 {v(FO+16*mt+4*ks+2*vv,2)}, v{vT[12] if mt else vOa} offset:{(32*ks+4*vv)*512}")
stamp("weights staged")
a("s_setprio 2")
def spec_cl():
    for ks in range(4): a(f"ds_read_b128 {v(CB+4*ks,4)}, v{vCLr} offset:{64*ks}")
lds_wait(F_CL, 4, spec_cl)
if PFWHEN == 1:
    a(f"""
    s_cmp_ge_u32 s{sW}, 6
    s_cbranch_scc1 L_nopf2
    """)
    ffn_pf("b", sT[9], sT[10])
    a("L_nopf2:")
for ks in range(4):
    for mt in range(2): mfma(XD+4*mt, FUV+16*mt+4*ks, CB+4*ks, ks == 0)
for k in range(4): a(f"v_cvt_pk_bf16_f32 v{XD+8+k}, v{XD+2*k}, v{XD+2*k+1}")
a(f"""
s_mov_b64 exec, s[{sM4}:{sM4+1}]
ds_write_b64 v{vCXw}, {v(XD+8,2)}
ds_write_b64 v{vCXw}, {v(XD+10,2)} offset:32
""")
lds_signal(F_CX)
def spec_cx():
    for ks in range(4): a(f"ds_read_b128 {v(CB+4*ks,4)}, v{vCXr} offset:{64*ks}")
lds_wait(F_CX, 4, spec_cx)
for p in range(2):
    for ks in range(4):
        for k in range(2):
            mt = 2 * p + k
            mfma(AD+4*mt, FO+16*mt+4*ks, CB+4*ks, ks == 0)
a(f"s_mov_b64 exec, s[{sM4}:{sM4+1}]")
for p in range(2):
    for k in range(4): a(f"v_cvt_pk_bf16_f32 v{AP+4*p+k}, v{AD+8*p+2*k}, v{AD+8*p+2*k+1}")
    a(f"buffer_store_dwordx4 {v(AP+4*p,4)}, v{vPA}, {srd(R_WS)}, s{sT[1]} offen offset:{64*p} sc1")
a("s_mov_b64 exec, -1")
stamp("attn partial published")
a("s_waitcnt vmcnt(0)")

a("L_fin:")
if PROF:
    stamp("end")
    a(f"""
    s_lshl_b32 s{sT[0]}, s2, 3
    s_add_u32 s{sT[0]}, s{sT[0]}, s{sW}
    s_lshl_b32 s{sT[0]}, s{sT[0]}, 8
    s_add_u32 s{sT[0]}, s{sT[0]}, {TS_OFF}
    v_lshlrev_b32 v{t0}, 2, v{vL}
    buffer_store_dword v{vTSA}, v{t0}, {srd(R_WS)}, s{sT[0]} offen
    """)
a("L_end:")

hdr = open("sequential_preLN__compressed_kv_cla__swiglu_ffn__decode.s.ref").read().split("; @launch")[0]
open(OUT, "w").write(wrap_single(a.text(), 256, 512, LDS_BYTES, vgpr=256, header=hdr))
print("instructions:", a.ninstr, file=sys.stderr)
```

```python
import sys, math, struct
from asmgen import *

def opt(name, default):
    for x in sys.argv[1:]:
        if x.startswith("--" + name + "="):
            return int(x.split("=")[1])
    return default
PROF = "--prof" in sys.argv
DBGT = "--dbgtime" in sys.argv
OUT = [a for a in sys.argv[1:] if not a.startswith("--")]
OUT = OUT[0] if OUT else "sequential_preLN__compressed_kv_cla__swiglu_ffn__decode.s"
POLL_MAX = 1 << 15
LSPIN_MAX = 1 << 20
DWIN_A = opt("dwina", 14)
DWIN_F = opt("dwinf", 20)
RWIN = opt("rwin", 20)
UKPF = opt("ukpf", 1)
CODEPF = opt("codepf", 1)
QSLEEP = opt("qsleep", 4)
OACK = opt("oack", 1)
POLS = [" nt", "", " sc0", " sc1", " sc0 nt"]
P_WQ = POLS[opt("pwq", 1)]; P_CK = POLS[opt("pck", 1)]; P_R = POLS[opt("pr", 1)]
AQ = opt("aq", 16)
PFWHEN = opt("pfwhen", 1)
MLSLEEP = opt("mlsleep", 2)
FFNDLY = opt("ffndly", 24)

EPOCH_OFF = 0x0
QA_OFF = 0x10000
HG_OFF = 0x58000
PA_OFF = 0x80000
PF_OFF = 0x100000
O_OFF = 0x200000
ML_OFF = 0x600000
TS_OFF = 0x1000000
WS_USED = 0x1100000

L_QS = 131072
L_XN = 147456
L_Q16 = 151616
L_MX = 152640
L_PX = 153152
L_CL = 157248
L_CX = 159488
L_RED = 160576
L_CS = 162624
L_FL = 163136
LDS_BYTES = 163840
L_WUV, L_WO = 0, 32768
L_G, L_U, L_WD = 98304, 114688, L_QS
L_FX = L_PX
(F_XN, F_CLR, F_QP, F_Q16, F_QS, F_P, F_GO, F_WQI) = [4 * i for i in range(8)]
F_TILE = 32
(F_RI, F_BD, F_ST, F_CL, F_CX, F_QI) = [64 + 4 * i for i in range(6)]
UKGATE = opt('ukgate', 1)
GOAT_A = opt('goata', 64)
GOAT_F = opt('goatf', 64)
L_QP = L_PX

sW, sX, sY, sH, sYP, sCQ, sMH, sHGB, sCH, sEP = 3, 4, 5, 6, 7, 8, 9, 10, 11, 12
sT = list(range(13, 24))
sO, sHA, sJQ, sPHI, sRHO, sISF, sISR, sCNT = 24, 25, 26, 27, 28, 29, 30, 31
R_X, R_CKV, R_WQ, R_WUK, R_WUV, R_WO, R_WG, R_WU, R_WD, R_OUT, R_WS, R_PF = [32 + 4 * i for i in range(12)]
sSELLO, sSELHI = 80, 81
sM8 = 82
sM4 = 84
sACC = 86
sC2 = 88
sTS = 90
sK = 92
def srd(r): return f"s[{r}:{r+3}]"
def f32(x): return "0x%08x" % struct.unpack("<I", struct.pack("<f", x))[0]

vL, vN, vG, vL16, vFL, vONE, vTSA = 1, 2, 3, 4, 5, 6, 7
vT = list(range(8, 32))
t0, t1, t2, t3 = vT[0], vT[1], vT[2], vT[3]
vSP = vT[23]
vDUM = vT[21]
def v(i, n=1): return f"v{i}" if n == 1 else f"v[{i}:{i+n-1}]"
def fsw(row): return 2 * ((row & 7) ^ (4 * (row >> 3))) + (row >> 3)

a = Asm()
stamps = {}
PROBE = [x.split("=", 1)[1].replace("_", " ") for x in sys.argv if x.startswith("--probe=")]
def stamp(name):
    if PROBE and PROBE[0] == name.replace("_", " "):
        a(f"""
        s_memrealtime s[94:95]
        s_waitcnt lgkmcnt(0)
        v_mov_b32 v{vT[19]}, 16
        v_mov_b32 v{vT[20]}, s94
        s_mov_b64 s[100:101], exec
        s_mov_b64 exec, 1
        global_atomic_umax v{vT[19]}, v{vT[20]}, s[98:99] sc1
        s_mov_b64 exec, s[100:101]
        """)
    if not PROF: return
    if name not in stamps:
        stamps[name] = len(stamps)
    i = stamps[name]
    a(f"""
    s_memrealtime s[{sTS}:{sTS+1}]
    s_waitcnt lgkmcnt(0)
    v_writelane_b32 v{vTSA}, s{sTS}, {i}
    """)
def cstamp(name):
    if not PROF: return
    name = "#" + name
    if name not in stamps:
        stamps[name] = len(stamps)
    a(f"s_add_u32 s{sTS}, s{sCNT}, 1")
    a(f"v_writelane_b32 v{vTSA}, s{sTS}, {stamps[name]}")
def poll_tail(name, sleep=0):
    done = a.newlabel("Lpd")
    a(f"""
    s_cmp_eq_u64 vcc, 0
    s_cbranch_scc1 {done}
    """)
    if sleep: a(f"s_sleep {sleep}")
    a(f"""
    s_add_u32 s{sCNT}, s{sCNT}, 1
    s_cmp_lt_u32 s{sCNT}, {POLL_MAX}
    s_cbranch_scc1 {name}
    """)
    a.label(done)
def poison_check(regs, tmp):
    regs = list(regs); n = len(regs)
    a(f"v_max3_u32 v{tmp}, v{regs[0]}, v{regs[1]}, v{regs[2]}")
    i = 3
    while i + 1 < n:
        a(f"v_max3_u32 v{tmp}, v{tmp}, v{regs[i]}, v{regs[i+1]}"); i += 2
    if i < n: a(f"v_max_u32 v{tmp}, v{tmp}, v{regs[i]}")
    a(f"v_cmp_eq_u32 vcc, -1, v{tmp}")
def lds_signal(off, base=None):
    a(f"""
    s_mov_b64 exec, 1
    ds_add_u32 v{vFL if base is None else base}, v{vONE} offset:{off}
    s_mov_b64 exec, -1
    """)
def lds_wait(off, target, spec=None, sleep=0, base=None):
    lp, dn = a.newlabel("Lw"), a.newlabel("Lwd")
    a(f"s_mov_b32 s{sCNT}, 0")
    a.label(lp)
    a(f"ds_read_b32 v{vSP}, v{vFL if base is None else base} offset:{off}")
    if spec: spec()
    a(f"""
    s_waitcnt lgkmcnt(0)
    v_readfirstlane_b32 s{sACC}, v{vSP}
    s_cmp_ge_u32 s{sACC}, {target}
    s_cbranch_scc1 {dn}
    """)
    if sleep: a(f"s_sleep {sleep}")
    a(f"""
    s_add_u32 s{sCNT}, s{sCNT}, 1
    s_cmp_lt_u32 s{sCNT}, {LSPIN_MAX}
    s_cbranch_scc1 {lp}
    """)
    a.label(dn)
def rne_bf16(dst, src):
    a(f"v_cvt_pk_bf16_f32 v{dst}, v{src}, v{src}")
    a(f"v_and_b32 v{dst}, 0xffff0000, v{dst}")
def mfma(d, A, B, first, k16=False):
    n = 2 if k16 else 4
    op = "v_mfma_f32_16x16x16_bf16" if k16 else "v_mfma_f32_16x16x32_bf16"
    a(f"{op} {v(d,4)}, {v(A,n)}, {v(B,n)}, {'0' if first else v(d,4)}")

XR, XF = 32, 40
def ln_row():
    def wave_sum(x):
        for ctl in ["row_shr:1", "row_shr:2", "row_shr:4", "row_shr:8"]:
            a(f"v_add_f32_dpp v{x}, v{x}, v{x} {ctl} row_mask:0xf bank_mask:0xf bound_ctrl:0")
        a(f"v_add_f32_dpp v{x}, v{x}, v{x} row_bcast:15 row_mask:0xa bank_mask:0xf")
        a(f"v_add_f32_dpp v{x}, v{x}, v{x} row_bcast:31 row_mask:0xc bank_mask:0xf")
    xr, xf = XR, XF
    for i in range(4):
        a(f"v_lshlrev_b32 v{xf+2*i}, 16, v{xr+i}")
        a(f"v_and_b32 v{xf+2*i+1}, 0xffff0000, v{xr+i}")
    a(f"v_add_f32 v{xf+12}, v{xf}, v{xf+1}")
    for i in range(2, 8): a(f"v_add_f32 v{xf+12}, v{xf+12}, v{xf+i}")
    wave_sum(xf + 12)
    a(f"v_mov_b32 v{xf+15}, 0x3b000000")
    a(f"v_readlane_b32 s{sT[6]}, v{xf+12}, 63")
    a(f"v_mul_f32 v{xf+13}, s{sT[6]}, v{xf+15}")
    for i in range(8):
        a(f"v_sub_f32 v{xf+14}, v{xf+i}, v{xf+13}")
        if i == 0: a(f"v_mul_f32 v{xf+12}, v{xf+14}, v{xf+14}")
        else: a(f"v_fmac_f32 v{xf+12}, v{xf+14}, v{xf+14}")
    rne_bf16(xf + 13, xf + 13)
    wave_sum(xf + 12)
    for i in range(8): a(f"v_sub_f32 v{xf+i}, v{xf+i}, v{xf+13}")
    a(f"v_readlane_b32 s{sT[6]}, v{xf+12}, 63")
    for i in range(4): a(f"v_cvt_pk_bf16_f32 v{xf+8+i}, v{xf+2*i}, v{xf+2*i+1}")
    a(f"v_mul_f32 v{xf+12}, s{sT[6]}, v{xf+15}")
    rne_bf16(xf + 12, xf + 12)
    a(f"v_add_f32 v{xf+12}, 0x3727c5ac, v{xf+12}")
    rne_bf16(xf + 12, xf + 12)
    a(f"v_sqrt_f32 v{xf+12}, v{xf+12}")
    for i in range(4):
        a(f"v_lshlrev_b32 v{xf+2*i}, 16, v{xf+8+i}")
        a(f"v_and_b32 v{xf+2*i+1}, 0xffff0000, v{xf+8+i}")
    rne_bf16(xf + 12, xf + 12)
    a(f"v_rcp_f32 v{xf+12}, v{xf+12}")
    a(f"s_mul_i32 s{sT[6]}, s{sK}, 1040")
    a(f"s_add_u32 s{sT[6]}, s{sT[6]}, {L_XN}")
    a(f"v_add_u32 v{xf+15}, s{sT[6]}, v{vL16}")
    for i in range(8): a(f"v_mul_f32 v{xf+i}, v{xf+i}, v{xf+12}")
    for i in range(4): a(f"v_cvt_pk_bf16_f32 v{xf+8+i}, v{xf+2*i}, v{xf+2*i+1}")
    a(f"ds_write_b128 v{xf+15}, {v(xf+8,4)}")

EARLYPF = f"""s_getpc_b64 s[{sC2}:{sC2+1}]
v_lshlrev_b32 v{t1}, 6, v0
v_min_u32 v{t1}, L_end-{KNAME}-256, v{t1}
global_load_dword v{vDUM}, v{t1}, s[{sC2}:{sC2+1}]""" if opt("earlypf", 1) else ""
if opt("earlypf", 1): CODEPF = 0
a(f"""
s_cmp_ge_u32 s2, 256
s_cbranch_scc1 L_end
{"s_memrealtime s[94:95]" if DBGT else ""}
{"s_memtime s[96:97]" if DBGT else ""}
{"s_load_dwordx2 s[98:99], s[0:1], 88" if DBGT else ""}
s_load_dwordx2 s[{R_WQ}:{R_WQ+1}], s[0:1], 16
s_load_dwordx2 s[{R_CKV}:{R_CKV+1}], s[0:1], 8
s_load_dwordx2 s[{R_X}:{R_X+1}], s[0:1], 0
s_load_dwordx2 s[{R_WS}:{R_WS+1}], s[0:1], 96
s_load_dwordx2 s[{R_WUK}:{R_WUK+1}], s[0:1], 24
s_load_dwordx2 s[{R_WUV}:{R_WUV+1}], s[0:1], 32
s_load_dwordx2 s[{R_WO}:{R_WO+1}], s[0:1], 40
s_load_dwordx2 s[{R_WG}:{R_WG+1}], s[0:1], 56
s_load_dwordx2 s[{R_WU}:{R_WU+1}], s[0:1], 64
s_load_dwordx2 s[{R_WD}:{R_WD+1}], s[0:1], 72
s_load_dwordx2 s[{R_OUT}:{R_OUT+1}], s[0:1], 80
{EARLYPF}
v_lshrrev_b32 v{t0}, 6, v0
v_and_b32 v{vL}, 63, v0
v_and_b32 v{vN}, 15, v0
v_readfirstlane_b32 s{sW}, v{t0}
v_bfe_u32 v{vG}, v0, 4, 2
v_lshlrev_b32 v{t0}, 2, v{vL}
v_add_u32 v{t0}, {L_FL}, v{t0}
v_mov_b32 v{t3}, 0
ds_write_b32 v{t0}, v{t3}
v_lshlrev_b32 v{t0}, 3, v{vN}
v_add_u32 v{t0}, {L_MX}, v{t0}
v_mov_b32 v{t2}, 0xff800000
ds_write2_b32 v{t0}, v{t2}, v{t3} offset0:0 offset1:1
v_mov_b32 v{vFL}, {L_FL}
v_mov_b32 v{vONE}, 1
v_lshlrev_b32 v{vL16}, 4, v{vL}
""")
if PROF: a(f"v_mov_b32 v{vTSA}, 0")
for r, nb in [(R_WQ, 4 << 20), (R_CKV, 16 << 20), (R_X, 4096), (R_WS, WS_USED), (R_WUK, 4 << 20), (R_WUV, 4 << 20), (R_WO, 4 << 20),
              (R_WG, 512 * 1376 * 2), (R_WU, 512 * 1376 * 2), (R_WD, 512 * 1376 * 2), (R_OUT, 4096), (R_PF, 86 * 128)]:
    a(f"s_mov_b32 s{r+2}, {nb}")
    a(f"s_mov_b32 s{r+3}, 0x20000")
a(f"""
s_and_b32 s{sX}, s2, 7
s_lshr_b32 s{sY}, s2, 3
s_lshr_b32 s{sYP}, s2, 4
s_and_b32 s{sT[0]}, s{sY}, 1
s_xor_b32 s{sHGB}, s{sT[0]}, 1
s_lshl_b32 s{sH}, s{sT[0]}, 4
s_lshl_b32 s{sT[1]}, s{sX}, 1
s_add_u32 s{sH}, s{sH}, s{sT[1]}
s_and_b32 s{sT[1]}, s{sYP}, 1
s_add_u32 s{sH}, s{sH}, s{sT[1]}
s_bfe_u32 s{sCQ}, s{sY}, 0x20002
s_lshr_b32 s{sMH}, s{sY}, 4
s_lshl_b32 s{sCH}, s{sX}, 4
s_add_u32 s{sCH}, s{sCH}, s{sYP}
s_and_b32 s{sHA}, s{sYP}, 3
s_lshl_b32 s{sT[1]}, s{sX}, 2
s_add_u32 s{sHA}, s{sHA}, s{sT[1]}
s_lshr_b32 s{sJQ}, s{sYP}, 2
s_mov_b32 s{sSELLO}, 0x05040100
s_mov_b32 s{sSELHI}, 0x07060302
s_mov_b32 s{sM4}, 0x000f000f
s_mov_b32 s{sM4+1}, 0x000f000f
s_mov_b32 s{sM8}, 0x00ff00ff
s_mov_b32 s{sM8+1}, 0x00ff00ff
s_mul_i32 s{sPHI}, s{sX}, 11
s_add_u32 s{sPHI}, s{sPHI}, s{sYP}
s_cmp_lt_u32 s{sYP}, 11
s_cselect_b32 s{sISF}, s{sT[0]}, 0
s_cmp_lt_u32 s{sPHI}, 86
s_cselect_b32 s{sISF}, s{sISF}, 0
s_cmp_ge_u32 s{sYP}, 12
s_cselect_b32 s{sISR}, s{sHGB}, 0
s_sub_u32 s{sRHO}, s{sYP}, 12
s_lshl_b32 s{sRHO}, s{sRHO}, 3
s_add_u32 s{sRHO}, s{sRHO}, s{sX}
s_and_b32 s{sK}, s{sW}, 3
s_waitcnt lgkmcnt(0)
""")
stamp("start")
if opt("xcctest", 0):
    a(f"""
    s_cmp_lg_u32 s{sX}, 0
    s_cbranch_scc1 L_noxcc
    s_cmp_lg_u32 s{sW}, 7
    s_cbranch_scc1 L_noxcc
    s_getreg_b32 s{sT[1]}, hwreg(HW_REG_XCC_ID)
    s_and_b32 s{sT[1]}, s{sT[1]}, 15
    s_lshl_b32 s{sT[1]}, 1, s{sT[1]}
    v_mov_b32 v{vT[19]}, 20
    v_mov_b32 v{vT[20]}, s{sT[1]}
    s_mov_b64 exec, 1
    global_atomic_or v{vT[19]}, v{vT[20]}, s[98:99] sc1
    s_mov_b64 exec, -1
    s_waitcnt vmcnt(0)
    L_noxcc:
    """)
a(f"""
s_load_dword s{sEP}, s[{R_WS}:{R_WS+1}], {EPOCH_OFF}
s_barrier
s_cmp_ge_u32 s{sW}, 6
s_cbranch_scc1 L_wave67
s_cmp_ge_u32 s{sW}, 4
s_cbranch_scc1 L_wave45
s_setprio 2
s_cmp_eq_u32 s{sHGB}, 0
s_cbranch_scc1 L_freeC
""")

WQ, FR, AC, BX, UK = 32, 160, 192, 224, 32
vWQ, vUK = vT[4], vT[5]
a(f"""
v_lshlrev_b32 v{vWQ}, 16, v{vG}
v_lshl_add_u32 v{vWQ}, v{vN}, 4, v{vWQ}
s_lshl_b32 s{sT[0]}, s{sW}, 20
s_lshl_b32 s{sT[1]}, s{sHA}, 8
s_add_u32 s{sT[0]}, s{sT[0]}, s{sT[1]}
""")
def wq_kstep(u):
    a(f"""
    s_add_u32 s{sT[2]}, s{sJQ}, {u}
    s_and_b32 s{sT[2]}, s{sT[2]}, 3
    s_lshl_b32 s{sT[2]}, s{sT[2]}, 18
    s_add_u32 s{sT[3]}, s{sT[2]}, s{sT[0]}
    """)
    for e in range(8):
        if e: a(f"s_add_u32 s{sT[3]}, s{sT[3]}, 8192")
        a(f"buffer_load_dwordx4 {v(WQ+4*(8*u+e),4)}, v{vWQ}, {srd(R_WQ)}, s{sT[3]} offen{P_WQ}")
def q_kstep(u):
    for jj in range(8):
        for p in range(4):
            sel = sSELHI if (jj & 1) else sSELLO
            a(f"v_perm_b32 v{FR+4*jj+p}, v{WQ+4*(8*u+2*p+1)+(jj>>1)}, v{WQ+4*(8*u+2*p)+(jj>>1)}, s{sel}")
        if jj >= 1: mfma(AC+4*(jj-1), FR+4*(jj-1), BX+4*u, u == 0)
    mfma(AC+28, FR+28, BX+4*u, u == 0)
wq_kstep(0)
vQPw, vQPr, vQ16w, vQ16r, vQAp = vT[6], vT[7], vT[8], vT[9], vT[10]
a(f"""
s_lshl_b32 s{sT[4]}, s{sW}, 5
s_lshl_b32 s{sT[5]}, s{sJQ}, 7
s_add_u32 s{sT[4]}, s{sT[4]}, s{sT[5]}
s_lshl_b32 s{sT[4]}, s{sT[4]}, 13
s_add_u32 s{sT[4]}, s{sT[4]}, s{sT[1]}
s_add_u32 s{sT[5]}, s{sT[4]}, {16*8192}
v_lshlrev_b32 v{vUK}, 13, v{vN}
v_lshl_add_u32 v{vUK}, v{vG}, 4, v{vUK}
v_and_b32 v{t1}, 3, v{vN}
v_mul_u32_u24 v{t0}, 1040, v{t1}
v_lshl_add_u32 v{t0}, v{vG}, 4, v{t0}
s_lshl_b32 s{sT[6]}, s{sW}, 8
s_add_u32 s{sT[6]}, s{sT[6]}, {L_XN}
v_add_u32 v{t0}, s{sT[6]}, v{t0}
s_lshl_b32 s{sT[6]}, s{sW}, 11
s_add_u32 s{sT[6]}, s{sT[6]}, {L_QP}
v_lshlrev_b32 v{vQPw}, 6, v{vG}
v_lshl_add_u32 v{vQ16r}, v{t1}, 4, v{vQPw}
v_add_u32 v{vQPw}, s{sT[6]}, v{vQ16r}
v_add_u32 v{vQ16r}, {L_Q16}, v{vQ16r}
s_lshl_b32 s{sT[6]}, s{sW}, 9
s_add_u32 s{sT[6]}, s{sT[6]}, {L_QP}
v_lshlrev_b32 v{vQPr}, 2, v{vL}
v_add_u32 v{vQPr}, s{sT[6]}, v{vQPr}
v_lshlrev_b32 v{vQ16w}, 6, v{t1}
v_and_b32 v{t2}, 12, v{vL}
v_lshl_add_u32 v{vQ16w}, v{t2}, 2, v{vQ16w}
v_lshl_add_u32 v{vQ16w}, v{vG}, 8, v{vQ16w}
s_lshl_b32 s{sT[6]}, s{sW}, 2
s_add_u32 s{sT[6]}, s{sT[6]}, {L_Q16}
v_add_u32 v{vQ16w}, s{sT[6]}, v{vQ16w}
v_lshlrev_b32 v{vQAp}, 16, v{t1}
v_lshl_add_u32 v{vQAp}, v{vG}, 4, v{vQAp}
v_bfe_u32 v{t2}, v{vN}, 2, 1
v_lshl_add_u32 v{vQAp}, v{t2}, 6, v{vQAp}
v_cmp_eq_u32 s[{sC2}:{sC2+1}], 1, v{t2}
s_lshl_b32 s{sT[6]}, s{sHA}, 11
s_lshl_b32 s{sT[7]}, s{sJQ}, 9
s_add_u32 s{sT[6]}, s{sT[6]}, s{sT[7]}
s_lshl_b32 s{sT[7]}, s{sW}, 7
s_add_u32 s{sT[6]}, s{sT[6]}, s{sT[7]}
s_add_u32 s{sT[6]}, s{sT[6]}, {QA_OFF}
s_mov_b32 s{sT[7]}, {f32(math.log2(math.e) / math.sqrt(128.0))}
""")
for u in range(4):
    a(f"""
    s_add_u32 s{sT[2]}, s{sJQ}, {u}
    s_and_b32 s{sT[2]}, s{sT[2]}, 3
    s_lshl_b32 s{sT[2]}, s{sT[2]}, 6
    v_add_u32 v{vT[11+u]}, s{sT[2]}, v{t0}
    """)
wq_kstep(1)
wq_kstep(2)
def spec_xn():
    for u in range(4):
        a(f"ds_read_b128 {v(BX+4*u,4)}, v{vT[11+u]}")
wq_kstep(3)
stamp("wq issued")
lds_wait(F_XN, 4, spec_xn)
a(f"s_add_u32 s{sEP}, s{sEP}, 1")
a("s_waitcnt vmcnt(24)")
q_kstep(0)
for mt in range(2):
    for t in range(4):
        a(f"buffer_load_dwordx4 {v(UK+16*mt+4*t,4)}, v{vUK}, {srd(R_WUK)}, s{sT[4+mt]} offen offset:{64*t}{P_WQ}")
lds_signal(F_WQI)
for u in range(1, 4):
    a(f"s_waitcnt vmcnt({(3-u)*8 + 8})")
    q_kstep(u)
stamp("q partial")
a(f"s_mov_b64 exec, s[{sM4}:{sM4+1}]")
for jj in range(8):
    a(f"ds_write_b128 v{vQPw}, {v(AC+4*jj,4)} offset:{256*jj}")
lds_signal(F_QP)
def spec_qp():
    for k in range(4):
        a(f"ds_read2st64_b32 {v(FR+2*k,2)}, v{vQPr} offset0:{8*k} offset1:{8*k+1}")
lds_wait(F_QP, 4, spec_qp)
stamp("qp done")
a(f"""
v_add_f32 v{FR}, v{FR}, v{FR+2}
v_add_f32 v{FR+1}, v{FR+1}, v{FR+3}
v_add_f32 v{FR+4}, v{FR+4}, v{FR+6}
v_add_f32 v{FR+5}, v{FR+5}, v{FR+7}
v_add_f32 v{FR}, v{FR}, v{FR+4}
v_add_f32 v{FR+1}, v{FR+1}, v{FR+5}
v_cvt_pk_bf16_f32 v{FR}, v{FR}, v{FR+1}
ds_write_b32 v{vQ16w}, v{FR}
""")
lds_signal(F_Q16)
a(f"v_mov_b32 v{AC+9}, s{sEP}")
a(f"v_mov_b32 v{AC+11}, s{sEP}")
def spec_q16():
    a(f"ds_read_b32 v{t3}, v{vFL} offset:{F_CLR}")
    for t in range(4):
        a(f"ds_read_b128 {v(FR+8+4*t,4)}, v{vQ16r} offset:{256*t}")
lds_wait(F_Q16, 4, spec_q16)
stamp("q16 done")
a("s_waitcnt vmcnt(0)")
stamp("uk landed")
for t in range(4):
    for mt in range(2):
        mfma(AC+4*mt, UK+16*mt+4*t, FR+8+4*t, t == 0)
a(f"""
v_readfirstlane_b32 s{sACC}, v{t3}
s_cmp_ge_u32 s{sACC}, 2
s_cbranch_scc1 L_clrok
""")
lds_wait(F_CLR, 2)
a("L_clrok:")
for r in range(4):
    a(f"v_cndmask_b32 v{AC+r}, v{AC+r}, v{AC+4+r}, s[{sC2}:{sC2+1}]")
for r in range(4):
    a(f"v_mul_f32 v{AC+r}, s{sT[7]}, v{AC+r}")
a(f"""
v_cvt_pk_bf16_f32 v{AC+8}, v{AC}, v{AC+1}
v_cvt_pk_bf16_f32 v{AC+10}, v{AC+2}, v{AC+3}
s_mov_b64 exec, s[{sM8}:{sM8+1}]
buffer_store_dwordx4 {v(AC+8,4)}, v{vQAp}, {srd(R_WS)}, s{sT[6]} offen sc1
s_mov_b64 exec, -1
""")
stamp("q_abs published")
a("s_branch L_phaseB")

a("L_freeC:")
lds_wait(F_CLR, 2, sleep=4)
a(f"s_add_u32 s{sEP}, s{sEP}, 1")

a("L_phaseB:")
QF, SA0, SA1, SD, vM = 32, 96, 160, 224, 232
vX0 = vT[4]
vMX, vPw, vPr, vC, vTF, vPV, vO = vT[8], vT[9], vT[10], vT[11], vT[12], vT[13], vT[14]
vSA = vT[15]
a(f"""
v_lshrrev_b32 v{t0}, 3, v{vN}
v_lshlrev_b32 v{t1}, 2, v{t0}
v_and_b32 v{t2}, 7, v{vN}
v_xor_b32 v{t2}, v{t2}, v{t1}
v_lshl_add_u32 v{t2}, v{t2}, 1, v{t0}
v_xor_b32 v{t2}, v{t2}, v{vG}
v_lshlrev_b32 v{t2}, 4, v{t2}
v_lshl_add_u32 v{t2}, v{vN}, 10, v{t2}
s_lshl_b32 s{sT[0]}, s{sW}, 15
v_add_u32 v{vSA}, s{sT[0]}, v{t2}
v_add_u32 v{vX0}, {L_QS}, v{t2}
""")
for tt in range(1, 4):
    a(f"v_xor_b32 v{vSA+tt}, {64*tt}, v{vSA}")
    a(f"v_xor_b32 v{vX0+tt}, {64*tt}, v{vX0}")
a(f"""
s_lshl_b32 s{sT[1]}, s{sW}, 3
v_add_u32 v{vTF}, s{sT[1]}, v{vFL}
v_bfe_u32 v{t0}, v{vL}, 2, 4
v_lshrrev_b32 v{t1}, 3, v{t0}
v_lshlrev_b32 v{t2}, 2, v{t1}
v_and_b32 v{t3}, 7, v{t0}
v_xor_b32 v{t3}, v{t3}, v{t2}
v_lshl_add_u32 v{t3}, v{t3}, 1, v{t1}
v_bfe_u32 v{t1}, v{vL}, 1, 1
v_xor_b32 v{t3}, v{t3}, v{t1}
v_lshlrev_b32 v{t3}, 4, v{t3}
v_and_b32 v{t1}, 1, v{vL}
v_lshl_add_u32 v{t3}, v{t1}, 3, v{t3}
v_lshl_add_u32 v{t3}, v{t0}, 10, v{t3}
s_lshl_b32 s{sT[0]}, s{sW}, 8
v_add_u32 v{vPV}, s{sT[0]}, v{t3}
v_and_b32 v{t0}, 1, v{vG}
v_lshlrev_b32 v{t0}, 5, v{t0}
v_lshrrev_b32 v{t1}, 1, v{vG}
v_lshl_add_u32 v{t0}, v{t1}, 4, v{t0}
v_and_b32 v{t1}, 7, v{vN}
v_lshl_add_u32 v{vO}, v{t1}, 17, v{t0}
v_lshrrev_b32 v{t1}, 3, v{vN}
v_lshl_add_u32 v{vO}, v{t1}, 6, v{vO}
s_lshl_b32 s{sO}, s{sHGB}, 21
s_lshl_b32 s{sT[4]}, s{sCH}, 8
s_add_u32 s{sO}, s{sO}, s{sT[4]}
s_lshl_b32 s{sT[4]}, s{sW}, 15
s_add_u32 s{sO}, s{sO}, s{sT[4]}
s_add_u32 s{sO}, s{sO}, {O_OFF}
s_add_u32 s{sT[3]}, s{sO}, {8 << 17}
v_lshlrev_b32 v{vMX}, 3, v{vN}
v_add_u32 v{vMX}, {L_MX}, v{vMX}
s_lshl_b32 s{sT[0]}, s{sW}, 10
s_add_u32 s{sT[0]}, s{sT[0]}, {L_PX}
v_add_u32 v{vPw}, s{sT[0]}, v{vL16}
v_add_u32 v{vPr}, {L_PX}, v{vL16}
""")
PAD = list(range(240, 256))
for mt in range(8):
    a(f"v_xor_b32 v{PAD[mt]}, {32*mt}, v{vPV}")
    a(f"v_add_u32 v{PAD[8+mt]}, 0x10000, v{PAD[mt]}")
def sa_read(k, t):
    a(f"ds_read_b128 {v((SA1 if k else SA0)+4*t,4)}, v{vSA+(t&3)} offset:{16384*k+(t>>2)*256}")
def qf_read(t):
    a(f"ds_read_b128 {v(QF+4*t,4)}, v{vX0+(t&3)} offset:{(t>>2)*256}")
GQ = 64
vQa, vQb, vQw, vEP = 236, 237, 238, 239
a(f"""
v_lshlrev_b32 v{vQa}, 4, v0
v_add_u32 v{vQb}, 16384, v{vQa}
s_lshr_b32 s{sT[6]}, s{sCH}, 5
s_lshl_b32 s{sT[6]}, s{sT[6]}, 1
s_add_u32 s{sT[6]}, s{sT[6]}, s{sHGB}
s_lshl_b32 s{sT[6]}, s{sT[6]}, 15
s_add_u32 s{sT[6]}, s{sT[6]}, {QA_OFF}
s_add_u32 s{sT[7]}, s{sT[6]}, 4096
s_add_u32 s{sT[8]}, s{sT[6]}, 8192
s_add_u32 s{sT[9]}, s{sT[6]}, 12288
v_and_b32 v{vQw}, 127, v0
v_lshlrev_b32 v{vQw}, 3, v{vQw}
s_lshr_b32 s{sT[10]}, s{sW}, 1
s_lshl_b32 s{sT[5]}, s{sT[10]}, 5
v_xor_b32 v{vQw}, s{sT[5]}, v{vQw}
s_lshl_b32 s{sT[10]}, s{sT[10]}, 10
s_add_u32 s{sT[10]}, s{sT[10]}, {L_QS}
v_add_u32 v{vQw}, s{sT[10]}, v{vQw}
v_mov_b32 v{vEP}, s{sEP}
s_mov_b32 s{sT[2]}, 0
""")
def qa_loads():
    for i in range(8):
        a(f"buffer_load_dwordx4 {v(GQ+4*i,4)}, v{vQb if i >= 4 else vQa}, {srd(R_WS)}, s{sT[6+(i&3)]} offen sc1")
def try_tile1(tag):
    a(f"""
    ds_read_b32 v{t0}, v{vTF} offset:{F_TILE+4}
    s_waitcnt lgkmcnt(0)
    v_readfirstlane_b32 s{sACC+1}, v{t0}
    s_cmp_le_u32 s{sACC+1}, s{sT[2]}
    s_cbranch_scc1 L_nt1{tag}
    s_mov_b32 s{sT[2]}, 1
    """)
    for t in range(16): sa_read(1, t)
    a(f"L_nt1{tag}:")
lds_wait(F_TILE, 1, base=vTF, sleep=1)
for t in range(16): sa_read(0, t)
a("s_waitcnt vmcnt(0)")
lds_wait(F_GO, 2, sleep=1)
a(f"s_mov_b32 s{sCNT}, 0")
a("L_pollq:")
qa_loads()
lds_signal(F_QI)
try_tile1("a")
for i in range(8):
    a(f"s_waitcnt vmcnt({7-i})")
    if i == 0: a(f"v_xor_b32 v{t2}, v{GQ+1}, v{vEP}")
    else: a(f"v_bitop3_b32 v{t2}, v{t2}, v{GQ+4*i+1}, v{vEP} bitop3:0xf6")
    if i: a(f"v_xor_b32 v{t3}, {(fsw(2*i) << 4) | (i << 11)}, v{vQw}")
    a(f"v_bitop3_b32 v{t2}, v{t2}, v{GQ+4*i+3}, v{vEP} bitop3:0xf6")
    a(f"ds_write2_b32 v{t3 if i else vQw}, v{GQ+4*i}, v{GQ+4*i+2} offset0:0 offset1:1")
a(f"v_cmp_ne_u32 vcc, 0, v{t2}")
poll_tail("L_pollq", QSLEEP)
lds_signal(F_QS)
cstamp("qa retries")
stamp("q_abs gathered")
a(f"s_mov_b32 s{sCNT}, 0")
a("L_wq:")
a(f"""
ds_read_b32 v{vSP}, v{vFL} offset:{F_QS}
ds_read_b32 v{t0}, v{vTF} offset:{F_TILE+4}
""")
for t in range(4): qf_read(t)
a(f"""
s_waitcnt lgkmcnt(0)
v_readfirstlane_b32 s{sACC}, v{vSP}
v_readfirstlane_b32 s{sACC+1}, v{t0}
s_cmp_ge_u32 s{sACC}, 4
s_cbranch_scc1 L_wqd
s_add_u32 s{sCNT}, s{sCNT}, 1
s_cmp_lt_u32 s{sCNT}, {LSPIN_MAX}
s_cbranch_scc1 L_wq
L_wqd:
""")
stamp("Q ready")
for t in range(4, 16): qf_read(t)
a(f"""
s_cmp_eq_u32 s{sT[2]}, 1
s_cbranch_scc1 L_sboth
""")
a(f"""
s_cmp_ge_u32 s{sACC+1}, 1
s_cbranch_scc1 L_t1now
""")
for t in range(16):
    if t >= 4: a(f"s_waitcnt lgkmcnt({15-t})")
    mfma(SD, SA0+4*t, QF+4*t, t == 0)
lds_wait(F_TILE + 4, 1, base=vTF)
for t in range(16): sa_read(1, t)
for t in range(16):
    a(f"s_waitcnt lgkmcnt({15-t})")
    mfma(SD+4, SA1+4*t, QF+4*t, t == 0)
a("s_branch L_sdone")
a("L_t1now:")
for t in range(16):
    if t >= 4: a("s_waitcnt lgkmcnt(15)")
    sa_read(1, t)
    mfma(SD, SA0+4*t, QF+4*t, t == 0)
for t in range(16):
    a(f"s_waitcnt lgkmcnt({15-t})")
    mfma(SD+4, SA1+4*t, QF+4*t, t == 0)
a("s_branch L_sdone")
a("L_sboth:")
for t in range(16):
    if t >= 4: a(f"s_waitcnt lgkmcnt({15-t})")
    mfma(SD, SA0+4*t, QF+4*t, t == 0)
    mfma(SD+4, SA1+4*t, QF+4*t, t == 0)
a("L_sdone:")
a(f"""
v_max3_f32 v{t1}, v{SD}, v{SD+1}, v{SD+2}
v_max3_f32 v{t2}, v{SD+3}, v{SD+4}, v{SD+5}
v_max3_f32 v{t1}, v{t1}, v{SD+6}, v{SD+7}
v_max_f32 v{t1}, v{t1}, v{t2}
v_ceil_f32 v{vC}, v{t1}
ds_max_f32 v{vMX}, v{vC}
ds_add_u32 v{vMX}, v{vONE} offset:4
ds_read_b64 {v(vM,2)}, v{vMX}
""")
for r in range(8): a(f"v_sub_f32 v{SD+r}, v{SD+r}, v{vC}")
for r in range(8): a(f"v_exp_f32 v{SD+r}, v{SD+r}")
PVA, PB, OD, OS, ON = 32, 160, 176, 208, 224
lp, dn, ck = a.newlabel("Lm"), a.newlabel("Lmd"), a.newlabel("Lmc")
a(f"s_mov_b32 s{sCNT}, 0")
a(f"s_branch {ck}")
a.label(lp)
a(f"ds_read_b64 {v(vM,2)}, v{vMX}")
a.label(ck)
a(f"""
s_waitcnt lgkmcnt(0)
v_cmp_ne_u32 vcc, 16, v{vM+1}
v_sub_f32 v{t1}, v{vC}, v{vM}
s_cmp_eq_u64 vcc, 0
s_cbranch_scc1 {dn}
s_add_u32 s{sCNT}, s{sCNT}, 1
s_cmp_lt_u32 s{sCNT}, {LSPIN_MAX}
s_cbranch_scc1 {lp}
""")
a.label(dn)
stamp("S done")
def pv_read(u, mt):
    for vv in range(2):
        tile = 2 * u + vv
        ad = PAD[mt] if tile < 4 else PAD[8 + mt]
        a(f"ds_read_b64_tr_b16 {v(PVA+16*mt+4*u+2*vv,2)}, v{ad} offset:{(tile&3)*16384}")
a(f"v_exp_f32 v{t1}, v{t1}")
pv_read(0, 0)
for r in range(8): a(f"v_mul_f32 v{SD+r}, v{SD+r}, v{t1}")
for k in range(4): a(f"v_cvt_pk_bf16_f32 v{PB+k}, v{SD+2*k}, v{SD+2*k+1}")
a(f"ds_write_b128 v{vPw}, {v(PB,4)}")
lds_signal(F_P)
for u in range(4):
    for mt in range(4):
        if (u, mt) != (0, 0): pv_read(u, mt)
for i in range(4): a(f"v_mov_b32 v{ON+i}, 0x3f803f80")
def spec_p():
    for u in range(4):
        a(f"ds_read_b128 {v(PB+4*u,4)}, v{vPr} offset:{1024*u}")
lds_wait(F_P, 4, spec_p)
stamp("P done")
for u in range(4):
    for mt in range(4):
        pv_read(u, mt + 4)
        mfma(OD+4*mt, PVA+16*mt+4*u, PB+4*u, u == 0)
CK = vM + 2
def epilogue(pp):
    L = []
    for p in (2 * pp, 2 * pp + 1):
        for k in range(2):
            mt = 2 * p + k
            L.append(f"v_cvt_pk_bf16_f32 v{OS+2*mt}, v{OD+4*mt}, v{OD+4*mt+1}")
            L.append(f"v_cvt_pk_bf16_f32 v{OS+2*mt+1}, v{OD+4*mt+2}, v{OD+4*mt+3}")
    for p in (2 * pp, 2 * pp + 1):
        L.append(f"v_permlane16_swap_b32 v{OS+4*p}, v{OS+4*p+2}")
        L.append(f"v_permlane16_swap_b32 v{OS+4*p+1}, v{OS+4*p+3}")
    X, Y, T = OS + 8 * pp, OS + 8 * pp + 4, OD + 16 * pp
    for d in range(4): L.append(f"v_mov_b32 v{T+d}, v{X+d}")
    for d in range(4): L.append(f"v_mov_b32 v{T+4+d}, v{Y+d}")
    for d in range(4): L.append(f"v_mov_b32_dpp v{T+d}, v{Y+d} row_ror:8 row_mask:0xf bank_mask:0xc")
    L.append(f"buffer_store_dwordx4 {v(T,4)}, v{vO}, {srd(R_WS)}, s{sO} offen offset:{128*pp} sc1")
    for d in range(4): L.append(f"v_mov_b32_dpp v{T+4+d}, v{X+d} row_ror:8 row_mask:0xf bank_mask:0x3")
    L.append(f"buffer_store_dwordx4 {v(T+4,4)}, v{vO}, {srd(R_WS)}, s{sT[3]} offen offset:{128*pp} sc1")
    for k in range(0, 8, 2):
        if pp == 0 and k == 0: L.append(f"v_add_u32 v{CK}, v{X}, v{X+1}")
        else: L.append(f"v_add3_u32 v{CK}, v{CK}, v{X+k}, v{X+k+1}")
    return L
E0 = epilogue(0)
idx = 0
for u in range(4):
    for mt in range(4, 8):
        left = 32 - 2 * (u * 4 + (mt - 4) + 1)
        if left <= 15: a(f"s_waitcnt lgkmcnt({left})")
        elif (u, mt) == (0, 4): a("s_waitcnt lgkmcnt(15)")
        mfma(OD+4*mt, PVA+16*mt+4*u, PB+4*u, u == 0)
        if u * 4 + (mt - 4) >= 2:
            for l in E0[idx:idx+2]: a(l)
            idx += 2
lds_signal(F_BD)
for u in range(4):
    mfma(ON+4, ON, PB+4*u, u == 0)
    for l in E0[idx:idx+2]: a(l)
    idx += 2
for l in E0[idx:]: a(l)
stamp("PV done")
for l in epilogue(1): a(l)
a(f"""
s_lshl_b32 s{sT[4]}, s{sHGB}, 7
s_add_u32 s{sT[4]}, s{sT[4]}, s{sCH}
s_lshl_b32 s{sT[4]}, s{sT[4]}, 2
s_add_u32 s{sT[4]}, s{sT[4]}, s{sW}
s_lshl_b32 s{sT[4]}, s{sT[4]}, 8
s_add_u32 s{sT[4]}, s{sT[4]}, {ML_OFF}
v_mov_b32 v{t0}, v{CK}
v_mov_b32 v{vM+1}, v{ON+4}
v_permlane32_swap_b32 v{CK}, v{t0}
v_add_u32 v{CK}, v{CK}, v{t0}
v_mov_b32 v{t0}, v{CK}
v_xor_b32 v{t1}, s{sEP}, v{vM}
v_permlane16_swap_b32 v{CK}, v{t0}
v_add3_u32 v{CK}, v{CK}, v{t0}, s{sEP}
v_xor_b32 v{vM+3}, v{t1}, v{vM+1}
s_mov_b64 exec, 0xffff
buffer_store_dwordx4 {v(vM,4)}, v{vL16}, {srd(R_WS)}, s{sT[4]} offen sc1
s_mov_b64 exec, -1
""")
stamp("O published")

HD, HM, MK, AW, CD = 32, 64, 72, 76, 84
mM, wA, wB, wb, ckS, ckE, vCLw, vHd2 = vT[4], vT[5], vT[6], vT[7], vT[8], vT[9], vT[10], vT[11]
a(f"""
v_lshlrev_b32 v{t0}, 8, v{vG}
v_lshl_add_u32 v{t0}, v{vN}, 4, v{t0}
v_add_u32 v{vHd2}, 4096, v{t0}
s_lshl_b32 s{sT[0]}, s{sH}, 2
s_add_u32 s{sT[0]}, s{sT[0]}, s{sCQ}
s_lshl_b32 s{sT[0]}, s{sT[0]}, 15
s_lshl_b32 s{sT[2]}, s{sW}, 13
s_add_u32 s{sT[0]}, s{sT[0]}, s{sT[2]}
s_add_u32 s{sT[0]}, s{sT[0]}, {O_OFF}
v_and_b32 v{t1}, 7, v{vN}
v_lshrrev_b32 v{t2}, 3, v{vN}
v_xor_b32 v{t2}, v{t2}, v{vG}
v_lshl_add_u32 v{t1}, v{t1}, 2, v{t2}
v_lshlrev_b32 v{t1}, 10, v{t1}
v_xor_b32 v{t2}, 2048, v{t1}
s_lshr_b32 s{sT[4]}, s{sH}, 4
s_lshl_b32 s{sT[4]}, s{sT[4]}, 2
s_add_u32 s{sT[4]}, s{sT[4]}, s{sW}
s_lshl_b32 s{sT[4]}, s{sT[4]}, 15
s_and_b32 s{sT[5]}, s{sH}, 15
s_lshl_b32 s{sT[5]}, s{sT[5]}, 4
s_add_u32 s{sT[4]}, s{sT[4]}, s{sT[5]}
s_lshl_b32 s{sT[5]}, s{sCQ}, 8
s_add_u32 s{sT[4]}, s{sT[4]}, s{sT[5]}
s_add_u32 s{sT[4]}, s{sT[4]}, {ML_OFF}
v_and_b32 v{t3}, 1, v{vN}
v_lshlrev_b32 v{t3}, 4, v{t3}
v_mov_b32 v{mM}, 0xffff
v_lshlrev_b32 v{t3}, v{t3}, v{mM}
v_lshrrev_b32 v{mM}, 1, v{vN}
""")
for d in range(4):
    a(f"v_cmp_eq_u32 vcc, {d}, v{mM}")
    a(f"v_cndmask_b32 v{MK+d}, 0, v{t3}, vcc")
a(f"""
s_mul_i32 s{sT[5]}, s{sW}, 272
s_add_u32 s{sT[5]}, s{sT[5]}, {L_CL}
v_lshlrev_b32 v{vCLw}, 4, v{vN}
v_lshl_add_u32 v{vCLw}, v{vG}, 3, v{vCLw}
v_add_u32 v{vCLw}, s{sT[5]}, v{vCLw}
s_mov_b32 s{sT[6]}, 0x03020302
""")
if OACK: a("s_waitcnt vmcnt(0)")
stamp("O acked")
a(f"s_mov_b32 s{sCNT}, 0")
a("L_pollm:")
a(f"""
buffer_load_dwordx4 {v(HM,4)}, v{t1}, {srd(R_WS)}, s{sT[4]} offen sc1
buffer_load_dwordx4 {v(HM+4,4)}, v{t2}, {srd(R_WS)}, s{sT[4]} offen sc1
s_waitcnt vmcnt(0)
v_bitop3_b32 v{ckE}, v{HM}, v{HM+1}, v{HM+3} bitop3:0x96
v_bitop3_b32 v{t3}, v{HM+4}, v{HM+5}, v{HM+7} bitop3:0x96
v_cmp_ne_u32 vcc, s{sEP}, v{ckE}
v_cmp_ne_u32 s[{sACC}:{sACC+1}], s{sEP}, v{t3}
s_or_b64 vcc, s[{sACC}:{sACC+1}], vcc
""")
poll_tail("L_pollm", MLSLEEP)
cstamp("ml retries")
stamp("ML ok")
for t in range(8):
    a(f"buffer_load_dwordx4 {v(HD+4*t,4)}, v{vHd2 if t >= 4 else t0}, {srd(R_WS)}, s{sT[0]} offen offset:{1024*(t&3)} sc1")
a(f"""
v_max_f32 v{mM}, v{HM}, v{HM+4}
v_max_f32_dpp v{mM}, v{mM}, v{mM} row_ror:1 row_mask:0xf bank_mask:0xf
v_max_f32_dpp v{mM}, v{mM}, v{mM} row_ror:2 row_mask:0xf bank_mask:0xf
v_sub_u32 v{ckS}, s{sEP}, v{HM+2}
v_max_f32_dpp v{mM}, v{mM}, v{mM} row_ror:4 row_mask:0xf bank_mask:0xf
v_cndmask_b32 v{ckS}, 0, v{ckS}, s[{sM8}:{sM8+1}]
v_max_f32_dpp v{mM}, v{mM}, v{mM} row_ror:8 row_mask:0xf bank_mask:0xf
v_sub_f32 v{wA}, v{HM}, v{mM}
v_sub_f32 v{wB}, v{HM+4}, v{mM}
v_exp_f32 v{wA}, v{wA}
v_exp_f32 v{wB}, v{wB}
v_perm_b32 v{wb}, v{wA}, v{wA}, s{sT[6]}
v_mul_f32 v{wA}, v{wA}, v{HM+1}
v_fmac_f32 v{wA}, v{wB}, v{HM+5}
""")
sfts = [1, 2, 4, 8]
for t in range(8):
    aw = AW + 4 * (t & 1)
    for d in range(4):
        a(f"v_and_b32_dpp v{aw+d}, v{wb}, v{MK+d} row_newbcast:{t} row_mask:0xf bank_mask:0xf")
    if t < 4:
        a(f"v_add_f32_dpp v{wA}, v{wA}, v{wA} row_ror:{sfts[t]} row_mask:0xf bank_mask:0xf")
    if t == 4:
        a(f"v_rcp_f32 v{wA}, v{wA}")
    a(f"s_waitcnt vmcnt({7-t})")
    a(f"v_add3_u32 v{ckS}, v{ckS}, v{HD+4*t}, v{HD+4*t+1}")
    mfma(CD, aw, HD+4*t, t == 0)
    a(f"v_add3_u32 v{ckS}, v{ckS}, v{HD+4*t+2}, v{HD+4*t+3}")
for sft in sfts:
    a(f"v_add_u32_dpp v{ckS}, v{ckS}, v{ckS} row_ror:{sft} row_mask:0xf bank_mask:0xf")
a(f"v_cmp_ne_u32 vcc, 0, v{ckS}")
for r in range(4): a(f"v_mul_f32 v{CD+r}, v{CD+r}, v{wA}")
a(f"v_cvt_pk_bf16_f32 v{CD+4}, v{CD}, v{CD+1}")
a(f"v_cvt_pk_bf16_f32 v{CD+5}, v{CD+2}, v{CD+3}")
poll_tail("L_pollm")
cstamp("o retries")
a(f"""
s_mov_b32 exec_hi, 0
ds_write_b64 v{vCLw}, {v(CD+4,2)}
s_mov_b64 exec, 1
ds_add_u32 v{vFL}, v{vONE} offset:{F_CL}
s_mov_b64 exec, -1
s_setprio 0
""")
stamp("combined")
a(f"""
s_cmp_eq_u32 s{sISF}, 1
s_cbranch_scc1 L_ffn
s_cmp_eq_u32 s{sISR}, 0
s_cbranch_scc1 L_fin
""")

SEL, RD, RA, RS, vH = 96, 100, 116, 120, 128
vMo, vXv = vT[4], vT[5]
for d in range(4): a(f"v_and_b32 v{SEL+d}, 0x3f803f80, v{MK+d}")
a(f"""
v_and_b32 v{t0}, 0x23, v{vL}
v_bfe_u32 v{t1}, v{vL}, 2, 1
v_lshl_add_u32 v{t0}, v{t1}, 4, v{t0}
v_bfe_u32 v{t1}, v{vL}, 3, 2
v_lshl_add_u32 v{t0}, v{t1}, 2, v{t0}
v_lshlrev_b32 v{vMo}, 1, v{t0}
s_lshl_b32 s{sT[0]}, s{sRHO}, 7
buffer_load_ushort v{vXv}, v{vMo}, {srd(R_X)}, s{sT[0]} offen
v_lshlrev_b32 v{t0}, 4, v0
s_lshl_b32 s{sT[1]}, s{sRHO}, 14
s_add_u32 s{sT[1]}, s{sT[1]}, {PA_OFF}
s_add_u32 s{sT[2]}, s{sT[1]}, 4096
s_add_u32 s{sT[3]}, s{sT[1]}, 8192
s_add_u32 s{sT[4]}, s{sT[1]}, 12288
s_lshl_b32 s{sT[5]}, s{sW}, 8
s_add_u32 s{sT[5]}, s{sT[5]}, {L_RED}
v_lshlrev_b32 v{t1}, 5, v{vN}
v_lshl_add_u32 v{t1}, v{vG}, 4, v{t1}
v_add_u32 v{t1}, s{sT[5]}, v{t1}
v_lshlrev_b32 v{t2}, 2, v{vL}
v_add_u32 v{t2}, {L_RED}, v{t2}
s_mul_i32 s{sT[5]}, s{sRHO}, 12288
s_add_u32 s{sT[5]}, s{sT[5]}, {PF_OFF}
s_add_u32 s{R_PF}, s{R_WS}, s{sT[5]}
s_addc_u32 s{R_PF+1}, s{R_WS+1}, 0
s_mov_b32 s{sT[6]}, 4096
s_mov_b32 s{sT[7]}, 8192
s_waitcnt vmcnt(0)
s_barrier
""")
def reduce_inbox(name, rs, sos):
    a(f"s_mov_b32 s{sCNT}, 0")
    a.label(name)
    for i, so in enumerate(sos):
        a(f"buffer_load_dwordx4 {v(RD+4*i,4)}, v{t0}, {srd(rs)}, {so} offen sc1")
    n = len(sos)
    for i in range(n):
        a(f"s_waitcnt vmcnt({n-1-i})")
        if i == 0: a(f"v_max3_u32 v{t3}, v{RD}, v{RD+1}, v{RD+2}")
        else: a(f"v_max3_u32 v{t3}, v{t3}, v{RD+4*i}, v{RD+4*i+1}")
        mfma(RA, SEL, RD+4*i, i == 0)
        if i == 0: a(f"v_max_u32 v{t3}, v{t3}, v{RD+3}")
        else: a(f"v_max3_u32 v{t3}, v{t3}, v{RD+4*i+2}, v{RD+4*i+3}")
    a(f"v_cmp_eq_u32 vcc, -1, v{t3}")
    poll_tail(name)
    for r in range(4):
        a(f"v_add_f32_dpp v{RA+r}, v{RA+r}, v{RA+r} row_ror:8 row_mask:0xf bank_mask:0xf")
    a(f"""
    s_mov_b64 exec, 0x00ff00ff
    ds_write_b128 v{t1}, {v(RA,4)}
    s_mov_b64 exec, -1
    s_waitcnt lgkmcnt(0)
    s_barrier
    """)
def final_sum():
    for k in range(2):
        a(f"ds_read2st64_b32 {v(RS+2*k,2)}, v{t2} offset0:{2*k} offset1:{2*k+1}")
    a("s_waitcnt lgkmcnt(0)")
    a(f"v_add_f32 v{RS}, v{RS}, v{RS+1}")
    a(f"v_add_f32 v{RS+2}, v{RS+2}, v{RS+3}")
    a(f"v_add_f32 v{RS}, v{RS}, v{RS+2}")
def pack_store(val, rs, so, pol):
    P = RS + 4
    a(f"v_mov_b32_dpp v{RS+2}, v{val} quad_perm:[1,1,3,3] row_mask:0xf bank_mask:0xf")
    a(f"v_cvt_pk_bf16_f32 v{P}, v{val}, v{RS+2}")
    a(f"v_mov_b32_dpp v{P+1}, v{P} quad_perm:[2,2,2,2] row_mask:0xf bank_mask:0xf")
    a(f"v_mov_b32_dpp v{P+2}, v{P} row_shl:8 row_mask:0xf bank_mask:0xf")
    a(f"v_mov_b32_dpp v{P+3}, v{P+1} row_shl:8 row_mask:0xf bank_mask:0xf")
    a(f"""
    s_mov_b32 exec_lo, 0x00110011
    s_mov_b32 exec_hi, 0x00110011
    buffer_store_dwordx4 {v(P,4)}, v{vMo}, {srd(rs)}, {so} offen{pol}
    s_mov_b64 exec, -1
    """)
reduce_inbox("L_pollr1", R_WS, [f"s{sT[1+i]}" for i in range(4)])
stamp("R1 gathered")
a(f"""
s_cmp_lg_u32 s{sW}, 0
s_cbranch_scc1 L_r1skip
""")
final_sum()
rne_bf16(RS, RS)
a(f"v_lshlrev_b32 v{vXv}, 16, v{vXv}")
a(f"v_add_f32 v{vH}, v{RS}, v{vXv}")
a(f"s_add_u32 s{sT[5]}, s{sT[0]}, {HG_OFF}")
pack_store(vH, R_WS, f"s{sT[5]}", " sc1")
rne_bf16(vH, vH)
a("L_r1skip:")
stamp("h published")
a("s_barrier")
a(f"s_sleep {opt('r2sleep', 32)}")
reduce_inbox("L_pollr2", R_PF, ["0", f"s{sT[6]}", f"s{sT[7]}"])
stamp("R2 gathered")
a(f"""
s_cmp_lg_u32 s{sW}, 0
s_cbranch_scc1 L_fin
""")
final_sum()
rne_bf16(RS, RS)
a(f"v_add_f32 v{vH}, v{RS}, v{vH}")
pack_store(vH, R_OUT, f"s{sT[0]}", "")
a(f"""
s_cmp_lg_u32 s{sRHO}, 0
s_cbranch_scc1 L_fin
v_mov_b32 v{t0}, {EPOCH_OFF}
v_mov_b32 v{t1}, s{sEP}
s_mov_b64 exec, 1
buffer_store_dword v{t1}, v{t0}, {srd(R_WS)}, 0 offen sc1
""")
if DBGT and PROBE:
    a(f"""
    v_mov_b32 v{vT[19]}, 16
    global_load_dword v{vT[20]}, v{vT[19]}, s[98:99] sc1
    s_waitcnt vmcnt(0)
    v_readfirstlane_b32 s94, v{vT[20]}
    """)
a(f"s_mov_b32 s93, {opt('padto', 0)}")
if opt("xcctest", 0):
    a(f"""
    v_mov_b32 v{vT[19]}, 20
    global_load_dword v{vT[20]}, v{vT[19]}, s[98:99] sc1
    s_waitcnt vmcnt(0)
    v_readfirstlane_b32 s{sT[1]}, v{vT[20]}
    s_bcnt1_i32_b32 s{sT[1]}, s{sT[1]}
    s_mul_i32 s{sT[1]}, s{sT[1]}, 1000
    s_add_u32 s93, s93, s{sT[1]}
    """)
if DBGT and opt("padto", 0):
    a(f"""
    L_padspin:
    s_memrealtime s[{sTS}:{sTS+1}]
    s_waitcnt lgkmcnt(0)
    s_sub_u32 s{sTS}, s{sTS}, s94
    s_cmp_lt_u32 s{sTS}, s93
    s_cbranch_scc1 L_padspin
    """)
if DBGT:
    a(f"""
    s_memrealtime s[{sTS}:{sTS+1}]
    s_memtime s[{sC2}:{sC2+1}]
    s_waitcnt lgkmcnt(0)
    s_sub_u32 s{sTS}, s{sTS}, s94
    s_sub_u32 s{sC2}, s{sC2}, s96
    v_mov_b32 v{t2}, s{sTS}
    v_mov_b32 v{t3}, s{sC2}
    v_mov_b32 v{t0}, 0
    global_store_dwordx2 v{t0}, {v(t2,2)}, s[98:99]
    """)
a("""
s_mov_b64 exec, -1
s_branch L_fin
""")

a("L_ffn:")
FGU, FD, HB, GD, FXR, DD, DP, CSA = 96, 128, 144, 160, 172, 188, 220, 188
lds_wait(F_BD, 4)
if PFWHEN == 1:
    a("s_barrier")
a(f"""
v_lshrrev_b32 v{t0}, 1, v{vL}
v_and_b32 v{t1}, 0x13, v{t0}
v_bfe_u32 v{t2}, v{t0}, 2, 1
v_lshl_add_u32 v{t1}, v{t2}, 3, v{t1}
v_bfe_u32 v{t2}, v{t0}, 3, 1
v_lshl_add_u32 v{t1}, v{t2}, 2, v{t1}
v_mul_u32_u24 v{t1}, 2752, v{t1}
v_and_b32 v{t2}, 1, v{vL}
v_lshl_add_u32 v{t1}, v{t2}, 4, v{t1}
s_mul_i32 s{sT[0]}, s{sW}, {128*2752}
s_lshl_b32 s{sT[1]}, s{sPHI}, 5
s_add_u32 s{sT[0]}, s{sT[0]}, s{sT[1]}
s_lshl_b32 s{sT[2]}, s{sW}, 12
""")
for i in range(4):
    a(f"s_add_u32 m0, s{sT[2]}, {L_G + 1024*i}")
    if i: a(f"s_add_u32 s{sT[0]}, s{sT[0]}, {32*2752}")
    a(f"buffer_load_dwordx4 v{t1}, {srd(R_WG)}, s{sT[0]} offen lds")
    a(f"s_add_u32 m0, s{sT[2]}, {L_U + 1024*i}")
    a(f"buffer_load_dwordx4 v{t1}, {srd(R_WU)}, s{sT[0]} offen lds")
a(f"""
s_and_b32 s{sT[0]}, s{sW}, 1
s_lshl_b32 s{sT[0]}, s{sT[0]}, 7
v_xor_b32 v{t0}, s{sT[0]}, v{vL16}
s_lshl_b32 s{sT[0]}, s{sPHI}, 14
s_add_u32 s{sT[0]}, s{sT[0]}, s{sT[2]}
s_add_u32 m0, s{sT[2]}, {L_WD}
""")
for i in range(4):
    if i: a(f"v_xor_b32 v{t2}, {32*i}, v{t0}")
    a(f"buffer_load_dwordx4 v{t2 if i else t0}, {srd(R_WD)}, s{sT[0]} offen offset:{1024*i} lds")
vFXw, vFXr, vSq, vSm, vCs, csg, csu, vPF, vHl = vT[4], vT[5], vT[6], vT[7], vT[8], vT[9], vT[10], vT[11], vT[12]
a(f"""
v_bfe_u32 v{t0}, v{vL}, 2, 3
v_lshrrev_b32 v{t1}, 1, v{vG}
v_lshl_add_u32 v{t0}, v{t1}, 4, v{t0}
v_and_b32 v{t2}, 3, v{vL}
v_lshlrev_b32 v{t2}, 3, v{t2}
v_lshl_add_u32 v{t3}, v{t0}, 5, v{t2}
s_add_u32 s{sT[0]}, s{sT[2]}, {L_G}
v_add_u32 v{t3}, s{sT[0]}, v{t3}
v_bfe_u32 v{t0}, v{vL}, 2, 4
v_and_b32 v{t1}, 7, v{t0}
v_lshl_add_u32 v{t1}, v{t1}, 5, v{t2}
v_lshl_add_u32 v{t1}, v{t0}, 10, v{t1}
s_lshl_b32 s{sT[0]}, s{sW}, 8
s_add_u32 s{sT[0]}, s{sT[0]}, {L_WD}
v_add_u32 v{t1}, s{sT[0]}, v{t1}
v_lshlrev_b32 v{vHl}, 10, v{vN}
v_lshl_add_u32 v{vHl}, v{vG}, 4, v{vHl}
s_lshl_b32 s{sT[1]}, s{sW}, 8
s_add_u32 s{sT[1]}, s{sT[1]}, {HG_OFF}
s_mul_i32 s{sT[2]}, s{sW}, 640
s_add_u32 s{sT[2]}, s{sT[2]}, {L_FX}
v_lshlrev_b32 v{vFXw}, 6, v{vG}
v_lshl_add_u32 v{vFXw}, v{vN}, 4, v{vFXw}
v_add_u32 v{vFXw}, s{sT[2]}, v{vFXw}
v_and_b32 v{t2}, 3, v{vN}
v_lshlrev_b32 v{vFXr}, 4, v{t2}
v_lshl_add_u32 v{vFXr}, v{vG}, 6, v{vFXr}
v_lshrrev_b32 v{t0}, 2, v{vN}
v_lshl_add_u32 v{vFXr}, v{t0}, 2, v{vFXr}
v_add_u32 v{vFXr}, {L_FX}, v{vFXr}
v_mul_u32_u24 v{vSq}, 20, v{t2}
v_add_u32 v{vSq}, {L_FX + 512}, v{vSq}
v_lshlrev_b32 v{vSm}, 4, v{t2}
v_add_u32 v{vSm}, {L_FX + 576}, v{vSm}
v_lshlrev_b32 v{vCs}, 4, v{vG}
v_lshl_add_u32 v{vCs}, v{t0}, 2, v{vCs}
v_add_u32 v{vCs}, {L_CS}, v{vCs}
s_mov_b32 s{sT[4]}, 98304
v_mul_lo_u32 v{vPF}, v{vN}, s{sT[4]}
v_lshl_add_u32 v{vPF}, v{vG}, 4, v{vPF}
s_mul_i32 s{sT[4]}, s{sW}, 24576
s_lshl_b32 s{sT[5]}, s{sPHI}, 7
s_add_u32 s{sT[4]}, s{sT[4]}, s{sT[5]}
s_add_u32 s{sT[4]}, s{sT[4]}, {PF_OFF}
s_add_u32 s{sT[5]}, s{sT[4]}, 12288
""")
for i in range(16): a(f"v_mov_b32 v{HB+i}, 0x3f803f80")
a("s_waitcnt vmcnt(4)")
for mat in range(2):
    for t in range(4):
        for vv in range(2):
            a(f"ds_read_b64_tr_b16 {v(FGU+16*mat+4*t+2*vv,2)}, v{t3} offset:{16384*mat + (32*t+8*vv)*32}")
a("s_waitcnt lgkmcnt(0)")
for mat in range(2):
    for t in range(4):
        mfma(CSA+4*mat, FGU+16*mat+4*t, HB, t == 0)
a(f"""
s_lshl_b32 s{sT[0]}, s{sW}, 7
s_add_u32 s{sT[0]}, s{sT[0]}, {L_CS}
v_lshlrev_b32 v{t0}, 4, v{vG}
v_add_u32 v{t0}, s{sT[0]}, v{t0}
s_mov_b32 exec_lo, 0x00010001
s_mov_b32 exec_hi, 0x00010001
ds_write_b128 v{t0}, {v(CSA,4)}
ds_write_b128 v{t0}, {v(CSA+4,4)} offset:64
s_mov_b64 exec, -1
s_waitcnt vmcnt(0) lgkmcnt(0)
s_barrier
""")
for mt in range(8):
    if mt: a(f"v_xor_b32 v{t2}, {32*mt}, v{t1}")
    a(f"ds_read_b64_tr_b16 {v(FD+2*mt,2)}, v{t2 if mt else t1}")
for k in range(4):
    a(f"ds_read2_b32 {v(FXR+2*k,2)}, v{vCs} offset0:{32*k} offset1:{32*k+16}")
a(f"""
s_waitcnt lgkmcnt(0)
v_add_f32 v{csg}, v{FXR}, v{FXR+2}
v_add_f32 v{csu}, v{FXR+1}, v{FXR+3}
v_add_f32 v{csg}, v{csg}, v{FXR+4}
v_add_f32 v{csu}, v{csu}, v{FXR+5}
v_add_f32 v{csg}, v{csg}, v{FXR+6}
v_add_f32 v{csu}, v{csu}, v{FXR+7}
""")
stamp("FFN prepped")
a(f"s_mov_b64 exec, s[{sM4}:{sM4+1}]")
a(f"s_mov_b32 s{sCNT}, 0")
a("L_pollh:")
for t in range(4):
    a(f"buffer_load_dwordx4 {v(HB+4*t,4)}, v{vHl}, {srd(R_WS)}, s{sT[1]} offen offset:{64*t} sc1")
a("s_waitcnt vmcnt(0)")
poison_check(list(range(HB, HB + 16)), t3)
poll_tail("L_pollh", opt("hsleep", 1))
a("s_mov_b64 exec, -1")
stamp("h gathered")
for t in range(4):
    for k in range(3):
        mfma(GD+4*k, FGU+16*k+4*t if k < 2 else HB+4*t, HB+4*t, t == 0)
a(f"""
s_mov_b64 exec, s[{sM4}:{sM4+1}]
ds_write_b128 v{vFXw}, {v(GD,4)}
ds_write_b128 v{vFXw}, {v(GD+4,4)} offset:256
s_mov_b64 exec, 0x000f000f
ds_write_b128 v{vFXw}, {v(GD+8,4)} offset:512
s_mov_b64 exec, -1
s_waitcnt lgkmcnt(0)
s_barrier
""")
for k in range(4):
    a(f"ds_read_b32 v{FXR+8+k}, v{vSq} offset:{640*k}")
    a(f"ds_read_b32 v{FXR+12+k}, v{vSm} offset:{640*k}")
for k in range(4):
    a(f"ds_read_b32 v{FXR+2*k}, v{vFXr} offset:{640*k}")
    a(f"ds_read_b32 v{FXR+2*k+1}, v{vFXr} offset:{640*k+256}")
gg, uu, sq, sm = vT[13], vT[14], vT[15], vT[16]
a(f"""
s_waitcnt lgkmcnt(8)
v_add_f32 v{sm}, v{FXR+12}, v{FXR+13}
v_add_f32 v{sq}, v{FXR+8}, v{FXR+9}
v_add_f32 v{sm}, v{sm}, v{FXR+14}
v_add_f32 v{sq}, v{sq}, v{FXR+10}
v_add_f32 v{sm}, v{sm}, v{FXR+15}
v_add_f32 v{sq}, v{sq}, v{FXR+11}
v_mul_f32 v{sm}, 0x3b000000, v{sm}
v_mul_f32 v{sq}, 0x3b000000, v{sq}
v_fma_f32 v{sq}, -v{sm}, v{sm}, v{sq}
v_max_f32 v{sq}, 0, v{sq}
v_add_f32 v{sq}, 0x3727c5ac, v{sq}
v_rsq_f32 v{sq}, v{sq}
s_waitcnt lgkmcnt(0)
v_add_f32 v{gg}, v{FXR}, v{FXR+2}
v_add_f32 v{uu}, v{FXR+1}, v{FXR+3}
v_add_f32 v{gg}, v{gg}, v{FXR+4}
v_add_f32 v{uu}, v{uu}, v{FXR+5}
v_add_f32 v{gg}, v{gg}, v{FXR+6}
v_add_f32 v{uu}, v{uu}, v{FXR+7}
v_fma_f32 v{gg}, -v{sm}, v{csg}, v{gg}
v_fma_f32 v{uu}, -v{sm}, v{csu}, v{uu}
v_mul_f32 v{gg}, v{gg}, v{sq}
v_mul_f32 v{uu}, v{uu}, v{sq}
v_mul_f32 v{sm}, {f32(-math.log2(math.e))}, v{gg}
v_exp_f32 v{sm}, v{sm}
v_mul_f32 v{gg}, v{gg}, v{uu}
v_add_f32 v{sm}, 1.0, v{sm}
v_rcp_f32 v{sm}, v{sm}
v_mul_f32 v{gg}, v{gg}, v{sm}
v_mov_b32_dpp v{uu}, v{gg} row_shl:4 row_mask:0xf bank_mask:0xf
v_cvt_pk_bf16_f32 v{FXR}, v{gg}, v{uu}
v_mov_b32_dpp v{FXR+1}, v{FXR} row_shl:8 row_mask:0xf bank_mask:0xf
""")
for mt in range(8): mfma(DD+4*mt, FD+2*mt, FXR, True, k16=True)
a(f"s_mov_b64 exec, s[{sM4}:{sM4+1}]")
for p in range(4):
    for k in range(4):
        a(f"v_cvt_pk_bf16_f32 v{DP+4*p+k}, v{DD+8*p+2*k}, v{DD+8*p+2*k+1}")
    a(f"buffer_store_dwordx4 {v(DP+4*p,4)}, v{vPF}, {srd(R_WS)}, s{sT[4+(p>>1)]} offen offset:{64*(p&1)} sc1")
a("s_mov_b64 exec, -1")
stamp("FFN published")
a("s_branch L_fin")

a("L_wave45:")
PZ = vT[4]
a(f"""
s_lshl_b32 s{sT[3]}, s{sK}, 16
s_lshl_b32 s{sT[4]}, s{sCH}, 17
s_add_u32 s{sT[4]}, s{sT[4]}, s{sT[3]}
s_lshl_b32 s{sT[1]}, s{sK}, 4
v_add_u32 v{vT[11]}, s{sT[1]}, v{vFL}
""")
def dma_all(win, tag, nclr_after):
    signalled = 0
    torder = [0, 2, 1, 3]
    goat = GOAT_A if tag == "A" else GOAT_F
    for idx in range(64):
        i = torder[idx // 16] * 16 + (idx % 16)
        if i % 4 == 0:
            a(f"s_add_u32 m0, s{sT[3]}, {i*1024}")
            a(f"s_add_u32 s{sT[5]}, s{sT[4]}, {i*1024}")
        tmp = vT[i & 1]
        a(f"v_xor_b32 v{tmp}, {fsw(i & 15)*16}, v{vL16}")
        if idx >= win:
            a(f"s_waitcnt vmcnt({win-1})")
            done = idx - win + 1
            if done >= 16 * (signalled + 1):
                lds_signal(F_TILE + 4 * torder[signalled], base=vT[11]); signalled += 1
        a(f"buffer_load_dwordx4 v{tmp}, {srd(R_CKV)}, s{sT[5]} offen offset:{(i&3)*1024}{P_CK} lds")
        if idx == goat - 1: lds_signal(F_GO)
    lds_signal(F_QI)
    stamp("dma issued")
    while signalled < 4:
        a(f"s_waitcnt vmcnt({64 - 16*(signalled+1)})")
        lds_signal(F_TILE + 4 * torder[signalled], base=vT[11]); signalled += 1
    stamp("ckv landed")
a(f"""
s_cmp_eq_u32 s{sHGB}, 0
s_cbranch_scc1 L_w45free
s_setprio 3
s_lshl_b32 s{sT[1]}, s{sK}, 10
buffer_load_dwordx4 {v(XR,4)}, v{vL16}, {srd(R_X)}, s{sT[1]} offen
s_waitcnt vmcnt(0)
""")
ln_row()
lds_signal(F_XN)
a("s_setprio 0")
lds_wait(F_WQI, 4, sleep=2)
dma_all(DWIN_A, "A", False)
a("s_branch L_w45pf")
a("L_w45free:")
if UKPF:
    a(f"""
    v_lshrrev_b32 v{t2}, 1, v{vL}
    v_lshlrev_b32 v{t2}, 13, v{t2}
    v_and_b32 v{t3}, 1, v{vL}
    v_lshl_add_u32 v{t2}, v{t3}, 7, v{t2}
    s_lshl_b32 s{sT[6]}, s{sK}, 6
    s_lshl_b32 s{sT[5]}, s{sJQ}, 7
    s_add_u32 s{sT[6]}, s{sT[6]}, s{sT[5]}
    s_lshl_b32 s{sT[6]}, s{sT[6]}, 13
    s_lshl_b32 s{sT[1]}, s{sHA}, 8
    s_add_u32 s{sT[6]}, s{sT[6]}, s{sT[1]}
    s_add_u32 s{sT[7]}, s{sT[6]}, {32*8192}
    buffer_load_dword v{vDUM}, v{t2}, {srd(R_WUK)}, s{sT[6]} offen{P_WQ}
    buffer_load_dword v{vDUM+1}, v{t2}, {srd(R_WUK)}, s{sT[7]} offen{P_WQ}
    """)
    if UKGATE: a(f"s_waitcnt vmcnt({UKGATE-1})")
dma_all(DWIN_F, "F", False)
a("L_w45pf:")
a(f"""
v_lshrrev_b32 v{t0}, 2, v{vL}
v_mul_u32_u24 v{t0}, 2752, v{t0}
v_and_b32 v{t1}, 3, v{vL}
v_lshlrev_b32 v{t1}, 7, v{t1}
v_min_u32 v{t1}, 348, v{t1}
v_add_u32 v{t0}, v{t0}, v{t1}
s_mul_i32 s{sT[1]}, s{sY}, {16*2752}
s_mul_i32 s{sT[2]}, s{sX}, 352
s_add_u32 s{sT[1]}, s{sT[1]}, s{sT[2]}
v_min_u32 v{t1}, 21, v{vL}
v_lshlrev_b32 v{t1}, 7, v{t1}
s_mul_i32 s{sT[2]}, s{sX}, {176*1024}
s_lshl_b32 s{sT[3]}, s{sY}, 1
s_add_u32 s{sT[3]}, s{sT[3]}, s{sK}
s_mul_i32 s{sT[3]}, s{sT[3]}, {22*128}
s_add_u32 s{sT[2]}, s{sT[2]}, s{sT[3]}
""")
def ffn_pf(tag, s1, s2):
    a(f"""
    buffer_load_dword v{vDUM+1}, v{t1}, {srd(R_WD)}, s{s2} offen
    s_cmp_eq_u32 s{sW}, 5
    s_cbranch_scc1 L_w5up{tag}
    buffer_load_dword v{vDUM}, v{t0}, {srd(R_WG)}, s{s1} offen
    s_branch L_pfd{tag}
    L_w5up{tag}:
    buffer_load_dword v{vDUM}, v{t0}, {srd(R_WU)}, s{s1} offen
    L_pfd{tag}:
    """)
if PFWHEN == 0:
    lds_wait(F_RI, 2, sleep=4)
    ffn_pf("a", sT[1], sT[2])
elif PFWHEN == 2:
    lds_wait(F_QS, 4, sleep=1)
    ffn_pf("a", sT[1], sT[2])
elif PFWHEN == 3:
    lds_wait(F_QS, 4, sleep=1)
    ffn_pf("a", sT[1], sT[2])
else:
    a(f"s_mov_b32 s{sT[9]}, s{sT[1]}")
    a(f"s_mov_b32 s{sT[10]}, s{sT[2]}")
a("s_branch L_phaseC")

a("L_wave67:")
RAW = 32
a(f"s_and_b32 s{sT[0]}, s{sW}, 1")
if CODEPF:
    a(f"""
    s_getpc_b64 s[{sC2}:{sC2+1}]
    L_pcref:
    s_sub_u32 s{sC2}, s{sC2}, L_pcref-{KNAME}
    s_subb_u32 s{sC2+1}, s{sC2+1}, 0
    v_lshlrev_b32 v{t0}, 7, v{vL}
    s_lshl_b32 s{sT[2]}, s{sT[0]}, 13
    v_add_u32 v{t0}, s{sT[2]}, v{t0}
    v_add_u32 v{t1}, 16384, v{t0}
    v_min_u32 v{t0}, L_end-{KNAME}, v{t0}
    v_min_u32 v{t1}, L_end-{KNAME}, v{t1}
    """)
a(f"""
s_cmp_eq_u32 s{sHGB}, 0
s_cbranch_scc1 L_noLN
s_setprio 3
s_lshl_b32 s{sT[1]}, s{sK}, 10
buffer_load_dwordx4 {v(XR,4)}, v{vL16}, {srd(R_X)}, s{sT[1]} offen
s_waitcnt vmcnt(0)
""")
ln_row()
lds_signal(F_XN)
stamp("LN done")
a("s_branch L_w67rest")
a("L_noLN:")
if CODEPF:
    a(f"""
    global_load_dword v{vDUM}, v{t0}, s[{sC2}:{sC2+1}]
    global_load_dword v{vDUM+1}, v{t1}, s[{sC2}:{sC2+1}]
    """)
a("L_w67rest:")
def clears():
    a(f"""
    v_and_b32 v{vT[8]}, 7, v{vL}
    v_lshlrev_b32 v{vT[8]}, 4, v{vT[8]}
    v_bfe_u32 v{vT[9]}, v{vL}, 3, 1
    v_lshl_add_u32 v{vT[10]}, v{vT[9]}, 14, v{vT[8]}
    v_lshl_add_u32 v{vT[10]}, v{vG}, 17, v{vT[10]}
    s_lshl_b32 s{sT[1]}, s{sMH}, 1
    s_add_u32 s{sT[1]}, s{sT[1]}, s{sT[0]}
    s_lshl_b32 s{sT[1]}, s{sT[1]}, 15
    s_lshl_b32 s{sT[2]}, s{sH}, 2
    s_add_u32 s{sT[2]}, s{sT[2]}, s{sCQ}
    s_lshl_b32 s{sT[2]}, s{sT[2]}, 7
    s_add_u32 s{sT[1]}, s{sT[1]}, s{sT[2]}
    s_add_u32 s{sT[1]}, s{sT[1]}, {PA_OFF}
    buffer_store_dwordx4 {v(PZ,4)}, v{vT[10]}, {srd(R_WS)}, s{sT[1]} offen sc1
    """)
a(f"""
v_mov_b32 v{PZ}, -1
v_mov_b32 v{PZ+1}, -1
v_mov_b32 v{PZ+2}, -1
v_mov_b32 v{PZ+3}, -1
""")
clears()
a(f"""
s_cmp_eq_u32 s{sISR}, 0
s_cbranch_scc1 L_noclrH
s_cmp_lg_u32 s{sW}, 7
s_cbranch_scc1 L_noclrH
s_lshl_b32 s{sT[1]}, s{sRHO}, 7
s_add_u32 s{sT[1]}, s{sT[1]}, {HG_OFF}
s_mov_b64 exec, 0xff
buffer_store_dwordx4 {v(PZ,4)}, v{vL16}, {srd(R_WS)}, s{sT[1]} offen sc1
s_mov_b64 exec, -1
L_noclrH:
s_cmp_eq_u32 s{sISF}, 0
s_cbranch_scc1 L_noclrF
v_mul_u32_u24 v{vT[10]}, 12288, v{vT[9]}
v_add_u32 v{vT[10]}, v{vT[10]}, v{vT[8]}
s_mov_b32 s{sT[1]}, 98304
v_mul_lo_u32 v{vT[9]}, v{vG}, s{sT[1]}
v_add_u32 v{vT[10]}, v{vT[10]}, v{vT[9]}
s_mul_i32 s{sT[1]}, s{sT[0]}, 49152
s_lshl_b32 s{sT[2]}, s{sPHI}, 7
s_add_u32 s{sT[1]}, s{sT[1]}, s{sT[2]}
s_add_u32 s{sT[1]}, s{sT[1]}, {PF_OFF}
s_add_u32 s{sT[2]}, s{sT[1]}, 24576
buffer_store_dwordx4 {v(PZ,4)}, v{vT[10]}, {srd(R_WS)}, s{sT[1]} offen sc1
buffer_store_dwordx4 {v(PZ,4)}, v{vT[10]}, {srd(R_WS)}, s{sT[2]} offen sc1
L_noclrF:
s_waitcnt vmcnt(0)
""")
lds_signal(F_CLR)
a("s_setprio 0")
a(f"""
v_lshlrev_b32 v{vT[4]}, 13, v{vG}
v_lshl_add_u32 v{vT[4]}, v{vN}, 4, v{vT[4]}
s_lshl_b32 s{sT[1]}, s{sCQ}, 7
s_lshl_b32 s{sT[2]}, s{sT[0]}, 6
s_add_u32 s{sT[1]}, s{sT[1]}, s{sT[2]}
s_lshl_b32 s{sT[1]}, s{sT[1]}, 13
s_lshl_b32 s{sT[2]}, s{sH}, 8
s_add_u32 s{sT[1]}, s{sT[1]}, s{sT[2]}
v_lshrrev_b32 v{vT[5]}, 5, v{vL}
v_lshlrev_b32 v{vT[5]}, 10, v{vT[5]}
v_and_b32 v{vT[6]}, 31, v{vL}
v_lshl_add_u32 v{vT[5]}, v{vT[6]}, 4, v{vT[5]}
s_lshl_b32 s{sT[2]}, s{sH}, 17
s_lshl_b32 s{sT[3]}, s{sT[0]}, 16
s_add_u32 s{sT[2]}, s{sT[2]}, s{sT[3]}
s_lshl_b32 s{sT[3]}, s{sMH}, 9
s_add_u32 s{sT[2]}, s{sT[2]}, s{sT[3]}
s_waitcnt vmcnt(0)
""")
lds_wait(F_QI, 6, sleep=2)
for i in range(16):
    if i: a(f"s_add_u32 s{sT[1]}, s{sT[1]}, 32768")
    if i >= RWIN: a(f"s_waitcnt vmcnt({RWIN-1})")
    a(f"buffer_load_dwordx4 {v(RAW+4*i,4)}, v{vT[4]}, {srd(R_WUV)}, s{sT[1]} offen{P_R}")
for i in range(32):
    if i and i % 2 == 0: a(f"s_add_u32 s{sT[2]}, s{sT[2]}, 4096")
    if i + 16 >= RWIN: a(f"s_waitcnt vmcnt({RWIN-1})")
    a(f"buffer_load_dwordx4 {v(RAW+64+4*i,4)}, v{vT[5]}, {srd(R_WO)}, s{sT[2]} offen offset:{(i&1)*2048}{P_R}")
lds_signal(F_RI)
stamp("rest issued")
a(f"""
v_lshlrev_b32 v{t0}, 5, v{vG}
v_lshlrev_b32 v{t1}, 4, v{vN}
v_xor_b32 v{t0}, v{t0}, v{t1}
v_lshl_add_u32 v{t0}, v{vG}, 8, v{t0}
s_lshl_b32 s{sT[1]}, s{sT[0]}, 14
v_add_u32 v{t0}, s{sT[1]}, v{t0}
v_xor_b32 v{t1}, 128, v{t0}
v_lshrrev_b32 v{t2}, 5, v{vL}
v_and_b32 v{vT[4]}, 31, v{vL}
v_lshlrev_b32 v{vT[4]}, 4, v{vT[4]}
v_lshlrev_b32 v{t3}, 5, v{t2}
v_xor_b32 v{vT[4]}, v{vT[4]}, v{t3}
v_lshl_add_u32 v{vT[4]}, v{t2}, 9, v{vT[4]}
s_lshl_b32 s{sT[1]}, s{sT[0]}, 15
s_add_u32 s{sT[1]}, s{sT[1]}, {L_WO}
v_add_u32 v{vT[4]}, s{sT[1]}, v{vT[4]}
v_xor_b32 v{vT[5]}, 64, v{vT[4]}
v_xor_b32 v{vT[6]}, 128, v{vT[4]}
v_xor_b32 v{vT[7]}, 192, v{vT[4]}
""")
lds_wait(F_BD, 4, sleep=1)
for i in range(16):
    if 47 - i < RWIN: a(f"s_waitcnt vmcnt({47-i})")
    a(f"ds_write_b128 v{t1 if (i>>1)&1 else t0}, {v(RAW+4*i,4)} offset:{L_WUV + 1024*i}")
for i in range(32):
    if 31 - i < RWIN: a(f"s_waitcnt vmcnt({31-i})")
    sel = (i & 1) | (((i >> 2) & 1) << 1)
    a(f"ds_write_b128 v{vT[4+sel]}, {v(RAW+64+4*i,4)} offset:{1024*i}")
lds_signal(F_ST)
stamp("images written")

a("L_phaseC:")
FUV, FO, CB, XD, AD, AP = 32, 64, 128, 144, 160, 176
vUVa, vOa, vCLr, vCXw, vCXr, vPA = vT[4], vT[5], vT[6], vT[7], vT[8], vT[9]
a(f"""
v_bfe_u32 v{vT[12]}, v{vL}, 2, 2
v_and_b32 v{vT[13]}, 1, v{vG}
v_lshl_add_u32 v{vT[13]}, v{vT[13]}, 2, v{vT[12]}
v_lshl_add_u32 v{vT[12]}, v{vG}, 3, v{vT[12]}
v_and_b32 v{vT[14]}, 3, v{vL}
v_lshlrev_b32 v{vT[14]}, 3, v{vT[14]}
s_lshl_b32 s{sT[0]}, s{sK}, 1
v_xor_b32 v{vUVa}, s{sT[0]}, v{vT[13]}
v_lshl_add_u32 v{vUVa}, v{vUVa}, 5, v{vT[14]}
v_lshl_add_u32 v{vUVa}, v{vT[12]}, 8, v{vUVa}
s_lshl_b32 s{sT[0]}, s{sK}, 2
v_xor_b32 v{vOa}, s{sT[0]}, v{vT[13]}
v_lshl_add_u32 v{vOa}, v{vOa}, 5, v{vT[14]}
v_lshl_add_u32 v{vOa}, v{vT[12]}, 9, v{vOa}
v_add_u32 v{vOa}, {L_WO}, v{vOa}
v_and_b32 v{vT[12]}, 3, v{vN}
v_mul_u32_u24 v{vT[12]}, 272, v{vT[12]}
v_lshl_add_u32 v{vCXr}, v{vG}, 4, v{vT[12]}
v_add_u32 v{vCLr}, {L_CL}, v{vCXr}
v_add_u32 v{vCXr}, {L_CX}, v{vCXr}
v_lshl_add_u32 v{vCXw}, v{vG}, 3, v{vT[12]}
s_lshl_b32 s{sT[0]}, s{sK}, 6
s_add_u32 s{sT[0]}, s{sT[0]}, {L_CX}
v_add_u32 v{vCXw}, s{sT[0]}, v{vCXw}
v_lshlrev_b32 v{vPA}, 4, v{vG}
v_lshl_add_u32 v{vPA}, v{vN}, 17, v{vPA}
s_lshl_b32 s{sT[1]}, s{sMH}, 2
s_add_u32 s{sT[1]}, s{sT[1]}, s{sK}
s_lshl_b32 s{sT[1]}, s{sT[1]}, 14
s_lshl_b32 s{sT[2]}, s{sH}, 2
s_add_u32 s{sT[2]}, s{sT[2]}, s{sCQ}
s_lshl_b32 s{sT[2]}, s{sT[2]}, 7
s_add_u32 s{sT[1]}, s{sT[1]}, s{sT[2]}
s_add_u32 s{sT[1]}, s{sT[1]}, {PA_OFF}
""")
lds_wait(F_ST, 2, sleep=1)
for mt in range(2):
    if mt: a(f"v_xor_b32 v{vT[12]}, 32, v{vUVa}")
    for ks in range(4):
        for vv in range(2):
            a(f"ds_read_b64_tr_b16 {v(FUV+16*mt+4*ks+2*vv,2)}, v{vT[12] if mt else vUVa} offset:{L_WUV + (32*ks+4*vv)*256}")
for mt in range(4):
    if mt: a(f"v_xor_b32 v{vT[12]}, {32*mt}, v{vOa}")
    for ks in range(4):
        for vv in range(2):
            a(f"ds_read_b64_tr_b16 {v(FO+16*mt+4*ks+2*vv,2)}, v{vT[12] if mt else vOa} offset:{(32*ks+4*vv)*512}")
stamp("weights staged")
a("s_setprio 2")
def spec_cl():
    for ks in range(4): a(f"ds_read_b128 {v(CB+4*ks,4)}, v{vCLr} offset:{64*ks}")
lds_wait(F_CL, 4, spec_cl)
if PFWHEN == 1:
    a(f"""
    s_cmp_ge_u32 s{sW}, 6
    s_cbranch_scc1 L_nopf2
    """)
    ffn_pf("b", sT[9], sT[10])
    a("L_nopf2:")
for ks in range(4):
    for mt in range(2): mfma(XD+4*mt, FUV+16*mt+4*ks, CB+4*ks, ks == 0)
for k in range(4): a(f"v_cvt_pk_bf16_f32 v{XD+8+k}, v{XD+2*k}, v{XD+2*k+1}")
a(f"""
s_mov_b64 exec, s[{sM4}:{sM4+1}]
ds_write_b64 v{vCXw}, {v(XD+8,2)}
ds_write_b64 v{vCXw}, {v(XD+10,2)} offset:32
""")
lds_signal(F_CX)
def spec_cx():
    for ks in range(4): a(f"ds_read_b128 {v(CB+4*ks,4)}, v{vCXr} offset:{64*ks}")
lds_wait(F_CX, 4, spec_cx)
for p in range(2):
    for ks in range(4):
        for k in range(2):
            mt = 2 * p + k
            mfma(AD+4*mt, FO+16*mt+4*ks, CB+4*ks, ks == 0)
a(f"s_mov_b64 exec, s[{sM4}:{sM4+1}]")
for p in range(2):
    for k in range(4): a(f"v_cvt_pk_bf16_f32 v{AP+4*p+k}, v{AD+8*p+2*k}, v{AD+8*p+2*k+1}")
    a(f"buffer_store_dwordx4 {v(AP+4*p,4)}, v{vPA}, {srd(R_WS)}, s{sT[1]} offen offset:{64*p} sc1")
a("s_mov_b64 exec, -1")
stamp("attn partial published")
a("s_waitcnt vmcnt(0)")

a("L_fin:")
if PROF:
    stamp("end")
    a(f"""
    s_lshl_b32 s{sT[0]}, s2, 3
    s_add_u32 s{sT[0]}, s{sT[0]}, s{sW}
    s_lshl_b32 s{sT[0]}, s{sT[0]}, 8
    s_add_u32 s{sT[0]}, s{sT[0]}, {TS_OFF}
    v_lshlrev_b32 v{t0}, 2, v{vL}
    buffer_store_dword v{vTSA}, v{t0}, {srd(R_WS)}, s{sT[0]} offen
    """)
a("L_end:")

hdr = open("sequential_preLN__compressed_kv_cla__swiglu_ffn__decode.s.ref").read().split("; @launch")[0]
open(OUT, "w").write(wrap_single(a.text(), 256, 512, LDS_BYTES, vgpr=256, header=hdr))
print("instructions:", a.ninstr, file=sys.stderr)
```

```python
import sys, math, struct
from asmgen import *

def opt(name, default):
    for x in sys.argv[1:]:
        if x.startswith("--" + name + "="):
            return int(x.split("=")[1])
    return default
PROF = "--prof" in sys.argv
DBGT = "--dbgtime" in sys.argv
OUT = [a for a in sys.argv[1:] if not a.startswith("--")]
OUT = OUT[0] if OUT else "sequential_preLN__compressed_kv_cla__swiglu_ffn__decode.s"
POLL_MAX = 1 << 15
LSPIN_MAX = 1 << 20
DWIN_A = opt("dwina", 14)
DWIN_F = opt("dwinf", 20)
RWIN = opt("rwin", 12)
UKPF = opt("ukpf", 1)
CODEPF = opt("codepf", 1)
QSLEEP = opt("qsleep", 4)
OACK = opt("oack", 1)
POLS = [" nt", "", " sc0", " sc1", " sc0 nt"]
P_WQ = POLS[opt("pwq", 1)]; P_CK = POLS[opt("pck", 1)]; P_R = POLS[opt("pr", 1)]
AQ = opt("aq", 16)
PFWHEN = opt("pfwhen", 1)
MLSLEEP = opt("mlsleep", 2)
FFNDLY = opt("ffndly", 24)

EPOCH_OFF = 0x0
QA_OFF = 0x10000
HG_OFF = 0x58000
PA_OFF = 0x80000
PF_OFF = 0x100000
O_OFF = 0x200000
ML_OFF = 0x600000
TS_OFF = 0x1000000
WS_USED = 0x1100000

L_QS = 131072
L_XN = 147456
L_Q16 = 151616
L_MX = 152640
L_PX = 153152
L_CL = 157248
L_CX = 159488
L_RED = 160576
L_CS = 162624
L_FL = 163136
LDS_BYTES = 163840
L_WUV, L_WO = 0, 32768
L_G, L_U, L_WD = 98304, 114688, L_QS
L_FX = L_PX
(F_XN, F_CLR, F_QP, F_Q16, F_QS, F_P, F_GO, F_WQI) = [4 * i for i in range(8)]
F_TILE = 32
(F_RI, F_BD, F_ST, F_CL, F_CX, F_QI) = [64 + 4 * i for i in range(6)]
UKGATE = opt('ukgate', 1)
GOAT_A = opt('goata', 64)
GOAT_F = opt('goatf', 64)
L_QP = L_PX

sW, sX, sY, sH, sYP, sCQ, sMH, sHGB, sCH, sEP = 3, 4, 5, 6, 7, 8, 9, 10, 11, 12
sT = list(range(13, 24))
sO, sHA, sJQ, sPHI, sRHO, sISF, sISR, sCNT = 24, 25, 26, 27, 28, 29, 30, 31
R_X, R_CKV, R_WQ, R_WUK, R_WUV, R_WO, R_WG, R_WU, R_WD, R_OUT, R_WS, R_PF = [32 + 4 * i for i in range(12)]
sSELLO, sSELHI = 80, 81
sM8 = 82
sM4 = 84
sACC = 86
sC2 = 88
sTS = 90
sK = 92
def srd(r): return f"s[{r}:{r+3}]"
def f32(x): return "0x%08x" % struct.unpack("<I", struct.pack("<f", x))[0]

vL, vN, vG, vL16, vFL, vONE, vTSA = 1, 2, 3, 4, 5, 6, 7
vT = list(range(8, 32))
t0, t1, t2, t3 = vT[0], vT[1], vT[2], vT[3]
vSP = vT[23]
vDUM = vT[21]
def v(i, n=1): return f"v{i}" if n == 1 else f"v[{i}:{i+n-1}]"
def fsw(row): return 2 * ((row & 7) ^ (4 * (row >> 3))) + (row >> 3)

a = Asm()
stamps = {}
PROBE = [x.split("=", 1)[1].replace("_", " ") for x in sys.argv if x.startswith("--probe=")]
def stamp(name):
    if PROBE and PROBE[0] == name.replace("_", " "):
        a(f"""
        s_memrealtime s[94:95]
        s_waitcnt lgkmcnt(0)
        v_mov_b32 v{vT[19]}, 16
        v_mov_b32 v{vT[20]}, s94
        s_mov_b64 s[100:101], exec
        s_mov_b64 exec, 1
        global_atomic_umax v{vT[19]}, v{vT[20]}, s[98:99] sc1
        s_mov_b64 exec, s[100:101]
        """)
    if not PROF: return
    if name not in stamps:
        stamps[name] = len(stamps)
    i = stamps[name]
    a(f"""
    s_memrealtime s[{sTS}:{sTS+1}]
    s_waitcnt lgkmcnt(0)
    v_writelane_b32 v{vTSA}, s{sTS}, {i}
    """)
def cstamp(name):
    if not PROF: return
    name = "#" + name
    if name not in stamps:
        stamps[name] = len(stamps)
    a(f"s_add_u32 s{sTS}, s{sCNT}, 1")
    a(f"v_writelane_b32 v{vTSA}, s{sTS}, {stamps[name]}")
def poll_tail(name, sleep=0):
    done = a.newlabel("Lpd")
    a(f"""
    s_cmp_eq_u64 vcc, 0
    s_cbranch_scc1 {done}
    """)
    if sleep: a(f"s_sleep {sleep}")
    a(f"""
    s_add_u32 s{sCNT}, s{sCNT}, 1
    s_cmp_lt_u32 s{sCNT}, {POLL_MAX}
    s_cbranch_scc1 {name}
    """)
    a.label(done)
def poison_check(regs, tmp):
    regs = list(regs); n = len(regs)
    a(f"v_max3_u32 v{tmp}, v{regs[0]}, v{regs[1]}, v{regs[2]}")
    i = 3
    while i + 1 < n:
        a(f"v_max3_u32 v{tmp}, v{tmp}, v{regs[i]}, v{regs[i+1]}"); i += 2
    if i < n: a(f"v_max_u32 v{tmp}, v{tmp}, v{regs[i]}")
    a(f"v_cmp_eq_u32 vcc, -1, v{tmp}")
def lds_signal(off, base=None):
    a(f"""
    s_mov_b64 exec, 1
    ds_add_u32 v{vFL if base is None else base}, v{vONE} offset:{off}
    s_mov_b64 exec, -1
    """)
def lds_wait(off, target, spec=None, sleep=0, base=None):
    lp, dn = a.newlabel("Lw"), a.newlabel("Lwd")
    a(f"s_mov_b32 s{sCNT}, 0")
    a.label(lp)
    a(f"ds_read_b32 v{vSP}, v{vFL if base is None else base} offset:{off}")
    if spec: spec()
    a(f"""
    s_waitcnt lgkmcnt(0)
    v_readfirstlane_b32 s{sACC}, v{vSP}
    s_cmp_ge_u32 s{sACC}, {target}
    s_cbranch_scc1 {dn}
    """)
    if sleep: a(f"s_sleep {sleep}")
    a(f"""
    s_add_u32 s{sCNT}, s{sCNT}, 1
    s_cmp_lt_u32 s{sCNT}, {LSPIN_MAX}
    s_cbranch_scc1 {lp}
    """)
    a.label(dn)
def rne_bf16(dst, src):
    a(f"v_cvt_pk_bf16_f32 v{dst}, v{src}, v{src}")
    a(f"v_and_b32 v{dst}, 0xffff0000, v{dst}")
def mfma(d, A, B, first, k16=False):
    n = 2 if k16 else 4
    op = "v_mfma_f32_16x16x16_bf16" if k16 else "v_mfma_f32_16x16x32_bf16"
    a(f"{op} {v(d,4)}, {v(A,n)}, {v(B,n)}, {'0' if first else v(d,4)}")

XR, XF = 32, 40
def ln_row():
    def wave_sum(x):
        for ctl in ["row_shr:1", "row_shr:2", "row_shr:4", "row_shr:8"]:
            a(f"v_add_f32_dpp v{x}, v{x}, v{x} {ctl} row_mask:0xf bank_mask:0xf bound_ctrl:0")
        a(f"v_add_f32_dpp v{x}, v{x}, v{x} row_bcast:15 row_mask:0xa bank_mask:0xf")
        a(f"v_add_f32_dpp v{x}, v{x}, v{x} row_bcast:31 row_mask:0xc bank_mask:0xf")
    xr, xf = XR, XF
    for i in range(4):
        a(f"v_lshlrev_b32 v{xf+2*i}, 16, v{xr+i}")
        a(f"v_and_b32 v{xf+2*i+1}, 0xffff0000, v{xr+i}")
    a(f"v_add_f32 v{xf+12}, v{xf}, v{xf+1}")
    for i in range(2, 8): a(f"v_add_f32 v{xf+12}, v{xf+12}, v{xf+i}")
    wave_sum(xf + 12)
    a(f"v_mov_b32 v{xf+15}, 0x3b000000")
    a(f"v_readlane_b32 s{sT[6]}, v{xf+12}, 63")
    a(f"v_mul_f32 v{xf+13}, s{sT[6]}, v{xf+15}")
    for i in range(8):
        a(f"v_sub_f32 v{xf+14}, v{xf+i}, v{xf+13}")
        if i == 0: a(f"v_mul_f32 v{xf+12}, v{xf+14}, v{xf+14}")
        else: a(f"v_fmac_f32 v{xf+12}, v{xf+14}, v{xf+14}")
    rne_bf16(xf + 13, xf + 13)
    wave_sum(xf + 12)
    for i in range(8): a(f"v_sub_f32 v{xf+i}, v{xf+i}, v{xf+13}")
    a(f"v_readlane_b32 s{sT[6]}, v{xf+12}, 63")
    for i in range(4): a(f"v_cvt_pk_bf16_f32 v{xf+8+i}, v{xf+2*i}, v{xf+2*i+1}")
    a(f"v_mul_f32 v{xf+12}, s{sT[6]}, v{xf+15}")
    rne_bf16(xf + 12, xf + 12)
    a(f"v_add_f32 v{xf+12}, 0x3727c5ac, v{xf+12}")
    rne_bf16(xf + 12, xf + 12)
    a(f"v_sqrt_f32 v{xf+12}, v{xf+12}")
    for i in range(4):
        a(f"v_lshlrev_b32 v{xf+2*i}, 16, v{xf+8+i}")
        a(f"v_and_b32 v{xf+2*i+1}, 0xffff0000, v{xf+8+i}")
    rne_bf16(xf + 12, xf + 12)
    a(f"v_rcp_f32 v{xf+12}, v{xf+12}")
    a(f"s_mul_i32 s{sT[6]}, s{sK}, 1040")
    a(f"s_add_u32 s{sT[6]}, s{sT[6]}, {L_XN}")
    a(f"v_add_u32 v{xf+15}, s{sT[6]}, v{vL16}")
    for i in range(8): a(f"v_mul_f32 v{xf+i}, v{xf+i}, v{xf+12}")
    for i in range(4): a(f"v_cvt_pk_bf16_f32 v{xf+8+i}, v{xf+2*i}, v{xf+2*i+1}")
    a(f"ds_write_b128 v{xf+15}, {v(xf+8,4)}")

EARLYPF = f"""s_getpc_b64 s[{sC2}:{sC2+1}]
v_lshlrev_b32 v{t1}, 6, v0
v_min_u32 v{t1}, L_end-{KNAME}-256, v{t1}
global_load_dword v{vDUM}, v{t1}, s[{sC2}:{sC2+1}]""" if opt("earlypf", 1) else ""
if opt("earlypf", 1): CODEPF = 0
WQ, FR, AC, BX, UK = 32, 160, 192, 224, 32
vWQ, vUK = vT[4], vT[5]
def wq_kstep(u):
    a(f"""
    s_add_u32 s{sT[2]}, s{sJQ}, {u}
    s_and_b32 s{sT[2]}, s{sT[2]}, 3
    s_lshl_b32 s{sT[2]}, s{sT[2]}, 18
    s_add_u32 s{sT[3]}, s{sT[2]}, s{sT[0]}
    """)
    if u == 0: a("s_waitcnt lgkmcnt(0)")
    for e in range(8):
        if e: a(f"s_add_u32 s{sT[3]}, s{sT[3]}, 8192")
        a(f"buffer_load_dwordx4 {v(WQ+4*(8*u+e),4)}, v{vWQ}, {srd(R_WQ)}, s{sT[3]} offen{P_WQ}")
def q_kstep(u):
    for jj in range(8):
        for p in range(4):
            sel = sSELHI if (jj & 1) else sSELLO
            a(f"v_perm_b32 v{FR+4*jj+p}, v{WQ+4*(8*u+2*p+1)+(jj>>1)}, v{WQ+4*(8*u+2*p)+(jj>>1)}, s{sel}")
        if jj >= 1: mfma(AC+4*(jj-1), FR+4*(jj-1), BX+4*u, u == 0)
    mfma(AC+28, FR+28, BX+4*u, u == 0)
def srdw(lst):
    for r, nb in lst:
        a(f"s_mov_b32 s{r+2}, {nb}")
        a(f"s_mov_b32 s{r+3}, 0x20000")
a(f"""
s_load_dwordx2 s[{R_WQ}:{R_WQ+1}], s[0:1], 16
s_load_dwordx2 s[{R_X}:{R_X+1}], s[0:1], 0
s_load_dwordx2 s[{R_WUK}:{R_WUK+1}], s[0:1], 24
s_load_dwordx2 s[{R_CKV}:{R_CKV+1}], s[0:1], 8
s_load_dwordx2 s[{R_WS}:{R_WS+1}], s[0:1], 96
{"s_memrealtime s[94:95]" if DBGT else ""}
s_cmp_ge_u32 s2, 256
s_cbranch_scc1 L_end
{EARLYPF}
v_lshrrev_b32 v{t0}, 6, v0
v_and_b32 v{vL}, 63, v0
v_and_b32 v{vN}, 15, v0
v_readfirstlane_b32 s{sW}, v{t0}
v_bfe_u32 v{vG}, v0, 4, 2
v_lshlrev_b32 v{vL16}, 4, v{vL}
v_lshlrev_b32 v{vWQ}, 16, v{vG}
v_lshl_add_u32 v{vWQ}, v{vN}, 4, v{vWQ}
s_and_b32 s{sX}, s2, 7
s_lshr_b32 s{sYP}, s2, 4
s_and_b32 s{sHA}, s{sYP}, 3
s_lshl2_add_u32 s{sHA}, s{sX}, s{sHA}
s_lshr_b32 s{sJQ}, s{sYP}, 2
s_lshl_b32 s{sT[1]}, s{sHA}, 8
s_and_b32 s{sK}, s{sW}, 3
""")
srdw([(R_WQ, 4 << 20), (R_X, 4096), (R_WUK, 4 << 20)])
a(f"""
s_bitcmp1_b32 s2, 3
s_cbranch_scc1 L_f0
s_cmp_ge_u32 s{sW}, 4
s_cbranch_scc1 L_al0
s_lshl_b32 s{sT[0]}, s{sW}, 20
s_add_u32 s{sT[0]}, s{sT[0]}, s{sT[1]}
""")
wq_kstep(0)
a(f"""
s_branch L_j0
L_al0:
s_lshl_b32 s{sT[2]}, s{sK}, 10
v_lshlrev_b32 v{t0}, 2, v{vL}
v_add_u32 v{t0}, {L_FL}, v{t0}
v_mov_b32 v{t3}, 0
ds_write_b32 v{t0}, v{t3}
v_lshlrev_b32 v{t0}, 3, v{vN}
v_add_u32 v{t0}, {L_MX}, v{t0}
v_mov_b32 v{t2}, 0xff800000
ds_write2_b32 v{t0}, v{t2}, v{t3} offset0:0 offset1:1
s_waitcnt lgkmcnt(0)
buffer_load_dwordx4 {v(XR,4)}, v{vL16}, {srd(R_X)}, s{sT[2]} offen
s_branch L_j0
L_f0:
s_cmp_ge_u32 s{sW}, 4
s_cbranch_scc1 L_f1
v_lshrrev_b32 v{t2}, 1, v{vL}
v_lshlrev_b32 v{t2}, 13, v{t2}
v_and_b32 v{t3}, 1, v{vL}
v_lshl_add_u32 v{t2}, v{t3}, 7, v{t2}
s_lshl2_add_u32 s{sT[6]}, s{sJQ}, s{sW}
s_lshl_b32 s{sT[6]}, s{sT[6]}, 18
s_add_u32 s{sT[6]}, s{sT[6]}, s{sT[1]}
s_waitcnt lgkmcnt(0)
buffer_load_dword v{vDUM+1}, v{t2}, {srd(R_WUK)}, s{sT[6]} offen{P_WQ}
s_branch L_j0
L_f1:
v_lshlrev_b32 v{t0}, 2, v{vL}
v_add_u32 v{t0}, {L_FL}, v{t0}
v_mov_b32 v{t3}, 0
ds_write_b32 v{t0}, v{t3}
v_lshlrev_b32 v{t0}, 3, v{vN}
v_add_u32 v{t0}, {L_MX}, v{t0}
v_mov_b32 v{t2}, 0xff800000
ds_write2_b32 v{t0}, v{t2}, v{t3} offset0:0 offset1:1
s_waitcnt lgkmcnt(0)
L_j0:
s_barrier
""")
if PROF: a(f"v_mov_b32 v{vTSA}, 0")
stamp("start")
a(f"""
s_load_dword s{sEP}, s[{R_WS}:{R_WS+1}], {EPOCH_OFF}
s_load_dwordx2 s[{R_WUV}:{R_WUV+1}], s[0:1], 32
s_load_dwordx2 s[{R_WO}:{R_WO+1}], s[0:1], 40
s_load_dwordx2 s[{R_WG}:{R_WG+1}], s[0:1], 56
s_load_dwordx2 s[{R_WU}:{R_WU+1}], s[0:1], 64
s_load_dwordx2 s[{R_WD}:{R_WD+1}], s[0:1], 72
s_load_dwordx2 s[{R_OUT}:{R_OUT+1}], s[0:1], 80
{"s_load_dwordx2 s[98:99], s[0:1], 88" if DBGT else ""}
{"s_memtime s[96:97]" if DBGT else ""}
v_mov_b32 v{vFL}, {L_FL}
v_mov_b32 v{vONE}, 1
""")
srdw([(R_CKV, 16 << 20), (R_WS, WS_USED), (R_WUV, 4 << 20), (R_WO, 4 << 20),
      (R_WG, 512 * 1376 * 2), (R_WU, 512 * 1376 * 2), (R_WD, 512 * 1376 * 2), (R_OUT, 4096), (R_PF, 86 * 128)])
a(f"""
s_lshr_b32 s{sY}, s2, 3
s_and_b32 s{sT[4]}, s{sY}, 1
s_xor_b32 s{sHGB}, s{sT[4]}, 1
s_lshl_b32 s{sH}, s{sT[4]}, 4
s_lshl1_add_u32 s{sH}, s{sX}, s{sH}
s_and_b32 s{sT[5]}, s{sYP}, 1
s_add_u32 s{sH}, s{sH}, s{sT[5]}
s_bfe_u32 s{sCQ}, s{sY}, 0x20002
s_lshr_b32 s{sMH}, s{sY}, 4
s_lshl4_add_u32 s{sCH}, s{sX}, s{sYP}
s_mov_b32 s{sSELLO}, 0x05040100
s_mov_b32 s{sSELHI}, 0x07060302
s_mov_b32 s{sM4}, 0x000f000f
s_mov_b32 s{sM4+1}, 0x000f000f
s_mov_b32 s{sM8}, 0x00ff00ff
s_mov_b32 s{sM8+1}, 0x00ff00ff
s_mul_i32 s{sPHI}, s{sX}, 11
s_add_u32 s{sPHI}, s{sPHI}, s{sYP}
s_cmp_lt_u32 s{sYP}, 11
s_cselect_b32 s{sISF}, s{sT[4]}, 0
s_cmp_lt_u32 s{sPHI}, 86
s_cselect_b32 s{sISF}, s{sISF}, 0
s_cmp_ge_u32 s{sYP}, 12
s_cselect_b32 s{sISR}, s{sHGB}, 0
s_sub_u32 s{sRHO}, s{sYP}, 12
s_lshl3_add_u32 s{sRHO}, s{sRHO}, s{sX}
s_cmp_ge_u32 s{sW}, 6
s_cbranch_scc1 L_wave67
s_cmp_ge_u32 s{sW}, 4
s_cbranch_scc1 L_wave45
s_setprio 2
s_cmp_eq_u32 s{sHGB}, 0
s_cbranch_scc1 L_freeC
""")

vQPw, vQPr, vQ16w, vQ16r, vQAp = vT[6], vT[7], vT[8], vT[9], vT[10]
a(f"""
s_lshl_b32 s{sT[4]}, s{sW}, 5
s_lshl_b32 s{sT[5]}, s{sJQ}, 7
s_add_u32 s{sT[4]}, s{sT[4]}, s{sT[5]}
s_lshl_b32 s{sT[4]}, s{sT[4]}, 13
s_add_u32 s{sT[4]}, s{sT[4]}, s{sT[1]}
s_add_u32 s{sT[5]}, s{sT[4]}, {16*8192}
v_lshlrev_b32 v{vUK}, 13, v{vN}
v_lshl_add_u32 v{vUK}, v{vG}, 4, v{vUK}
v_and_b32 v{t1}, 3, v{vN}
v_mul_u32_u24 v{t0}, 1040, v{t1}
v_lshl_add_u32 v{t0}, v{vG}, 4, v{t0}
s_lshl_b32 s{sT[6]}, s{sW}, 8
s_add_u32 s{sT[6]}, s{sT[6]}, {L_XN}
v_add_u32 v{t0}, s{sT[6]}, v{t0}
s_lshl_b32 s{sT[6]}, s{sW}, 11
s_add_u32 s{sT[6]}, s{sT[6]}, {L_QP}
v_lshlrev_b32 v{vQPw}, 6, v{vG}
v_lshl_add_u32 v{vQ16r}, v{t1}, 4, v{vQPw}
v_add_u32 v{vQPw}, s{sT[6]}, v{vQ16r}
v_add_u32 v{vQ16r}, {L_Q16}, v{vQ16r}
s_lshl_b32 s{sT[6]}, s{sW}, 9
s_add_u32 s{sT[6]}, s{sT[6]}, {L_QP}
v_lshlrev_b32 v{vQPr}, 2, v{vL}
v_add_u32 v{vQPr}, s{sT[6]}, v{vQPr}
v_lshlrev_b32 v{vQ16w}, 6, v{t1}
v_and_b32 v{t2}, 12, v{vL}
v_lshl_add_u32 v{vQ16w}, v{t2}, 2, v{vQ16w}
v_lshl_add_u32 v{vQ16w}, v{vG}, 8, v{vQ16w}
s_lshl_b32 s{sT[6]}, s{sW}, 2
s_add_u32 s{sT[6]}, s{sT[6]}, {L_Q16}
v_add_u32 v{vQ16w}, s{sT[6]}, v{vQ16w}
v_lshlrev_b32 v{vQAp}, 16, v{t1}
v_lshl_add_u32 v{vQAp}, v{vG}, 4, v{vQAp}
v_bfe_u32 v{t2}, v{vN}, 2, 1
v_lshl_add_u32 v{vQAp}, v{t2}, 6, v{vQAp}
v_cmp_eq_u32 s[{sC2}:{sC2+1}], 1, v{t2}
s_lshl_b32 s{sT[6]}, s{sHA}, 11
s_lshl_b32 s{sT[7]}, s{sJQ}, 9
s_add_u32 s{sT[6]}, s{sT[6]}, s{sT[7]}
s_lshl_b32 s{sT[7]}, s{sW}, 7
s_add_u32 s{sT[6]}, s{sT[6]}, s{sT[7]}
s_add_u32 s{sT[6]}, s{sT[6]}, {QA_OFF}
s_mov_b32 s{sT[7]}, {f32(math.log2(math.e) / math.sqrt(128.0))}
""")
for u in range(4):
    a(f"""
    s_add_u32 s{sT[2]}, s{sJQ}, {u}
    s_and_b32 s{sT[2]}, s{sT[2]}, 3
    s_lshl_b32 s{sT[2]}, s{sT[2]}, 6
    v_add_u32 v{vT[11+u]}, s{sT[2]}, v{t0}
    """)
wq_kstep(1)
wq_kstep(2)
def spec_xn():
    for u in range(4):
        a(f"ds_read_b128 {v(BX+4*u,4)}, v{vT[11+u]}")
wq_kstep(3)
stamp("wq issued")
lds_wait(F_XN, 4, spec_xn)
a(f"s_add_u32 s{sEP}, s{sEP}, 1")
a("s_waitcnt vmcnt(24)")
q_kstep(0)
for mt in range(2):
    for t in range(4):
        a(f"buffer_load_dwordx4 {v(UK+16*mt+4*t,4)}, v{vUK}, {srd(R_WUK)}, s{sT[4+mt]} offen offset:{64*t}{P_WQ}")
lds_signal(F_WQI)
for u in range(1, 4):
    a(f"s_waitcnt vmcnt({(3-u)*8 + 8})")
    q_kstep(u)
stamp("q partial")
a(f"s_mov_b64 exec, s[{sM4}:{sM4+1}]")
for jj in range(8):
    a(f"ds_write_b128 v{vQPw}, {v(AC+4*jj,4)} offset:{256*jj}")
lds_signal(F_QP)
def spec_qp():
    for k in range(4):
        a(f"ds_read2st64_b32 {v(FR+2*k,2)}, v{vQPr} offset0:{8*k} offset1:{8*k+1}")
lds_wait(F_QP, 4, spec_qp)
stamp("qp done")
a(f"""
v_add_f32 v{FR}, v{FR}, v{FR+2}
v_add_f32 v{FR+1}, v{FR+1}, v{FR+3}
v_add_f32 v{FR+4}, v{FR+4}, v{FR+6}
v_add_f32 v{FR+5}, v{FR+5}, v{FR+7}
v_add_f32 v{FR}, v{FR}, v{FR+4}
v_add_f32 v{FR+1}, v{FR+1}, v{FR+5}
v_cvt_pk_bf16_f32 v{FR}, v{FR}, v{FR+1}
ds_write_b32 v{vQ16w}, v{FR}
""")
lds_signal(F_Q16)
a(f"v_mov_b32 v{AC+9}, s{sEP}")
a(f"v_mov_b32 v{AC+11}, s{sEP}")
def spec_q16():
    a(f"ds_read_b32 v{t3}, v{vFL} offset:{F_CLR}")
    for t in range(4):
        a(f"ds_read_b128 {v(FR+8+4*t,4)}, v{vQ16r} offset:{256*t}")
lds_wait(F_Q16, 4, spec_q16)
stamp("q16 done")
a("s_waitcnt vmcnt(0)")
stamp("uk landed")
for t in range(4):
    for mt in range(2):
        mfma(AC+4*mt, UK+16*mt+4*t, FR+8+4*t, t == 0)
a(f"""
v_readfirstlane_b32 s{sACC}, v{t3}
s_cmp_ge_u32 s{sACC}, 2
s_cbranch_scc1 L_clrok
""")
lds_wait(F_CLR, 2)
a("L_clrok:")
for r in range(4):
    a(f"v_cndmask_b32 v{AC+r}, v{AC+r}, v{AC+4+r}, s[{sC2}:{sC2+1}]")
for r in range(4):
    a(f"v_mul_f32 v{AC+r}, s{sT[7]}, v{AC+r}")
a(f"""
v_cvt_pk_bf16_f32 v{AC+8}, v{AC}, v{AC+1}
v_cvt_pk_bf16_f32 v{AC+10}, v{AC+2}, v{AC+3}
s_mov_b64 exec, s[{sM8}:{sM8+1}]
buffer_store_dwordx4 {v(AC+8,4)}, v{vQAp}, {srd(R_WS)}, s{sT[6]} offen sc1
s_mov_b64 exec, -1
""")
stamp("q_abs published")
a("s_branch L_phaseB")

a("L_freeC:")
if UKGATE:
    a("s_waitcnt vmcnt(0)")
    lds_signal(F_WQI)
lds_wait(F_CLR, 2, sleep=4)
a(f"s_add_u32 s{sEP}, s{sEP}, 1")

a("L_phaseB:")
QF, SA0, SA1, SD, vM = 32, 96, 160, 224, 232
vX0 = vT[4]
vMX, vPw, vPr, vC, vTF, vPV, vO = vT[8], vT[9], vT[10], vT[11], vT[12], vT[13], vT[14]
vSA = vT[15]
a(f"""
v_lshrrev_b32 v{t0}, 3, v{vN}
v_lshlrev_b32 v{t1}, 2, v{t0}
v_and_b32 v{t2}, 7, v{vN}
v_xor_b32 v{t2}, v{t2}, v{t1}
v_lshl_add_u32 v{t2}, v{t2}, 1, v{t0}
v_xor_b32 v{t2}, v{t2}, v{vG}
v_lshlrev_b32 v{t2}, 4, v{t2}
v_lshl_add_u32 v{t2}, v{vN}, 10, v{t2}
s_lshl_b32 s{sT[0]}, s{sW}, 15
v_add_u32 v{vSA}, s{sT[0]}, v{t2}
v_add_u32 v{vX0}, {L_QS}, v{t2}
""")
for tt in range(1, 4):
    a(f"v_xor_b32 v{vSA+tt}, {64*tt}, v{vSA}")
    a(f"v_xor_b32 v{vX0+tt}, {64*tt}, v{vX0}")
a(f"""
s_lshl_b32 s{sT[1]}, s{sW}, 3
v_add_u32 v{vTF}, s{sT[1]}, v{vFL}
v_bfe_u32 v{t0}, v{vL}, 2, 4
v_lshrrev_b32 v{t1}, 3, v{t0}
v_lshlrev_b32 v{t2}, 2, v{t1}
v_and_b32 v{t3}, 7, v{t0}
v_xor_b32 v{t3}, v{t3}, v{t2}
v_lshl_add_u32 v{t3}, v{t3}, 1, v{t1}
v_bfe_u32 v{t1}, v{vL}, 1, 1
v_xor_b32 v{t3}, v{t3}, v{t1}
v_lshlrev_b32 v{t3}, 4, v{t3}
v_and_b32 v{t1}, 1, v{vL}
v_lshl_add_u32 v{t3}, v{t1}, 3, v{t3}
v_lshl_add_u32 v{t3}, v{t0}, 10, v{t3}
s_lshl_b32 s{sT[0]}, s{sW}, 8
v_add_u32 v{vPV}, s{sT[0]}, v{t3}
v_and_b32 v{t0}, 1, v{vG}
v_lshlrev_b32 v{t0}, 5, v{t0}
v_lshrrev_b32 v{t1}, 1, v{vG}
v_lshl_add_u32 v{t0}, v{t1}, 4, v{t0}
v_and_b32 v{t1}, 7, v{vN}
v_lshl_add_u32 v{vO}, v{t1}, 17, v{t0}
v_lshrrev_b32 v{t1}, 3, v{vN}
v_lshl_add_u32 v{vO}, v{t1}, 6, v{vO}
s_lshl_b32 s{sO}, s{sHGB}, 21
s_lshl_b32 s{sT[4]}, s{sCH}, 8
s_add_u32 s{sO}, s{sO}, s{sT[4]}
s_lshl_b32 s{sT[4]}, s{sW}, 15
s_add_u32 s{sO}, s{sO}, s{sT[4]}
s_add_u32 s{sO}, s{sO}, {O_OFF}
s_add_u32 s{sT[3]}, s{sO}, {8 << 17}
v_lshlrev_b32 v{vMX}, 3, v{vN}
v_add_u32 v{vMX}, {L_MX}, v{vMX}
s_lshl_b32 s{sT[0]}, s{sW}, 10
s_add_u32 s{sT[0]}, s{sT[0]}, {L_PX}
v_add_u32 v{vPw}, s{sT[0]}, v{vL16}
v_add_u32 v{vPr}, {L_PX}, v{vL16}
""")
PAD = list(range(240, 256))
for mt in range(8):
    a(f"v_xor_b32 v{PAD[mt]}, {32*mt}, v{vPV}")
    a(f"v_add_u32 v{PAD[8+mt]}, 0x10000, v{PAD[mt]}")
def sa_read(k, t):
    a(f"ds_read_b128 {v((SA1 if k else SA0)+4*t,4)}, v{vSA+(t&3)} offset:{16384*k+(t>>2)*256}")
def qf_read(t):
    a(f"ds_read_b128 {v(QF+4*t,4)}, v{vX0+(t&3)} offset:{(t>>2)*256}")
GQ = 64
vQa, vQb, vQw, vEP = 236, 237, 238, 239
a(f"""
v_lshlrev_b32 v{vQa}, 4, v0
v_add_u32 v{vQb}, 16384, v{vQa}
s_lshr_b32 s{sT[6]}, s{sCH}, 5
s_lshl_b32 s{sT[6]}, s{sT[6]}, 1
s_add_u32 s{sT[6]}, s{sT[6]}, s{sHGB}
s_lshl_b32 s{sT[6]}, s{sT[6]}, 15
s_add_u32 s{sT[6]}, s{sT[6]}, {QA_OFF}
s_add_u32 s{sT[7]}, s{sT[6]}, 4096
s_add_u32 s{sT[8]}, s{sT[6]}, 8192
s_add_u32 s{sT[9]}, s{sT[6]}, 12288
v_and_b32 v{vQw}, 127, v0
v_lshlrev_b32 v{vQw}, 3, v{vQw}
s_lshr_b32 s{sT[10]}, s{sW}, 1
s_lshl_b32 s{sT[5]}, s{sT[10]}, 5
v_xor_b32 v{vQw}, s{sT[5]}, v{vQw}
s_lshl_b32 s{sT[10]}, s{sT[10]}, 10
s_add_u32 s{sT[10]}, s{sT[10]}, {L_QS}
v_add_u32 v{vQw}, s{sT[10]}, v{vQw}
v_mov_b32 v{vEP}, s{sEP}
s_mov_b32 s{sT[2]}, 0
""")
def qa_loads():
    for i in range(8):
        a(f"buffer_load_dwordx4 {v(GQ+4*i,4)}, v{vQb if i >= 4 else vQa}, {srd(R_WS)}, s{sT[6+(i&3)]} offen sc1")
def try_tile1(tag):
    a(f"""
    ds_read_b32 v{t0}, v{vTF} offset:{F_TILE+4}
    s_waitcnt lgkmcnt(0)
    v_readfirstlane_b32 s{sACC+1}, v{t0}
    s_cmp_le_u32 s{sACC+1}, s{sT[2]}
    s_cbranch_scc1 L_nt1{tag}
    s_mov_b32 s{sT[2]}, 1
    """)
    for t in range(16): sa_read(1, t)
    a(f"L_nt1{tag}:")
lds_wait(F_TILE, 1, base=vTF, sleep=1)
for t in range(16): sa_read(0, t)
a("s_waitcnt vmcnt(0)")
lds_wait(F_GO, 2, sleep=1)
a(f"s_mov_b32 s{sCNT}, 0")
a("L_pollq:")
qa_loads()
lds_signal(F_QI)
try_tile1("a")
for i in range(8):
    a(f"s_waitcnt vmcnt({7-i})")
    if i == 0: a(f"v_xor_b32 v{t2}, v{GQ+1}, v{vEP}")
    else: a(f"v_bitop3_b32 v{t2}, v{t2}, v{GQ+4*i+1}, v{vEP} bitop3:0xf6")
    if i: a(f"v_xor_b32 v{t3}, {(fsw(2*i) << 4) | (i << 11)}, v{vQw}")
    a(f"v_bitop3_b32 v{t2}, v{t2}, v{GQ+4*i+3}, v{vEP} bitop3:0xf6")
    a(f"ds_write2_b32 v{t3 if i else vQw}, v{GQ+4*i}, v{GQ+4*i+2} offset0:0 offset1:1")
a(f"v_cmp_ne_u32 vcc, 0, v{t2}")
poll_tail("L_pollq", QSLEEP)
lds_signal(F_QS)
cstamp("qa retries")
stamp("q_abs gathered")
a(f"s_mov_b32 s{sCNT}, 0")
a("L_wq:")
a(f"""
ds_read_b32 v{vSP}, v{vFL} offset:{F_QS}
ds_read_b32 v{t0}, v{vTF} offset:{F_TILE+4}
""")
for t in range(4): qf_read(t)
a(f"""
s_waitcnt lgkmcnt(0)
v_readfirstlane_b32 s{sACC}, v{vSP}
v_readfirstlane_b32 s{sACC+1}, v{t0}
s_cmp_ge_u32 s{sACC}, 4
s_cbranch_scc1 L_wqd
s_add_u32 s{sCNT}, s{sCNT}, 1
s_cmp_lt_u32 s{sCNT}, {LSPIN_MAX}
s_cbranch_scc1 L_wq
L_wqd:
""")
stamp("Q ready")
for t in range(4, 16): qf_read(t)
a(f"""
s_cmp_eq_u32 s{sT[2]}, 1
s_cbranch_scc1 L_sboth
""")
a(f"""
s_cmp_ge_u32 s{sACC+1}, 1
s_cbranch_scc1 L_t1now
""")
for t in range(16):
    if t >= 4: a(f"s_waitcnt lgkmcnt({15-t})")
    mfma(SD, SA0+4*t, QF+4*t, t == 0)
lds_wait(F_TILE + 4, 1, base=vTF)
for t in range(16): sa_read(1, t)
for t in range(16):
    a(f"s_waitcnt lgkmcnt({15-t})")
    mfma(SD+4, SA1+4*t, QF+4*t, t == 0)
a("s_branch L_sdone")
a("L_t1now:")
for t in range(16):
    if t >= 4: a("s_waitcnt lgkmcnt(15)")
    sa_read(1, t)
    mfma(SD, SA0+4*t, QF+4*t, t == 0)
for t in range(16):
    a(f"s_waitcnt lgkmcnt({15-t})")
    mfma(SD+4, SA1+4*t, QF+4*t, t == 0)
a("s_branch L_sdone")
a("L_sboth:")
for t in range(16):
    if t >= 4: a(f"s_waitcnt lgkmcnt({15-t})")
    mfma(SD, SA0+4*t, QF+4*t, t == 0)
    mfma(SD+4, SA1+4*t, QF+4*t, t == 0)
a("L_sdone:")
a(f"""
v_max3_f32 v{t1}, v{SD}, v{SD+1}, v{SD+2}
v_max3_f32 v{t2}, v{SD+3}, v{SD+4}, v{SD+5}
v_max3_f32 v{t1}, v{t1}, v{SD+6}, v{SD+7}
v_max_f32 v{t1}, v{t1}, v{t2}
v_ceil_f32 v{vC}, v{t1}
ds_max_f32 v{vMX}, v{vC}
ds_add_u32 v{vMX}, v{vONE} offset:4
ds_read_b64 {v(vM,2)}, v{vMX}
""")
for r in range(8): a(f"v_sub_f32 v{SD+r}, v{SD+r}, v{vC}")
for r in range(8): a(f"v_exp_f32 v{SD+r}, v{SD+r}")
PVA, PB, OD, OS, ON = 32, 160, 176, 208, 224
lp, dn, ck = a.newlabel("Lm"), a.newlabel("Lmd"), a.newlabel("Lmc")
a(f"s_mov_b32 s{sCNT}, 0")
a(f"s_branch {ck}")
a.label(lp)
a(f"ds_read_b64 {v(vM,2)}, v{vMX}")
a.label(ck)
a(f"""
s_waitcnt lgkmcnt(0)
v_cmp_ne_u32 vcc, 16, v{vM+1}
v_sub_f32 v{t1}, v{vC}, v{vM}
s_cmp_eq_u64 vcc, 0
s_cbranch_scc1 {dn}
s_add_u32 s{sCNT}, s{sCNT}, 1
s_cmp_lt_u32 s{sCNT}, {LSPIN_MAX}
s_cbranch_scc1 {lp}
""")
a.label(dn)
stamp("S done")
def pv_read(u, mt):
    for vv in range(2):
        tile = 2 * u + vv
        ad = PAD[mt] if tile < 4 else PAD[8 + mt]
        a(f"ds_read_b64_tr_b16 {v(PVA+16*mt+4*u+2*vv,2)}, v{ad} offset:{(tile&3)*16384}")
a(f"v_exp_f32 v{t1}, v{t1}")
pv_read(0, 0)
for r in range(8): a(f"v_mul_f32 v{SD+r}, v{SD+r}, v{t1}")
for k in range(4): a(f"v_cvt_pk_bf16_f32 v{PB+k}, v{SD+2*k}, v{SD+2*k+1}")
a(f"ds_write_b128 v{vPw}, {v(PB,4)}")
lds_signal(F_P)
for u in range(4):
    for mt in range(4):
        if (u, mt) != (0, 0): pv_read(u, mt)
for i in range(4): a(f"v_mov_b32 v{ON+i}, 0x3f803f80")
def spec_p():
    for u in range(4):
        a(f"ds_read_b128 {v(PB+4*u,4)}, v{vPr} offset:{1024*u}")
lds_wait(F_P, 4, spec_p)
stamp("P done")
for u in range(4):
    for mt in range(4):
        pv_read(u, mt + 4)
        mfma(OD+4*mt, PVA+16*mt+4*u, PB+4*u, u == 0)
CK = vM + 2
def epilogue(pp):
    L = []
    for p in (2 * pp, 2 * pp + 1):
        for k in range(2):
            mt = 2 * p + k
            L.append(f"v_cvt_pk_bf16_f32 v{OS+2*mt}, v{OD+4*mt}, v{OD+4*mt+1}")
            L.append(f"v_cvt_pk_bf16_f32 v{OS+2*mt+1}, v{OD+4*mt+2}, v{OD+4*mt+3}")
    for p in (2 * pp, 2 * pp + 1):
        L.append(f"v_permlane16_swap_b32 v{OS+4*p}, v{OS+4*p+2}")
        L.append(f"v_permlane16_swap_b32 v{OS+4*p+1}, v{OS+4*p+3}")
    X, Y, T = OS + 8 * pp, OS + 8 * pp + 4, OD + 16 * pp
    for d in range(4): L.append(f"v_mov_b32 v{T+d}, v{X+d}")
    for d in range(4): L.append(f"v_mov_b32 v{T+4+d}, v{Y+d}")
    for d in range(4): L.append(f"v_mov_b32_dpp v{T+d}, v{Y+d} row_ror:8 row_mask:0xf bank_mask:0xc")
    L.append(f"buffer_store_dwordx4 {v(T,4)}, v{vO}, {srd(R_WS)}, s{sO} offen offset:{128*pp} sc1")
    for d in range(4): L.append(f"v_mov_b32_dpp v{T+4+d}, v{X+d} row_ror:8 row_mask:0xf bank_mask:0x3")
    L.append(f"buffer_store_dwordx4 {v(T+4,4)}, v{vO}, {srd(R_WS)}, s{sT[3]} offen offset:{128*pp} sc1")
    for k in range(0, 8, 2):
        if pp == 0 and k == 0: L.append(f"v_add_u32 v{CK}, v{X}, v{X+1}")
        else: L.append(f"v_add3_u32 v{CK}, v{CK}, v{X+k}, v{X+k+1}")
    return L
E0 = epilogue(0)
idx = 0
for u in range(4):
    for mt in range(4, 8):
        left = 32 - 2 * (u * 4 + (mt - 4) + 1)
        if left <= 15: a(f"s_waitcnt lgkmcnt({left})")
        elif (u, mt) == (0, 4): a("s_waitcnt lgkmcnt(15)")
        mfma(OD+4*mt, PVA+16*mt+4*u, PB+4*u, u == 0)
        if u * 4 + (mt - 4) >= 2:
            for l in E0[idx:idx+2]: a(l)
            idx += 2
lds_signal(F_BD)
for u in range(4):
    mfma(ON+4, ON, PB+4*u, u == 0)
    for l in E0[idx:idx+2]: a(l)
    idx += 2
for l in E0[idx:]: a(l)
stamp("PV done")
for l in epilogue(1): a(l)
a(f"""
s_lshl_b32 s{sT[4]}, s{sHGB}, 7
s_add_u32 s{sT[4]}, s{sT[4]}, s{sCH}
s_lshl_b32 s{sT[4]}, s{sT[4]}, 2
s_add_u32 s{sT[4]}, s{sT[4]}, s{sW}
s_lshl_b32 s{sT[4]}, s{sT[4]}, 8
s_add_u32 s{sT[4]}, s{sT[4]}, {ML_OFF}
v_mov_b32 v{t0}, v{CK}
v_mov_b32 v{vM+1}, v{ON+4}
v_permlane32_swap_b32 v{CK}, v{t0}
v_add_u32 v{CK}, v{CK}, v{t0}
v_mov_b32 v{t0}, v{CK}
v_xor_b32 v{t1}, s{sEP}, v{vM}
v_permlane16_swap_b32 v{CK}, v{t0}
v_add3_u32 v{CK}, v{CK}, v{t0}, s{sEP}
v_xor_b32 v{vM+3}, v{t1}, v{vM+1}
s_mov_b64 exec, 0xffff
buffer_store_dwordx4 {v(vM,4)}, v{vL16}, {srd(R_WS)}, s{sT[4]} offen sc1
s_mov_b64 exec, -1
""")
stamp("O published")

HD, HM, MK, AW, CD = 32, 64, 72, 76, 84
mM, wA, wB, wb, ckS, ckE, vCLw, vHd2 = vT[4], vT[5], vT[6], vT[7], vT[8], vT[9], vT[10], vT[11]
a(f"""
v_lshlrev_b32 v{t0}, 8, v{vG}
v_lshl_add_u32 v{t0}, v{vN}, 4, v{t0}
v_add_u32 v{vHd2}, 4096, v{t0}
s_lshl_b32 s{sT[0]}, s{sH}, 2
s_add_u32 s{sT[0]}, s{sT[0]}, s{sCQ}
s_lshl_b32 s{sT[0]}, s{sT[0]}, 15
s_lshl_b32 s{sT[2]}, s{sW}, 13
s_add_u32 s{sT[0]}, s{sT[0]}, s{sT[2]}
s_add_u32 s{sT[0]}, s{sT[0]}, {O_OFF}
v_and_b32 v{t1}, 7, v{vN}
v_lshrrev_b32 v{t2}, 3, v{vN}
v_xor_b32 v{t2}, v{t2}, v{vG}
v_lshl_add_u32 v{t1}, v{t1}, 2, v{t2}
v_lshlrev_b32 v{t1}, 10, v{t1}
v_xor_b32 v{t2}, 2048, v{t1}
s_lshr_b32 s{sT[4]}, s{sH}, 4
s_lshl_b32 s{sT[4]}, s{sT[4]}, 2
s_add_u32 s{sT[4]}, s{sT[4]}, s{sW}
s_lshl_b32 s{sT[4]}, s{sT[4]}, 15
s_and_b32 s{sT[5]}, s{sH}, 15
s_lshl_b32 s{sT[5]}, s{sT[5]}, 4
s_add_u32 s{sT[4]}, s{sT[4]}, s{sT[5]}
s_lshl_b32 s{sT[5]}, s{sCQ}, 8
s_add_u32 s{sT[4]}, s{sT[4]}, s{sT[5]}
s_add_u32 s{sT[4]}, s{sT[4]}, {ML_OFF}
v_and_b32 v{t3}, 1, v{vN}
v_lshlrev_b32 v{t3}, 4, v{t3}
v_mov_b32 v{mM}, 0xffff
v_lshlrev_b32 v{t3}, v{t3}, v{mM}
v_lshrrev_b32 v{mM}, 1, v{vN}
""")
for d in range(4):
    a(f"v_cmp_eq_u32 vcc, {d}, v{mM}")
    a(f"v_cndmask_b32 v{MK+d}, 0, v{t3}, vcc")
a(f"""
s_mul_i32 s{sT[5]}, s{sW}, 272
s_add_u32 s{sT[5]}, s{sT[5]}, {L_CL}
v_lshlrev_b32 v{vCLw}, 4, v{vN}
v_lshl_add_u32 v{vCLw}, v{vG}, 3, v{vCLw}
v_add_u32 v{vCLw}, s{sT[5]}, v{vCLw}
s_mov_b32 s{sT[6]}, 0x03020302
""")
if OACK: a("s_waitcnt vmcnt(0)")
stamp("O acked")
a(f"s_mov_b32 s{sCNT}, 0")
a("L_pollm:")
a(f"""
buffer_load_dwordx4 {v(HM,4)}, v{t1}, {srd(R_WS)}, s{sT[4]} offen sc1
buffer_load_dwordx4 {v(HM+4,4)}, v{t2}, {srd(R_WS)}, s{sT[4]} offen sc1
s_waitcnt vmcnt(0)
v_bitop3_b32 v{ckE}, v{HM}, v{HM+1}, v{HM+3} bitop3:0x96
v_bitop3_b32 v{t3}, v{HM+4}, v{HM+5}, v{HM+7} bitop3:0x96
v_cmp_ne_u32 vcc, s{sEP}, v{ckE}
v_cmp_ne_u32 s[{sACC}:{sACC+1}], s{sEP}, v{t3}
s_or_b64 vcc, s[{sACC}:{sACC+1}], vcc
""")
poll_tail("L_pollm", MLSLEEP)
cstamp("ml retries")
stamp("ML ok")
for t in range(8):
    a(f"buffer_load_dwordx4 {v(HD+4*t,4)}, v{vHd2 if t >= 4 else t0}, {srd(R_WS)}, s{sT[0]} offen offset:{1024*(t&3)} sc1")
a(f"""
v_max_f32 v{mM}, v{HM}, v{HM+4}
v_max_f32_dpp v{mM}, v{mM}, v{mM} row_ror:1 row_mask:0xf bank_mask:0xf
v_max_f32_dpp v{mM}, v{mM}, v{mM} row_ror:2 row_mask:0xf bank_mask:0xf
v_sub_u32 v{ckS}, s{sEP}, v{HM+2}
v_max_f32_dpp v{mM}, v{mM}, v{mM} row_ror:4 row_mask:0xf bank_mask:0xf
v_cndmask_b32 v{ckS}, 0, v{ckS}, s[{sM8}:{sM8+1}]
v_max_f32_dpp v{mM}, v{mM}, v{mM} row_ror:8 row_mask:0xf bank_mask:0xf
v_sub_f32 v{wA}, v{HM}, v{mM}
v_sub_f32 v{wB}, v{HM+4}, v{mM}
v_exp_f32 v{wA}, v{wA}
v_exp_f32 v{wB}, v{wB}
v_perm_b32 v{wb}, v{wA}, v{wA}, s{sT[6]}
v_mul_f32 v{wA}, v{wA}, v{HM+1}
v_fmac_f32 v{wA}, v{wB}, v{HM+5}
""")
sfts = [1, 2, 4, 8]
for t in range(8):
    aw = AW + 4 * (t & 1)
    for d in range(4):
        a(f"v_and_b32_dpp v{aw+d}, v{wb}, v{MK+d} row_newbcast:{t} row_mask:0xf bank_mask:0xf")
    if t < 4:
        a(f"v_add_f32_dpp v{wA}, v{wA}, v{wA} row_ror:{sfts[t]} row_mask:0xf bank_mask:0xf")
    if t == 4:
        a(f"v_rcp_f32 v{wA}, v{wA}")
    a(f"s_waitcnt vmcnt({7-t})")
    a(f"v_add3_u32 v{ckS}, v{ckS}, v{HD+4*t}, v{HD+4*t+1}")
    mfma(CD, aw, HD+4*t, t == 0)
    a(f"v_add3_u32 v{ckS}, v{ckS}, v{HD+4*t+2}, v{HD+4*t+3}")
for sft in sfts:
    a(f"v_add_u32_dpp v{ckS}, v{ckS}, v{ckS} row_ror:{sft} row_mask:0xf bank_mask:0xf")
a(f"v_cmp_ne_u32 vcc, 0, v{ckS}")
for r in range(4): a(f"v_mul_f32 v{CD+r}, v{CD+r}, v{wA}")
a(f"v_cvt_pk_bf16_f32 v{CD+4}, v{CD}, v{CD+1}")
a(f"v_cvt_pk_bf16_f32 v{CD+5}, v{CD+2}, v{CD+3}")
poll_tail("L_pollm")
cstamp("o retries")
a(f"""
s_mov_b32 exec_hi, 0
ds_write_b64 v{vCLw}, {v(CD+4,2)}
s_mov_b64 exec, 1
ds_add_u32 v{vFL}, v{vONE} offset:{F_CL}
s_mov_b64 exec, -1
s_setprio 0
""")
stamp("combined")
a(f"""
s_cmp_eq_u32 s{sISF}, 1
s_cbranch_scc1 L_ffn
s_cmp_eq_u32 s{sISR}, 0
s_cbranch_scc1 L_fin
""")

SEL, RD, RA, RS, vH = 96, 100, 116, 120, 128
vMo, vXv = vT[4], vT[5]
for d in range(4): a(f"v_and_b32 v{SEL+d}, 0x3f803f80, v{MK+d}")
a(f"""
v_and_b32 v{t0}, 0x23, v{vL}
v_bfe_u32 v{t1}, v{vL}, 2, 1
v_lshl_add_u32 v{t0}, v{t1}, 4, v{t0}
v_bfe_u32 v{t1}, v{vL}, 3, 2
v_lshl_add_u32 v{t0}, v{t1}, 2, v{t0}
v_lshlrev_b32 v{vMo}, 1, v{t0}
s_lshl_b32 s{sT[0]}, s{sRHO}, 7
buffer_load_ushort v{vXv}, v{vMo}, {srd(R_X)}, s{sT[0]} offen
v_lshlrev_b32 v{t0}, 4, v0
s_lshl_b32 s{sT[1]}, s{sRHO}, 14
s_add_u32 s{sT[1]}, s{sT[1]}, {PA_OFF}
s_add_u32 s{sT[2]}, s{sT[1]}, 4096
s_add_u32 s{sT[3]}, s{sT[1]}, 8192
s_add_u32 s{sT[4]}, s{sT[1]}, 12288
s_lshl_b32 s{sT[5]}, s{sW}, 8
s_add_u32 s{sT[5]}, s{sT[5]}, {L_RED}
v_lshlrev_b32 v{t1}, 5, v{vN}
v_lshl_add_u32 v{t1}, v{vG}, 4, v{t1}
v_add_u32 v{t1}, s{sT[5]}, v{t1}
v_lshlrev_b32 v{t2}, 2, v{vL}
v_add_u32 v{t2}, {L_RED}, v{t2}
s_mul_i32 s{sT[5]}, s{sRHO}, 12288
s_add_u32 s{sT[5]}, s{sT[5]}, {PF_OFF}
s_add_u32 s{R_PF}, s{R_WS}, s{sT[5]}
s_addc_u32 s{R_PF+1}, s{R_WS+1}, 0
s_mov_b32 s{sT[6]}, 4096
s_mov_b32 s{sT[7]}, 8192
s_waitcnt vmcnt(0)
s_barrier
""")
def reduce_inbox(name, rs, sos):
    a(f"s_mov_b32 s{sCNT}, 0")
    a.label(name)
    for i, so in enumerate(sos):
        a(f"buffer_load_dwordx4 {v(RD+4*i,4)}, v{t0}, {srd(rs)}, {so} offen sc1")
    n = len(sos)
    for i in range(n):
        a(f"s_waitcnt vmcnt({n-1-i})")
        if i == 0: a(f"v_max3_u32 v{t3}, v{RD}, v{RD+1}, v{RD+2}")
        else: a(f"v_max3_u32 v{t3}, v{t3}, v{RD+4*i}, v{RD+4*i+1}")
        mfma(RA, SEL, RD+4*i, i == 0)
        if i == 0: a(f"v_max_u32 v{t3}, v{t3}, v{RD+3}")
        else: a(f"v_max3_u32 v{t3}, v{t3}, v{RD+4*i+2}, v{RD+4*i+3}")
    a(f"v_cmp_eq_u32 vcc, -1, v{t3}")
    poll_tail(name)
    for r in range(4):
        a(f"v_add_f32_dpp v{RA+r}, v{RA+r}, v{RA+r} row_ror:8 row_mask:0xf bank_mask:0xf")
    a(f"""
    s_mov_b64 exec, 0x00ff00ff
    ds_write_b128 v{t1}, {v(RA,4)}
    s_mov_b64 exec, -1
    s_waitcnt lgkmcnt(0)
    s_barrier
    """)
def final_sum():
    for k in range(2):
        a(f"ds_read2st64_b32 {v(RS+2*k,2)}, v{t2} offset0:{2*k} offset1:{2*k+1}")
    a("s_waitcnt lgkmcnt(0)")
    a(f"v_add_f32 v{RS}, v{RS}, v{RS+1}")
    a(f"v_add_f32 v{RS+2}, v{RS+2}, v{RS+3}")
    a(f"v_add_f32 v{RS}, v{RS}, v{RS+2}")
def pack_store(val, rs, so, pol):
    P = RS + 4
    a(f"v_mov_b32_dpp v{RS+2}, v{val} quad_perm:[1,1,3,3] row_mask:0xf bank_mask:0xf")
    a(f"v_cvt_pk_bf16_f32 v{P}, v{val}, v{RS+2}")
    a(f"v_mov_b32_dpp v{P+1}, v{P} quad_perm:[2,2,2,2] row_mask:0xf bank_mask:0xf")
    a(f"v_mov_b32_dpp v{P+2}, v{P} row_shl:8 row_mask:0xf bank_mask:0xf")
    a(f"v_mov_b32_dpp v{P+3}, v{P+1} row_shl:8 row_mask:0xf bank_mask:0xf")
    a(f"""
    s_mov_b32 exec_lo, 0x00110011
    s_mov_b32 exec_hi, 0x00110011
    buffer_store_dwordx4 {v(P,4)}, v{vMo}, {srd(rs)}, {so} offen{pol}
    s_mov_b64 exec, -1
    """)
reduce_inbox("L_pollr1", R_WS, [f"s{sT[1+i]}" for i in range(4)])
stamp("R1 gathered")
a(f"""
s_cmp_lg_u32 s{sW}, 0
s_cbranch_scc1 L_r1skip
""")
final_sum()
rne_bf16(RS, RS)
a(f"v_lshlrev_b32 v{vXv}, 16, v{vXv}")
a(f"v_add_f32 v{vH}, v{RS}, v{vXv}")
a(f"s_add_u32 s{sT[5]}, s{sT[0]}, {HG_OFF}")
pack_store(vH, R_WS, f"s{sT[5]}", " sc1")
rne_bf16(vH, vH)
a("L_r1skip:")
stamp("h published")
a("s_barrier")
reduce_inbox("L_pollr2", R_PF, ["0", f"s{sT[6]}", f"s{sT[7]}"])
stamp("R2 gathered")
a(f"""
s_cmp_lg_u32 s{sW}, 0
s_cbranch_scc1 L_fin
""")
final_sum()
rne_bf16(RS, RS)
a(f"v_add_f32 v{vH}, v{RS}, v{vH}")
pack_store(vH, R_OUT, f"s{sT[0]}", "")
a(f"""
s_cmp_lg_u32 s{sRHO}, 0
s_cbranch_scc1 L_fin
v_mov_b32 v{t0}, {EPOCH_OFF}
v_mov_b32 v{t1}, s{sEP}
s_mov_b64 exec, 1
buffer_store_dword v{t1}, v{t0}, {srd(R_WS)}, 0 offen sc1
""")
if DBGT and PROBE:
    a(f"""
    v_mov_b32 v{vT[19]}, 16
    global_load_dword v{vT[20]}, v{vT[19]}, s[98:99] sc1
    s_waitcnt vmcnt(0)
    v_readfirstlane_b32 s94, v{vT[20]}
    """)
a(f"s_mov_b32 s93, {opt('padto', 0)}")
if opt("xcctest", 0):
    a(f"""
    v_mov_b32 v{vT[19]}, 20
    global_load_dword v{vT[20]}, v{vT[19]}, s[98:99] sc1
    s_waitcnt vmcnt(0)
    v_readfirstlane_b32 s{sT[1]}, v{vT[20]}
    s_bcnt1_i32_b32 s{sT[1]}, s{sT[1]}
    s_mul_i32 s{sT[1]}, s{sT[1]}, 1000
    s_add_u32 s93, s93, s{sT[1]}
    """)
if DBGT and opt("padto", 0):
    a(f"""
    L_padspin:
    s_memrealtime s[{sTS}:{sTS+1}]
    s_waitcnt lgkmcnt(0)
    s_sub_u32 s{sTS}, s{sTS}, s94
    s_cmp_lt_u32 s{sTS}, s93
    s_cbranch_scc1 L_padspin
    """)
if DBGT:
    a(f"""
    s_memrealtime s[{sTS}:{sTS+1}]
    s_memtime s[{sC2}:{sC2+1}]
    s_waitcnt lgkmcnt(0)
    s_sub_u32 s{sTS}, s{sTS}, s94
    s_sub_u32 s{sC2}, s{sC2}, s96
    v_mov_b32 v{t2}, s{sTS}
    v_mov_b32 v{t3}, s{sC2}
    v_mov_b32 v{t0}, 0
    global_store_dwordx2 v{t0}, {v(t2,2)}, s[98:99]
    """)
a("""
s_mov_b64 exec, -1
s_branch L_fin
""")

a("L_ffn:")
FGU, FD, HB, GD, FXR, DD, DP, CSA = 96, 128, 144, 160, 172, 188, 220, 188
lds_wait(F_BD, 4)
if PFWHEN == 1:
    a("s_barrier")
a(f"""
v_lshrrev_b32 v{t0}, 1, v{vL}
v_and_b32 v{t1}, 0x13, v{t0}
v_bfe_u32 v{t2}, v{t0}, 2, 1
v_lshl_add_u32 v{t1}, v{t2}, 3, v{t1}
v_bfe_u32 v{t2}, v{t0}, 3, 1
v_lshl_add_u32 v{t1}, v{t2}, 2, v{t1}
v_mul_u32_u24 v{t1}, 2752, v{t1}
v_and_b32 v{t2}, 1, v{vL}
v_lshl_add_u32 v{t1}, v{t2}, 4, v{t1}
s_mul_i32 s{sT[0]}, s{sW}, {128*2752}
s_lshl_b32 s{sT[1]}, s{sPHI}, 5
s_add_u32 s{sT[0]}, s{sT[0]}, s{sT[1]}
s_lshl_b32 s{sT[2]}, s{sW}, 12
""")
for i in range(4):
    a(f"s_add_u32 m0, s{sT[2]}, {L_G + 1024*i}")
    if i: a(f"s_add_u32 s{sT[0]}, s{sT[0]}, {32*2752}")
    a(f"buffer_load_dwordx4 v{t1}, {srd(R_WG)}, s{sT[0]} offen lds")
    a(f"s_add_u32 m0, s{sT[2]}, {L_U + 1024*i}")
    a(f"buffer_load_dwordx4 v{t1}, {srd(R_WU)}, s{sT[0]} offen lds")
a(f"""
s_and_b32 s{sT[0]}, s{sW}, 1
s_lshl_b32 s{sT[0]}, s{sT[0]}, 7
v_xor_b32 v{t0}, s{sT[0]}, v{vL16}
s_lshl_b32 s{sT[0]}, s{sPHI}, 14
s_add_u32 s{sT[0]}, s{sT[0]}, s{sT[2]}
s_add_u32 m0, s{sT[2]}, {L_WD}
""")
for i in range(4):
    if i: a(f"v_xor_b32 v{t2}, {32*i}, v{t0}")
    a(f"buffer_load_dwordx4 v{t2 if i else t0}, {srd(R_WD)}, s{sT[0]} offen offset:{1024*i} lds")
vFXw, vFXr, vSq, vSm, vCs, csg, csu, vPF, vHl = vT[4], vT[5], vT[6], vT[7], vT[8], vT[9], vT[10], vT[11], vT[12]
a(f"""
v_bfe_u32 v{t0}, v{vL}, 2, 3
v_lshrrev_b32 v{t1}, 1, v{vG}
v_lshl_add_u32 v{t0}, v{t1}, 4, v{t0}
v_and_b32 v{t2}, 3, v{vL}
v_lshlrev_b32 v{t2}, 3, v{t2}
v_lshl_add_u32 v{t3}, v{t0}, 5, v{t2}
s_add_u32 s{sT[0]}, s{sT[2]}, {L_G}
v_add_u32 v{t3}, s{sT[0]}, v{t3}
v_bfe_u32 v{t0}, v{vL}, 2, 4
v_and_b32 v{t1}, 7, v{t0}
v_lshl_add_u32 v{t1}, v{t1}, 5, v{t2}
v_lshl_add_u32 v{t1}, v{t0}, 10, v{t1}
s_lshl_b32 s{sT[0]}, s{sW}, 8
s_add_u32 s{sT[0]}, s{sT[0]}, {L_WD}
v_add_u32 v{t1}, s{sT[0]}, v{t1}
v_lshlrev_b32 v{vHl}, 10, v{vN}
v_lshl_add_u32 v{vHl}, v{vG}, 4, v{vHl}
s_lshl_b32 s{sT[1]}, s{sW}, 8
s_add_u32 s{sT[1]}, s{sT[1]}, {HG_OFF}
s_mul_i32 s{sT[2]}, s{sW}, 640
s_add_u32 s{sT[2]}, s{sT[2]}, {L_FX}
v_lshlrev_b32 v{vFXw}, 6, v{vG}
v_lshl_add_u32 v{vFXw}, v{vN}, 4, v{vFXw}
v_add_u32 v{vFXw}, s{sT[2]}, v{vFXw}
v_and_b32 v{t2}, 3, v{vN}
v_lshlrev_b32 v{vFXr}, 4, v{t2}
v_lshl_add_u32 v{vFXr}, v{vG}, 6, v{vFXr}
v_lshrrev_b32 v{t0}, 2, v{vN}
v_lshl_add_u32 v{vFXr}, v{t0}, 2, v{vFXr}
v_add_u32 v{vFXr}, {L_FX}, v{vFXr}
v_mul_u32_u24 v{vSq}, 20, v{t2}
v_add_u32 v{vSq}, {L_FX + 512}, v{vSq}
v_lshlrev_b32 v{vSm}, 4, v{t2}
v_add_u32 v{vSm}, {L_FX + 576}, v{vSm}
v_lshlrev_b32 v{vCs}, 4, v{vG}
v_lshl_add_u32 v{vCs}, v{t0}, 2, v{vCs}
v_add_u32 v{vCs}, {L_CS}, v{vCs}
s_mov_b32 s{sT[4]}, 98304
v_mul_lo_u32 v{vPF}, v{vN}, s{sT[4]}
v_lshl_add_u32 v{vPF}, v{vG}, 4, v{vPF}
s_mul_i32 s{sT[4]}, s{sW}, 24576
s_lshl_b32 s{sT[5]}, s{sPHI}, 7
s_add_u32 s{sT[4]}, s{sT[4]}, s{sT[5]}
s_add_u32 s{sT[4]}, s{sT[4]}, {PF_OFF}
s_add_u32 s{sT[5]}, s{sT[4]}, 12288
""")
for i in range(16): a(f"v_mov_b32 v{HB+i}, 0x3f803f80")
a("s_waitcnt vmcnt(4)")
for mat in range(2):
    for t in range(4):
        for vv in range(2):
            a(f"ds_read_b64_tr_b16 {v(FGU+16*mat+4*t+2*vv,2)}, v{t3} offset:{16384*mat + (32*t+8*vv)*32}")
a("s_waitcnt lgkmcnt(0)")
for mat in range(2):
    for t in range(4):
        mfma(CSA+4*mat, FGU+16*mat+4*t, HB, t == 0)
a(f"""
s_lshl_b32 s{sT[0]}, s{sW}, 7
s_add_u32 s{sT[0]}, s{sT[0]}, {L_CS}
v_lshlrev_b32 v{t0}, 4, v{vG}
v_add_u32 v{t0}, s{sT[0]}, v{t0}
s_mov_b32 exec_lo, 0x00010001
s_mov_b32 exec_hi, 0x00010001
ds_write_b128 v{t0}, {v(CSA,4)}
ds_write_b128 v{t0}, {v(CSA+4,4)} offset:64
s_mov_b64 exec, -1
s_waitcnt vmcnt(0) lgkmcnt(0)
s_barrier
""")
for mt in range(8):
    if mt: a(f"v_xor_b32 v{t2}, {32*mt}, v{t1}")
    a(f"ds_read_b64_tr_b16 {v(FD+2*mt,2)}, v{t2 if mt else t1}")
for k in range(4):
    a(f"ds_read2_b32 {v(FXR+2*k,2)}, v{vCs} offset0:{32*k} offset1:{32*k+16}")
a(f"""
s_waitcnt lgkmcnt(0)
v_add_f32 v{csg}, v{FXR}, v{FXR+2}
v_add_f32 v{csu}, v{FXR+1}, v{FXR+3}
v_add_f32 v{csg}, v{csg}, v{FXR+4}
v_add_f32 v{csu}, v{csu}, v{FXR+5}
v_add_f32 v{csg}, v{csg}, v{FXR+6}
v_add_f32 v{csu}, v{csu}, v{FXR+7}
""")
stamp("FFN prepped")
a(f"s_mov_b64 exec, s[{sM4}:{sM4+1}]")
a(f"s_mov_b32 s{sCNT}, 0")
a("L_pollh:")
for t in range(4):
    a(f"buffer_load_dwordx4 {v(HB+4*t,4)}, v{vHl}, {srd(R_WS)}, s{sT[1]} offen offset:{64*t} sc1")
a("s_waitcnt vmcnt(0)")
poison_check(list(range(HB, HB + 16)), t3)
poll_tail("L_pollh", opt("hsleep", 1))
a("s_mov_b64 exec, -1")
stamp("h gathered")
for t in range(4):
    for k in range(3):
        mfma(GD+4*k, FGU+16*k+4*t if k < 2 else HB+4*t, HB+4*t, t == 0)
a(f"""
s_mov_b64 exec, s[{sM4}:{sM4+1}]
ds_write_b128 v{vFXw}, {v(GD,4)}
ds_write_b128 v{vFXw}, {v(GD+4,4)} offset:256
s_mov_b64 exec, 0x000f000f
ds_write_b128 v{vFXw}, {v(GD+8,4)} offset:512
s_mov_b64 exec, -1
s_waitcnt lgkmcnt(0)
s_barrier
""")
for k in range(4):
    a(f"ds_read_b32 v{FXR+8+k}, v{vSq} offset:{640*k}")
    a(f"ds_read_b32 v{FXR+12+k}, v{vSm} offset:{640*k}")
for k in range(4):
    a(f"ds_read_b32 v{FXR+2*k}, v{vFXr} offset:{640*k}")
    a(f"ds_read_b32 v{FXR+2*k+1}, v{vFXr} offset:{640*k+256}")
gg, uu, sq, sm = vT[13], vT[14], vT[15], vT[16]
a(f"""
s_waitcnt lgkmcnt(8)
v_add_f32 v{sm}, v{FXR+12}, v{FXR+13}
v_add_f32 v{sq}, v{FXR+8}, v{FXR+9}
v_add_f32 v{sm}, v{sm}, v{FXR+14}
v_add_f32 v{sq}, v{sq}, v{FXR+10}
v_add_f32 v{sm}, v{sm}, v{FXR+15}
v_add_f32 v{sq}, v{sq}, v{FXR+11}
v_mul_f32 v{sm}, 0x3b000000, v{sm}
v_mul_f32 v{sq}, 0x3b000000, v{sq}
v_fma_f32 v{sq}, -v{sm}, v{sm}, v{sq}
v_max_f32 v{sq}, 0, v{sq}
v_add_f32 v{sq}, 0x3727c5ac, v{sq}
v_rsq_f32 v{sq}, v{sq}
s_waitcnt lgkmcnt(0)
v_add_f32 v{gg}, v{FXR}, v{FXR+2}
v_add_f32 v{uu}, v{FXR+1}, v{FXR+3}
v_add_f32 v{gg}, v{gg}, v{FXR+4}
v_add_f32 v{uu}, v{uu}, v{FXR+5}
v_add_f32 v{gg}, v{gg}, v{FXR+6}
v_add_f32 v{uu}, v{uu}, v{FXR+7}
v_fma_f32 v{gg}, -v{sm}, v{csg}, v{gg}
v_fma_f32 v{uu}, -v{sm}, v{csu}, v{uu}
v_mul_f32 v{gg}, v{gg}, v{sq}
v_mul_f32 v{uu}, v{uu}, v{sq}
v_mul_f32 v{sm}, {f32(-math.log2(math.e))}, v{gg}
v_exp_f32 v{sm}, v{sm}
v_mul_f32 v{gg}, v{gg}, v{uu}
v_add_f32 v{sm}, 1.0, v{sm}
v_rcp_f32 v{sm}, v{sm}
v_mul_f32 v{gg}, v{gg}, v{sm}
v_mov_b32_dpp v{uu}, v{gg} row_shl:4 row_mask:0xf bank_mask:0xf
v_cvt_pk_bf16_f32 v{FXR}, v{gg}, v{uu}
v_mov_b32_dpp v{FXR+1}, v{FXR} row_shl:8 row_mask:0xf bank_mask:0xf
""")
for mt in range(8): mfma(DD+4*mt, FD+2*mt, FXR, True, k16=True)
a(f"s_mov_b64 exec, s[{sM4}:{sM4+1}]")
for p in range(4):
    for k in range(4):
        a(f"v_cvt_pk_bf16_f32 v{DP+4*p+k}, v{DD+8*p+2*k}, v{DD+8*p+2*k+1}")
    a(f"buffer_store_dwordx4 {v(DP+4*p,4)}, v{vPF}, {srd(R_WS)}, s{sT[4+(p>>1)]} offen offset:{64*(p&1)} sc1")
a("s_mov_b64 exec, -1")
stamp("FFN published")
a("s_branch L_fin")

a("L_wave45:")
PZ = vT[4]
a(f"""
s_lshl_b32 s{sT[3]}, s{sK}, 16
s_lshl_b32 s{sT[4]}, s{sCH}, 17
s_add_u32 s{sT[4]}, s{sT[4]}, s{sT[3]}
s_lshl_b32 s{sT[1]}, s{sK}, 4
v_add_u32 v{vT[11]}, s{sT[1]}, v{vFL}
""")
def dma_all(win, tag, nclr_after):
    signalled = 0
    torder = [0, 2, 1, 3]
    goat = GOAT_A if tag == "A" else GOAT_F
    for idx in range(64):
        i = torder[idx // 16] * 16 + (idx % 16)
        if i % 4 == 0:
            a(f"s_add_u32 m0, s{sT[3]}, {i*1024}")
            a(f"s_add_u32 s{sT[5]}, s{sT[4]}, {i*1024}")
        tmp = vT[i & 1]
        a(f"v_xor_b32 v{tmp}, {fsw(i & 15)*16}, v{vL16}")
        if idx >= win:
            a(f"s_waitcnt vmcnt({win-1})")
            done = idx - win + 1
            if done >= 16 * (signalled + 1):
                lds_signal(F_TILE + 4 * torder[signalled], base=vT[11]); signalled += 1
        a(f"buffer_load_dwordx4 v{tmp}, {srd(R_CKV)}, s{sT[5]} offen offset:{(i&3)*1024}{P_CK} lds")
        if idx == goat - 1: lds_signal(F_GO)
    lds_signal(F_QI)
    stamp("dma issued")
    while signalled < 4:
        a(f"s_waitcnt vmcnt({64 - 16*(signalled+1)})")
        lds_signal(F_TILE + 4 * torder[signalled], base=vT[11]); signalled += 1
    stamp("ckv landed")
a(f"""
s_cmp_eq_u32 s{sHGB}, 0
s_cbranch_scc1 L_w45free
s_setprio 3
s_waitcnt vmcnt(0)
""")
ln_row()
lds_signal(F_XN)
a("s_setprio 0")
lds_wait(F_WQI, 4, sleep=2)
dma_all(DWIN_A, "A", False)
a("s_branch L_w45pf")
a("L_w45free:")
if UKGATE: lds_wait(F_WQI, 4, sleep=1)
dma_all(DWIN_F, "F", False)
a("L_w45pf:")
a(f"""
v_lshrrev_b32 v{t0}, 2, v{vL}
v_mul_u32_u24 v{t0}, 2752, v{t0}
v_and_b32 v{t1}, 3, v{vL}
v_lshlrev_b32 v{t1}, 7, v{t1}
v_min_u32 v{t1}, 348, v{t1}
v_add_u32 v{t0}, v{t0}, v{t1}
s_mul_i32 s{sT[1]}, s{sY}, {16*2752}
s_mul_i32 s{sT[2]}, s{sX}, 352
s_add_u32 s{sT[1]}, s{sT[1]}, s{sT[2]}
v_min_u32 v{t1}, 21, v{vL}
v_lshlrev_b32 v{t1}, 7, v{t1}
s_mul_i32 s{sT[2]}, s{sX}, {176*1024}
s_lshl_b32 s{sT[3]}, s{sY}, 1
s_add_u32 s{sT[3]}, s{sT[3]}, s{sK}
s_mul_i32 s{sT[3]}, s{sT[3]}, {22*128}
s_add_u32 s{sT[2]}, s{sT[2]}, s{sT[3]}
""")
def ffn_pf(tag, s1, s2):
    a(f"""
    buffer_load_dword v{vDUM+1}, v{t1}, {srd(R_WD)}, s{s2} offen
    s_cmp_eq_u32 s{sW}, 5
    s_cbranch_scc1 L_w5up{tag}
    buffer_load_dword v{vDUM}, v{t0}, {srd(R_WG)}, s{s1} offen
    s_branch L_pfd{tag}
    L_w5up{tag}:
    buffer_load_dword v{vDUM}, v{t0}, {srd(R_WU)}, s{s1} offen
    L_pfd{tag}:
    """)
if PFWHEN == 0:
    lds_wait(F_RI, 2, sleep=4)
    ffn_pf("a", sT[1], sT[2])
elif PFWHEN == 2:
    lds_wait(F_QS, 4, sleep=1)
    ffn_pf("a", sT[1], sT[2])
elif PFWHEN == 3:
    lds_wait(F_QS, 4, sleep=1)
    ffn_pf("a", sT[1], sT[2])
else:
    a(f"s_mov_b32 s{sT[9]}, s{sT[1]}")
    a(f"s_mov_b32 s{sT[10]}, s{sT[2]}")
a("s_branch L_phaseC")

a("L_wave67:")
RAW = 32
a(f"s_and_b32 s{sT[0]}, s{sW}, 1")
if CODEPF:
    a(f"""
    s_getpc_b64 s[{sC2}:{sC2+1}]
    L_pcref:
    s_sub_u32 s{sC2}, s{sC2}, L_pcref-{KNAME}
    s_subb_u32 s{sC2+1}, s{sC2+1}, 0
    v_lshlrev_b32 v{t0}, 7, v{vL}
    s_lshl_b32 s{sT[2]}, s{sT[0]}, 13
    v_add_u32 v{t0}, s{sT[2]}, v{t0}
    v_add_u32 v{t1}, 16384, v{t0}
    v_min_u32 v{t0}, L_end-{KNAME}, v{t0}
    v_min_u32 v{t1}, L_end-{KNAME}, v{t1}
    """)
a(f"""
s_cmp_eq_u32 s{sHGB}, 0
s_cbranch_scc1 L_noLN
s_setprio 3
s_waitcnt vmcnt(0)
""")
ln_row()
lds_signal(F_XN)
stamp("LN done")
a("s_branch L_w67rest")
a("L_noLN:")
if CODEPF:
    a(f"""
    global_load_dword v{vDUM}, v{t0}, s[{sC2}:{sC2+1}]
    global_load_dword v{vDUM+1}, v{t1}, s[{sC2}:{sC2+1}]
    """)
a("L_w67rest:")
def clears():
    a(f"""
    v_and_b32 v{vT[8]}, 7, v{vL}
    v_lshlrev_b32 v{vT[8]}, 4, v{vT[8]}
    v_bfe_u32 v{vT[9]}, v{vL}, 3, 1
    v_lshl_add_u32 v{vT[10]}, v{vT[9]}, 14, v{vT[8]}
    v_lshl_add_u32 v{vT[10]}, v{vG}, 17, v{vT[10]}
    s_lshl_b32 s{sT[1]}, s{sMH}, 1
    s_add_u32 s{sT[1]}, s{sT[1]}, s{sT[0]}
    s_lshl_b32 s{sT[1]}, s{sT[1]}, 15
    s_lshl_b32 s{sT[2]}, s{sH}, 2
    s_add_u32 s{sT[2]}, s{sT[2]}, s{sCQ}
    s_lshl_b32 s{sT[2]}, s{sT[2]}, 7
    s_add_u32 s{sT[1]}, s{sT[1]}, s{sT[2]}
    s_add_u32 s{sT[1]}, s{sT[1]}, {PA_OFF}
    buffer_store_dwordx4 {v(PZ,4)}, v{vT[10]}, {srd(R_WS)}, s{sT[1]} offen sc1
    """)
a(f"""
v_mov_b32 v{PZ}, -1
v_mov_b32 v{PZ+1}, -1
v_mov_b32 v{PZ+2}, -1
v_mov_b32 v{PZ+3}, -1
""")
clears()
a(f"""
s_cmp_eq_u32 s{sISR}, 0
s_cbranch_scc1 L_noclrH
s_cmp_lg_u32 s{sW}, 7
s_cbranch_scc1 L_noclrH
s_lshl_b32 s{sT[1]}, s{sRHO}, 7
s_add_u32 s{sT[1]}, s{sT[1]}, {HG_OFF}
s_mov_b64 exec, 0xff
buffer_store_dwordx4 {v(PZ,4)}, v{vL16}, {srd(R_WS)}, s{sT[1]} offen sc1
s_mov_b64 exec, -1
L_noclrH:
s_cmp_eq_u32 s{sISF}, 0
s_cbranch_scc1 L_noclrF
v_mul_u32_u24 v{vT[10]}, 12288, v{vT[9]}
v_add_u32 v{vT[10]}, v{vT[10]}, v{vT[8]}
s_mov_b32 s{sT[1]}, 98304
v_mul_lo_u32 v{vT[9]}, v{vG}, s{sT[1]}
v_add_u32 v{vT[10]}, v{vT[10]}, v{vT[9]}
s_mul_i32 s{sT[1]}, s{sT[0]}, 49152
s_lshl_b32 s{sT[2]}, s{sPHI}, 7
s_add_u32 s{sT[1]}, s{sT[1]}, s{sT[2]}
s_add_u32 s{sT[1]}, s{sT[1]}, {PF_OFF}
s_add_u32 s{sT[2]}, s{sT[1]}, 24576
buffer_store_dwordx4 {v(PZ,4)}, v{vT[10]}, {srd(R_WS)}, s{sT[1]} offen sc1
buffer_store_dwordx4 {v(PZ,4)}, v{vT[10]}, {srd(R_WS)}, s{sT[2]} offen sc1
L_noclrF:
s_waitcnt vmcnt(0)
""")
lds_signal(F_CLR)
a("s_setprio 0")
a(f"""
v_lshlrev_b32 v{vT[4]}, 13, v{vG}
v_lshl_add_u32 v{vT[4]}, v{vN}, 4, v{vT[4]}
s_lshl_b32 s{sT[1]}, s{sCQ}, 7
s_lshl_b32 s{sT[2]}, s{sT[0]}, 6
s_add_u32 s{sT[1]}, s{sT[1]}, s{sT[2]}
s_lshl_b32 s{sT[1]}, s{sT[1]}, 13
s_lshl_b32 s{sT[2]}, s{sH}, 8
s_add_u32 s{sT[1]}, s{sT[1]}, s{sT[2]}
v_lshrrev_b32 v{vT[5]}, 5, v{vL}
v_lshlrev_b32 v{vT[5]}, 10, v{vT[5]}
v_and_b32 v{vT[6]}, 31, v{vL}
v_lshl_add_u32 v{vT[5]}, v{vT[6]}, 4, v{vT[5]}
s_lshl_b32 s{sT[2]}, s{sH}, 17
s_lshl_b32 s{sT[3]}, s{sT[0]}, 16
s_add_u32 s{sT[2]}, s{sT[2]}, s{sT[3]}
s_lshl_b32 s{sT[3]}, s{sMH}, 9
s_add_u32 s{sT[2]}, s{sT[2]}, s{sT[3]}
s_waitcnt vmcnt(0)
""")
lds_wait(F_QI, 6, sleep=2)
for i in range(16):
    if i: a(f"s_add_u32 s{sT[1]}, s{sT[1]}, 32768")
    if i >= RWIN: a(f"s_waitcnt vmcnt({RWIN-1})")
    a(f"buffer_load_dwordx4 {v(RAW+4*i,4)}, v{vT[4]}, {srd(R_WUV)}, s{sT[1]} offen{P_R}")
for i in range(32):
    if i and i % 2 == 0: a(f"s_add_u32 s{sT[2]}, s{sT[2]}, 4096")
    if i + 16 >= RWIN: a(f"s_waitcnt vmcnt({RWIN-1})")
    a(f"buffer_load_dwordx4 {v(RAW+64+4*i,4)}, v{vT[5]}, {srd(R_WO)}, s{sT[2]} offen offset:{(i&1)*2048}{P_R}")
lds_signal(F_RI)
stamp("rest issued")
a(f"""
v_lshlrev_b32 v{t0}, 5, v{vG}
v_lshlrev_b32 v{t1}, 4, v{vN}
v_xor_b32 v{t0}, v{t0}, v{t1}
v_lshl_add_u32 v{t0}, v{vG}, 8, v{t0}
s_lshl_b32 s{sT[1]}, s{sT[0]}, 14
v_add_u32 v{t0}, s{sT[1]}, v{t0}
v_xor_b32 v{t1}, 128, v{t0}
v_lshrrev_b32 v{t2}, 5, v{vL}
v_and_b32 v{vT[4]}, 31, v{vL}
v_lshlrev_b32 v{vT[4]}, 4, v{vT[4]}
v_lshlrev_b32 v{t3}, 5, v{t2}
v_xor_b32 v{vT[4]}, v{vT[4]}, v{t3}
v_lshl_add_u32 v{vT[4]}, v{t2}, 9, v{vT[4]}
s_lshl_b32 s{sT[1]}, s{sT[0]}, 15
s_add_u32 s{sT[1]}, s{sT[1]}, {L_WO}
v_add_u32 v{vT[4]}, s{sT[1]}, v{vT[4]}
v_xor_b32 v{vT[5]}, 64, v{vT[4]}
v_xor_b32 v{vT[6]}, 128, v{vT[4]}
v_xor_b32 v{vT[7]}, 192, v{vT[4]}
""")
lds_wait(F_BD, 4, sleep=1)
for i in range(16):
    if 47 - i < RWIN: a(f"s_waitcnt vmcnt({47-i})")
    a(f"ds_write_b128 v{t1 if (i>>1)&1 else t0}, {v(RAW+4*i,4)} offset:{L_WUV + 1024*i}")
for i in range(32):
    if 31 - i < RWIN: a(f"s_waitcnt vmcnt({31-i})")
    sel = (i & 1) | (((i >> 2) & 1) << 1)
    a(f"ds_write_b128 v{vT[4+sel]}, {v(RAW+64+4*i,4)} offset:{1024*i}")
lds_signal(F_ST)
stamp("images written")

a("L_phaseC:")
FUV, FO, CB, XD, AD, AP = 32, 64, 128, 144, 160, 176
vUVa, vOa, vCLr, vCXw, vCXr, vPA = vT[4], vT[5], vT[6], vT[7], vT[8], vT[9]
a(f"""
v_bfe_u32 v{vT[12]}, v{vL}, 2, 2
v_and_b32 v{vT[13]}, 1, v{vG}
v_lshl_add_u32 v{vT[13]}, v{vT[13]}, 2, v{vT[12]}
v_lshl_add_u32 v{vT[12]}, v{vG}, 3, v{vT[12]}
v_and_b32 v{vT[14]}, 3, v{vL}
v_lshlrev_b32 v{vT[14]}, 3, v{vT[14]}
s_lshl_b32 s{sT[0]}, s{sK}, 1
v_xor_b32 v{vUVa}, s{sT[0]}, v{vT[13]}
v_lshl_add_u32 v{vUVa}, v{vUVa}, 5, v{vT[14]}
v_lshl_add_u32 v{vUVa}, v{vT[12]}, 8, v{vUVa}
s_lshl_b32 s{sT[0]}, s{sK}, 2
v_xor_b32 v{vOa}, s{sT[0]}, v{vT[13]}
v_lshl_add_u32 v{vOa}, v{vOa}, 5, v{vT[14]}
v_lshl_add_u32 v{vOa}, v{vT[12]}, 9, v{vOa}
v_add_u32 v{vOa}, {L_WO}, v{vOa}
v_and_b32 v{vT[12]}, 3, v{vN}
v_mul_u32_u24 v{vT[12]}, 272, v{vT[12]}
v_lshl_add_u32 v{vCXr}, v{vG}, 4, v{vT[12]}
v_add_u32 v{vCLr}, {L_CL}, v{vCXr}
v_add_u32 v{vCXr}, {L_CX}, v{vCXr}
v_lshl_add_u32 v{vCXw}, v{vG}, 3, v{vT[12]}
s_lshl_b32 s{sT[0]}, s{sK}, 6
s_add_u32 s{sT[0]}, s{sT[0]}, {L_CX}
v_add_u32 v{vCXw}, s{sT[0]}, v{vCXw}
v_lshlrev_b32 v{vPA}, 4, v{vG}
v_lshl_add_u32 v{vPA}, v{vN}, 17, v{vPA}
s_lshl_b32 s{sT[1]}, s{sMH}, 2
s_add_u32 s{sT[1]}, s{sT[1]}, s{sK}
s_lshl_b32 s{sT[1]}, s{sT[1]}, 14
s_lshl_b32 s{sT[2]}, s{sH}, 2
s_add_u32 s{sT[2]}, s{sT[2]}, s{sCQ}
s_lshl_b32 s{sT[2]}, s{sT[2]}, 7
s_add_u32 s{sT[1]}, s{sT[1]}, s{sT[2]}
s_add_u32 s{sT[1]}, s{sT[1]}, {PA_OFF}
""")
lds_wait(F_ST, 2, sleep=1)
for mt in range(2):
    if mt: a(f"v_xor_b32 v{vT[12]}, 32, v{vUVa}")
    for ks in range(4):
        for vv in range(2):
            a(f"ds_read_b64_tr_b16 {v(FUV+16*mt+4*ks+2*vv,2)}, v{vT[12] if mt else vUVa} offset:{L_WUV + (32*ks+4*vv)*256}")
for mt in range(4):
    if mt: a(f"v_xor_b32 v{vT[12]}, {32*mt}, v{vOa}")
    for ks in range(4):
        for vv in range(2):
            a(f"ds_read_b64_tr_b16 {v(FO+16*mt+4*ks+2*vv,2)}, v{vT[12] if mt else vOa} offset:{(32*ks+4*vv)*512}")
stamp("weights staged")
a("s_setprio 2")
def spec_cl():
    for ks in range(4): a(f"ds_read_b128 {v(CB+4*ks,4)}, v{vCLr} offset:{64*ks}")
lds_wait(F_CL, 4, spec_cl)
if PFWHEN == 1:
    a(f"""
    s_cmp_ge_u32 s{sW}, 6
    s_cbranch_scc1 L_nopf2
    """)
    ffn_pf("b", sT[9], sT[10])
    a("L_nopf2:")
for ks in range(4):
    for mt in range(2): mfma(XD+4*mt, FUV+16*mt+4*ks, CB+4*ks, ks == 0)
for k in range(4): a(f"v_cvt_pk_bf16_f32 v{XD+8+k}, v{XD+2*k}, v{XD+2*k+1}")
a(f"""
s_mov_b64 exec, s[{sM4}:{sM4+1}]
ds_write_b64 v{vCXw}, {v(XD+8,2)}
ds_write_b64 v{vCXw}, {v(XD+10,2)} offset:32
""")
lds_signal(F_CX)
def spec_cx():
    for ks in range(4): a(f"ds_read_b128 {v(CB+4*ks,4)}, v{vCXr} offset:{64*ks}")
lds_wait(F_CX, 4, spec_cx)
for p in range(2):
    for ks in range(4):
        for k in range(2):
            mt = 2 * p + k
            mfma(AD+4*mt, FO+16*mt+4*ks, CB+4*ks, ks == 0)
a(f"s_mov_b64 exec, s[{sM4}:{sM4+1}]")
for p in range(2):
    for k in range(4): a(f"v_cvt_pk_bf16_f32 v{AP+4*p+k}, v{AD+8*p+2*k}, v{AD+8*p+2*k+1}")
    a(f"buffer_store_dwordx4 {v(AP+4*p,4)}, v{vPA}, {srd(R_WS)}, s{sT[1]} offen offset:{64*p} sc1")
a("s_mov_b64 exec, -1")
stamp("attn partial published")
a("s_waitcnt vmcnt(0)")

a("L_fin:")
if PROF:
    stamp("end")
    a(f"""
    s_lshl_b32 s{sT[0]}, s2, 3
    s_add_u32 s{sT[0]}, s{sT[0]}, s{sW}
    s_lshl_b32 s{sT[0]}, s{sT[0]}, 8
    s_add_u32 s{sT[0]}, s{sT[0]}, {TS_OFF}
    v_lshlrev_b32 v{t0}, 2, v{vL}
    buffer_store_dword v{vTSA}, v{t0}, {srd(R_WS)}, s{sT[0]} offen
    """)
a("L_end:")

hdr = open("sequential_preLN__compressed_kv_cla__swiglu_ffn__decode.s.ref").read().split("; @launch")[0]
open(OUT, "w").write(wrap_single(a.text(), 256, 512, LDS_BYTES, vgpr=256, header=hdr))
print("instructions:", a.ninstr, file=sys.stderr)
```

```python
import sys, math, struct
from asmgen import *

def opt(name, default):
    for x in sys.argv[1:]:
        if x.startswith("--" + name + "="):
            return int(x.split("=")[1])
    return default
PROF = "--prof" in sys.argv
DBGT = "--dbgtime" in sys.argv
OUT = [a for a in sys.argv[1:] if not a.startswith("--")]
OUT = OUT[0] if OUT else "sequential_preLN__compressed_kv_cla__swiglu_ffn__decode.s"
POLL_MAX = 1 << 15
LSPIN_MAX = 1 << 20
DWIN_A = opt("dwina", 14)
DWIN_F = opt("dwinf", 20)
RWIN = opt("rwin", 12)
UKPF = opt("ukpf", 1)
CODEPF = opt("codepf", 1)
QSLEEP = opt("qsleep", 4)
OACK = opt("oack", 1)
POLS = [" nt", "", " sc0", " sc1", " sc0 nt"]
P_WQ = POLS[opt("pwq", 1)]; P_CK = POLS[opt("pck", 1)]; P_R = POLS[opt("pr", 1)]
AQ = opt("aq", 16)
PFWHEN = opt("pfwhen", 1)
MLSLEEP = opt("mlsleep", 2)
FFNDLY = opt("ffndly", 24)

EPOCH_OFF = 0x0
QA_OFF = 0x10000
HG_OFF = 0x58000
PA_OFF = 0x80000
PF_OFF = 0x100000
O_OFF = 0x200000
ML_OFF = 0x600000
TS_OFF = 0x1000000
WS_USED = 0x1100000

L_QS = 131072
L_XN = 147456
L_Q16 = 151616
L_MX = 152640
L_PX = 153152
L_CL = 157248
L_CX = 159488
L_RED = 160576
L_CS = 162624
L_FL = 163136
LDS_BYTES = 163840
L_WUV, L_WO = 0, 32768
L_G, L_U, L_WD = 98304, 114688, L_QS
L_FX = L_PX
(F_XN, F_CLR, F_QP, F_Q16, F_QS, F_P, F_GO, F_WQI) = [4 * i for i in range(8)]
F_TILE = 32
(F_RI, F_BD, F_ST, F_CL, F_CX, F_QI) = [64 + 4 * i for i in range(6)]
UKGATE = opt('ukgate', 0)
GOAT_A = opt('goata', 64)
GOAT_F = opt('goatf', 64)
L_QP = L_PX

sW, sX, sY, sH, sYP, sCQ, sMH, sHGB, sCH, sEP = 3, 4, 5, 6, 7, 8, 9, 10, 11, 12
sT = list(range(13, 24))
sO, sHA, sJQ, sPHI, sRHO, sISF, sISR, sCNT = 24, 25, 26, 27, 28, 29, 30, 31
R_X, R_CKV, R_WQ, R_WUK, R_WUV, R_WO, R_WG, R_WU, R_WD, R_OUT, R_WS, R_PF = [32 + 4 * i for i in range(12)]
sSELLO, sSELHI = 80, 81
sM8 = 82
sM4 = 84
sACC = 86
sC2 = 88
sTS = 90
sK = 92
def srd(r): return f"s[{r}:{r+3}]"
def f32(x): return "0x%08x" % struct.unpack("<I", struct.pack("<f", x))[0]

vL, vN, vG, vL16, vFL, vONE, vTSA = 1, 2, 3, 4, 5, 6, 7
vT = list(range(8, 32))
t0, t1, t2, t3 = vT[0], vT[1], vT[2], vT[3]
vSP = vT[23]
vDUM = vT[21]
def v(i, n=1): return f"v{i}" if n == 1 else f"v[{i}:{i+n-1}]"
def fsw(row): return 2 * ((row & 7) ^ (4 * (row >> 3))) + (row >> 3)

a = Asm()
stamps = {}
PROBE = [x.split("=", 1)[1].replace("_", " ") for x in sys.argv if x.startswith("--probe=")]
def stamp(name):
    if PROBE and PROBE[0] == name.replace("_", " ") and opt("plocal", 1):
        a("s_memrealtime s[94:95]")
        a("s_waitcnt lgkmcnt(0)")
    elif PROBE and PROBE[0] == name.replace("_", " "):
        a(f"""
        s_memrealtime s[94:95]
        s_waitcnt lgkmcnt(0)
        v_mov_b32 v{vT[19]}, 16
        v_mov_b32 v{vT[20]}, s94
        s_mov_b64 s[100:101], exec
        s_mov_b64 exec, 1
        global_atomic_umax v{vT[19]}, v{vT[20]}, s[98:99] sc1
        s_mov_b64 exec, s[100:101]
        """)
    if not PROF: return
    if name not in stamps:
        stamps[name] = len(stamps)
    i = stamps[name]
    a(f"""
    s_memrealtime s[{sTS}:{sTS+1}]
    s_waitcnt lgkmcnt(0)
    v_writelane_b32 v{vTSA}, s{sTS}, {i}
    """)
def cstamp(name):
    if not PROF: return
    name = "#" + name
    if name not in stamps:
        stamps[name] = len(stamps)
    a(f"s_add_u32 s{sTS}, s{sCNT}, 1")
    a(f"v_writelane_b32 v{vTSA}, s{sTS}, {stamps[name]}")
def poll_tail(name, sleep=0):
    done = a.newlabel("Lpd")
    a(f"""
    s_cmp_eq_u64 vcc, 0
    s_cbranch_scc1 {done}
    """)
    if sleep: a(f"s_sleep {sleep}")
    a(f"""
    s_add_u32 s{sCNT}, s{sCNT}, 1
    s_cmp_lt_u32 s{sCNT}, {POLL_MAX}
    s_cbranch_scc1 {name}
    """)
    a.label(done)
def poison_check(regs, tmp):
    regs = list(regs); n = len(regs)
    a(f"v_max3_u32 v{tmp}, v{regs[0]}, v{regs[1]}, v{regs[2]}")
    i = 3
    while i + 1 < n:
        a(f"v_max3_u32 v{tmp}, v{tmp}, v{regs[i]}, v{regs[i+1]}"); i += 2
    if i < n: a(f"v_max_u32 v{tmp}, v{tmp}, v{regs[i]}")
    a(f"v_cmp_eq_u32 vcc, -1, v{tmp}")
def lds_signal(off, base=None):
    a(f"""
    s_mov_b64 exec, 1
    ds_add_u32 v{vFL if base is None else base}, v{vONE} offset:{off}
    s_mov_b64 exec, -1
    """)
def lds_wait(off, target, spec=None, sleep=0, base=None):
    lp, dn = a.newlabel("Lw"), a.newlabel("Lwd")
    a(f"s_mov_b32 s{sCNT}, 0")
    a.label(lp)
    a(f"ds_read_b32 v{vSP}, v{vFL if base is None else base} offset:{off}")
    if spec: spec()
    a(f"""
    s_waitcnt lgkmcnt(0)
    v_readfirstlane_b32 s{sACC}, v{vSP}
    s_cmp_ge_u32 s{sACC}, {target}
    s_cbranch_scc1 {dn}
    """)
    if sleep: a(f"s_sleep {sleep}")
    a(f"""
    s_add_u32 s{sCNT}, s{sCNT}, 1
    s_cmp_lt_u32 s{sCNT}, {LSPIN_MAX}
    s_cbranch_scc1 {lp}
    """)
    a.label(dn)
def rne_bf16(dst, src):
    a(f"v_cvt_pk_bf16_f32 v{dst}, v{src}, v{src}")
    a(f"v_and_b32 v{dst}, 0xffff0000, v{dst}")
def mfma(d, A, B, first, k16=False):
    n = 2 if k16 else 4
    op = "v_mfma_f32_16x16x16_bf16" if k16 else "v_mfma_f32_16x16x32_bf16"
    a(f"{op} {v(d,4)}, {v(A,n)}, {v(B,n)}, {'0' if first else v(d,4)}")

XR, XF = 32, 40
def ln_row():
    def wave_sum(x):
        for ctl in ["row_shr:1", "row_shr:2", "row_shr:4", "row_shr:8"]:
            a(f"v_add_f32_dpp v{x}, v{x}, v{x} {ctl} row_mask:0xf bank_mask:0xf bound_ctrl:0")
        a(f"v_add_f32_dpp v{x}, v{x}, v{x} row_bcast:15 row_mask:0xa bank_mask:0xf")
        a(f"v_add_f32_dpp v{x}, v{x}, v{x} row_bcast:31 row_mask:0xc bank_mask:0xf")
    xr, xf = XR, XF
    for i in range(4):
        a(f"v_lshlrev_b32 v{xf+2*i}, 16, v{xr+i}")
        a(f"v_and_b32 v{xf+2*i+1}, 0xffff0000, v{xr+i}")
    a(f"v_add_f32 v{xf+12}, v{xf}, v{xf+1}")
    for i in range(2, 8): a(f"v_add_f32 v{xf+12}, v{xf+12}, v{xf+i}")
    wave_sum(xf + 12)
    a(f"v_mov_b32 v{xf+15}, 0x3b000000")
    a(f"v_readlane_b32 s{sT[6]}, v{xf+12}, 63")
    a(f"v_mul_f32 v{xf+13}, s{sT[6]}, v{xf+15}")
    for i in range(8):
        a(f"v_sub_f32 v{xf+14}, v{xf+i}, v{xf+13}")
        if i == 0: a(f"v_mul_f32 v{xf+12}, v{xf+14}, v{xf+14}")
        else: a(f"v_fmac_f32 v{xf+12}, v{xf+14}, v{xf+14}")
    rne_bf16(xf + 13, xf + 13)
    wave_sum(xf + 12)
    for i in range(8): a(f"v_sub_f32 v{xf+i}, v{xf+i}, v{xf+13}")
    a(f"v_readlane_b32 s{sT[6]}, v{xf+12}, 63")
    for i in range(4): a(f"v_cvt_pk_bf16_f32 v{xf+8+i}, v{xf+2*i}, v{xf+2*i+1}")
    a(f"v_mul_f32 v{xf+12}, s{sT[6]}, v{xf+15}")
    rne_bf16(xf + 12, xf + 12)
    a(f"v_add_f32 v{xf+12}, 0x3727c5ac, v{xf+12}")
    rne_bf16(xf + 12, xf + 12)
    a(f"v_sqrt_f32 v{xf+12}, v{xf+12}")
    for i in range(4):
        a(f"v_lshlrev_b32 v{xf+2*i}, 16, v{xf+8+i}")
        a(f"v_and_b32 v{xf+2*i+1}, 0xffff0000, v{xf+8+i}")
    rne_bf16(xf + 12, xf + 12)
    a(f"v_rcp_f32 v{xf+12}, v{xf+12}")
    a(f"s_mul_i32 s{sT[6]}, s{sK}, 1040")
    a(f"s_add_u32 s{sT[6]}, s{sT[6]}, {L_XN}")
    a(f"v_add_u32 v{xf+15}, s{sT[6]}, v{vL16}")
    for i in range(8): a(f"v_mul_f32 v{xf+i}, v{xf+i}, v{xf+12}")
    for i in range(4): a(f"v_cvt_pk_bf16_f32 v{xf+8+i}, v{xf+2*i}, v{xf+2*i+1}")
    a(f"ds_write_b128 v{xf+15}, {v(xf+8,4)}")

EARLYPF = f"""s_getpc_b64 s[{sC2}:{sC2+1}]
v_lshlrev_b32 v{t1}, 6, v0
v_min_u32 v{t1}, L_end-{KNAME}-256, v{t1}
global_load_dword v{vDUM}, v{t1}, s[{sC2}:{sC2+1}]""" if opt("earlypf", 1) else ""
if opt("earlypf", 1): CODEPF = 0
WQ, FR, AC, BX, UK = 32, 160, 192, 224, 32
vWQ, vUK = vT[4], vT[5]
def wq_kstep(u):
    a(f"""
    s_add_u32 s{sT[2]}, s{sJQ}, {u}
    s_and_b32 s{sT[2]}, s{sT[2]}, 3
    s_lshl_b32 s{sT[2]}, s{sT[2]}, 18
    s_add_u32 s{sT[3]}, s{sT[2]}, s{sT[0]}
    """)
    if u == 0: a("s_waitcnt lgkmcnt(0)")
    for e in range(8):
        if e: a(f"s_add_u32 s{sT[3]}, s{sT[3]}, 8192")
        a(f"buffer_load_dwordx4 {v(WQ+4*(8*u+e),4)}, v{vWQ}, {srd(R_WQ)}, s{sT[3]} offen{P_WQ}")
def q_kstep(u):
    for jj in range(8):
        for p in range(4):
            sel = sSELHI if (jj & 1) else sSELLO
            a(f"v_perm_b32 v{FR+4*jj+p}, v{WQ+4*(8*u+2*p+1)+(jj>>1)}, v{WQ+4*(8*u+2*p)+(jj>>1)}, s{sel}")
        if jj >= 1: mfma(AC+4*(jj-1), FR+4*(jj-1), BX+4*u, u == 0)
    mfma(AC+28, FR+28, BX+4*u, u == 0)
def srdw(lst):
    for r, nb in lst:
        a(f"s_mov_b32 s{r+2}, {nb}")
        a(f"s_mov_b32 s{r+3}, 0x20000")
a(f"""
s_load_dwordx2 s[{R_WQ}:{R_WQ+1}], s[0:1], 16
s_load_dwordx2 s[{R_X}:{R_X+1}], s[0:1], 0
s_load_dwordx2 s[{R_WUK}:{R_WUK+1}], s[0:1], 24
s_load_dwordx2 s[{R_CKV}:{R_CKV+1}], s[0:1], 8
s_load_dwordx2 s[{R_WS}:{R_WS+1}], s[0:1], 96
{"s_memrealtime s[94:95]" if DBGT else ""}
s_cmp_ge_u32 s2, 256
s_cbranch_scc1 L_end
{EARLYPF}
v_lshrrev_b32 v{t0}, 6, v0
v_and_b32 v{vL}, 63, v0
v_and_b32 v{vN}, 15, v0
v_readfirstlane_b32 s{sW}, v{t0}
v_bfe_u32 v{vG}, v0, 4, 2
v_lshlrev_b32 v{vL16}, 4, v{vL}
v_lshlrev_b32 v{vWQ}, 16, v{vG}
v_lshl_add_u32 v{vWQ}, v{vN}, 4, v{vWQ}
s_and_b32 s{sX}, s2, 7
s_lshr_b32 s{sYP}, s2, 4
s_and_b32 s{sHA}, s{sYP}, 3
s_lshl2_add_u32 s{sHA}, s{sX}, s{sHA}
s_lshr_b32 s{sJQ}, s{sYP}, 2
s_lshl_b32 s{sT[1]}, s{sHA}, 8
s_and_b32 s{sK}, s{sW}, 3
""")
srdw([(R_WQ, 4 << 20), (R_X, 4096), (R_WUK, 4 << 20)])
a(f"""
s_bitcmp1_b32 s2, 3
s_cbranch_scc1 L_f0
s_cmp_ge_u32 s{sW}, 4
s_cbranch_scc1 L_al0
s_lshl_b32 s{sT[0]}, s{sW}, 20
s_add_u32 s{sT[0]}, s{sT[0]}, s{sT[1]}
""")
wq_kstep(0)
a(f"""
s_branch L_j0
L_al0:
s_lshl_b32 s{sT[2]}, s{sK}, 10
v_lshlrev_b32 v{t0}, 2, v{vL}
v_add_u32 v{t0}, {L_FL}, v{t0}
v_mov_b32 v{t3}, 0
ds_write_b32 v{t0}, v{t3}
v_lshlrev_b32 v{t0}, 3, v{vN}
v_add_u32 v{t0}, {L_MX}, v{t0}
v_mov_b32 v{t2}, 0xff800000
ds_write2_b32 v{t0}, v{t2}, v{t3} offset0:0 offset1:1
s_waitcnt lgkmcnt(0)
buffer_load_dwordx4 {v(XR,4)}, v{vL16}, {srd(R_X)}, s{sT[2]} offen
s_branch L_j0
L_f0:
s_cmp_ge_u32 s{sW}, 4
s_cbranch_scc1 L_f1
v_lshrrev_b32 v{t2}, 1, v{vL}
v_lshlrev_b32 v{t2}, 13, v{t2}
v_and_b32 v{t3}, 1, v{vL}
v_lshl_add_u32 v{t2}, v{t3}, 7, v{t2}
s_lshl2_add_u32 s{sT[6]}, s{sJQ}, s{sW}
s_lshl_b32 s{sT[6]}, s{sT[6]}, 18
s_add_u32 s{sT[6]}, s{sT[6]}, s{sT[1]}
s_waitcnt lgkmcnt(0)
buffer_load_dword v{vDUM+1}, v{t2}, {srd(R_WUK)}, s{sT[6]} offen{P_WQ}
s_branch L_j0
L_f1:
v_lshlrev_b32 v{t0}, 2, v{vL}
v_add_u32 v{t0}, {L_FL}, v{t0}
v_mov_b32 v{t3}, 0
ds_write_b32 v{t0}, v{t3}
v_lshlrev_b32 v{t0}, 3, v{vN}
v_add_u32 v{t0}, {L_MX}, v{t0}
v_mov_b32 v{t2}, 0xff800000
ds_write2_b32 v{t0}, v{t2}, v{t3} offset0:0 offset1:1
s_waitcnt lgkmcnt(0)
L_j0:
s_barrier
""")
if PROF: a(f"v_mov_b32 v{vTSA}, 0")
stamp("start")
a(f"""
s_load_dword s{sEP}, s[{R_WS}:{R_WS+1}], {EPOCH_OFF}
s_load_dwordx2 s[{R_WUV}:{R_WUV+1}], s[0:1], 32
s_load_dwordx2 s[{R_WO}:{R_WO+1}], s[0:1], 40
s_load_dwordx2 s[{R_WG}:{R_WG+1}], s[0:1], 56
s_load_dwordx2 s[{R_WU}:{R_WU+1}], s[0:1], 64
s_load_dwordx2 s[{R_WD}:{R_WD+1}], s[0:1], 72
s_load_dwordx2 s[{R_OUT}:{R_OUT+1}], s[0:1], 80
{"s_load_dwordx2 s[98:99], s[0:1], 88" if DBGT else ""}
{"s_memtime s[96:97]" if DBGT else ""}
v_mov_b32 v{vFL}, {L_FL}
v_mov_b32 v{vONE}, 1
""")
srdw([(R_CKV, 16 << 20), (R_WS, WS_USED), (R_WUV, 4 << 20), (R_WO, 4 << 20),
      (R_WG, 512 * 1376 * 2), (R_WU, 512 * 1376 * 2), (R_WD, 512 * 1376 * 2), (R_OUT, 4096), (R_PF, 86 * 128)])
a(f"""
s_lshr_b32 s{sY}, s2, 3
s_and_b32 s{sT[4]}, s{sY}, 1
s_xor_b32 s{sHGB}, s{sT[4]}, 1
s_lshl_b32 s{sH}, s{sT[4]}, 4
s_lshl1_add_u32 s{sH}, s{sX}, s{sH}
s_and_b32 s{sT[5]}, s{sYP}, 1
s_add_u32 s{sH}, s{sH}, s{sT[5]}
s_bfe_u32 s{sCQ}, s{sY}, 0x20002
s_lshr_b32 s{sMH}, s{sY}, 4
s_lshl4_add_u32 s{sCH}, s{sX}, s{sYP}
s_mov_b32 s{sSELLO}, 0x05040100
s_mov_b32 s{sSELHI}, 0x07060302
s_mov_b32 s{sM4}, 0x000f000f
s_mov_b32 s{sM4+1}, 0x000f000f
s_mov_b32 s{sM8}, 0x00ff00ff
s_mov_b32 s{sM8+1}, 0x00ff00ff
s_mul_i32 s{sPHI}, s{sX}, 11
s_add_u32 s{sPHI}, s{sPHI}, s{sYP}
s_cmp_lt_u32 s{sYP}, 11
s_cselect_b32 s{sISF}, s{sT[4]}, 0
s_cmp_lt_u32 s{sPHI}, 86
s_cselect_b32 s{sISF}, s{sISF}, 0
s_cmp_ge_u32 s{sYP}, 12
s_cselect_b32 s{sISR}, s{sHGB}, 0
s_sub_u32 s{sRHO}, s{sYP}, 12
s_lshl3_add_u32 s{sRHO}, s{sRHO}, s{sX}
s_cmp_ge_u32 s{sW}, 6
s_cbranch_scc1 L_wave67
s_cmp_ge_u32 s{sW}, 4
s_cbranch_scc1 L_wave45
s_setprio 2
s_cmp_eq_u32 s{sHGB}, 0
s_cbranch_scc1 L_freeC
""")

vQPw, vQPr, vQ16w, vQ16r, vQAp = vT[6], vT[7], vT[8], vT[9], vT[10]
a(f"""
s_lshl_b32 s{sT[4]}, s{sW}, 5
s_lshl_b32 s{sT[5]}, s{sJQ}, 7
s_add_u32 s{sT[4]}, s{sT[4]}, s{sT[5]}
s_lshl_b32 s{sT[4]}, s{sT[4]}, 13
s_add_u32 s{sT[4]}, s{sT[4]}, s{sT[1]}
s_add_u32 s{sT[5]}, s{sT[4]}, {16*8192}
v_lshlrev_b32 v{vUK}, 13, v{vN}
v_lshl_add_u32 v{vUK}, v{vG}, 4, v{vUK}
v_and_b32 v{t1}, 3, v{vN}
v_mul_u32_u24 v{t0}, 1040, v{t1}
v_lshl_add_u32 v{t0}, v{vG}, 4, v{t0}
s_lshl_b32 s{sT[6]}, s{sW}, 8
s_add_u32 s{sT[6]}, s{sT[6]}, {L_XN}
v_add_u32 v{t0}, s{sT[6]}, v{t0}
s_lshl_b32 s{sT[6]}, s{sW}, 11
s_add_u32 s{sT[6]}, s{sT[6]}, {L_QP}
v_lshlrev_b32 v{vQPw}, 6, v{vG}
v_lshl_add_u32 v{vQ16r}, v{t1}, 4, v{vQPw}
v_add_u32 v{vQPw}, s{sT[6]}, v{vQ16r}
v_add_u32 v{vQ16r}, {L_Q16}, v{vQ16r}
s_lshl_b32 s{sT[6]}, s{sW}, 9
s_add_u32 s{sT[6]}, s{sT[6]}, {L_QP}
v_lshlrev_b32 v{vQPr}, 2, v{vL}
v_add_u32 v{vQPr}, s{sT[6]}, v{vQPr}
v_lshlrev_b32 v{vQ16w}, 6, v{t1}
v_and_b32 v{t2}, 12, v{vL}
v_lshl_add_u32 v{vQ16w}, v{t2}, 2, v{vQ16w}
v_lshl_add_u32 v{vQ16w}, v{vG}, 8, v{vQ16w}
s_lshl_b32 s{sT[6]}, s{sW}, 2
s_add_u32 s{sT[6]}, s{sT[6]}, {L_Q16}
v_add_u32 v{vQ16w}, s{sT[6]}, v{vQ16w}
v_lshlrev_b32 v{vQAp}, 16, v{t1}
v_lshl_add_u32 v{vQAp}, v{vG}, 4, v{vQAp}
v_bfe_u32 v{t2}, v{vN}, 2, 1
v_lshl_add_u32 v{vQAp}, v{t2}, 6, v{vQAp}
v_cmp_eq_u32 s[{sC2}:{sC2+1}], 1, v{t2}
s_lshl_b32 s{sT[6]}, s{sHA}, 11
s_lshl_b32 s{sT[7]}, s{sJQ}, 9
s_add_u32 s{sT[6]}, s{sT[6]}, s{sT[7]}
s_lshl_b32 s{sT[7]}, s{sW}, 7
s_add_u32 s{sT[6]}, s{sT[6]}, s{sT[7]}
s_add_u32 s{sT[6]}, s{sT[6]}, {QA_OFF}
s_mov_b32 s{sT[7]}, {f32(math.log2(math.e) / math.sqrt(128.0))}
""")
for u in range(4):
    a(f"""
    s_add_u32 s{sT[2]}, s{sJQ}, {u}
    s_and_b32 s{sT[2]}, s{sT[2]}, 3
    s_lshl_b32 s{sT[2]}, s{sT[2]}, 6
    v_add_u32 v{vT[11+u]}, s{sT[2]}, v{t0}
    """)
wq_kstep(1)
wq_kstep(2)
def spec_xn():
    for u in range(4):
        a(f"ds_read_b128 {v(BX+4*u,4)}, v{vT[11+u]}")
wq_kstep(3)
stamp("wq issued")
lds_wait(F_XN, 4, spec_xn)
a(f"s_add_u32 s{sEP}, s{sEP}, 1")
a("s_waitcnt vmcnt(24)")
q_kstep(0)
for mt in range(2):
    for t in range(4):
        a(f"buffer_load_dwordx4 {v(UK+16*mt+4*t,4)}, v{vUK}, {srd(R_WUK)}, s{sT[4+mt]} offen offset:{64*t}{P_WQ}")
lds_signal(F_WQI)
for u in range(1, 4):
    a(f"s_waitcnt vmcnt({(3-u)*8 + 8})")
    q_kstep(u)
stamp("q partial")
a(f"s_mov_b64 exec, s[{sM4}:{sM4+1}]")
for jj in range(8):
    a(f"ds_write_b128 v{vQPw}, {v(AC+4*jj,4)} offset:{256*jj}")
lds_signal(F_QP)
def spec_qp():
    for k in range(4):
        a(f"ds_read2st64_b32 {v(FR+2*k,2)}, v{vQPr} offset0:{8*k} offset1:{8*k+1}")
lds_wait(F_QP, 4, spec_qp)
stamp("qp done")
a(f"""
v_add_f32 v{FR}, v{FR}, v{FR+2}
v_add_f32 v{FR+1}, v{FR+1}, v{FR+3}
v_add_f32 v{FR+4}, v{FR+4}, v{FR+6}
v_add_f32 v{FR+5}, v{FR+5}, v{FR+7}
v_add_f32 v{FR}, v{FR}, v{FR+4}
v_add_f32 v{FR+1}, v{FR+1}, v{FR+5}
v_cvt_pk_bf16_f32 v{FR}, v{FR}, v{FR+1}
ds_write_b32 v{vQ16w}, v{FR}
""")
lds_signal(F_Q16)
a(f"v_mov_b32 v{AC+9}, s{sEP}")
a(f"v_mov_b32 v{AC+11}, s{sEP}")
def spec_q16():
    a(f"ds_read_b32 v{t3}, v{vFL} offset:{F_CLR}")
    for t in range(4):
        a(f"ds_read_b128 {v(FR+8+4*t,4)}, v{vQ16r} offset:{256*t}")
lds_wait(F_Q16, 4, spec_q16)
stamp("q16 done")
a("s_waitcnt vmcnt(0)")
stamp("uk landed")
for t in range(4):
    for mt in range(2):
        mfma(AC+4*mt, UK+16*mt+4*t, FR+8+4*t, t == 0)
a(f"""
v_readfirstlane_b32 s{sACC}, v{t3}
s_cmp_ge_u32 s{sACC}, 2
s_cbranch_scc1 L_clrok
""")
lds_wait(F_CLR, 2)
a("L_clrok:")
for r in range(4):
    a(f"v_cndmask_b32 v{AC+r}, v{AC+r}, v{AC+4+r}, s[{sC2}:{sC2+1}]")
for r in range(4):
    a(f"v_mul_f32 v{AC+r}, s{sT[7]}, v{AC+r}")
a(f"""
v_cvt_pk_bf16_f32 v{AC+8}, v{AC}, v{AC+1}
v_cvt_pk_bf16_f32 v{AC+10}, v{AC+2}, v{AC+3}
s_mov_b64 exec, s[{sM8}:{sM8+1}]
buffer_store_dwordx4 {v(AC+8,4)}, v{vQAp}, {srd(R_WS)}, s{sT[6]} offen sc1
s_mov_b64 exec, -1
""")
stamp("q_abs published")
a("s_branch L_phaseB")

a("L_freeC:")
if UKGATE:
    a("s_waitcnt vmcnt(0)")
    lds_signal(F_WQI)
lds_wait(F_CLR, 2, sleep=4)
a(f"s_add_u32 s{sEP}, s{sEP}, 1")

a("L_phaseB:")
QF, SA0, SA1, SD, vM = 32, 96, 160, 224, 232
vX0 = vT[4]
vMX, vPw, vPr, vC, vTF, vPV, vO = vT[8], vT[9], vT[10], vT[11], vT[12], vT[13], vT[14]
vSA = vT[15]
a(f"""
v_lshrrev_b32 v{t0}, 3, v{vN}
v_lshlrev_b32 v{t1}, 2, v{t0}
v_and_b32 v{t2}, 7, v{vN}
v_xor_b32 v{t2}, v{t2}, v{t1}
v_lshl_add_u32 v{t2}, v{t2}, 1, v{t0}
v_xor_b32 v{t2}, v{t2}, v{vG}
v_lshlrev_b32 v{t2}, 4, v{t2}
v_lshl_add_u32 v{t2}, v{vN}, 10, v{t2}
s_lshl_b32 s{sT[0]}, s{sW}, 15
v_add_u32 v{vSA}, s{sT[0]}, v{t2}
v_add_u32 v{vX0}, {L_QS}, v{t2}
""")
for tt in range(1, 4):
    a(f"v_xor_b32 v{vSA+tt}, {64*tt}, v{vSA}")
    a(f"v_xor_b32 v{vX0+tt}, {64*tt}, v{vX0}")
a(f"""
s_lshl_b32 s{sT[1]}, s{sW}, 3
v_add_u32 v{vTF}, s{sT[1]}, v{vFL}
v_bfe_u32 v{t0}, v{vL}, 2, 4
v_lshrrev_b32 v{t1}, 3, v{t0}
v_lshlrev_b32 v{t2}, 2, v{t1}
v_and_b32 v{t3}, 7, v{t0}
v_xor_b32 v{t3}, v{t3}, v{t2}
v_lshl_add_u32 v{t3}, v{t3}, 1, v{t1}
v_bfe_u32 v{t1}, v{vL}, 1, 1
v_xor_b32 v{t3}, v{t3}, v{t1}
v_lshlrev_b32 v{t3}, 4, v{t3}
v_and_b32 v{t1}, 1, v{vL}
v_lshl_add_u32 v{t3}, v{t1}, 3, v{t3}
v_lshl_add_u32 v{t3}, v{t0}, 10, v{t3}
s_lshl_b32 s{sT[0]}, s{sW}, 8
v_add_u32 v{vPV}, s{sT[0]}, v{t3}
v_and_b32 v{t0}, 1, v{vG}
v_lshlrev_b32 v{t0}, 5, v{t0}
v_lshrrev_b32 v{t1}, 1, v{vG}
v_lshl_add_u32 v{t0}, v{t1}, 4, v{t0}
v_and_b32 v{t1}, 7, v{vN}
v_lshl_add_u32 v{vO}, v{t1}, 17, v{t0}
v_lshrrev_b32 v{t1}, 3, v{vN}
v_lshl_add_u32 v{vO}, v{t1}, 6, v{vO}
s_lshl_b32 s{sO}, s{sHGB}, 21
s_lshl_b32 s{sT[4]}, s{sCH}, 8
s_add_u32 s{sO}, s{sO}, s{sT[4]}
s_lshl_b32 s{sT[4]}, s{sW}, 15
s_add_u32 s{sO}, s{sO}, s{sT[4]}
s_add_u32 s{sO}, s{sO}, {O_OFF}
s_add_u32 s{sT[3]}, s{sO}, {8 << 17}
v_lshlrev_b32 v{vMX}, 3, v{vN}
v_add_u32 v{vMX}, {L_MX}, v{vMX}
s_lshl_b32 s{sT[0]}, s{sW}, 10
s_add_u32 s{sT[0]}, s{sT[0]}, {L_PX}
v_add_u32 v{vPw}, s{sT[0]}, v{vL16}
v_add_u32 v{vPr}, {L_PX}, v{vL16}
""")
PAD = list(range(240, 256))
for mt in range(8):
    a(f"v_xor_b32 v{PAD[mt]}, {32*mt}, v{vPV}")
    a(f"v_add_u32 v{PAD[8+mt]}, 0x10000, v{PAD[mt]}")
def sa_read(k, t):
    a(f"ds_read_b128 {v((SA1 if k else SA0)+4*t,4)}, v{vSA+(t&3)} offset:{16384*k+(t>>2)*256}")
def qf_read(t):
    a(f"ds_read_b128 {v(QF+4*t,4)}, v{vX0+(t&3)} offset:{(t>>2)*256}")
GQ = 64
vQa, vQb, vQw, vEP = 236, 237, 238, 239
a(f"""
v_lshlrev_b32 v{vQa}, 4, v0
v_add_u32 v{vQb}, 16384, v{vQa}
s_lshr_b32 s{sT[6]}, s{sCH}, 5
s_lshl_b32 s{sT[6]}, s{sT[6]}, 1
s_add_u32 s{sT[6]}, s{sT[6]}, s{sHGB}
s_lshl_b32 s{sT[6]}, s{sT[6]}, 15
s_add_u32 s{sT[6]}, s{sT[6]}, {QA_OFF}
s_add_u32 s{sT[7]}, s{sT[6]}, 4096
s_add_u32 s{sT[8]}, s{sT[6]}, 8192
s_add_u32 s{sT[9]}, s{sT[6]}, 12288
v_and_b32 v{vQw}, 127, v0
v_lshlrev_b32 v{vQw}, 3, v{vQw}
s_lshr_b32 s{sT[10]}, s{sW}, 1
s_lshl_b32 s{sT[5]}, s{sT[10]}, 5
v_xor_b32 v{vQw}, s{sT[5]}, v{vQw}
s_lshl_b32 s{sT[10]}, s{sT[10]}, 10
s_add_u32 s{sT[10]}, s{sT[10]}, {L_QS}
v_add_u32 v{vQw}, s{sT[10]}, v{vQw}
v_mov_b32 v{vEP}, s{sEP}
s_mov_b32 s{sT[2]}, 0
""")
def qa_loads():
    for i in range(8):
        a(f"buffer_load_dwordx4 {v(GQ+4*i,4)}, v{vQb if i >= 4 else vQa}, {srd(R_WS)}, s{sT[6+(i&3)]} offen sc1")
def try_tile1(tag):
    a(f"""
    ds_read_b32 v{t0}, v{vTF} offset:{F_TILE+4}
    s_waitcnt lgkmcnt(0)
    v_readfirstlane_b32 s{sACC+1}, v{t0}
    s_cmp_le_u32 s{sACC+1}, s{sT[2]}
    s_cbranch_scc1 L_nt1{tag}
    s_mov_b32 s{sT[2]}, 1
    """)
    for t in range(16): sa_read(1, t)
    a(f"L_nt1{tag}:")
lds_wait(F_TILE, 1, base=vTF, sleep=1)
for t in range(16): sa_read(0, t)
a("s_waitcnt vmcnt(0)")
lds_wait(F_GO, 2, sleep=1)
a(f"s_mov_b32 s{sCNT}, 0")
a("L_pollq:")
qa_loads()
lds_signal(F_QI)
try_tile1("a")
for i in range(8):
    a(f"s_waitcnt vmcnt({7-i})")
    if i == 0: a(f"v_xor_b32 v{t2}, v{GQ+1}, v{vEP}")
    else: a(f"v_bitop3_b32 v{t2}, v{t2}, v{GQ+4*i+1}, v{vEP} bitop3:0xf6")
    if i: a(f"v_xor_b32 v{t3}, {(fsw(2*i) << 4) | (i << 11)}, v{vQw}")
    a(f"v_bitop3_b32 v{t2}, v{t2}, v{GQ+4*i+3}, v{vEP} bitop3:0xf6")
    a(f"ds_write2_b32 v{t3 if i else vQw}, v{GQ+4*i}, v{GQ+4*i+2} offset0:0 offset1:1")
a(f"v_cmp_ne_u32 vcc, 0, v{t2}")
poll_tail("L_pollq", QSLEEP)
lds_signal(F_QS)
cstamp("qa retries")
stamp("q_abs gathered")
a(f"s_mov_b32 s{sCNT}, 0")
a("L_wq:")
a(f"""
ds_read_b32 v{vSP}, v{vFL} offset:{F_QS}
ds_read_b32 v{t0}, v{vTF} offset:{F_TILE+4}
""")
for t in range(4): qf_read(t)
a(f"""
s_waitcnt lgkmcnt(0)
v_readfirstlane_b32 s{sACC}, v{vSP}
v_readfirstlane_b32 s{sACC+1}, v{t0}
s_cmp_ge_u32 s{sACC}, 4
s_cbranch_scc1 L_wqd
s_add_u32 s{sCNT}, s{sCNT}, 1
s_cmp_lt_u32 s{sCNT}, {LSPIN_MAX}
s_cbranch_scc1 L_wq
L_wqd:
""")
stamp("Q ready")
for t in range(4, 16): qf_read(t)
a(f"""
s_cmp_eq_u32 s{sT[2]}, 1
s_cbranch_scc1 L_sboth
""")
a(f"""
s_cmp_ge_u32 s{sACC+1}, 1
s_cbranch_scc1 L_t1now
""")
for t in range(16):
    if t >= 4: a(f"s_waitcnt lgkmcnt({15-t})")
    mfma(SD, SA0+4*t, QF+4*t, t == 0)
lds_wait(F_TILE + 4, 1, base=vTF)
for t in range(16): sa_read(1, t)
for t in range(16):
    a(f"s_waitcnt lgkmcnt({15-t})")
    mfma(SD+4, SA1+4*t, QF+4*t, t == 0)
a("s_branch L_sdone")
a("L_t1now:")
for t in range(16):
    if t >= 4: a("s_waitcnt lgkmcnt(15)")
    sa_read(1, t)
    mfma(SD, SA0+4*t, QF+4*t, t == 0)
for t in range(16):
    a(f"s_waitcnt lgkmcnt({15-t})")
    mfma(SD+4, SA1+4*t, QF+4*t, t == 0)
a("s_branch L_sdone")
a("L_sboth:")
for t in range(16):
    if t >= 4: a(f"s_waitcnt lgkmcnt({15-t})")
    mfma(SD, SA0+4*t, QF+4*t, t == 0)
    mfma(SD+4, SA1+4*t, QF+4*t, t == 0)
a("L_sdone:")
a(f"""
v_max3_f32 v{t1}, v{SD}, v{SD+1}, v{SD+2}
v_max3_f32 v{t2}, v{SD+3}, v{SD+4}, v{SD+5}
v_max3_f32 v{t1}, v{t1}, v{SD+6}, v{SD+7}
v_max_f32 v{t1}, v{t1}, v{t2}
v_ceil_f32 v{vC}, v{t1}
ds_max_f32 v{vMX}, v{vC}
ds_add_u32 v{vMX}, v{vONE} offset:4
ds_read_b64 {v(vM,2)}, v{vMX}
""")
for r in range(8): a(f"v_sub_f32 v{SD+r}, v{SD+r}, v{vC}")
for r in range(8): a(f"v_exp_f32 v{SD+r}, v{SD+r}")
PVA, PB, OD, OS, ON = 32, 160, 176, 208, 224
lp, dn, ck = a.newlabel("Lm"), a.newlabel("Lmd"), a.newlabel("Lmc")
a(f"s_mov_b32 s{sCNT}, 0")
a(f"s_branch {ck}")
a.label(lp)
a(f"ds_read_b64 {v(vM,2)}, v{vMX}")
a.label(ck)
a(f"""
s_waitcnt lgkmcnt(0)
v_cmp_ne_u32 vcc, 16, v{vM+1}
v_sub_f32 v{t1}, v{vC}, v{vM}
s_cmp_eq_u64 vcc, 0
s_cbranch_scc1 {dn}
s_add_u32 s{sCNT}, s{sCNT}, 1
s_cmp_lt_u32 s{sCNT}, {LSPIN_MAX}
s_cbranch_scc1 {lp}
""")
a.label(dn)
stamp("S done")
def pv_read(u, mt):
    for vv in range(2):
        tile = 2 * u + vv
        ad = PAD[mt] if tile < 4 else PAD[8 + mt]
        a(f"ds_read_b64_tr_b16 {v(PVA+16*mt+4*u+2*vv,2)}, v{ad} offset:{(tile&3)*16384}")
a(f"v_exp_f32 v{t1}, v{t1}")
pv_read(0, 0)
for r in range(8): a(f"v_mul_f32 v{SD+r}, v{SD+r}, v{t1}")
for k in range(4): a(f"v_cvt_pk_bf16_f32 v{PB+k}, v{SD+2*k}, v{SD+2*k+1}")
a(f"ds_write_b128 v{vPw}, {v(PB,4)}")
lds_signal(F_P)
for u in range(4):
    for mt in range(4):
        if (u, mt) != (0, 0): pv_read(u, mt)
for i in range(4): a(f"v_mov_b32 v{ON+i}, 0x3f803f80")
def spec_p():
    for u in range(4):
        a(f"ds_read_b128 {v(PB+4*u,4)}, v{vPr} offset:{1024*u}")
lds_wait(F_P, 4, spec_p)
stamp("P done")
for u in range(4):
    for mt in range(4):
        pv_read(u, mt + 4)
        mfma(OD+4*mt, PVA+16*mt+4*u, PB+4*u, u == 0)
CK = vM + 2
def epilogue(pp):
    L = []
    for p in (2 * pp, 2 * pp + 1):
        for k in range(2):
            mt = 2 * p + k
            L.append(f"v_cvt_pk_bf16_f32 v{OS+2*mt}, v{OD+4*mt}, v{OD+4*mt+1}")
            L.append(f"v_cvt_pk_bf16_f32 v{OS+2*mt+1}, v{OD+4*mt+2}, v{OD+4*mt+3}")
    for p in (2 * pp, 2 * pp + 1):
        L.append(f"v_permlane16_swap_b32 v{OS+4*p}, v{OS+4*p+2}")
        L.append(f"v_permlane16_swap_b32 v{OS+4*p+1}, v{OS+4*p+3}")
    X, Y, T = OS + 8 * pp, OS + 8 * pp + 4, OD + 16 * pp
    for d in range(4): L.append(f"v_mov_b32 v{T+d}, v{X+d}")
    for d in range(4): L.append(f"v_mov_b32 v{T+4+d}, v{Y+d}")
    for d in range(4): L.append(f"v_mov_b32_dpp v{T+d}, v{Y+d} row_ror:8 row_mask:0xf bank_mask:0xc")
    L.append(f"buffer_store_dwordx4 {v(T,4)}, v{vO}, {srd(R_WS)}, s{sO} offen offset:{128*pp} sc1")
    for d in range(4): L.append(f"v_mov_b32_dpp v{T+4+d}, v{X+d} row_ror:8 row_mask:0xf bank_mask:0x3")
    L.append(f"buffer_store_dwordx4 {v(T+4,4)}, v{vO}, {srd(R_WS)}, s{sT[3]} offen offset:{128*pp} sc1")
    for k in range(0, 8, 2):
        if pp == 0 and k == 0: L.append(f"v_add_u32 v{CK}, v{X}, v{X+1}")
        else: L.append(f"v_add3_u32 v{CK}, v{CK}, v{X+k}, v{X+k+1}")
    return L
E0 = epilogue(0)
idx = 0
for u in range(4):
    for mt in range(4, 8):
        left = 32 - 2 * (u * 4 + (mt - 4) + 1)
        if left <= 15: a(f"s_waitcnt lgkmcnt({left})")
        elif (u, mt) == (0, 4): a("s_waitcnt lgkmcnt(15)")
        mfma(OD+4*mt, PVA+16*mt+4*u, PB+4*u, u == 0)
        if u * 4 + (mt - 4) >= 2:
            for l in E0[idx:idx+2]: a(l)
            idx += 2
lds_signal(F_BD)
for u in range(4):
    mfma(ON+4, ON, PB+4*u, u == 0)
    for l in E0[idx:idx+2]: a(l)
    idx += 2
for l in E0[idx:]: a(l)
stamp("PV done")
for l in epilogue(1): a(l)
a(f"""
s_lshl_b32 s{sT[4]}, s{sHGB}, 7
s_add_u32 s{sT[4]}, s{sT[4]}, s{sCH}
s_lshl_b32 s{sT[4]}, s{sT[4]}, 2
s_add_u32 s{sT[4]}, s{sT[4]}, s{sW}
s_lshl_b32 s{sT[4]}, s{sT[4]}, 8
s_add_u32 s{sT[4]}, s{sT[4]}, {ML_OFF}
v_mov_b32 v{t0}, v{CK}
v_mov_b32 v{vM+1}, v{ON+4}
v_permlane32_swap_b32 v{CK}, v{t0}
v_add_u32 v{CK}, v{CK}, v{t0}
v_mov_b32 v{t0}, v{CK}
v_xor_b32 v{t1}, s{sEP}, v{vM}
v_permlane16_swap_b32 v{CK}, v{t0}
v_add3_u32 v{CK}, v{CK}, v{t0}, s{sEP}
v_xor_b32 v{vM+3}, v{t1}, v{vM+1}
s_mov_b64 exec, 0xffff
buffer_store_dwordx4 {v(vM,4)}, v{vL16}, {srd(R_WS)}, s{sT[4]} offen sc1
s_mov_b64 exec, -1
""")
stamp("O published")

HD, HM, MK, AW, CD = 32, 64, 72, 76, 84
mM, wA, wB, wb, ckS, ckE, vCLw, vHd2 = vT[4], vT[5], vT[6], vT[7], vT[8], vT[9], vT[10], vT[11]
a(f"""
v_lshlrev_b32 v{t0}, 8, v{vG}
v_lshl_add_u32 v{t0}, v{vN}, 4, v{t0}
v_add_u32 v{vHd2}, 4096, v{t0}
s_lshl_b32 s{sT[0]}, s{sH}, 2
s_add_u32 s{sT[0]}, s{sT[0]}, s{sCQ}
s_lshl_b32 s{sT[0]}, s{sT[0]}, 15
s_lshl_b32 s{sT[2]}, s{sW}, 13
s_add_u32 s{sT[0]}, s{sT[0]}, s{sT[2]}
s_add_u32 s{sT[0]}, s{sT[0]}, {O_OFF}
v_and_b32 v{t1}, 7, v{vN}
v_lshrrev_b32 v{t2}, 3, v{vN}
v_xor_b32 v{t2}, v{t2}, v{vG}
v_lshl_add_u32 v{t1}, v{t1}, 2, v{t2}
v_lshlrev_b32 v{t1}, 10, v{t1}
v_xor_b32 v{t2}, 2048, v{t1}
s_lshr_b32 s{sT[4]}, s{sH}, 4
s_lshl_b32 s{sT[4]}, s{sT[4]}, 2
s_add_u32 s{sT[4]}, s{sT[4]}, s{sW}
s_lshl_b32 s{sT[4]}, s{sT[4]}, 15
s_and_b32 s{sT[5]}, s{sH}, 15
s_lshl_b32 s{sT[5]}, s{sT[5]}, 4
s_add_u32 s{sT[4]}, s{sT[4]}, s{sT[5]}
s_lshl_b32 s{sT[5]}, s{sCQ}, 8
s_add_u32 s{sT[4]}, s{sT[4]}, s{sT[5]}
s_add_u32 s{sT[4]}, s{sT[4]}, {ML_OFF}
v_and_b32 v{t3}, 1, v{vN}
v_lshlrev_b32 v{t3}, 4, v{t3}
v_mov_b32 v{mM}, 0xffff
v_lshlrev_b32 v{t3}, v{t3}, v{mM}
v_lshrrev_b32 v{mM}, 1, v{vN}
""")
for d in range(4):
    a(f"v_cmp_eq_u32 vcc, {d}, v{mM}")
    a(f"v_cndmask_b32 v{MK+d}, 0, v{t3}, vcc")
a(f"""
s_mul_i32 s{sT[5]}, s{sW}, 272
s_add_u32 s{sT[5]}, s{sT[5]}, {L_CL}
v_lshlrev_b32 v{vCLw}, 4, v{vN}
v_lshl_add_u32 v{vCLw}, v{vG}, 3, v{vCLw}
v_add_u32 v{vCLw}, s{sT[5]}, v{vCLw}
s_mov_b32 s{sT[6]}, 0x03020302
""")
if OACK: a("s_waitcnt vmcnt(0)")
stamp("O acked")
a(f"s_mov_b32 s{sCNT}, 0")
a("L_pollm:")
a(f"""
buffer_load_dwordx4 {v(HM,4)}, v{t1}, {srd(R_WS)}, s{sT[4]} offen sc1
buffer_load_dwordx4 {v(HM+4,4)}, v{t2}, {srd(R_WS)}, s{sT[4]} offen sc1
s_waitcnt vmcnt(0)
v_bitop3_b32 v{ckE}, v{HM}, v{HM+1}, v{HM+3} bitop3:0x96
v_bitop3_b32 v{t3}, v{HM+4}, v{HM+5}, v{HM+7} bitop3:0x96
v_cmp_ne_u32 vcc, s{sEP}, v{ckE}
v_cmp_ne_u32 s[{sACC}:{sACC+1}], s{sEP}, v{t3}
s_or_b64 vcc, s[{sACC}:{sACC+1}], vcc
""")
poll_tail("L_pollm", MLSLEEP)
cstamp("ml retries")
stamp("ML ok")
for t in range(8):
    a(f"buffer_load_dwordx4 {v(HD+4*t,4)}, v{vHd2 if t >= 4 else t0}, {srd(R_WS)}, s{sT[0]} offen offset:{1024*(t&3)} sc1")
a(f"""
v_max_f32 v{mM}, v{HM}, v{HM+4}
v_max_f32_dpp v{mM}, v{mM}, v{mM} row_ror:1 row_mask:0xf bank_mask:0xf
v_max_f32_dpp v{mM}, v{mM}, v{mM} row_ror:2 row_mask:0xf bank_mask:0xf
v_sub_u32 v{ckS}, s{sEP}, v{HM+2}
v_max_f32_dpp v{mM}, v{mM}, v{mM} row_ror:4 row_mask:0xf bank_mask:0xf
v_cndmask_b32 v{ckS}, 0, v{ckS}, s[{sM8}:{sM8+1}]
v_max_f32_dpp v{mM}, v{mM}, v{mM} row_ror:8 row_mask:0xf bank_mask:0xf
v_sub_f32 v{wA}, v{HM}, v{mM}
v_sub_f32 v{wB}, v{HM+4}, v{mM}
v_exp_f32 v{wA}, v{wA}
v_exp_f32 v{wB}, v{wB}
v_perm_b32 v{wb}, v{wA}, v{wA}, s{sT[6]}
v_mul_f32 v{wA}, v{wA}, v{HM+1}
v_fmac_f32 v{wA}, v{wB}, v{HM+5}
""")
sfts = [1, 2, 4, 8]
for t in range(8):
    aw = AW + 4 * (t & 1)
    for d in range(4):
        a(f"v_and_b32_dpp v{aw+d}, v{wb}, v{MK+d} row_newbcast:{t} row_mask:0xf bank_mask:0xf")
    if t < 4:
        a(f"v_add_f32_dpp v{wA}, v{wA}, v{wA} row_ror:{sfts[t]} row_mask:0xf bank_mask:0xf")
    if t == 4:
        a(f"v_rcp_f32 v{wA}, v{wA}")
    a(f"s_waitcnt vmcnt({7-t})")
    a(f"v_add3_u32 v{ckS}, v{ckS}, v{HD+4*t}, v{HD+4*t+1}")
    mfma(CD, aw, HD+4*t, t == 0)
    a(f"v_add3_u32 v{ckS}, v{ckS}, v{HD+4*t+2}, v{HD+4*t+3}")
for sft in sfts:
    a(f"v_add_u32_dpp v{ckS}, v{ckS}, v{ckS} row_ror:{sft} row_mask:0xf bank_mask:0xf")
a(f"v_cmp_ne_u32 vcc, 0, v{ckS}")
for r in range(4): a(f"v_mul_f32 v{CD+r}, v{CD+r}, v{wA}")
a(f"v_cvt_pk_bf16_f32 v{CD+4}, v{CD}, v{CD+1}")
a(f"v_cvt_pk_bf16_f32 v{CD+5}, v{CD+2}, v{CD+3}")
poll_tail("L_pollm")
cstamp("o retries")
a(f"""
s_mov_b32 exec_hi, 0
ds_write_b64 v{vCLw}, {v(CD+4,2)}
s_mov_b64 exec, 1
ds_add_u32 v{vFL}, v{vONE} offset:{F_CL}
s_mov_b64 exec, -1
s_setprio 0
""")
stamp("combined")
a(f"""
s_cmp_eq_u32 s{sISF}, 1
s_cbranch_scc1 L_ffn
s_cmp_eq_u32 s{sISR}, 0
s_cbranch_scc1 L_fin
""")

SEL, RD, RA, RS, vH = 96, 100, 116, 120, 128
vMo, vXv = vT[4], vT[5]
for d in range(4): a(f"v_and_b32 v{SEL+d}, 0x3f803f80, v{MK+d}")
a(f"""
v_and_b32 v{t0}, 0x23, v{vL}
v_bfe_u32 v{t1}, v{vL}, 2, 1
v_lshl_add_u32 v{t0}, v{t1}, 4, v{t0}
v_bfe_u32 v{t1}, v{vL}, 3, 2
v_lshl_add_u32 v{t0}, v{t1}, 2, v{t0}
v_lshlrev_b32 v{vMo}, 1, v{t0}
s_lshl_b32 s{sT[0]}, s{sRHO}, 7
buffer_load_ushort v{vXv}, v{vMo}, {srd(R_X)}, s{sT[0]} offen
v_lshlrev_b32 v{t0}, 4, v0
s_lshl_b32 s{sT[1]}, s{sRHO}, 14
s_add_u32 s{sT[1]}, s{sT[1]}, {PA_OFF}
s_add_u32 s{sT[2]}, s{sT[1]}, 4096
s_add_u32 s{sT[3]}, s{sT[1]}, 8192
s_add_u32 s{sT[4]}, s{sT[1]}, 12288
s_lshl_b32 s{sT[5]}, s{sW}, 8
s_add_u32 s{sT[5]}, s{sT[5]}, {L_RED}
v_lshlrev_b32 v{t1}, 5, v{vN}
v_lshl_add_u32 v{t1}, v{vG}, 4, v{t1}
v_add_u32 v{t1}, s{sT[5]}, v{t1}
v_lshlrev_b32 v{t2}, 2, v{vL}
v_add_u32 v{t2}, {L_RED}, v{t2}
s_mul_i32 s{sT[5]}, s{sRHO}, 12288
s_add_u32 s{sT[5]}, s{sT[5]}, {PF_OFF}
s_add_u32 s{R_PF}, s{R_WS}, s{sT[5]}
s_addc_u32 s{R_PF+1}, s{R_WS+1}, 0
s_mov_b32 s{sT[6]}, 4096
s_mov_b32 s{sT[7]}, 8192
s_waitcnt vmcnt(0)
s_barrier
""")
def reduce_inbox(name, rs, sos):
    a(f"s_mov_b32 s{sCNT}, 0")
    a.label(name)
    for i, so in enumerate(sos):
        a(f"buffer_load_dwordx4 {v(RD+4*i,4)}, v{t0}, {srd(rs)}, {so} offen sc1")
    n = len(sos)
    for i in range(n):
        a(f"s_waitcnt vmcnt({n-1-i})")
        if i == 0: a(f"v_max3_u32 v{t3}, v{RD}, v{RD+1}, v{RD+2}")
        else: a(f"v_max3_u32 v{t3}, v{t3}, v{RD+4*i}, v{RD+4*i+1}")
        mfma(RA, SEL, RD+4*i, i == 0)
        if i == 0: a(f"v_max_u32 v{t3}, v{t3}, v{RD+3}")
        else: a(f"v_max3_u32 v{t3}, v{t3}, v{RD+4*i+2}, v{RD+4*i+3}")
    a(f"v_cmp_eq_u32 vcc, -1, v{t3}")
    poll_tail(name)
    for r in range(4):
        a(f"v_add_f32_dpp v{RA+r}, v{RA+r}, v{RA+r} row_ror:8 row_mask:0xf bank_mask:0xf")
    a(f"""
    s_mov_b64 exec, 0x00ff00ff
    ds_write_b128 v{t1}, {v(RA,4)}
    s_mov_b64 exec, -1
    s_waitcnt lgkmcnt(0)
    s_barrier
    """)
def final_sum():
    for k in range(2):
        a(f"ds_read2st64_b32 {v(RS+2*k,2)}, v{t2} offset0:{2*k} offset1:{2*k+1}")
    a("s_waitcnt lgkmcnt(0)")
    a(f"v_add_f32 v{RS}, v{RS}, v{RS+1}")
    a(f"v_add_f32 v{RS+2}, v{RS+2}, v{RS+3}")
    a(f"v_add_f32 v{RS}, v{RS}, v{RS+2}")
def pack_store(val, rs, so, pol):
    P = RS + 4
    a(f"v_mov_b32_dpp v{RS+2}, v{val} quad_perm:[1,1,3,3] row_mask:0xf bank_mask:0xf")
    a(f"v_cvt_pk_bf16_f32 v{P}, v{val}, v{RS+2}")
    a(f"v_mov_b32_dpp v{P+1}, v{P} quad_perm:[2,2,2,2] row_mask:0xf bank_mask:0xf")
    a(f"v_mov_b32_dpp v{P+2}, v{P} row_shl:8 row_mask:0xf bank_mask:0xf")
    a(f"v_mov_b32_dpp v{P+3}, v{P+1} row_shl:8 row_mask:0xf bank_mask:0xf")
    a(f"""
    s_mov_b32 exec_lo, 0x00110011
    s_mov_b32 exec_hi, 0x00110011
    buffer_store_dwordx4 {v(P,4)}, v{vMo}, {srd(rs)}, {so} offen{pol}
    s_mov_b64 exec, -1
    """)
reduce_inbox("L_pollr1", R_WS, [f"s{sT[1+i]}" for i in range(4)])
stamp("R1 gathered")
a(f"""
s_cmp_lg_u32 s{sW}, 0
s_cbranch_scc1 L_r1skip
""")
final_sum()
rne_bf16(RS, RS)
a(f"v_lshlrev_b32 v{vXv}, 16, v{vXv}")
a(f"v_add_f32 v{vH}, v{RS}, v{vXv}")
a(f"s_add_u32 s{sT[5]}, s{sT[0]}, {HG_OFF}")
pack_store(vH, R_WS, f"s{sT[5]}", " sc1")
rne_bf16(vH, vH)
a("L_r1skip:")
stamp("h published")
a("s_barrier")
reduce_inbox("L_pollr2", R_PF, ["0", f"s{sT[6]}", f"s{sT[7]}"])
stamp("R2 gathered")
a(f"""
s_cmp_lg_u32 s{sW}, 0
s_cbranch_scc1 L_fin
""")
final_sum()
rne_bf16(RS, RS)
a(f"v_add_f32 v{vH}, v{RS}, v{vH}")
pack_store(vH, R_OUT, f"s{sT[0]}", "")
a(f"""
s_cmp_lg_u32 s{sRHO}, 0
s_cbranch_scc1 L_fin
v_mov_b32 v{t0}, {EPOCH_OFF}
v_mov_b32 v{t1}, s{sEP}
s_mov_b64 exec, 1
buffer_store_dword v{t1}, v{t0}, {srd(R_WS)}, 0 offen sc1
""")
if DBGT and PROBE and not opt('plocal', 1):
    a(f"""
    v_mov_b32 v{vT[19]}, 16
    global_load_dword v{vT[20]}, v{vT[19]}, s[98:99] sc1
    s_waitcnt vmcnt(0)
    v_readfirstlane_b32 s94, v{vT[20]}
    """)
a(f"s_mov_b32 s93, {opt('padto', 0)}")
if opt("xcctest", 0):
    a(f"""
    v_mov_b32 v{vT[19]}, 20
    global_load_dword v{vT[20]}, v{vT[19]}, s[98:99] sc1
    s_waitcnt vmcnt(0)
    v_readfirstlane_b32 s{sT[1]}, v{vT[20]}
    s_bcnt1_i32_b32 s{sT[1]}, s{sT[1]}
    s_mul_i32 s{sT[1]}, s{sT[1]}, 1000
    s_add_u32 s93, s93, s{sT[1]}
    """)
if DBGT and opt("padto", 0):
    a(f"""
    L_padspin:
    s_memrealtime s[{sTS}:{sTS+1}]
    s_waitcnt lgkmcnt(0)
    s_sub_u32 s{sTS}, s{sTS}, s94
    s_cmp_lt_u32 s{sTS}, s93
    s_cbranch_scc1 L_padspin
    """)
if DBGT:
    a(f"""
    s_memrealtime s[{sTS}:{sTS+1}]
    s_memtime s[{sC2}:{sC2+1}]
    s_waitcnt lgkmcnt(0)
    s_sub_u32 s{sTS}, s{sTS}, s94
    s_sub_u32 s{sC2}, s{sC2}, s96
    v_mov_b32 v{t2}, s{sTS}
    v_mov_b32 v{t3}, s{sC2}
    v_mov_b32 v{t0}, 0
    global_store_dwordx2 v{t0}, {v(t2,2)}, s[98:99]
    """)
a("""
s_mov_b64 exec, -1
s_branch L_fin
""")

a("L_ffn:")
FGU, FD, HB, GD, FXR, DD, DP, CSA = 96, 128, 144, 160, 172, 188, 220, 188
lds_wait(F_BD, 4)
if PFWHEN == 1:
    a("s_barrier")
a(f"""
v_lshrrev_b32 v{t0}, 1, v{vL}
v_and_b32 v{t1}, 0x13, v{t0}
v_bfe_u32 v{t2}, v{t0}, 2, 1
v_lshl_add_u32 v{t1}, v{t2}, 3, v{t1}
v_bfe_u32 v{t2}, v{t0}, 3, 1
v_lshl_add_u32 v{t1}, v{t2}, 2, v{t1}
v_mul_u32_u24 v{t1}, 2752, v{t1}
v_and_b32 v{t2}, 1, v{vL}
v_lshl_add_u32 v{t1}, v{t2}, 4, v{t1}
s_mul_i32 s{sT[0]}, s{sW}, {128*2752}
s_lshl_b32 s{sT[1]}, s{sPHI}, 5
s_add_u32 s{sT[0]}, s{sT[0]}, s{sT[1]}
s_lshl_b32 s{sT[2]}, s{sW}, 12
""")
for i in range(4):
    a(f"s_add_u32 m0, s{sT[2]}, {L_G + 1024*i}")
    if i: a(f"s_add_u32 s{sT[0]}, s{sT[0]}, {32*2752}")
    a(f"buffer_load_dwordx4 v{t1}, {srd(R_WG)}, s{sT[0]} offen lds")
    a(f"s_add_u32 m0, s{sT[2]}, {L_U + 1024*i}")
    a(f"buffer_load_dwordx4 v{t1}, {srd(R_WU)}, s{sT[0]} offen lds")
a(f"""
s_and_b32 s{sT[0]}, s{sW}, 1
s_lshl_b32 s{sT[0]}, s{sT[0]}, 7
v_xor_b32 v{t0}, s{sT[0]}, v{vL16}
s_lshl_b32 s{sT[0]}, s{sPHI}, 14
s_add_u32 s{sT[0]}, s{sT[0]}, s{sT[2]}
s_add_u32 m0, s{sT[2]}, {L_WD}
""")
for i in range(4):
    if i: a(f"v_xor_b32 v{t2}, {32*i}, v{t0}")
    a(f"buffer_load_dwordx4 v{t2 if i else t0}, {srd(R_WD)}, s{sT[0]} offen offset:{1024*i} lds")
vFXw, vFXr, vSq, vSm, vCs, csg, csu, vPF, vHl = vT[4], vT[5], vT[6], vT[7], vT[8], vT[9], vT[10], vT[11], vT[12]
a(f"""
v_bfe_u32 v{t0}, v{vL}, 2, 3
v_lshrrev_b32 v{t1}, 1, v{vG}
v_lshl_add_u32 v{t0}, v{t1}, 4, v{t0}
v_and_b32 v{t2}, 3, v{vL}
v_lshlrev_b32 v{t2}, 3, v{t2}
v_lshl_add_u32 v{t3}, v{t0}, 5, v{t2}
s_add_u32 s{sT[0]}, s{sT[2]}, {L_G}
v_add_u32 v{t3}, s{sT[0]}, v{t3}
v_bfe_u32 v{t0}, v{vL}, 2, 4
v_and_b32 v{t1}, 7, v{t0}
v_lshl_add_u32 v{t1}, v{t1}, 5, v{t2}
v_lshl_add_u32 v{t1}, v{t0}, 10, v{t1}
s_lshl_b32 s{sT[0]}, s{sW}, 8
s_add_u32 s{sT[0]}, s{sT[0]}, {L_WD}
v_add_u32 v{t1}, s{sT[0]}, v{t1}
v_lshlrev_b32 v{vHl}, 10, v{vN}
v_lshl_add_u32 v{vHl}, v{vG}, 4, v{vHl}
s_lshl_b32 s{sT[1]}, s{sW}, 8
s_add_u32 s{sT[1]}, s{sT[1]}, {HG_OFF}
s_mul_i32 s{sT[2]}, s{sW}, 640
s_add_u32 s{sT[2]}, s{sT[2]}, {L_FX}
v_lshlrev_b32 v{vFXw}, 6, v{vG}
v_lshl_add_u32 v{vFXw}, v{vN}, 4, v{vFXw}
v_add_u32 v{vFXw}, s{sT[2]}, v{vFXw}
v_and_b32 v{t2}, 3, v{vN}
v_lshlrev_b32 v{vFXr}, 4, v{t2}
v_lshl_add_u32 v{vFXr}, v{vG}, 6, v{vFXr}
v_lshrrev_b32 v{t0}, 2, v{vN}
v_lshl_add_u32 v{vFXr}, v{t0}, 2, v{vFXr}
v_add_u32 v{vFXr}, {L_FX}, v{vFXr}
v_mul_u32_u24 v{vSq}, 20, v{t2}
v_add_u32 v{vSq}, {L_FX + 512}, v{vSq}
v_lshlrev_b32 v{vSm}, 4, v{t2}
v_add_u32 v{vSm}, {L_FX + 576}, v{vSm}
v_lshlrev_b32 v{vCs}, 4, v{vG}
v_lshl_add_u32 v{vCs}, v{t0}, 2, v{vCs}
v_add_u32 v{vCs}, {L_CS}, v{vCs}
s_mov_b32 s{sT[4]}, 98304
v_mul_lo_u32 v{vPF}, v{vN}, s{sT[4]}
v_lshl_add_u32 v{vPF}, v{vG}, 4, v{vPF}
s_mul_i32 s{sT[4]}, s{sW}, 24576
s_lshl_b32 s{sT[5]}, s{sPHI}, 7
s_add_u32 s{sT[4]}, s{sT[4]}, s{sT[5]}
s_add_u32 s{sT[4]}, s{sT[4]}, {PF_OFF}
s_add_u32 s{sT[5]}, s{sT[4]}, 12288
""")
for i in range(16): a(f"v_mov_b32 v{HB+i}, 0x3f803f80")
a("s_waitcnt vmcnt(4)")
for mat in range(2):
    for t in range(4):
        for vv in range(2):
            a(f"ds_read_b64_tr_b16 {v(FGU+16*mat+4*t+2*vv,2)}, v{t3} offset:{16384*mat + (32*t+8*vv)*32}")
a("s_waitcnt lgkmcnt(0)")
for mat in range(2):
    for t in range(4):
        mfma(CSA+4*mat, FGU+16*mat+4*t, HB, t == 0)
a(f"""
s_lshl_b32 s{sT[0]}, s{sW}, 7
s_add_u32 s{sT[0]}, s{sT[0]}, {L_CS}
v_lshlrev_b32 v{t0}, 4, v{vG}
v_add_u32 v{t0}, s{sT[0]}, v{t0}
s_mov_b32 exec_lo, 0x00010001
s_mov_b32 exec_hi, 0x00010001
ds_write_b128 v{t0}, {v(CSA,4)}
ds_write_b128 v{t0}, {v(CSA+4,4)} offset:64
s_mov_b64 exec, -1
s_waitcnt vmcnt(0) lgkmcnt(0)
s_barrier
""")
for mt in range(8):
    if mt: a(f"v_xor_b32 v{t2}, {32*mt}, v{t1}")
    a(f"ds_read_b64_tr_b16 {v(FD+2*mt,2)}, v{t2 if mt else t1}")
for k in range(4):
    a(f"ds_read2_b32 {v(FXR+2*k,2)}, v{vCs} offset0:{32*k} offset1:{32*k+16}")
a(f"""
s_waitcnt lgkmcnt(0)
v_add_f32 v{csg}, v{FXR}, v{FXR+2}
v_add_f32 v{csu}, v{FXR+1}, v{FXR+3}
v_add_f32 v{csg}, v{csg}, v{FXR+4}
v_add_f32 v{csu}, v{csu}, v{FXR+5}
v_add_f32 v{csg}, v{csg}, v{FXR+6}
v_add_f32 v{csu}, v{csu}, v{FXR+7}
""")
stamp("FFN prepped")
a(f"s_mov_b64 exec, s[{sM4}:{sM4+1}]")
a(f"s_mov_b32 s{sCNT}, 0")
a("L_pollh:")
for t in range(4):
    a(f"buffer_load_dwordx4 {v(HB+4*t,4)}, v{vHl}, {srd(R_WS)}, s{sT[1]} offen offset:{64*t} sc1")
a("s_waitcnt vmcnt(0)")
poison_check(list(range(HB, HB + 16)), t3)
poll_tail("L_pollh", opt("hsleep", 1))
a("s_mov_b64 exec, -1")
stamp("h gathered")
for t in range(4):
    for k in range(3):
        mfma(GD+4*k, FGU+16*k+4*t if k < 2 else HB+4*t, HB+4*t, t == 0)
a(f"""
s_mov_b64 exec, s[{sM4}:{sM4+1}]
ds_write_b128 v{vFXw}, {v(GD,4)}
ds_write_b128 v{vFXw}, {v(GD+4,4)} offset:256
s_mov_b64 exec, 0x000f000f
ds_write_b128 v{vFXw}, {v(GD+8,4)} offset:512
s_mov_b64 exec, -1
s_waitcnt lgkmcnt(0)
s_barrier
""")
for k in range(4):
    a(f"ds_read_b32 v{FXR+8+k}, v{vSq} offset:{640*k}")
    a(f"ds_read_b32 v{FXR+12+k}, v{vSm} offset:{640*k}")
for k in range(4):
    a(f"ds_read_b32 v{FXR+2*k}, v{vFXr} offset:{640*k}")
    a(f"ds_read_b32 v{FXR+2*k+1}, v{vFXr} offset:{640*k+256}")
gg, uu, sq, sm = vT[13], vT[14], vT[15], vT[16]
a(f"""
s_waitcnt lgkmcnt(8)
v_add_f32 v{sm}, v{FXR+12}, v{FXR+13}
v_add_f32 v{sq}, v{FXR+8}, v{FXR+9}
v_add_f32 v{sm}, v{sm}, v{FXR+14}
v_add_f32 v{sq}, v{sq}, v{FXR+10}
v_add_f32 v{sm}, v{sm}, v{FXR+15}
v_add_f32 v{sq}, v{sq}, v{FXR+11}
v_mul_f32 v{sm}, 0x3b000000, v{sm}
v_mul_f32 v{sq}, 0x3b000000, v{sq}
v_fma_f32 v{sq}, -v{sm}, v{sm}, v{sq}
v_max_f32 v{sq}, 0, v{sq}
v_add_f32 v{sq}, 0x3727c5ac, v{sq}
v_rsq_f32 v{sq}, v{sq}
s_waitcnt lgkmcnt(0)
v_add_f32 v{gg}, v{FXR}, v{FXR+2}
v_add_f32 v{uu}, v{FXR+1}, v{FXR+3}
v_add_f32 v{gg}, v{gg}, v{FXR+4}
v_add_f32 v{uu}, v{uu}, v{FXR+5}
v_add_f32 v{gg}, v{gg}, v{FXR+6}
v_add_f32 v{uu}, v{uu}, v{FXR+7}
v_fma_f32 v{gg}, -v{sm}, v{csg}, v{gg}
v_fma_f32 v{uu}, -v{sm}, v{csu}, v{uu}
v_mul_f32 v{gg}, v{gg}, v{sq}
v_mul_f32 v{uu}, v{uu}, v{sq}
v_mul_f32 v{sm}, {f32(-math.log2(math.e))}, v{gg}
v_exp_f32 v{sm}, v{sm}
v_mul_f32 v{gg}, v{gg}, v{uu}
v_add_f32 v{sm}, 1.0, v{sm}
v_rcp_f32 v{sm}, v{sm}
v_mul_f32 v{gg}, v{gg}, v{sm}
v_mov_b32_dpp v{uu}, v{gg} row_shl:4 row_mask:0xf bank_mask:0xf
v_cvt_pk_bf16_f32 v{FXR}, v{gg}, v{uu}
v_mov_b32_dpp v{FXR+1}, v{FXR} row_shl:8 row_mask:0xf bank_mask:0xf
""")
for mt in range(8): mfma(DD+4*mt, FD+2*mt, FXR, True, k16=True)
a(f"s_mov_b64 exec, s[{sM4}:{sM4+1}]")
for p in range(4):
    for k in range(4):
        a(f"v_cvt_pk_bf16_f32 v{DP+4*p+k}, v{DD+8*p+2*k}, v{DD+8*p+2*k+1}")
    a(f"buffer_store_dwordx4 {v(DP+4*p,4)}, v{vPF}, {srd(R_WS)}, s{sT[4+(p>>1)]} offen offset:{64*(p&1)} sc1")
a("s_mov_b64 exec, -1")
stamp("FFN published")
a("s_branch L_fin")

a("L_wave45:")
PZ = vT[4]
a(f"""
s_lshl_b32 s{sT[3]}, s{sK}, 16
s_lshl_b32 s{sT[4]}, s{sCH}, 17
s_add_u32 s{sT[4]}, s{sT[4]}, s{sT[3]}
s_lshl_b32 s{sT[1]}, s{sK}, 4
v_add_u32 v{vT[11]}, s{sT[1]}, v{vFL}
""")
def dma_all(win, tag, nclr_after):
    signalled = 0
    torder = [0, 2, 1, 3]
    goat = GOAT_A if tag == "A" else GOAT_F
    for idx in range(64):
        i = torder[idx // 16] * 16 + (idx % 16)
        if i % 4 == 0:
            a(f"s_add_u32 m0, s{sT[3]}, {i*1024}")
            a(f"s_add_u32 s{sT[5]}, s{sT[4]}, {i*1024}")
        tmp = vT[i & 1]
        a(f"v_xor_b32 v{tmp}, {fsw(i & 15)*16}, v{vL16}")
        if idx >= win:
            a(f"s_waitcnt vmcnt({win-1})")
            done = idx - win + 1
            if done >= 16 * (signalled + 1):
                lds_signal(F_TILE + 4 * torder[signalled], base=vT[11]); signalled += 1
        a(f"buffer_load_dwordx4 v{tmp}, {srd(R_CKV)}, s{sT[5]} offen offset:{(i&3)*1024}{P_CK} lds")
        if idx == goat - 1: lds_signal(F_GO)
    lds_signal(F_QI)
    stamp("dma issued")
    while signalled < 4:
        a(f"s_waitcnt vmcnt({64 - 16*(signalled+1)})")
        lds_signal(F_TILE + 4 * torder[signalled], base=vT[11]); signalled += 1
    stamp("ckv landed")
a(f"""
s_cmp_eq_u32 s{sHGB}, 0
s_cbranch_scc1 L_w45free
s_setprio 3
s_waitcnt vmcnt(0)
""")
ln_row()
lds_signal(F_XN)
a("s_setprio 0")
lds_wait(F_WQI, 4, sleep=2)
dma_all(DWIN_A, "A", False)
a("s_branch L_w45pf")
a("L_w45free:")
if UKGATE: lds_wait(F_WQI, 4, sleep=1)
dma_all(DWIN_F, "F", False)
a("L_w45pf:")
a(f"""
v_lshrrev_b32 v{t0}, 2, v{vL}
v_mul_u32_u24 v{t0}, 2752, v{t0}
v_and_b32 v{t1}, 3, v{vL}
v_lshlrev_b32 v{t1}, 7, v{t1}
v_min_u32 v{t1}, 348, v{t1}
v_add_u32 v{t0}, v{t0}, v{t1}
s_mul_i32 s{sT[1]}, s{sY}, {16*2752}
s_mul_i32 s{sT[2]}, s{sX}, 352
s_add_u32 s{sT[1]}, s{sT[1]}, s{sT[2]}
v_min_u32 v{t1}, 21, v{vL}
v_lshlrev_b32 v{t1}, 7, v{t1}
s_mul_i32 s{sT[2]}, s{sX}, {176*1024}
s_lshl_b32 s{sT[3]}, s{sY}, 1
s_add_u32 s{sT[3]}, s{sT[3]}, s{sK}
s_mul_i32 s{sT[3]}, s{sT[3]}, {22*128}
s_add_u32 s{sT[2]}, s{sT[2]}, s{sT[3]}
""")
def ffn_pf(tag, s1, s2):
    a(f"""
    buffer_load_dword v{vDUM+1}, v{t1}, {srd(R_WD)}, s{s2} offen
    s_cmp_eq_u32 s{sW}, 5
    s_cbranch_scc1 L_w5up{tag}
    buffer_load_dword v{vDUM}, v{t0}, {srd(R_WG)}, s{s1} offen
    s_branch L_pfd{tag}
    L_w5up{tag}:
    buffer_load_dword v{vDUM}, v{t0}, {srd(R_WU)}, s{s1} offen
    L_pfd{tag}:
    """)
if PFWHEN == 0:
    lds_wait(F_RI, 2, sleep=4)
    ffn_pf("a", sT[1], sT[2])
elif PFWHEN == 2:
    lds_wait(F_QS, 4, sleep=1)
    ffn_pf("a", sT[1], sT[2])
elif PFWHEN == 3:
    lds_wait(F_QS, 4, sleep=1)
    ffn_pf("a", sT[1], sT[2])
else:
    a(f"s_mov_b32 s{sT[9]}, s{sT[1]}")
    a(f"s_mov_b32 s{sT[10]}, s{sT[2]}")
a("s_branch L_phaseC")

a("L_wave67:")
RAW = 32
a(f"s_and_b32 s{sT[0]}, s{sW}, 1")
if CODEPF:
    a(f"""
    s_getpc_b64 s[{sC2}:{sC2+1}]
    L_pcref:
    s_sub_u32 s{sC2}, s{sC2}, L_pcref-{KNAME}
    s_subb_u32 s{sC2+1}, s{sC2+1}, 0
    v_lshlrev_b32 v{t0}, 7, v{vL}
    s_lshl_b32 s{sT[2]}, s{sT[0]}, 13
    v_add_u32 v{t0}, s{sT[2]}, v{t0}
    v_add_u32 v{t1}, 16384, v{t0}
    v_min_u32 v{t0}, L_end-{KNAME}, v{t0}
    v_min_u32 v{t1}, L_end-{KNAME}, v{t1}
    """)
a(f"""
s_cmp_eq_u32 s{sHGB}, 0
s_cbranch_scc1 L_noLN
s_setprio 3
s_waitcnt vmcnt(0)
""")
ln_row()
lds_signal(F_XN)
stamp("LN done")
a("s_branch L_w67rest")
a("L_noLN:")
if CODEPF:
    a(f"""
    global_load_dword v{vDUM}, v{t0}, s[{sC2}:{sC2+1}]
    global_load_dword v{vDUM+1}, v{t1}, s[{sC2}:{sC2+1}]
    """)
a("L_w67rest:")
def clears():
    a(f"""
    v_and_b32 v{vT[8]}, 7, v{vL}
    v_lshlrev_b32 v{vT[8]}, 4, v{vT[8]}
    v_bfe_u32 v{vT[9]}, v{vL}, 3, 1
    v_lshl_add_u32 v{vT[10]}, v{vT[9]}, 14, v{vT[8]}
    v_lshl_add_u32 v{vT[10]}, v{vG}, 17, v{vT[10]}
    s_lshl_b32 s{sT[1]}, s{sMH}, 1
    s_add_u32 s{sT[1]}, s{sT[1]}, s{sT[0]}
    s_lshl_b32 s{sT[1]}, s{sT[1]}, 15
    s_lshl_b32 s{sT[2]}, s{sH}, 2
    s_add_u32 s{sT[2]}, s{sT[2]}, s{sCQ}
    s_lshl_b32 s{sT[2]}, s{sT[2]}, 7
    s_add_u32 s{sT[1]}, s{sT[1]}, s{sT[2]}
    s_add_u32 s{sT[1]}, s{sT[1]}, {PA_OFF}
    buffer_store_dwordx4 {v(PZ,4)}, v{vT[10]}, {srd(R_WS)}, s{sT[1]} offen sc1
    """)
a(f"""
v_mov_b32 v{PZ}, -1
v_mov_b32 v{PZ+1}, -1
v_mov_b32 v{PZ+2}, -1
v_mov_b32 v{PZ+3}, -1
""")
clears()
a(f"""
s_cmp_eq_u32 s{sISR}, 0
s_cbranch_scc1 L_noclrH
s_cmp_lg_u32 s{sW}, 7
s_cbranch_scc1 L_noclrH
s_lshl_b32 s{sT[1]}, s{sRHO}, 7
s_add_u32 s{sT[1]}, s{sT[1]}, {HG_OFF}
s_mov_b64 exec, 0xff
buffer_store_dwordx4 {v(PZ,4)}, v{vL16}, {srd(R_WS)}, s{sT[1]} offen sc1
s_mov_b64 exec, -1
L_noclrH:
s_cmp_eq_u32 s{sISF}, 0
s_cbranch_scc1 L_noclrF
v_mul_u32_u24 v{vT[10]}, 12288, v{vT[9]}
v_add_u32 v{vT[10]}, v{vT[10]}, v{vT[8]}
s_mov_b32 s{sT[1]}, 98304
v_mul_lo_u32 v{vT[9]}, v{vG}, s{sT[1]}
v_add_u32 v{vT[10]}, v{vT[10]}, v{vT[9]}
s_mul_i32 s{sT[1]}, s{sT[0]}, 49152
s_lshl_b32 s{sT[2]}, s{sPHI}, 7
s_add_u32 s{sT[1]}, s{sT[1]}, s{sT[2]}
s_add_u32 s{sT[1]}, s{sT[1]}, {PF_OFF}
s_add_u32 s{sT[2]}, s{sT[1]}, 24576
buffer_store_dwordx4 {v(PZ,4)}, v{vT[10]}, {srd(R_WS)}, s{sT[1]} offen sc1
buffer_store_dwordx4 {v(PZ,4)}, v{vT[10]}, {srd(R_WS)}, s{sT[2]} offen sc1
L_noclrF:
s_waitcnt vmcnt(0)
""")
lds_signal(F_CLR)
a("s_setprio 0")
a(f"""
v_lshlrev_b32 v{vT[4]}, 13, v{vG}
v_lshl_add_u32 v{vT[4]}, v{vN}, 4, v{vT[4]}
s_lshl_b32 s{sT[1]}, s{sCQ}, 7
s_lshl_b32 s{sT[2]}, s{sT[0]}, 6
s_add_u32 s{sT[1]}, s{sT[1]}, s{sT[2]}
s_lshl_b32 s{sT[1]}, s{sT[1]}, 13
s_lshl_b32 s{sT[2]}, s{sH}, 8
s_add_u32 s{sT[1]}, s{sT[1]}, s{sT[2]}
v_lshrrev_b32 v{vT[5]}, 5, v{vL}
v_lshlrev_b32 v{vT[5]}, 10, v{vT[5]}
v_and_b32 v{vT[6]}, 31, v{vL}
v_lshl_add_u32 v{vT[5]}, v{vT[6]}, 4, v{vT[5]}
s_lshl_b32 s{sT[2]}, s{sH}, 17
s_lshl_b32 s{sT[3]}, s{sT[0]}, 16
s_add_u32 s{sT[2]}, s{sT[2]}, s{sT[3]}
s_lshl_b32 s{sT[3]}, s{sMH}, 9
s_add_u32 s{sT[2]}, s{sT[2]}, s{sT[3]}
s_waitcnt vmcnt(0)
""")
lds_wait(F_QI, 6, sleep=2)
for i in range(16):
    if i: a(f"s_add_u32 s{sT[1]}, s{sT[1]}, 32768")
    if i >= RWIN: a(f"s_waitcnt vmcnt({RWIN-1})")
    a(f"buffer_load_dwordx4 {v(RAW+4*i,4)}, v{vT[4]}, {srd(R_WUV)}, s{sT[1]} offen{P_R}")
for i in range(32):
    if i and i % 2 == 0: a(f"s_add_u32 s{sT[2]}, s{sT[2]}, 4096")
    if i + 16 >= RWIN: a(f"s_waitcnt vmcnt({RWIN-1})")
    a(f"buffer_load_dwordx4 {v(RAW+64+4*i,4)}, v{vT[5]}, {srd(R_WO)}, s{sT[2]} offen offset:{(i&1)*2048}{P_R}")
lds_signal(F_RI)
stamp("rest issued")
a(f"""
v_lshlrev_b32 v{t0}, 5, v{vG}
v_lshlrev_b32 v{t1}, 4, v{vN}
v_xor_b32 v{t0}, v{t0}, v{t1}
v_lshl_add_u32 v{t0}, v{vG}, 8, v{t0}
s_lshl_b32 s{sT[1]}, s{sT[0]}, 14
v_add_u32 v{t0}, s{sT[1]}, v{t0}
v_xor_b32 v{t1}, 128, v{t0}
v_lshrrev_b32 v{t2}, 5, v{vL}
v_and_b32 v{vT[4]}, 31, v{vL}
v_lshlrev_b32 v{vT[4]}, 4, v{vT[4]}
v_lshlrev_b32 v{t3}, 5, v{t2}
v_xor_b32 v{vT[4]}, v{vT[4]}, v{t3}
v_lshl_add_u32 v{vT[4]}, v{t2}, 9, v{vT[4]}
s_lshl_b32 s{sT[1]}, s{sT[0]}, 15
s_add_u32 s{sT[1]}, s{sT[1]}, {L_WO}
v_add_u32 v{vT[4]}, s{sT[1]}, v{vT[4]}
v_xor_b32 v{vT[5]}, 64, v{vT[4]}
v_xor_b32 v{vT[6]}, 128, v{vT[4]}
v_xor_b32 v{vT[7]}, 192, v{vT[4]}
""")
lds_wait(F_BD, 4, sleep=1)
for i in range(16):
    if 47 - i < RWIN: a(f"s_waitcnt vmcnt({47-i})")
    a(f"ds_write_b128 v{t1 if (i>>1)&1 else t0}, {v(RAW+4*i,4)} offset:{L_WUV + 1024*i}")
for i in range(32):
    if 31 - i < RWIN: a(f"s_waitcnt vmcnt({31-i})")
    sel = (i & 1) | (((i >> 2) & 1) << 1)
    a(f"ds_write_b128 v{vT[4+sel]}, {v(RAW+64+4*i,4)} offset:{1024*i}")
lds_signal(F_ST)
stamp("images written")

a("L_phaseC:")
FUV, FO, CB, XD, AD, AP = 32, 64, 128, 144, 160, 176
vUVa, vOa, vCLr, vCXw, vCXr, vPA = vT[4], vT[5], vT[6], vT[7], vT[8], vT[9]
a(f"""
v_bfe_u32 v{vT[12]}, v{vL}, 2, 2
v_and_b32 v{vT[13]}, 1, v{vG}
v_lshl_add_u32 v{vT[13]}, v{vT[13]}, 2, v{vT[12]}
v_lshl_add_u32 v{vT[12]}, v{vG}, 3, v{vT[12]}
v_and_b32 v{vT[14]}, 3, v{vL}
v_lshlrev_b32 v{vT[14]}, 3, v{vT[14]}
s_lshl_b32 s{sT[0]}, s{sK}, 1
v_xor_b32 v{vUVa}, s{sT[0]}, v{vT[13]}
v_lshl_add_u32 v{vUVa}, v{vUVa}, 5, v{vT[14]}
v_lshl_add_u32 v{vUVa}, v{vT[12]}, 8, v{vUVa}
s_lshl_b32 s{sT[0]}, s{sK}, 2
v_xor_b32 v{vOa}, s{sT[0]}, v{vT[13]}
v_lshl_add_u32 v{vOa}, v{vOa}, 5, v{vT[14]}
v_lshl_add_u32 v{vOa}, v{vT[12]}, 9, v{vOa}
v_add_u32 v{vOa}, {L_WO}, v{vOa}
v_and_b32 v{vT[12]}, 3, v{vN}
v_mul_u32_u24 v{vT[12]}, 272, v{vT[12]}
v_lshl_add_u32 v{vCXr}, v{vG}, 4, v{vT[12]}
v_add_u32 v{vCLr}, {L_CL}, v{vCXr}
v_add_u32 v{vCXr}, {L_CX}, v{vCXr}
v_lshl_add_u32 v{vCXw}, v{vG}, 3, v{vT[12]}
s_lshl_b32 s{sT[0]}, s{sK}, 6
s_add_u32 s{sT[0]}, s{sT[0]}, {L_CX}
v_add_u32 v{vCXw}, s{sT[0]}, v{vCXw}
v_lshlrev_b32 v{vPA}, 4, v{vG}
v_lshl_add_u32 v{vPA}, v{vN}, 17, v{vPA}
s_lshl_b32 s{sT[1]}, s{sMH}, 2
s_add_u32 s{sT[1]}, s{sT[1]}, s{sK}
s_lshl_b32 s{sT[1]}, s{sT[1]}, 14
s_lshl_b32 s{sT[2]}, s{sH}, 2
s_add_u32 s{sT[2]}, s{sT[2]}, s{sCQ}
s_lshl_b32 s{sT[2]}, s{sT[2]}, 7
s_add_u32 s{sT[1]}, s{sT[1]}, s{sT[2]}
s_add_u32 s{sT[1]}, s{sT[1]}, {PA_OFF}
""")
lds_wait(F_ST, 2, sleep=1)
for mt in range(2):
    if mt: a(f"v_xor_b32 v{vT[12]}, 32, v{vUVa}")
    for ks in range(4):
        for vv in range(2):
            a(f"ds_read_b64_tr_b16 {v(FUV+16*mt+4*ks+2*vv,2)}, v{vT[12] if mt else vUVa} offset:{L_WUV + (32*ks+4*vv)*256}")
for mt in range(4):
    if mt: a(f"v_xor_b32 v{vT[12]}, {32*mt}, v{vOa}")
    for ks in range(4):
        for vv in range(2):
            a(f"ds_read_b64_tr_b16 {v(FO+16*mt+4*ks+2*vv,2)}, v{vT[12] if mt else vOa} offset:{(32*ks+4*vv)*512}")
stamp("weights staged")
a("s_setprio 2")
def spec_cl():
    for ks in range(4): a(f"ds_read_b128 {v(CB+4*ks,4)}, v{vCLr} offset:{64*ks}")
lds_wait(F_CL, 4, spec_cl)
if PFWHEN == 1:
    a(f"""
    s_cmp_ge_u32 s{sW}, 6
    s_cbranch_scc1 L_nopf2
    """)
    ffn_pf("b", sT[9], sT[10])
    a("L_nopf2:")
for ks in range(4):
    for mt in range(2): mfma(XD+4*mt, FUV+16*mt+4*ks, CB+4*ks, ks == 0)
for k in range(4): a(f"v_cvt_pk_bf16_f32 v{XD+8+k}, v{XD+2*k}, v{XD+2*k+1}")
a(f"""
s_mov_b64 exec, s[{sM4}:{sM4+1}]
ds_write_b64 v{vCXw}, {v(XD+8,2)}
ds_write_b64 v{vCXw}, {v(XD+10,2)} offset:32
""")
lds_signal(F_CX)
def spec_cx():
    for ks in range(4): a(f"ds_read_b128 {v(CB+4*ks,4)}, v{vCXr} offset:{64*ks}")
lds_wait(F_CX, 4, spec_cx)
for p in range(2):
    for ks in range(4):
        for k in range(2):
            mt = 2 * p + k
            mfma(AD+4*mt, FO+16*mt+4*ks, CB+4*ks, ks == 0)
a(f"s_mov_b64 exec, s[{sM4}:{sM4+1}]")
for p in range(2):
    for k in range(4): a(f"v_cvt_pk_bf16_f32 v{AP+4*p+k}, v{AD+8*p+2*k}, v{AD+8*p+2*k+1}")
    a(f"buffer_store_dwordx4 {v(AP+4*p,4)}, v{vPA}, {srd(R_WS)}, s{sT[1]} offen offset:{64*p} sc1")
a("s_mov_b64 exec, -1")
stamp("attn partial published")
a("s_waitcnt vmcnt(0)")

a("L_fin:")
if PROF:
    stamp("end")
    a(f"""
    s_lshl_b32 s{sT[0]}, s2, 3
    s_add_u32 s{sT[0]}, s{sT[0]}, s{sW}
    s_lshl_b32 s{sT[0]}, s{sT[0]}, 8
    s_add_u32 s{sT[0]}, s{sT[0]}, {TS_OFF}
    v_lshlrev_b32 v{t0}, 2, v{vL}
    buffer_store_dword v{vTSA}, v{t0}, {srd(R_WS)}, s{sT[0]} offen
    """)
a("L_end:")

hdr = open("sequential_preLN__compressed_kv_cla__swiglu_ffn__decode.s.ref").read().split("; @launch")[0]
open(OUT, "w").write(wrap_single(a.text(), 256, 512, LDS_BYTES, vgpr=256, header=hdr))
print("instructions:", a.ninstr, file=sys.stderr)
```

```python
import sys, math, struct
from asmgen import *

def opt(name, default):
    for x in sys.argv[1:]:
        if x.startswith("--" + name + "="):
            return int(x.split("=")[1])
    return default
PROF = "--prof" in sys.argv
DBGT = "--dbgtime" in sys.argv
OUT = [a for a in sys.argv[1:] if not a.startswith("--")]
OUT = OUT[0] if OUT else "sequential_preLN__compressed_kv_cla__swiglu_ffn__decode.s"
POLL_MAX = 1 << 15
LSPIN_MAX = 1 << 20
DWIN_A = opt("dwina", 14)
DWIN_F = opt("dwinf", 20)
RWIN = opt("rwin", 12)
UKPF = opt("ukpf", 1)
CODEPF = opt("codepf", 1)
QSLEEP = opt("qsleep", 4)
OACK = opt("oack", 1)
POLS = [" nt", "", " sc0", " sc1", " sc0 nt"]
P_WQ = POLS[opt("pwq", 1)]; P_CK = POLS[opt("pck", 1)]; P_R = POLS[opt("pr", 1)]
AQ = opt("aq", 16)
PFWHEN = opt("pfwhen", 1)
MLSLEEP = opt("mlsleep", 2)
FFNDLY = opt("ffndly", 24)

EPOCH_OFF = 0x0
QA_OFF = 0x10000
HG_OFF = 0x58000
PA_OFF = 0x80000
PF_OFF = 0x100000
O_OFF = 0x200000
ML_OFF = 0x600000
TS_OFF = 0x1000000
WS_USED = 0x1100000

L_QS = 131072
L_XN = 147456
L_Q16 = 151616
L_MX = 152640
L_PX = 153152
L_CL = 157248
L_CX = 159488
L_RED = 160576
L_CS = 162624
L_FL = 163136
LDS_BYTES = 163840
L_WUV, L_WO = 0, 32768
L_G, L_U, L_WD = 98304, 114688, L_QS
L_FX = L_PX
(F_XN, F_CLR, F_QP, F_Q16, F_QS, F_P, F_GO, F_WQI) = [4 * i for i in range(8)]
F_TILE = 32
(F_RI, F_BD, F_ST, F_CL, F_CX, F_QI) = [64 + 4 * i for i in range(6)]
UKGATE = opt('ukgate', 0)
GOAT_A = opt('goata', 64)
GOAT_F = opt('goatf', 64)
L_QP = L_PX

sW, sX, sY, sH, sYP, sCQ, sMH, sHGB, sCH, sEP = 3, 4, 5, 6, 7, 8, 9, 10, 11, 12
sT = list(range(13, 24))
sO, sHA, sJQ, sPHI, sRHO, sISF, sISR, sCNT = 24, 25, 26, 27, 28, 29, 30, 31
R_X, R_CKV, R_WQ, R_WUK, R_WUV, R_WO, R_WG, R_WU, R_WD, R_OUT, R_WS, R_PF = [32 + 4 * i for i in range(12)]
sSELLO, sSELHI = 80, 81
sM8 = 82
sM4 = 84
sACC = 86
sC2 = 88
sTS = 90
sK = 92
def srd(r): return f"s[{r}:{r+3}]"
def f32(x): return "0x%08x" % struct.unpack("<I", struct.pack("<f", x))[0]

vL, vN, vG, vL16, vFL, vONE, vTSA = 1, 2, 3, 4, 5, 6, 7
vT = list(range(8, 32))
t0, t1, t2, t3 = vT[0], vT[1], vT[2], vT[3]
vSP = vT[23]
vDUM = vT[21]
def v(i, n=1): return f"v{i}" if n == 1 else f"v[{i}:{i+n-1}]"
def fsw(row): return 2 * ((row & 7) ^ (4 * (row >> 3))) + (row >> 3)

a = Asm()
stamps = {}
PROBE = [x.split("=", 1)[1].replace("_", " ") for x in sys.argv if x.startswith("--probe=")]
def stamp(name):
    if PROBE and PROBE[0] == name.replace("_", " ") and opt("plocal", 1):
        a("s_memrealtime s[94:95]")
        a("s_waitcnt lgkmcnt(0)")
    elif PROBE and PROBE[0] == name.replace("_", " "):
        a(f"""
        s_memrealtime s[94:95]
        s_waitcnt lgkmcnt(0)
        v_mov_b32 v{vT[19]}, 16
        v_mov_b32 v{vT[20]}, s94
        s_mov_b64 s[100:101], exec
        s_mov_b64 exec, 1
        global_atomic_umax v{vT[19]}, v{vT[20]}, s[98:99] sc1
        s_mov_b64 exec, s[100:101]
        """)
    if not PROF: return
    if name not in stamps:
        stamps[name] = len(stamps)
    i = stamps[name]
    a(f"""
    s_memrealtime s[{sTS}:{sTS+1}]
    s_waitcnt lgkmcnt(0)
    v_writelane_b32 v{vTSA}, s{sTS}, {i}
    """)
def cstamp(name):
    if not PROF: return
    name = "#" + name
    if name not in stamps:
        stamps[name] = len(stamps)
    a(f"s_add_u32 s{sTS}, s{sCNT}, 1")
    a(f"v_writelane_b32 v{vTSA}, s{sTS}, {stamps[name]}")
def poll_tail(name, sleep=0):
    done = a.newlabel("Lpd")
    a(f"""
    s_cmp_eq_u64 vcc, 0
    s_cbranch_scc1 {done}
    """)
    if sleep: a(f"s_sleep {sleep}")
    a(f"""
    s_add_u32 s{sCNT}, s{sCNT}, 1
    s_cmp_lt_u32 s{sCNT}, {POLL_MAX}
    s_cbranch_scc1 {name}
    """)
    a.label(done)
def poison_check(regs, tmp):
    regs = list(regs); n = len(regs)
    a(f"v_max3_u32 v{tmp}, v{regs[0]}, v{regs[1]}, v{regs[2]}")
    i = 3
    while i + 1 < n:
        a(f"v_max3_u32 v{tmp}, v{tmp}, v{regs[i]}, v{regs[i+1]}"); i += 2
    if i < n: a(f"v_max_u32 v{tmp}, v{tmp}, v{regs[i]}")
    a(f"v_cmp_eq_u32 vcc, -1, v{tmp}")
def lds_signal(off, base=None):
    a(f"""
    s_mov_b64 exec, 1
    ds_add_u32 v{vFL if base is None else base}, v{vONE} offset:{off}
    s_mov_b64 exec, -1
    """)
def lds_wait(off, target, spec=None, sleep=0, base=None):
    lp, dn = a.newlabel("Lw"), a.newlabel("Lwd")
    a(f"s_mov_b32 s{sCNT}, 0")
    a.label(lp)
    a(f"ds_read_b32 v{vSP}, v{vFL if base is None else base} offset:{off}")
    if spec: spec()
    a(f"""
    s_waitcnt lgkmcnt(0)
    v_readfirstlane_b32 s{sACC}, v{vSP}
    s_cmp_ge_u32 s{sACC}, {target}
    s_cbranch_scc1 {dn}
    """)
    if sleep: a(f"s_sleep {sleep}")
    a(f"""
    s_add_u32 s{sCNT}, s{sCNT}, 1
    s_cmp_lt_u32 s{sCNT}, {LSPIN_MAX}
    s_cbranch_scc1 {lp}
    """)
    a.label(dn)
def rne_bf16(dst, src):
    a(f"v_cvt_pk_bf16_f32 v{dst}, v{src}, v{src}")
    a(f"v_and_b32 v{dst}, 0xffff0000, v{dst}")
def mfma(d, A, B, first, k16=False):
    n = 2 if k16 else 4
    op = "v_mfma_f32_16x16x16_bf16" if k16 else "v_mfma_f32_16x16x32_bf16"
    a(f"{op} {v(d,4)}, {v(A,n)}, {v(B,n)}, {'0' if first else v(d,4)}")

XR, XF = 32, 40
def ln_row():
    def wave_sum(x):
        for ctl in ["row_shr:1", "row_shr:2", "row_shr:4", "row_shr:8"]:
            a(f"v_add_f32_dpp v{x}, v{x}, v{x} {ctl} row_mask:0xf bank_mask:0xf bound_ctrl:0")
        a(f"v_add_f32_dpp v{x}, v{x}, v{x} row_bcast:15 row_mask:0xa bank_mask:0xf")
        a(f"v_add_f32_dpp v{x}, v{x}, v{x} row_bcast:31 row_mask:0xc bank_mask:0xf")
    xr, xf = XR, XF
    for i in range(4):
        a(f"v_lshlrev_b32 v{xf+2*i}, 16, v{xr+i}")
        a(f"v_and_b32 v{xf+2*i+1}, 0xffff0000, v{xr+i}")
    a(f"v_add_f32 v{xf+12}, v{xf}, v{xf+1}")
    for i in range(2, 8): a(f"v_add_f32 v{xf+12}, v{xf+12}, v{xf+i}")
    wave_sum(xf + 12)
    a(f"v_mov_b32 v{xf+15}, 0x3b000000")
    a(f"v_readlane_b32 s{sT[6]}, v{xf+12}, 63")
    a(f"v_mul_f32 v{xf+13}, s{sT[6]}, v{xf+15}")
    for i in range(8):
        a(f"v_sub_f32 v{xf+14}, v{xf+i}, v{xf+13}")
        if i == 0: a(f"v_mul_f32 v{xf+12}, v{xf+14}, v{xf+14}")
        else: a(f"v_fmac_f32 v{xf+12}, v{xf+14}, v{xf+14}")
    rne_bf16(xf + 13, xf + 13)
    wave_sum(xf + 12)
    for i in range(8): a(f"v_sub_f32 v{xf+i}, v{xf+i}, v{xf+13}")
    a(f"v_readlane_b32 s{sT[6]}, v{xf+12}, 63")
    for i in range(4): a(f"v_cvt_pk_bf16_f32 v{xf+8+i}, v{xf+2*i}, v{xf+2*i+1}")
    a(f"v_mul_f32 v{xf+12}, s{sT[6]}, v{xf+15}")
    rne_bf16(xf + 12, xf + 12)
    a(f"v_add_f32 v{xf+12}, 0x3727c5ac, v{xf+12}")
    rne_bf16(xf + 12, xf + 12)
    a(f"v_sqrt_f32 v{xf+12}, v{xf+12}")
    for i in range(4):
        a(f"v_lshlrev_b32 v{xf+2*i}, 16, v{xf+8+i}")
        a(f"v_and_b32 v{xf+2*i+1}, 0xffff0000, v{xf+8+i}")
    rne_bf16(xf + 12, xf + 12)
    a(f"v_rcp_f32 v{xf+12}, v{xf+12}")
    a(f"s_mul_i32 s{sT[6]}, s{sK}, 1040")
    a(f"s_add_u32 s{sT[6]}, s{sT[6]}, {L_XN}")
    a(f"v_add_u32 v{xf+15}, s{sT[6]}, v{vL16}")
    for i in range(8): a(f"v_mul_f32 v{xf+i}, v{xf+i}, v{xf+12}")
    for i in range(4): a(f"v_cvt_pk_bf16_f32 v{xf+8+i}, v{xf+2*i}, v{xf+2*i+1}")
    a(f"ds_write_b128 v{xf+15}, {v(xf+8,4)}")

EARLYPF = f"""s_getpc_b64 s[{sC2}:{sC2+1}]
v_lshlrev_b32 v{t1}, 6, v0
v_min_u32 v{t1}, L_end-{KNAME}-256, v{t1}
global_load_dword v{vDUM}, v{t1}, s[{sC2}:{sC2+1}]""" if opt("earlypf", 1) else ""
if opt("earlypf", 1): CODEPF = 0
WQ, FR, AC, BX, UK = 32, 160, 192, 224, 32
vWQ, vUK = vT[4], vT[5]
def wq_kstep(u):
    a(f"""
    s_add_u32 s{sT[2]}, s{sJQ}, {u}
    s_and_b32 s{sT[2]}, s{sT[2]}, 3
    s_lshl_b32 s{sT[2]}, s{sT[2]}, 18
    s_add_u32 s{sT[3]}, s{sT[2]}, s{sT[0]}
    """)
    if u == 0: a("s_waitcnt lgkmcnt(0)")
    for e in range(8):
        if e: a(f"s_add_u32 s{sT[3]}, s{sT[3]}, 8192")
        a(f"buffer_load_dwordx4 {v(WQ+4*(8*u+e),4)}, v{vWQ}, {srd(R_WQ)}, s{sT[3]} offen{P_WQ}")
def wq_lines(u):
    L = [[f"s_add_u32 s{sT[2]}, s{sJQ}, {u}", f"s_and_b32 s{sT[2]}, s{sT[2]}, 3", f"s_lshl_b32 s{sT[2]}, s{sT[2]}, 18", f"s_add_u32 s{sT[3]}, s{sT[2]}, s{sT[0]}"]]
    for e in range(8):
        if e: L.append([f"s_add_u32 s{sT[3]}, s{sT[3]}, 8192"])
        L[-1].append(f"buffer_load_dwordx4 {v(WQ+4*(8*u+e),4)}, v{vWQ}, {srd(R_WQ)}, s{sT[3]} offen{P_WQ}")
    return L
def uk_lines():
    return [[f"buffer_load_dwordx4 {v(UK+16*mt+4*t,4)}, v{vUK}, {srd(R_WUK)}, s{sT[4+mt]} offen offset:{64*t}{P_WQ}"] for mt in range(2) for t in range(4)]
def q_kstep(u, extra=None):
    for jj in range(8):
        if extra:
            for l in extra[jj]: a(l)
        for p in range(4):
            sel = sSELHI if (jj & 1) else sSELLO
            a(f"v_perm_b32 v{FR+4*jj+p}, v{WQ+4*(8*u+2*p+1)+(jj>>1)}, v{WQ+4*(8*u+2*p)+(jj>>1)}, s{sel}")
        if jj >= 1: mfma(AC+4*(jj-1), FR+4*(jj-1), BX+4*u, u == 0)
    mfma(AC+28, FR+28, BX+4*u, u == 0)
def srdw(lst):
    for r, nb in lst:
        a(f"s_mov_b32 s{r+2}, {nb}")
        a(f"s_mov_b32 s{r+3}, 0x20000")
a(f"""
s_load_dwordx2 s[{R_WQ}:{R_WQ+1}], s[0:1], 16
s_load_dwordx2 s[{R_X}:{R_X+1}], s[0:1], 0
s_load_dwordx2 s[{R_WUK}:{R_WUK+1}], s[0:1], 24
s_load_dwordx2 s[{R_CKV}:{R_CKV+1}], s[0:1], 8
s_load_dwordx2 s[{R_WS}:{R_WS+1}], s[0:1], 96
{"s_memrealtime s[94:95]" if DBGT else ""}
s_cmp_ge_u32 s2, 256
s_cbranch_scc1 L_end
{EARLYPF}
v_lshrrev_b32 v{t0}, 6, v0
v_and_b32 v{vL}, 63, v0
v_and_b32 v{vN}, 15, v0
v_readfirstlane_b32 s{sW}, v{t0}
v_bfe_u32 v{vG}, v0, 4, 2
v_lshlrev_b32 v{vL16}, 4, v{vL}
v_lshlrev_b32 v{vWQ}, 16, v{vG}
v_lshl_add_u32 v{vWQ}, v{vN}, 4, v{vWQ}
s_and_b32 s{sX}, s2, 7
s_lshr_b32 s{sYP}, s2, 4
s_and_b32 s{sHA}, s{sYP}, 3
s_lshl2_add_u32 s{sHA}, s{sX}, s{sHA}
s_lshr_b32 s{sJQ}, s{sYP}, 2
s_lshl_b32 s{sT[1]}, s{sHA}, 8
s_and_b32 s{sK}, s{sW}, 3
""")
srdw([(R_WQ, 4 << 20), (R_X, 4096), (R_WUK, 4 << 20)])
a(f"""
s_bitcmp1_b32 s2, 3
s_cbranch_scc1 L_f0
s_cmp_ge_u32 s{sW}, 4
s_cbranch_scc1 L_al0
s_lshl_b32 s{sT[0]}, s{sW}, 20
s_add_u32 s{sT[0]}, s{sT[0]}, s{sT[1]}
""")
wq_kstep(0)
a(f"""
s_branch L_j0
L_al0:
s_setprio 3
s_lshl_b32 s{sT[2]}, s{sK}, 10
v_lshlrev_b32 v{t0}, 2, v{vL}
v_add_u32 v{t0}, {L_FL}, v{t0}
v_mov_b32 v{t3}, 0
ds_write_b32 v{t0}, v{t3}
v_lshlrev_b32 v{t0}, 3, v{vN}
v_add_u32 v{t0}, {L_MX}, v{t0}
v_mov_b32 v{t2}, 0xff800000
ds_write2_b32 v{t0}, v{t2}, v{t3} offset0:0 offset1:1
s_waitcnt lgkmcnt(0)
buffer_load_dwordx4 {v(XR,4)}, v{vL16}, {srd(R_X)}, s{sT[2]} offen
s_branch L_j0
L_f0:
s_cmp_ge_u32 s{sW}, 4
s_cbranch_scc1 L_f1
v_lshrrev_b32 v{t2}, 1, v{vL}
v_lshlrev_b32 v{t2}, 13, v{t2}
v_and_b32 v{t3}, 1, v{vL}
v_lshl_add_u32 v{t2}, v{t3}, 7, v{t2}
s_lshl2_add_u32 s{sT[6]}, s{sJQ}, s{sW}
s_lshl_b32 s{sT[6]}, s{sT[6]}, 18
s_add_u32 s{sT[6]}, s{sT[6]}, s{sT[1]}
s_waitcnt lgkmcnt(0)
buffer_load_dword v{vDUM+1}, v{t2}, {srd(R_WUK)}, s{sT[6]} offen{P_WQ}
s_branch L_j0
L_f1:
v_lshlrev_b32 v{t0}, 2, v{vL}
v_add_u32 v{t0}, {L_FL}, v{t0}
v_mov_b32 v{t3}, 0
ds_write_b32 v{t0}, v{t3}
v_lshlrev_b32 v{t0}, 3, v{vN}
v_add_u32 v{t0}, {L_MX}, v{t0}
v_mov_b32 v{t2}, 0xff800000
ds_write2_b32 v{t0}, v{t2}, v{t3} offset0:0 offset1:1
s_waitcnt lgkmcnt(0)
L_j0:
s_barrier
""")
if PROF: a(f"v_mov_b32 v{vTSA}, 0")
stamp("start")
a(f"""
s_load_dword s{sEP}, s[{R_WS}:{R_WS+1}], {EPOCH_OFF}
s_load_dwordx2 s[{R_WUV}:{R_WUV+1}], s[0:1], 32
s_load_dwordx2 s[{R_WO}:{R_WO+1}], s[0:1], 40
s_load_dwordx2 s[{R_WG}:{R_WG+1}], s[0:1], 56
s_load_dwordx2 s[{R_WU}:{R_WU+1}], s[0:1], 64
s_load_dwordx2 s[{R_WD}:{R_WD+1}], s[0:1], 72
s_load_dwordx2 s[{R_OUT}:{R_OUT+1}], s[0:1], 80
{"s_load_dwordx2 s[98:99], s[0:1], 88" if DBGT else ""}
{"s_memtime s[96:97]" if DBGT else ""}
v_mov_b32 v{vFL}, {L_FL}
v_mov_b32 v{vONE}, 1
""")
srdw([(R_CKV, 16 << 20), (R_WS, WS_USED), (R_WUV, 4 << 20), (R_WO, 4 << 20),
      (R_WG, 512 * 1376 * 2), (R_WU, 512 * 1376 * 2), (R_WD, 512 * 1376 * 2), (R_OUT, 4096), (R_PF, 86 * 128)])
a(f"""
s_lshr_b32 s{sY}, s2, 3
s_and_b32 s{sT[4]}, s{sY}, 1
s_xor_b32 s{sHGB}, s{sT[4]}, 1
s_lshl_b32 s{sH}, s{sT[4]}, 4
s_lshl1_add_u32 s{sH}, s{sX}, s{sH}
s_and_b32 s{sT[5]}, s{sYP}, 1
s_add_u32 s{sH}, s{sH}, s{sT[5]}
s_bfe_u32 s{sCQ}, s{sY}, 0x20002
s_lshr_b32 s{sMH}, s{sY}, 4
s_lshl4_add_u32 s{sCH}, s{sX}, s{sYP}
s_mov_b32 s{sSELLO}, 0x05040100
s_mov_b32 s{sSELHI}, 0x07060302
s_mov_b32 s{sM4}, 0x000f000f
s_mov_b32 s{sM4+1}, 0x000f000f
s_mov_b32 s{sM8}, 0x00ff00ff
s_mov_b32 s{sM8+1}, 0x00ff00ff
s_mul_i32 s{sPHI}, s{sX}, 11
s_add_u32 s{sPHI}, s{sPHI}, s{sYP}
s_cmp_lt_u32 s{sYP}, 11
s_cselect_b32 s{sISF}, s{sT[4]}, 0
s_cmp_lt_u32 s{sPHI}, 86
s_cselect_b32 s{sISF}, s{sISF}, 0
s_cmp_ge_u32 s{sYP}, 12
s_cselect_b32 s{sISR}, s{sHGB}, 0
s_sub_u32 s{sRHO}, s{sYP}, 12
s_lshl3_add_u32 s{sRHO}, s{sRHO}, s{sX}
s_cmp_ge_u32 s{sW}, 6
s_cbranch_scc1 L_wave67
s_cmp_ge_u32 s{sW}, 4
s_cbranch_scc1 L_wave45
s_setprio 2
s_cmp_eq_u32 s{sHGB}, 0
s_cbranch_scc1 L_freeC
""")

vQPw, vQPr, vQ16w, vQ16r, vQAp = vT[6], vT[7], vT[8], vT[9], vT[10]
a(f"""
s_lshl_b32 s{sT[4]}, s{sW}, 5
s_lshl_b32 s{sT[5]}, s{sJQ}, 7
s_add_u32 s{sT[4]}, s{sT[4]}, s{sT[5]}
s_lshl_b32 s{sT[4]}, s{sT[4]}, 13
s_add_u32 s{sT[4]}, s{sT[4]}, s{sT[1]}
s_add_u32 s{sT[5]}, s{sT[4]}, {16*8192}
v_lshlrev_b32 v{vUK}, 13, v{vN}
v_lshl_add_u32 v{vUK}, v{vG}, 4, v{vUK}
v_and_b32 v{t1}, 3, v{vN}
v_mul_u32_u24 v{t0}, 1040, v{t1}
v_lshl_add_u32 v{t0}, v{vG}, 4, v{t0}
s_lshl_b32 s{sT[6]}, s{sW}, 8
s_add_u32 s{sT[6]}, s{sT[6]}, {L_XN}
v_add_u32 v{t0}, s{sT[6]}, v{t0}
s_lshl_b32 s{sT[6]}, s{sW}, 11
s_add_u32 s{sT[6]}, s{sT[6]}, {L_QP}
v_lshlrev_b32 v{vQPw}, 6, v{vG}
v_lshl_add_u32 v{vQ16r}, v{t1}, 4, v{vQPw}
v_add_u32 v{vQPw}, s{sT[6]}, v{vQ16r}
v_add_u32 v{vQ16r}, {L_Q16}, v{vQ16r}
s_lshl_b32 s{sT[6]}, s{sW}, 9
s_add_u32 s{sT[6]}, s{sT[6]}, {L_QP}
v_lshlrev_b32 v{vQPr}, 2, v{vL}
v_add_u32 v{vQPr}, s{sT[6]}, v{vQPr}
v_lshlrev_b32 v{vQ16w}, 6, v{t1}
v_and_b32 v{t2}, 12, v{vL}
v_lshl_add_u32 v{vQ16w}, v{t2}, 2, v{vQ16w}
v_lshl_add_u32 v{vQ16w}, v{vG}, 8, v{vQ16w}
s_lshl_b32 s{sT[6]}, s{sW}, 2
s_add_u32 s{sT[6]}, s{sT[6]}, {L_Q16}
v_add_u32 v{vQ16w}, s{sT[6]}, v{vQ16w}
v_lshlrev_b32 v{vQAp}, 16, v{t1}
v_lshl_add_u32 v{vQAp}, v{vG}, 4, v{vQAp}
v_bfe_u32 v{t2}, v{vN}, 2, 1
v_lshl_add_u32 v{vQAp}, v{t2}, 6, v{vQAp}
v_cmp_eq_u32 s[{sC2}:{sC2+1}], 1, v{t2}
s_lshl_b32 s{sT[6]}, s{sHA}, 11
s_lshl_b32 s{sT[7]}, s{sJQ}, 9
s_add_u32 s{sT[6]}, s{sT[6]}, s{sT[7]}
s_lshl_b32 s{sT[7]}, s{sW}, 7
s_add_u32 s{sT[6]}, s{sT[6]}, s{sT[7]}
s_add_u32 s{sT[6]}, s{sT[6]}, {QA_OFF}
s_mov_b32 s{sT[7]}, {f32(math.log2(math.e) / math.sqrt(128.0))}
""")
for u in range(4):
    a(f"""
    s_add_u32 s{sT[2]}, s{sJQ}, {u}
    s_and_b32 s{sT[2]}, s{sT[2]}, 3
    s_lshl_b32 s{sT[2]}, s{sT[2]}, 6
    v_add_u32 v{vT[11+u]}, s{sT[2]}, v{t0}
    """)
ILV = opt("ilv", 3)
def spec_xn():
    for u in range(4):
        a(f"ds_read_b128 {v(BX+4*u,4)}, v{vT[11+u]}")
for u in range(1, ILV): wq_kstep(u)
lds_wait(F_XN, 4, spec_xn)
a(f"s_add_u32 s{sEP}, s{sEP}, 1")
pend = [wq_lines(u) for u in range(ILV, 4)] + [uk_lines()]
if ILV == 4: pend = [None] + pend
issued = ILV
for u in range(4):
    a(f"s_waitcnt vmcnt({(issued - u - 1) * 8})")
    ex = pend[u] if u < len(pend) else None
    q_kstep(u, ex)
    if ex:
        issued += 1
        if issued == 5:
            lds_signal(F_WQI)
            stamp("wq issued")
stamp("q partial")
a(f"s_mov_b64 exec, s[{sM4}:{sM4+1}]")
for jj in range(8):
    a(f"ds_write_b128 v{vQPw}, {v(AC+4*jj,4)} offset:{256*jj}")
lds_signal(F_QP)
def spec_qp():
    for k in range(4):
        a(f"ds_read2st64_b32 {v(FR+2*k,2)}, v{vQPr} offset0:{8*k} offset1:{8*k+1}")
lds_wait(F_QP, 4, spec_qp)
stamp("qp done")
a(f"""
v_add_f32 v{FR}, v{FR}, v{FR+2}
v_add_f32 v{FR+1}, v{FR+1}, v{FR+3}
v_add_f32 v{FR+4}, v{FR+4}, v{FR+6}
v_add_f32 v{FR+5}, v{FR+5}, v{FR+7}
v_add_f32 v{FR}, v{FR}, v{FR+4}
v_add_f32 v{FR+1}, v{FR+1}, v{FR+5}
v_cvt_pk_bf16_f32 v{FR}, v{FR}, v{FR+1}
ds_write_b32 v{vQ16w}, v{FR}
""")
lds_signal(F_Q16)
a(f"v_mov_b32 v{AC+9}, s{sEP}")
a(f"v_mov_b32 v{AC+11}, s{sEP}")
def spec_q16():
    a(f"ds_read_b32 v{t3}, v{vFL} offset:{F_CLR}")
    for t in range(4):
        a(f"ds_read_b128 {v(FR+8+4*t,4)}, v{vQ16r} offset:{256*t}")
lds_wait(F_Q16, 4, spec_q16)
stamp("q16 done")
a("s_waitcnt vmcnt(0)")
stamp("uk landed")
for t in range(4):
    for mt in range(2):
        mfma(AC+4*mt, UK+16*mt+4*t, FR+8+4*t, t == 0)
a(f"""
v_readfirstlane_b32 s{sACC}, v{t3}
s_cmp_ge_u32 s{sACC}, 2
s_cbranch_scc1 L_clrok
""")
lds_wait(F_CLR, 2)
a("L_clrok:")
for r in range(4):
    a(f"v_cndmask_b32 v{AC+r}, v{AC+r}, v{AC+4+r}, s[{sC2}:{sC2+1}]")
for r in range(4):
    a(f"v_mul_f32 v{AC+r}, s{sT[7]}, v{AC+r}")
a(f"""
v_cvt_pk_bf16_f32 v{AC+8}, v{AC}, v{AC+1}
v_cvt_pk_bf16_f32 v{AC+10}, v{AC+2}, v{AC+3}
s_mov_b64 exec, s[{sM8}:{sM8+1}]
buffer_store_dwordx4 {v(AC+8,4)}, v{vQAp}, {srd(R_WS)}, s{sT[6]} offen sc1
s_mov_b64 exec, -1
""")
stamp("q_abs published")
a("s_branch L_phaseB")

a("L_freeC:")
if UKGATE:
    a("s_waitcnt vmcnt(0)")
    lds_signal(F_WQI)
lds_wait(F_CLR, 2, sleep=4)
a(f"s_add_u32 s{sEP}, s{sEP}, 1")

a("L_phaseB:")
QF, SA0, SA1, SD, vM = 32, 96, 160, 224, 232
vX0 = vT[4]
vMX, vPw, vPr, vC, vTF, vPV, vO = vT[8], vT[9], vT[10], vT[11], vT[12], vT[13], vT[14]
vSA = vT[15]
a(f"""
v_lshrrev_b32 v{t0}, 3, v{vN}
v_lshlrev_b32 v{t1}, 2, v{t0}
v_and_b32 v{t2}, 7, v{vN}
v_xor_b32 v{t2}, v{t2}, v{t1}
v_lshl_add_u32 v{t2}, v{t2}, 1, v{t0}
v_xor_b32 v{t2}, v{t2}, v{vG}
v_lshlrev_b32 v{t2}, 4, v{t2}
v_lshl_add_u32 v{t2}, v{vN}, 10, v{t2}
s_lshl_b32 s{sT[0]}, s{sW}, 15
v_add_u32 v{vSA}, s{sT[0]}, v{t2}
v_add_u32 v{vX0}, {L_QS}, v{t2}
""")
for tt in range(1, 4):
    a(f"v_xor_b32 v{vSA+tt}, {64*tt}, v{vSA}")
    a(f"v_xor_b32 v{vX0+tt}, {64*tt}, v{vX0}")
a(f"""
s_lshl_b32 s{sT[1]}, s{sW}, 3
v_add_u32 v{vTF}, s{sT[1]}, v{vFL}
v_bfe_u32 v{t0}, v{vL}, 2, 4
v_lshrrev_b32 v{t1}, 3, v{t0}
v_lshlrev_b32 v{t2}, 2, v{t1}
v_and_b32 v{t3}, 7, v{t0}
v_xor_b32 v{t3}, v{t3}, v{t2}
v_lshl_add_u32 v{t3}, v{t3}, 1, v{t1}
v_bfe_u32 v{t1}, v{vL}, 1, 1
v_xor_b32 v{t3}, v{t3}, v{t1}
v_lshlrev_b32 v{t3}, 4, v{t3}
v_and_b32 v{t1}, 1, v{vL}
v_lshl_add_u32 v{t3}, v{t1}, 3, v{t3}
v_lshl_add_u32 v{t3}, v{t0}, 10, v{t3}
s_lshl_b32 s{sT[0]}, s{sW}, 8
v_add_u32 v{vPV}, s{sT[0]}, v{t3}
v_and_b32 v{t0}, 1, v{vG}
v_lshlrev_b32 v{t0}, 5, v{t0}
v_lshrrev_b32 v{t1}, 1, v{vG}
v_lshl_add_u32 v{t0}, v{t1}, 4, v{t0}
v_and_b32 v{t1}, 7, v{vN}
v_lshl_add_u32 v{vO}, v{t1}, 17, v{t0}
v_lshrrev_b32 v{t1}, 3, v{vN}
v_lshl_add_u32 v{vO}, v{t1}, 6, v{vO}
s_lshl_b32 s{sO}, s{sHGB}, 21
s_lshl_b32 s{sT[4]}, s{sCH}, 8
s_add_u32 s{sO}, s{sO}, s{sT[4]}
s_lshl_b32 s{sT[4]}, s{sW}, 15
s_add_u32 s{sO}, s{sO}, s{sT[4]}
s_add_u32 s{sO}, s{sO}, {O_OFF}
s_add_u32 s{sT[3]}, s{sO}, {8 << 17}
v_lshlrev_b32 v{vMX}, 3, v{vN}
v_add_u32 v{vMX}, {L_MX}, v{vMX}
s_lshl_b32 s{sT[0]}, s{sW}, 10
s_add_u32 s{sT[0]}, s{sT[0]}, {L_PX}
v_add_u32 v{vPw}, s{sT[0]}, v{vL16}
v_add_u32 v{vPr}, {L_PX}, v{vL16}
""")
PAD = list(range(240, 256))
for mt in range(8):
    a(f"v_xor_b32 v{PAD[mt]}, {32*mt}, v{vPV}")
    a(f"v_add_u32 v{PAD[8+mt]}, 0x10000, v{PAD[mt]}")
def sa_read(k, t):
    a(f"ds_read_b128 {v((SA1 if k else SA0)+4*t,4)}, v{vSA+(t&3)} offset:{16384*k+(t>>2)*256}")
def qf_read(t):
    a(f"ds_read_b128 {v(QF+4*t,4)}, v{vX0+(t&3)} offset:{(t>>2)*256}")
GQ = 64
vQa, vQb, vQw, vEP = 236, 237, 238, 239
a(f"""
v_lshlrev_b32 v{vQa}, 4, v0
v_add_u32 v{vQb}, 16384, v{vQa}
s_lshr_b32 s{sT[6]}, s{sCH}, 5
s_lshl_b32 s{sT[6]}, s{sT[6]}, 1
s_add_u32 s{sT[6]}, s{sT[6]}, s{sHGB}
s_lshl_b32 s{sT[6]}, s{sT[6]}, 15
s_add_u32 s{sT[6]}, s{sT[6]}, {QA_OFF}
s_add_u32 s{sT[7]}, s{sT[6]}, 4096
s_add_u32 s{sT[8]}, s{sT[6]}, 8192
s_add_u32 s{sT[9]}, s{sT[6]}, 12288
v_and_b32 v{vQw}, 127, v0
v_lshlrev_b32 v{vQw}, 3, v{vQw}
s_lshr_b32 s{sT[10]}, s{sW}, 1
s_lshl_b32 s{sT[5]}, s{sT[10]}, 5
v_xor_b32 v{vQw}, s{sT[5]}, v{vQw}
s_lshl_b32 s{sT[10]}, s{sT[10]}, 10
s_add_u32 s{sT[10]}, s{sT[10]}, {L_QS}
v_add_u32 v{vQw}, s{sT[10]}, v{vQw}
v_mov_b32 v{vEP}, s{sEP}
s_mov_b32 s{sT[2]}, 0
""")
def qa_loads():
    for i in range(8):
        a(f"buffer_load_dwordx4 {v(GQ+4*i,4)}, v{vQb if i >= 4 else vQa}, {srd(R_WS)}, s{sT[6+(i&3)]} offen sc1")
def try_tile1(tag):
    a(f"""
    ds_read_b32 v{t0}, v{vTF} offset:{F_TILE+4}
    s_waitcnt lgkmcnt(0)
    v_readfirstlane_b32 s{sACC+1}, v{t0}
    s_cmp_le_u32 s{sACC+1}, s{sT[2]}
    s_cbranch_scc1 L_nt1{tag}
    s_mov_b32 s{sT[2]}, 1
    """)
    for t in range(16): sa_read(1, t)
    a(f"L_nt1{tag}:")
lds_wait(F_TILE, 1, base=vTF, sleep=1)
for t in range(16): sa_read(0, t)
a("s_waitcnt vmcnt(0)")
lds_wait(F_GO, 2, sleep=1)
a(f"s_mov_b32 s{sCNT}, 0")
a("L_pollq:")
qa_loads()
lds_signal(F_QI)
try_tile1("a")
for i in range(8):
    a(f"s_waitcnt vmcnt({7-i})")
    if i == 0: a(f"v_xor_b32 v{t2}, v{GQ+1}, v{vEP}")
    else: a(f"v_bitop3_b32 v{t2}, v{t2}, v{GQ+4*i+1}, v{vEP} bitop3:0xf6")
    if i: a(f"v_xor_b32 v{t3}, {(fsw(2*i) << 4) | (i << 11)}, v{vQw}")
    a(f"v_bitop3_b32 v{t2}, v{t2}, v{GQ+4*i+3}, v{vEP} bitop3:0xf6")
    a(f"ds_write2_b32 v{t3 if i else vQw}, v{GQ+4*i}, v{GQ+4*i+2} offset0:0 offset1:1")
a(f"v_cmp_ne_u32 vcc, 0, v{t2}")
poll_tail("L_pollq", QSLEEP)
lds_signal(F_QS)
cstamp("qa retries")
stamp("q_abs gathered")
a(f"s_mov_b32 s{sCNT}, 0")
a("L_wq:")
a(f"""
ds_read_b32 v{vSP}, v{vFL} offset:{F_QS}
ds_read_b32 v{t0}, v{vTF} offset:{F_TILE+4}
""")
for t in range(4): qf_read(t)
a(f"""
s_waitcnt lgkmcnt(0)
v_readfirstlane_b32 s{sACC}, v{vSP}
v_readfirstlane_b32 s{sACC+1}, v{t0}
s_cmp_ge_u32 s{sACC}, 4
s_cbranch_scc1 L_wqd
s_add_u32 s{sCNT}, s{sCNT}, 1
s_cmp_lt_u32 s{sCNT}, {LSPIN_MAX}
s_cbranch_scc1 L_wq
L_wqd:
""")
stamp("Q ready")
for t in range(4, 16): qf_read(t)
a(f"""
s_cmp_eq_u32 s{sT[2]}, 1
s_cbranch_scc1 L_sboth
""")
a(f"""
s_cmp_ge_u32 s{sACC+1}, 1
s_cbranch_scc1 L_t1now
""")
for t in range(16):
    if t >= 4: a(f"s_waitcnt lgkmcnt({15-t})")
    mfma(SD, SA0+4*t, QF+4*t, t == 0)
lds_wait(F_TILE + 4, 1, base=vTF)
for t in range(16): sa_read(1, t)
for t in range(16):
    a(f"s_waitcnt lgkmcnt({15-t})")
    mfma(SD+4, SA1+4*t, QF+4*t, t == 0)
a("s_branch L_sdone")
a("L_t1now:")
for t in range(16):
    if t >= 4: a("s_waitcnt lgkmcnt(15)")
    sa_read(1, t)
    mfma(SD, SA0+4*t, QF+4*t, t == 0)
for t in range(16):
    a(f"s_waitcnt lgkmcnt({15-t})")
    mfma(SD+4, SA1+4*t, QF+4*t, t == 0)
a("s_branch L_sdone")
a("L_sboth:")
for t in range(16):
    if t >= 4: a(f"s_waitcnt lgkmcnt({15-t})")
    mfma(SD, SA0+4*t, QF+4*t, t == 0)
    mfma(SD+4, SA1+4*t, QF+4*t, t == 0)
a("L_sdone:")
a(f"""
v_max3_f32 v{t1}, v{SD}, v{SD+1}, v{SD+2}
v_max3_f32 v{t2}, v{SD+3}, v{SD+4}, v{SD+5}
v_max3_f32 v{t1}, v{t1}, v{SD+6}, v{SD+7}
v_max_f32 v{t1}, v{t1}, v{t2}
v_ceil_f32 v{vC}, v{t1}
ds_max_f32 v{vMX}, v{vC}
ds_add_u32 v{vMX}, v{vONE} offset:4
ds_read_b64 {v(vM,2)}, v{vMX}
""")
for r in range(8): a(f"v_sub_f32 v{SD+r}, v{SD+r}, v{vC}")
for r in range(8): a(f"v_exp_f32 v{SD+r}, v{SD+r}")
PVA, PB, OD, OS, ON = 32, 160, 176, 208, 224
lp, dn, ck = a.newlabel("Lm"), a.newlabel("Lmd"), a.newlabel("Lmc")
a(f"s_mov_b32 s{sCNT}, 0")
a(f"s_branch {ck}")
a.label(lp)
a(f"ds_read_b64 {v(vM,2)}, v{vMX}")
a.label(ck)
a(f"""
s_waitcnt lgkmcnt(0)
v_cmp_ne_u32 vcc, 16, v{vM+1}
v_sub_f32 v{t1}, v{vC}, v{vM}
s_cmp_eq_u64 vcc, 0
s_cbranch_scc1 {dn}
s_add_u32 s{sCNT}, s{sCNT}, 1
s_cmp_lt_u32 s{sCNT}, {LSPIN_MAX}
s_cbranch_scc1 {lp}
""")
a.label(dn)
stamp("S done")
def pv_read(u, mt):
    for vv in range(2):
        tile = 2 * u + vv
        ad = PAD[mt] if tile < 4 else PAD[8 + mt]
        a(f"ds_read_b64_tr_b16 {v(PVA+16*mt+4*u+2*vv,2)}, v{ad} offset:{(tile&3)*16384}")
a(f"v_exp_f32 v{t1}, v{t1}")
pv_read(0, 0)
for r in range(8): a(f"v_mul_f32 v{SD+r}, v{SD+r}, v{t1}")
for k in range(4): a(f"v_cvt_pk_bf16_f32 v{PB+k}, v{SD+2*k}, v{SD+2*k+1}")
a(f"ds_write_b128 v{vPw}, {v(PB,4)}")
lds_signal(F_P)
for u in range(4):
    for mt in range(4):
        if (u, mt) != (0, 0): pv_read(u, mt)
for i in range(4): a(f"v_mov_b32 v{ON+i}, 0x3f803f80")
def spec_p():
    for u in range(4):
        a(f"ds_read_b128 {v(PB+4*u,4)}, v{vPr} offset:{1024*u}")
lds_wait(F_P, 4, spec_p)
stamp("P done")
for u in range(4):
    for mt in range(4):
        pv_read(u, mt + 4)
        mfma(OD+4*mt, PVA+16*mt+4*u, PB+4*u, u == 0)
CK = vM + 2
def epilogue(pp):
    L = []
    for p in (2 * pp, 2 * pp + 1):
        for k in range(2):
            mt = 2 * p + k
            L.append(f"v_cvt_pk_bf16_f32 v{OS+2*mt}, v{OD+4*mt}, v{OD+4*mt+1}")
            L.append(f"v_cvt_pk_bf16_f32 v{OS+2*mt+1}, v{OD+4*mt+2}, v{OD+4*mt+3}")
    for p in (2 * pp, 2 * pp + 1):
        L.append(f"v_permlane16_swap_b32 v{OS+4*p}, v{OS+4*p+2}")
        L.append(f"v_permlane16_swap_b32 v{OS+4*p+1}, v{OS+4*p+3}")
    X, Y, T = OS + 8 * pp, OS + 8 * pp + 4, OD + 16 * pp
    for d in range(4): L.append(f"v_mov_b32 v{T+d}, v{X+d}")
    for d in range(4): L.append(f"v_mov_b32 v{T+4+d}, v{Y+d}")
    for d in range(4): L.append(f"v_mov_b32_dpp v{T+d}, v{Y+d} row_ror:8 row_mask:0xf bank_mask:0xc")
    L.append(f"buffer_store_dwordx4 {v(T,4)}, v{vO}, {srd(R_WS)}, s{sO} offen offset:{128*pp} sc1")
    for d in range(4): L.append(f"v_mov_b32_dpp v{T+4+d}, v{X+d} row_ror:8 row_mask:0xf bank_mask:0x3")
    L.append(f"buffer_store_dwordx4 {v(T+4,4)}, v{vO}, {srd(R_WS)}, s{sT[3]} offen offset:{128*pp} sc1")
    for k in range(0, 8, 2):
        if pp == 0 and k == 0: L.append(f"v_add_u32 v{CK}, v{X}, v{X+1}")
        else: L.append(f"v_add3_u32 v{CK}, v{CK}, v{X+k}, v{X+k+1}")
    return L
E0 = epilogue(0)
idx = 0
for u in range(4):
    for mt in range(4, 8):
        left = 32 - 2 * (u * 4 + (mt - 4) + 1)
        if left <= 15: a(f"s_waitcnt lgkmcnt({left})")
        elif (u, mt) == (0, 4): a("s_waitcnt lgkmcnt(15)")
        mfma(OD+4*mt, PVA+16*mt+4*u, PB+4*u, u == 0)
        if u * 4 + (mt - 4) >= 2:
            for l in E0[idx:idx+2]: a(l)
            idx += 2
lds_signal(F_BD)
for u in range(4):
    mfma(ON+4, ON, PB+4*u, u == 0)
    for l in E0[idx:idx+2]: a(l)
    idx += 2
for l in E0[idx:]: a(l)
stamp("PV done")
for l in epilogue(1): a(l)
a(f"""
s_lshl_b32 s{sT[4]}, s{sHGB}, 7
s_add_u32 s{sT[4]}, s{sT[4]}, s{sCH}
s_lshl_b32 s{sT[4]}, s{sT[4]}, 2
s_add_u32 s{sT[4]}, s{sT[4]}, s{sW}
s_lshl_b32 s{sT[4]}, s{sT[4]}, 8
s_add_u32 s{sT[4]}, s{sT[4]}, {ML_OFF}
v_mov_b32 v{t0}, v{CK}
v_mov_b32 v{vM+1}, v{ON+4}
v_permlane32_swap_b32 v{CK}, v{t0}
v_add_u32 v{CK}, v{CK}, v{t0}
v_mov_b32 v{t0}, v{CK}
v_xor_b32 v{t1}, s{sEP}, v{vM}
v_permlane16_swap_b32 v{CK}, v{t0}
v_add3_u32 v{CK}, v{CK}, v{t0}, s{sEP}
v_xor_b32 v{vM+3}, v{t1}, v{vM+1}
s_mov_b64 exec, 0xffff
buffer_store_dwordx4 {v(vM,4)}, v{vL16}, {srd(R_WS)}, s{sT[4]} offen sc1
s_mov_b64 exec, -1
""")
stamp("O published")

HD, HM, MK, AW, CD = 32, 64, 72, 76, 84
mM, wA, wB, wb, ckS, ckE, vCLw, vHd2 = vT[4], vT[5], vT[6], vT[7], vT[8], vT[9], vT[10], vT[11]
a(f"""
v_lshlrev_b32 v{t0}, 8, v{vG}
v_lshl_add_u32 v{t0}, v{vN}, 4, v{t0}
v_add_u32 v{vHd2}, 4096, v{t0}
s_lshl_b32 s{sT[0]}, s{sH}, 2
s_add_u32 s{sT[0]}, s{sT[0]}, s{sCQ}
s_lshl_b32 s{sT[0]}, s{sT[0]}, 15
s_lshl_b32 s{sT[2]}, s{sW}, 13
s_add_u32 s{sT[0]}, s{sT[0]}, s{sT[2]}
s_add_u32 s{sT[0]}, s{sT[0]}, {O_OFF}
v_and_b32 v{t1}, 7, v{vN}
v_lshrrev_b32 v{t2}, 3, v{vN}
v_xor_b32 v{t2}, v{t2}, v{vG}
v_lshl_add_u32 v{t1}, v{t1}, 2, v{t2}
v_lshlrev_b32 v{t1}, 10, v{t1}
v_xor_b32 v{t2}, 2048, v{t1}
s_lshr_b32 s{sT[4]}, s{sH}, 4
s_lshl_b32 s{sT[4]}, s{sT[4]}, 2
s_add_u32 s{sT[4]}, s{sT[4]}, s{sW}
s_lshl_b32 s{sT[4]}, s{sT[4]}, 15
s_and_b32 s{sT[5]}, s{sH}, 15
s_lshl_b32 s{sT[5]}, s{sT[5]}, 4
s_add_u32 s{sT[4]}, s{sT[4]}, s{sT[5]}
s_lshl_b32 s{sT[5]}, s{sCQ}, 8
s_add_u32 s{sT[4]}, s{sT[4]}, s{sT[5]}
s_add_u32 s{sT[4]}, s{sT[4]}, {ML_OFF}
v_and_b32 v{t3}, 1, v{vN}
v_lshlrev_b32 v{t3}, 4, v{t3}
v_mov_b32 v{mM}, 0xffff
v_lshlrev_b32 v{t3}, v{t3}, v{mM}
v_lshrrev_b32 v{mM}, 1, v{vN}
""")
for d in range(4):
    a(f"v_cmp_eq_u32 vcc, {d}, v{mM}")
    a(f"v_cndmask_b32 v{MK+d}, 0, v{t3}, vcc")
a(f"""
s_mul_i32 s{sT[5]}, s{sW}, 272
s_add_u32 s{sT[5]}, s{sT[5]}, {L_CL}
v_lshlrev_b32 v{vCLw}, 4, v{vN}
v_lshl_add_u32 v{vCLw}, v{vG}, 3, v{vCLw}
v_add_u32 v{vCLw}, s{sT[5]}, v{vCLw}
s_mov_b32 s{sT[6]}, 0x03020302
""")
if OACK: a("s_waitcnt vmcnt(0)")
stamp("O acked")
a(f"s_mov_b32 s{sCNT}, 0")
a("L_pollm:")
a(f"""
buffer_load_dwordx4 {v(HM,4)}, v{t1}, {srd(R_WS)}, s{sT[4]} offen sc1
buffer_load_dwordx4 {v(HM+4,4)}, v{t2}, {srd(R_WS)}, s{sT[4]} offen sc1
s_waitcnt vmcnt(0)
v_bitop3_b32 v{ckE}, v{HM}, v{HM+1}, v{HM+3} bitop3:0x96
v_bitop3_b32 v{t3}, v{HM+4}, v{HM+5}, v{HM+7} bitop3:0x96
v_cmp_ne_u32 vcc, s{sEP}, v{ckE}
v_cmp_ne_u32 s[{sACC}:{sACC+1}], s{sEP}, v{t3}
s_or_b64 vcc, s[{sACC}:{sACC+1}], vcc
""")
poll_tail("L_pollm", MLSLEEP)
cstamp("ml retries")
stamp("ML ok")
for t in range(8):
    a(f"buffer_load_dwordx4 {v(HD+4*t,4)}, v{vHd2 if t >= 4 else t0}, {srd(R_WS)}, s{sT[0]} offen offset:{1024*(t&3)} sc1")
a(f"""
v_max_f32 v{mM}, v{HM}, v{HM+4}
v_max_f32_dpp v{mM}, v{mM}, v{mM} row_ror:1 row_mask:0xf bank_mask:0xf
v_max_f32_dpp v{mM}, v{mM}, v{mM} row_ror:2 row_mask:0xf bank_mask:0xf
v_sub_u32 v{ckS}, s{sEP}, v{HM+2}
v_max_f32_dpp v{mM}, v{mM}, v{mM} row_ror:4 row_mask:0xf bank_mask:0xf
v_cndmask_b32 v{ckS}, 0, v{ckS}, s[{sM8}:{sM8+1}]
v_max_f32_dpp v{mM}, v{mM}, v{mM} row_ror:8 row_mask:0xf bank_mask:0xf
v_sub_f32 v{wA}, v{HM}, v{mM}
v_sub_f32 v{wB}, v{HM+4}, v{mM}
v_exp_f32 v{wA}, v{wA}
v_exp_f32 v{wB}, v{wB}
v_perm_b32 v{wb}, v{wA}, v{wA}, s{sT[6]}
v_mul_f32 v{wA}, v{wA}, v{HM+1}
v_fmac_f32 v{wA}, v{wB}, v{HM+5}
""")
sfts = [1, 2, 4, 8]
for t in range(8):
    aw = AW + 4 * (t & 1)
    for d in range(4):
        a(f"v_and_b32_dpp v{aw+d}, v{wb}, v{MK+d} row_newbcast:{t} row_mask:0xf bank_mask:0xf")
    if t < 4:
        a(f"v_add_f32_dpp v{wA}, v{wA}, v{wA} row_ror:{sfts[t]} row_mask:0xf bank_mask:0xf")
    if t == 4:
        a(f"v_rcp_f32 v{wA}, v{wA}")
    a(f"s_waitcnt vmcnt({7-t})")
    a(f"v_add3_u32 v{ckS}, v{ckS}, v{HD+4*t}, v{HD+4*t+1}")
    mfma(CD, aw, HD+4*t, t == 0)
    a(f"v_add3_u32 v{ckS}, v{ckS}, v{HD+4*t+2}, v{HD+4*t+3}")
for sft in sfts:
    a(f"v_add_u32_dpp v{ckS}, v{ckS}, v{ckS} row_ror:{sft} row_mask:0xf bank_mask:0xf")
a(f"v_cmp_ne_u32 vcc, 0, v{ckS}")
for r in range(4): a(f"v_mul_f32 v{CD+r}, v{CD+r}, v{wA}")
a(f"v_cvt_pk_bf16_f32 v{CD+4}, v{CD}, v{CD+1}")
a(f"v_cvt_pk_bf16_f32 v{CD+5}, v{CD+2}, v{CD+3}")
poll_tail("L_pollm")
cstamp("o retries")
a(f"""
s_mov_b32 exec_hi, 0
ds_write_b64 v{vCLw}, {v(CD+4,2)}
s_mov_b64 exec, 1
ds_add_u32 v{vFL}, v{vONE} offset:{F_CL}
s_mov_b64 exec, -1
s_setprio 0
""")
stamp("combined")
a(f"""
s_cmp_eq_u32 s{sISF}, 1
s_cbranch_scc1 L_ffn
s_cmp_eq_u32 s{sISR}, 0
s_cbranch_scc1 L_fin
""")

SEL, RD, RA, RS, vH = 96, 100, 116, 120, 128
vMo, vXv = vT[4], vT[5]
for d in range(4): a(f"v_and_b32 v{SEL+d}, 0x3f803f80, v{MK+d}")
a(f"""
v_and_b32 v{t0}, 0x23, v{vL}
v_bfe_u32 v{t1}, v{vL}, 2, 1
v_lshl_add_u32 v{t0}, v{t1}, 4, v{t0}
v_bfe_u32 v{t1}, v{vL}, 3, 2
v_lshl_add_u32 v{t0}, v{t1}, 2, v{t0}
v_lshlrev_b32 v{vMo}, 1, v{t0}
s_lshl_b32 s{sT[0]}, s{sRHO}, 7
buffer_load_ushort v{vXv}, v{vMo}, {srd(R_X)}, s{sT[0]} offen
v_lshlrev_b32 v{t0}, 4, v0
s_lshl_b32 s{sT[1]}, s{sRHO}, 14
s_add_u32 s{sT[1]}, s{sT[1]}, {PA_OFF}
s_add_u32 s{sT[2]}, s{sT[1]}, 4096
s_add_u32 s{sT[3]}, s{sT[1]}, 8192
s_add_u32 s{sT[4]}, s{sT[1]}, 12288
s_lshl_b32 s{sT[5]}, s{sW}, 8
s_add_u32 s{sT[5]}, s{sT[5]}, {L_RED}
v_lshlrev_b32 v{t1}, 5, v{vN}
v_lshl_add_u32 v{t1}, v{vG}, 4, v{t1}
v_add_u32 v{t1}, s{sT[5]}, v{t1}
v_lshlrev_b32 v{t2}, 2, v{vL}
v_add_u32 v{t2}, {L_RED}, v{t2}
s_mul_i32 s{sT[5]}, s{sRHO}, 12288
s_add_u32 s{sT[5]}, s{sT[5]}, {PF_OFF}
s_add_u32 s{R_PF}, s{R_WS}, s{sT[5]}
s_addc_u32 s{R_PF+1}, s{R_WS+1}, 0
s_mov_b32 s{sT[6]}, 4096
s_mov_b32 s{sT[7]}, 8192
s_waitcnt vmcnt(0)
s_barrier
""")
def reduce_inbox(name, rs, sos):
    a(f"s_mov_b32 s{sCNT}, 0")
    a.label(name)
    for i, so in enumerate(sos):
        a(f"buffer_load_dwordx4 {v(RD+4*i,4)}, v{t0}, {srd(rs)}, {so} offen sc1")
    n = len(sos)
    for i in range(n):
        a(f"s_waitcnt vmcnt({n-1-i})")
        if i == 0: a(f"v_max3_u32 v{t3}, v{RD}, v{RD+1}, v{RD+2}")
        else: a(f"v_max3_u32 v{t3}, v{t3}, v{RD+4*i}, v{RD+4*i+1}")
        mfma(RA, SEL, RD+4*i, i == 0)
        if i == 0: a(f"v_max_u32 v{t3}, v{t3}, v{RD+3}")
        else: a(f"v_max3_u32 v{t3}, v{t3}, v{RD+4*i+2}, v{RD+4*i+3}")
    a(f"v_cmp_eq_u32 vcc, -1, v{t3}")
    poll_tail(name)
    for r in range(4):
        a(f"v_add_f32_dpp v{RA+r}, v{RA+r}, v{RA+r} row_ror:8 row_mask:0xf bank_mask:0xf")
    a(f"""
    s_mov_b64 exec, 0x00ff00ff
    ds_write_b128 v{t1}, {v(RA,4)}
    s_mov_b64 exec, -1
    s_waitcnt lgkmcnt(0)
    s_barrier
    """)
def final_sum():
    for k in range(2):
        a(f"ds_read2st64_b32 {v(RS+2*k,2)}, v{t2} offset0:{2*k} offset1:{2*k+1}")
    a("s_waitcnt lgkmcnt(0)")
    a(f"v_add_f32 v{RS}, v{RS}, v{RS+1}")
    a(f"v_add_f32 v{RS+2}, v{RS+2}, v{RS+3}")
    a(f"v_add_f32 v{RS}, v{RS}, v{RS+2}")
def pack_store(val, rs, so, pol):
    P = RS + 4
    a(f"v_mov_b32_dpp v{RS+2}, v{val} quad_perm:[1,1,3,3] row_mask:0xf bank_mask:0xf")
    a(f"v_cvt_pk_bf16_f32 v{P}, v{val}, v{RS+2}")
    a(f"v_mov_b32_dpp v{P+1}, v{P} quad_perm:[2,2,2,2] row_mask:0xf bank_mask:0xf")
    a(f"v_mov_b32_dpp v{P+2}, v{P} row_shl:8 row_mask:0xf bank_mask:0xf")
    a(f"v_mov_b32_dpp v{P+3}, v{P+1} row_shl:8 row_mask:0xf bank_mask:0xf")
    a(f"""
    s_mov_b32 exec_lo, 0x00110011
    s_mov_b32 exec_hi, 0x00110011
    buffer_store_dwordx4 {v(P,4)}, v{vMo}, {srd(rs)}, {so} offen{pol}
    s_mov_b64 exec, -1
    """)
reduce_inbox("L_pollr1", R_WS, [f"s{sT[1+i]}" for i in range(4)])
stamp("R1 gathered")
a(f"""
s_cmp_lg_u32 s{sW}, 0
s_cbranch_scc1 L_r1skip
""")
final_sum()
rne_bf16(RS, RS)
a(f"v_lshlrev_b32 v{vXv}, 16, v{vXv}")
a(f"v_add_f32 v{vH}, v{RS}, v{vXv}")
a(f"s_add_u32 s{sT[5]}, s{sT[0]}, {HG_OFF}")
pack_store(vH, R_WS, f"s{sT[5]}", " sc1")
rne_bf16(vH, vH)
a("L_r1skip:")
stamp("h published")
a("s_barrier")
reduce_inbox("L_pollr2", R_PF, ["0", f"s{sT[6]}", f"s{sT[7]}"])
stamp("R2 gathered")
a(f"""
s_cmp_lg_u32 s{sW}, 0
s_cbranch_scc1 L_fin
""")
final_sum()
rne_bf16(RS, RS)
a(f"v_add_f32 v{vH}, v{RS}, v{vH}")
pack_store(vH, R_OUT, f"s{sT[0]}", "")
a(f"""
s_cmp_lg_u32 s{sRHO}, 0
s_cbranch_scc1 L_fin
v_mov_b32 v{t0}, {EPOCH_OFF}
v_mov_b32 v{t1}, s{sEP}
s_mov_b64 exec, 1
buffer_store_dword v{t1}, v{t0}, {srd(R_WS)}, 0 offen sc1
""")
if DBGT and PROBE and not opt('plocal', 1):
    a(f"""
    v_mov_b32 v{vT[19]}, 16
    global_load_dword v{vT[20]}, v{vT[19]}, s[98:99] sc1
    s_waitcnt vmcnt(0)
    v_readfirstlane_b32 s94, v{vT[20]}
    """)
a(f"s_mov_b32 s93, {opt('padto', 0)}")
if opt("xcctest", 0):
    a(f"""
    v_mov_b32 v{vT[19]}, 20
    global_load_dword v{vT[20]}, v{vT[19]}, s[98:99] sc1
    s_waitcnt vmcnt(0)
    v_readfirstlane_b32 s{sT[1]}, v{vT[20]}
    s_bcnt1_i32_b32 s{sT[1]}, s{sT[1]}
    s_mul_i32 s{sT[1]}, s{sT[1]}, 1000
    s_add_u32 s93, s93, s{sT[1]}
    """)
if DBGT and opt("padto", 0):
    a(f"""
    L_padspin:
    s_memrealtime s[{sTS}:{sTS+1}]
    s_waitcnt lgkmcnt(0)
    s_sub_u32 s{sTS}, s{sTS}, s94
    s_cmp_lt_u32 s{sTS}, s93
    s_cbranch_scc1 L_padspin
    """)
if DBGT:
    a(f"""
    s_memrealtime s[{sTS}:{sTS+1}]
    s_memtime s[{sC2}:{sC2+1}]
    s_waitcnt lgkmcnt(0)
    s_sub_u32 s{sTS}, s{sTS}, s94
    s_sub_u32 s{sC2}, s{sC2}, s96
    v_mov_b32 v{t2}, s{sTS}
    v_mov_b32 v{t3}, s{sC2}
    v_mov_b32 v{t0}, 0
    global_store_dwordx2 v{t0}, {v(t2,2)}, s[98:99]
    """)
a("""
s_mov_b64 exec, -1
s_branch L_fin
""")

a("L_ffn:")
FGU, FD, HB, GD, FXR, DD, DP, CSA = 96, 128, 144, 160, 172, 188, 220, 188
lds_wait(F_BD, 4)
if PFWHEN == 1:
    a("s_barrier")
a(f"""
v_lshrrev_b32 v{t0}, 1, v{vL}
v_and_b32 v{t1}, 0x13, v{t0}
v_bfe_u32 v{t2}, v{t0}, 2, 1
v_lshl_add_u32 v{t1}, v{t2}, 3, v{t1}
v_bfe_u32 v{t2}, v{t0}, 3, 1
v_lshl_add_u32 v{t1}, v{t2}, 2, v{t1}
v_mul_u32_u24 v{t1}, 2752, v{t1}
v_and_b32 v{t2}, 1, v{vL}
v_lshl_add_u32 v{t1}, v{t2}, 4, v{t1}
s_mul_i32 s{sT[0]}, s{sW}, {128*2752}
s_lshl_b32 s{sT[1]}, s{sPHI}, 5
s_add_u32 s{sT[0]}, s{sT[0]}, s{sT[1]}
s_lshl_b32 s{sT[2]}, s{sW}, 12
""")
for i in range(4):
    a(f"s_add_u32 m0, s{sT[2]}, {L_G + 1024*i}")
    if i: a(f"s_add_u32 s{sT[0]}, s{sT[0]}, {32*2752}")
    a(f"buffer_load_dwordx4 v{t1}, {srd(R_WG)}, s{sT[0]} offen lds")
    a(f"s_add_u32 m0, s{sT[2]}, {L_U + 1024*i}")
    a(f"buffer_load_dwordx4 v{t1}, {srd(R_WU)}, s{sT[0]} offen lds")
a(f"""
s_and_b32 s{sT[0]}, s{sW}, 1
s_lshl_b32 s{sT[0]}, s{sT[0]}, 7
v_xor_b32 v{t0}, s{sT[0]}, v{vL16}
s_lshl_b32 s{sT[0]}, s{sPHI}, 14
s_add_u32 s{sT[0]}, s{sT[0]}, s{sT[2]}
s_add_u32 m0, s{sT[2]}, {L_WD}
""")
for i in range(4):
    if i: a(f"v_xor_b32 v{t2}, {32*i}, v{t0}")
    a(f"buffer_load_dwordx4 v{t2 if i else t0}, {srd(R_WD)}, s{sT[0]} offen offset:{1024*i} lds")
vFXw, vFXr, vSq, vSm, vCs, csg, csu, vPF, vHl = vT[4], vT[5], vT[6], vT[7], vT[8], vT[9], vT[10], vT[11], vT[12]
a(f"""
v_bfe_u32 v{t0}, v{vL}, 2, 3
v_lshrrev_b32 v{t1}, 1, v{vG}
v_lshl_add_u32 v{t0}, v{t1}, 4, v{t0}
v_and_b32 v{t2}, 3, v{vL}
v_lshlrev_b32 v{t2}, 3, v{t2}
v_lshl_add_u32 v{t3}, v{t0}, 5, v{t2}
s_add_u32 s{sT[0]}, s{sT[2]}, {L_G}
v_add_u32 v{t3}, s{sT[0]}, v{t3}
v_bfe_u32 v{t0}, v{vL}, 2, 4
v_and_b32 v{t1}, 7, v{t0}
v_lshl_add_u32 v{t1}, v{t1}, 5, v{t2}
v_lshl_add_u32 v{t1}, v{t0}, 10, v{t1}
s_lshl_b32 s{sT[0]}, s{sW}, 8
s_add_u32 s{sT[0]}, s{sT[0]}, {L_WD}
v_add_u32 v{t1}, s{sT[0]}, v{t1}
v_lshlrev_b32 v{vHl}, 10, v{vN}
v_lshl_add_u32 v{vHl}, v{vG}, 4, v{vHl}
s_lshl_b32 s{sT[1]}, s{sW}, 8
s_add_u32 s{sT[1]}, s{sT[1]}, {HG_OFF}
s_mul_i32 s{sT[2]}, s{sW}, 640
s_add_u32 s{sT[2]}, s{sT[2]}, {L_FX}
v_lshlrev_b32 v{vFXw}, 6, v{vG}
v_lshl_add_u32 v{vFXw}, v{vN}, 4, v{vFXw}
v_add_u32 v{vFXw}, s{sT[2]}, v{vFXw}
v_and_b32 v{t2}, 3, v{vN}
v_lshlrev_b32 v{vFXr}, 4, v{t2}
v_lshl_add_u32 v{vFXr}, v{vG}, 6, v{vFXr}
v_lshrrev_b32 v{t0}, 2, v{vN}
v_lshl_add_u32 v{vFXr}, v{t0}, 2, v{vFXr}
v_add_u32 v{vFXr}, {L_FX}, v{vFXr}
v_mul_u32_u24 v{vSq}, 20, v{t2}
v_add_u32 v{vSq}, {L_FX + 512}, v{vSq}
v_lshlrev_b32 v{vSm}, 4, v{t2}
v_add_u32 v{vSm}, {L_FX + 576}, v{vSm}
v_lshlrev_b32 v{vCs}, 4, v{vG}
v_lshl_add_u32 v{vCs}, v{t0}, 2, v{vCs}
v_add_u32 v{vCs}, {L_CS}, v{vCs}
s_mov_b32 s{sT[4]}, 98304
v_mul_lo_u32 v{vPF}, v{vN}, s{sT[4]}
v_lshl_add_u32 v{vPF}, v{vG}, 4, v{vPF}
s_mul_i32 s{sT[4]}, s{sW}, 24576
s_lshl_b32 s{sT[5]}, s{sPHI}, 7
s_add_u32 s{sT[4]}, s{sT[4]}, s{sT[5]}
s_add_u32 s{sT[4]}, s{sT[4]}, {PF_OFF}
s_add_u32 s{sT[5]}, s{sT[4]}, 12288
""")
for i in range(16): a(f"v_mov_b32 v{HB+i}, 0x3f803f80")
a("s_waitcnt vmcnt(4)")
for mat in range(2):
    for t in range(4):
        for vv in range(2):
            a(f"ds_read_b64_tr_b16 {v(FGU+16*mat+4*t+2*vv,2)}, v{t3} offset:{16384*mat + (32*t+8*vv)*32}")
a("s_waitcnt lgkmcnt(0)")
for mat in range(2):
    for t in range(4):
        mfma(CSA+4*mat, FGU+16*mat+4*t, HB, t == 0)
a(f"""
s_lshl_b32 s{sT[0]}, s{sW}, 7
s_add_u32 s{sT[0]}, s{sT[0]}, {L_CS}
v_lshlrev_b32 v{t0}, 4, v{vG}
v_add_u32 v{t0}, s{sT[0]}, v{t0}
s_mov_b32 exec_lo, 0x00010001
s_mov_b32 exec_hi, 0x00010001
ds_write_b128 v{t0}, {v(CSA,4)}
ds_write_b128 v{t0}, {v(CSA+4,4)} offset:64
s_mov_b64 exec, -1
s_waitcnt vmcnt(0) lgkmcnt(0)
s_barrier
""")
for mt in range(8):
    if mt: a(f"v_xor_b32 v{t2}, {32*mt}, v{t1}")
    a(f"ds_read_b64_tr_b16 {v(FD+2*mt,2)}, v{t2 if mt else t1}")
for k in range(4):
    a(f"ds_read2_b32 {v(FXR+2*k,2)}, v{vCs} offset0:{32*k} offset1:{32*k+16}")
a(f"""
s_waitcnt lgkmcnt(0)
v_add_f32 v{csg}, v{FXR}, v{FXR+2}
v_add_f32 v{csu}, v{FXR+1}, v{FXR+3}
v_add_f32 v{csg}, v{csg}, v{FXR+4}
v_add_f32 v{csu}, v{csu}, v{FXR+5}
v_add_f32 v{csg}, v{csg}, v{FXR+6}
v_add_f32 v{csu}, v{csu}, v{FXR+7}
""")
stamp("FFN prepped")
a(f"s_mov_b64 exec, s[{sM4}:{sM4+1}]")
a(f"s_mov_b32 s{sCNT}, 0")
a("L_pollh:")
for t in range(4):
    a(f"buffer_load_dwordx4 {v(HB+4*t,4)}, v{vHl}, {srd(R_WS)}, s{sT[1]} offen offset:{64*t} sc1")
a("s_waitcnt vmcnt(0)")
poison_check(list(range(HB, HB + 16)), t3)
poll_tail("L_pollh", opt("hsleep", 1))
a("s_mov_b64 exec, -1")
stamp("h gathered")
for t in range(4):
    for k in range(3):
        mfma(GD+4*k, FGU+16*k+4*t if k < 2 else HB+4*t, HB+4*t, t == 0)
a(f"""
s_mov_b64 exec, s[{sM4}:{sM4+1}]
ds_write_b128 v{vFXw}, {v(GD,4)}
ds_write_b128 v{vFXw}, {v(GD+4,4)} offset:256
s_mov_b64 exec, 0x000f000f
ds_write_b128 v{vFXw}, {v(GD+8,4)} offset:512
s_mov_b64 exec, -1
s_waitcnt lgkmcnt(0)
s_barrier
""")
for k in range(4):
    a(f"ds_read_b32 v{FXR+8+k}, v{vSq} offset:{640*k}")
    a(f"ds_read_b32 v{FXR+12+k}, v{vSm} offset:{640*k}")
for k in range(4):
    a(f"ds_read_b32 v{FXR+2*k}, v{vFXr} offset:{640*k}")
    a(f"ds_read_b32 v{FXR+2*k+1}, v{vFXr} offset:{640*k+256}")
gg, uu, sq, sm = vT[13], vT[14], vT[15], vT[16]
a(f"""
s_waitcnt lgkmcnt(8)
v_add_f32 v{sm}, v{FXR+12}, v{FXR+13}
v_add_f32 v{sq}, v{FXR+8}, v{FXR+9}
v_add_f32 v{sm}, v{sm}, v{FXR+14}
v_add_f32 v{sq}, v{sq}, v{FXR+10}
v_add_f32 v{sm}, v{sm}, v{FXR+15}
v_add_f32 v{sq}, v{sq}, v{FXR+11}
v_mul_f32 v{sm}, 0x3b000000, v{sm}
v_mul_f32 v{sq}, 0x3b000000, v{sq}
v_fma_f32 v{sq}, -v{sm}, v{sm}, v{sq}
v_max_f32 v{sq}, 0, v{sq}
v_add_f32 v{sq}, 0x3727c5ac, v{sq}
v_rsq_f32 v{sq}, v{sq}
s_waitcnt lgkmcnt(0)
v_add_f32 v{gg}, v{FXR}, v{FXR+2}
v_add_f32 v{uu}, v{FXR+1}, v{FXR+3}
v_add_f32 v{gg}, v{gg}, v{FXR+4}
v_add_f32 v{uu}, v{uu}, v{FXR+5}
v_add_f32 v{gg}, v{gg}, v{FXR+6}
v_add_f32 v{uu}, v{uu}, v{FXR+7}
v_fma_f32 v{gg}, -v{sm}, v{csg}, v{gg}
v_fma_f32 v{uu}, -v{sm}, v{csu}, v{uu}
v_mul_f32 v{gg}, v{gg}, v{sq}
v_mul_f32 v{uu}, v{uu}, v{sq}
v_mul_f32 v{sm}, {f32(-math.log2(math.e))}, v{gg}
v_exp_f32 v{sm}, v{sm}
v_mul_f32 v{gg}, v{gg}, v{uu}
v_add_f32 v{sm}, 1.0, v{sm}
v_rcp_f32 v{sm}, v{sm}
v_mul_f32 v{gg}, v{gg}, v{sm}
v_mov_b32_dpp v{uu}, v{gg} row_shl:4 row_mask:0xf bank_mask:0xf
v_cvt_pk_bf16_f32 v{FXR}, v{gg}, v{uu}
v_mov_b32_dpp v{FXR+1}, v{FXR} row_shl:8 row_mask:0xf bank_mask:0xf
""")
for mt in range(8): mfma(DD+4*mt, FD+2*mt, FXR, True, k16=True)
a(f"s_mov_b64 exec, s[{sM4}:{sM4+1}]")
for p in range(4):
    for k in range(4):
        a(f"v_cvt_pk_bf16_f32 v{DP+4*p+k}, v{DD+8*p+2*k}, v{DD+8*p+2*k+1}")
    a(f"buffer_store_dwordx4 {v(DP+4*p,4)}, v{vPF}, {srd(R_WS)}, s{sT[4+(p>>1)]} offen offset:{64*(p&1)} sc1")
a("s_mov_b64 exec, -1")
stamp("FFN published")
a("s_branch L_fin")

a("L_wave45:")
PZ = vT[4]
a(f"""
s_lshl_b32 s{sT[3]}, s{sK}, 16
s_lshl_b32 s{sT[4]}, s{sCH}, 17
s_add_u32 s{sT[4]}, s{sT[4]}, s{sT[3]}
s_lshl_b32 s{sT[1]}, s{sK}, 4
v_add_u32 v{vT[11]}, s{sT[1]}, v{vFL}
""")
def dma_all(win, tag, nclr_after):
    signalled = 0
    torder = [0, 2, 1, 3]
    goat = GOAT_A if tag == "A" else GOAT_F
    for idx in range(64):
        i = torder[idx // 16] * 16 + (idx % 16)
        if i % 4 == 0:
            a(f"s_add_u32 m0, s{sT[3]}, {i*1024}")
            a(f"s_add_u32 s{sT[5]}, s{sT[4]}, {i*1024}")
        tmp = vT[i & 1]
        a(f"v_xor_b32 v{tmp}, {fsw(i & 15)*16}, v{vL16}")
        if idx >= win:
            a(f"s_waitcnt vmcnt({win-1})")
            done = idx - win + 1
            if done >= 16 * (signalled + 1):
                lds_signal(F_TILE + 4 * torder[signalled], base=vT[11]); signalled += 1
        a(f"buffer_load_dwordx4 v{tmp}, {srd(R_CKV)}, s{sT[5]} offen offset:{(i&3)*1024}{P_CK} lds")
        if idx == goat - 1: lds_signal(F_GO)
    lds_signal(F_QI)
    stamp("dma issued")
    while signalled < 4:
        a(f"s_waitcnt vmcnt({64 - 16*(signalled+1)})")
        lds_signal(F_TILE + 4 * torder[signalled], base=vT[11]); signalled += 1
    stamp("ckv landed")
a(f"""
s_cmp_eq_u32 s{sHGB}, 0
s_cbranch_scc1 L_w45free
s_setprio 3
s_waitcnt vmcnt(0)
""")
ln_row()
lds_signal(F_XN)
a("s_setprio 0")
lds_wait(F_WQI, 4, sleep=2)
dma_all(DWIN_A, "A", False)
a("s_branch L_w45pf")
a("L_w45free:")
if UKGATE: lds_wait(F_WQI, 4, sleep=1)
dma_all(DWIN_F, "F", False)
a("L_w45pf:")
a(f"""
v_lshrrev_b32 v{t0}, 2, v{vL}
v_mul_u32_u24 v{t0}, 2752, v{t0}
v_and_b32 v{t1}, 3, v{vL}
v_lshlrev_b32 v{t1}, 7, v{t1}
v_min_u32 v{t1}, 348, v{t1}
v_add_u32 v{t0}, v{t0}, v{t1}
s_mul_i32 s{sT[1]}, s{sY}, {16*2752}
s_mul_i32 s{sT[2]}, s{sX}, 352
s_add_u32 s{sT[1]}, s{sT[1]}, s{sT[2]}
v_min_u32 v{t1}, 21, v{vL}
v_lshlrev_b32 v{t1}, 7, v{t1}
s_mul_i32 s{sT[2]}, s{sX}, {176*1024}
s_lshl_b32 s{sT[3]}, s{sY}, 1
s_add_u32 s{sT[3]}, s{sT[3]}, s{sK}
s_mul_i32 s{sT[3]}, s{sT[3]}, {22*128}
s_add_u32 s{sT[2]}, s{sT[2]}, s{sT[3]}
""")
def ffn_pf(tag, s1, s2):
    a(f"""
    buffer_load_dword v{vDUM+1}, v{t1}, {srd(R_WD)}, s{s2} offen
    s_cmp_eq_u32 s{sW}, 5
    s_cbranch_scc1 L_w5up{tag}
    buffer_load_dword v{vDUM}, v{t0}, {srd(R_WG)}, s{s1} offen
    s_branch L_pfd{tag}
    L_w5up{tag}:
    buffer_load_dword v{vDUM}, v{t0}, {srd(R_WU)}, s{s1} offen
    L_pfd{tag}:
    """)
if PFWHEN == 0:
    lds_wait(F_RI, 2, sleep=4)
    ffn_pf("a", sT[1], sT[2])
elif PFWHEN == 2:
    lds_wait(F_QS, 4, sleep=1)
    ffn_pf("a", sT[1], sT[2])
elif PFWHEN == 3:
    lds_wait(F_QS, 4, sleep=1)
    ffn_pf("a", sT[1], sT[2])
else:
    a(f"s_mov_b32 s{sT[9]}, s{sT[1]}")
    a(f"s_mov_b32 s{sT[10]}, s{sT[2]}")
a("s_branch L_phaseC")

a("L_wave67:")
RAW = 32
a(f"s_and_b32 s{sT[0]}, s{sW}, 1")
if CODEPF:
    a(f"""
    s_getpc_b64 s[{sC2}:{sC2+1}]
    L_pcref:
    s_sub_u32 s{sC2}, s{sC2}, L_pcref-{KNAME}
    s_subb_u32 s{sC2+1}, s{sC2+1}, 0
    v_lshlrev_b32 v{t0}, 7, v{vL}
    s_lshl_b32 s{sT[2]}, s{sT[0]}, 13
    v_add_u32 v{t0}, s{sT[2]}, v{t0}
    v_add_u32 v{t1}, 16384, v{t0}
    v_min_u32 v{t0}, L_end-{KNAME}, v{t0}
    v_min_u32 v{t1}, L_end-{KNAME}, v{t1}
    """)
a(f"""
s_cmp_eq_u32 s{sHGB}, 0
s_cbranch_scc1 L_noLN
s_setprio 3
s_waitcnt vmcnt(0)
""")
ln_row()
lds_signal(F_XN)
stamp("LN done")
a("s_branch L_w67rest")
a("L_noLN:")
if CODEPF:
    a(f"""
    global_load_dword v{vDUM}, v{t0}, s[{sC2}:{sC2+1}]
    global_load_dword v{vDUM+1}, v{t1}, s[{sC2}:{sC2+1}]
    """)
a("L_w67rest:")
def clears():
    a(f"""
    v_and_b32 v{vT[8]}, 7, v{vL}
    v_lshlrev_b32 v{vT[8]}, 4, v{vT[8]}
    v_bfe_u32 v{vT[9]}, v{vL}, 3, 1
    v_lshl_add_u32 v{vT[10]}, v{vT[9]}, 14, v{vT[8]}
    v_lshl_add_u32 v{vT[10]}, v{vG}, 17, v{vT[10]}
    s_lshl_b32 s{sT[1]}, s{sMH}, 1
    s_add_u32 s{sT[1]}, s{sT[1]}, s{sT[0]}
    s_lshl_b32 s{sT[1]}, s{sT[1]}, 15
    s_lshl_b32 s{sT[2]}, s{sH}, 2
    s_add_u32 s{sT[2]}, s{sT[2]}, s{sCQ}
    s_lshl_b32 s{sT[2]}, s{sT[2]}, 7
    s_add_u32 s{sT[1]}, s{sT[1]}, s{sT[2]}
    s_add_u32 s{sT[1]}, s{sT[1]}, {PA_OFF}
    buffer_store_dwordx4 {v(PZ,4)}, v{vT[10]}, {srd(R_WS)}, s{sT[1]} offen sc1
    """)
a(f"""
v_mov_b32 v{PZ}, -1
v_mov_b32 v{PZ+1}, -1
v_mov_b32 v{PZ+2}, -1
v_mov_b32 v{PZ+3}, -1
""")
clears()
a(f"""
s_cmp_eq_u32 s{sISR}, 0
s_cbranch_scc1 L_noclrH
s_cmp_lg_u32 s{sW}, 7
s_cbranch_scc1 L_noclrH
s_lshl_b32 s{sT[1]}, s{sRHO}, 7
s_add_u32 s{sT[1]}, s{sT[1]}, {HG_OFF}
s_mov_b64 exec, 0xff
buffer_store_dwordx4 {v(PZ,4)}, v{vL16}, {srd(R_WS)}, s{sT[1]} offen sc1
s_mov_b64 exec, -1
L_noclrH:
s_cmp_eq_u32 s{sISF}, 0
s_cbranch_scc1 L_noclrF
v_mul_u32_u24 v{vT[10]}, 12288, v{vT[9]}
v_add_u32 v{vT[10]}, v{vT[10]}, v{vT[8]}
s_mov_b32 s{sT[1]}, 98304
v_mul_lo_u32 v{vT[9]}, v{vG}, s{sT[1]}
v_add_u32 v{vT[10]}, v{vT[10]}, v{vT[9]}
s_mul_i32 s{sT[1]}, s{sT[0]}, 49152
s_lshl_b32 s{sT[2]}, s{sPHI}, 7
s_add_u32 s{sT[1]}, s{sT[1]}, s{sT[2]}
s_add_u32 s{sT[1]}, s{sT[1]}, {PF_OFF}
s_add_u32 s{sT[2]}, s{sT[1]}, 24576
buffer_store_dwordx4 {v(PZ,4)}, v{vT[10]}, {srd(R_WS)}, s{sT[1]} offen sc1
buffer_store_dwordx4 {v(PZ,4)}, v{vT[10]}, {srd(R_WS)}, s{sT[2]} offen sc1
L_noclrF:
s_waitcnt vmcnt(0)
""")
lds_signal(F_CLR)
a("s_setprio 0")
a(f"""
v_lshlrev_b32 v{vT[4]}, 13, v{vG}
v_lshl_add_u32 v{vT[4]}, v{vN}, 4, v{vT[4]}
s_lshl_b32 s{sT[1]}, s{sCQ}, 7
s_lshl_b32 s{sT[2]}, s{sT[0]}, 6
s_add_u32 s{sT[1]}, s{sT[1]}, s{sT[2]}
s_lshl_b32 s{sT[1]}, s{sT[1]}, 13
s_lshl_b32 s{sT[2]}, s{sH}, 8
s_add_u32 s{sT[1]}, s{sT[1]}, s{sT[2]}
v_lshrrev_b32 v{vT[5]}, 5, v{vL}
v_lshlrev_b32 v{vT[5]}, 10, v{vT[5]}
v_and_b32 v{vT[6]}, 31, v{vL}
v_lshl_add_u32 v{vT[5]}, v{vT[6]}, 4, v{vT[5]}
s_lshl_b32 s{sT[2]}, s{sH}, 17
s_lshl_b32 s{sT[3]}, s{sT[0]}, 16
s_add_u32 s{sT[2]}, s{sT[2]}, s{sT[3]}
s_lshl_b32 s{sT[3]}, s{sMH}, 9
s_add_u32 s{sT[2]}, s{sT[2]}, s{sT[3]}
s_waitcnt vmcnt(0)
""")
lds_wait(F_QI, 6, sleep=2)
if opt('rgate', 0): lds_wait(F_QS, 4, sleep=1)
for i in range(16):
    if i: a(f"s_add_u32 s{sT[1]}, s{sT[1]}, 32768")
    if i >= RWIN: a(f"s_waitcnt vmcnt({RWIN-1})")
    a(f"buffer_load_dwordx4 {v(RAW+4*i,4)}, v{vT[4]}, {srd(R_WUV)}, s{sT[1]} offen{P_R}")
for i in range(32):
    if i and i % 2 == 0: a(f"s_add_u32 s{sT[2]}, s{sT[2]}, 4096")
    if i + 16 >= RWIN: a(f"s_waitcnt vmcnt({RWIN-1})")
    a(f"buffer_load_dwordx4 {v(RAW+64+4*i,4)}, v{vT[5]}, {srd(R_WO)}, s{sT[2]} offen offset:{(i&1)*2048}{P_R}")
lds_signal(F_RI)
stamp("rest issued")
a(f"""
v_lshlrev_b32 v{t0}, 5, v{vG}
v_lshlrev_b32 v{t1}, 4, v{vN}
v_xor_b32 v{t0}, v{t0}, v{t1}
v_lshl_add_u32 v{t0}, v{vG}, 8, v{t0}
s_lshl_b32 s{sT[1]}, s{sT[0]}, 14
v_add_u32 v{t0}, s{sT[1]}, v{t0}
v_xor_b32 v{t1}, 128, v{t0}
v_lshrrev_b32 v{t2}, 5, v{vL}
v_and_b32 v{vT[4]}, 31, v{vL}
v_lshlrev_b32 v{vT[4]}, 4, v{vT[4]}
v_lshlrev_b32 v{t3}, 5, v{t2}
v_xor_b32 v{vT[4]}, v{vT[4]}, v{t3}
v_lshl_add_u32 v{vT[4]}, v{t2}, 9, v{vT[4]}
s_lshl_b32 s{sT[1]}, s{sT[0]}, 15
s_add_u32 s{sT[1]}, s{sT[1]}, {L_WO}
v_add_u32 v{vT[4]}, s{sT[1]}, v{vT[4]}
v_xor_b32 v{vT[5]}, 64, v{vT[4]}
v_xor_b32 v{vT[6]}, 128, v{vT[4]}
v_xor_b32 v{vT[7]}, 192, v{vT[4]}
""")
lds_wait(F_BD, 4, sleep=1)
for i in range(16):
    if 47 - i < RWIN: a(f"s_waitcnt vmcnt({47-i})")
    a(f"ds_write_b128 v{t1 if (i>>1)&1 else t0}, {v(RAW+4*i,4)} offset:{L_WUV + 1024*i}")
for i in range(32):
    if 31 - i < RWIN: a(f"s_waitcnt vmcnt({31-i})")
    sel = (i & 1) | (((i >> 2) & 1) << 1)
    a(f"ds_write_b128 v{vT[4+sel]}, {v(RAW+64+4*i,4)} offset:{1024*i}")
lds_signal(F_ST)
stamp("images written")

a("L_phaseC:")
FUV, FO, CB, XD, AD, AP = 32, 64, 128, 144, 160, 176
vUVa, vOa, vCLr, vCXw, vCXr, vPA = vT[4], vT[5], vT[6], vT[7], vT[8], vT[9]
a(f"""
v_bfe_u32 v{vT[12]}, v{vL}, 2, 2
v_and_b32 v{vT[13]}, 1, v{vG}
v_lshl_add_u32 v{vT[13]}, v{vT[13]}, 2, v{vT[12]}
v_lshl_add_u32 v{vT[12]}, v{vG}, 3, v{vT[12]}
v_and_b32 v{vT[14]}, 3, v{vL}
v_lshlrev_b32 v{vT[14]}, 3, v{vT[14]}
s_lshl_b32 s{sT[0]}, s{sK}, 1
v_xor_b32 v{vUVa}, s{sT[0]}, v{vT[13]}
v_lshl_add_u32 v{vUVa}, v{vUVa}, 5, v{vT[14]}
v_lshl_add_u32 v{vUVa}, v{vT[12]}, 8, v{vUVa}
s_lshl_b32 s{sT[0]}, s{sK}, 2
v_xor_b32 v{vOa}, s{sT[0]}, v{vT[13]}
v_lshl_add_u32 v{vOa}, v{vOa}, 5, v{vT[14]}
v_lshl_add_u32 v{vOa}, v{vT[12]}, 9, v{vOa}
v_add_u32 v{vOa}, {L_WO}, v{vOa}
v_and_b32 v{vT[12]}, 3, v{vN}
v_mul_u32_u24 v{vT[12]}, 272, v{vT[12]}
v_lshl_add_u32 v{vCXr}, v{vG}, 4, v{vT[12]}
v_add_u32 v{vCLr}, {L_CL}, v{vCXr}
v_add_u32 v{vCXr}, {L_CX}, v{vCXr}
v_lshl_add_u32 v{vCXw}, v{vG}, 3, v{vT[12]}
s_lshl_b32 s{sT[0]}, s{sK}, 6
s_add_u32 s{sT[0]}, s{sT[0]}, {L_CX}
v_add_u32 v{vCXw}, s{sT[0]}, v{vCXw}
v_lshlrev_b32 v{vPA}, 4, v{vG}
v_lshl_add_u32 v{vPA}, v{vN}, 17, v{vPA}
s_lshl_b32 s{sT[1]}, s{sMH}, 2
s_add_u32 s{sT[1]}, s{sT[1]}, s{sK}
s_lshl_b32 s{sT[1]}, s{sT[1]}, 14
s_lshl_b32 s{sT[2]}, s{sH}, 2
s_add_u32 s{sT[2]}, s{sT[2]}, s{sCQ}
s_lshl_b32 s{sT[2]}, s{sT[2]}, 7
s_add_u32 s{sT[1]}, s{sT[1]}, s{sT[2]}
s_add_u32 s{sT[1]}, s{sT[1]}, {PA_OFF}
""")
lds_wait(F_ST, 2, sleep=1)
for mt in range(2):
    if mt: a(f"v_xor_b32 v{vT[12]}, 32, v{vUVa}")
    for ks in range(4):
        for vv in range(2):
            a(f"ds_read_b64_tr_b16 {v(FUV+16*mt+4*ks+2*vv,2)}, v{vT[12] if mt else vUVa} offset:{L_WUV + (32*ks+4*vv)*256}")
for mt in range(4):
    if mt: a(f"v_xor_b32 v{vT[12]}, {32*mt}, v{vOa}")
    for ks in range(4):
        for vv in range(2):
            a(f"ds_read_b64_tr_b16 {v(FO+16*mt+4*ks+2*vv,2)}, v{vT[12] if mt else vOa} offset:{(32*ks+4*vv)*512}")
stamp("weights staged")
a("s_setprio 2")
def spec_cl():
    for ks in range(4): a(f"ds_read_b128 {v(CB+4*ks,4)}, v{vCLr} offset:{64*ks}")
lds_wait(F_CL, 4, spec_cl)
if PFWHEN == 1:
    a(f"""
    s_cmp_ge_u32 s{sW}, 6
    s_cbranch_scc1 L_nopf2
    """)
    ffn_pf("b", sT[9], sT[10])
    a("L_nopf2:")
for ks in range(4):
    for mt in range(2): mfma(XD+4*mt, FUV+16*mt+4*ks, CB+4*ks, ks == 0)
for k in range(4): a(f"v_cvt_pk_bf16_f32 v{XD+8+k}, v{XD+2*k}, v{XD+2*k+1}")
a(f"""
s_mov_b64 exec, s[{sM4}:{sM4+1}]
ds_write_b64 v{vCXw}, {v(XD+8,2)}
ds_write_b64 v{vCXw}, {v(XD+10,2)} offset:32
""")
lds_signal(F_CX)
def spec_cx():
    for ks in range(4): a(f"ds_read_b128 {v(CB+4*ks,4)}, v{vCXr} offset:{64*ks}")
lds_wait(F_CX, 4, spec_cx)
for p in range(2):
    for ks in range(4):
        for k in range(2):
            mt = 2 * p + k
            mfma(AD+4*mt, FO+16*mt+4*ks, CB+4*ks, ks == 0)
a(f"s_mov_b64 exec, s[{sM4}:{sM4+1}]")
for p in range(2):
    for k in range(4): a(f"v_cvt_pk_bf16_f32 v{AP+4*p+k}, v{AD+8*p+2*k}, v{AD+8*p+2*k+1}")
    a(f"buffer_store_dwordx4 {v(AP+4*p,4)}, v{vPA}, {srd(R_WS)}, s{sT[1]} offen offset:{64*p} sc1")
a("s_mov_b64 exec, -1")
stamp("attn partial published")
a("s_waitcnt vmcnt(0)")

a("L_fin:")
if PROF:
    stamp("end")
    a(f"""
    s_lshl_b32 s{sT[0]}, s2, 3
    s_add_u32 s{sT[0]}, s{sT[0]}, s{sW}
    s_lshl_b32 s{sT[0]}, s{sT[0]}, 8
    s_add_u32 s{sT[0]}, s{sT[0]}, {TS_OFF}
    v_lshlrev_b32 v{t0}, 2, v{vL}
    buffer_store_dword v{vTSA}, v{t0}, {srd(R_WS)}, s{sT[0]} offen
    """)
a("L_end:")

hdr = open("sequential_preLN__compressed_kv_cla__swiglu_ffn__decode.s.ref").read().split("; @launch")[0]
open(OUT, "w").write(wrap_single(a.text(), 256, 512, LDS_BYTES, vgpr=256, header=hdr))
print("instructions:", a.ninstr, file=sys.stderr)
```

```python
import sys, math, struct
from asmgen import *

def opt(name, default):
    for x in sys.argv[1:]:
        if x.startswith("--" + name + "="):
            return int(x.split("=")[1])
    return default
PROF = "--prof" in sys.argv
DBGT = "--dbgtime" in sys.argv
OUT = [a for a in sys.argv[1:] if not a.startswith("--")]
OUT = OUT[0] if OUT else "sequential_preLN__compressed_kv_cla__swiglu_ffn__decode.s"
POLL_MAX = 1 << 15
LSPIN_MAX = 1 << 20
DWIN_A = opt("dwina", 14)
DWIN_F = opt("dwinf", 20)
RWIN = opt("rwin", 12)
UKPF = opt("ukpf", 1)
CODEPF = opt("codepf", 1)
QSLEEP = opt("qsleep", 1)
OACK = opt("oack", 1)
POLS = [" nt", "", " sc0", " sc1", " sc0 nt"]
P_WQ = POLS[opt("pwq", 1)]; P_CK = POLS[opt("pck", 1)]; P_R = POLS[opt("pr", 1)]
AQ = opt("aq", 16)
PFWHEN = opt("pfwhen", 1)
MLSLEEP = opt("mlsleep", 2)
FFNDLY = opt("ffndly", 24)

EPOCH_OFF = 0x0
QA_OFF = 0x10000
HG_OFF = 0x58000
PA_OFF = 0x80000
PF_OFF = 0x100000
O_OFF = 0x200000
ML_OFF = 0x600000
TS_OFF = 0x1000000
WS_USED = 0x1100000

L_QS = 131072
L_XN = 147456
L_Q16 = 151616
L_MX = 152640
L_PX = 153152
L_CL = 157248
L_CX = 159488
L_RED = 160576
L_CS = 162624
L_FL = 163136
LDS_BYTES = 163840
L_WUV, L_WO = 0, 32768
L_G, L_U, L_WD = 98304, 114688, L_QS
L_FX = L_PX
(F_XN, F_CLR, F_QP, F_Q16, F_QS, F_P, F_GO, F_WQI) = [4 * i for i in range(8)]
F_TILE = 32
(F_RI, F_BD, F_ST, F_CL, F_CX, F_QI) = [64 + 4 * i for i in range(6)]
UKGATE = opt('ukgate', 1)
GOAT_A = opt('goata', 48)
GOAT_F = opt('goatf', 80)
L_QP = L_PX

sW, sX, sY, sH, sYP, sCQ, sMH, sHGB, sCH, sEP = 3, 4, 5, 6, 7, 8, 9, 10, 11, 12
sT = list(range(13, 24))
sO, sHA, sJQ, sPHI, sRHO, sISF, sISR, sCNT = 24, 25, 26, 27, 28, 29, 30, 31
R_X, R_CKV, R_WQ, R_WUK, R_WUV, R_WO, R_WG, R_WU, R_WD, R_OUT, R_WS, R_PF = [32 + 4 * i for i in range(12)]
sSELLO, sSELHI = 80, 81
sM8 = 82
sM4 = 84
sACC = 86
sC2 = 88
sTS = 90
sK = 92
def srd(r): return f"s[{r}:{r+3}]"
def f32(x): return "0x%08x" % struct.unpack("<I", struct.pack("<f", x))[0]

vL, vN, vG, vL16, vFL, vONE, vTSA = 1, 2, 3, 4, 5, 6, 7
vT = list(range(8, 32))
t0, t1, t2, t3 = vT[0], vT[1], vT[2], vT[3]
vSP = vT[23]
vDUM = vT[21]
def v(i, n=1): return f"v{i}" if n == 1 else f"v[{i}:{i+n-1}]"
def fsw(row): return 2 * ((row & 7) ^ (4 * (row >> 3))) + (row >> 3)

a = Asm()
stamps = {}
PROBE = [x.split("=", 1)[1].replace("_", " ") for x in sys.argv if x.startswith("--probe=")]
def stamp(name):
    if PROBE and PROBE[0] == name.replace("_", " ") and opt("plocal", 1):
        a("s_memrealtime s[94:95]")
        a("s_waitcnt lgkmcnt(0)")
    elif PROBE and PROBE[0] == name.replace("_", " "):
        a(f"""
        s_memrealtime s[94:95]
        s_waitcnt lgkmcnt(0)
        v_mov_b32 v{vT[19]}, 16
        v_mov_b32 v{vT[20]}, s94
        s_mov_b64 s[100:101], exec
        s_mov_b64 exec, 1
        global_atomic_umax v{vT[19]}, v{vT[20]}, s[98:99] sc1
        s_mov_b64 exec, s[100:101]
        """)
    if not PROF: return
    if name not in stamps:
        stamps[name] = len(stamps)
    i = stamps[name]
    a(f"""
    s_memrealtime s[{sTS}:{sTS+1}]
    s_waitcnt lgkmcnt(0)
    v_writelane_b32 v{vTSA}, s{sTS}, {i}
    """)
def cstamp(name):
    if not PROF: return
    name = "#" + name
    if name not in stamps:
        stamps[name] = len(stamps)
    a(f"s_add_u32 s{sTS}, s{sCNT}, 1")
    a(f"v_writelane_b32 v{vTSA}, s{sTS}, {stamps[name]}")
def poll_tail(name, sleep=0):
    done = a.newlabel("Lpd")
    a(f"""
    s_cmp_eq_u64 vcc, 0
    s_cbranch_scc1 {done}
    """)
    if sleep: a(f"s_sleep {sleep}")
    a(f"""
    s_add_u32 s{sCNT}, s{sCNT}, 1
    s_cmp_lt_u32 s{sCNT}, {POLL_MAX}
    s_cbranch_scc1 {name}
    """)
    a.label(done)
def poison_check(regs, tmp):
    regs = list(regs); n = len(regs)
    a(f"v_max3_u32 v{tmp}, v{regs[0]}, v{regs[1]}, v{regs[2]}")
    i = 3
    while i + 1 < n:
        a(f"v_max3_u32 v{tmp}, v{tmp}, v{regs[i]}, v{regs[i+1]}"); i += 2
    if i < n: a(f"v_max_u32 v{tmp}, v{tmp}, v{regs[i]}")
    a(f"v_cmp_eq_u32 vcc, -1, v{tmp}")
def lds_signal(off, base=None):
    a(f"""
    s_mov_b64 exec, 1
    ds_add_u32 v{vFL if base is None else base}, v{vONE} offset:{off}
    s_mov_b64 exec, -1
    """)
def lds_wait(off, target, spec=None, sleep=0, base=None):
    lp, dn = a.newlabel("Lw"), a.newlabel("Lwd")
    a(f"s_mov_b32 s{sCNT}, 0")
    a.label(lp)
    a(f"ds_read_b32 v{vSP}, v{vFL if base is None else base} offset:{off}")
    if spec: spec()
    a(f"""
    s_waitcnt lgkmcnt(0)
    v_readfirstlane_b32 s{sACC}, v{vSP}
    s_cmp_ge_u32 s{sACC}, {target}
    s_cbranch_scc1 {dn}
    """)
    if sleep: a(f"s_sleep {sleep}")
    a(f"""
    s_add_u32 s{sCNT}, s{sCNT}, 1
    s_cmp_lt_u32 s{sCNT}, {LSPIN_MAX}
    s_cbranch_scc1 {lp}
    """)
    a.label(dn)
def rne_bf16(dst, src):
    a(f"v_cvt_pk_bf16_f32 v{dst}, v{src}, v{src}")
    a(f"v_and_b32 v{dst}, 0xffff0000, v{dst}")
def mfma(d, A, B, first, k16=False):
    n = 2 if k16 else 4
    op = "v_mfma_f32_16x16x16_bf16" if k16 else "v_mfma_f32_16x16x32_bf16"
    a(f"{op} {v(d,4)}, {v(A,n)}, {v(B,n)}, {'0' if first else v(d,4)}")

XR, XF = 32, 40
def ln_row():
    def wave_sum(x):
        for ctl in ["row_shr:1", "row_shr:2", "row_shr:4", "row_shr:8"]:
            a(f"v_add_f32_dpp v{x}, v{x}, v{x} {ctl} row_mask:0xf bank_mask:0xf bound_ctrl:0")
        a(f"v_add_f32_dpp v{x}, v{x}, v{x} row_bcast:15 row_mask:0xa bank_mask:0xf")
        a(f"v_add_f32_dpp v{x}, v{x}, v{x} row_bcast:31 row_mask:0xc bank_mask:0xf")
    xr, xf = XR, XF
    for i in range(4):
        a(f"v_lshlrev_b32 v{xf+2*i}, 16, v{xr+i}")
        a(f"v_and_b32 v{xf+2*i+1}, 0xffff0000, v{xr+i}")
    a(f"v_add_f32 v{xf+12}, v{xf}, v{xf+1}")
    for i in range(2, 8): a(f"v_add_f32 v{xf+12}, v{xf+12}, v{xf+i}")
    wave_sum(xf + 12)
    a(f"v_mov_b32 v{xf+15}, 0x3b000000")
    a(f"v_readlane_b32 s{sT[6]}, v{xf+12}, 63")
    a(f"v_mul_f32 v{xf+13}, s{sT[6]}, v{xf+15}")
    for i in range(8):
        a(f"v_sub_f32 v{xf+14}, v{xf+i}, v{xf+13}")
        if i == 0: a(f"v_mul_f32 v{xf+12}, v{xf+14}, v{xf+14}")
        else: a(f"v_fmac_f32 v{xf+12}, v{xf+14}, v{xf+14}")
    rne_bf16(xf + 13, xf + 13)
    wave_sum(xf + 12)
    for i in range(8): a(f"v_sub_f32 v{xf+i}, v{xf+i}, v{xf+13}")
    a(f"v_readlane_b32 s{sT[6]}, v{xf+12}, 63")
    for i in range(4): a(f"v_cvt_pk_bf16_f32 v{xf+8+i}, v{xf+2*i}, v{xf+2*i+1}")
    a(f"v_mul_f32 v{xf+12}, s{sT[6]}, v{xf+15}")
    rne_bf16(xf + 12, xf + 12)
    a(f"v_add_f32 v{xf+12}, 0x3727c5ac, v{xf+12}")
    rne_bf16(xf + 12, xf + 12)
    a(f"v_sqrt_f32 v{xf+12}, v{xf+12}")
    for i in range(4):
        a(f"v_lshlrev_b32 v{xf+2*i}, 16, v{xf+8+i}")
        a(f"v_and_b32 v{xf+2*i+1}, 0xffff0000, v{xf+8+i}")
    rne_bf16(xf + 12, xf + 12)
    a(f"v_rcp_f32 v{xf+12}, v{xf+12}")
    a(f"s_mul_i32 s{sT[6]}, s{sK}, 1040")
    a(f"s_add_u32 s{sT[6]}, s{sT[6]}, {L_XN}")
    a(f"v_add_u32 v{xf+15}, s{sT[6]}, v{vL16}")
    for i in range(8): a(f"v_mul_f32 v{xf+i}, v{xf+i}, v{xf+12}")
    for i in range(4): a(f"v_cvt_pk_bf16_f32 v{xf+8+i}, v{xf+2*i}, v{xf+2*i+1}")
    a(f"ds_write_b128 v{xf+15}, {v(xf+8,4)}")

EARLYPF = f"""s_getpc_b64 s[{sC2}:{sC2+1}]
v_lshlrev_b32 v{t1}, 6, v0
v_min_u32 v{t1}, L_end-{KNAME}-256, v{t1}
global_load_dword v{vDUM}, v{t1}, s[{sC2}:{sC2+1}]""" if opt("earlypf", 1) else ""
if opt("earlypf", 1): CODEPF = 0
WQ, FR, AC, BX, UK = 32, 160, 192, 224, 32
XBAR = opt('xbar', 1)
vWQ, vUK = vT[4], vT[5]
def wq_kstep(u):
    a(f"""
    s_add_u32 s{sT[2]}, s{sJQ}, {u}
    s_and_b32 s{sT[2]}, s{sT[2]}, 3
    s_lshl_b32 s{sT[2]}, s{sT[2]}, 18
    s_add_u32 s{sT[3]}, s{sT[2]}, s{sT[0]}
    """)
    if u == 0:
        a("s_waitcnt lgkmcnt(0)")
        if XBAR: a("s_barrier")
    for e in range(8):
        if e: a(f"s_add_u32 s{sT[3]}, s{sT[3]}, 8192")
        a(f"buffer_load_dwordx4 {v(WQ+4*(8*u+e),4)}, v{vWQ}, {srd(R_WQ)}, s{sT[3]} offen{P_WQ}")
def wq_lines(u):
    L = [[f"s_add_u32 s{sT[2]}, s{sJQ}, {u}", f"s_and_b32 s{sT[2]}, s{sT[2]}, 3", f"s_lshl_b32 s{sT[2]}, s{sT[2]}, 18", f"s_add_u32 s{sT[3]}, s{sT[2]}, s{sT[0]}"]]
    for e in range(8):
        if e: L.append([f"s_add_u32 s{sT[3]}, s{sT[3]}, 8192"])
        L[-1].append(f"buffer_load_dwordx4 {v(WQ+4*(8*u+e),4)}, v{vWQ}, {srd(R_WQ)}, s{sT[3]} offen{P_WQ}")
    return L
def uk_lines():
    return [[f"buffer_load_dwordx4 {v(UK+16*mt+4*t,4)}, v{vUK}, {srd(R_WUK)}, s{sT[4+mt]} offen offset:{64*t}{P_WQ}"] for mt in range(2) for t in range(4)]
def q_kstep(u, extra=None):
    for jj in range(8):
        if extra:
            for l in extra[jj]: a(l)
        for p in range(4):
            sel = sSELHI if (jj & 1) else sSELLO
            a(f"v_perm_b32 v{FR+4*jj+p}, v{WQ+4*(8*u+2*p+1)+(jj>>1)}, v{WQ+4*(8*u+2*p)+(jj>>1)}, s{sel}")
        if jj >= 1: mfma(AC+4*(jj-1), FR+4*(jj-1), BX+4*u, u == 0)
    mfma(AC+28, FR+28, BX+4*u, u == 0)
def srdw(lst):
    for r, nb in lst:
        a(f"s_mov_b32 s{r+2}, {nb}")
        a(f"s_mov_b32 s{r+3}, 0x20000")
a(f"""
s_load_dwordx2 s[{R_WQ}:{R_WQ+1}], s[0:1], 16
s_load_dwordx2 s[{R_X}:{R_X+1}], s[0:1], 0
s_load_dwordx2 s[{R_WUK}:{R_WUK+1}], s[0:1], 24
s_load_dwordx2 s[{R_CKV}:{R_CKV+1}], s[0:1], 8
s_load_dwordx2 s[{R_WS}:{R_WS+1}], s[0:1], 96
{"s_memrealtime s[94:95]" if DBGT else ""}
s_cmp_ge_u32 s2, 256
s_cbranch_scc1 L_end
{EARLYPF}
v_lshrrev_b32 v{t0}, 6, v0
v_and_b32 v{vL}, 63, v0
v_and_b32 v{vN}, 15, v0
v_readfirstlane_b32 s{sW}, v{t0}
v_bfe_u32 v{vG}, v0, 4, 2
v_lshlrev_b32 v{vL16}, 4, v{vL}
v_lshlrev_b32 v{vWQ}, 16, v{vG}
v_lshl_add_u32 v{vWQ}, v{vN}, 4, v{vWQ}
s_and_b32 s{sX}, s2, 7
s_lshr_b32 s{sYP}, s2, 4
s_and_b32 s{sHA}, s{sYP}, 3
s_lshl2_add_u32 s{sHA}, s{sX}, s{sHA}
s_lshr_b32 s{sJQ}, s{sYP}, 2
s_lshl_b32 s{sT[1]}, s{sHA}, 8
s_and_b32 s{sK}, s{sW}, 3
""")
srdw([(R_WQ, 4 << 20), (R_X, 4096), (R_WUK, 4 << 20)])
a(f"""
s_bitcmp1_b32 s2, 3
s_cbranch_scc1 L_f0
s_cmp_ge_u32 s{sW}, 4
s_cbranch_scc1 L_al0
s_lshl_b32 s{sT[0]}, s{sW}, 20
s_add_u32 s{sT[0]}, s{sT[0]}, s{sT[1]}
""")
wq_kstep(0)
a(f"""
s_branch {"L_j1" if XBAR else "L_j0"}
L_al0:
s_setprio 3
s_lshl_b32 s{sT[2]}, s{sK}, 10
v_lshlrev_b32 v{t0}, 2, v{vL}
v_add_u32 v{t0}, {L_FL}, v{t0}
v_mov_b32 v{t3}, 0
ds_write_b32 v{t0}, v{t3}
v_lshlrev_b32 v{t0}, 3, v{vN}
v_add_u32 v{t0}, {L_MX}, v{t0}
v_mov_b32 v{t2}, 0xff800000
ds_write2_b32 v{t0}, v{t2}, v{t3} offset0:0 offset1:1
s_waitcnt lgkmcnt(0)
buffer_load_dwordx4 {v(XR,4)}, v{vL16}, {srd(R_X)}, s{sT[2]} offen
s_branch L_j0
L_f0:
s_cmp_ge_u32 s{sW}, 4
s_cbranch_scc1 L_f1
v_lshrrev_b32 v{t2}, 1, v{vL}
v_lshlrev_b32 v{t2}, 13, v{t2}
v_and_b32 v{t3}, 1, v{vL}
v_lshl_add_u32 v{t2}, v{t3}, 7, v{t2}
s_lshl2_add_u32 s{sT[6]}, s{sJQ}, s{sW}
s_lshl_b32 s{sT[6]}, s{sT[6]}, 18
s_add_u32 s{sT[6]}, s{sT[6]}, s{sT[1]}
s_waitcnt lgkmcnt(0)
buffer_load_dword v{vDUM+1}, v{t2}, {srd(R_WUK)}, s{sT[6]} offen{P_WQ}
s_branch L_j0
L_f1:
v_lshlrev_b32 v{t0}, 2, v{vL}
v_add_u32 v{t0}, {L_FL}, v{t0}
v_mov_b32 v{t3}, 0
ds_write_b32 v{t0}, v{t3}
v_lshlrev_b32 v{t0}, 3, v{vN}
v_add_u32 v{t0}, {L_MX}, v{t0}
v_mov_b32 v{t2}, 0xff800000
ds_write2_b32 v{t0}, v{t2}, v{t3} offset0:0 offset1:1
s_waitcnt lgkmcnt(0)
L_j0:
s_barrier
L_j1:
""")
if PROF: a(f"v_mov_b32 v{vTSA}, 0")
stamp("start")
a(f"""
s_load_dword s{sEP}, s[{R_WS}:{R_WS+1}], {EPOCH_OFF}
s_load_dwordx2 s[{R_WUV}:{R_WUV+1}], s[0:1], 32
s_load_dwordx2 s[{R_WO}:{R_WO+1}], s[0:1], 40
s_load_dwordx2 s[{R_WG}:{R_WG+1}], s[0:1], 56
s_load_dwordx2 s[{R_WU}:{R_WU+1}], s[0:1], 64
s_load_dwordx2 s[{R_WD}:{R_WD+1}], s[0:1], 72
s_load_dwordx2 s[{R_OUT}:{R_OUT+1}], s[0:1], 80
{"s_load_dwordx2 s[98:99], s[0:1], 88" if DBGT else ""}
{"s_memtime s[96:97]" if DBGT else ""}
v_mov_b32 v{vFL}, {L_FL}
v_mov_b32 v{vONE}, 1
""")
srdw([(R_CKV, 16 << 20), (R_WS, WS_USED), (R_WUV, 4 << 20), (R_WO, 4 << 20),
      (R_WG, 512 * 1376 * 2), (R_WU, 512 * 1376 * 2), (R_WD, 512 * 1376 * 2), (R_OUT, 4096), (R_PF, 86 * 128)])
a(f"""
s_lshr_b32 s{sY}, s2, 3
s_and_b32 s{sT[4]}, s{sY}, 1
s_xor_b32 s{sHGB}, s{sT[4]}, 1
s_lshl_b32 s{sH}, s{sT[4]}, 4
s_lshl1_add_u32 s{sH}, s{sX}, s{sH}
s_and_b32 s{sT[5]}, s{sYP}, 1
s_add_u32 s{sH}, s{sH}, s{sT[5]}
s_bfe_u32 s{sCQ}, s{sY}, 0x20002
s_lshr_b32 s{sMH}, s{sY}, 4
s_lshl4_add_u32 s{sCH}, s{sX}, s{sYP}
s_mov_b32 s{sSELLO}, 0x05040100
s_mov_b32 s{sSELHI}, 0x07060302
s_mov_b32 s{sM4}, 0x000f000f
s_mov_b32 s{sM4+1}, 0x000f000f
s_mov_b32 s{sM8}, 0x00ff00ff
s_mov_b32 s{sM8+1}, 0x00ff00ff
s_mul_i32 s{sPHI}, s{sX}, 11
s_add_u32 s{sPHI}, s{sPHI}, s{sYP}
s_cmp_lt_u32 s{sYP}, 11
s_cselect_b32 s{sISF}, s{sT[4]}, 0
s_cmp_lt_u32 s{sPHI}, 86
s_cselect_b32 s{sISF}, s{sISF}, 0
s_cmp_ge_u32 s{sYP}, 12
s_cselect_b32 s{sISR}, s{sHGB}, 0
s_sub_u32 s{sRHO}, s{sYP}, 12
s_lshl3_add_u32 s{sRHO}, s{sRHO}, s{sX}
s_cmp_ge_u32 s{sW}, 6
s_cbranch_scc1 L_wave67
s_cmp_ge_u32 s{sW}, 4
s_cbranch_scc1 L_wave45
s_setprio 2
s_cmp_eq_u32 s{sHGB}, 0
s_cbranch_scc1 L_freeC
""")

vQPw, vQPr, vQ16w, vQ16r, vQAp = vT[6], vT[7], vT[8], vT[9], vT[10]
a(f"""
s_lshl_b32 s{sT[4]}, s{sW}, 5
s_lshl_b32 s{sT[5]}, s{sJQ}, 7
s_add_u32 s{sT[4]}, s{sT[4]}, s{sT[5]}
s_lshl_b32 s{sT[4]}, s{sT[4]}, 13
s_add_u32 s{sT[4]}, s{sT[4]}, s{sT[1]}
s_add_u32 s{sT[5]}, s{sT[4]}, {16*8192}
v_lshlrev_b32 v{vUK}, 13, v{vN}
v_lshl_add_u32 v{vUK}, v{vG}, 4, v{vUK}
v_and_b32 v{t1}, 3, v{vN}
v_mul_u32_u24 v{t0}, 1040, v{t1}
v_lshl_add_u32 v{t0}, v{vG}, 4, v{t0}
s_lshl_b32 s{sT[6]}, s{sW}, 8
s_add_u32 s{sT[6]}, s{sT[6]}, {L_XN}
v_add_u32 v{t0}, s{sT[6]}, v{t0}
s_lshl_b32 s{sT[6]}, s{sW}, 11
s_add_u32 s{sT[6]}, s{sT[6]}, {L_QP}
v_lshlrev_b32 v{vQPw}, 6, v{vG}
v_lshl_add_u32 v{vQ16r}, v{t1}, 4, v{vQPw}
v_add_u32 v{vQPw}, s{sT[6]}, v{vQ16r}
v_add_u32 v{vQ16r}, {L_Q16}, v{vQ16r}
s_lshl_b32 s{sT[6]}, s{sW}, 9
s_add_u32 s{sT[6]}, s{sT[6]}, {L_QP}
v_lshlrev_b32 v{vQPr}, 2, v{vL}
v_add_u32 v{vQPr}, s{sT[6]}, v{vQPr}
v_lshlrev_b32 v{vQ16w}, 6, v{t1}
v_and_b32 v{t2}, 12, v{vL}
v_lshl_add_u32 v{vQ16w}, v{t2}, 2, v{vQ16w}
v_lshl_add_u32 v{vQ16w}, v{vG}, 8, v{vQ16w}
s_lshl_b32 s{sT[6]}, s{sW}, 2
s_add_u32 s{sT[6]}, s{sT[6]}, {L_Q16}
v_add_u32 v{vQ16w}, s{sT[6]}, v{vQ16w}
v_lshlrev_b32 v{vQAp}, 16, v{t1}
v_lshl_add_u32 v{vQAp}, v{vG}, 4, v{vQAp}
v_bfe_u32 v{t2}, v{vN}, 2, 1
v_lshl_add_u32 v{vQAp}, v{t2}, 6, v{vQAp}
v_cmp_eq_u32 s[{sC2}:{sC2+1}], 1, v{t2}
s_lshl_b32 s{sT[6]}, s{sHA}, 11
s_lshl_b32 s{sT[7]}, s{sJQ}, 9
s_add_u32 s{sT[6]}, s{sT[6]}, s{sT[7]}
s_lshl_b32 s{sT[7]}, s{sW}, 7
s_add_u32 s{sT[6]}, s{sT[6]}, s{sT[7]}
s_add_u32 s{sT[6]}, s{sT[6]}, {QA_OFF}
s_mov_b32 s{sT[7]}, {f32(math.log2(math.e) / math.sqrt(128.0))}
""")
for u in range(4):
    a(f"""
    s_add_u32 s{sT[2]}, s{sJQ}, {u}
    s_and_b32 s{sT[2]}, s{sT[2]}, 3
    s_lshl_b32 s{sT[2]}, s{sT[2]}, 6
    v_add_u32 v{vT[11+u]}, s{sT[2]}, v{t0}
    """)
ILV = opt("ilv", 2)
def spec_xn():
    for u in range(4):
        a(f"ds_read_b128 {v(BX+4*u,4)}, v{vT[11+u]}")
for u in range(1, ILV): wq_kstep(u)
lds_wait(F_XN, 4, spec_xn)
a(f"s_add_u32 s{sEP}, s{sEP}, 1")
pend = [wq_lines(u) for u in range(ILV, 4)] + [uk_lines()]
if ILV == 4: pend = [None] + pend
issued = ILV
for u in range(4):
    a(f"s_waitcnt vmcnt({(issued - u - 1) * 8})")
    ex = pend[u] if u < len(pend) else None
    q_kstep(u, ex)
    if ex:
        issued += 1
        if issued == 5:
            lds_signal(F_WQI)
            stamp("wq issued")
stamp("q partial")
a(f"s_mov_b64 exec, s[{sM4}:{sM4+1}]")
for jj in range(8):
    a(f"ds_write_b128 v{vQPw}, {v(AC+4*jj,4)} offset:{256*jj}")
lds_signal(F_QP)
def spec_qp():
    for k in range(4):
        a(f"ds_read2st64_b32 {v(FR+2*k,2)}, v{vQPr} offset0:{8*k} offset1:{8*k+1}")
lds_wait(F_QP, 4, spec_qp)
stamp("qp done")
a(f"""
v_add_f32 v{FR}, v{FR}, v{FR+2}
v_add_f32 v{FR+1}, v{FR+1}, v{FR+3}
v_add_f32 v{FR+4}, v{FR+4}, v{FR+6}
v_add_f32 v{FR+5}, v{FR+5}, v{FR+7}
v_add_f32 v{FR}, v{FR}, v{FR+4}
v_add_f32 v{FR+1}, v{FR+1}, v{FR+5}
v_cvt_pk_bf16_f32 v{FR}, v{FR}, v{FR+1}
ds_write_b32 v{vQ16w}, v{FR}
""")
lds_signal(F_Q16)
a(f"v_mov_b32 v{AC+9}, s{sEP}")
a(f"v_mov_b32 v{AC+11}, s{sEP}")
def spec_q16():
    a(f"ds_read_b32 v{t3}, v{vFL} offset:{F_CLR}")
    for t in range(4):
        a(f"ds_read_b128 {v(FR+8+4*t,4)}, v{vQ16r} offset:{256*t}")
lds_wait(F_Q16, 4, spec_q16)
stamp("q16 done")
a("s_waitcnt vmcnt(0)")
stamp("uk landed")
for t in range(4):
    for mt in range(2):
        mfma(AC+4*mt, UK+16*mt+4*t, FR+8+4*t, t == 0)
a(f"""
v_readfirstlane_b32 s{sACC}, v{t3}
s_cmp_ge_u32 s{sACC}, 2
s_cbranch_scc1 L_clrok
""")
lds_wait(F_CLR, 2)
a("L_clrok:")
for r in range(4):
    a(f"v_cndmask_b32 v{AC+r}, v{AC+r}, v{AC+4+r}, s[{sC2}:{sC2+1}]")
for r in range(4):
    a(f"v_mul_f32 v{AC+r}, s{sT[7]}, v{AC+r}")
a(f"""
v_cvt_pk_bf16_f32 v{AC+8}, v{AC}, v{AC+1}
v_cvt_pk_bf16_f32 v{AC+10}, v{AC+2}, v{AC+3}
s_mov_b64 exec, s[{sM8}:{sM8+1}]
buffer_store_dwordx4 {v(AC+8,4)}, v{vQAp}, {srd(R_WS)}, s{sT[6]} offen sc1
s_mov_b64 exec, -1
""")
stamp("q_abs published")
a("s_branch L_phaseB")

a("L_freeC:")
if UKGATE:
    a("s_waitcnt vmcnt(0)")
    lds_signal(F_WQI)
lds_wait(F_CLR, 2, sleep=4)
a(f"s_add_u32 s{sEP}, s{sEP}, 1")

a("L_phaseB:")
QF, SA0, SA1, SD, vM = 32, 96, 160, 224, 232
vX0 = vT[4]
vMX, vPw, vPr, vC, vTF, vPV, vO = vT[8], vT[9], vT[10], vT[11], vT[12], vT[13], vT[14]
vSA = vT[15]
a(f"""
v_lshrrev_b32 v{t0}, 3, v{vN}
v_lshlrev_b32 v{t1}, 2, v{t0}
v_and_b32 v{t2}, 7, v{vN}
v_xor_b32 v{t2}, v{t2}, v{t1}
v_lshl_add_u32 v{t2}, v{t2}, 1, v{t0}
v_xor_b32 v{t2}, v{t2}, v{vG}
v_lshlrev_b32 v{t2}, 4, v{t2}
v_lshl_add_u32 v{t2}, v{vN}, 10, v{t2}
s_lshl_b32 s{sT[0]}, s{sW}, 15
v_add_u32 v{vSA}, s{sT[0]}, v{t2}
v_add_u32 v{vX0}, {L_QS}, v{t2}
""")
for tt in range(1, 4):
    a(f"v_xor_b32 v{vSA+tt}, {64*tt}, v{vSA}")
    a(f"v_xor_b32 v{vX0+tt}, {64*tt}, v{vX0}")
a(f"""
s_lshl_b32 s{sT[1]}, s{sW}, 3
v_add_u32 v{vTF}, s{sT[1]}, v{vFL}
v_bfe_u32 v{t0}, v{vL}, 2, 4
v_lshrrev_b32 v{t1}, 3, v{t0}
v_lshlrev_b32 v{t2}, 2, v{t1}
v_and_b32 v{t3}, 7, v{t0}
v_xor_b32 v{t3}, v{t3}, v{t2}
v_lshl_add_u32 v{t3}, v{t3}, 1, v{t1}
v_bfe_u32 v{t1}, v{vL}, 1, 1
v_xor_b32 v{t3}, v{t3}, v{t1}
v_lshlrev_b32 v{t3}, 4, v{t3}
v_and_b32 v{t1}, 1, v{vL}
v_lshl_add_u32 v{t3}, v{t1}, 3, v{t3}
v_lshl_add_u32 v{t3}, v{t0}, 10, v{t3}
s_lshl_b32 s{sT[0]}, s{sW}, 8
v_add_u32 v{vPV}, s{sT[0]}, v{t3}
v_and_b32 v{t0}, 1, v{vG}
v_lshlrev_b32 v{t0}, 5, v{t0}
v_lshrrev_b32 v{t1}, 1, v{vG}
v_lshl_add_u32 v{t0}, v{t1}, 4, v{t0}
v_and_b32 v{t1}, 7, v{vN}
v_lshl_add_u32 v{vO}, v{t1}, 17, v{t0}
v_lshrrev_b32 v{t1}, 3, v{vN}
v_lshl_add_u32 v{vO}, v{t1}, 6, v{vO}
s_lshl_b32 s{sO}, s{sHGB}, 21
s_lshl_b32 s{sT[4]}, s{sCH}, 8
s_add_u32 s{sO}, s{sO}, s{sT[4]}
s_lshl_b32 s{sT[4]}, s{sW}, 15
s_add_u32 s{sO}, s{sO}, s{sT[4]}
s_add_u32 s{sO}, s{sO}, {O_OFF}
s_add_u32 s{sT[3]}, s{sO}, {8 << 17}
v_lshlrev_b32 v{vMX}, 3, v{vN}
v_add_u32 v{vMX}, {L_MX}, v{vMX}
s_lshl_b32 s{sT[0]}, s{sW}, 10
s_add_u32 s{sT[0]}, s{sT[0]}, {L_PX}
v_add_u32 v{vPw}, s{sT[0]}, v{vL16}
v_add_u32 v{vPr}, {L_PX}, v{vL16}
""")
PAD = list(range(240, 256))
for mt in range(8):
    a(f"v_xor_b32 v{PAD[mt]}, {32*mt}, v{vPV}")
    a(f"v_add_u32 v{PAD[8+mt]}, 0x10000, v{PAD[mt]}")
def sa_read(k, t):
    a(f"ds_read_b128 {v((SA1 if k else SA0)+4*t,4)}, v{vSA+(t&3)} offset:{16384*k+(t>>2)*256}")
def qf_read(t):
    a(f"ds_read_b128 {v(QF+4*t,4)}, v{vX0+(t&3)} offset:{(t>>2)*256}")
GQ = 64
vQa, vQb, vQw, vEP = 236, 237, 238, 239
a(f"""
v_lshlrev_b32 v{vQa}, 4, v0
v_add_u32 v{vQb}, 16384, v{vQa}
s_lshr_b32 s{sT[6]}, s{sCH}, 5
s_lshl_b32 s{sT[6]}, s{sT[6]}, 1
s_add_u32 s{sT[6]}, s{sT[6]}, s{sHGB}
s_lshl_b32 s{sT[6]}, s{sT[6]}, 15
s_add_u32 s{sT[6]}, s{sT[6]}, {QA_OFF}
s_add_u32 s{sT[7]}, s{sT[6]}, 4096
s_add_u32 s{sT[8]}, s{sT[6]}, 8192
s_add_u32 s{sT[9]}, s{sT[6]}, 12288
v_and_b32 v{vQw}, 127, v0
v_lshlrev_b32 v{vQw}, 3, v{vQw}
s_lshr_b32 s{sT[10]}, s{sW}, 1
s_lshl_b32 s{sT[5]}, s{sT[10]}, 5
v_xor_b32 v{vQw}, s{sT[5]}, v{vQw}
s_lshl_b32 s{sT[10]}, s{sT[10]}, 10
s_add_u32 s{sT[10]}, s{sT[10]}, {L_QS}
v_add_u32 v{vQw}, s{sT[10]}, v{vQw}
v_mov_b32 v{vEP}, s{sEP}
s_mov_b32 s{sT[2]}, 0
""")
def qa_loads():
    for i in range(8):
        a(f"buffer_load_dwordx4 {v(GQ+4*i,4)}, v{vQb if i >= 4 else vQa}, {srd(R_WS)}, s{sT[6+(i&3)]} offen sc1")
def try_tile1(tag):
    a(f"""
    ds_read_b32 v{t0}, v{vTF} offset:{F_TILE+4}
    s_waitcnt lgkmcnt(0)
    v_readfirstlane_b32 s{sACC+1}, v{t0}
    s_cmp_le_u32 s{sACC+1}, s{sT[2]}
    s_cbranch_scc1 L_nt1{tag}
    s_mov_b32 s{sT[2]}, 1
    """)
    for t in range(16): sa_read(1, t)
    a(f"L_nt1{tag}:")
sPM = sT[10]
def qa_load(i):
    a(f"buffer_load_dwordx4 {v(GQ+4*i,4)}, v{vQb if i >= 4 else vQa}, {srd(R_WS)}, s{sT[6+(i&3)]} offen sc1")
def qa_check(i):
    a(f"v_xor_b32 v{t2}, v{GQ+4*i+1}, v{vEP}")
    if i: a(f"v_xor_b32 v{t3}, {(fsw(2*i) << 4) | (i << 11)}, v{vQw}")
    a(f"v_bitop3_b32 v{t2}, v{t2}, v{GQ+4*i+3}, v{vEP} bitop3:0xf6")
    a(f"ds_write2_b32 v{t3 if i else vQw}, v{GQ+4*i}, v{GQ+4*i+2} offset0:0 offset1:1")
    a(f"v_cmp_ne_u32 vcc, 0, v{t2}")
    a("s_cmp_lg_u64 vcc, 0")
QORD = opt("qord", 1)
if QORD == 0:
    lds_wait(F_TILE, 1, base=vTF, sleep=1)
    for t in range(16): sa_read(0, t)
else:
    a(f"""
    s_cmp_eq_u32 s{sHGB}, 1
    s_cbranch_scc1 L_not0
    """)
    lds_wait(F_TILE, 1, base=vTF, sleep=1)
    for t in range(16): sa_read(0, t)
    a("L_not0:")
if opt("qack", 1): a("s_waitcnt vmcnt(0)")
lds_wait(F_GO, 4 if opt("rcoop", 0) == 2 else 2, sleep=1)
stamp("QA trigger")
for i in range(8): qa_load(i)
lds_signal(F_QI)
if QORD:
    a(f"""
    s_cmp_eq_u32 s{sHGB}, 0
    s_cbranch_scc1 L_t0d
    """)
    lds_wait(F_TILE, 1, base=vTF)
    for t in range(16): sa_read(0, t)
    a("L_t0d:")
lds_wait(F_TILE + 4, 1, base=vTF)
for t in range(16): sa_read(1, t)
a(f"s_mov_b32 s{sPM}, 0")
for i in range(8):
    a(f"s_waitcnt vmcnt({7-i})")
    qa_check(i)
    a(f"s_addc_u32 s{sPM}, s{sPM}, s{sPM}")
a(f"""
s_mov_b32 s{sCNT}, 0
s_cmp_eq_u32 s{sPM}, 0
s_cbranch_scc1 L_qdone
L_qretry:
s_sleep {QSLEEP}
""")
for i in range(8):
    sk = a.newlabel("Lq")
    a(f"s_bitcmp1_b32 s{sPM}, {7-i}")
    a(f"s_cbranch_scc0 {sk}")
    qa_load(i)
    a(f"{sk}:")
a("s_waitcnt vmcnt(0)")
for i in range(8):
    sk = a.newlabel("Lq")
    a(f"s_bitcmp1_b32 s{sPM}, {7-i}")
    a(f"s_cbranch_scc0 {sk}")
    qa_check(i)
    a(f"s_cbranch_scc1 {sk}")
    a(f"s_bitset0_b32 s{sPM}, {7-i}")
    a(f"{sk}:")
a(f"""
s_add_u32 s{sCNT}, s{sCNT}, 1
s_cmp_eq_u32 s{sPM}, 0
s_cbranch_scc1 L_qdone
s_cmp_lt_u32 s{sCNT}, {POLL_MAX}
s_cbranch_scc1 L_qretry
L_qdone:
""")
lds_signal(F_QS)
cstamp("qa retries")
stamp("q_abs gathered")
def spec_qf():
    for t in range(4): qf_read(t)
lds_wait(F_QS, 4, spec_qf)
stamp("Q ready")
for t in range(4, 16): qf_read(t)
PB, OD, OS, ON = 32, 48, 80, 224
def pva(mt, u):
    k = (mt >> 2) * 16 + u * 4 + (mt & 3)
    return (SA1 if k & 1 else SA0) + 4 * (k >> 1)
def pv_read_k(k):
    mt, u = (k >> 4) * 4 + (k & 3), (k >> 2) & 3
    for vv in range(2):
        tile = 2 * u + vv
        ad = PAD[mt] if tile < 4 else PAD[8 + mt]
        a(f"ds_read_b64_tr_b16 {v(pva(mt, u)+2*vv,2)}, v{ad} offset:{(tile&3)*16384}")
LAG = opt("lag", 2)
ntr = 0
for t in range(16):
    if t >= 4: a(f"s_waitcnt lgkmcnt({min(15, 15 - t + ntr)})")
    mfma(SD, SA0+4*t, QF+4*t, t == 0)
    if t >= LAG: pv_read_k(2 * (t - LAG)); ntr += 2
    mfma(SD+4, SA1+4*t, QF+4*t, t == 0)
    if t >= LAG: pv_read_k(2 * (t - LAG) + 1); ntr += 2
rem = list(range(2 * (16 - LAG), 32))
for k in rem[:2]: pv_read_k(k)
a(f"""
v_max3_f32 v{t1}, v{SD}, v{SD+1}, v{SD+2}
v_max3_f32 v{t2}, v{SD+3}, v{SD+4}, v{SD+5}
v_max3_f32 v{t1}, v{t1}, v{SD+6}, v{SD+7}
v_max_f32 v{t1}, v{t1}, v{t2}
v_ceil_f32 v{vC}, v{t1}
ds_max_f32 v{vMX}, v{vC}
ds_add_u32 v{vMX}, v{vONE} offset:4
ds_read_b64 {v(vM,2)}, v{vMX}
""")
for k in rem[2:]: pv_read_k(k)
for r in range(8): a(f"v_sub_f32 v{SD+r}, v{SD+r}, v{vC}")
for r in range(8): a(f"v_exp_f32 v{SD+r}, v{SD+r}")
lp, dn, ck = a.newlabel("Lm"), a.newlabel("Lmd"), a.newlabel("Lmc")
a(f"s_mov_b32 s{sCNT}, 0")
a(f"s_waitcnt lgkmcnt({min(15, 2 * len(rem[2:]))})")
a(f"s_branch {ck}")
a.label(lp)
a(f"ds_read_b64 {v(vM,2)}, v{vMX}")
a("s_waitcnt lgkmcnt(0)")
a.label(ck)
a(f"""
v_cmp_ne_u32 vcc, 16, v{vM+1}
v_sub_f32 v{t1}, v{vC}, v{vM}
s_cmp_eq_u64 vcc, 0
s_cbranch_scc1 {dn}
s_add_u32 s{sCNT}, s{sCNT}, 1
s_cmp_lt_u32 s{sCNT}, {LSPIN_MAX}
s_cbranch_scc1 {lp}
""")
a.label(dn)
stamp("S done")
a(f"v_exp_f32 v{t1}, v{t1}")
for r in range(8): a(f"v_mul_f32 v{SD+r}, v{SD+r}, v{t1}")
for k in range(4): a(f"v_cvt_pk_bf16_f32 v{PB+k}, v{SD+2*k}, v{SD+2*k+1}")
a(f"ds_write_b128 v{vPw}, {v(PB,4)}")
lds_signal(F_P)
def spec_p():
    for u in range(4):
        a(f"ds_read_b128 {v(PB+4*u,4)}, v{vPr} offset:{1024*u}")
    for i in range(4): a(f"v_mov_b32 v{ON+i}, 0x3f803f80")
lds_wait(F_P, 4, spec_p)
lds_signal(F_BD)
stamp("P done")
for u in range(4):
    for mt in range(4):
        mfma(OD+4*mt, pva(mt, u), PB+4*u, u == 0)
CK = vM + 2
def epilogue(pp):
    L = []
    for p in (2 * pp, 2 * pp + 1):
        for k in range(2):
            mt = 2 * p + k
            L.append(f"v_cvt_pk_bf16_f32 v{OS+2*mt}, v{OD+4*mt}, v{OD+4*mt+1}")
            L.append(f"v_cvt_pk_bf16_f32 v{OS+2*mt+1}, v{OD+4*mt+2}, v{OD+4*mt+3}")
    for p in (2 * pp, 2 * pp + 1):
        L.append(f"v_permlane16_swap_b32 v{OS+4*p}, v{OS+4*p+2}")
        L.append(f"v_permlane16_swap_b32 v{OS+4*p+1}, v{OS+4*p+3}")
    X, Y, T = OS + 8 * pp, OS + 8 * pp + 4, OD + 16 * pp
    for d in range(4): L.append(f"v_mov_b32 v{T+d}, v{X+d}")
    for d in range(4): L.append(f"v_mov_b32 v{T+4+d}, v{Y+d}")
    for d in range(4): L.append(f"v_mov_b32_dpp v{T+d}, v{Y+d} row_ror:8 row_mask:0xf bank_mask:0xc")
    L.append(f"buffer_store_dwordx4 {v(T,4)}, v{vO}, {srd(R_WS)}, s{sO} offen offset:{128*pp} sc1")
    for d in range(4): L.append(f"v_mov_b32_dpp v{T+4+d}, v{X+d} row_ror:8 row_mask:0xf bank_mask:0x3")
    L.append(f"buffer_store_dwordx4 {v(T+4,4)}, v{vO}, {srd(R_WS)}, s{sT[3]} offen offset:{128*pp} sc1")
    for k in range(0, 8, 2):
        if pp == 0 and k == 0: L.append(f"v_add_u32 v{CK}, v{X}, v{X+1}")
        else: L.append(f"v_add3_u32 v{CK}, v{CK}, v{X+k}, v{X+k+1}")
    return L
E0 = epilogue(0)
idx = 0
for u in range(4):
    for mt in range(4, 8):
        mfma(OD+4*mt, pva(mt, u), PB+4*u, u == 0)
        if u * 4 + (mt - 4) >= 2:
            for l in E0[idx:idx+2]: a(l)
            idx += 2
for u in range(4):
    mfma(ON+4, ON, PB+4*u, u == 0)
    for l in E0[idx:idx+2]: a(l)
    idx += 2
for l in E0[idx:]: a(l)
stamp("PV done")
for l in epilogue(1): a(l)
a(f"""
s_lshl_b32 s{sT[4]}, s{sHGB}, 7
s_add_u32 s{sT[4]}, s{sT[4]}, s{sCH}
s_lshl_b32 s{sT[4]}, s{sT[4]}, 2
s_add_u32 s{sT[4]}, s{sT[4]}, s{sW}
s_lshl_b32 s{sT[4]}, s{sT[4]}, 8
s_add_u32 s{sT[4]}, s{sT[4]}, {ML_OFF}
v_mov_b32 v{t0}, v{CK}
v_mov_b32 v{vM+1}, v{ON+4}
v_permlane32_swap_b32 v{CK}, v{t0}
v_add_u32 v{CK}, v{CK}, v{t0}
v_mov_b32 v{t0}, v{CK}
v_xor_b32 v{t1}, s{sEP}, v{vM}
v_permlane16_swap_b32 v{CK}, v{t0}
v_add3_u32 v{CK}, v{CK}, v{t0}, s{sEP}
v_xor_b32 v{vM+3}, v{t1}, v{vM+1}
s_mov_b64 exec, 0xffff
buffer_store_dwordx4 {v(vM,4)}, v{vL16}, {srd(R_WS)}, s{sT[4]} offen sc1
s_mov_b64 exec, -1
""")
stamp("O published")

HD, HM, MK, AW, CD = 32, 64, 72, 76, 84
mM, wA, wB, wb, ckS, ckE, vCLw, vHd2 = vT[4], vT[5], vT[6], vT[7], vT[8], vT[9], vT[10], vT[11]
a(f"""
v_lshlrev_b32 v{t0}, 8, v{vG}
v_lshl_add_u32 v{t0}, v{vN}, 4, v{t0}
v_add_u32 v{vHd2}, 4096, v{t0}
s_lshl_b32 s{sT[0]}, s{sH}, 2
s_add_u32 s{sT[0]}, s{sT[0]}, s{sCQ}
s_lshl_b32 s{sT[0]}, s{sT[0]}, 15
s_lshl_b32 s{sT[2]}, s{sW}, 13
s_add_u32 s{sT[0]}, s{sT[0]}, s{sT[2]}
s_add_u32 s{sT[0]}, s{sT[0]}, {O_OFF}
v_and_b32 v{t1}, 7, v{vN}
v_lshrrev_b32 v{t2}, 3, v{vN}
v_xor_b32 v{t2}, v{t2}, v{vG}
v_lshl_add_u32 v{t1}, v{t1}, 2, v{t2}
v_lshlrev_b32 v{t1}, 10, v{t1}
v_xor_b32 v{t2}, 2048, v{t1}
s_lshr_b32 s{sT[4]}, s{sH}, 4
s_lshl_b32 s{sT[4]}, s{sT[4]}, 2
s_add_u32 s{sT[4]}, s{sT[4]}, s{sW}
s_lshl_b32 s{sT[4]}, s{sT[4]}, 15
s_and_b32 s{sT[5]}, s{sH}, 15
s_lshl_b32 s{sT[5]}, s{sT[5]}, 4
s_add_u32 s{sT[4]}, s{sT[4]}, s{sT[5]}
s_lshl_b32 s{sT[5]}, s{sCQ}, 8
s_add_u32 s{sT[4]}, s{sT[4]}, s{sT[5]}
s_add_u32 s{sT[4]}, s{sT[4]}, {ML_OFF}
v_and_b32 v{t3}, 1, v{vN}
v_lshlrev_b32 v{t3}, 4, v{t3}
v_mov_b32 v{mM}, 0xffff
v_lshlrev_b32 v{t3}, v{t3}, v{mM}
v_lshrrev_b32 v{mM}, 1, v{vN}
""")
for d in range(4):
    a(f"v_cmp_eq_u32 vcc, {d}, v{mM}")
    a(f"v_cndmask_b32 v{MK+d}, 0, v{t3}, vcc")
a(f"""
s_mul_i32 s{sT[5]}, s{sW}, 272
s_add_u32 s{sT[5]}, s{sT[5]}, {L_CL}
v_lshlrev_b32 v{vCLw}, 4, v{vN}
v_lshl_add_u32 v{vCLw}, v{vG}, 3, v{vCLw}
v_add_u32 v{vCLw}, s{sT[5]}, v{vCLw}
s_mov_b32 s{sT[6]}, 0x03020302
""")
if OACK: a("s_waitcnt vmcnt(0)")
stamp("O acked")
a(f"s_mov_b32 s{sCNT}, 0")
a("L_pollm:")
a(f"""
buffer_load_dwordx4 {v(HM,4)}, v{t1}, {srd(R_WS)}, s{sT[4]} offen sc1
buffer_load_dwordx4 {v(HM+4,4)}, v{t2}, {srd(R_WS)}, s{sT[4]} offen sc1
s_waitcnt vmcnt(0)
v_bitop3_b32 v{ckE}, v{HM}, v{HM+1}, v{HM+3} bitop3:0x96
v_bitop3_b32 v{t3}, v{HM+4}, v{HM+5}, v{HM+7} bitop3:0x96
v_cmp_ne_u32 vcc, s{sEP}, v{ckE}
v_cmp_ne_u32 s[{sACC}:{sACC+1}], s{sEP}, v{t3}
s_or_b64 vcc, s[{sACC}:{sACC+1}], vcc
""")
poll_tail("L_pollm", MLSLEEP)
cstamp("ml retries")
stamp("ML ok")
for t in range(8):
    a(f"buffer_load_dwordx4 {v(HD+4*t,4)}, v{vHd2 if t >= 4 else t0}, {srd(R_WS)}, s{sT[0]} offen offset:{1024*(t&3)} sc1")
a(f"""
v_max_f32 v{mM}, v{HM}, v{HM+4}
v_max_f32_dpp v{mM}, v{mM}, v{mM} row_ror:1 row_mask:0xf bank_mask:0xf
v_max_f32_dpp v{mM}, v{mM}, v{mM} row_ror:2 row_mask:0xf bank_mask:0xf
v_sub_u32 v{ckS}, s{sEP}, v{HM+2}
v_max_f32_dpp v{mM}, v{mM}, v{mM} row_ror:4 row_mask:0xf bank_mask:0xf
v_cndmask_b32 v{ckS}, 0, v{ckS}, s[{sM8}:{sM8+1}]
v_max_f32_dpp v{mM}, v{mM}, v{mM} row_ror:8 row_mask:0xf bank_mask:0xf
v_sub_f32 v{wA}, v{HM}, v{mM}
v_sub_f32 v{wB}, v{HM+4}, v{mM}
v_exp_f32 v{wA}, v{wA}
v_exp_f32 v{wB}, v{wB}
v_perm_b32 v{wb}, v{wA}, v{wA}, s{sT[6]}
v_mul_f32 v{wA}, v{wA}, v{HM+1}
v_fmac_f32 v{wA}, v{wB}, v{HM+5}
""")
sfts = [1, 2, 4, 8]
for t in range(8):
    aw = AW + 4 * (t & 1)
    for d in range(4):
        a(f"v_and_b32_dpp v{aw+d}, v{wb}, v{MK+d} row_newbcast:{t} row_mask:0xf bank_mask:0xf")
    if t < 4:
        a(f"v_add_f32_dpp v{wA}, v{wA}, v{wA} row_ror:{sfts[t]} row_mask:0xf bank_mask:0xf")
    if t == 4:
        a(f"v_rcp_f32 v{wA}, v{wA}")
    a(f"s_waitcnt vmcnt({7-t})")
    a(f"v_add3_u32 v{ckS}, v{ckS}, v{HD+4*t}, v{HD+4*t+1}")
    mfma(CD, aw, HD+4*t, t == 0)
    a(f"v_add3_u32 v{ckS}, v{ckS}, v{HD+4*t+2}, v{HD+4*t+3}")
for sft in sfts:
    a(f"v_add_u32_dpp v{ckS}, v{ckS}, v{ckS} row_ror:{sft} row_mask:0xf bank_mask:0xf")
a(f"v_cmp_ne_u32 vcc, 0, v{ckS}")
for r in range(4): a(f"v_mul_f32 v{CD+r}, v{CD+r}, v{wA}")
a(f"v_cvt_pk_bf16_f32 v{CD+4}, v{CD}, v{CD+1}")
a(f"v_cvt_pk_bf16_f32 v{CD+5}, v{CD+2}, v{CD+3}")
poll_tail("L_pollm")
cstamp("o retries")
a(f"""
s_mov_b32 exec_hi, 0
ds_write_b64 v{vCLw}, {v(CD+4,2)}
s_mov_b64 exec, 1
ds_add_u32 v{vFL}, v{vONE} offset:{F_CL}
s_mov_b64 exec, -1
s_setprio 0
""")
stamp("combined")
a(f"""
s_cmp_eq_u32 s{sISF}, 1
s_cbranch_scc1 L_ffn
s_cmp_eq_u32 s{sISR}, 0
s_cbranch_scc1 L_fin
""")

SEL, RD, RA, RS, vH = 96, 100, 116, 120, 128
vMo, vXv = vT[4], vT[5]
for d in range(4): a(f"v_and_b32 v{SEL+d}, 0x3f803f80, v{MK+d}")
a(f"""
v_and_b32 v{t0}, 0x23, v{vL}
v_bfe_u32 v{t1}, v{vL}, 2, 1
v_lshl_add_u32 v{t0}, v{t1}, 4, v{t0}
v_bfe_u32 v{t1}, v{vL}, 3, 2
v_lshl_add_u32 v{t0}, v{t1}, 2, v{t0}
v_lshlrev_b32 v{vMo}, 1, v{t0}
s_lshl_b32 s{sT[0]}, s{sRHO}, 7
buffer_load_ushort v{vXv}, v{vMo}, {srd(R_X)}, s{sT[0]} offen
v_lshlrev_b32 v{t0}, 4, v0
s_lshl_b32 s{sT[1]}, s{sRHO}, 14
s_add_u32 s{sT[1]}, s{sT[1]}, {PA_OFF}
s_add_u32 s{sT[2]}, s{sT[1]}, 4096
s_add_u32 s{sT[3]}, s{sT[1]}, 8192
s_add_u32 s{sT[4]}, s{sT[1]}, 12288
s_lshl_b32 s{sT[5]}, s{sW}, 8
s_add_u32 s{sT[5]}, s{sT[5]}, {L_RED}
v_lshlrev_b32 v{t1}, 5, v{vN}
v_lshl_add_u32 v{t1}, v{vG}, 4, v{t1}
v_add_u32 v{t1}, s{sT[5]}, v{t1}
v_lshlrev_b32 v{t2}, 2, v{vL}
v_add_u32 v{t2}, {L_RED}, v{t2}
s_mul_i32 s{sT[5]}, s{sRHO}, 12288
s_add_u32 s{sT[5]}, s{sT[5]}, {PF_OFF}
s_add_u32 s{R_PF}, s{R_WS}, s{sT[5]}
s_addc_u32 s{R_PF+1}, s{R_WS+1}, 0
s_mov_b32 s{sT[6]}, 4096
s_mov_b32 s{sT[7]}, 8192
s_waitcnt vmcnt(0)
s_barrier
""")
def reduce_inbox(name, rs, sos):
    a(f"s_mov_b32 s{sCNT}, 0")
    a.label(name)
    for i, so in enumerate(sos):
        a(f"buffer_load_dwordx4 {v(RD+4*i,4)}, v{t0}, {srd(rs)}, {so} offen sc1")
    n = len(sos)
    for i in range(n):
        a(f"s_waitcnt vmcnt({n-1-i})")
        if i == 0: a(f"v_max3_u32 v{t3}, v{RD}, v{RD+1}, v{RD+2}")
        else: a(f"v_max3_u32 v{t3}, v{t3}, v{RD+4*i}, v{RD+4*i+1}")
        mfma(RA, SEL, RD+4*i, i == 0)
        if i == 0: a(f"v_max_u32 v{t3}, v{t3}, v{RD+3}")
        else: a(f"v_max3_u32 v{t3}, v{t3}, v{RD+4*i+2}, v{RD+4*i+3}")
    a(f"v_cmp_eq_u32 vcc, -1, v{t3}")
    poll_tail(name)
    for r in range(4):
        a(f"v_add_f32_dpp v{RA+r}, v{RA+r}, v{RA+r} row_ror:8 row_mask:0xf bank_mask:0xf")
    a(f"""
    s_mov_b64 exec, 0x00ff00ff
    ds_write_b128 v{t1}, {v(RA,4)}
    s_mov_b64 exec, -1
    s_waitcnt lgkmcnt(0)
    s_barrier
    """)
def final_sum():
    for k in range(2):
        a(f"ds_read2st64_b32 {v(RS+2*k,2)}, v{t2} offset0:{2*k} offset1:{2*k+1}")
    a("s_waitcnt lgkmcnt(0)")
    a(f"v_add_f32 v{RS}, v{RS}, v{RS+1}")
    a(f"v_add_f32 v{RS+2}, v{RS+2}, v{RS+3}")
    a(f"v_add_f32 v{RS}, v{RS}, v{RS+2}")
def pack_store(val, rs, so, pol):
    P = RS + 4
    a(f"v_mov_b32_dpp v{RS+2}, v{val} quad_perm:[1,1,3,3] row_mask:0xf bank_mask:0xf")
    a(f"v_cvt_pk_bf16_f32 v{P}, v{val}, v{RS+2}")
    a(f"v_mov_b32_dpp v{P+1}, v{P} quad_perm:[2,2,2,2] row_mask:0xf bank_mask:0xf")
    a(f"v_mov_b32_dpp v{P+2}, v{P} row_shl:8 row_mask:0xf bank_mask:0xf")
    a(f"v_mov_b32_dpp v{P+3}, v{P+1} row_shl:8 row_mask:0xf bank_mask:0xf")
    a(f"""
    s_mov_b32 exec_lo, 0x00110011
    s_mov_b32 exec_hi, 0x00110011
    buffer_store_dwordx4 {v(P,4)}, v{vMo}, {srd(rs)}, {so} offen{pol}
    s_mov_b64 exec, -1
    """)
reduce_inbox("L_pollr1", R_WS, [f"s{sT[1+i]}" for i in range(4)])
stamp("R1 gathered")
a(f"""
s_cmp_lg_u32 s{sW}, 0
s_cbranch_scc1 L_r1skip
""")
final_sum()
rne_bf16(RS, RS)
a(f"v_lshlrev_b32 v{vXv}, 16, v{vXv}")
a(f"v_add_f32 v{vH}, v{RS}, v{vXv}")
a(f"s_add_u32 s{sT[5]}, s{sT[0]}, {HG_OFF}")
pack_store(vH, R_WS, f"s{sT[5]}", " sc1")
rne_bf16(vH, vH)
a("L_r1skip:")
stamp("h published")
a("s_barrier")
reduce_inbox("L_pollr2", R_PF, ["0", f"s{sT[6]}", f"s{sT[7]}"])
stamp("R2 gathered")
a(f"""
s_cmp_lg_u32 s{sW}, 0
s_cbranch_scc1 L_fin
""")
final_sum()
rne_bf16(RS, RS)
a(f"v_add_f32 v{vH}, v{RS}, v{vH}")
pack_store(vH, R_OUT, f"s{sT[0]}", "")
a(f"""
s_cmp_lg_u32 s{sRHO}, 0
s_cbranch_scc1 L_fin
v_mov_b32 v{t0}, {EPOCH_OFF}
v_mov_b32 v{t1}, s{sEP}
s_mov_b64 exec, 1
buffer_store_dword v{t1}, v{t0}, {srd(R_WS)}, 0 offen sc1
""")
if DBGT and PROBE and not opt('plocal', 1):
    a(f"""
    v_mov_b32 v{vT[19]}, 16
    global_load_dword v{vT[20]}, v{vT[19]}, s[98:99] sc1
    s_waitcnt vmcnt(0)
    v_readfirstlane_b32 s94, v{vT[20]}
    """)
a(f"s_mov_b32 s93, {opt('padto', 0)}")
if opt("xcctest", 0):
    a(f"""
    v_mov_b32 v{vT[19]}, 20
    global_load_dword v{vT[20]}, v{vT[19]}, s[98:99] sc1
    s_waitcnt vmcnt(0)
    v_readfirstlane_b32 s{sT[1]}, v{vT[20]}
    s_bcnt1_i32_b32 s{sT[1]}, s{sT[1]}
    s_mul_i32 s{sT[1]}, s{sT[1]}, 1000
    s_add_u32 s93, s93, s{sT[1]}
    """)
if DBGT and opt("padto", 0):
    a(f"""
    L_padspin:
    s_memrealtime s[{sTS}:{sTS+1}]
    s_waitcnt lgkmcnt(0)
    s_sub_u32 s{sTS}, s{sTS}, s94
    s_cmp_lt_u32 s{sTS}, s93
    s_cbranch_scc1 L_padspin
    """)
if DBGT:
    a(f"""
    s_memrealtime s[{sTS}:{sTS+1}]
    s_memtime s[{sC2}:{sC2+1}]
    s_waitcnt lgkmcnt(0)
    s_sub_u32 s{sTS}, s{sTS}, s94
    s_sub_u32 s{sC2}, s{sC2}, s96
    v_mov_b32 v{t2}, s{sTS}
    v_mov_b32 v{t3}, s{sC2}
    v_mov_b32 v{t0}, 0
    global_store_dwordx2 v{t0}, {v(t2,2)}, s[98:99]
    """)
a("""
s_mov_b64 exec, -1
s_branch L_fin
""")

a("L_ffn:")
FGU, FD, HB, GD, FXR, DD, DP, CSA = 96, 128, 144, 160, 172, 188, 220, 188
lds_wait(F_BD, 4)
if PFWHEN == 1:
    a("s_barrier")
a(f"""
v_lshrrev_b32 v{t0}, 1, v{vL}
v_and_b32 v{t1}, 0x13, v{t0}
v_bfe_u32 v{t2}, v{t0}, 2, 1
v_lshl_add_u32 v{t1}, v{t2}, 3, v{t1}
v_bfe_u32 v{t2}, v{t0}, 3, 1
v_lshl_add_u32 v{t1}, v{t2}, 2, v{t1}
v_mul_u32_u24 v{t1}, 2752, v{t1}
v_and_b32 v{t2}, 1, v{vL}
v_lshl_add_u32 v{t1}, v{t2}, 4, v{t1}
s_mul_i32 s{sT[0]}, s{sW}, {128*2752}
s_lshl_b32 s{sT[1]}, s{sPHI}, 5
s_add_u32 s{sT[0]}, s{sT[0]}, s{sT[1]}
s_lshl_b32 s{sT[2]}, s{sW}, 12
""")
for i in range(4):
    a(f"s_add_u32 m0, s{sT[2]}, {L_G + 1024*i}")
    if i: a(f"s_add_u32 s{sT[0]}, s{sT[0]}, {32*2752}")
    a(f"buffer_load_dwordx4 v{t1}, {srd(R_WG)}, s{sT[0]} offen lds")
    a(f"s_add_u32 m0, s{sT[2]}, {L_U + 1024*i}")
    a(f"buffer_load_dwordx4 v{t1}, {srd(R_WU)}, s{sT[0]} offen lds")
a(f"""
s_and_b32 s{sT[0]}, s{sW}, 1
s_lshl_b32 s{sT[0]}, s{sT[0]}, 7
v_xor_b32 v{t0}, s{sT[0]}, v{vL16}
s_lshl_b32 s{sT[0]}, s{sPHI}, 14
s_add_u32 s{sT[0]}, s{sT[0]}, s{sT[2]}
s_add_u32 m0, s{sT[2]}, {L_WD}
""")
for i in range(4):
    if i: a(f"v_xor_b32 v{t2}, {32*i}, v{t0}")
    a(f"buffer_load_dwordx4 v{t2 if i else t0}, {srd(R_WD)}, s{sT[0]} offen offset:{1024*i} lds")
vFXw, vFXr, vSq, vSm, vCs, csg, csu, vPF, vHl = vT[4], vT[5], vT[6], vT[7], vT[8], vT[9], vT[10], vT[11], vT[12]
a(f"""
v_bfe_u32 v{t0}, v{vL}, 2, 3
v_lshrrev_b32 v{t1}, 1, v{vG}
v_lshl_add_u32 v{t0}, v{t1}, 4, v{t0}
v_and_b32 v{t2}, 3, v{vL}
v_lshlrev_b32 v{t2}, 3, v{t2}
v_lshl_add_u32 v{t3}, v{t0}, 5, v{t2}
s_add_u32 s{sT[0]}, s{sT[2]}, {L_G}
v_add_u32 v{t3}, s{sT[0]}, v{t3}
v_bfe_u32 v{t0}, v{vL}, 2, 4
v_and_b32 v{t1}, 7, v{t0}
v_lshl_add_u32 v{t1}, v{t1}, 5, v{t2}
v_lshl_add_u32 v{t1}, v{t0}, 10, v{t1}
s_lshl_b32 s{sT[0]}, s{sW}, 8
s_add_u32 s{sT[0]}, s{sT[0]}, {L_WD}
v_add_u32 v{t1}, s{sT[0]}, v{t1}
v_lshlrev_b32 v{vHl}, 10, v{vN}
v_lshl_add_u32 v{vHl}, v{vG}, 4, v{vHl}
s_lshl_b32 s{sT[1]}, s{sW}, 8
s_add_u32 s{sT[1]}, s{sT[1]}, {HG_OFF}
s_mul_i32 s{sT[2]}, s{sW}, 640
s_add_u32 s{sT[2]}, s{sT[2]}, {L_FX}
v_lshlrev_b32 v{vFXw}, 6, v{vG}
v_lshl_add_u32 v{vFXw}, v{vN}, 4, v{vFXw}
v_add_u32 v{vFXw}, s{sT[2]}, v{vFXw}
v_and_b32 v{t2}, 3, v{vN}
v_lshlrev_b32 v{vFXr}, 4, v{t2}
v_lshl_add_u32 v{vFXr}, v{vG}, 6, v{vFXr}
v_lshrrev_b32 v{t0}, 2, v{vN}
v_lshl_add_u32 v{vFXr}, v{t0}, 2, v{vFXr}
v_add_u32 v{vFXr}, {L_FX}, v{vFXr}
v_mul_u32_u24 v{vSq}, 20, v{t2}
v_add_u32 v{vSq}, {L_FX + 512}, v{vSq}
v_lshlrev_b32 v{vSm}, 4, v{t2}
v_add_u32 v{vSm}, {L_FX + 576}, v{vSm}
v_lshlrev_b32 v{vCs}, 4, v{vG}
v_lshl_add_u32 v{vCs}, v{t0}, 2, v{vCs}
v_add_u32 v{vCs}, {L_CS}, v{vCs}
s_mov_b32 s{sT[4]}, 98304
v_mul_lo_u32 v{vPF}, v{vN}, s{sT[4]}
v_lshl_add_u32 v{vPF}, v{vG}, 4, v{vPF}
s_mul_i32 s{sT[4]}, s{sW}, 24576
s_lshl_b32 s{sT[5]}, s{sPHI}, 7
s_add_u32 s{sT[4]}, s{sT[4]}, s{sT[5]}
s_add_u32 s{sT[4]}, s{sT[4]}, {PF_OFF}
s_add_u32 s{sT[5]}, s{sT[4]}, 12288
""")
for i in range(16): a(f"v_mov_b32 v{HB+i}, 0x3f803f80")
a("s_waitcnt vmcnt(4)")
for mat in range(2):
    for t in range(4):
        for vv in range(2):
            a(f"ds_read_b64_tr_b16 {v(FGU+16*mat+4*t+2*vv,2)}, v{t3} offset:{16384*mat + (32*t+8*vv)*32}")
a("s_waitcnt lgkmcnt(0)")
for mat in range(2):
    for t in range(4):
        mfma(CSA+4*mat, FGU+16*mat+4*t, HB, t == 0)
a(f"""
s_lshl_b32 s{sT[0]}, s{sW}, 7
s_add_u32 s{sT[0]}, s{sT[0]}, {L_CS}
v_lshlrev_b32 v{t0}, 4, v{vG}
v_add_u32 v{t0}, s{sT[0]}, v{t0}
s_mov_b32 exec_lo, 0x00010001
s_mov_b32 exec_hi, 0x00010001
ds_write_b128 v{t0}, {v(CSA,4)}
ds_write_b128 v{t0}, {v(CSA+4,4)} offset:64
s_mov_b64 exec, -1
s_waitcnt vmcnt(0) lgkmcnt(0)
s_barrier
""")
for mt in range(8):
    if mt: a(f"v_xor_b32 v{t2}, {32*mt}, v{t1}")
    a(f"ds_read_b64_tr_b16 {v(FD+2*mt,2)}, v{t2 if mt else t1}")
for k in range(4):
    a(f"ds_read2_b32 {v(FXR+2*k,2)}, v{vCs} offset0:{32*k} offset1:{32*k+16}")
a(f"""
s_waitcnt lgkmcnt(0)
v_add_f32 v{csg}, v{FXR}, v{FXR+2}
v_add_f32 v{csu}, v{FXR+1}, v{FXR+3}
v_add_f32 v{csg}, v{csg}, v{FXR+4}
v_add_f32 v{csu}, v{csu}, v{FXR+5}
v_add_f32 v{csg}, v{csg}, v{FXR+6}
v_add_f32 v{csu}, v{csu}, v{FXR+7}
""")
stamp("FFN prepped")
a(f"s_mov_b64 exec, s[{sM4}:{sM4+1}]")
a(f"s_mov_b32 s{sCNT}, 0")
a("L_pollh:")
for t in range(4):
    a(f"buffer_load_dwordx4 {v(HB+4*t,4)}, v{vHl}, {srd(R_WS)}, s{sT[1]} offen offset:{64*t} sc1")
a("s_waitcnt vmcnt(0)")
poison_check(list(range(HB, HB + 16)), t3)
poll_tail("L_pollh", opt("hsleep", 1))
a("s_mov_b64 exec, -1")
stamp("h gathered")
for t in range(4):
    for k in range(3):
        mfma(GD+4*k, FGU+16*k+4*t if k < 2 else HB+4*t, HB+4*t, t == 0)
a(f"""
s_mov_b64 exec, s[{sM4}:{sM4+1}]
ds_write_b128 v{vFXw}, {v(GD,4)}
ds_write_b128 v{vFXw}, {v(GD+4,4)} offset:256
s_mov_b64 exec, 0x000f000f
ds_write_b128 v{vFXw}, {v(GD+8,4)} offset:512
s_mov_b64 exec, -1
s_waitcnt lgkmcnt(0)
s_barrier
""")
for k in range(4):
    a(f"ds_read_b32 v{FXR+8+k}, v{vSq} offset:{640*k}")
    a(f"ds_read_b32 v{FXR+12+k}, v{vSm} offset:{640*k}")
for k in range(4):
    a(f"ds_read_b32 v{FXR+2*k}, v{vFXr} offset:{640*k}")
    a(f"ds_read_b32 v{FXR+2*k+1}, v{vFXr} offset:{640*k+256}")
gg, uu, sq, sm = vT[13], vT[14], vT[15], vT[16]
a(f"""
s_waitcnt lgkmcnt(8)
v_add_f32 v{sm}, v{FXR+12}, v{FXR+13}
v_add_f32 v{sq}, v{FXR+8}, v{FXR+9}
v_add_f32 v{sm}, v{sm}, v{FXR+14}
v_add_f32 v{sq}, v{sq}, v{FXR+10}
v_add_f32 v{sm}, v{sm}, v{FXR+15}
v_add_f32 v{sq}, v{sq}, v{FXR+11}
v_mul_f32 v{sm}, 0x3b000000, v{sm}
v_mul_f32 v{sq}, 0x3b000000, v{sq}
v_fma_f32 v{sq}, -v{sm}, v{sm}, v{sq}
v_max_f32 v{sq}, 0, v{sq}
v_add_f32 v{sq}, 0x3727c5ac, v{sq}
v_rsq_f32 v{sq}, v{sq}
s_waitcnt lgkmcnt(0)
v_add_f32 v{gg}, v{FXR}, v{FXR+2}
v_add_f32 v{uu}, v{FXR+1}, v{FXR+3}
v_add_f32 v{gg}, v{gg}, v{FXR+4}
v_add_f32 v{uu}, v{uu}, v{FXR+5}
v_add_f32 v{gg}, v{gg}, v{FXR+6}
v_add_f32 v{uu}, v{uu}, v{FXR+7}
v_fma_f32 v{gg}, -v{sm}, v{csg}, v{gg}
v_fma_f32 v{uu}, -v{sm}, v{csu}, v{uu}
v_mul_f32 v{gg}, v{gg}, v{sq}
v_mul_f32 v{uu}, v{uu}, v{sq}
v_mul_f32 v{sm}, {f32(-math.log2(math.e))}, v{gg}
v_exp_f32 v{sm}, v{sm}
v_mul_f32 v{gg}, v{gg}, v{uu}
v_add_f32 v{sm}, 1.0, v{sm}
v_rcp_f32 v{sm}, v{sm}
v_mul_f32 v{gg}, v{gg}, v{sm}
v_mov_b32_dpp v{uu}, v{gg} row_shl:4 row_mask:0xf bank_mask:0xf
v_cvt_pk_bf16_f32 v{FXR}, v{gg}, v{uu}
v_mov_b32_dpp v{FXR+1}, v{FXR} row_shl:8 row_mask:0xf bank_mask:0xf
""")
for mt in range(8): mfma(DD+4*mt, FD+2*mt, FXR, True, k16=True)
a(f"s_mov_b64 exec, s[{sM4}:{sM4+1}]")
for p in range(4):
    for k in range(4):
        a(f"v_cvt_pk_bf16_f32 v{DP+4*p+k}, v{DD+8*p+2*k}, v{DD+8*p+2*k+1}")
    a(f"buffer_store_dwordx4 {v(DP+4*p,4)}, v{vPF}, {srd(R_WS)}, s{sT[4+(p>>1)]} offen offset:{64*(p&1)} sc1")
a("s_mov_b64 exec, -1")
stamp("FFN published")
a("s_branch L_fin")

a("L_wave45:")
PZ = vT[4]
a(f"""
s_lshl_b32 s{sT[3]}, s{sK}, 16
s_lshl_b32 s{sT[4]}, s{sCH}, 17
s_add_u32 s{sT[4]}, s{sT[4]}, s{sT[3]}
s_lshl_b32 s{sT[1]}, s{sK}, 4
v_add_u32 v{vT[11]}, s{sT[1]}, v{vFL}
""")
def dma_all(win, tag, nclr_after):
    signalled = 0
    torder = [0, 2, 1, 3]
    goat = GOAT_A if tag == "A" else GOAT_F
    for idx in range(64):
        i = torder[idx // 16] * 16 + (idx % 16)
        if i % 4 == 0:
            a(f"s_add_u32 m0, s{sT[3]}, {i*1024}")
            a(f"s_add_u32 s{sT[5]}, s{sT[4]}, {i*1024}")
        tmp = vT[i & 1]
        a(f"v_xor_b32 v{tmp}, {fsw(i & 15)*16}, v{vL16}")
        if tag == "A" and WQG and idx == WQG: lds_wait(F_WQI, 4, sleep=1)
        if tag == "A" and WQG and 4 <= idx < WQG: a("s_waitcnt vmcnt(3)")
        if idx >= win:
            a(f"s_waitcnt vmcnt({win-1})")
            done = idx - win + 1
            if done >= 16 * (signalled + 1):
                lds_signal(F_TILE + 4 * torder[signalled], base=vT[11]); signalled += 1
        a(f"buffer_load_dwordx4 v{tmp}, {srd(R_CKV)}, s{sT[5]} offen offset:{(i&3)*1024}{P_CK} lds")
        if idx == goat - 1: lds_signal(F_GO)
    lds_signal(F_QI)
    stamp("dma issued")
    if goat > 64:
        while signalled < 3:
            a(f"s_waitcnt vmcnt({64 - 16*(signalled+1)})")
            lds_signal(F_TILE + 4 * torder[signalled], base=vT[11]); signalled += 1
        a(f"s_waitcnt vmcnt({80 - goat})")
        lds_signal(F_GO)
    while signalled < 4:
        a(f"s_waitcnt vmcnt({64 - 16*(signalled+1)})")
        lds_signal(F_TILE + 4 * torder[signalled], base=vT[11]); signalled += 1
    stamp("ckv landed")
a(f"""
s_cmp_eq_u32 s{sHGB}, 0
s_cbranch_scc1 L_w45free
s_setprio 3
s_waitcnt vmcnt(0)
""")
ln_row()
lds_signal(F_XN)
a("s_setprio 0")
WQG = opt("wqg", 0)
if WQG == 0: lds_wait(F_WQI, 4, sleep=2)
dma_all(DWIN_A, "A", False)
a("s_branch L_w45pf")
a("L_w45free:")
if UKGATE: lds_wait(F_WQI, 4, sleep=1)
dma_all(DWIN_F, "F", False)
a("L_w45pf:")
a(f"""
v_lshrrev_b32 v{t0}, 2, v{vL}
v_mul_u32_u24 v{t0}, 2752, v{t0}
v_and_b32 v{t1}, 3, v{vL}
v_lshlrev_b32 v{t1}, 7, v{t1}
v_min_u32 v{t1}, 348, v{t1}
v_add_u32 v{t0}, v{t0}, v{t1}
s_mul_i32 s{sT[1]}, s{sY}, {16*2752}
s_mul_i32 s{sT[2]}, s{sX}, 352
s_add_u32 s{sT[1]}, s{sT[1]}, s{sT[2]}
v_min_u32 v{t1}, 21, v{vL}
v_lshlrev_b32 v{t1}, 7, v{t1}
s_mul_i32 s{sT[2]}, s{sX}, {176*1024}
s_lshl_b32 s{sT[3]}, s{sY}, 1
s_add_u32 s{sT[3]}, s{sT[3]}, s{sK}
s_mul_i32 s{sT[3]}, s{sT[3]}, {22*128}
s_add_u32 s{sT[2]}, s{sT[2]}, s{sT[3]}
""")
def ffn_pf(tag, s1, s2):
    a(f"""
    buffer_load_dword v{vDUM+1}, v{t1}, {srd(R_WD)}, s{s2} offen
    s_cmp_eq_u32 s{sW}, 5
    s_cbranch_scc1 L_w5up{tag}
    buffer_load_dword v{vDUM}, v{t0}, {srd(R_WG)}, s{s1} offen
    s_branch L_pfd{tag}
    L_w5up{tag}:
    buffer_load_dword v{vDUM}, v{t0}, {srd(R_WU)}, s{s1} offen
    L_pfd{tag}:
    """)
if PFWHEN == 0:
    lds_wait(F_RI, 2, sleep=4)
    ffn_pf("a", sT[1], sT[2])
elif PFWHEN == 2:
    lds_wait(F_QS, 4, sleep=1)
    ffn_pf("a", sT[1], sT[2])
elif PFWHEN == 3:
    lds_wait(F_QS, 4, sleep=1)
    ffn_pf("a", sT[1], sT[2])
else:
    a(f"s_mov_b32 s{sT[9]}, s{sT[1]}")
    a(f"s_mov_b32 s{sT[10]}, s{sT[2]}")
a("s_branch L_phaseC")

a("L_wave67:")
RAW = 32
a(f"s_and_b32 s{sT[0]}, s{sW}, 1")
if CODEPF:
    a(f"""
    s_getpc_b64 s[{sC2}:{sC2+1}]
    L_pcref:
    s_sub_u32 s{sC2}, s{sC2}, L_pcref-{KNAME}
    s_subb_u32 s{sC2+1}, s{sC2+1}, 0
    v_lshlrev_b32 v{t0}, 7, v{vL}
    s_lshl_b32 s{sT[2]}, s{sT[0]}, 13
    v_add_u32 v{t0}, s{sT[2]}, v{t0}
    v_add_u32 v{t1}, 16384, v{t0}
    v_min_u32 v{t0}, L_end-{KNAME}, v{t0}
    v_min_u32 v{t1}, L_end-{KNAME}, v{t1}
    """)
a(f"""
s_cmp_eq_u32 s{sHGB}, 0
s_cbranch_scc1 L_noLN
s_setprio 3
s_waitcnt vmcnt(0)
""")
ln_row()
lds_signal(F_XN)
stamp("LN done")
a("s_branch L_w67rest")
a("L_noLN:")
if CODEPF:
    a(f"""
    global_load_dword v{vDUM}, v{t0}, s[{sC2}:{sC2+1}]
    global_load_dword v{vDUM+1}, v{t1}, s[{sC2}:{sC2+1}]
    """)
a("L_w67rest:")
if opt("tlbw", 0):
    a(f"""
    s_cmp_lg_u32 s{sW}, {opt("tlbwave", 7)}
    s_cbranch_scc1 L_notlb
    v_lshlrev_b32 v{t0}, 21, v{vL}
    s_mov_b64 exec, 15
    s_waitcnt lgkmcnt(0)
    buffer_load_dword v{vDUM}, v{t0}, {srd(R_WS)}, 0 offen
    buffer_load_dword v{vDUM}, v{t0}, {srd(R_WUV)}, 0 offen
    buffer_load_dword v{vDUM}, v{t0}, {srd(R_WO)}, 0 offen
    buffer_load_dword v{vDUM}, v{t0}, {srd(R_WG)}, 0 offen
    buffer_load_dword v{vDUM}, v{t0}, {srd(R_WU)}, 0 offen
    buffer_load_dword v{vDUM}, v{t0}, {srd(R_WD)}, 0 offen
    buffer_load_dword v{vDUM}, v{t0}, {srd(R_OUT)}, 0 offen
    s_mov_b64 exec, -1
    L_notlb:
    """)
def clears():
    a(f"""
    v_and_b32 v{vT[8]}, 7, v{vL}
    v_lshlrev_b32 v{vT[8]}, 4, v{vT[8]}
    v_bfe_u32 v{vT[9]}, v{vL}, 3, 1
    v_lshl_add_u32 v{vT[10]}, v{vT[9]}, 14, v{vT[8]}
    v_lshl_add_u32 v{vT[10]}, v{vG}, 17, v{vT[10]}
    s_lshl_b32 s{sT[1]}, s{sMH}, 1
    s_add_u32 s{sT[1]}, s{sT[1]}, s{sT[0]}
    s_lshl_b32 s{sT[1]}, s{sT[1]}, 15
    s_lshl_b32 s{sT[2]}, s{sH}, 2
    s_add_u32 s{sT[2]}, s{sT[2]}, s{sCQ}
    s_lshl_b32 s{sT[2]}, s{sT[2]}, 7
    s_add_u32 s{sT[1]}, s{sT[1]}, s{sT[2]}
    s_add_u32 s{sT[1]}, s{sT[1]}, {PA_OFF}
    buffer_store_dwordx4 {v(PZ,4)}, v{vT[10]}, {srd(R_WS)}, s{sT[1]} offen sc1
    """)
a(f"""
v_mov_b32 v{PZ}, -1
v_mov_b32 v{PZ+1}, -1
v_mov_b32 v{PZ+2}, -1
v_mov_b32 v{PZ+3}, -1
""")
clears()
a(f"""
s_cmp_eq_u32 s{sISR}, 0
s_cbranch_scc1 L_noclrH
s_cmp_lg_u32 s{sW}, 7
s_cbranch_scc1 L_noclrH
s_lshl_b32 s{sT[1]}, s{sRHO}, 7
s_add_u32 s{sT[1]}, s{sT[1]}, {HG_OFF}
s_mov_b64 exec, 0xff
buffer_store_dwordx4 {v(PZ,4)}, v{vL16}, {srd(R_WS)}, s{sT[1]} offen sc1
s_mov_b64 exec, -1
L_noclrH:
s_cmp_eq_u32 s{sISF}, 0
s_cbranch_scc1 L_noclrF
v_mul_u32_u24 v{vT[10]}, 12288, v{vT[9]}
v_add_u32 v{vT[10]}, v{vT[10]}, v{vT[8]}
s_mov_b32 s{sT[1]}, 98304
v_mul_lo_u32 v{vT[9]}, v{vG}, s{sT[1]}
v_add_u32 v{vT[10]}, v{vT[10]}, v{vT[9]}
s_mul_i32 s{sT[1]}, s{sT[0]}, 49152
s_lshl_b32 s{sT[2]}, s{sPHI}, 7
s_add_u32 s{sT[1]}, s{sT[1]}, s{sT[2]}
s_add_u32 s{sT[1]}, s{sT[1]}, {PF_OFF}
s_add_u32 s{sT[2]}, s{sT[1]}, 24576
buffer_store_dwordx4 {v(PZ,4)}, v{vT[10]}, {srd(R_WS)}, s{sT[1]} offen sc1
buffer_store_dwordx4 {v(PZ,4)}, v{vT[10]}, {srd(R_WS)}, s{sT[2]} offen sc1
L_noclrF:
s_waitcnt vmcnt(0)
""")
lds_signal(F_CLR)
a("s_setprio 0")
a(f"""
v_lshlrev_b32 v{vT[4]}, 13, v{vG}
v_lshl_add_u32 v{vT[4]}, v{vN}, 4, v{vT[4]}
s_lshl_b32 s{sT[1]}, s{sCQ}, 7
s_lshl_b32 s{sT[2]}, s{sT[0]}, 6
s_add_u32 s{sT[1]}, s{sT[1]}, s{sT[2]}
s_lshl_b32 s{sT[1]}, s{sT[1]}, 13
s_lshl_b32 s{sT[2]}, s{sH}, 8
s_add_u32 s{sT[1]}, s{sT[1]}, s{sT[2]}
v_lshrrev_b32 v{vT[5]}, 5, v{vL}
v_lshlrev_b32 v{vT[5]}, 10, v{vT[5]}
v_and_b32 v{vT[6]}, 31, v{vL}
v_lshl_add_u32 v{vT[5]}, v{vT[6]}, 4, v{vT[5]}
s_lshl_b32 s{sT[2]}, s{sH}, 17
s_lshl_b32 s{sT[3]}, s{sT[0]}, 16
s_add_u32 s{sT[2]}, s{sT[2]}, s{sT[3]}
s_lshl_b32 s{sT[3]}, s{sMH}, 9
s_add_u32 s{sT[2]}, s{sT[2]}, s{sT[3]}
s_waitcnt vmcnt(0)
""")
RPRE = opt("rpre", 48)
RCOOP = opt("rcoop", 0)
if RCOOP:
    a(f"""
    v_lshrrev_b32 v{t0}, 2, v{vL}
    v_lshlrev_b32 v{t0}, 13, v{t0}
    v_and_b32 v{t1}, 3, v{vL}
    v_lshl_add_u32 v{t0}, v{t1}, 7, v{t0}
    v_lshlrev_b32 v{t1}, 7, v{vL}
    s_lshl1_add_u32 s{sT[4]}, s{sYP}, s{sT[0]}
    s_lshl_b32 s{sT[5]}, s{sT[4]}, 17
    s_lshl_b32 s{sT[6]}, s{sX}, 9
    s_add_u32 s{sT[5]}, s{sT[5]}, s{sT[6]}
    s_add_u32 s{sT[6]}, s{sT[5]}, 4096
    s_lshl_b32 s{sT[7]}, s{sT[4]}, 13
    s_lshl_b32 s{sT[8]}, s{sX}, 18
    s_add_u32 s{sT[7]}, s{sT[7]}, s{sT[8]}
    s_add_u32 s{sT[8]}, s{sT[7]}, {16 << 17}
    """)
PFL = [f"buffer_load_dword v{vDUM}, v{t0}, {srd(R_WUV)}, s{sT[5]} offen",
       f"buffer_load_dword v{vDUM+1}, v{t1}, {srd(R_WO)}, s{sT[7]} offen",
       f"buffer_load_dword v{vDUM}, v{t0}, {srd(R_WUV)}, s{sT[6]} offen",
       f"buffer_load_dword v{vDUM+1}, v{t1}, {srd(R_WO)}, s{sT[8]} offen"]
NPRE = opt("npre", 2); NPOST = opt("npost", 2)
if RCOOP == 2:
    a(f"""
    s_cmp_eq_u32 s{sHGB}, 1
    s_cbranch_scc1 L_nocoop2
    """)
    lds_wait(F_GO, 2, sleep=1)
    for l in PFL[:NPRE]: a(l)
    a("L_nocoop2:")
    lds_signal(F_GO)
    if NPOST:
        a(f"""
        s_cmp_eq_u32 s{sHGB}, 1
        s_cbranch_scc1 L_nocoop3
        """)
        lds_wait(F_QI, 6, sleep=1)
        for l in PFL[NPRE:NPRE+NPOST]: a(l)
        a("L_nocoop3:")
    a("s_waitcnt vmcnt(0)")
lds_wait(F_QI, 6, sleep=2)
if RCOOP == 1:
    a(f"""
    s_cmp_eq_u32 s{sHGB}, 1
    s_cbranch_scc1 L_nocoop
    buffer_load_dword v{vDUM}, v{t0}, {srd(R_WUV)}, s{sT[5]} offen
    buffer_load_dword v{vDUM+1}, v{t0}, {srd(R_WUV)}, s{sT[6]} offen
    buffer_load_dword v{vDUM}, v{t1}, {srd(R_WO)}, s{sT[7]} offen
    buffer_load_dword v{vDUM+1}, v{t1}, {srd(R_WO)}, s{sT[8]} offen
    s_waitcnt vmcnt(0)
    L_nocoop:
    """)
for i in range(48):
    if i == RPRE: lds_wait(F_QS, 4, sleep=1)
    if i >= RWIN: a(f"s_waitcnt vmcnt({RWIN-1})")
    if i < 16:
        if i: a(f"s_add_u32 s{sT[1]}, s{sT[1]}, 32768")
        a(f"buffer_load_dwordx4 {v(RAW+4*i,4)}, v{vT[4]}, {srd(R_WUV)}, s{sT[1]} offen{P_R}")
    else:
        k = i - 16
        if k and k % 2 == 0: a(f"s_add_u32 s{sT[2]}, s{sT[2]}, 4096")
        a(f"buffer_load_dwordx4 {v(RAW+64+4*k,4)}, v{vT[5]}, {srd(R_WO)}, s{sT[2]} offen offset:{(k&1)*2048}{P_R}")
lds_signal(F_RI)
stamp("rest issued")
a(f"""
v_lshlrev_b32 v{t0}, 5, v{vG}
v_lshlrev_b32 v{t1}, 4, v{vN}
v_xor_b32 v{t0}, v{t0}, v{t1}
v_lshl_add_u32 v{t0}, v{vG}, 8, v{t0}
s_lshl_b32 s{sT[1]}, s{sT[0]}, 14
v_add_u32 v{t0}, s{sT[1]}, v{t0}
v_xor_b32 v{t1}, 128, v{t0}
v_lshrrev_b32 v{t2}, 5, v{vL}
v_and_b32 v{vT[4]}, 31, v{vL}
v_lshlrev_b32 v{vT[4]}, 4, v{vT[4]}
v_lshlrev_b32 v{t3}, 5, v{t2}
v_xor_b32 v{vT[4]}, v{vT[4]}, v{t3}
v_lshl_add_u32 v{vT[4]}, v{t2}, 9, v{vT[4]}
s_lshl_b32 s{sT[1]}, s{sT[0]}, 15
s_add_u32 s{sT[1]}, s{sT[1]}, {L_WO}
v_add_u32 v{vT[4]}, s{sT[1]}, v{vT[4]}
v_xor_b32 v{vT[5]}, 64, v{vT[4]}
v_xor_b32 v{vT[6]}, 128, v{vT[4]}
v_xor_b32 v{vT[7]}, 192, v{vT[4]}
""")
lds_wait(F_BD, 4, sleep=1)
for i in range(16):
    if 47 - i < RWIN: a(f"s_waitcnt vmcnt({47-i})")
    a(f"ds_write_b128 v{t1 if (i>>1)&1 else t0}, {v(RAW+4*i,4)} offset:{L_WUV + 1024*i}")
for i in range(32):
    if 31 - i < RWIN: a(f"s_waitcnt vmcnt({31-i})")
    sel = (i & 1) | (((i >> 2) & 1) << 1)
    a(f"ds_write_b128 v{vT[4+sel]}, {v(RAW+64+4*i,4)} offset:{1024*i}")
lds_signal(F_ST)
stamp("images written")

a("L_phaseC:")
FUV, FO, CB, XD, AD, AP = 32, 64, 128, 144, 160, 176
vUVa, vOa, vCLr, vCXw, vCXr, vPA = vT[4], vT[5], vT[6], vT[7], vT[8], vT[9]
a(f"""
v_bfe_u32 v{vT[12]}, v{vL}, 2, 2
v_and_b32 v{vT[13]}, 1, v{vG}
v_lshl_add_u32 v{vT[13]}, v{vT[13]}, 2, v{vT[12]}
v_lshl_add_u32 v{vT[12]}, v{vG}, 3, v{vT[12]}
v_and_b32 v{vT[14]}, 3, v{vL}
v_lshlrev_b32 v{vT[14]}, 3, v{vT[14]}
s_lshl_b32 s{sT[0]}, s{sK}, 1
v_xor_b32 v{vUVa}, s{sT[0]}, v{vT[13]}
v_lshl_add_u32 v{vUVa}, v{vUVa}, 5, v{vT[14]}
v_lshl_add_u32 v{vUVa}, v{vT[12]}, 8, v{vUVa}
s_lshl_b32 s{sT[0]}, s{sK}, 2
v_xor_b32 v{vOa}, s{sT[0]}, v{vT[13]}
v_lshl_add_u32 v{vOa}, v{vOa}, 5, v{vT[14]}
v_lshl_add_u32 v{vOa}, v{vT[12]}, 9, v{vOa}
v_add_u32 v{vOa}, {L_WO}, v{vOa}
v_and_b32 v{vT[12]}, 3, v{vN}
v_mul_u32_u24 v{vT[12]}, 272, v{vT[12]}
v_lshl_add_u32 v{vCXr}, v{vG}, 4, v{vT[12]}
v_add_u32 v{vCLr}, {L_CL}, v{vCXr}
v_add_u32 v{vCXr}, {L_CX}, v{vCXr}
v_lshl_add_u32 v{vCXw}, v{vG}, 3, v{vT[12]}
s_lshl_b32 s{sT[0]}, s{sK}, 6
s_add_u32 s{sT[0]}, s{sT[0]}, {L_CX}
v_add_u32 v{vCXw}, s{sT[0]}, v{vCXw}
v_lshlrev_b32 v{vPA}, 4, v{vG}
v_lshl_add_u32 v{vPA}, v{vN}, 17, v{vPA}
s_lshl_b32 s{sT[1]}, s{sMH}, 2
s_add_u32 s{sT[1]}, s{sT[1]}, s{sK}
s_lshl_b32 s{sT[1]}, s{sT[1]}, 14
s_lshl_b32 s{sT[2]}, s{sH}, 2
s_add_u32 s{sT[2]}, s{sT[2]}, s{sCQ}
s_lshl_b32 s{sT[2]}, s{sT[2]}, 7
s_add_u32 s{sT[1]}, s{sT[1]}, s{sT[2]}
s_add_u32 s{sT[1]}, s{sT[1]}, {PA_OFF}
""")
lds_wait(F_ST, 2, sleep=1)
for mt in range(2):
    if mt: a(f"v_xor_b32 v{vT[12]}, 32, v{vUVa}")
    for ks in range(4):
        for vv in range(2):
            a(f"ds_read_b64_tr_b16 {v(FUV+16*mt+4*ks+2*vv,2)}, v{vT[12] if mt else vUVa} offset:{L_WUV + (32*ks+4*vv)*256}")
for mt in range(4):
    if mt: a(f"v_xor_b32 v{vT[12]}, {32*mt}, v{vOa}")
    for ks in range(4):
        for vv in range(2):
            a(f"ds_read_b64_tr_b16 {v(FO+16*mt+4*ks+2*vv,2)}, v{vT[12] if mt else vOa} offset:{(32*ks+4*vv)*512}")
stamp("weights staged")
a("s_setprio 2")
def spec_cl():
    for ks in range(4): a(f"ds_read_b128 {v(CB+4*ks,4)}, v{vCLr} offset:{64*ks}")
lds_wait(F_CL, 4, spec_cl)
if PFWHEN == 1:
    a(f"""
    s_cmp_ge_u32 s{sW}, 6
    s_cbranch_scc1 L_nopf2
    """)
    ffn_pf("b", sT[9], sT[10])
    a("L_nopf2:")
for ks in range(4):
    for mt in range(2): mfma(XD+4*mt, FUV+16*mt+4*ks, CB+4*ks, ks == 0)
for k in range(4): a(f"v_cvt_pk_bf16_f32 v{XD+8+k}, v{XD+2*k}, v{XD+2*k+1}")
a(f"""
s_mov_b64 exec, s[{sM4}:{sM4+1}]
ds_write_b64 v{vCXw}, {v(XD+8,2)}
ds_write_b64 v{vCXw}, {v(XD+10,2)} offset:32
""")
lds_signal(F_CX)
def spec_cx():
    for ks in range(4): a(f"ds_read_b128 {v(CB+4*ks,4)}, v{vCXr} offset:{64*ks}")
lds_wait(F_CX, 4, spec_cx)
for p in range(2):
    for ks in range(4):
        for k in range(2):
            mt = 2 * p + k
            mfma(AD+4*mt, FO+16*mt+4*ks, CB+4*ks, ks == 0)
a(f"s_mov_b64 exec, s[{sM4}:{sM4+1}]")
for p in range(2):
    for k in range(4): a(f"v_cvt_pk_bf16_f32 v{AP+4*p+k}, v{AD+8*p+2*k}, v{AD+8*p+2*k+1}")
    a(f"buffer_store_dwordx4 {v(AP+4*p,4)}, v{vPA}, {srd(R_WS)}, s{sT[1]} offen offset:{64*p} sc1")
a("s_mov_b64 exec, -1")
stamp("attn partial published")
a("s_waitcnt vmcnt(0)")

a("L_fin:")
if PROF:
    stamp("end")
    a(f"""
    s_lshl_b32 s{sT[0]}, s2, 3
    s_add_u32 s{sT[0]}, s{sT[0]}, s{sW}
    s_lshl_b32 s{sT[0]}, s{sT[0]}, 8
    s_add_u32 s{sT[0]}, s{sT[0]}, {TS_OFF}
    v_lshlrev_b32 v{t0}, 2, v{vL}
    buffer_store_dword v{vTSA}, v{t0}, {srd(R_WS)}, s{sT[0]} offen
    """)
a("L_end:")

hdr = open("sequential_preLN__compressed_kv_cla__swiglu_ffn__decode.s.ref").read().split("; @launch")[0]
open(OUT, "w").write(wrap_single(a.text(), 256, 512, LDS_BYTES, vgpr=256, header=hdr))
print("instructions:", a.ninstr, file=sys.stderr)
```

```python
import sys, math, struct
from asmgen import *

def opt(name, default):
    for x in sys.argv[1:]:
        if x.startswith("--" + name + "="):
            return int(x.split("=")[1])
    return default
PROF = "--prof" in sys.argv
DBGT = "--dbgtime" in sys.argv
OUT = [a for a in sys.argv[1:] if not a.startswith("--")]
OUT = OUT[0] if OUT else "sequential_preLN__compressed_kv_cla__swiglu_ffn__decode.s"
POLL_MAX = 1 << 15
LSPIN_MAX = 1 << 20
DWIN_A = opt("dwina", 14)
DWIN_F = opt("dwinf", 20)
RWIN = opt("rwin", 12)
UKPF = opt("ukpf", 1)
CODEPF = opt("codepf", 1)
QSLEEP = opt("qsleep", 1)
OACK = opt("oack", 1)
POLS = [" nt", "", " sc0", " sc1", " sc0 nt"]
P_WQ = POLS[opt("pwq", 1)]; P_CK = POLS[opt("pck", 1)]; P_R = POLS[opt("pr", 1)]
AQ = opt("aq", 16)
PFWHEN = opt("pfwhen", 1)
MLSLEEP = opt("mlsleep", 2)
FFNDLY = opt("ffndly", 24)

EPOCH_OFF = 0x0
QA_OFF = 0x10000
HG_OFF = 0x58000
PA_OFF = 0x80000
PF_OFF = 0x100000
O_OFF = 0x200000
ML_OFF = 0x600000
TS_OFF = 0x1000000
WS_USED = 0x1100000

L_QS = 131072
L_XN = 147456
L_Q16 = 151616
L_MX = 152640
L_PX = 153152
L_CL = 157248
L_CX = 159488
L_RED = 160576
L_CS = 162624
L_FL = 163136
LDS_BYTES = 163840
L_WUV, L_WO = 0, 32768
L_G, L_U, L_WD = 98304, 114688, L_QS
L_FX = L_PX
(F_XN, F_CLR, F_QP, F_Q16, F_QS, F_P, F_GO, F_WQI) = [4 * i for i in range(8)]
F_TILE = 32
(F_RI, F_BD, F_ST, F_CL, F_CX, F_QI) = [64 + 4 * i for i in range(6)]
UKGATE = opt('ukgate', 1)
GOAT_A = opt('goata', 48)
GOAT_F = opt('goatf', 80)
L_QP = L_PX

sW, sX, sY, sH, sYP, sCQ, sMH, sHGB, sCH, sEP = 3, 4, 5, 6, 7, 8, 9, 10, 11, 12
sT = list(range(13, 24))
sO, sHA, sJQ, sPHI, sRHO, sISF, sISR, sCNT = 24, 25, 26, 27, 28, 29, 30, 31
R_X, R_CKV, R_WQ, R_WUK, R_WUV, R_WO, R_WG, R_WU, R_WD, R_OUT, R_WS, R_PF = [32 + 4 * i for i in range(12)]
sSELLO, sSELHI = 80, 81
sM8 = 82
sM4 = 84
sACC = 86
sC2 = 88
sTS = 90
sK = 92
def srd(r): return f"s[{r}:{r+3}]"
def f32(x): return "0x%08x" % struct.unpack("<I", struct.pack("<f", x))[0]

vL, vN, vG, vL16, vFL, vONE, vTSA = 1, 2, 3, 4, 5, 6, 7
vT = list(range(8, 32))
t0, t1, t2, t3 = vT[0], vT[1], vT[2], vT[3]
vSP = vT[23]
vDUM = vT[21]
def v(i, n=1): return f"v{i}" if n == 1 else f"v[{i}:{i+n-1}]"
def fsw(row): return 2 * ((row & 7) ^ (4 * (row >> 3))) + (row >> 3)

a = Asm()
stamps = {}
PROBE = [x.split("=", 1)[1].replace("_", " ") for x in sys.argv if x.startswith("--probe=")]
def stamp(name):
    if PROBE and PROBE[0] == name.replace("_", " ") and opt("plocal", 1):
        a(f"""
        s_memrealtime s[94:95]
        s_waitcnt lgkmcnt(0)
        v_mov_b32 v{vT[19]}, {L_FL + 128}
        v_mov_b32 v{vT[20]}, s94
        s_mov_b64 s[100:101], exec
        s_mov_b64 exec, 1
        ds_max_u32 v{vT[19]}, v{vT[20]}
        s_mov_b64 exec, s[100:101]
        s_waitcnt lgkmcnt(0)
        """)
    elif PROBE and PROBE[0] == name.replace("_", " "):
        a(f"""
        s_memrealtime s[94:95]
        s_waitcnt lgkmcnt(0)
        v_mov_b32 v{vT[19]}, 16
        v_mov_b32 v{vT[20]}, s94
        s_mov_b64 s[100:101], exec
        s_mov_b64 exec, 1
        global_atomic_umax v{vT[19]}, v{vT[20]}, s[98:99] sc1
        s_mov_b64 exec, s[100:101]
        """)
    if not PROF: return
    if name not in stamps:
        stamps[name] = len(stamps)
    i = stamps[name]
    a(f"""
    s_memrealtime s[{sTS}:{sTS+1}]
    s_waitcnt lgkmcnt(0)
    v_writelane_b32 v{vTSA}, s{sTS}, {i}
    """)
def cstamp(name):
    if not PROF: return
    name = "#" + name
    if name not in stamps:
        stamps[name] = len(stamps)
    a(f"s_add_u32 s{sTS}, s{sCNT}, 1")
    a(f"v_writelane_b32 v{vTSA}, s{sTS}, {stamps[name]}")
def poll_tail(name, sleep=0):
    done = a.newlabel("Lpd")
    a(f"""
    s_cmp_eq_u64 vcc, 0
    s_cbranch_scc1 {done}
    """)
    if sleep: a(f"s_sleep {sleep}")
    a(f"""
    s_add_u32 s{sCNT}, s{sCNT}, 1
    s_cmp_lt_u32 s{sCNT}, {POLL_MAX}
    s_cbranch_scc1 {name}
    """)
    a.label(done)
def poison_check(regs, tmp):
    regs = list(regs); n = len(regs)
    a(f"v_max3_u32 v{tmp}, v{regs[0]}, v{regs[1]}, v{regs[2]}")
    i = 3
    while i + 1 < n:
        a(f"v_max3_u32 v{tmp}, v{tmp}, v{regs[i]}, v{regs[i+1]}"); i += 2
    if i < n: a(f"v_max_u32 v{tmp}, v{tmp}, v{regs[i]}")
    a(f"v_cmp_eq_u32 vcc, -1, v{tmp}")
def lds_signal(off, base=None):
    a(f"""
    s_mov_b64 exec, 1
    ds_add_u32 v{vFL if base is None else base}, v{vONE} offset:{off}
    s_mov_b64 exec, -1
    """)
def lds_wait(off, target, spec=None, sleep=0, base=None):
    lp, dn = a.newlabel("Lw"), a.newlabel("Lwd")
    a(f"s_mov_b32 s{sCNT}, 0")
    a.label(lp)
    a(f"ds_read_b32 v{vSP}, v{vFL if base is None else base} offset:{off}")
    if spec: spec()
    a(f"""
    s_waitcnt lgkmcnt(0)
    v_readfirstlane_b32 s{sACC}, v{vSP}
    s_cmp_ge_u32 s{sACC}, {target}
    s_cbranch_scc1 {dn}
    """)
    if sleep: a(f"s_sleep {sleep}")
    a(f"""
    s_add_u32 s{sCNT}, s{sCNT}, 1
    s_cmp_lt_u32 s{sCNT}, {LSPIN_MAX}
    s_cbranch_scc1 {lp}
    """)
    a.label(dn)
def rne_bf16(dst, src):
    a(f"v_cvt_pk_bf16_f32 v{dst}, v{src}, v{src}")
    a(f"v_and_b32 v{dst}, 0xffff0000, v{dst}")
def mfma(d, A, B, first, k16=False):
    n = 2 if k16 else 4
    op = "v_mfma_f32_16x16x16_bf16" if k16 else "v_mfma_f32_16x16x32_bf16"
    a(f"{op} {v(d,4)}, {v(A,n)}, {v(B,n)}, {'0' if first else v(d,4)}")

XR, XF = 32, 40
def ln_row():
    def wave_sum(x):
        for ctl in ["row_shr:1", "row_shr:2", "row_shr:4", "row_shr:8"]:
            a(f"v_add_f32_dpp v{x}, v{x}, v{x} {ctl} row_mask:0xf bank_mask:0xf bound_ctrl:0")
        a(f"v_add_f32_dpp v{x}, v{x}, v{x} row_bcast:15 row_mask:0xa bank_mask:0xf")
        a(f"v_add_f32_dpp v{x}, v{x}, v{x} row_bcast:31 row_mask:0xc bank_mask:0xf")
    xr, xf = XR, XF
    for i in range(4):
        a(f"v_lshlrev_b32 v{xf+2*i}, 16, v{xr+i}")
        a(f"v_and_b32 v{xf+2*i+1}, 0xffff0000, v{xr+i}")
    a(f"v_add_f32 v{xf+12}, v{xf}, v{xf+1}")
    for i in range(2, 8): a(f"v_add_f32 v{xf+12}, v{xf+12}, v{xf+i}")
    wave_sum(xf + 12)
    a(f"v_mov_b32 v{xf+15}, 0x3b000000")
    a(f"v_readlane_b32 s{sT[6]}, v{xf+12}, 63")
    a(f"v_mul_f32 v{xf+13}, s{sT[6]}, v{xf+15}")
    for i in range(8):
        a(f"v_sub_f32 v{xf+14}, v{xf+i}, v{xf+13}")
        if i == 0: a(f"v_mul_f32 v{xf+12}, v{xf+14}, v{xf+14}")
        else: a(f"v_fmac_f32 v{xf+12}, v{xf+14}, v{xf+14}")
    rne_bf16(xf + 13, xf + 13)
    wave_sum(xf + 12)
    for i in range(8): a(f"v_sub_f32 v{xf+i}, v{xf+i}, v{xf+13}")
    a(f"v_readlane_b32 s{sT[6]}, v{xf+12}, 63")
    for i in range(4): a(f"v_cvt_pk_bf16_f32 v{xf+8+i}, v{xf+2*i}, v{xf+2*i+1}")
    a(f"v_mul_f32 v{xf+12}, s{sT[6]}, v{xf+15}")
    rne_bf16(xf + 12, xf + 12)
    a(f"v_add_f32 v{xf+12}, 0x3727c5ac, v{xf+12}")
    rne_bf16(xf + 12, xf + 12)
    a(f"v_sqrt_f32 v{xf+12}, v{xf+12}")
    for i in range(4):
        a(f"v_lshlrev_b32 v{xf+2*i}, 16, v{xf+8+i}")
        a(f"v_and_b32 v{xf+2*i+1}, 0xffff0000, v{xf+8+i}")
    rne_bf16(xf + 12, xf + 12)
    a(f"v_rcp_f32 v{xf+12}, v{xf+12}")
    a(f"s_mul_i32 s{sT[6]}, s{sK}, 1040")
    a(f"s_add_u32 s{sT[6]}, s{sT[6]}, {L_XN}")
    a(f"v_add_u32 v{xf+15}, s{sT[6]}, v{vL16}")
    for i in range(8): a(f"v_mul_f32 v{xf+i}, v{xf+i}, v{xf+12}")
    for i in range(4): a(f"v_cvt_pk_bf16_f32 v{xf+8+i}, v{xf+2*i}, v{xf+2*i+1}")
    a(f"ds_write_b128 v{xf+15}, {v(xf+8,4)}")

EARLYPF = f"""s_getpc_b64 s[{sC2}:{sC2+1}]
v_lshlrev_b32 v{t1}, 6, v0
v_min_u32 v{t1}, L_end-{KNAME}-256, v{t1}
global_load_dword v{vDUM}, v{t1}, s[{sC2}:{sC2+1}]""" if opt("earlypf", 1) else ""
if opt("earlypf", 1): CODEPF = 0
WQ, FR, AC, BX, UK = 32, 160, 192, 224, 32
XBAR = opt('xbar', 1)
vWQ, vUK = vT[4], vT[5]
def wq_kstep(u):
    a(f"""
    s_add_u32 s{sT[2]}, s{sJQ}, {u}
    s_and_b32 s{sT[2]}, s{sT[2]}, 3
    s_lshl_b32 s{sT[2]}, s{sT[2]}, 18
    s_add_u32 s{sT[3]}, s{sT[2]}, s{sT[0]}
    """)
    if u == 0:
        a("s_waitcnt lgkmcnt(0)")
        if XBAR: a("s_barrier")
    for e in range(8):
        if e: a(f"s_add_u32 s{sT[3]}, s{sT[3]}, 8192")
        a(f"buffer_load_dwordx4 {v(WQ+4*(8*u+e),4)}, v{vWQ}, {srd(R_WQ)}, s{sT[3]} offen{P_WQ}")
def wq_lines(u):
    L = [[f"s_add_u32 s{sT[2]}, s{sJQ}, {u}", f"s_and_b32 s{sT[2]}, s{sT[2]}, 3", f"s_lshl_b32 s{sT[2]}, s{sT[2]}, 18", f"s_add_u32 s{sT[3]}, s{sT[2]}, s{sT[0]}"]]
    for e in range(8):
        if e: L.append([f"s_add_u32 s{sT[3]}, s{sT[3]}, 8192"])
        L[-1].append(f"buffer_load_dwordx4 {v(WQ+4*(8*u+e),4)}, v{vWQ}, {srd(R_WQ)}, s{sT[3]} offen{P_WQ}")
    return L
def uk_lines():
    return [[f"buffer_load_dwordx4 {v(UK+16*mt+4*t,4)}, v{vUK}, {srd(R_WUK)}, s{sT[4+mt]} offen offset:{64*t}{P_WQ}"] for mt in range(2) for t in range(4)]
def q_kstep(u, extra=None):
    for jj in range(8):
        if extra:
            for l in extra[jj]: a(l)
        for p in range(4):
            sel = sSELHI if (jj & 1) else sSELLO
            a(f"v_perm_b32 v{FR+4*jj+p}, v{WQ+4*(8*u+2*p+1)+(jj>>1)}, v{WQ+4*(8*u+2*p)+(jj>>1)}, s{sel}")
        if jj >= 1: mfma(AC+4*(jj-1), FR+4*(jj-1), BX+4*u, u == 0)
    mfma(AC+28, FR+28, BX+4*u, u == 0)
def srdw(lst):
    for r, nb in lst:
        a(f"s_mov_b32 s{r+2}, {nb}")
        a(f"s_mov_b32 s{r+3}, 0x20000")
a(f"""
s_load_dwordx2 s[{R_WQ}:{R_WQ+1}], s[0:1], 16
s_load_dwordx2 s[{R_X}:{R_X+1}], s[0:1], 0
s_load_dwordx2 s[{R_WUK}:{R_WUK+1}], s[0:1], 24
s_load_dwordx2 s[{R_CKV}:{R_CKV+1}], s[0:1], 8
s_load_dwordx2 s[{R_WS}:{R_WS+1}], s[0:1], 96
{"s_memrealtime s[94:95]" if DBGT else ""}
s_cmp_ge_u32 s2, 256
s_cbranch_scc1 L_end
{EARLYPF}
v_lshrrev_b32 v{t0}, 6, v0
v_and_b32 v{vL}, 63, v0
v_and_b32 v{vN}, 15, v0
v_readfirstlane_b32 s{sW}, v{t0}
v_bfe_u32 v{vG}, v0, 4, 2
v_lshlrev_b32 v{vL16}, 4, v{vL}
v_lshlrev_b32 v{vWQ}, 16, v{vG}
v_lshl_add_u32 v{vWQ}, v{vN}, 4, v{vWQ}
s_and_b32 s{sX}, s2, 7
s_lshr_b32 s{sYP}, s2, 4
s_and_b32 s{sHA}, s{sYP}, 3
s_lshl2_add_u32 s{sHA}, s{sX}, s{sHA}
s_lshr_b32 s{sJQ}, s{sYP}, 2
s_lshl_b32 s{sT[1]}, s{sHA}, 8
s_and_b32 s{sK}, s{sW}, 3
""")
srdw([(R_WQ, 4 << 20), (R_X, 4096), (R_WUK, 4 << 20)])
a(f"""
s_bitcmp1_b32 s2, 3
s_cbranch_scc1 L_f0
s_cmp_ge_u32 s{sW}, 4
s_cbranch_scc1 L_al0
s_lshl_b32 s{sT[0]}, s{sW}, 20
s_add_u32 s{sT[0]}, s{sT[0]}, s{sT[1]}
""")
wq_kstep(0)
a(f"""
s_branch {"L_j1" if XBAR else "L_j0"}
L_al0:
s_setprio 3
s_lshl_b32 s{sT[2]}, s{sK}, 10
v_lshlrev_b32 v{t0}, 2, v{vL}
v_add_u32 v{t0}, {L_FL}, v{t0}
v_mov_b32 v{t3}, 0
ds_write_b32 v{t0}, v{t3}
v_lshlrev_b32 v{t0}, 3, v{vN}
v_add_u32 v{t0}, {L_MX}, v{t0}
v_mov_b32 v{t2}, 0xff800000
ds_write2_b32 v{t0}, v{t2}, v{t3} offset0:0 offset1:1
s_waitcnt lgkmcnt(0)
buffer_load_dwordx4 {v(XR,4)}, v{vL16}, {srd(R_X)}, s{sT[2]} offen
s_branch L_j0
L_f0:
s_cmp_ge_u32 s{sW}, 4
s_cbranch_scc1 L_f1
v_lshrrev_b32 v{t2}, 1, v{vL}
v_lshlrev_b32 v{t2}, 13, v{t2}
v_and_b32 v{t3}, 1, v{vL}
v_lshl_add_u32 v{t2}, v{t3}, 7, v{t2}
s_lshl2_add_u32 s{sT[6]}, s{sJQ}, s{sW}
s_lshl_b32 s{sT[6]}, s{sT[6]}, 18
s_add_u32 s{sT[6]}, s{sT[6]}, s{sT[1]}
s_waitcnt lgkmcnt(0)
buffer_load_dword v{vDUM+1}, v{t2}, {srd(R_WUK)}, s{sT[6]} offen{P_WQ}
s_branch L_j0
L_f1:
v_lshlrev_b32 v{t0}, 2, v{vL}
v_add_u32 v{t0}, {L_FL}, v{t0}
v_mov_b32 v{t3}, 0
ds_write_b32 v{t0}, v{t3}
v_lshlrev_b32 v{t0}, 3, v{vN}
v_add_u32 v{t0}, {L_MX}, v{t0}
v_mov_b32 v{t2}, 0xff800000
ds_write2_b32 v{t0}, v{t2}, v{t3} offset0:0 offset1:1
s_waitcnt lgkmcnt(0)
L_j0:
s_barrier
L_j1:
""")
if PROF: a(f"v_mov_b32 v{vTSA}, 0")
stamp("start")
a(f"""
s_load_dword s{sEP}, s[{R_WS}:{R_WS+1}], {EPOCH_OFF}
s_load_dwordx2 s[{R_WUV}:{R_WUV+1}], s[0:1], 32
s_load_dwordx2 s[{R_WO}:{R_WO+1}], s[0:1], 40
s_load_dwordx2 s[{R_WG}:{R_WG+1}], s[0:1], 56
s_load_dwordx2 s[{R_WU}:{R_WU+1}], s[0:1], 64
s_load_dwordx2 s[{R_WD}:{R_WD+1}], s[0:1], 72
s_load_dwordx2 s[{R_OUT}:{R_OUT+1}], s[0:1], 80
{"s_load_dwordx2 s[98:99], s[0:1], 88" if DBGT else ""}
{"s_memtime s[96:97]" if DBGT else ""}
v_mov_b32 v{vFL}, {L_FL}
v_mov_b32 v{vONE}, 1
""")
srdw([(R_CKV, 16 << 20), (R_WS, WS_USED), (R_WUV, 4 << 20), (R_WO, 4 << 20),
      (R_WG, 512 * 1376 * 2), (R_WU, 512 * 1376 * 2), (R_WD, 512 * 1376 * 2), (R_OUT, 4096), (R_PF, 86 * 128)])
a(f"""
s_lshr_b32 s{sY}, s2, 3
s_and_b32 s{sT[4]}, s{sY}, 1
s_xor_b32 s{sHGB}, s{sT[4]}, 1
s_lshl_b32 s{sH}, s{sT[4]}, 4
s_lshl1_add_u32 s{sH}, s{sX}, s{sH}
s_and_b32 s{sT[5]}, s{sYP}, 1
s_add_u32 s{sH}, s{sH}, s{sT[5]}
s_bfe_u32 s{sCQ}, s{sY}, 0x20002
s_lshr_b32 s{sMH}, s{sY}, 4
s_lshl4_add_u32 s{sCH}, s{sX}, s{sYP}
s_mov_b32 s{sSELLO}, 0x05040100
s_mov_b32 s{sSELHI}, 0x07060302
s_mov_b32 s{sM4}, 0x000f000f
s_mov_b32 s{sM4+1}, 0x000f000f
s_mov_b32 s{sM8}, 0x00ff00ff
s_mov_b32 s{sM8+1}, 0x00ff00ff
s_mul_i32 s{sPHI}, s{sX}, 11
s_add_u32 s{sPHI}, s{sPHI}, s{sYP}
s_cmp_lt_u32 s{sYP}, 11
s_cselect_b32 s{sISF}, s{sT[4]}, 0
s_cmp_lt_u32 s{sPHI}, 86
s_cselect_b32 s{sISF}, s{sISF}, 0
s_cmp_ge_u32 s{sYP}, 12
s_cselect_b32 s{sISR}, s{sHGB}, 0
s_sub_u32 s{sRHO}, s{sYP}, 12
s_lshl3_add_u32 s{sRHO}, s{sRHO}, s{sX}
s_cmp_ge_u32 s{sW}, 6
s_cbranch_scc1 L_wave67
s_cmp_ge_u32 s{sW}, 4
s_cbranch_scc1 L_wave45
s_setprio 2
s_cmp_eq_u32 s{sHGB}, 0
s_cbranch_scc1 L_freeC
""")

vQPw, vQPr, vQ16w, vQ16r, vQAp = vT[6], vT[7], vT[8], vT[9], vT[10]
a(f"""
s_lshl_b32 s{sT[4]}, s{sW}, 5
s_lshl_b32 s{sT[5]}, s{sJQ}, 7
s_add_u32 s{sT[4]}, s{sT[4]}, s{sT[5]}
s_lshl_b32 s{sT[4]}, s{sT[4]}, 13
s_add_u32 s{sT[4]}, s{sT[4]}, s{sT[1]}
s_add_u32 s{sT[5]}, s{sT[4]}, {16*8192}
v_lshlrev_b32 v{vUK}, 13, v{vN}
v_lshl_add_u32 v{vUK}, v{vG}, 4, v{vUK}
v_and_b32 v{t1}, 3, v{vN}
v_mul_u32_u24 v{t0}, 1040, v{t1}
v_lshl_add_u32 v{t0}, v{vG}, 4, v{t0}
s_lshl_b32 s{sT[6]}, s{sW}, 8
s_add_u32 s{sT[6]}, s{sT[6]}, {L_XN}
v_add_u32 v{t0}, s{sT[6]}, v{t0}
s_lshl_b32 s{sT[6]}, s{sW}, 11
s_add_u32 s{sT[6]}, s{sT[6]}, {L_QP}
v_lshlrev_b32 v{vQPw}, 6, v{vG}
v_lshl_add_u32 v{vQ16r}, v{t1}, 4, v{vQPw}
v_add_u32 v{vQPw}, s{sT[6]}, v{vQ16r}
v_add_u32 v{vQ16r}, {L_Q16}, v{vQ16r}
s_lshl_b32 s{sT[6]}, s{sW}, 9
s_add_u32 s{sT[6]}, s{sT[6]}, {L_QP}
v_lshlrev_b32 v{vQPr}, 2, v{vL}
v_add_u32 v{vQPr}, s{sT[6]}, v{vQPr}
v_lshlrev_b32 v{vQ16w}, 6, v{t1}
v_and_b32 v{t2}, 12, v{vL}
v_lshl_add_u32 v{vQ16w}, v{t2}, 2, v{vQ16w}
v_lshl_add_u32 v{vQ16w}, v{vG}, 8, v{vQ16w}
s_lshl_b32 s{sT[6]}, s{sW}, 2
s_add_u32 s{sT[6]}, s{sT[6]}, {L_Q16}
v_add_u32 v{vQ16w}, s{sT[6]}, v{vQ16w}
v_lshlrev_b32 v{vQAp}, 16, v{t1}
v_lshl_add_u32 v{vQAp}, v{vG}, 4, v{vQAp}
v_bfe_u32 v{t2}, v{vN}, 2, 1
v_lshl_add_u32 v{vQAp}, v{t2}, 6, v{vQAp}
v_cmp_eq_u32 s[{sC2}:{sC2+1}], 1, v{t2}
s_lshl_b32 s{sT[6]}, s{sHA}, 11
s_lshl_b32 s{sT[7]}, s{sJQ}, 9
s_add_u32 s{sT[6]}, s{sT[6]}, s{sT[7]}
s_lshl_b32 s{sT[7]}, s{sW}, 7
s_add_u32 s{sT[6]}, s{sT[6]}, s{sT[7]}
s_add_u32 s{sT[6]}, s{sT[6]}, {QA_OFF}
s_mov_b32 s{sT[7]}, {f32(math.log2(math.e) / math.sqrt(128.0))}
""")
for u in range(4):
    a(f"""
    s_add_u32 s{sT[2]}, s{sJQ}, {u}
    s_and_b32 s{sT[2]}, s{sT[2]}, 3
    s_lshl_b32 s{sT[2]}, s{sT[2]}, 6
    v_add_u32 v{vT[11+u]}, s{sT[2]}, v{t0}
    """)
ILV = opt("ilv", 3)
def spec_xn():
    for u in range(4):
        a(f"ds_read_b128 {v(BX+4*u,4)}, v{vT[11+u]}")
for u in range(1, ILV): wq_kstep(u)
lds_wait(F_XN, 4, spec_xn)
a(f"s_add_u32 s{sEP}, s{sEP}, 1")
pend = [wq_lines(u) for u in range(ILV, 4)] + [uk_lines()]
if ILV == 4: pend = [None] + pend
issued = ILV
for u in range(4):
    a(f"s_waitcnt vmcnt({(issued - u - 1) * 8})")
    ex = pend[u] if u < len(pend) else None
    q_kstep(u, ex)
    if ex:
        issued += 1
        if issued == 5:
            lds_signal(F_WQI)
            stamp("wq issued")
stamp("q partial")
a(f"s_mov_b64 exec, s[{sM4}:{sM4+1}]")
for jj in range(8):
    a(f"ds_write_b128 v{vQPw}, {v(AC+4*jj,4)} offset:{256*jj}")
lds_signal(F_QP)
def spec_qp():
    for k in range(4):
        a(f"ds_read2st64_b32 {v(FR+2*k,2)}, v{vQPr} offset0:{8*k} offset1:{8*k+1}")
lds_wait(F_QP, 4, spec_qp)
stamp("qp done")
a(f"""
v_add_f32 v{FR}, v{FR}, v{FR+2}
v_add_f32 v{FR+1}, v{FR+1}, v{FR+3}
v_add_f32 v{FR+4}, v{FR+4}, v{FR+6}
v_add_f32 v{FR+5}, v{FR+5}, v{FR+7}
v_add_f32 v{FR}, v{FR}, v{FR+4}
v_add_f32 v{FR+1}, v{FR+1}, v{FR+5}
v_cvt_pk_bf16_f32 v{FR}, v{FR}, v{FR+1}
ds_write_b32 v{vQ16w}, v{FR}
""")
lds_signal(F_Q16)
a(f"v_mov_b32 v{AC+9}, s{sEP}")
a(f"v_mov_b32 v{AC+11}, s{sEP}")
def spec_q16():
    a(f"ds_read_b32 v{t3}, v{vFL} offset:{F_CLR}")
    for t in range(4):
        a(f"ds_read_b128 {v(FR+8+4*t,4)}, v{vQ16r} offset:{256*t}")
lds_wait(F_Q16, 4, spec_q16)
stamp("q16 done")
a("s_waitcnt vmcnt(0)")
stamp("uk landed")
for t in range(4):
    for mt in range(2):
        mfma(AC+4*mt, UK+16*mt+4*t, FR+8+4*t, t == 0)
a(f"""
v_readfirstlane_b32 s{sACC}, v{t3}
s_cmp_ge_u32 s{sACC}, 2
s_cbranch_scc1 L_clrok
""")
lds_wait(F_CLR, 2)
a("L_clrok:")
for r in range(4):
    a(f"v_cndmask_b32 v{AC+r}, v{AC+r}, v{AC+4+r}, s[{sC2}:{sC2+1}]")
for r in range(4):
    a(f"v_mul_f32 v{AC+r}, s{sT[7]}, v{AC+r}")
a(f"""
v_cvt_pk_bf16_f32 v{AC+8}, v{AC}, v{AC+1}
v_cvt_pk_bf16_f32 v{AC+10}, v{AC+2}, v{AC+3}
s_mov_b64 exec, s[{sM8}:{sM8+1}]
buffer_store_dwordx4 {v(AC+8,4)}, v{vQAp}, {srd(R_WS)}, s{sT[6]} offen sc1
s_mov_b64 exec, -1
""")
stamp("q_abs published")
a("s_branch L_phaseB")

a("L_freeC:")
if UKGATE:
    a("s_waitcnt vmcnt(0)")
    lds_signal(F_WQI)
lds_wait(F_CLR, 2, sleep=4)
a(f"s_add_u32 s{sEP}, s{sEP}, 1")

a("L_phaseB:")
QF, SA0, SA1, SD, vM = 32, 96, 160, 224, 232
vX0 = vT[4]
vMX, vPw, vPr, vC, vTF, vPV, vO = vT[8], vT[9], vT[10], vT[11], vT[12], vT[13], vT[14]
vSA = vT[15]
a(f"""
v_lshrrev_b32 v{t0}, 3, v{vN}
v_lshlrev_b32 v{t1}, 2, v{t0}
v_and_b32 v{t2}, 7, v{vN}
v_xor_b32 v{t2}, v{t2}, v{t1}
v_lshl_add_u32 v{t2}, v{t2}, 1, v{t0}
v_xor_b32 v{t2}, v{t2}, v{vG}
v_lshlrev_b32 v{t2}, 4, v{t2}
v_lshl_add_u32 v{t2}, v{vN}, 10, v{t2}
s_lshl_b32 s{sT[0]}, s{sW}, 15
v_add_u32 v{vSA}, s{sT[0]}, v{t2}
v_add_u32 v{vX0}, {L_QS}, v{t2}
""")
for tt in range(1, 4):
    a(f"v_xor_b32 v{vSA+tt}, {64*tt}, v{vSA}")
    a(f"v_xor_b32 v{vX0+tt}, {64*tt}, v{vX0}")
a(f"""
s_lshl_b32 s{sT[1]}, s{sW}, 3
v_add_u32 v{vTF}, s{sT[1]}, v{vFL}
v_bfe_u32 v{t0}, v{vL}, 2, 4
v_lshrrev_b32 v{t1}, 3, v{t0}
v_lshlrev_b32 v{t2}, 2, v{t1}
v_and_b32 v{t3}, 7, v{t0}
v_xor_b32 v{t3}, v{t3}, v{t2}
v_lshl_add_u32 v{t3}, v{t3}, 1, v{t1}
v_bfe_u32 v{t1}, v{vL}, 1, 1
v_xor_b32 v{t3}, v{t3}, v{t1}
v_lshlrev_b32 v{t3}, 4, v{t3}
v_and_b32 v{t1}, 1, v{vL}
v_lshl_add_u32 v{t3}, v{t1}, 3, v{t3}
v_lshl_add_u32 v{t3}, v{t0}, 10, v{t3}
s_lshl_b32 s{sT[0]}, s{sW}, 8
v_add_u32 v{vPV}, s{sT[0]}, v{t3}
v_and_b32 v{t0}, 1, v{vG}
v_lshlrev_b32 v{t0}, 5, v{t0}
v_lshrrev_b32 v{t1}, 1, v{vG}
v_lshl_add_u32 v{t0}, v{t1}, 4, v{t0}
v_and_b32 v{t1}, 7, v{vN}
v_lshl_add_u32 v{vO}, v{t1}, 17, v{t0}
v_lshrrev_b32 v{t1}, 3, v{vN}
v_lshl_add_u32 v{vO}, v{t1}, 6, v{vO}
s_lshl_b32 s{sO}, s{sHGB}, 21
s_lshl_b32 s{sT[4]}, s{sCH}, 8
s_add_u32 s{sO}, s{sO}, s{sT[4]}
s_lshl_b32 s{sT[4]}, s{sW}, 15
s_add_u32 s{sO}, s{sO}, s{sT[4]}
s_add_u32 s{sO}, s{sO}, {O_OFF}
s_add_u32 s{sT[3]}, s{sO}, {8 << 17}
v_lshlrev_b32 v{vMX}, 3, v{vN}
v_add_u32 v{vMX}, {L_MX}, v{vMX}
s_lshl_b32 s{sT[0]}, s{sW}, 10
s_add_u32 s{sT[0]}, s{sT[0]}, {L_PX}
v_add_u32 v{vPw}, s{sT[0]}, v{vL16}
v_add_u32 v{vPr}, {L_PX}, v{vL16}
""")
PAD = list(range(240, 256))
for mt in range(8):
    a(f"v_xor_b32 v{PAD[mt]}, {32*mt}, v{vPV}")
    a(f"v_add_u32 v{PAD[8+mt]}, 0x10000, v{PAD[mt]}")
def sa_read(k, t):
    a(f"ds_read_b128 {v((SA1 if k else SA0)+4*t,4)}, v{vSA+(t&3)} offset:{16384*k+(t>>2)*256}")
def qf_read(t):
    a(f"ds_read_b128 {v(QF+4*t,4)}, v{vX0+(t&3)} offset:{(t>>2)*256}")
GQ = 64
vQa, vQb, vQw, vEP = 236, 237, 238, 239
a(f"""
v_lshlrev_b32 v{vQa}, 4, v0
v_add_u32 v{vQb}, 16384, v{vQa}
s_lshr_b32 s{sT[6]}, s{sCH}, 5
s_lshl_b32 s{sT[6]}, s{sT[6]}, 1
s_add_u32 s{sT[6]}, s{sT[6]}, s{sHGB}
s_lshl_b32 s{sT[6]}, s{sT[6]}, 15
s_add_u32 s{sT[6]}, s{sT[6]}, {QA_OFF}
s_add_u32 s{sT[7]}, s{sT[6]}, 4096
s_add_u32 s{sT[8]}, s{sT[6]}, 8192
s_add_u32 s{sT[9]}, s{sT[6]}, 12288
v_and_b32 v{vQw}, 127, v0
v_lshlrev_b32 v{vQw}, 3, v{vQw}
s_lshr_b32 s{sT[10]}, s{sW}, 1
s_lshl_b32 s{sT[5]}, s{sT[10]}, 5
v_xor_b32 v{vQw}, s{sT[5]}, v{vQw}
s_lshl_b32 s{sT[10]}, s{sT[10]}, 10
s_add_u32 s{sT[10]}, s{sT[10]}, {L_QS}
v_add_u32 v{vQw}, s{sT[10]}, v{vQw}
v_mov_b32 v{vEP}, s{sEP}
s_mov_b32 s{sT[2]}, 0
""")
def qa_loads():
    for i in range(8):
        a(f"buffer_load_dwordx4 {v(GQ+4*i,4)}, v{vQb if i >= 4 else vQa}, {srd(R_WS)}, s{sT[6+(i&3)]} offen sc1")
def try_tile1(tag):
    a(f"""
    ds_read_b32 v{t0}, v{vTF} offset:{F_TILE+4}
    s_waitcnt lgkmcnt(0)
    v_readfirstlane_b32 s{sACC+1}, v{t0}
    s_cmp_le_u32 s{sACC+1}, s{sT[2]}
    s_cbranch_scc1 L_nt1{tag}
    s_mov_b32 s{sT[2]}, 1
    """)
    for t in range(16): sa_read(1, t)
    a(f"L_nt1{tag}:")
sPM = sT[10]
def qa_load(i):
    a(f"buffer_load_dwordx4 {v(GQ+4*i,4)}, v{vQb if i >= 4 else vQa}, {srd(R_WS)}, s{sT[6+(i&3)]} offen sc1")
def qa_check(i):
    a(f"v_xor_b32 v{t2}, v{GQ+4*i+1}, v{vEP}")
    if i: a(f"v_xor_b32 v{t3}, {(fsw(2*i) << 4) | (i << 11)}, v{vQw}")
    a(f"v_bitop3_b32 v{t2}, v{t2}, v{GQ+4*i+3}, v{vEP} bitop3:0xf6")
    a(f"ds_write2_b32 v{t3 if i else vQw}, v{GQ+4*i}, v{GQ+4*i+2} offset0:0 offset1:1")
    a(f"v_cmp_ne_u32 vcc, 0, v{t2}")
    a("s_cmp_lg_u64 vcc, 0")
QORD = opt("qord", 1)
if QORD == 0:
    lds_wait(F_TILE, 1, base=vTF, sleep=1)
    for t in range(16): sa_read(0, t)
else:
    a(f"""
    s_cmp_eq_u32 s{sHGB}, 1
    s_cbranch_scc1 L_not0
    """)
    lds_wait(F_TILE, 1, base=vTF, sleep=1)
    for t in range(16): sa_read(0, t)
    a("L_not0:")
if opt("qack", 1): a("s_waitcnt vmcnt(0)")
lds_wait(F_GO, 4 if opt("rcoop", 0) == 2 else 2, sleep=1)
stamp("QA trigger")
for i in range(8): qa_load(i)
lds_signal(F_QI)
if QORD:
    a(f"""
    s_cmp_eq_u32 s{sHGB}, 0
    s_cbranch_scc1 L_t0d
    """)
    lds_wait(F_TILE, 1, base=vTF)
    for t in range(16): sa_read(0, t)
    a("L_t0d:")
lds_wait(F_TILE + 4, 1, base=vTF)
for t in range(16): sa_read(1, t)
a(f"s_mov_b32 s{sPM}, 0")
for i in range(8):
    a(f"s_waitcnt vmcnt({7-i})")
    qa_check(i)
    a(f"s_addc_u32 s{sPM}, s{sPM}, s{sPM}")
a(f"""
s_mov_b32 s{sCNT}, 0
s_cmp_eq_u32 s{sPM}, 0
s_cbranch_scc1 L_qdone
L_qretry:
s_sleep {QSLEEP}
""")
for i in range(8):
    sk = a.newlabel("Lq")
    a(f"s_bitcmp1_b32 s{sPM}, {7-i}")
    a(f"s_cbranch_scc0 {sk}")
    qa_load(i)
    a(f"{sk}:")
a("s_waitcnt vmcnt(0)")
for i in range(8):
    sk = a.newlabel("Lq")
    a(f"s_bitcmp1_b32 s{sPM}, {7-i}")
    a(f"s_cbranch_scc0 {sk}")
    qa_check(i)
    a(f"s_cbranch_scc1 {sk}")
    a(f"s_bitset0_b32 s{sPM}, {7-i}")
    a(f"{sk}:")
a(f"""
s_add_u32 s{sCNT}, s{sCNT}, 1
s_cmp_eq_u32 s{sPM}, 0
s_cbranch_scc1 L_qdone
s_cmp_lt_u32 s{sCNT}, {POLL_MAX}
s_cbranch_scc1 L_qretry
L_qdone:
""")
lds_signal(F_QS)
cstamp("qa retries")
stamp("q_abs gathered")
def spec_qf():
    for t in range(4): qf_read(t)
lds_wait(F_QS, 4, spec_qf)
stamp("Q ready")
for t in range(4, 16): qf_read(t)
PB, OD, OS, ON = 32, 48, 80, 224
def pva(mt, u):
    k = (mt >> 2) * 16 + u * 4 + (mt & 3)
    return (SA1 if k & 1 else SA0) + 4 * (k >> 1)
def pv_read_k(k):
    mt, u = (k >> 4) * 4 + (k & 3), (k >> 2) & 3
    for vv in range(2):
        tile = 2 * u + vv
        ad = PAD[mt] if tile < 4 else PAD[8 + mt]
        a(f"ds_read_b64_tr_b16 {v(pva(mt, u)+2*vv,2)}, v{ad} offset:{(tile&3)*16384}")
LAG = opt("lag", 2)
ntr = 0
for t in range(16):
    if t >= 4: a(f"s_waitcnt lgkmcnt({min(15, 15 - t + ntr)})")
    mfma(SD, SA0+4*t, QF+4*t, t == 0)
    if t >= LAG: pv_read_k(2 * (t - LAG)); ntr += 2
    mfma(SD+4, SA1+4*t, QF+4*t, t == 0)
    if t >= LAG: pv_read_k(2 * (t - LAG) + 1); ntr += 2
rem = list(range(2 * (16 - LAG), 32))
for k in rem[:2]: pv_read_k(k)
a(f"""
v_max3_f32 v{t1}, v{SD}, v{SD+1}, v{SD+2}
v_max3_f32 v{t2}, v{SD+3}, v{SD+4}, v{SD+5}
v_max3_f32 v{t1}, v{t1}, v{SD+6}, v{SD+7}
v_max_f32 v{t1}, v{t1}, v{t2}
v_ceil_f32 v{vC}, v{t1}
ds_max_f32 v{vMX}, v{vC}
ds_add_u32 v{vMX}, v{vONE} offset:4
ds_read_b64 {v(vM,2)}, v{vMX}
""")
for k in rem[2:]: pv_read_k(k)
for r in range(8): a(f"v_sub_f32 v{SD+r}, v{SD+r}, v{vC}")
for r in range(8): a(f"v_exp_f32 v{SD+r}, v{SD+r}")
lp, dn, ck = a.newlabel("Lm"), a.newlabel("Lmd"), a.newlabel("Lmc")
a(f"s_mov_b32 s{sCNT}, 0")
a(f"s_waitcnt lgkmcnt({min(15, 2 * len(rem[2:]))})")
a(f"s_branch {ck}")
a.label(lp)
a(f"ds_read_b64 {v(vM,2)}, v{vMX}")
a("s_waitcnt lgkmcnt(0)")
a.label(ck)
a(f"""
v_cmp_ne_u32 vcc, 16, v{vM+1}
v_sub_f32 v{t1}, v{vC}, v{vM}
s_cmp_eq_u64 vcc, 0
s_cbranch_scc1 {dn}
s_add_u32 s{sCNT}, s{sCNT}, 1
s_cmp_lt_u32 s{sCNT}, {LSPIN_MAX}
s_cbranch_scc1 {lp}
""")
a.label(dn)
stamp("S done")
a(f"v_exp_f32 v{t1}, v{t1}")
for r in range(8): a(f"v_mul_f32 v{SD+r}, v{SD+r}, v{t1}")
for k in range(4): a(f"v_cvt_pk_bf16_f32 v{PB+k}, v{SD+2*k}, v{SD+2*k+1}")
a(f"ds_write_b128 v{vPw}, {v(PB,4)}")
lds_signal(F_P)
def spec_p():
    for u in range(4):
        a(f"ds_read_b128 {v(PB+4*u,4)}, v{vPr} offset:{1024*u}")
    for i in range(4): a(f"v_mov_b32 v{ON+i}, 0x3f803f80")
lds_wait(F_P, 4, spec_p)
lds_signal(F_BD)
stamp("P done")
for u in range(4):
    for mt in range(4):
        mfma(OD+4*mt, pva(mt, u), PB+4*u, u == 0)
CK = vM + 2
def epilogue(pp):
    L = []
    for p in (2 * pp, 2 * pp + 1):
        for k in range(2):
            mt = 2 * p + k
            L.append(f"v_cvt_pk_bf16_f32 v{OS+2*mt}, v{OD+4*mt}, v{OD+4*mt+1}")
            L.append(f"v_cvt_pk_bf16_f32 v{OS+2*mt+1}, v{OD+4*mt+2}, v{OD+4*mt+3}")
    for p in (2 * pp, 2 * pp + 1):
        L.append(f"v_permlane16_swap_b32 v{OS+4*p}, v{OS+4*p+2}")
        L.append(f"v_permlane16_swap_b32 v{OS+4*p+1}, v{OS+4*p+3}")
    X, Y, T = OS + 8 * pp, OS + 8 * pp + 4, OD + 16 * pp
    for d in range(4): L.append(f"v_mov_b32 v{T+d}, v{X+d}")
    for d in range(4): L.append(f"v_mov_b32 v{T+4+d}, v{Y+d}")
    for d in range(4): L.append(f"v_mov_b32_dpp v{T+d}, v{Y+d} row_ror:8 row_mask:0xf bank_mask:0xc")
    L.append(f"buffer_store_dwordx4 {v(T,4)}, v{vO}, {srd(R_WS)}, s{sO} offen offset:{128*pp} sc1")
    for d in range(4): L.append(f"v_mov_b32_dpp v{T+4+d}, v{X+d} row_ror:8 row_mask:0xf bank_mask:0x3")
    L.append(f"buffer_store_dwordx4 {v(T+4,4)}, v{vO}, {srd(R_WS)}, s{sT[3]} offen offset:{128*pp} sc1")
    for k in range(0, 8, 2):
        if pp == 0 and k == 0: L.append(f"v_add_u32 v{CK}, v{X}, v{X+1}")
        else: L.append(f"v_add3_u32 v{CK}, v{CK}, v{X+k}, v{X+k+1}")
    return L
E0 = epilogue(0)
idx = 0
for u in range(4):
    for mt in range(4, 8):
        mfma(OD+4*mt, pva(mt, u), PB+4*u, u == 0)
        if u * 4 + (mt - 4) >= 2:
            for l in E0[idx:idx+2]: a(l)
            idx += 2
for u in range(4):
    mfma(ON+4, ON, PB+4*u, u == 0)
    for l in E0[idx:idx+2]: a(l)
    idx += 2
for l in E0[idx:]: a(l)
stamp("PV done")
for l in epilogue(1): a(l)
a(f"""
s_lshl_b32 s{sT[4]}, s{sHGB}, 7
s_add_u32 s{sT[4]}, s{sT[4]}, s{sCH}
s_lshl_b32 s{sT[4]}, s{sT[4]}, 2
s_add_u32 s{sT[4]}, s{sT[4]}, s{sW}
s_lshl_b32 s{sT[4]}, s{sT[4]}, 8
s_add_u32 s{sT[4]}, s{sT[4]}, {ML_OFF}
v_mov_b32 v{t0}, v{CK}
v_mov_b32 v{vM+1}, v{ON+4}
v_permlane32_swap_b32 v{CK}, v{t0}
v_add_u32 v{CK}, v{CK}, v{t0}
v_mov_b32 v{t0}, v{CK}
v_xor_b32 v{t1}, s{sEP}, v{vM}
v_permlane16_swap_b32 v{CK}, v{t0}
v_add3_u32 v{CK}, v{CK}, v{t0}, s{sEP}
v_xor_b32 v{vM+3}, v{t1}, v{vM+1}
s_mov_b64 exec, 0xffff
buffer_store_dwordx4 {v(vM,4)}, v{vL16}, {srd(R_WS)}, s{sT[4]} offen sc1
s_mov_b64 exec, -1
""")
stamp("O published")

HD, HM, MK, AW, CD = 32, 64, 72, 76, 84
mM, wA, wB, wb, ckS, ckE, vCLw, vHd2 = vT[4], vT[5], vT[6], vT[7], vT[8], vT[9], vT[10], vT[11]
a(f"""
v_lshlrev_b32 v{t0}, 8, v{vG}
v_lshl_add_u32 v{t0}, v{vN}, 4, v{t0}
v_add_u32 v{vHd2}, 4096, v{t0}
s_lshl_b32 s{sT[0]}, s{sH}, 2
s_add_u32 s{sT[0]}, s{sT[0]}, s{sCQ}
s_lshl_b32 s{sT[0]}, s{sT[0]}, 15
s_lshl_b32 s{sT[2]}, s{sW}, 13
s_add_u32 s{sT[0]}, s{sT[0]}, s{sT[2]}
s_add_u32 s{sT[0]}, s{sT[0]}, {O_OFF}
v_and_b32 v{t1}, 7, v{vN}
v_lshrrev_b32 v{t2}, 3, v{vN}
v_xor_b32 v{t2}, v{t2}, v{vG}
v_lshl_add_u32 v{t1}, v{t1}, 2, v{t2}
v_lshlrev_b32 v{t1}, 10, v{t1}
v_xor_b32 v{t2}, 2048, v{t1}
s_lshr_b32 s{sT[4]}, s{sH}, 4
s_lshl_b32 s{sT[4]}, s{sT[4]}, 2
s_add_u32 s{sT[4]}, s{sT[4]}, s{sW}
s_lshl_b32 s{sT[4]}, s{sT[4]}, 15
s_and_b32 s{sT[5]}, s{sH}, 15
s_lshl_b32 s{sT[5]}, s{sT[5]}, 4
s_add_u32 s{sT[4]}, s{sT[4]}, s{sT[5]}
s_lshl_b32 s{sT[5]}, s{sCQ}, 8
s_add_u32 s{sT[4]}, s{sT[4]}, s{sT[5]}
s_add_u32 s{sT[4]}, s{sT[4]}, {ML_OFF}
v_and_b32 v{t3}, 1, v{vN}
v_lshlrev_b32 v{t3}, 4, v{t3}
v_mov_b32 v{mM}, 0xffff
v_lshlrev_b32 v{t3}, v{t3}, v{mM}
v_lshrrev_b32 v{mM}, 1, v{vN}
""")
for d in range(4):
    a(f"v_cmp_eq_u32 vcc, {d}, v{mM}")
    a(f"v_cndmask_b32 v{MK+d}, 0, v{t3}, vcc")
a(f"""
s_mul_i32 s{sT[5]}, s{sW}, 272
s_add_u32 s{sT[5]}, s{sT[5]}, {L_CL}
v_lshlrev_b32 v{vCLw}, 4, v{vN}
v_lshl_add_u32 v{vCLw}, v{vG}, 3, v{vCLw}
v_add_u32 v{vCLw}, s{sT[5]}, v{vCLw}
s_mov_b32 s{sT[6]}, 0x03020302
""")
if OACK: a("s_waitcnt vmcnt(0)")
stamp("O acked")
a(f"s_mov_b32 s{sCNT}, 0")
a("L_pollm:")
a(f"""
buffer_load_dwordx4 {v(HM,4)}, v{t1}, {srd(R_WS)}, s{sT[4]} offen sc1
buffer_load_dwordx4 {v(HM+4,4)}, v{t2}, {srd(R_WS)}, s{sT[4]} offen sc1
s_waitcnt vmcnt(0)
v_bitop3_b32 v{ckE}, v{HM}, v{HM+1}, v{HM+3} bitop3:0x96
v_bitop3_b32 v{t3}, v{HM+4}, v{HM+5}, v{HM+7} bitop3:0x96
v_cmp_ne_u32 vcc, s{sEP}, v{ckE}
v_cmp_ne_u32 s[{sACC}:{sACC+1}], s{sEP}, v{t3}
s_or_b64 vcc, s[{sACC}:{sACC+1}], vcc
""")
poll_tail("L_pollm", MLSLEEP)
cstamp("ml retries")
stamp("ML ok")
for t in range(8):
    a(f"buffer_load_dwordx4 {v(HD+4*t,4)}, v{vHd2 if t >= 4 else t0}, {srd(R_WS)}, s{sT[0]} offen offset:{1024*(t&3)} sc1")
a(f"""
v_max_f32 v{mM}, v{HM}, v{HM+4}
v_max_f32_dpp v{mM}, v{mM}, v{mM} row_ror:1 row_mask:0xf bank_mask:0xf
v_max_f32_dpp v{mM}, v{mM}, v{mM} row_ror:2 row_mask:0xf bank_mask:0xf
v_sub_u32 v{ckS}, s{sEP}, v{HM+2}
v_max_f32_dpp v{mM}, v{mM}, v{mM} row_ror:4 row_mask:0xf bank_mask:0xf
v_cndmask_b32 v{ckS}, 0, v{ckS}, s[{sM8}:{sM8+1}]
v_max_f32_dpp v{mM}, v{mM}, v{mM} row_ror:8 row_mask:0xf bank_mask:0xf
v_sub_f32 v{wA}, v{HM}, v{mM}
v_sub_f32 v{wB}, v{HM+4}, v{mM}
v_exp_f32 v{wA}, v{wA}
v_exp_f32 v{wB}, v{wB}
v_perm_b32 v{wb}, v{wA}, v{wA}, s{sT[6]}
v_mul_f32 v{wA}, v{wA}, v{HM+1}
v_fmac_f32 v{wA}, v{wB}, v{HM+5}
""")
sfts = [1, 2, 4, 8]
for t in range(8):
    aw = AW + 4 * (t & 1)
    for d in range(4):
        a(f"v_and_b32_dpp v{aw+d}, v{wb}, v{MK+d} row_newbcast:{t} row_mask:0xf bank_mask:0xf")
    if t < 4:
        a(f"v_add_f32_dpp v{wA}, v{wA}, v{wA} row_ror:{sfts[t]} row_mask:0xf bank_mask:0xf")
    if t == 4:
        a(f"v_rcp_f32 v{wA}, v{wA}")
    a(f"s_waitcnt vmcnt({7-t})")
    a(f"v_add3_u32 v{ckS}, v{ckS}, v{HD+4*t}, v{HD+4*t+1}")
    mfma(CD, aw, HD+4*t, t == 0)
    a(f"v_add3_u32 v{ckS}, v{ckS}, v{HD+4*t+2}, v{HD+4*t+3}")
for sft in sfts:
    a(f"v_add_u32_dpp v{ckS}, v{ckS}, v{ckS} row_ror:{sft} row_mask:0xf bank_mask:0xf")
a(f"v_cmp_ne_u32 vcc, 0, v{ckS}")
for r in range(4): a(f"v_mul_f32 v{CD+r}, v{CD+r}, v{wA}")
a(f"v_cvt_pk_bf16_f32 v{CD+4}, v{CD}, v{CD+1}")
a(f"v_cvt_pk_bf16_f32 v{CD+5}, v{CD+2}, v{CD+3}")
poll_tail("L_pollm")
cstamp("o retries")
a(f"""
s_mov_b32 exec_hi, 0
ds_write_b64 v{vCLw}, {v(CD+4,2)}
s_mov_b64 exec, 1
ds_add_u32 v{vFL}, v{vONE} offset:{F_CL}
s_mov_b64 exec, -1
s_setprio 0
""")
stamp("combined")
a(f"""
s_cmp_eq_u32 s{sISF}, 1
s_cbranch_scc1 L_ffn
s_cmp_eq_u32 s{sISR}, 0
s_cbranch_scc1 L_fin
""")

SEL, RD, RA, RS, vH = 96, 100, 116, 120, 128
vMo, vXv = vT[4], vT[5]
for d in range(4): a(f"v_and_b32 v{SEL+d}, 0x3f803f80, v{MK+d}")
a(f"""
v_and_b32 v{t0}, 0x23, v{vL}
v_bfe_u32 v{t1}, v{vL}, 2, 1
v_lshl_add_u32 v{t0}, v{t1}, 4, v{t0}
v_bfe_u32 v{t1}, v{vL}, 3, 2
v_lshl_add_u32 v{t0}, v{t1}, 2, v{t0}
v_lshlrev_b32 v{vMo}, 1, v{t0}
s_lshl_b32 s{sT[0]}, s{sRHO}, 7
buffer_load_ushort v{vXv}, v{vMo}, {srd(R_X)}, s{sT[0]} offen
v_lshlrev_b32 v{t0}, 4, v0
s_lshl_b32 s{sT[1]}, s{sRHO}, 14
s_add_u32 s{sT[1]}, s{sT[1]}, {PA_OFF}
s_add_u32 s{sT[2]}, s{sT[1]}, 4096
s_add_u32 s{sT[3]}, s{sT[1]}, 8192
s_add_u32 s{sT[4]}, s{sT[1]}, 12288
s_lshl_b32 s{sT[5]}, s{sW}, 8
s_add_u32 s{sT[5]}, s{sT[5]}, {L_RED}
v_lshlrev_b32 v{t1}, 5, v{vN}
v_lshl_add_u32 v{t1}, v{vG}, 4, v{t1}
v_add_u32 v{t1}, s{sT[5]}, v{t1}
v_lshlrev_b32 v{t2}, 2, v{vL}
v_add_u32 v{t2}, {L_RED}, v{t2}
s_mul_i32 s{sT[5]}, s{sRHO}, 12288
s_add_u32 s{sT[5]}, s{sT[5]}, {PF_OFF}
s_add_u32 s{R_PF}, s{R_WS}, s{sT[5]}
s_addc_u32 s{R_PF+1}, s{R_WS+1}, 0
s_mov_b32 s{sT[6]}, 4096
s_mov_b32 s{sT[7]}, 8192
s_waitcnt vmcnt(0)
s_barrier
""")
def reduce_inbox(name, rs, sos):
    a(f"s_mov_b32 s{sCNT}, 0")
    a.label(name)
    for i, so in enumerate(sos):
        a(f"buffer_load_dwordx4 {v(RD+4*i,4)}, v{t0}, {srd(rs)}, {so} offen sc1")
    n = len(sos)
    for i in range(n):
        a(f"s_waitcnt vmcnt({n-1-i})")
        if i == 0: a(f"v_max3_u32 v{t3}, v{RD}, v{RD+1}, v{RD+2}")
        else: a(f"v_max3_u32 v{t3}, v{t3}, v{RD+4*i}, v{RD+4*i+1}")
        mfma(RA, SEL, RD+4*i, i == 0)
        if i == 0: a(f"v_max_u32 v{t3}, v{t3}, v{RD+3}")
        else: a(f"v_max3_u32 v{t3}, v{t3}, v{RD+4*i+2}, v{RD+4*i+3}")
    a(f"v_cmp_eq_u32 vcc, -1, v{t3}")
    poll_tail(name)
    for r in range(4):
        a(f"v_add_f32_dpp v{RA+r}, v{RA+r}, v{RA+r} row_ror:8 row_mask:0xf bank_mask:0xf")
    a(f"""
    s_mov_b64 exec, 0x00ff00ff
    ds_write_b128 v{t1}, {v(RA,4)}
    s_mov_b64 exec, -1
    s_waitcnt lgkmcnt(0)
    s_barrier
    """)
def final_sum():
    for k in range(2):
        a(f"ds_read2st64_b32 {v(RS+2*k,2)}, v{t2} offset0:{2*k} offset1:{2*k+1}")
    a("s_waitcnt lgkmcnt(0)")
    a(f"v_add_f32 v{RS}, v{RS}, v{RS+1}")
    a(f"v_add_f32 v{RS+2}, v{RS+2}, v{RS+3}")
    a(f"v_add_f32 v{RS}, v{RS}, v{RS+2}")
def pack_store(val, rs, so, pol):
    P = RS + 4
    a(f"v_mov_b32_dpp v{RS+2}, v{val} quad_perm:[1,1,3,3] row_mask:0xf bank_mask:0xf")
    a(f"v_cvt_pk_bf16_f32 v{P}, v{val}, v{RS+2}")
    a(f"v_mov_b32_dpp v{P+1}, v{P} quad_perm:[2,2,2,2] row_mask:0xf bank_mask:0xf")
    a(f"v_mov_b32_dpp v{P+2}, v{P} row_shl:8 row_mask:0xf bank_mask:0xf")
    a(f"v_mov_b32_dpp v{P+3}, v{P+1} row_shl:8 row_mask:0xf bank_mask:0xf")
    a(f"""
    s_mov_b32 exec_lo, 0x00110011
    s_mov_b32 exec_hi, 0x00110011
    buffer_store_dwordx4 {v(P,4)}, v{vMo}, {srd(rs)}, {so} offen{pol}
    s_mov_b64 exec, -1
    """)
reduce_inbox("L_pollr1", R_WS, [f"s{sT[1+i]}" for i in range(4)])
stamp("R1 gathered")
a(f"""
s_cmp_lg_u32 s{sW}, 0
s_cbranch_scc1 L_r1skip
""")
final_sum()
rne_bf16(RS, RS)
a(f"v_lshlrev_b32 v{vXv}, 16, v{vXv}")
a(f"v_add_f32 v{vH}, v{RS}, v{vXv}")
a(f"s_add_u32 s{sT[5]}, s{sT[0]}, {HG_OFF}")
pack_store(vH, R_WS, f"s{sT[5]}", " sc1")
rne_bf16(vH, vH)
a("L_r1skip:")
stamp("h published")
a("s_barrier")
reduce_inbox("L_pollr2", R_PF, ["0", f"s{sT[6]}", f"s{sT[7]}"])
stamp("R2 gathered")
a(f"""
s_cmp_lg_u32 s{sW}, 0
s_cbranch_scc1 L_fin
""")
final_sum()
rne_bf16(RS, RS)
a(f"v_add_f32 v{vH}, v{RS}, v{vH}")
pack_store(vH, R_OUT, f"s{sT[0]}", "")
a(f"""
s_cmp_lg_u32 s{sRHO}, 0
s_cbranch_scc1 L_fin
v_mov_b32 v{t0}, {EPOCH_OFF}
v_mov_b32 v{t1}, s{sEP}
s_mov_b64 exec, 1
buffer_store_dword v{t1}, v{t0}, {srd(R_WS)}, 0 offen sc1
""")
if DBGT and PROBE and not opt('plocal', 1):
    a(f"""
    v_mov_b32 v{vT[19]}, 16
    global_load_dword v{vT[20]}, v{vT[19]}, s[98:99] sc1
    s_waitcnt vmcnt(0)
    v_readfirstlane_b32 s94, v{vT[20]}
    """)
if DBGT and PROBE and opt('plocal', 1):
    a(f"""
    v_mov_b32 v{vT[19]}, {L_FL + 128}
    ds_read_b32 v{vT[20]}, v{vT[19]}
    s_waitcnt lgkmcnt(0)
    v_readfirstlane_b32 s94, v{vT[20]}
    """)
a(f"s_mov_b32 s93, {opt('padto', 0)}")
if opt("xcctest", 0):
    a(f"""
    v_mov_b32 v{vT[19]}, 20
    global_load_dword v{vT[20]}, v{vT[19]}, s[98:99] sc1
    s_waitcnt vmcnt(0)
    v_readfirstlane_b32 s{sT[1]}, v{vT[20]}
    s_bcnt1_i32_b32 s{sT[1]}, s{sT[1]}
    s_mul_i32 s{sT[1]}, s{sT[1]}, 1000
    s_add_u32 s93, s93, s{sT[1]}
    """)
if DBGT and opt("padto", 0):
    a(f"""
    L_padspin:
    s_memrealtime s[{sTS}:{sTS+1}]
    s_waitcnt lgkmcnt(0)
    s_sub_u32 s{sTS}, s{sTS}, s94
    s_cmp_lt_u32 s{sTS}, s93
    s_cbranch_scc1 L_padspin
    """)
if DBGT:
    a(f"""
    s_memrealtime s[{sTS}:{sTS+1}]
    s_memtime s[{sC2}:{sC2+1}]
    s_waitcnt lgkmcnt(0)
    s_sub_u32 s{sTS}, s{sTS}, s94
    s_sub_u32 s{sC2}, s{sC2}, s96
    v_mov_b32 v{t2}, s{sTS}
    v_mov_b32 v{t3}, s{sC2}
    v_mov_b32 v{t0}, 0
    global_store_dwordx2 v{t0}, {v(t2,2)}, s[98:99]
    """)
a("""
s_mov_b64 exec, -1
s_branch L_fin
""")

a("L_ffn:")
FGU, FD, HB, GD, FXR, DD, DP, CSA = 96, 128, 144, 160, 172, 188, 220, 188
lds_wait(F_BD, 4)
if PFWHEN == 1:
    a("s_barrier")
a(f"""
v_lshrrev_b32 v{t0}, 1, v{vL}
v_and_b32 v{t1}, 0x13, v{t0}
v_bfe_u32 v{t2}, v{t0}, 2, 1
v_lshl_add_u32 v{t1}, v{t2}, 3, v{t1}
v_bfe_u32 v{t2}, v{t0}, 3, 1
v_lshl_add_u32 v{t1}, v{t2}, 2, v{t1}
v_mul_u32_u24 v{t1}, 2752, v{t1}
v_and_b32 v{t2}, 1, v{vL}
v_lshl_add_u32 v{t1}, v{t2}, 4, v{t1}
s_mul_i32 s{sT[0]}, s{sW}, {128*2752}
s_lshl_b32 s{sT[1]}, s{sPHI}, 5
s_add_u32 s{sT[0]}, s{sT[0]}, s{sT[1]}
s_lshl_b32 s{sT[2]}, s{sW}, 12
""")
for i in range(4):
    a(f"s_add_u32 m0, s{sT[2]}, {L_G + 1024*i}")
    if i: a(f"s_add_u32 s{sT[0]}, s{sT[0]}, {32*2752}")
    a(f"buffer_load_dwordx4 v{t1}, {srd(R_WG)}, s{sT[0]} offen lds")
    a(f"s_add_u32 m0, s{sT[2]}, {L_U + 1024*i}")
    a(f"buffer_load_dwordx4 v{t1}, {srd(R_WU)}, s{sT[0]} offen lds")
a(f"""
s_and_b32 s{sT[0]}, s{sW}, 1
s_lshl_b32 s{sT[0]}, s{sT[0]}, 7
v_xor_b32 v{t0}, s{sT[0]}, v{vL16}
s_lshl_b32 s{sT[0]}, s{sPHI}, 14
s_add_u32 s{sT[0]}, s{sT[0]}, s{sT[2]}
s_add_u32 m0, s{sT[2]}, {L_WD}
""")
for i in range(4):
    if i: a(f"v_xor_b32 v{t2}, {32*i}, v{t0}")
    a(f"buffer_load_dwordx4 v{t2 if i else t0}, {srd(R_WD)}, s{sT[0]} offen offset:{1024*i} lds")
vFXw, vFXr, vSq, vSm, vCs, csg, csu, vPF, vHl = vT[4], vT[5], vT[6], vT[7], vT[8], vT[9], vT[10], vT[11], vT[12]
a(f"""
v_bfe_u32 v{t0}, v{vL}, 2, 3
v_lshrrev_b32 v{t1}, 1, v{vG}
v_lshl_add_u32 v{t0}, v{t1}, 4, v{t0}
v_and_b32 v{t2}, 3, v{vL}
v_lshlrev_b32 v{t2}, 3, v{t2}
v_lshl_add_u32 v{t3}, v{t0}, 5, v{t2}
s_add_u32 s{sT[0]}, s{sT[2]}, {L_G}
v_add_u32 v{t3}, s{sT[0]}, v{t3}
v_bfe_u32 v{t0}, v{vL}, 2, 4
v_and_b32 v{t1}, 7, v{t0}
v_lshl_add_u32 v{t1}, v{t1}, 5, v{t2}
v_lshl_add_u32 v{t1}, v{t0}, 10, v{t1}
s_lshl_b32 s{sT[0]}, s{sW}, 8
s_add_u32 s{sT[0]}, s{sT[0]}, {L_WD}
v_add_u32 v{t1}, s{sT[0]}, v{t1}
v_lshlrev_b32 v{vHl}, 10, v{vN}
v_lshl_add_u32 v{vHl}, v{vG}, 4, v{vHl}
s_lshl_b32 s{sT[1]}, s{sW}, 8
s_add_u32 s{sT[1]}, s{sT[1]}, {HG_OFF}
s_mul_i32 s{sT[2]}, s{sW}, 640
s_add_u32 s{sT[2]}, s{sT[2]}, {L_FX}
v_lshlrev_b32 v{vFXw}, 6, v{vG}
v_lshl_add_u32 v{vFXw}, v{vN}, 4, v{vFXw}
v_add_u32 v{vFXw}, s{sT[2]}, v{vFXw}
v_and_b32 v{t2}, 3, v{vN}
v_lshlrev_b32 v{vFXr}, 4, v{t2}
v_lshl_add_u32 v{vFXr}, v{vG}, 6, v{vFXr}
v_lshrrev_b32 v{t0}, 2, v{vN}
v_lshl_add_u32 v{vFXr}, v{t0}, 2, v{vFXr}
v_add_u32 v{vFXr}, {L_FX}, v{vFXr}
v_mul_u32_u24 v{vSq}, 20, v{t2}
v_add_u32 v{vSq}, {L_FX + 512}, v{vSq}
v_lshlrev_b32 v{vSm}, 4, v{t2}
v_add_u32 v{vSm}, {L_FX + 576}, v{vSm}
v_lshlrev_b32 v{vCs}, 4, v{vG}
v_lshl_add_u32 v{vCs}, v{t0}, 2, v{vCs}
v_add_u32 v{vCs}, {L_CS}, v{vCs}
s_mov_b32 s{sT[4]}, 98304
v_mul_lo_u32 v{vPF}, v{vN}, s{sT[4]}
v_lshl_add_u32 v{vPF}, v{vG}, 4, v{vPF}
s_mul_i32 s{sT[4]}, s{sW}, 24576
s_lshl_b32 s{sT[5]}, s{sPHI}, 7
s_add_u32 s{sT[4]}, s{sT[4]}, s{sT[5]}
s_add_u32 s{sT[4]}, s{sT[4]}, {PF_OFF}
s_add_u32 s{sT[5]}, s{sT[4]}, 12288
""")
for i in range(16): a(f"v_mov_b32 v{HB+i}, 0x3f803f80")
a("s_waitcnt vmcnt(4)")
for mat in range(2):
    for t in range(4):
        for vv in range(2):
            a(f"ds_read_b64_tr_b16 {v(FGU+16*mat+4*t+2*vv,2)}, v{t3} offset:{16384*mat + (32*t+8*vv)*32}")
a("s_waitcnt lgkmcnt(0)")
for mat in range(2):
    for t in range(4):
        mfma(CSA+4*mat, FGU+16*mat+4*t, HB, t == 0)
a(f"""
s_lshl_b32 s{sT[0]}, s{sW}, 7
s_add_u32 s{sT[0]}, s{sT[0]}, {L_CS}
v_lshlrev_b32 v{t0}, 4, v{vG}
v_add_u32 v{t0}, s{sT[0]}, v{t0}
s_mov_b32 exec_lo, 0x00010001
s_mov_b32 exec_hi, 0x00010001
ds_write_b128 v{t0}, {v(CSA,4)}
ds_write_b128 v{t0}, {v(CSA+4,4)} offset:64
s_mov_b64 exec, -1
s_waitcnt vmcnt(0) lgkmcnt(0)
s_barrier
""")
for mt in range(8):
    if mt: a(f"v_xor_b32 v{t2}, {32*mt}, v{t1}")
    a(f"ds_read_b64_tr_b16 {v(FD+2*mt,2)}, v{t2 if mt else t1}")
for k in range(4):
    a(f"ds_read2_b32 {v(FXR+2*k,2)}, v{vCs} offset0:{32*k} offset1:{32*k+16}")
a(f"""
s_waitcnt lgkmcnt(0)
v_add_f32 v{csg}, v{FXR}, v{FXR+2}
v_add_f32 v{csu}, v{FXR+1}, v{FXR+3}
v_add_f32 v{csg}, v{csg}, v{FXR+4}
v_add_f32 v{csu}, v{csu}, v{FXR+5}
v_add_f32 v{csg}, v{csg}, v{FXR+6}
v_add_f32 v{csu}, v{csu}, v{FXR+7}
""")
stamp("FFN prepped")
a(f"s_mov_b64 exec, s[{sM4}:{sM4+1}]")
a(f"s_mov_b32 s{sCNT}, 0")
a("L_pollh:")
for t in range(4):
    a(f"buffer_load_dwordx4 {v(HB+4*t,4)}, v{vHl}, {srd(R_WS)}, s{sT[1]} offen offset:{64*t} sc1")
a("s_waitcnt vmcnt(0)")
poison_check(list(range(HB, HB + 16)), t3)
poll_tail("L_pollh", opt("hsleep", 1))
a("s_mov_b64 exec, -1")
stamp("h gathered")
for t in range(4):
    for k in range(3):
        mfma(GD+4*k, FGU+16*k+4*t if k < 2 else HB+4*t, HB+4*t, t == 0)
a(f"""
s_mov_b64 exec, s[{sM4}:{sM4+1}]
ds_write_b128 v{vFXw}, {v(GD,4)}
ds_write_b128 v{vFXw}, {v(GD+4,4)} offset:256
s_mov_b64 exec, 0x000f000f
ds_write_b128 v{vFXw}, {v(GD+8,4)} offset:512
s_mov_b64 exec, -1
s_waitcnt lgkmcnt(0)
s_barrier
""")
for k in range(4):
    a(f"ds_read_b32 v{FXR+8+k}, v{vSq} offset:{640*k}")
    a(f"ds_read_b32 v{FXR+12+k}, v{vSm} offset:{640*k}")
for k in range(4):
    a(f"ds_read_b32 v{FXR+2*k}, v{vFXr} offset:{640*k}")
    a(f"ds_read_b32 v{FXR+2*k+1}, v{vFXr} offset:{640*k+256}")
gg, uu, sq, sm = vT[13], vT[14], vT[15], vT[16]
a(f"""
s_waitcnt lgkmcnt(8)
v_add_f32 v{sm}, v{FXR+12}, v{FXR+13}
v_add_f32 v{sq}, v{FXR+8}, v{FXR+9}
v_add_f32 v{sm}, v{sm}, v{FXR+14}
v_add_f32 v{sq}, v{sq}, v{FXR+10}
v_add_f32 v{sm}, v{sm}, v{FXR+15}
v_add_f32 v{sq}, v{sq}, v{FXR+11}
v_mul_f32 v{sm}, 0x3b000000, v{sm}
v_mul_f32 v{sq}, 0x3b000000, v{sq}
v_fma_f32 v{sq}, -v{sm}, v{sm}, v{sq}
v_max_f32 v{sq}, 0, v{sq}
v_add_f32 v{sq}, 0x3727c5ac, v{sq}
v_rsq_f32 v{sq}, v{sq}
s_waitcnt lgkmcnt(0)
v_add_f32 v{gg}, v{FXR}, v{FXR+2}
v_add_f32 v{uu}, v{FXR+1}, v{FXR+3}
v_add_f32 v{gg}, v{gg}, v{FXR+4}
v_add_f32 v{uu}, v{uu}, v{FXR+5}
v_add_f32 v{gg}, v{gg}, v{FXR+6}
v_add_f32 v{uu}, v{uu}, v{FXR+7}
v_fma_f32 v{gg}, -v{sm}, v{csg}, v{gg}
v_fma_f32 v{uu}, -v{sm}, v{csu}, v{uu}
v_mul_f32 v{gg}, v{gg}, v{sq}
v_mul_f32 v{uu}, v{uu}, v{sq}
v_mul_f32 v{sm}, {f32(-math.log2(math.e))}, v{gg}
v_exp_f32 v{sm}, v{sm}
v_mul_f32 v{gg}, v{gg}, v{uu}
v_add_f32 v{sm}, 1.0, v{sm}
v_rcp_f32 v{sm}, v{sm}
v_mul_f32 v{gg}, v{gg}, v{sm}
v_mov_b32_dpp v{uu}, v{gg} row_shl:4 row_mask:0xf bank_mask:0xf
v_cvt_pk_bf16_f32 v{FXR}, v{gg}, v{uu}
v_mov_b32_dpp v{FXR+1}, v{FXR} row_shl:8 row_mask:0xf bank_mask:0xf
""")
for mt in range(8): mfma(DD+4*mt, FD+2*mt, FXR, True, k16=True)
a(f"s_mov_b64 exec, s[{sM4}:{sM4+1}]")
for p in range(4):
    for k in range(4):
        a(f"v_cvt_pk_bf16_f32 v{DP+4*p+k}, v{DD+8*p+2*k}, v{DD+8*p+2*k+1}")
    a(f"buffer_store_dwordx4 {v(DP+4*p,4)}, v{vPF}, {srd(R_WS)}, s{sT[4+(p>>1)]} offen offset:{64*(p&1)} sc1")
a("s_mov_b64 exec, -1")
stamp("FFN published")
a("s_branch L_fin")

a("L_wave45:")
PZ = vT[4]
a(f"""
s_lshl_b32 s{sT[3]}, s{sK}, 16
s_lshl_b32 s{sT[4]}, s{sCH}, 17
s_add_u32 s{sT[4]}, s{sT[4]}, s{sT[3]}
s_lshl_b32 s{sT[1]}, s{sK}, 4
v_add_u32 v{vT[11]}, s{sT[1]}, v{vFL}
""")
def dma_all(win, tag, nclr_after):
    signalled = 0
    torder = [0, 2, 1, 3]
    goat = GOAT_A if tag == "A" else GOAT_F
    for idx in range(64):
        i = torder[idx // 16] * 16 + (idx % 16)
        if i % 4 == 0:
            a(f"s_add_u32 m0, s{sT[3]}, {i*1024}")
            a(f"s_add_u32 s{sT[5]}, s{sT[4]}, {i*1024}")
        tmp = vT[i & 1]
        a(f"v_xor_b32 v{tmp}, {fsw(i & 15)*16}, v{vL16}")
        if tag == "A" and WQG and idx == WQG: lds_wait(F_WQI, 4, sleep=1)
        if tag == "A" and WQG and 4 <= idx < WQG: a("s_waitcnt vmcnt(3)")
        if idx >= win:
            a(f"s_waitcnt vmcnt({win-1})")
            done = idx - win + 1
            if done >= 16 * (signalled + 1):
                lds_signal(F_TILE + 4 * torder[signalled], base=vT[11]); signalled += 1
        a(f"buffer_load_dwordx4 v{tmp}, {srd(R_CKV)}, s{sT[5]} offen offset:{(i&3)*1024}{P_CK} lds")
        if idx == goat - 1: lds_signal(F_GO)
    lds_signal(F_QI)
    stamp("dma issued")
    if goat > 64:
        while signalled < 3:
            a(f"s_waitcnt vmcnt({64 - 16*(signalled+1)})")
            lds_signal(F_TILE + 4 * torder[signalled], base=vT[11]); signalled += 1
        a(f"s_waitcnt vmcnt({80 - goat})")
        lds_signal(F_GO)
    while signalled < 4:
        a(f"s_waitcnt vmcnt({64 - 16*(signalled+1)})")
        lds_signal(F_TILE + 4 * torder[signalled], base=vT[11]); signalled += 1
    stamp("ckv landed")
a(f"""
s_cmp_eq_u32 s{sHGB}, 0
s_cbranch_scc1 L_w45free
s_setprio 3
s_waitcnt vmcnt(0)
""")
ln_row()
lds_signal(F_XN)
a("s_setprio 0")
WQG = opt("wqg", 0)
if WQG == 0: lds_wait(F_WQI, 4, sleep=2)
dma_all(DWIN_A, "A", False)
a("s_branch L_w45pf")
a("L_w45free:")
if UKGATE: lds_wait(F_WQI, 4, sleep=1)
dma_all(DWIN_F, "F", False)
a("L_w45pf:")
a(f"""
v_lshrrev_b32 v{t0}, 2, v{vL}
v_mul_u32_u24 v{t0}, 2752, v{t0}
v_and_b32 v{t1}, 3, v{vL}
v_lshlrev_b32 v{t1}, 7, v{t1}
v_min_u32 v{t1}, 348, v{t1}
v_add_u32 v{t0}, v{t0}, v{t1}
s_mul_i32 s{sT[1]}, s{sY}, {16*2752}
s_mul_i32 s{sT[2]}, s{sX}, 352
s_add_u32 s{sT[1]}, s{sT[1]}, s{sT[2]}
v_min_u32 v{t1}, 21, v{vL}
v_lshlrev_b32 v{t1}, 7, v{t1}
s_mul_i32 s{sT[2]}, s{sX}, {176*1024}
s_lshl_b32 s{sT[3]}, s{sY}, 1
s_add_u32 s{sT[3]}, s{sT[3]}, s{sK}
s_mul_i32 s{sT[3]}, s{sT[3]}, {22*128}
s_add_u32 s{sT[2]}, s{sT[2]}, s{sT[3]}
""")
def ffn_pf(tag, s1, s2):
    a(f"""
    buffer_load_dword v{vDUM+1}, v{t1}, {srd(R_WD)}, s{s2} offen
    s_cmp_eq_u32 s{sW}, 5
    s_cbranch_scc1 L_w5up{tag}
    buffer_load_dword v{vDUM}, v{t0}, {srd(R_WG)}, s{s1} offen
    s_branch L_pfd{tag}
    L_w5up{tag}:
    buffer_load_dword v{vDUM}, v{t0}, {srd(R_WU)}, s{s1} offen
    L_pfd{tag}:
    """)
if PFWHEN == 0:
    lds_wait(F_RI, 2, sleep=4)
    ffn_pf("a", sT[1], sT[2])
elif PFWHEN == 2:
    lds_wait(F_QS, 4, sleep=1)
    ffn_pf("a", sT[1], sT[2])
elif PFWHEN == 3:
    lds_wait(F_QS, 4, sleep=1)
    ffn_pf("a", sT[1], sT[2])
else:
    a(f"s_mov_b32 s{sT[9]}, s{sT[1]}")
    a(f"s_mov_b32 s{sT[10]}, s{sT[2]}")
a("s_branch L_phaseC")

a("L_wave67:")
RAW = 32
a(f"s_and_b32 s{sT[0]}, s{sW}, 1")
if CODEPF:
    a(f"""
    s_getpc_b64 s[{sC2}:{sC2+1}]
    L_pcref:
    s_sub_u32 s{sC2}, s{sC2}, L_pcref-{KNAME}
    s_subb_u32 s{sC2+1}, s{sC2+1}, 0
    v_lshlrev_b32 v{t0}, 7, v{vL}
    s_lshl_b32 s{sT[2]}, s{sT[0]}, 13
    v_add_u32 v{t0}, s{sT[2]}, v{t0}
    v_add_u32 v{t1}, 16384, v{t0}
    v_min_u32 v{t0}, L_end-{KNAME}, v{t0}
    v_min_u32 v{t1}, L_end-{KNAME}, v{t1}
    """)
a(f"""
s_cmp_eq_u32 s{sHGB}, 0
s_cbranch_scc1 L_noLN
s_setprio 3
s_waitcnt vmcnt(0)
""")
ln_row()
lds_signal(F_XN)
stamp("LN done")
a("s_branch L_w67rest")
a("L_noLN:")
if CODEPF:
    a(f"""
    global_load_dword v{vDUM}, v{t0}, s[{sC2}:{sC2+1}]
    global_load_dword v{vDUM+1}, v{t1}, s[{sC2}:{sC2+1}]
    """)
a("L_w67rest:")
if opt("tlbw", 0):
    a(f"""
    s_cmp_lg_u32 s{sW}, {opt("tlbwave", 7)}
    s_cbranch_scc1 L_notlb
    v_lshlrev_b32 v{t0}, 21, v{vL}
    s_mov_b64 exec, 15
    s_waitcnt lgkmcnt(0)
    buffer_load_dword v{vDUM}, v{t0}, {srd(R_WS)}, 0 offen
    buffer_load_dword v{vDUM}, v{t0}, {srd(R_WUV)}, 0 offen
    buffer_load_dword v{vDUM}, v{t0}, {srd(R_WO)}, 0 offen
    buffer_load_dword v{vDUM}, v{t0}, {srd(R_WG)}, 0 offen
    buffer_load_dword v{vDUM}, v{t0}, {srd(R_WU)}, 0 offen
    buffer_load_dword v{vDUM}, v{t0}, {srd(R_WD)}, 0 offen
    buffer_load_dword v{vDUM}, v{t0}, {srd(R_OUT)}, 0 offen
    s_mov_b64 exec, -1
    L_notlb:
    """)
def clears():
    a(f"""
    v_and_b32 v{vT[8]}, 7, v{vL}
    v_lshlrev_b32 v{vT[8]}, 4, v{vT[8]}
    v_bfe_u32 v{vT[9]}, v{vL}, 3, 1
    v_lshl_add_u32 v{vT[10]}, v{vT[9]}, 14, v{vT[8]}
    v_lshl_add_u32 v{vT[10]}, v{vG}, 17, v{vT[10]}
    s_lshl_b32 s{sT[1]}, s{sMH}, 1
    s_add_u32 s{sT[1]}, s{sT[1]}, s{sT[0]}
    s_lshl_b32 s{sT[1]}, s{sT[1]}, 15
    s_lshl_b32 s{sT[2]}, s{sH}, 2
    s_add_u32 s{sT[2]}, s{sT[2]}, s{sCQ}
    s_lshl_b32 s{sT[2]}, s{sT[2]}, 7
    s_add_u32 s{sT[1]}, s{sT[1]}, s{sT[2]}
    s_add_u32 s{sT[1]}, s{sT[1]}, {PA_OFF}
    buffer_store_dwordx4 {v(PZ,4)}, v{vT[10]}, {srd(R_WS)}, s{sT[1]} offen sc1
    """)
a(f"""
v_mov_b32 v{PZ}, -1
v_mov_b32 v{PZ+1}, -1
v_mov_b32 v{PZ+2}, -1
v_mov_b32 v{PZ+3}, -1
""")
clears()
a(f"""
s_cmp_eq_u32 s{sISR}, 0
s_cbranch_scc1 L_noclrH
s_cmp_lg_u32 s{sW}, 7
s_cbranch_scc1 L_noclrH
s_lshl_b32 s{sT[1]}, s{sRHO}, 7
s_add_u32 s{sT[1]}, s{sT[1]}, {HG_OFF}
s_mov_b64 exec, 0xff
buffer_store_dwordx4 {v(PZ,4)}, v{vL16}, {srd(R_WS)}, s{sT[1]} offen sc1
s_mov_b64 exec, -1
L_noclrH:
s_cmp_eq_u32 s{sISF}, 0
s_cbranch_scc1 L_noclrF
v_mul_u32_u24 v{vT[10]}, 12288, v{vT[9]}
v_add_u32 v{vT[10]}, v{vT[10]}, v{vT[8]}
s_mov_b32 s{sT[1]}, 98304
v_mul_lo_u32 v{vT[9]}, v{vG}, s{sT[1]}
v_add_u32 v{vT[10]}, v{vT[10]}, v{vT[9]}
s_mul_i32 s{sT[1]}, s{sT[0]}, 49152
s_lshl_b32 s{sT[2]}, s{sPHI}, 7
s_add_u32 s{sT[1]}, s{sT[1]}, s{sT[2]}
s_add_u32 s{sT[1]}, s{sT[1]}, {PF_OFF}
s_add_u32 s{sT[2]}, s{sT[1]}, 24576
buffer_store_dwordx4 {v(PZ,4)}, v{vT[10]}, {srd(R_WS)}, s{sT[1]} offen sc1
buffer_store_dwordx4 {v(PZ,4)}, v{vT[10]}, {srd(R_WS)}, s{sT[2]} offen sc1
L_noclrF:
s_waitcnt vmcnt(0)
""")
lds_signal(F_CLR)
a("s_setprio 0")
a(f"""
v_lshlrev_b32 v{vT[4]}, 13, v{vG}
v_lshl_add_u32 v{vT[4]}, v{vN}, 4, v{vT[4]}
s_lshl_b32 s{sT[1]}, s{sCQ}, 7
s_lshl_b32 s{sT[2]}, s{sT[0]}, 6
s_add_u32 s{sT[1]}, s{sT[1]}, s{sT[2]}
s_lshl_b32 s{sT[1]}, s{sT[1]}, 13
s_lshl_b32 s{sT[2]}, s{sH}, 8
s_add_u32 s{sT[1]}, s{sT[1]}, s{sT[2]}
v_lshrrev_b32 v{vT[5]}, 5, v{vL}
v_lshlrev_b32 v{vT[5]}, 10, v{vT[5]}
v_and_b32 v{vT[6]}, 31, v{vL}
v_lshl_add_u32 v{vT[5]}, v{vT[6]}, 4, v{vT[5]}
s_lshl_b32 s{sT[2]}, s{sH}, 17
s_lshl_b32 s{sT[3]}, s{sT[0]}, 16
s_add_u32 s{sT[2]}, s{sT[2]}, s{sT[3]}
s_lshl_b32 s{sT[3]}, s{sMH}, 9
s_add_u32 s{sT[2]}, s{sT[2]}, s{sT[3]}
s_waitcnt vmcnt(0)
""")
RPRE = opt("rpre", 48)
RCOOP = opt("rcoop", 0)
if RCOOP:
    a(f"""
    v_lshrrev_b32 v{t0}, 2, v{vL}
    v_lshlrev_b32 v{t0}, 13, v{t0}
    v_and_b32 v{t1}, 3, v{vL}
    v_lshl_add_u32 v{t0}, v{t1}, 7, v{t0}
    v_lshlrev_b32 v{t1}, 7, v{vL}
    s_lshl1_add_u32 s{sT[4]}, s{sYP}, s{sT[0]}
    s_lshl_b32 s{sT[5]}, s{sT[4]}, 17
    s_lshl_b32 s{sT[6]}, s{sX}, 9
    s_add_u32 s{sT[5]}, s{sT[5]}, s{sT[6]}
    s_add_u32 s{sT[6]}, s{sT[5]}, 4096
    s_lshl_b32 s{sT[7]}, s{sT[4]}, 13
    s_lshl_b32 s{sT[8]}, s{sX}, 18
    s_add_u32 s{sT[7]}, s{sT[7]}, s{sT[8]}
    s_add_u32 s{sT[8]}, s{sT[7]}, {16 << 17}
    """)
PFL = [f"buffer_load_dword v{vDUM}, v{t0}, {srd(R_WUV)}, s{sT[5]} offen",
       f"buffer_load_dword v{vDUM+1}, v{t1}, {srd(R_WO)}, s{sT[7]} offen",
       f"buffer_load_dword v{vDUM}, v{t0}, {srd(R_WUV)}, s{sT[6]} offen",
       f"buffer_load_dword v{vDUM+1}, v{t1}, {srd(R_WO)}, s{sT[8]} offen"]
NPRE = opt("npre", 2); NPOST = opt("npost", 2)
if RCOOP == 2:
    a(f"""
    s_cmp_eq_u32 s{sHGB}, 1
    s_cbranch_scc1 L_nocoop2
    """)
    lds_wait(F_GO, 2, sleep=1)
    for l in PFL[:NPRE]: a(l)
    a("L_nocoop2:")
    lds_signal(F_GO)
    if NPOST:
        a(f"""
        s_cmp_eq_u32 s{sHGB}, 1
        s_cbranch_scc1 L_nocoop3
        """)
        lds_wait(F_QI, 6, sleep=1)
        for l in PFL[NPRE:NPRE+NPOST]: a(l)
        a("L_nocoop3:")
    a("s_waitcnt vmcnt(0)")
lds_wait(F_QI, 6, sleep=2)
if RCOOP == 1:
    a(f"""
    s_cmp_eq_u32 s{sHGB}, 1
    s_cbranch_scc1 L_nocoop
    buffer_load_dword v{vDUM}, v{t0}, {srd(R_WUV)}, s{sT[5]} offen
    buffer_load_dword v{vDUM+1}, v{t0}, {srd(R_WUV)}, s{sT[6]} offen
    buffer_load_dword v{vDUM}, v{t1}, {srd(R_WO)}, s{sT[7]} offen
    buffer_load_dword v{vDUM+1}, v{t1}, {srd(R_WO)}, s{sT[8]} offen
    s_waitcnt vmcnt(0)
    L_nocoop:
    """)
for i in range(48):
    if i == RPRE: lds_wait(F_QS, 4, sleep=1)
    if i >= RWIN: a(f"s_waitcnt vmcnt({RWIN-1})")
    if i < 16:
        if i: a(f"s_add_u32 s{sT[1]}, s{sT[1]}, 32768")
        a(f"buffer_load_dwordx4 {v(RAW+4*i,4)}, v{vT[4]}, {srd(R_WUV)}, s{sT[1]} offen{P_R}")
    else:
        k = i - 16
        if k and k % 2 == 0: a(f"s_add_u32 s{sT[2]}, s{sT[2]}, 4096")
        a(f"buffer_load_dwordx4 {v(RAW+64+4*k,4)}, v{vT[5]}, {srd(R_WO)}, s{sT[2]} offen offset:{(k&1)*2048}{P_R}")
lds_signal(F_RI)
stamp("rest issued")
a(f"""
v_lshlrev_b32 v{t0}, 5, v{vG}
v_lshlrev_b32 v{t1}, 4, v{vN}
v_xor_b32 v{t0}, v{t0}, v{t1}
v_lshl_add_u32 v{t0}, v{vG}, 8, v{t0}
s_lshl_b32 s{sT[1]}, s{sT[0]}, 14
v_add_u32 v{t0}, s{sT[1]}, v{t0}
v_xor_b32 v{t1}, 128, v{t0}
v_lshrrev_b32 v{t2}, 5, v{vL}
v_and_b32 v{vT[4]}, 31, v{vL}
v_lshlrev_b32 v{vT[4]}, 4, v{vT[4]}
v_lshlrev_b32 v{t3}, 5, v{t2}
v_xor_b32 v{vT[4]}, v{vT[4]}, v{t3}
v_lshl_add_u32 v{vT[4]}, v{t2}, 9, v{vT[4]}
s_lshl_b32 s{sT[1]}, s{sT[0]}, 15
s_add_u32 s{sT[1]}, s{sT[1]}, {L_WO}
v_add_u32 v{vT[4]}, s{sT[1]}, v{vT[4]}
v_xor_b32 v{vT[5]}, 64, v{vT[4]}
v_xor_b32 v{vT[6]}, 128, v{vT[4]}
v_xor_b32 v{vT[7]}, 192, v{vT[4]}
""")
lds_wait(F_BD, 4, sleep=1)
for i in range(16):
    if 47 - i < RWIN: a(f"s_waitcnt vmcnt({47-i})")
    a(f"ds_write_b128 v{t1 if (i>>1)&1 else t0}, {v(RAW+4*i,4)} offset:{L_WUV + 1024*i}")
for i in range(32):
    if 31 - i < RWIN: a(f"s_waitcnt vmcnt({31-i})")
    sel = (i & 1) | (((i >> 2) & 1) << 1)
    a(f"ds_write_b128 v{vT[4+sel]}, {v(RAW+64+4*i,4)} offset:{1024*i}")
lds_signal(F_ST)
stamp("images written")

a("L_phaseC:")
FUV, FO, CB, XD, AD, AP = 32, 64, 128, 144, 160, 176
vUVa, vOa, vCLr, vCXw, vCXr, vPA = vT[4], vT[5], vT[6], vT[7], vT[8], vT[9]
a(f"""
v_bfe_u32 v{vT[12]}, v{vL}, 2, 2
v_and_b32 v{vT[13]}, 1, v{vG}
v_lshl_add_u32 v{vT[13]}, v{vT[13]}, 2, v{vT[12]}
v_lshl_add_u32 v{vT[12]}, v{vG}, 3, v{vT[12]}
v_and_b32 v{vT[14]}, 3, v{vL}
v_lshlrev_b32 v{vT[14]}, 3, v{vT[14]}
s_lshl_b32 s{sT[0]}, s{sK}, 1
v_xor_b32 v{vUVa}, s{sT[0]}, v{vT[13]}
v_lshl_add_u32 v{vUVa}, v{vUVa}, 5, v{vT[14]}
v_lshl_add_u32 v{vUVa}, v{vT[12]}, 8, v{vUVa}
s_lshl_b32 s{sT[0]}, s{sK}, 2
v_xor_b32 v{vOa}, s{sT[0]}, v{vT[13]}
v_lshl_add_u32 v{vOa}, v{vOa}, 5, v{vT[14]}
v_lshl_add_u32 v{vOa}, v{vT[12]}, 9, v{vOa}
v_add_u32 v{vOa}, {L_WO}, v{vOa}
v_and_b32 v{vT[12]}, 3, v{vN}
v_mul_u32_u24 v{vT[12]}, 272, v{vT[12]}
v_lshl_add_u32 v{vCXr}, v{vG}, 4, v{vT[12]}
v_add_u32 v{vCLr}, {L_CL}, v{vCXr}
v_add_u32 v{vCXr}, {L_CX}, v{vCXr}
v_lshl_add_u32 v{vCXw}, v{vG}, 3, v{vT[12]}
s_lshl_b32 s{sT[0]}, s{sK}, 6
s_add_u32 s{sT[0]}, s{sT[0]}, {L_CX}
v_add_u32 v{vCXw}, s{sT[0]}, v{vCXw}
v_lshlrev_b32 v{vPA}, 4, v{vG}
v_lshl_add_u32 v{vPA}, v{vN}, 17, v{vPA}
s_lshl_b32 s{sT[1]}, s{sMH}, 2
s_add_u32 s{sT[1]}, s{sT[1]}, s{sK}
s_lshl_b32 s{sT[1]}, s{sT[1]}, 14
s_lshl_b32 s{sT[2]}, s{sH}, 2
s_add_u32 s{sT[2]}, s{sT[2]}, s{sCQ}
s_lshl_b32 s{sT[2]}, s{sT[2]}, 7
s_add_u32 s{sT[1]}, s{sT[1]}, s{sT[2]}
s_add_u32 s{sT[1]}, s{sT[1]}, {PA_OFF}
""")
lds_wait(F_ST, 2, sleep=1)
for mt in range(2):
    if mt: a(f"v_xor_b32 v{vT[12]}, 32, v{vUVa}")
    for ks in range(4):
        for vv in range(2):
            a(f"ds_read_b64_tr_b16 {v(FUV+16*mt+4*ks+2*vv,2)}, v{vT[12] if mt else vUVa} offset:{L_WUV + (32*ks+4*vv)*256}")
for mt in range(4):
    if mt: a(f"v_xor_b32 v{vT[12]}, {32*mt}, v{vOa}")
    for ks in range(4):
        for vv in range(2):
            a(f"ds_read_b64_tr_b16 {v(FO+16*mt+4*ks+2*vv,2)}, v{vT[12] if mt else vOa} offset:{(32*ks+4*vv)*512}")
stamp("weights staged")
a("s_setprio 2")
def spec_cl():
    for ks in range(4): a(f"ds_read_b128 {v(CB+4*ks,4)}, v{vCLr} offset:{64*ks}")
lds_wait(F_CL, 4, spec_cl)
if PFWHEN == 1:
    a(f"""
    s_cmp_ge_u32 s{sW}, 6
    s_cbranch_scc1 L_nopf2
    """)
    ffn_pf("b", sT[9], sT[10])
    a("L_nopf2:")
for ks in range(4):
    for mt in range(2): mfma(XD+4*mt, FUV+16*mt+4*ks, CB+4*ks, ks == 0)
for k in range(4): a(f"v_cvt_pk_bf16_f32 v{XD+8+k}, v{XD+2*k}, v{XD+2*k+1}")
a(f"""
s_mov_b64 exec, s[{sM4}:{sM4+1}]
ds_write_b64 v{vCXw}, {v(XD+8,2)}
ds_write_b64 v{vCXw}, {v(XD+10,2)} offset:32
""")
lds_signal(F_CX)
def spec_cx():
    for ks in range(4): a(f"ds_read_b128 {v(CB+4*ks,4)}, v{vCXr} offset:{64*ks}")
lds_wait(F_CX, 4, spec_cx)
for p in range(2):
    for ks in range(4):
        for k in range(2):
            mt = 2 * p + k
            mfma(AD+4*mt, FO+16*mt+4*ks, CB+4*ks, ks == 0)
a(f"s_mov_b64 exec, s[{sM4}:{sM4+1}]")
for p in range(2):
    for k in range(4): a(f"v_cvt_pk_bf16_f32 v{AP+4*p+k}, v{AD+8*p+2*k}, v{AD+8*p+2*k+1}")
    a(f"buffer_store_dwordx4 {v(AP+4*p,4)}, v{vPA}, {srd(R_WS)}, s{sT[1]} offen offset:{64*p} sc1")
a("s_mov_b64 exec, -1")
stamp("attn partial published")
a("s_waitcnt vmcnt(0)")

a("L_fin:")
if PROF:
    stamp("end")
    a(f"""
    s_lshl_b32 s{sT[0]}, s2, 3
    s_add_u32 s{sT[0]}, s{sT[0]}, s{sW}
    s_lshl_b32 s{sT[0]}, s{sT[0]}, 8
    s_add_u32 s{sT[0]}, s{sT[0]}, {TS_OFF}
    v_lshlrev_b32 v{t0}, 2, v{vL}
    buffer_store_dword v{vTSA}, v{t0}, {srd(R_WS)}, s{sT[0]} offen
    """)
a("L_end:")

hdr = open("sequential_preLN__compressed_kv_cla__swiglu_ffn__decode.s.ref").read().split("; @launch")[0]
open(OUT, "w").write(wrap_single(a.text(), 256, 512, LDS_BYTES, vgpr=256, header=hdr))
print("instructions:", a.ninstr, file=sys.stderr)
```

```python
import sys, math, struct
from asmgen import *

def opt(name, default):
    for x in sys.argv[1:]:
        if x.startswith("--" + name + "="):
            return int(x.split("=")[1])
    return default
PROF = "--prof" in sys.argv
DBGT = "--dbgtime" in sys.argv
OUT = [a for a in sys.argv[1:] if not a.startswith("--")]
OUT = OUT[0] if OUT else "sequential_preLN__compressed_kv_cla__swiglu_ffn__decode.s"
POLL_MAX = 1 << 15
LSPIN_MAX = 1 << 20
DWIN_A = opt("dwina", 14)
DWIN_F = opt("dwinf", 20)
RWIN = opt("rwin", 12)
UKPF = opt("ukpf", 1)
CODEPF = opt("codepf", 1)
QSLEEP = opt("qsleep", 1)
OACK = opt("oack", 1)
POLS = [" nt", "", " sc0", " sc1", " sc0 nt"]
P_WQ = POLS[opt("pwq", 1)]; P_CK = POLS[opt("pck", 1)]; P_R = POLS[opt("pr", 1)]
AQ = opt("aq", 16)
PFWHEN = opt("pfwhen", 1)
MLSLEEP = opt("mlsleep", 2)
FFNDLY = opt("ffndly", 24)

EPOCH_OFF = 0x0
QA_OFF = 0x10000
HG_OFF = 0x58000
PA_OFF = 0x80000
PF_OFF = 0x100000
O_OFF = 0x200000
ML_OFF = 0x600000
TS_OFF = 0x1000000
WS_USED = 0x1100000

L_QS = 131072
L_XN = 147456
L_Q16 = 151616
L_MX = 152640
L_PX = 153152
L_CL = 157248
L_CX = 159488
L_RED = 160576
L_CS = 162624
L_FL = 163136
LDS_BYTES = 163840
L_WUV, L_WO = 0, 32768
L_G, L_U, L_WD = 98304, 114688, L_QS
L_FX = L_PX
(F_XN, F_CLR, F_QP, F_Q16, F_QS, F_P, F_GO, F_WQI) = [4 * i for i in range(8)]
F_TILE = 32
(F_RI, F_BD, F_ST, F_CL, F_CX, F_QI) = [64 + 4 * i for i in range(6)]
UKGATE = opt('ukgate', 1)
GOAT_A = opt('goata', 48)
GOAT_F = opt('goatf', 80)
L_QP = L_PX

sW, sX, sY, sH, sYP, sCQ, sMH, sHGB, sCH, sEP = 3, 4, 5, 6, 7, 8, 9, 10, 11, 12
sT = list(range(13, 24))
sO, sHA, sJQ, sPHI, sRHO, sISF, sISR, sCNT = 24, 25, 26, 27, 28, 29, 30, 31
R_X, R_CKV, R_WQ, R_WUK, R_WUV, R_WO, R_WG, R_WU, R_WD, R_OUT, R_WS, R_PF = [32 + 4 * i for i in range(12)]
sSELLO, sSELHI = 80, 81
sM8 = 82
sM4 = 84
sACC = 86
sC2 = 88
sTS = 90
sK = 92
def srd(r): return f"s[{r}:{r+3}]"
def f32(x): return "0x%08x" % struct.unpack("<I", struct.pack("<f", x))[0]

vL, vN, vG, vL16, vFL, vONE, vTSA = 1, 2, 3, 4, 5, 6, 7
vT = list(range(8, 32))
t0, t1, t2, t3 = vT[0], vT[1], vT[2], vT[3]
vSP = vT[23]
vDUM = vT[21]
def v(i, n=1): return f"v{i}" if n == 1 else f"v[{i}:{i+n-1}]"
def fsw(row): return 2 * ((row & 7) ^ (4 * (row >> 3))) + (row >> 3)

a = Asm()
stamps = {}
PROBE = [x.split("=", 1)[1].replace("_", " ") for x in sys.argv if x.startswith("--probe=")]
def stamp(name):
    if PROBE and PROBE[0] == name.replace("_", " ") and opt("plocal", 1):
        a(f"""
        s_memrealtime s[94:95]
        s_waitcnt lgkmcnt(0)
        v_mov_b32 v{vT[19]}, {L_FL + 128}
        v_mov_b32 v{vT[20]}, s94
        s_mov_b64 s[100:101], exec
        s_mov_b64 exec, 1
        ds_max_u32 v{vT[19]}, v{vT[20]}
        s_mov_b64 exec, s[100:101]
        s_waitcnt lgkmcnt(0)
        """)
    elif PROBE and PROBE[0] == name.replace("_", " "):
        a(f"""
        s_memrealtime s[94:95]
        s_waitcnt lgkmcnt(0)
        v_mov_b32 v{vT[19]}, 16
        v_mov_b32 v{vT[20]}, s94
        s_mov_b64 s[100:101], exec
        s_mov_b64 exec, 1
        global_atomic_umax v{vT[19]}, v{vT[20]}, s[98:99] sc1
        s_mov_b64 exec, s[100:101]
        """)
    if not PROF: return
    if name not in stamps:
        stamps[name] = len(stamps)
    i = stamps[name]
    a(f"""
    s_memrealtime s[{sTS}:{sTS+1}]
    s_waitcnt lgkmcnt(0)
    v_writelane_b32 v{vTSA}, s{sTS}, {i}
    """)
def cstamp(name):
    if not PROF: return
    name = "#" + name
    if name not in stamps:
        stamps[name] = len(stamps)
    a(f"s_add_u32 s{sTS}, s{sCNT}, 1")
    a(f"v_writelane_b32 v{vTSA}, s{sTS}, {stamps[name]}")
def poll_tail(name, sleep=0):
    done = a.newlabel("Lpd")
    a(f"""
    s_cmp_eq_u64 vcc, 0
    s_cbranch_scc1 {done}
    """)
    if sleep: a(f"s_sleep {sleep}")
    a(f"""
    s_add_u32 s{sCNT}, s{sCNT}, 1
    s_cmp_lt_u32 s{sCNT}, {POLL_MAX}
    s_cbranch_scc1 {name}
    """)
    a.label(done)
def poison_check(regs, tmp):
    regs = list(regs); n = len(regs)
    a(f"v_max3_u32 v{tmp}, v{regs[0]}, v{regs[1]}, v{regs[2]}")
    i = 3
    while i + 1 < n:
        a(f"v_max3_u32 v{tmp}, v{tmp}, v{regs[i]}, v{regs[i+1]}"); i += 2
    if i < n: a(f"v_max_u32 v{tmp}, v{tmp}, v{regs[i]}")
    a(f"v_cmp_eq_u32 vcc, -1, v{tmp}")
def lds_signal(off, base=None):
    a(f"""
    s_mov_b64 exec, 1
    ds_add_u32 v{vFL if base is None else base}, v{vONE} offset:{off}
    s_mov_b64 exec, -1
    """)
def lds_wait(off, target, spec=None, sleep=0, base=None):
    lp, dn = a.newlabel("Lw"), a.newlabel("Lwd")
    a(f"s_mov_b32 s{sCNT}, 0")
    a.label(lp)
    a(f"ds_read_b32 v{vSP}, v{vFL if base is None else base} offset:{off}")
    if spec: spec()
    a(f"""
    s_waitcnt lgkmcnt(0)
    v_readfirstlane_b32 s{sACC}, v{vSP}
    s_cmp_ge_u32 s{sACC}, {target}
    s_cbranch_scc1 {dn}
    """)
    if sleep: a(f"s_sleep {sleep}")
    a(f"""
    s_add_u32 s{sCNT}, s{sCNT}, 1
    s_cmp_lt_u32 s{sCNT}, {LSPIN_MAX}
    s_cbranch_scc1 {lp}
    """)
    a.label(dn)
def rne_bf16(dst, src):
    a(f"v_cvt_pk_bf16_f32 v{dst}, v{src}, v{src}")
    a(f"v_and_b32 v{dst}, 0xffff0000, v{dst}")
def mfma(d, A, B, first, k16=False):
    n = 2 if k16 else 4
    op = "v_mfma_f32_16x16x16_bf16" if k16 else "v_mfma_f32_16x16x32_bf16"
    a(f"{op} {v(d,4)}, {v(A,n)}, {v(B,n)}, {'0' if first else v(d,4)}")

XR, XF = 32, 40
def ln_row():
    def wave_sum(x):
        for ctl in ["row_shr:1", "row_shr:2", "row_shr:4", "row_shr:8"]:
            a(f"v_add_f32_dpp v{x}, v{x}, v{x} {ctl} row_mask:0xf bank_mask:0xf bound_ctrl:0")
        a(f"v_add_f32_dpp v{x}, v{x}, v{x} row_bcast:15 row_mask:0xa bank_mask:0xf")
        a(f"v_add_f32_dpp v{x}, v{x}, v{x} row_bcast:31 row_mask:0xc bank_mask:0xf")
    xr, xf = XR, XF
    for i in range(4):
        a(f"v_lshlrev_b32 v{xf+2*i}, 16, v{xr+i}")
        a(f"v_and_b32 v{xf+2*i+1}, 0xffff0000, v{xr+i}")
    a(f"v_add_f32 v{xf+12}, v{xf}, v{xf+1}")
    for i in range(2, 8): a(f"v_add_f32 v{xf+12}, v{xf+12}, v{xf+i}")
    wave_sum(xf + 12)
    a(f"v_mov_b32 v{xf+15}, 0x3b000000")
    a(f"v_readlane_b32 s{sT[6]}, v{xf+12}, 63")
    a(f"v_mul_f32 v{xf+13}, s{sT[6]}, v{xf+15}")
    for i in range(8):
        a(f"v_sub_f32 v{xf+14}, v{xf+i}, v{xf+13}")
        if i == 0: a(f"v_mul_f32 v{xf+12}, v{xf+14}, v{xf+14}")
        else: a(f"v_fmac_f32 v{xf+12}, v{xf+14}, v{xf+14}")
    rne_bf16(xf + 13, xf + 13)
    wave_sum(xf + 12)
    for i in range(8): a(f"v_sub_f32 v{xf+i}, v{xf+i}, v{xf+13}")
    a(f"v_readlane_b32 s{sT[6]}, v{xf+12}, 63")
    for i in range(4): a(f"v_cvt_pk_bf16_f32 v{xf+8+i}, v{xf+2*i}, v{xf+2*i+1}")
    a(f"v_mul_f32 v{xf+12}, s{sT[6]}, v{xf+15}")
    rne_bf16(xf + 12, xf + 12)
    a(f"v_add_f32 v{xf+12}, 0x3727c5ac, v{xf+12}")
    rne_bf16(xf + 12, xf + 12)
    a(f"v_sqrt_f32 v{xf+12}, v{xf+12}")
    for i in range(4):
        a(f"v_lshlrev_b32 v{xf+2*i}, 16, v{xf+8+i}")
        a(f"v_and_b32 v{xf+2*i+1}, 0xffff0000, v{xf+8+i}")
    rne_bf16(xf + 12, xf + 12)
    a(f"v_rcp_f32 v{xf+12}, v{xf+12}")
    a(f"s_mul_i32 s{sT[6]}, s{sK}, 1040")
    a(f"s_add_u32 s{sT[6]}, s{sT[6]}, {L_XN}")
    a(f"v_add_u32 v{xf+15}, s{sT[6]}, v{vL16}")
    for i in range(8): a(f"v_mul_f32 v{xf+i}, v{xf+i}, v{xf+12}")
    for i in range(4): a(f"v_cvt_pk_bf16_f32 v{xf+8+i}, v{xf+2*i}, v{xf+2*i+1}")
    a(f"ds_write_b128 v{xf+15}, {v(xf+8,4)}")

EARLYPF = f"""s_getpc_b64 s[{sC2}:{sC2+1}]
v_lshlrev_b32 v{t1}, 6, v0
v_min_u32 v{t1}, L_end-{KNAME}-256, v{t1}
global_load_dword v{vDUM}, v{t1}, s[{sC2}:{sC2+1}]""" if opt("earlypf", 1) else ""
if opt("earlypf", 1): CODEPF = 0
WQ, FR, AC, BX, UK = 32, 160, 192, 224, 32
XBAR = opt('xbar', 1)
FULL = opt("full", 1)
vWQ, vUK = vT[4], vT[5]
def wq_kstep(u):
    a(f"""
    s_add_u32 s{sT[2]}, s{sJQ}, {u}
    s_and_b32 s{sT[2]}, s{sT[2]}, 3
    s_lshl_b32 s{sT[2]}, s{sT[2]}, 18
    s_add_u32 s{sT[3]}, s{sT[2]}, s{sT[0]}
    """)
    if u == 0:
        a("s_waitcnt lgkmcnt(0)")
        if XBAR: a("s_barrier")
    for e in range(8):
        if e: a(f"s_add_u32 s{sT[3]}, s{sT[3]}, 8192")
        a(f"buffer_load_dwordx4 {v(WQ+4*(8*u+e),4)}, v{vWQ}, {srd(R_WQ)}, s{sT[3]} offen{P_WQ}")
def wq_lines(u):
    L = [[f"s_add_u32 s{sT[2]}, s{sJQ}, {u}", f"s_and_b32 s{sT[2]}, s{sT[2]}, 3", f"s_lshl_b32 s{sT[2]}, s{sT[2]}, 18", f"s_add_u32 s{sT[3]}, s{sT[2]}, s{sT[0]}"]]
    for e in range(8):
        if e: L.append([f"s_add_u32 s{sT[3]}, s{sT[3]}, 8192"])
        L[-1].append(f"buffer_load_dwordx4 {v(WQ+4*(8*u+e),4)}, v{vWQ}, {srd(R_WQ)}, s{sT[3]} offen{P_WQ}")
    return L
def uk_lines():
    return [[f"buffer_load_dwordx4 {v(UK+16*mt+4*t,4)}, v{vUK}, {srd(R_WUK)}, s{sT[4+mt]} offen offset:{64*t}{P_WQ}"] for mt in range(2) for t in range(4)]
def q_kstep(u, extra=None):
    for jj in range(8):
        if extra:
            for l in extra[jj]: a(l)
        for p in range(4):
            sel = sSELHI if (jj & 1) else sSELLO
            a(f"v_perm_b32 v{FR+4*jj+p}, v{WQ+4*(8*u+2*p+1)+(jj>>1)}, v{WQ+4*(8*u+2*p)+(jj>>1)}, s{sel}")
        if jj >= 1: mfma(AC+4*(jj-1), FR+4*(jj-1), BX+4*u, u == 0)
    mfma(AC+28, FR+28, BX+4*u, u == 0)
def srdw(lst):
    for r, nb in lst:
        a(f"s_mov_b32 s{r+2}, {nb}")
        a(f"s_mov_b32 s{r+3}, 0x20000")
a(f"""
s_load_dwordx2 s[{R_WQ}:{R_WQ+1}], s[0:1], 16
s_load_dwordx2 s[{R_X}:{R_X+1}], s[0:1], 0
s_load_dwordx2 s[{R_WUK}:{R_WUK+1}], s[0:1], 24
s_load_dwordx2 s[{R_CKV}:{R_CKV+1}], s[0:1], 8
s_load_dwordx2 s[{R_WS}:{R_WS+1}], s[0:1], 96
{"s_memrealtime s[94:95]" if DBGT else ""}
s_cmp_ge_u32 s2, 256
s_cbranch_scc1 L_end
{EARLYPF}
v_lshrrev_b32 v{t0}, 6, v0
v_and_b32 v{vL}, 63, v0
v_and_b32 v{vN}, 15, v0
v_readfirstlane_b32 s{sW}, v{t0}
v_bfe_u32 v{vG}, v0, 4, 2
v_lshlrev_b32 v{vL16}, 4, v{vL}
v_lshlrev_b32 v{vWQ}, 16, v{vG}
v_lshl_add_u32 v{vWQ}, v{vN}, 4, v{vWQ}
s_and_b32 s{sX}, s2, 7
s_lshr_b32 s{sYP}, s2, 4
s_and_b32 s{sHA}, s{sYP}, 3
s_lshl2_add_u32 s{sHA}, s{sX}, s{sHA}
s_lshr_b32 s{sJQ}, s{sYP}, 2
s_lshl_b32 s{sT[1]}, s{sHA}, 8
s_and_b32 s{sK}, s{sW}, 3
""")
srdw([(R_WQ, 4 << 20), (R_X, 4096), (R_WUK, 4 << 20)])
a(f"""
s_bitcmp1_b32 s2, 3
s_cbranch_scc1 L_f0
s_cmp_ge_u32 s{sW}, 4
s_cbranch_scc1 L_al0
s_lshl_b32 s{sT[0]}, s{sW}, 20
s_add_u32 s{sT[0]}, s{sT[0]}, s{sT[1]}
""")
wq_kstep(0)
a(f"""
s_branch {"L_j1" if XBAR else "L_j0"}
L_al0:
s_setprio 3
s_lshl_b32 s{sT[2]}, s{sK}, 10
v_lshlrev_b32 v{t0}, 2, v{vL}
v_add_u32 v{t0}, {L_FL}, v{t0}
v_mov_b32 v{t3}, 0
ds_write_b32 v{t0}, v{t3}
v_lshlrev_b32 v{t0}, 3, v{vN}
v_add_u32 v{t0}, {L_MX}, v{t0}
v_mov_b32 v{t2}, 0xff800000
ds_write2_b32 v{t0}, v{t2}, v{t3} offset0:0 offset1:1
s_waitcnt lgkmcnt(0)
buffer_load_dwordx4 {v(XR,4)}, v{vL16}, {srd(R_X)}, s{sT[2]} offen
s_branch L_j0
L_f0:
s_cmp_ge_u32 s{sW}, 4
s_cbranch_scc1 L_f1
v_lshrrev_b32 v{t2}, 1, v{vL}
v_lshlrev_b32 v{t2}, 13, v{t2}
v_and_b32 v{t3}, 1, v{vL}
v_lshl_add_u32 v{t2}, v{t3}, 7, v{t2}
s_lshl2_add_u32 s{sT[6]}, s{sJQ}, s{sW}
s_lshl_b32 s{sT[6]}, s{sT[6]}, 18
s_add_u32 s{sT[6]}, s{sT[6]}, s{sT[1]}
s_waitcnt lgkmcnt(0)
buffer_load_dword v{vDUM+1}, v{t2}, {srd(R_WUK)}, s{sT[6]} offen{P_WQ}
s_branch L_j0
L_f1:
v_lshlrev_b32 v{t0}, 2, v{vL}
v_add_u32 v{t0}, {L_FL}, v{t0}
v_mov_b32 v{t3}, 0
ds_write_b32 v{t0}, v{t3}
v_lshlrev_b32 v{t0}, 3, v{vN}
v_add_u32 v{t0}, {L_MX}, v{t0}
v_mov_b32 v{t2}, 0xff800000
ds_write2_b32 v{t0}, v{t2}, v{t3} offset0:0 offset1:1
s_waitcnt lgkmcnt(0)
L_j0:
s_barrier
L_j1:
""")
if PROF: a(f"v_mov_b32 v{vTSA}, 0")
stamp("start")
a(f"""
s_load_dword s{sEP}, s[{R_WS}:{R_WS+1}], {EPOCH_OFF}
s_load_dwordx2 s[{R_WUV}:{R_WUV+1}], s[0:1], 32
s_load_dwordx2 s[{R_WO}:{R_WO+1}], s[0:1], 40
s_load_dwordx2 s[{R_WG}:{R_WG+1}], s[0:1], 56
s_load_dwordx2 s[{R_WU}:{R_WU+1}], s[0:1], 64
s_load_dwordx2 s[{R_WD}:{R_WD+1}], s[0:1], 72
s_load_dwordx2 s[{R_OUT}:{R_OUT+1}], s[0:1], 80
{"s_load_dwordx2 s[98:99], s[0:1], 88" if DBGT else ""}
{"s_memtime s[96:97]" if DBGT else ""}
v_mov_b32 v{vFL}, {L_FL}
v_mov_b32 v{vONE}, 1
""")
srdw([(R_CKV, 16 << 20), (R_WS, WS_USED), (R_WUV, 4 << 20), (R_WO, 4 << 20),
      (R_WG, 512 * 1376 * 2), (R_WU, 512 * 1376 * 2), (R_WD, 512 * 1376 * 2), (R_OUT, 4096), (R_PF, 86 * 128)])
a(f"""
s_lshr_b32 s{sY}, s2, 3
s_and_b32 s{sT[4]}, s{sY}, 1
s_xor_b32 s{sHGB}, s{sT[4]}, 1
s_lshl_b32 s{sH}, s{sT[4]}, 4
s_lshl1_add_u32 s{sH}, s{sX}, s{sH}
s_and_b32 s{sT[5]}, s{sYP}, 1
s_add_u32 s{sH}, s{sH}, s{sT[5]}
s_bfe_u32 s{sCQ}, s{sY}, 0x20002
s_lshr_b32 s{sMH}, s{sY}, 4
s_lshl4_add_u32 s{sCH}, s{sX}, s{sYP}
s_mov_b32 s{sSELLO}, 0x05040100
s_mov_b32 s{sSELHI}, 0x07060302
s_mov_b32 s{sM4}, 0x000f000f
s_mov_b32 s{sM4+1}, 0x000f000f
s_mov_b32 s{sM8}, 0x00ff00ff
s_mov_b32 s{sM8+1}, 0x00ff00ff
s_mul_i32 s{sPHI}, s{sX}, 11
s_add_u32 s{sPHI}, s{sPHI}, s{sYP}
s_cmp_lt_u32 s{sYP}, 11
s_cselect_b32 s{sISF}, s{sT[4]}, 0
s_cmp_lt_u32 s{sPHI}, 86
s_cselect_b32 s{sISF}, s{sISF}, 0
s_cmp_ge_u32 s{sYP}, 12
s_cselect_b32 s{sISR}, s{sHGB}, 0
s_sub_u32 s{sRHO}, s{sYP}, 12
s_lshl3_add_u32 s{sRHO}, s{sRHO}, s{sX}
s_cmp_ge_u32 s{sW}, 6
s_cbranch_scc1 L_wave67
s_cmp_ge_u32 s{sW}, 4
s_cbranch_scc1 L_wave45
s_setprio 2
s_cmp_eq_u32 s{sHGB}, 0
s_cbranch_scc1 L_freeC
""")

vQPw, vQPr, vQ16w, vQ16r, vQAp = vT[6], vT[7], vT[8], vT[9], vT[10]
a(f"""
s_lshl_b32 s{sT[4]}, s{sW}, 5
s_lshl_b32 s{sT[5]}, s{sJQ}, 7
s_add_u32 s{sT[4]}, s{sT[4]}, s{sT[5]}
s_lshl_b32 s{sT[4]}, s{sT[4]}, 13
s_add_u32 s{sT[4]}, s{sT[4]}, s{sT[1]}
s_add_u32 s{sT[5]}, s{sT[4]}, {16*8192}
v_lshlrev_b32 v{vUK}, 13, v{vN}
v_lshl_add_u32 v{vUK}, v{vG}, 4, v{vUK}
v_and_b32 v{t1}, 3, v{vN}
v_mul_u32_u24 v{t0}, 1040, v{t1}
v_lshl_add_u32 v{t0}, v{vG}, 4, v{t0}
s_lshl_b32 s{sT[6]}, s{sW}, 8
s_add_u32 s{sT[6]}, s{sT[6]}, {L_XN}
v_add_u32 v{t0}, s{sT[6]}, v{t0}
s_lshl_b32 s{sT[6]}, s{sW}, 11
s_add_u32 s{sT[6]}, s{sT[6]}, {L_QP}
v_lshlrev_b32 v{vQPw}, 6, v{vG}
v_lshl_add_u32 v{vQ16r}, v{t1}, 4, v{vQPw}
v_add_u32 v{vQPw}, s{sT[6]}, v{vQ16r}
v_add_u32 v{vQ16r}, {L_Q16}, v{vQ16r}
s_lshl_b32 s{sT[6]}, s{sW}, 9
s_add_u32 s{sT[6]}, s{sT[6]}, {L_QP}
v_lshlrev_b32 v{vQPr}, 2, v{vL}
v_add_u32 v{vQPr}, s{sT[6]}, v{vQPr}
v_lshlrev_b32 v{vQ16w}, 6, v{t1}
v_and_b32 v{t2}, 12, v{vL}
v_lshl_add_u32 v{vQ16w}, v{t2}, 2, v{vQ16w}
v_lshl_add_u32 v{vQ16w}, v{vG}, 8, v{vQ16w}
s_lshl_b32 s{sT[6]}, s{sW}, 2
s_add_u32 s{sT[6]}, s{sT[6]}, {L_Q16}
v_add_u32 v{vQ16w}, s{sT[6]}, v{vQ16w}
v_lshlrev_b32 v{vQAp}, 16, v{t1}
v_lshl_add_u32 v{vQAp}, v{vG}, 4, v{vQAp}
v_bfe_u32 v{t2}, v{vN}, 2, 1
v_lshl_add_u32 v{vQAp}, v{t2}, 6, v{vQAp}
v_cmp_eq_u32 s[{sC2}:{sC2+1}], 1, v{t2}
s_lshl_b32 s{sT[6]}, s{sHA}, 11
s_lshl_b32 s{sT[7]}, s{sJQ}, 9
s_add_u32 s{sT[6]}, s{sT[6]}, s{sT[7]}
s_lshl_b32 s{sT[7]}, s{sW}, 7
s_add_u32 s{sT[6]}, s{sT[6]}, s{sT[7]}
s_add_u32 s{sT[6]}, s{sT[6]}, {QA_OFF}
s_mov_b32 s{sT[7]}, {f32(math.log2(math.e) / math.sqrt(128.0))}
""")
for u in range(4):
    a(f"""
    s_add_u32 s{sT[2]}, s{sJQ}, {u}
    s_and_b32 s{sT[2]}, s{sT[2]}, 3
    s_lshl_b32 s{sT[2]}, s{sT[2]}, 6
    v_add_u32 v{vT[11+u]}, s{sT[2]}, v{t0}
    """)
ILV = opt("ilv", 3)
def spec_xn():
    for u in range(4):
        a(f"ds_read_b128 {v(BX+4*u,4)}, v{vT[11+u]}")
for u in range(1, ILV): wq_kstep(u)
lds_wait(F_XN, 4, spec_xn)
a(f"s_add_u32 s{sEP}, s{sEP}, 1")
pend = [wq_lines(u) for u in range(ILV, 4)] + [uk_lines()]
if ILV == 4: pend = [None] + pend
issued = ILV
for u in range(4):
    a(f"s_waitcnt vmcnt({(issued - u - 1) * 8})")
    ex = pend[u] if u < len(pend) else None
    q_kstep(u, ex)
    if ex:
        issued += 1
        if issued == 5:
            lds_signal(F_WQI)
            stamp("wq issued")
stamp("q partial")
a(f"s_mov_b64 exec, s[{sM4}:{sM4+1}]")
for jj in range(8):
    a(f"ds_write_b128 v{vQPw}, {v(AC+4*jj,4)} offset:{256*jj}")
lds_signal(F_QP)
def spec_qp():
    for k in range(4):
        a(f"ds_read2st64_b32 {v(FR+2*k,2)}, v{vQPr} offset0:{8*k} offset1:{8*k+1}")
lds_wait(F_QP, 4, spec_qp)
stamp("qp done")
a(f"""
v_add_f32 v{FR}, v{FR}, v{FR+2}
v_add_f32 v{FR+1}, v{FR+1}, v{FR+3}
v_add_f32 v{FR+4}, v{FR+4}, v{FR+6}
v_add_f32 v{FR+5}, v{FR+5}, v{FR+7}
v_add_f32 v{FR}, v{FR}, v{FR+4}
v_add_f32 v{FR+1}, v{FR+1}, v{FR+5}
v_cvt_pk_bf16_f32 v{FR}, v{FR}, v{FR+1}
ds_write_b32 v{vQ16w}, v{FR}
""")
lds_signal(F_Q16)
a(f"v_mov_b32 v{AC+9}, s{sEP}")
a(f"v_mov_b32 v{AC+11}, s{sEP}")
def spec_q16():
    a(f"ds_read_b32 v{t3}, v{vFL} offset:{F_CLR}")
    for t in range(4):
        a(f"ds_read_b128 {v(FR+8+4*t,4)}, v{vQ16r} offset:{256*t}")
lds_wait(F_Q16, 4, spec_q16)
stamp("q16 done")
a("s_waitcnt vmcnt(0)")
stamp("uk landed")
for t in range(4):
    for mt in range(2):
        mfma(AC+4*mt, UK+16*mt+4*t, FR+8+4*t, t == 0)
a(f"""
v_readfirstlane_b32 s{sACC}, v{t3}
s_cmp_ge_u32 s{sACC}, 2
s_cbranch_scc1 L_clrok
""")
lds_wait(F_CLR, 2)
a("L_clrok:")
for r in range(4):
    a(f"v_cndmask_b32 v{AC+r}, v{AC+r}, v{AC+4+r}, s[{sC2}:{sC2+1}]")
for r in range(4):
    a(f"v_mul_f32 v{AC+r}, s{sT[7]}, v{AC+r}")
a(f"""
v_cvt_pk_bf16_f32 v{AC+8}, v{AC}, v{AC+1}
v_cvt_pk_bf16_f32 v{AC+10}, v{AC+2}, v{AC+3}
s_mov_b64 exec, s[{sM8}:{sM8+1}]
buffer_store_dwordx4 {v(AC+8,4)}, v{vQAp}, {srd(R_WS)}, s{sT[6]} offen sc1
s_mov_b64 exec, -1
""")
stamp("q_abs published")
a("s_branch L_phaseB")

a("L_freeC:")
if UKGATE:
    a("s_waitcnt vmcnt(0)")
    lds_signal(F_WQI)
lds_wait(F_CLR, 2, sleep=4)
a(f"s_add_u32 s{sEP}, s{sEP}, 1")

a("L_phaseB:")
QF, SA0, SA1, SD, vM = 32, 96, 160, 224, 232
vX0 = vT[4]
vMX, vPw, vPr, vC, vTF, vPV, vO = vT[8], vT[9], vT[10], vT[11], vT[12], vT[13], vT[14]
vSA = vT[15]
a(f"""
v_lshrrev_b32 v{t0}, 3, v{vN}
v_lshlrev_b32 v{t1}, 2, v{t0}
v_and_b32 v{t2}, 7, v{vN}
v_xor_b32 v{t2}, v{t2}, v{t1}
v_lshl_add_u32 v{t2}, v{t2}, 1, v{t0}
v_xor_b32 v{t2}, v{t2}, v{vG}
v_lshlrev_b32 v{t2}, 4, v{t2}
v_lshl_add_u32 v{t2}, v{vN}, 10, v{t2}
s_lshl_b32 s{sT[0]}, s{sW}, 15
v_add_u32 v{vSA}, s{sT[0]}, v{t2}
v_add_u32 v{vX0}, {L_QS}, v{t2}
""")
for tt in range(1, 4):
    a(f"v_xor_b32 v{vSA+tt}, {64*tt}, v{vSA}")
    a(f"v_xor_b32 v{vX0+tt}, {64*tt}, v{vX0}")
a(f"""
s_lshl_b32 s{sT[1]}, s{sW}, 3
v_add_u32 v{vTF}, s{sT[1]}, v{vFL}
v_bfe_u32 v{t0}, v{vL}, 2, 4
v_lshrrev_b32 v{t1}, 3, v{t0}
v_lshlrev_b32 v{t2}, 2, v{t1}
v_and_b32 v{t3}, 7, v{t0}
v_xor_b32 v{t3}, v{t3}, v{t2}
v_lshl_add_u32 v{t3}, v{t3}, 1, v{t1}
v_bfe_u32 v{t1}, v{vL}, 1, 1
v_xor_b32 v{t3}, v{t3}, v{t1}
v_lshlrev_b32 v{t3}, 4, v{t3}
v_and_b32 v{t1}, 1, v{vL}
v_lshl_add_u32 v{t3}, v{t1}, 3, v{t3}
v_lshl_add_u32 v{t3}, v{t0}, 10, v{t3}
s_lshl_b32 s{sT[0]}, s{sW}, 8
v_add_u32 v{vPV}, s{sT[0]}, v{t3}
v_and_b32 v{t0}, 1, v{vG}
v_lshlrev_b32 v{t0}, 5, v{t0}
v_lshrrev_b32 v{t1}, 1, v{vG}
v_lshl_add_u32 v{t0}, v{t1}, 4, v{t0}
v_and_b32 v{t1}, 7, v{vN}
v_lshl_add_u32 v{vO}, v{t1}, 17, v{t0}
v_lshrrev_b32 v{t1}, 3, v{vN}
v_lshl_add_u32 v{vO}, v{t1}, 6, v{vO}
s_lshl_b32 s{sO}, s{sHGB}, 21
s_lshl_b32 s{sT[4]}, s{sCH}, 8
s_add_u32 s{sO}, s{sO}, s{sT[4]}
s_lshl_b32 s{sT[4]}, s{sW}, 15
s_add_u32 s{sO}, s{sO}, s{sT[4]}
s_add_u32 s{sO}, s{sO}, {O_OFF}
s_add_u32 s{sT[3]}, s{sO}, {8 << 17}
v_lshlrev_b32 v{vMX}, 3, v{vN}
v_add_u32 v{vMX}, {L_MX}, v{vMX}
s_lshl_b32 s{sT[0]}, s{sW}, 10
s_add_u32 s{sT[0]}, s{sT[0]}, {L_PX}
v_add_u32 v{vPw}, s{sT[0]}, v{vL16}
v_add_u32 v{vPr}, {L_PX}, v{vL16}
""")
PAD = list(range(240, 256))
for mt in range(8):
    a(f"v_xor_b32 v{PAD[mt]}, {32*mt}, v{vPV}")
    a(f"v_add_u32 v{PAD[8+mt]}, 0x10000, v{PAD[mt]}")
def sa_read(k, t):
    a(f"ds_read_b128 {v((SA1 if k else SA0)+4*t,4)}, v{vSA+(t&3)} offset:{16384*k+(t>>2)*256}")
def qf_read(t):
    a(f"ds_read_b128 {v(QF+4*t,4)}, v{vX0+(t&3)} offset:{(t>>2)*256}")
GQ = 64
vQa, vQb, vQw, vEP = 236, 237, 238, 239
a(f"""
v_lshlrev_b32 v{vQa}, 4, v0
v_add_u32 v{vQb}, 16384, v{vQa}
s_lshr_b32 s{sT[6]}, s{sCH}, 5
s_lshl_b32 s{sT[6]}, s{sT[6]}, 1
s_add_u32 s{sT[6]}, s{sT[6]}, s{sHGB}
s_lshl_b32 s{sT[6]}, s{sT[6]}, 15
s_add_u32 s{sT[6]}, s{sT[6]}, {QA_OFF}
s_add_u32 s{sT[7]}, s{sT[6]}, 4096
s_add_u32 s{sT[8]}, s{sT[6]}, 8192
s_add_u32 s{sT[9]}, s{sT[6]}, 12288
v_and_b32 v{vQw}, 127, v0
v_lshlrev_b32 v{vQw}, 3, v{vQw}
s_lshr_b32 s{sT[10]}, s{sW}, 1
s_lshl_b32 s{sT[5]}, s{sT[10]}, 5
v_xor_b32 v{vQw}, s{sT[5]}, v{vQw}
s_lshl_b32 s{sT[10]}, s{sT[10]}, 10
s_add_u32 s{sT[10]}, s{sT[10]}, {L_QS}
v_add_u32 v{vQw}, s{sT[10]}, v{vQw}
v_mov_b32 v{vEP}, s{sEP}
s_mov_b32 s{sT[2]}, 0
""")
def qa_loads():
    for i in range(8):
        a(f"buffer_load_dwordx4 {v(GQ+4*i,4)}, v{vQb if i >= 4 else vQa}, {srd(R_WS)}, s{sT[6+(i&3)]} offen sc1")
def try_tile1(tag):
    a(f"""
    ds_read_b32 v{t0}, v{vTF} offset:{F_TILE+4}
    s_waitcnt lgkmcnt(0)
    v_readfirstlane_b32 s{sACC+1}, v{t0}
    s_cmp_le_u32 s{sACC+1}, s{sT[2]}
    s_cbranch_scc1 L_nt1{tag}
    s_mov_b32 s{sT[2]}, 1
    """)
    for t in range(16): sa_read(1, t)
    a(f"L_nt1{tag}:")
sPM = sT[10]
def qa_load(i):
    a(f"buffer_load_dwordx4 {v(GQ+4*i,4)}, v{vQb if i >= 4 else vQa}, {srd(R_WS)}, s{sT[6+(i&3)]} offen sc1")
def qa_check(i):
    a(f"v_xor_b32 v{t2}, v{GQ+4*i+1}, v{vEP}")
    if i: a(f"v_xor_b32 v{t3}, {(fsw(2*i) << 4) | (i << 11)}, v{vQw}")
    a(f"v_bitop3_b32 v{t2}, v{t2}, v{GQ+4*i+3}, v{vEP} bitop3:0xf6")
    a(f"ds_write2_b32 v{t3 if i else vQw}, v{GQ+4*i}, v{GQ+4*i+2} offset0:0 offset1:1")
    a(f"v_cmp_ne_u32 vcc, 0, v{t2}")
    a("s_cmp_lg_u64 vcc, 0")
QORD = opt("qord", 1)
if QORD == 0:
    lds_wait(F_TILE, 1, base=vTF, sleep=1)
    for t in range(16): sa_read(0, t)
else:
    a(f"""
    s_cmp_eq_u32 s{sHGB}, 1
    s_cbranch_scc1 L_not0
    """)
    lds_wait(F_TILE, 1, base=vTF, sleep=1)
    for t in range(16): sa_read(0, t)
    a("L_not0:")
if opt("qack", 1): a("s_waitcnt vmcnt(0)")
lds_wait(F_GO, 4 if opt("rcoop", 0) == 2 else 2, sleep=1)
stamp("QA trigger")
for i in range(8): qa_load(i)
lds_signal(F_QI)
if QORD:
    a(f"""
    s_cmp_eq_u32 s{sHGB}, 0
    s_cbranch_scc1 L_t0d
    """)
    lds_wait(F_TILE, 1, base=vTF)
    for t in range(16): sa_read(0, t)
    a("L_t0d:")
lds_wait(F_TILE + 4, 1, base=vTF)
for t in range(16): sa_read(1, t)
a(f"s_mov_b32 s{sPM}, 0")
for i in range(8):
    a(f"s_waitcnt vmcnt({7-i})")
    qa_check(i)
    a(f"s_addc_u32 s{sPM}, s{sPM}, s{sPM}")
a(f"""
s_mov_b32 s{sCNT}, 0
s_cmp_eq_u32 s{sPM}, 0
s_cbranch_scc1 L_qdone
L_qretry:
s_sleep {QSLEEP}
""")
for i in range(8):
    sk = a.newlabel("Lq")
    a(f"s_bitcmp1_b32 s{sPM}, {7-i}")
    a(f"s_cbranch_scc0 {sk}")
    qa_load(i)
    a(f"{sk}:")
a("s_waitcnt vmcnt(0)")
for i in range(8):
    sk = a.newlabel("Lq")
    a(f"s_bitcmp1_b32 s{sPM}, {7-i}")
    a(f"s_cbranch_scc0 {sk}")
    qa_check(i)
    a(f"s_cbranch_scc1 {sk}")
    a(f"s_bitset0_b32 s{sPM}, {7-i}")
    a(f"{sk}:")
a(f"""
s_add_u32 s{sCNT}, s{sCNT}, 1
s_cmp_eq_u32 s{sPM}, 0
s_cbranch_scc1 L_qdone
s_cmp_lt_u32 s{sCNT}, {POLL_MAX}
s_cbranch_scc1 L_qretry
L_qdone:
""")
lds_signal(F_QS)
cstamp("qa retries")
stamp("q_abs gathered")
def spec_qf():
    for t in range(4): qf_read(t)
lds_wait(F_QS, 4, spec_qf)
stamp("Q ready")
for t in range(4, 16): qf_read(t)
PB, OD, OS, ON = 32, 48, 80, 224
def pva(mt, u):
    k = (mt >> 2) * 16 + u * 4 + (mt & 3)
    return (SA1 if k & 1 else SA0) + 4 * (k >> 1)
def pv_read_k(k):
    mt, u = (k >> 4) * 4 + (k & 3), (k >> 2) & 3
    for vv in range(2):
        tile = 2 * u + vv
        ad = PAD[mt] if tile < 4 else PAD[8 + mt]
        a(f"ds_read_b64_tr_b16 {v(pva(mt, u)+2*vv,2)}, v{ad} offset:{(tile&3)*16384}")
LAG = opt("lag", 2)
ntr = 0
for t in range(16):
    if t >= 4: a(f"s_waitcnt lgkmcnt({min(15, 15 - t + ntr)})")
    mfma(SD, SA0+4*t, QF+4*t, t == 0)
    if t >= LAG: pv_read_k(2 * (t - LAG)); ntr += 2
    mfma(SD+4, SA1+4*t, QF+4*t, t == 0)
    if t >= LAG: pv_read_k(2 * (t - LAG) + 1); ntr += 2
rem = list(range(2 * (16 - LAG), 32))
for k in rem[:2]: pv_read_k(k)
a(f"""
v_max3_f32 v{t1}, v{SD}, v{SD+1}, v{SD+2}
v_max3_f32 v{t2}, v{SD+3}, v{SD+4}, v{SD+5}
v_max3_f32 v{t1}, v{t1}, v{SD+6}, v{SD+7}
v_max_f32 v{t1}, v{t1}, v{t2}
v_ceil_f32 v{vC}, v{t1}
ds_max_f32 v{vMX}, v{vC}
ds_add_u32 v{vMX}, v{vONE} offset:4
ds_read_b64 {v(vM,2)}, v{vMX}
""")
for k in rem[2:]: pv_read_k(k)
for r in range(8): a(f"v_sub_f32 v{SD+r}, v{SD+r}, v{vC}")
for r in range(8): a(f"v_exp_f32 v{SD+r}, v{SD+r}")
lp, dn, ck = a.newlabel("Lm"), a.newlabel("Lmd"), a.newlabel("Lmc")
a(f"s_mov_b32 s{sCNT}, 0")
a(f"s_waitcnt lgkmcnt({min(15, 2 * len(rem[2:]))})")
a(f"s_branch {ck}")
a.label(lp)
a(f"ds_read_b64 {v(vM,2)}, v{vMX}")
a("s_waitcnt lgkmcnt(0)")
a.label(ck)
a(f"""
v_cmp_ne_u32 vcc, 16, v{vM+1}
v_sub_f32 v{t1}, v{vC}, v{vM}
s_cmp_eq_u64 vcc, 0
s_cbranch_scc1 {dn}
s_add_u32 s{sCNT}, s{sCNT}, 1
s_cmp_lt_u32 s{sCNT}, {LSPIN_MAX}
s_cbranch_scc1 {lp}
""")
a.label(dn)
stamp("S done")
a(f"v_exp_f32 v{t1}, v{t1}")
for r in range(8): a(f"v_mul_f32 v{SD+r}, v{SD+r}, v{t1}")
for k in range(4): a(f"v_cvt_pk_bf16_f32 v{PB+k}, v{SD+2*k}, v{SD+2*k+1}")
a(f"ds_write_b128 v{vPw}, {v(PB,4)}")
lds_signal(F_P)
def spec_p():
    for u in range(4):
        a(f"ds_read_b128 {v(PB+4*u,4)}, v{vPr} offset:{1024*u}")
    for i in range(4): a(f"v_mov_b32 v{ON+i}, 0x3f803f80")
lds_wait(F_P, 4, spec_p)
lds_signal(F_BD)
stamp("P done")
for u in range(4):
    for mt in range(4):
        mfma(OD+4*mt, pva(mt, u), PB+4*u, u == 0)
CK = vM + 2
def epilogue(pp):
    L = []
    for p in (2 * pp, 2 * pp + 1):
        for k in range(2):
            mt = 2 * p + k
            L.append(f"v_cvt_pk_bf16_f32 v{OS+2*mt}, v{OD+4*mt}, v{OD+4*mt+1}")
            L.append(f"v_cvt_pk_bf16_f32 v{OS+2*mt+1}, v{OD+4*mt+2}, v{OD+4*mt+3}")
    for p in (2 * pp, 2 * pp + 1):
        L.append(f"v_permlane16_swap_b32 v{OS+4*p}, v{OS+4*p+2}")
        L.append(f"v_permlane16_swap_b32 v{OS+4*p+1}, v{OS+4*p+3}")
    X, Y, T = OS + 8 * pp, OS + 8 * pp + 4, OD + 16 * pp
    for d in range(4): L.append(f"v_mov_b32 v{T+d}, v{X+d}")
    for d in range(4): L.append(f"v_mov_b32 v{T+4+d}, v{Y+d}")
    for d in range(4): L.append(f"v_mov_b32_dpp v{T+d}, v{Y+d} row_ror:8 row_mask:0xf bank_mask:0xc")
    L.append(f"buffer_store_dwordx4 {v(T,4)}, v{vO}, {srd(R_WS)}, s{sO} offen offset:{128*pp} sc1")
    for d in range(4): L.append(f"v_mov_b32_dpp v{T+4+d}, v{X+d} row_ror:8 row_mask:0xf bank_mask:0x3")
    L.append(f"buffer_store_dwordx4 {v(T+4,4)}, v{vO}, {srd(R_WS)}, s{sT[3]} offen offset:{128*pp} sc1")
    for k in range(0, 8, 2):
        if pp == 0 and k == 0: L.append(f"v_add_u32 v{CK}, v{X}, v{X+1}")
        else: L.append(f"v_add3_u32 v{CK}, v{CK}, v{X+k}, v{X+k+1}")
    return L
E0 = epilogue(0)
idx = 0
for u in range(4):
    for mt in range(4, 8):
        mfma(OD+4*mt, pva(mt, u), PB+4*u, u == 0)
        if u * 4 + (mt - 4) >= 2:
            for l in E0[idx:idx+2]: a(l)
            idx += 2
for u in range(4):
    mfma(ON+4, ON, PB+4*u, u == 0)
    for l in E0[idx:idx+2]: a(l)
    idx += 2
for l in E0[idx:]: a(l)
stamp("PV done")
for l in epilogue(1): a(l)
a(f"""
s_lshl_b32 s{sT[4]}, s{sHGB}, 7
s_add_u32 s{sT[4]}, s{sT[4]}, s{sCH}
s_lshl_b32 s{sT[4]}, s{sT[4]}, 2
s_add_u32 s{sT[4]}, s{sT[4]}, s{sW}
s_lshl_b32 s{sT[4]}, s{sT[4]}, 8
s_add_u32 s{sT[4]}, s{sT[4]}, {ML_OFF}
v_mov_b32 v{t0}, v{CK}
v_mov_b32 v{vM+1}, v{ON+4}
v_permlane32_swap_b32 v{CK}, v{t0}
v_add_u32 v{CK}, v{CK}, v{t0}
v_mov_b32 v{t0}, v{CK}
v_xor_b32 v{t1}, s{sEP}, v{vM}
v_permlane16_swap_b32 v{CK}, v{t0}
v_add3_u32 v{CK}, v{CK}, v{t0}, s{sEP}
v_xor_b32 v{vM+3}, v{t1}, v{vM+1}
s_mov_b64 exec, 0xffff
buffer_store_dwordx4 {v(vM,4)}, v{vL16}, {srd(R_WS)}, s{sT[4]} offen sc1
s_mov_b64 exec, -1
""")
stamp("O published")

HD, HM, MK, AW, CD = 32, 64, 72, 76, 84
mM, wA, wB, wb, ckS, ckE, vCLw, vHd2 = vT[4], vT[5], vT[6], vT[7], vT[8], vT[9], vT[10], vT[11]
a(f"""
v_lshlrev_b32 v{t0}, 8, v{vG}
v_lshl_add_u32 v{t0}, v{vN}, 4, v{t0}
v_add_u32 v{vHd2}, 4096, v{t0}
s_lshl_b32 s{sT[0]}, s{sH}, 2
s_add_u32 s{sT[0]}, s{sT[0]}, s{sCQ}
s_lshl_b32 s{sT[0]}, s{sT[0]}, 15
s_lshl_b32 s{sT[2]}, s{sW}, 13
s_add_u32 s{sT[0]}, s{sT[0]}, s{sT[2]}
s_add_u32 s{sT[0]}, s{sT[0]}, {O_OFF}
v_and_b32 v{t1}, 7, v{vN}
v_lshrrev_b32 v{t2}, 3, v{vN}
v_xor_b32 v{t2}, v{t2}, v{vG}
v_lshl_add_u32 v{t1}, v{t1}, 2, v{t2}
v_lshlrev_b32 v{t1}, 10, v{t1}
v_xor_b32 v{t2}, 2048, v{t1}
s_lshr_b32 s{sT[4]}, s{sH}, 4
s_lshl_b32 s{sT[4]}, s{sT[4]}, 2
s_add_u32 s{sT[4]}, s{sT[4]}, s{sW}
s_lshl_b32 s{sT[4]}, s{sT[4]}, 15
s_and_b32 s{sT[5]}, s{sH}, 15
s_lshl_b32 s{sT[5]}, s{sT[5]}, 4
s_add_u32 s{sT[4]}, s{sT[4]}, s{sT[5]}
s_lshl_b32 s{sT[5]}, s{sCQ}, 8
s_add_u32 s{sT[4]}, s{sT[4]}, s{sT[5]}
s_add_u32 s{sT[4]}, s{sT[4]}, {ML_OFF}
v_and_b32 v{t3}, 1, v{vN}
v_lshlrev_b32 v{t3}, 4, v{t3}
v_mov_b32 v{mM}, 0xffff
v_lshlrev_b32 v{t3}, v{t3}, v{mM}
v_lshrrev_b32 v{mM}, 1, v{vN}
""")
for d in range(4):
    a(f"v_cmp_eq_u32 vcc, {d}, v{mM}")
    a(f"v_cndmask_b32 v{MK+d}, 0, v{t3}, vcc")
a(f"""
s_mul_i32 s{sT[5]}, s{sW}, 272
s_add_u32 s{sT[5]}, s{sT[5]}, {L_CL}
v_lshlrev_b32 v{vCLw}, 4, v{vN}
v_lshl_add_u32 v{vCLw}, v{vG}, 3, v{vCLw}
v_add_u32 v{vCLw}, s{sT[5]}, v{vCLw}
s_mov_b32 s{sT[6]}, 0x03020302
""")
if OACK: a("s_waitcnt vmcnt(0)")
stamp("O acked")
KTH = opt("kth", 4)
a(f"""
s_mov_b32 s{sCNT}, 0
s_mov_b64 exec, s[{sM8}:{sM8+1}]
L_pollm:
buffer_load_dwordx4 {v(HM,4)}, v{t1}, {srd(R_WS)}, s{sT[4]} offen sc1
s_waitcnt vmcnt(0)
v_bitop3_b32 v{ckE}, v{HM}, v{HM+1}, v{HM+3} bitop3:0x96
v_cmp_ne_u32 vcc, s{sEP}, v{ckE}
s_bcnt1_i32_b64 s{sACC}, vcc
s_cmp_le_u32 s{sACC}, {KTH}
s_cbranch_scc1 L_pollmd
s_mov_b64 exec, vcc
s_sleep {MLSLEEP}
s_add_u32 s{sCNT}, s{sCNT}, 1
s_cmp_lt_u32 s{sCNT}, {POLL_MAX}
s_cbranch_scc1 L_pollm
L_pollmd:
s_mov_b64 exec, -1
""")
cstamp("ml retries")
stamp("ML ok")
a(f"""
s_mov_b32 s{sCNT}, 0
L_pollc:
buffer_load_dwordx4 {v(HM,4)}, v{t1}, {srd(R_WS)}, s{sT[4]} offen sc1
buffer_load_dwordx4 {v(HM+4,4)}, v{t2}, {srd(R_WS)}, s{sT[4]} offen sc1
""")
for t in range(8):
    a(f"buffer_load_dwordx4 {v(HD+4*t,4)}, v{vHd2 if t >= 4 else t0}, {srd(R_WS)}, s{sT[0]} offen offset:{1024*(t&3)} sc1")
a(f"""
s_waitcnt vmcnt(8)
v_bitop3_b32 v{ckE}, v{HM}, v{HM+1}, v{HM+3} bitop3:0x96
v_bitop3_b32 v{t3}, v{HM+4}, v{HM+5}, v{HM+7} bitop3:0x96
v_cmp_ne_u32 vcc, s{sEP}, v{ckE}
v_cmp_ne_u32 s[{sACC}:{sACC+1}], s{sEP}, v{t3}
s_or_b64 vcc, s[{sACC}:{sACC+1}], vcc
s_cbranch_scc0 L_entok
s_waitcnt vmcnt(0)
s_add_u32 s{sCNT}, s{sCNT}, 1
s_cmp_lt_u32 s{sCNT}, {POLL_MAX}
s_cbranch_scc1 L_pollc
L_entok:
""")
a(f"""
v_max_f32 v{mM}, v{HM}, v{HM+4}
v_max_f32_dpp v{mM}, v{mM}, v{mM} row_ror:1 row_mask:0xf bank_mask:0xf
v_max_f32_dpp v{mM}, v{mM}, v{mM} row_ror:2 row_mask:0xf bank_mask:0xf
v_sub_u32 v{ckS}, s{sEP}, v{HM+2}
v_max_f32_dpp v{mM}, v{mM}, v{mM} row_ror:4 row_mask:0xf bank_mask:0xf
v_cndmask_b32 v{ckS}, 0, v{ckS}, s[{sM8}:{sM8+1}]
v_max_f32_dpp v{mM}, v{mM}, v{mM} row_ror:8 row_mask:0xf bank_mask:0xf
v_sub_f32 v{wA}, v{HM}, v{mM}
v_sub_f32 v{wB}, v{HM+4}, v{mM}
v_exp_f32 v{wA}, v{wA}
v_exp_f32 v{wB}, v{wB}
v_perm_b32 v{wb}, v{wA}, v{wA}, s{sT[6]}
v_mul_f32 v{wA}, v{wA}, v{HM+1}
v_fmac_f32 v{wA}, v{wB}, v{HM+5}
""")
sfts = [1, 2, 4, 8]
for t in range(8):
    aw = AW + 4 * (t & 1)
    for d in range(4):
        a(f"v_and_b32_dpp v{aw+d}, v{wb}, v{MK+d} row_newbcast:{t} row_mask:0xf bank_mask:0xf")
    if t < 4:
        a(f"v_add_f32_dpp v{wA}, v{wA}, v{wA} row_ror:{sfts[t]} row_mask:0xf bank_mask:0xf")
    if t == 4:
        a(f"v_rcp_f32 v{wA}, v{wA}")
    a(f"s_waitcnt vmcnt({7-t})")
    a(f"v_add3_u32 v{ckS}, v{ckS}, v{HD+4*t}, v{HD+4*t+1}")
    mfma(CD, aw, HD+4*t, t == 0)
    a(f"v_add3_u32 v{ckS}, v{ckS}, v{HD+4*t+2}, v{HD+4*t+3}")
for sft in sfts:
    a(f"v_add_u32_dpp v{ckS}, v{ckS}, v{ckS} row_ror:{sft} row_mask:0xf bank_mask:0xf")
a(f"v_cmp_ne_u32 vcc, 0, v{ckS}")
for r in range(4): a(f"v_mul_f32 v{CD+r}, v{CD+r}, v{wA}")
a(f"v_cvt_pk_bf16_f32 v{CD+4}, v{CD}, v{CD+1}")
a(f"v_cvt_pk_bf16_f32 v{CD+5}, v{CD+2}, v{CD+3}")
poll_tail("L_pollc")
cstamp("o retries")
a(f"""
s_mov_b32 exec_hi, 0
ds_write_b64 v{vCLw}, {v(CD+4,2)}
s_mov_b64 exec, 1
ds_add_u32 v{vFL}, v{vONE} offset:{F_CL}
s_mov_b64 exec, -1
s_setprio 0
""")
stamp("combined")
a(f"""
s_cmp_eq_u32 s{sISF}, 1
s_cbranch_scc1 L_ffn
s_cmp_eq_u32 s{sISR}, 0
s_cbranch_scc1 L_fin
""")

SEL, RD, RA, RS, vH = 96, 100, 116, 120, 128
vMo, vXv = vT[4], vT[5]
for d in range(4): a(f"v_and_b32 v{SEL+d}, 0x3f803f80, v{MK+d}")
a(f"""
v_and_b32 v{t0}, 0x23, v{vL}
v_bfe_u32 v{t1}, v{vL}, 2, 1
v_lshl_add_u32 v{t0}, v{t1}, 4, v{t0}
v_bfe_u32 v{t1}, v{vL}, 3, 2
v_lshl_add_u32 v{t0}, v{t1}, 2, v{t0}
v_lshlrev_b32 v{vMo}, 1, v{t0}
s_lshl_b32 s{sT[0]}, s{sRHO}, 7
buffer_load_ushort v{vXv}, v{vMo}, {srd(R_X)}, s{sT[0]} offen
v_lshlrev_b32 v{t0}, 4, v0
s_lshl_b32 s{sT[1]}, s{sRHO}, 14
s_add_u32 s{sT[1]}, s{sT[1]}, {PA_OFF}
s_add_u32 s{sT[2]}, s{sT[1]}, 4096
s_add_u32 s{sT[3]}, s{sT[1]}, 8192
s_add_u32 s{sT[4]}, s{sT[1]}, 12288
s_lshl_b32 s{sT[5]}, s{sW}, 8
s_add_u32 s{sT[5]}, s{sT[5]}, {L_RED}
v_lshlrev_b32 v{t1}, 5, v{vN}
v_lshl_add_u32 v{t1}, v{vG}, 4, v{t1}
v_add_u32 v{t1}, s{sT[5]}, v{t1}
v_lshlrev_b32 v{t2}, 2, v{vL}
v_add_u32 v{t2}, {L_RED}, v{t2}
s_mul_i32 s{sT[5]}, s{sRHO}, 12288
s_add_u32 s{sT[5]}, s{sT[5]}, {PF_OFF}
s_add_u32 s{R_PF}, s{R_WS}, s{sT[5]}
s_addc_u32 s{R_PF+1}, s{R_WS+1}, 0
s_mov_b32 s{sT[6]}, 4096
s_mov_b32 s{sT[7]}, 8192
s_waitcnt vmcnt(0)
s_barrier
""")
def reduce_inbox(name, rs, sos):
    a(f"s_mov_b32 s{sCNT}, 0")
    a.label(name)
    for i, so in enumerate(sos):
        a(f"buffer_load_dwordx4 {v(RD+4*i,4)}, v{t0}, {srd(rs)}, {so} offen sc1")
    n = len(sos)
    for i in range(n):
        a(f"s_waitcnt vmcnt({n-1-i})")
        if i == 0: a(f"v_max3_u32 v{t3}, v{RD}, v{RD+1}, v{RD+2}")
        else: a(f"v_max3_u32 v{t3}, v{t3}, v{RD+4*i}, v{RD+4*i+1}")
        mfma(RA, SEL, RD+4*i, i == 0)
        if i == 0: a(f"v_max_u32 v{t3}, v{t3}, v{RD+3}")
        else: a(f"v_max3_u32 v{t3}, v{t3}, v{RD+4*i+2}, v{RD+4*i+3}")
    a(f"v_cmp_eq_u32 vcc, -1, v{t3}")
    poll_tail(name)
    for r in range(4):
        a(f"v_add_f32_dpp v{RA+r}, v{RA+r}, v{RA+r} row_ror:8 row_mask:0xf bank_mask:0xf")
    a(f"""
    s_mov_b64 exec, 0x00ff00ff
    ds_write_b128 v{t1}, {v(RA,4)}
    s_mov_b64 exec, -1
    s_waitcnt lgkmcnt(0)
    s_barrier
    """)
def final_sum():
    for k in range(2):
        a(f"ds_read2st64_b32 {v(RS+2*k,2)}, v{t2} offset0:{2*k} offset1:{2*k+1}")
    a("s_waitcnt lgkmcnt(0)")
    a(f"v_add_f32 v{RS}, v{RS}, v{RS+1}")
    a(f"v_add_f32 v{RS+2}, v{RS+2}, v{RS+3}")
    a(f"v_add_f32 v{RS}, v{RS}, v{RS+2}")
def pack_store(val, rs, so, pol):
    P = RS + 4
    a(f"v_mov_b32_dpp v{RS+2}, v{val} quad_perm:[1,1,3,3] row_mask:0xf bank_mask:0xf")
    a(f"v_cvt_pk_bf16_f32 v{P}, v{val}, v{RS+2}")
    a(f"v_mov_b32_dpp v{P+1}, v{P} quad_perm:[2,2,2,2] row_mask:0xf bank_mask:0xf")
    a(f"v_mov_b32_dpp v{P+2}, v{P} row_shl:8 row_mask:0xf bank_mask:0xf")
    a(f"v_mov_b32_dpp v{P+3}, v{P+1} row_shl:8 row_mask:0xf bank_mask:0xf")
    a(f"""
    s_mov_b32 exec_lo, 0x00110011
    s_mov_b32 exec_hi, 0x00110011
    buffer_store_dwordx4 {v(P,4)}, v{vMo}, {srd(rs)}, {so} offen{pol}
    s_mov_b64 exec, -1
    """)
reduce_inbox("L_pollr1", R_WS, [f"s{sT[1+i]}" for i in range(4)])
stamp("R1 gathered")
a(f"""
s_cmp_lg_u32 s{sW}, 0
s_cbranch_scc1 L_r1skip
""")
final_sum()
rne_bf16(RS, RS)
a(f"v_lshlrev_b32 v{vXv}, 16, v{vXv}")
a(f"v_add_f32 v{vH}, v{RS}, v{vXv}")
a(f"s_add_u32 s{sT[5]}, s{sT[0]}, {HG_OFF}")
pack_store(vH, R_WS, f"s{sT[5]}", " sc1")
rne_bf16(vH, vH)
a("L_r1skip:")
stamp("h published")
a("s_barrier")
if opt("r2dly", 0): a(f"s_sleep {opt('r2dly', 0)}")
reduce_inbox("L_pollr2", R_PF, ["0", f"s{sT[6]}", f"s{sT[7]}"])
stamp("R2 gathered")
a(f"""
s_cmp_lg_u32 s{sW}, 0
s_cbranch_scc1 L_fin
""")
final_sum()
rne_bf16(RS, RS)
a(f"v_add_f32 v{vH}, v{RS}, v{vH}")
pack_store(vH, R_OUT, f"s{sT[0]}", "")
a(f"""
s_cmp_lg_u32 s{sRHO}, 0
s_cbranch_scc1 L_fin
v_mov_b32 v{t0}, {EPOCH_OFF}
v_mov_b32 v{t1}, s{sEP}
s_mov_b64 exec, 1
buffer_store_dword v{t1}, v{t0}, {srd(R_WS)}, 0 offen sc1
""")
if DBGT and PROBE and not opt('plocal', 1):
    a(f"""
    v_mov_b32 v{vT[19]}, 16
    global_load_dword v{vT[20]}, v{vT[19]}, s[98:99] sc1
    s_waitcnt vmcnt(0)
    v_readfirstlane_b32 s94, v{vT[20]}
    """)
if DBGT and PROBE and opt('plocal', 1):
    a(f"""
    v_mov_b32 v{vT[19]}, {L_FL + 128}
    ds_read_b32 v{vT[20]}, v{vT[19]}
    s_waitcnt lgkmcnt(0)
    v_readfirstlane_b32 s94, v{vT[20]}
    """)
a(f"s_mov_b32 s93, {opt('padto', 0)}")
if opt("xcctest", 0):
    a(f"""
    v_mov_b32 v{vT[19]}, 20
    global_load_dword v{vT[20]}, v{vT[19]}, s[98:99] sc1
    s_waitcnt vmcnt(0)
    v_readfirstlane_b32 s{sT[1]}, v{vT[20]}
    s_bcnt1_i32_b32 s{sT[1]}, s{sT[1]}
    s_mul_i32 s{sT[1]}, s{sT[1]}, 1000
    s_add_u32 s93, s93, s{sT[1]}
    """)
if DBGT and opt("padto", 0):
    a(f"""
    L_padspin:
    s_memrealtime s[{sTS}:{sTS+1}]
    s_waitcnt lgkmcnt(0)
    s_sub_u32 s{sTS}, s{sTS}, s94
    s_cmp_lt_u32 s{sTS}, s93
    s_cbranch_scc1 L_padspin
    """)
if DBGT:
    a(f"""
    s_memrealtime s[{sTS}:{sTS+1}]
    s_memtime s[{sC2}:{sC2+1}]
    s_waitcnt lgkmcnt(0)
    s_sub_u32 s{sTS}, s{sTS}, s94
    s_sub_u32 s{sC2}, s{sC2}, s96
    v_mov_b32 v{t2}, s{sTS}
    v_mov_b32 v{t3}, s{sC2}
    v_mov_b32 v{t0}, 0
    global_store_dwordx2 v{t0}, {v(t2,2)}, s[98:99]
    """)
a("""
s_mov_b64 exec, -1
s_branch L_fin
""")

a("L_ffn:")
FGU, FD, HB, GD, FXR, DD, DP, CSA = 96, 128, 144, 160, 172, 188, 220, 188
lds_wait(F_BD, 4)
if PFWHEN == 1:
    a("s_barrier")
a(f"""
v_lshrrev_b32 v{t0}, 1, v{vL}
v_and_b32 v{t1}, 0x13, v{t0}
v_bfe_u32 v{t2}, v{t0}, 2, 1
v_lshl_add_u32 v{t1}, v{t2}, 3, v{t1}
v_bfe_u32 v{t2}, v{t0}, 3, 1
v_lshl_add_u32 v{t1}, v{t2}, 2, v{t1}
v_mul_u32_u24 v{t1}, 2752, v{t1}
v_and_b32 v{t2}, 1, v{vL}
v_lshl_add_u32 v{t1}, v{t2}, 4, v{t1}
s_mul_i32 s{sT[0]}, s{sW}, {128*2752}
s_lshl_b32 s{sT[1]}, s{sPHI}, 5
s_add_u32 s{sT[0]}, s{sT[0]}, s{sT[1]}
s_lshl_b32 s{sT[2]}, s{sW}, 12
""")
for i in range(4):
    a(f"s_add_u32 m0, s{sT[2]}, {L_G + 1024*i}")
    if i: a(f"s_add_u32 s{sT[0]}, s{sT[0]}, {32*2752}")
    a(f"buffer_load_dwordx4 v{t1}, {srd(R_WG)}, s{sT[0]} offen lds")
    a(f"s_add_u32 m0, s{sT[2]}, {L_U + 1024*i}")
    a(f"buffer_load_dwordx4 v{t1}, {srd(R_WU)}, s{sT[0]} offen lds")
a(f"""
s_and_b32 s{sT[0]}, s{sW}, 1
s_lshl_b32 s{sT[0]}, s{sT[0]}, 7
v_xor_b32 v{t0}, s{sT[0]}, v{vL16}
s_lshl_b32 s{sT[0]}, s{sPHI}, 14
s_add_u32 s{sT[0]}, s{sT[0]}, s{sT[2]}
s_add_u32 m0, s{sT[2]}, {L_WD}
""")
for i in range(4):
    if i: a(f"v_xor_b32 v{t2}, {32*i}, v{t0}")
    a(f"buffer_load_dwordx4 v{t2 if i else t0}, {srd(R_WD)}, s{sT[0]} offen offset:{1024*i} lds")
vFXw, vFXr, vSq, vSm, vCs, csg, csu, vPF, vHl = vT[4], vT[5], vT[6], vT[7], vT[8], vT[9], vT[10], vT[11], vT[12]
a(f"""
v_bfe_u32 v{t0}, v{vL}, 2, 3
v_lshrrev_b32 v{t1}, 1, v{vG}
v_lshl_add_u32 v{t0}, v{t1}, 4, v{t0}
v_and_b32 v{t2}, 3, v{vL}
v_lshlrev_b32 v{t2}, 3, v{t2}
v_lshl_add_u32 v{t3}, v{t0}, 5, v{t2}
s_add_u32 s{sT[0]}, s{sT[2]}, {L_G}
v_add_u32 v{t3}, s{sT[0]}, v{t3}
v_bfe_u32 v{t0}, v{vL}, 2, 4
v_and_b32 v{t1}, 7, v{t0}
v_lshl_add_u32 v{t1}, v{t1}, 5, v{t2}
v_lshl_add_u32 v{t1}, v{t0}, 10, v{t1}
s_lshl_b32 s{sT[0]}, s{sW}, 8
s_add_u32 s{sT[0]}, s{sT[0]}, {L_WD}
v_add_u32 v{t1}, s{sT[0]}, v{t1}
v_lshlrev_b32 v{vHl}, 10, v{vN}
v_lshl_add_u32 v{vHl}, v{vG}, 4, v{vHl}
s_lshl_b32 s{sT[1]}, s{sW}, 8
s_add_u32 s{sT[1]}, s{sT[1]}, {HG_OFF}
s_mul_i32 s{sT[2]}, s{sW}, 640
s_add_u32 s{sT[2]}, s{sT[2]}, {L_FX}
v_lshlrev_b32 v{vFXw}, 6, v{vG}
v_lshl_add_u32 v{vFXw}, v{vN}, 4, v{vFXw}
v_add_u32 v{vFXw}, s{sT[2]}, v{vFXw}
v_and_b32 v{t2}, 3, v{vN}
v_lshlrev_b32 v{vFXr}, 4, v{t2}
v_lshl_add_u32 v{vFXr}, v{vG}, 6, v{vFXr}
v_lshrrev_b32 v{t0}, 2, v{vN}
v_lshl_add_u32 v{vFXr}, v{t0}, 2, v{vFXr}
v_add_u32 v{vFXr}, {L_FX}, v{vFXr}
v_mul_u32_u24 v{vSq}, 20, v{t2}
v_add_u32 v{vSq}, {L_FX + 512}, v{vSq}
v_lshlrev_b32 v{vSm}, 4, v{t2}
v_add_u32 v{vSm}, {L_FX + 576}, v{vSm}
v_lshlrev_b32 v{vCs}, 4, v{vG}
v_lshl_add_u32 v{vCs}, v{t0}, 2, v{vCs}
v_add_u32 v{vCs}, {L_CS}, v{vCs}
s_mov_b32 s{sT[4]}, 98304
v_mul_lo_u32 v{vPF}, v{t2}, s{sT[4]}
v_lshl_add_u32 v{vPF}, v{vG}, 4, v{vPF}
v_and_b32 v{t2}, 1, v{t0}
v_lshl_add_u32 v{vPF}, v{t2}, 6, v{vPF}
v_lshrrev_b32 v{t2}, 1, v{t0}
v_mul_u32_u24 v{t2}, 12288, v{t2}
v_add_u32 v{vPF}, v{vPF}, v{t2}
s_mul_i32 s{sT[4]}, s{sW}, 24576
s_lshl_b32 s{sT[5]}, s{sPHI}, 7
s_add_u32 s{sT[4]}, s{sT[4]}, s{sT[5]}
s_add_u32 s{sT[4]}, s{sT[4]}, {PF_OFF}
s_add_u32 s{sT[5]}, s{sT[4]}, 12288
""")
for i in range(16): a(f"v_mov_b32 v{HB+i}, 0x3f803f80")
a("s_waitcnt vmcnt(4)")
for mat in range(2):
    for t in range(4):
        for vv in range(2):
            a(f"ds_read_b64_tr_b16 {v(FGU+16*mat+4*t+2*vv,2)}, v{t3} offset:{16384*mat + (32*t+8*vv)*32}")
a("s_waitcnt lgkmcnt(0)")
for mat in range(2):
    for t in range(4):
        mfma(CSA+4*mat, FGU+16*mat+4*t, HB, t == 0)
a(f"""
s_lshl_b32 s{sT[0]}, s{sW}, 7
s_add_u32 s{sT[0]}, s{sT[0]}, {L_CS}
v_lshlrev_b32 v{t0}, 4, v{vG}
v_add_u32 v{t0}, s{sT[0]}, v{t0}
s_mov_b32 exec_lo, 0x00010001
s_mov_b32 exec_hi, 0x00010001
ds_write_b128 v{t0}, {v(CSA,4)}
ds_write_b128 v{t0}, {v(CSA+4,4)} offset:64
s_mov_b64 exec, -1
s_waitcnt vmcnt(0) lgkmcnt(0)
s_barrier
""")
for mt in range(8):
    if mt: a(f"v_xor_b32 v{t2}, {32*mt}, v{t1}")
    a(f"ds_read_b64_tr_b16 {v(FD+2*mt,2)}, v{t2 if mt else t1}")
for k in range(4):
    a(f"ds_read2_b32 {v(FXR+2*k,2)}, v{vCs} offset0:{32*k} offset1:{32*k+16}")
a(f"""
s_waitcnt lgkmcnt(0)
v_add_f32 v{csg}, v{FXR}, v{FXR+2}
v_add_f32 v{csu}, v{FXR+1}, v{FXR+3}
v_add_f32 v{csg}, v{csg}, v{FXR+4}
v_add_f32 v{csu}, v{csu}, v{FXR+5}
v_add_f32 v{csg}, v{csg}, v{FXR+6}
v_add_f32 v{csu}, v{csu}, v{FXR+7}
""")
stamp("FFN prepped")
a(f"s_mov_b64 exec, s[{sM4}:{sM4+1}]")
a(f"s_mov_b32 s{sCNT}, 0")
a("L_pollh:")
for t in range(4):
    a(f"buffer_load_dwordx4 {v(HB+4*t,4)}, v{vHl}, {srd(R_WS)}, s{sT[1]} offen offset:{64*t} sc1")
a("s_waitcnt vmcnt(0)")
poison_check(list(range(HB, HB + 16)), t3)
poll_tail("L_pollh", opt("hsleep", 1))
a("s_mov_b64 exec, -1")
stamp("h gathered")
for t in range(4):
    for k in range(3):
        mfma(GD+4*k, FGU+16*k+4*t if k < 2 else HB+4*t, HB+4*t, t == 0)
a(f"""
s_mov_b64 exec, s[{sM4}:{sM4+1}]
ds_write_b128 v{vFXw}, {v(GD,4)}
ds_write_b128 v{vFXw}, {v(GD+4,4)} offset:256
s_mov_b64 exec, 0x000f000f
ds_write_b128 v{vFXw}, {v(GD+8,4)} offset:512
s_mov_b64 exec, -1
s_waitcnt lgkmcnt(0)
s_barrier
""")
for k in range(4):
    a(f"ds_read_b32 v{FXR+8+k}, v{vSq} offset:{640*k}")
    a(f"ds_read_b32 v{FXR+12+k}, v{vSm} offset:{640*k}")
for k in range(4):
    a(f"ds_read_b32 v{FXR+2*k}, v{vFXr} offset:{640*k}")
    a(f"ds_read_b32 v{FXR+2*k+1}, v{vFXr} offset:{640*k+256}")
gg, uu, sq, sm = vT[13], vT[14], vT[15], vT[16]
a(f"""
s_waitcnt lgkmcnt(8)
v_add_f32 v{sm}, v{FXR+12}, v{FXR+13}
v_add_f32 v{sq}, v{FXR+8}, v{FXR+9}
v_add_f32 v{sm}, v{sm}, v{FXR+14}
v_add_f32 v{sq}, v{sq}, v{FXR+10}
v_add_f32 v{sm}, v{sm}, v{FXR+15}
v_add_f32 v{sq}, v{sq}, v{FXR+11}
v_mul_f32 v{sm}, 0x3b000000, v{sm}
v_mul_f32 v{sq}, 0x3b000000, v{sq}
v_fma_f32 v{sq}, -v{sm}, v{sm}, v{sq}
v_max_f32 v{sq}, 0, v{sq}
v_add_f32 v{sq}, 0x3727c5ac, v{sq}
v_rsq_f32 v{sq}, v{sq}
s_waitcnt lgkmcnt(0)
v_add_f32 v{gg}, v{FXR}, v{FXR+2}
v_add_f32 v{uu}, v{FXR+1}, v{FXR+3}
v_add_f32 v{gg}, v{gg}, v{FXR+4}
v_add_f32 v{uu}, v{uu}, v{FXR+5}
v_add_f32 v{gg}, v{gg}, v{FXR+6}
v_add_f32 v{uu}, v{uu}, v{FXR+7}
v_fma_f32 v{gg}, -v{sm}, v{csg}, v{gg}
v_fma_f32 v{uu}, -v{sm}, v{csu}, v{uu}
v_mul_f32 v{gg}, v{gg}, v{sq}
v_mul_f32 v{uu}, v{uu}, v{sq}
v_mul_f32 v{sm}, {f32(-math.log2(math.e))}, v{gg}
v_exp_f32 v{sm}, v{sm}
v_mul_f32 v{gg}, v{gg}, v{uu}
v_add_f32 v{sm}, 1.0, v{sm}
v_rcp_f32 v{sm}, v{sm}
v_mul_f32 v{gg}, v{gg}, v{sm}
v_mov_b32_dpp v{uu}, v{gg} row_shl:4 row_mask:0xf bank_mask:0xf
v_cvt_pk_bf16_f32 v{FXR}, v{gg}, v{uu}
v_mov_b32_dpp v{FXR+1}, v{FXR} row_shl:8 row_mask:0xf bank_mask:0xf
""")
if FULL:
    a(f"""
    v_mov_b32_dpp v{FXR}, v{FXR} row_shr:4 row_mask:0xf bank_mask:0x2
    v_mov_b32_dpp v{FXR+1}, v{FXR+1} row_shr:4 row_mask:0xf bank_mask:0x2
    v_mov_b32_dpp v{FXR}, v{FXR} row_shr:8 row_mask:0xf bank_mask:0xc
    v_mov_b32_dpp v{FXR+1}, v{FXR+1} row_shr:8 row_mask:0xf bank_mask:0xc
    """)
for mt in range(8): mfma(DD+4*mt, FD+2*mt, FXR, True, k16=True)
if FULL:
    for p in range(4):
        if p: a(f"s_lshl_b64 exec, s[{sM4}:{sM4+1}], {4*p}")
        for k in range(4):
            a(f"v_cvt_pk_bf16_f32 v{DP+k}, v{DD+8*p+2*k}, v{DD+8*p+2*k+1}")
    a("s_mov_b64 exec, -1")
    a(f"buffer_store_dwordx4 {v(DP,4)}, v{vPF}, {srd(R_WS)}, s{sT[4]} offen sc1")
else:
    a(f"s_mov_b64 exec, s[{sM4}:{sM4+1}]")
    for p in range(4):
        for k in range(4):
            a(f"v_cvt_pk_bf16_f32 v{DP+4*p+k}, v{DD+8*p+2*k}, v{DD+8*p+2*k+1}")
        a(f"buffer_store_dwordx4 {v(DP+4*p,4)}, v{vPF}, {srd(R_WS)}, s{sT[4+(p>>1)]} offen offset:{64*(p&1)} sc1")
    a("s_mov_b64 exec, -1")
stamp("FFN published")
a("s_branch L_fin")

a("L_wave45:")
PZ = vT[4]
KIL = opt("kil", 0)
if KIL == 0:
    KADDR = f"""s_lshl_b32 s{sT[4]}, s{sCH}, 17
s_add_u32 s{sT[4]}, s{sT[4]}, s{sT[3]}"""
else:
    g = 14 if KIL == 1 else 12
    KADDR = f"""s_lshr_b32 s{sT[4]}, s{sCH}, 5
s_lshl_b32 s{sT[4]}, s{sT[4]}, 22
s_and_b32 s{sT[5]}, s{sCH}, 31
s_lshl_b32 s{sT[5]}, s{sT[5]}, {g}
s_add_u32 s{sT[4]}, s{sT[4]}, s{sT[5]}
s_lshl_b32 s{sT[5]}, s{sK}, 21
s_add_u32 s{sT[4]}, s{sT[4]}, s{sT[5]}"""
def krow_off(i):
    if KIL == 0: return i * 1024
    if KIL == 1: return (i >> 4) * (32 << 14) + (i & 15) * 1024
    return (i >> 2) * (32 << 12)
a(f"""
s_lshl_b32 s{sT[3]}, s{sK}, 16
{KADDR}
s_lshl_b32 s{sT[1]}, s{sK}, 4
v_add_u32 v{vT[11]}, s{sT[1]}, v{vFL}
""")
DROT = opt("drot", 0)
vLR = vT[12]
if DROT:
    a(f"""
    s_mul_i32 s{sT[7]}, s{sCH}, {opt("drotm", 1)}
    s_lshr_b32 s{sT[8]}, s{sCH}, 4
    s_add_u32 s{sT[7]}, s{sT[7]}, s{sT[8]}
    s_and_b32 s{sT[7]}, s{sT[7]}, 15
    s_lshl_b32 s{sT[8]}, s{sT[7]}, 12
    s_bitcmp1_b32 s{sT[7]}, 0
    s_cselect_b32 s{sT[9]}, {fsw(4) << 4}, 0
    s_bitcmp1_b32 s{sT[7]}, 1
    s_cselect_b32 s{sT[10]}, {fsw(8) << 4}, 0
    s_xor_b32 s{sT[9]}, s{sT[9]}, s{sT[10]}
    v_xor_b32 v{vLR}, s{sT[9]}, v{vL16}
    s_and_b32 s{sT[7]}, s{sT[7]}, 12
    """)
    for k in range(4):
        a(f"s_xor_b32 s{sT[9]}, s{sT[7]}, {4*k}")
        a(f"v_add_u32 v{vT[13+k]}, s{sT[9]}, v{vT[11]}")

def tile_sig(k):
    if DROT: lds_signal(F_TILE, base=vT[13 + k])
    else: lds_signal(F_TILE + 4 * k, base=vT[11])
def dma_all(win, tag, nclr_after):
    signalled = 0
    torder = [0, 2, 1, 3]
    goat = GOAT_A if tag == "A" else GOAT_F
    for idx in range(64):
        i = torder[idx // 16] * 16 + (idx % 16)
        if i % 4 == 0:
            if DROT:
                a(f"s_xor_b32 s{sT[9]}, s{sT[8]}, {i*1024}")
                a(f"s_add_u32 m0, s{sT[3]}, s{sT[9]}")
                a(f"s_add_u32 s{sT[5]}, s{sT[4]}, s{sT[9]}")
            else:
                a(f"s_add_u32 m0, s{sT[3]}, {i*1024}")
                a(f"s_add_u32 s{sT[5]}, s{sT[4]}, {krow_off(i)}")
        tmp = vT[i & 1]
        a(f"v_xor_b32 v{tmp}, {fsw(i & 15)*16}, v{vLR if DROT else vL16}")
        if tag == "A" and WQG and idx == WQG: lds_wait(F_WQI, 4, sleep=1)
        if tag == "A" and WQG and 4 <= idx < WQG: a("s_waitcnt vmcnt(3)")
        if idx >= win:
            a(f"s_waitcnt vmcnt({win-1})")
            done = idx - win + 1
            if done >= 16 * (signalled + 1):
                tile_sig(torder[signalled]); signalled += 1
        a(f"buffer_load_dwordx4 v{tmp}, {srd(R_CKV)}, s{sT[5]} offen offset:{(i&3)*1024}{P_CK} lds")
        if idx == goat - 1: lds_signal(F_GO)
    lds_signal(F_QI)
    stamp("dma issued")
    if goat > 64:
        while signalled < 3:
            a(f"s_waitcnt vmcnt({64 - 16*(signalled+1)})")
            tile_sig(torder[signalled]); signalled += 1
        a(f"s_waitcnt vmcnt({80 - goat})")
        lds_signal(F_GO)
    while signalled < 4:
        a(f"s_waitcnt vmcnt({64 - 16*(signalled+1)})")
        tile_sig(torder[signalled]); signalled += 1
    stamp("ckv landed")
a(f"""
s_cmp_eq_u32 s{sHGB}, 0
s_cbranch_scc1 L_w45free
s_setprio 3
s_waitcnt vmcnt(0)
""")
ln_row()
lds_signal(F_XN)
a("s_setprio 0")
WQG = opt("wqg", 0)
if WQG == 0: lds_wait(F_WQI, 4, sleep=2)
dma_all(DWIN_A, "A", False)
a("s_branch L_w45pf")
a("L_w45free:")
if UKGATE: lds_wait(F_WQI, 4, sleep=1)
dma_all(DWIN_F, "F", False)
a("L_w45pf:")
a(f"""
v_lshrrev_b32 v{t0}, 2, v{vL}
v_mul_u32_u24 v{t0}, 2752, v{t0}
v_and_b32 v{t1}, 3, v{vL}
v_lshlrev_b32 v{t1}, 7, v{t1}
v_min_u32 v{t1}, 348, v{t1}
v_add_u32 v{t0}, v{t0}, v{t1}
s_mul_i32 s{sT[1]}, s{sY}, {16*2752}
s_mul_i32 s{sT[2]}, s{sX}, 352
s_add_u32 s{sT[1]}, s{sT[1]}, s{sT[2]}
v_min_u32 v{t1}, 21, v{vL}
v_lshlrev_b32 v{t1}, 7, v{t1}
s_mul_i32 s{sT[2]}, s{sX}, {176*1024}
s_lshl_b32 s{sT[3]}, s{sY}, 1
s_add_u32 s{sT[3]}, s{sT[3]}, s{sK}
s_mul_i32 s{sT[3]}, s{sT[3]}, {22*128}
s_add_u32 s{sT[2]}, s{sT[2]}, s{sT[3]}
""")
def ffn_pf(tag, s1, s2):
    a(f"""
    buffer_load_dword v{vDUM+1}, v{t1}, {srd(R_WD)}, s{s2} offen
    s_cmp_eq_u32 s{sW}, 5
    s_cbranch_scc1 L_w5up{tag}
    buffer_load_dword v{vDUM}, v{t0}, {srd(R_WG)}, s{s1} offen
    s_branch L_pfd{tag}
    L_w5up{tag}:
    buffer_load_dword v{vDUM}, v{t0}, {srd(R_WU)}, s{s1} offen
    L_pfd{tag}:
    """)
if PFWHEN == 0:
    lds_wait(F_RI, 2, sleep=4)
    ffn_pf("a", sT[1], sT[2])
elif PFWHEN == 2:
    lds_wait(F_QS, 4, sleep=1)
    ffn_pf("a", sT[1], sT[2])
elif PFWHEN == 3:
    lds_wait(F_QS, 4, sleep=1)
    ffn_pf("a", sT[1], sT[2])
else:
    a(f"s_mov_b32 s{sT[9]}, s{sT[1]}")
    a(f"s_mov_b32 s{sT[10]}, s{sT[2]}")
a("s_branch L_phaseC")

a("L_wave67:")
RAW = 32
a(f"s_and_b32 s{sT[0]}, s{sW}, 1")
if CODEPF:
    a(f"""
    s_getpc_b64 s[{sC2}:{sC2+1}]
    L_pcref:
    s_sub_u32 s{sC2}, s{sC2}, L_pcref-{KNAME}
    s_subb_u32 s{sC2+1}, s{sC2+1}, 0
    v_lshlrev_b32 v{t0}, 7, v{vL}
    s_lshl_b32 s{sT[2]}, s{sT[0]}, 13
    v_add_u32 v{t0}, s{sT[2]}, v{t0}
    v_add_u32 v{t1}, 16384, v{t0}
    v_min_u32 v{t0}, L_end-{KNAME}, v{t0}
    v_min_u32 v{t1}, L_end-{KNAME}, v{t1}
    """)
a(f"""
s_cmp_eq_u32 s{sHGB}, 0
s_cbranch_scc1 L_noLN
s_setprio 3
s_waitcnt vmcnt(0)
""")
ln_row()
lds_signal(F_XN)
stamp("LN done")
a("s_branch L_w67rest")
a("L_noLN:")
if CODEPF:
    a(f"""
    global_load_dword v{vDUM}, v{t0}, s[{sC2}:{sC2+1}]
    global_load_dword v{vDUM+1}, v{t1}, s[{sC2}:{sC2+1}]
    """)
a("L_w67rest:")
if opt("tlbw", 0):
    a(f"""
    s_cmp_lg_u32 s{sW}, {opt("tlbwave", 7)}
    s_cbranch_scc1 L_notlb
    v_lshlrev_b32 v{t0}, 21, v{vL}
    s_mov_b64 exec, 15
    s_waitcnt lgkmcnt(0)
    buffer_load_dword v{vDUM}, v{t0}, {srd(R_WS)}, 0 offen
    buffer_load_dword v{vDUM}, v{t0}, {srd(R_WUV)}, 0 offen
    buffer_load_dword v{vDUM}, v{t0}, {srd(R_WO)}, 0 offen
    buffer_load_dword v{vDUM}, v{t0}, {srd(R_WG)}, 0 offen
    buffer_load_dword v{vDUM}, v{t0}, {srd(R_WU)}, 0 offen
    buffer_load_dword v{vDUM}, v{t0}, {srd(R_WD)}, 0 offen
    buffer_load_dword v{vDUM}, v{t0}, {srd(R_OUT)}, 0 offen
    s_mov_b64 exec, -1
    L_notlb:
    """)
def clears():
    a(f"""
    v_and_b32 v{vT[8]}, 7, v{vL}
    v_lshlrev_b32 v{vT[8]}, 4, v{vT[8]}
    v_bfe_u32 v{vT[9]}, v{vL}, 3, 1
    v_lshl_add_u32 v{vT[10]}, v{vT[9]}, 14, v{vT[8]}
    v_lshl_add_u32 v{vT[10]}, v{vG}, 17, v{vT[10]}
    s_lshl_b32 s{sT[1]}, s{sMH}, 1
    s_add_u32 s{sT[1]}, s{sT[1]}, s{sT[0]}
    s_lshl_b32 s{sT[1]}, s{sT[1]}, 15
    s_lshl_b32 s{sT[2]}, s{sH}, 2
    s_add_u32 s{sT[2]}, s{sT[2]}, s{sCQ}
    s_lshl_b32 s{sT[2]}, s{sT[2]}, 7
    s_add_u32 s{sT[1]}, s{sT[1]}, s{sT[2]}
    s_add_u32 s{sT[1]}, s{sT[1]}, {PA_OFF}
    buffer_store_dwordx4 {v(PZ,4)}, v{vT[10]}, {srd(R_WS)}, s{sT[1]} offen sc1
    """)
a(f"""
v_mov_b32 v{PZ}, -1
v_mov_b32 v{PZ+1}, -1
v_mov_b32 v{PZ+2}, -1
v_mov_b32 v{PZ+3}, -1
""")
clears()
a(f"""
s_cmp_eq_u32 s{sISR}, 0
s_cbranch_scc1 L_noclrH
s_cmp_lg_u32 s{sW}, 7
s_cbranch_scc1 L_noclrH
s_lshl_b32 s{sT[1]}, s{sRHO}, 7
s_add_u32 s{sT[1]}, s{sT[1]}, {HG_OFF}
s_mov_b64 exec, 0xff
buffer_store_dwordx4 {v(PZ,4)}, v{vL16}, {srd(R_WS)}, s{sT[1]} offen sc1
s_mov_b64 exec, -1
L_noclrH:
s_cmp_eq_u32 s{sISF}, 0
s_cbranch_scc1 L_noclrF
v_mul_u32_u24 v{vT[10]}, 12288, v{vT[9]}
v_add_u32 v{vT[10]}, v{vT[10]}, v{vT[8]}
s_mov_b32 s{sT[1]}, 98304
v_mul_lo_u32 v{vT[9]}, v{vG}, s{sT[1]}
v_add_u32 v{vT[10]}, v{vT[10]}, v{vT[9]}
s_mul_i32 s{sT[1]}, s{sT[0]}, 49152
s_lshl_b32 s{sT[2]}, s{sPHI}, 7
s_add_u32 s{sT[1]}, s{sT[1]}, s{sT[2]}
s_add_u32 s{sT[1]}, s{sT[1]}, {PF_OFF}
s_add_u32 s{sT[2]}, s{sT[1]}, 24576
buffer_store_dwordx4 {v(PZ,4)}, v{vT[10]}, {srd(R_WS)}, s{sT[1]} offen sc1
buffer_store_dwordx4 {v(PZ,4)}, v{vT[10]}, {srd(R_WS)}, s{sT[2]} offen sc1
L_noclrF:
s_waitcnt vmcnt(0)
""")
lds_signal(F_CLR)
a("s_setprio 0")
a(f"""
v_lshlrev_b32 v{vT[4]}, 13, v{vG}
v_lshl_add_u32 v{vT[4]}, v{vN}, 4, v{vT[4]}
s_lshl_b32 s{sT[1]}, s{sCQ}, 7
s_lshl_b32 s{sT[2]}, s{sT[0]}, 6
s_add_u32 s{sT[1]}, s{sT[1]}, s{sT[2]}
s_lshl_b32 s{sT[1]}, s{sT[1]}, 13
s_lshl_b32 s{sT[2]}, s{sH}, 8
s_add_u32 s{sT[1]}, s{sT[1]}, s{sT[2]}
v_lshrrev_b32 v{vT[5]}, 5, v{vL}
v_lshlrev_b32 v{vT[5]}, 10, v{vT[5]}
v_and_b32 v{vT[6]}, 31, v{vL}
v_lshl_add_u32 v{vT[5]}, v{vT[6]}, 4, v{vT[5]}
s_lshl_b32 s{sT[2]}, s{sH}, 17
s_lshl_b32 s{sT[3]}, s{sT[0]}, 16
s_add_u32 s{sT[2]}, s{sT[2]}, s{sT[3]}
s_lshl_b32 s{sT[3]}, s{sMH}, 9
s_add_u32 s{sT[2]}, s{sT[2]}, s{sT[3]}
s_waitcnt vmcnt(0)
""")
RPRE = opt("rpre", 48)
RCOOP = opt("rcoop", 0)
if RCOOP:
    a(f"""
    v_lshrrev_b32 v{t0}, 2, v{vL}
    v_lshlrev_b32 v{t0}, 13, v{t0}
    v_and_b32 v{t1}, 3, v{vL}
    v_lshl_add_u32 v{t0}, v{t1}, 7, v{t0}
    v_lshlrev_b32 v{t1}, 7, v{vL}
    s_lshl1_add_u32 s{sT[4]}, s{sYP}, s{sT[0]}
    s_lshl_b32 s{sT[5]}, s{sT[4]}, 17
    s_lshl_b32 s{sT[6]}, s{sX}, 9
    s_add_u32 s{sT[5]}, s{sT[5]}, s{sT[6]}
    s_add_u32 s{sT[6]}, s{sT[5]}, 4096
    s_lshl_b32 s{sT[7]}, s{sT[4]}, 13
    s_lshl_b32 s{sT[8]}, s{sX}, 18
    s_add_u32 s{sT[7]}, s{sT[7]}, s{sT[8]}
    s_add_u32 s{sT[8]}, s{sT[7]}, {16 << 17}
    """)
PFL = [f"buffer_load_dword v{vDUM}, v{t0}, {srd(R_WUV)}, s{sT[5]} offen",
       f"buffer_load_dword v{vDUM+1}, v{t1}, {srd(R_WO)}, s{sT[7]} offen",
       f"buffer_load_dword v{vDUM}, v{t0}, {srd(R_WUV)}, s{sT[6]} offen",
       f"buffer_load_dword v{vDUM+1}, v{t1}, {srd(R_WO)}, s{sT[8]} offen"]
NPRE = opt("npre", 2); NPOST = opt("npost", 2)
if RCOOP == 2:
    a(f"""
    s_cmp_eq_u32 s{sHGB}, 1
    s_cbranch_scc1 L_nocoop2
    """)
    lds_wait(F_GO, 2, sleep=1)
    for l in PFL[:NPRE]: a(l)
    a("L_nocoop2:")
    lds_signal(F_GO)
    if NPOST:
        a(f"""
        s_cmp_eq_u32 s{sHGB}, 1
        s_cbranch_scc1 L_nocoop3
        """)
        lds_wait(F_QI, 6, sleep=1)
        for l in PFL[NPRE:NPRE+NPOST]: a(l)
        a("L_nocoop3:")
    a("s_waitcnt vmcnt(0)")
lds_wait(F_QI, 6, sleep=2)
if RCOOP == 1:
    a(f"""
    s_cmp_eq_u32 s{sHGB}, 1
    s_cbranch_scc1 L_nocoop
    buffer_load_dword v{vDUM}, v{t0}, {srd(R_WUV)}, s{sT[5]} offen
    buffer_load_dword v{vDUM+1}, v{t0}, {srd(R_WUV)}, s{sT[6]} offen
    buffer_load_dword v{vDUM}, v{t1}, {srd(R_WO)}, s{sT[7]} offen
    buffer_load_dword v{vDUM+1}, v{t1}, {srd(R_WO)}, s{sT[8]} offen
    s_waitcnt vmcnt(0)
    L_nocoop:
    """)
for i in range(48):
    if i == RPRE: lds_wait(F_QS, 4, sleep=1)
    if i >= RWIN: a(f"s_waitcnt vmcnt({RWIN-1})")
    if i < 16:
        if i: a(f"s_add_u32 s{sT[1]}, s{sT[1]}, 32768")
        a(f"buffer_load_dwordx4 {v(RAW+4*i,4)}, v{vT[4]}, {srd(R_WUV)}, s{sT[1]} offen{P_R}")
    else:
        k = i - 16
        if k and k % 2 == 0: a(f"s_add_u32 s{sT[2]}, s{sT[2]}, 4096")
        a(f"buffer_load_dwordx4 {v(RAW+64+4*k,4)}, v{vT[5]}, {srd(R_WO)}, s{sT[2]} offen offset:{(k&1)*2048}{P_R}")
lds_signal(F_RI)
stamp("rest issued")
a(f"""
v_lshlrev_b32 v{t0}, 5, v{vG}
v_lshlrev_b32 v{t1}, 4, v{vN}
v_xor_b32 v{t0}, v{t0}, v{t1}
v_lshl_add_u32 v{t0}, v{vG}, 8, v{t0}
s_lshl_b32 s{sT[1]}, s{sT[0]}, 14
v_add_u32 v{t0}, s{sT[1]}, v{t0}
v_xor_b32 v{t1}, 128, v{t0}
v_lshrrev_b32 v{t2}, 5, v{vL}
v_and_b32 v{vT[4]}, 31, v{vL}
v_lshlrev_b32 v{vT[4]}, 4, v{vT[4]}
v_lshlrev_b32 v{t3}, 5, v{t2}
v_xor_b32 v{vT[4]}, v{vT[4]}, v{t3}
v_lshl_add_u32 v{vT[4]}, v{t2}, 9, v{vT[4]}
s_lshl_b32 s{sT[1]}, s{sT[0]}, 15
s_add_u32 s{sT[1]}, s{sT[1]}, {L_WO}
v_add_u32 v{vT[4]}, s{sT[1]}, v{vT[4]}
v_xor_b32 v{vT[5]}, 64, v{vT[4]}
v_xor_b32 v{vT[6]}, 128, v{vT[4]}
v_xor_b32 v{vT[7]}, 192, v{vT[4]}
""")
lds_wait(F_BD, 4, sleep=1)
for i in range(16):
    if 47 - i < RWIN: a(f"s_waitcnt vmcnt({47-i})")
    a(f"ds_write_b128 v{t1 if (i>>1)&1 else t0}, {v(RAW+4*i,4)} offset:{L_WUV + 1024*i}")
for i in range(32):
    if 31 - i < RWIN: a(f"s_waitcnt vmcnt({31-i})")
    sel = (i & 1) | (((i >> 2) & 1) << 1)
    a(f"ds_write_b128 v{vT[4+sel]}, {v(RAW+64+4*i,4)} offset:{1024*i}")
lds_signal(F_ST)
stamp("images written")

a("L_phaseC:")
FUV, FO, CB, XD, AD, AP = 32, 64, 128, 144, 160, 176
vUVa, vOa, vCLr, vCXw, vCXr, vPA = vT[4], vT[5], vT[6], vT[7], vT[8], vT[9]
a(f"""
v_bfe_u32 v{vT[12]}, v{vL}, 2, 2
v_and_b32 v{vT[13]}, 1, v{vG}
v_lshl_add_u32 v{vT[13]}, v{vT[13]}, 2, v{vT[12]}
v_lshl_add_u32 v{vT[12]}, v{vG}, 3, v{vT[12]}
v_and_b32 v{vT[14]}, 3, v{vL}
v_lshlrev_b32 v{vT[14]}, 3, v{vT[14]}
s_lshl_b32 s{sT[0]}, s{sK}, 1
v_xor_b32 v{vUVa}, s{sT[0]}, v{vT[13]}
v_lshl_add_u32 v{vUVa}, v{vUVa}, 5, v{vT[14]}
v_lshl_add_u32 v{vUVa}, v{vT[12]}, 8, v{vUVa}
s_lshl_b32 s{sT[0]}, s{sK}, 2
v_xor_b32 v{vOa}, s{sT[0]}, v{vT[13]}
v_lshl_add_u32 v{vOa}, v{vOa}, 5, v{vT[14]}
v_lshl_add_u32 v{vOa}, v{vT[12]}, 9, v{vOa}
v_add_u32 v{vOa}, {L_WO}, v{vOa}
v_and_b32 v{vT[12]}, 3, v{vN}
v_mul_u32_u24 v{vT[12]}, 272, v{vT[12]}
v_lshl_add_u32 v{vCXr}, v{vG}, 4, v{vT[12]}
v_add_u32 v{vCLr}, {L_CL}, v{vCXr}
v_add_u32 v{vCXr}, {L_CX}, v{vCXr}
v_lshl_add_u32 v{vCXw}, v{vG}, 3, v{vT[12]}
s_lshl_b32 s{sT[0]}, s{sK}, 6
s_add_u32 s{sT[0]}, s{sT[0]}, {L_CX}
v_add_u32 v{vCXw}, s{sT[0]}, v{vCXw}
v_lshlrev_b32 v{vPA}, 4, v{vG}
v_and_b32 v{vT[12]}, 3, v{vN}
v_lshl_add_u32 v{vPA}, v{vT[12]}, 17, v{vPA}
v_lshrrev_b32 v{vT[12]}, 2, v{vN}
v_lshl_add_u32 v{vPA}, v{vT[12]}, 6, v{vPA}
s_lshl_b32 s{sT[1]}, s{sMH}, 2
s_add_u32 s{sT[1]}, s{sT[1]}, s{sK}
s_lshl_b32 s{sT[1]}, s{sT[1]}, 14
s_lshl_b32 s{sT[2]}, s{sH}, 2
s_add_u32 s{sT[2]}, s{sT[2]}, s{sCQ}
s_lshl_b32 s{sT[2]}, s{sT[2]}, 7
s_add_u32 s{sT[1]}, s{sT[1]}, s{sT[2]}
s_add_u32 s{sT[1]}, s{sT[1]}, {PA_OFF}
""")
lds_wait(F_ST, 2, sleep=1)
for mt in range(2):
    if mt: a(f"v_xor_b32 v{vT[12]}, 32, v{vUVa}")
    for ks in range(4):
        for vv in range(2):
            a(f"ds_read_b64_tr_b16 {v(FUV+16*mt+4*ks+2*vv,2)}, v{vT[12] if mt else vUVa} offset:{L_WUV + (32*ks+4*vv)*256}")
for mt in range(4):
    if mt: a(f"v_xor_b32 v{vT[12]}, {32*mt}, v{vOa}")
    for ks in range(4):
        for vv in range(2):
            a(f"ds_read_b64_tr_b16 {v(FO+16*mt+4*ks+2*vv,2)}, v{vT[12] if mt else vOa} offset:{(32*ks+4*vv)*512}")
stamp("weights staged")
a("s_setprio 2")
def spec_cl():
    for ks in range(4): a(f"ds_read_b128 {v(CB+4*ks,4)}, v{vCLr} offset:{64*ks}")
lds_wait(F_CL, 4, spec_cl)
if PFWHEN == 1:
    a(f"""
    s_cmp_ge_u32 s{sW}, 6
    s_cbranch_scc1 L_nopf2
    """)
    ffn_pf("b", sT[9], sT[10])
    a("L_nopf2:")
for ks in range(4):
    for mt in range(2): mfma(XD+4*mt, FUV+16*mt+4*ks, CB+4*ks, ks == 0)
for k in range(4): a(f"v_cvt_pk_bf16_f32 v{XD+8+k}, v{XD+2*k}, v{XD+2*k+1}")
a(f"""
s_mov_b64 exec, s[{sM4}:{sM4+1}]
ds_write_b64 v{vCXw}, {v(XD+8,2)}
ds_write_b64 v{vCXw}, {v(XD+10,2)} offset:32
""")
lds_signal(F_CX)
def spec_cx():
    for ks in range(4): a(f"ds_read_b128 {v(CB+4*ks,4)}, v{vCXr} offset:{64*ks}")
lds_wait(F_CX, 4, spec_cx)
for p in range(2):
    for ks in range(4):
        for k in range(2):
            mt = 2 * p + k
            mfma(AD+4*mt, FO+16*mt+4*ks, CB+4*ks, ks == 0)
if FULL:
    for k in range(4): a(f"v_cvt_pk_bf16_f32 v{AP+k}, v{AD+2*k}, v{AD+2*k+1}")
    a(f"s_lshl_b64 exec, s[{sM4}:{sM4+1}], 4")
    for k in range(4): a(f"v_cvt_pk_bf16_f32 v{AP+k}, v{AD+8+2*k}, v{AD+8+2*k+1}")
    a(f"s_mov_b64 exec, s[{sM8}:{sM8+1}]")
    a(f"buffer_store_dwordx4 {v(AP,4)}, v{vPA}, {srd(R_WS)}, s{sT[1]} offen sc1")
else:
    a(f"s_mov_b64 exec, s[{sM4}:{sM4+1}]")
    for p in range(2):
        for k in range(4): a(f"v_cvt_pk_bf16_f32 v{AP+4*p+k}, v{AD+8*p+2*k}, v{AD+8*p+2*k+1}")
        a(f"buffer_store_dwordx4 {v(AP+4*p,4)}, v{vPA}, {srd(R_WS)}, s{sT[1]} offen offset:{64*p} sc1")
a("s_mov_b64 exec, -1")
stamp("attn partial published")
a("s_waitcnt vmcnt(0)")

a("L_fin:")
if PROF:
    stamp("end")
    a(f"""
    s_lshl_b32 s{sT[0]}, s2, 3
    s_add_u32 s{sT[0]}, s{sT[0]}, s{sW}
    s_lshl_b32 s{sT[0]}, s{sT[0]}, 8
    s_add_u32 s{sT[0]}, s{sT[0]}, {TS_OFF}
    v_lshlrev_b32 v{t0}, 2, v{vL}
    buffer_store_dword v{vTSA}, v{t0}, {srd(R_WS)}, s{sT[0]} offen
    """)
a("L_end:")

hdr = open("sequential_preLN__compressed_kv_cla__swiglu_ffn__decode.s.ref").read().split("; @launch")[0]
open(OUT, "w").write(wrap_single(a.text(), 256, 512, LDS_BYTES, vgpr=256, header=hdr))
print("instructions:", a.ninstr, file=sys.stderr)
```
